```python
import torch

def _softmax(x, axis=-1):
    return torch.softmax(x, dim=axis)
def _gelu(x):
    return torch.nn.functional.gelu(x, approximate="tanh")
def _silu(x):
    return torch.nn.functional.silu(x)
def _sigmoid(x):
    return torch.sigmoid(x)
def _layernorm(x, axis=-1, eps=1e-5):
    m = x.mean(dim=axis, keepdim=True)
    v = x.var(dim=axis, keepdim=True, unbiased=False)
    return (x - m) / torch.sqrt(v + eps)
def _scatter_add(tgt, idx, src, axis=0):
    return tgt.clone().index_add_(axis, idx, src)
def _segment_sum(src, seg, n):
    out = torch.zeros((n,) + src.shape[1:], dtype=src.dtype)
    return out.index_add_(0, seg, src)
def _pad(x, pw):
    flat = tuple(v for pair in reversed(pw) for v in pair)
    return torch.nn.functional.pad(x, flat)

kernel_name = 'gated_mix__spectral_gfnet__dense_activation_mish__prompt'

def setup_inputs():

    _w = (lambda a: (lambda t: t.to(torch.bfloat16) if t.is_floating_point() else t)(torch.as_tensor(a)))
    def _A_setup():
        B, S, D = 1, 2048, 512
        Df = D // 2 + 1
        return {
            "x": _w((lambda *s: torch.randn(*s, dtype=torch.bfloat16) * 0.05)(B, S, D)),
            "w_r": _w((lambda *s: torch.randn(*s, dtype=torch.bfloat16) * 1.6)(S, Df) * 0.02),
            "w_i": _w((lambda *s: torch.randn(*s, dtype=torch.bfloat16) * 1.6)(S, Df) * 0.02),
        }
    _A_in = _A_setup()

    def _B_setup():
        B, S, D, F = 1, 2048, 512, 1792
        return {
            "x": _w((lambda *s: torch.randn(*s, dtype=torch.bfloat16) * 0.05)(B, S, D)),
            "w1": _w((lambda *s: torch.randn(*s, dtype=torch.bfloat16) * 6.4)(D, F) * (D ** -0.5)),
            "b1": _w((lambda *s: torch.randn(*s, dtype=torch.bfloat16) * 0.05)(F)),
            "w2": _w((lambda *s: torch.randn(*s, dtype=torch.bfloat16) * 0.05)(F, D) * (F ** -0.5)),
        }
    _B_in = _B_setup()

    return {
        "A_x": _A_in["x"],
        "A_w_r": _A_in["w_r"],
        "A_w_i": _A_in["w_i"],
        "B_x": _B_in["x"],
        "B_w1": _B_in["w1"],
        "B_b1": _B_in["b1"],
        "B_w2": _B_in["w2"],
        "gate_w": _w((lambda *s: torch.randn(*s, dtype=torch.bfloat16) * 0.05)(512) * 16.0),
    }

def reference(A_x, A_w_r, A_w_i, B_x, B_w1, B_b1, B_w2, gate_w):
    def _A_ref(x, w_r, w_i):
        B, S, D = x.shape
        X = (lambda x, axes=(-2,-1): torch.fft.rfft2(x.float(), dim=axes))(x, axes=(-2, -1))
        W = w_r + 1j * w_i
        X = X * W
        y = (lambda x, s, axes=(-2,-1): torch.fft.irfft2(x, s=s, dim=axes).to(torch.bfloat16))(X, (S, D), axes=(-2, -1))
        return y

    def _B_ref(x, w1, b1, w2):
        h = torch.einsum("bsd,df->bsf", x, w1) + b1
        sp = torch.log1p(torch.exp(-torch.abs(h))) + torch.where(h > 0, h, torch.zeros_like(h))
        act = h * torch.tanh(sp)
        return torch.einsum("bsf,fd->bsd", act, w2)

    x = A_x
    g = _sigmoid((x * gate_w).sum(-1, keepdims=True))
    a = _A_ref(x, A_w_r, A_w_i)
    b = _B_ref(x, B_w1, B_b1, B_w2)
    return g * a + (1 - g) * b
```

```python
import re

TRANS = ('v_exp_f32','v_log_f32','v_rcp_f32','v_rsq_f32','v_sqrt_f32','v_sin_f32','v_cos_f32')
REG_RE = re.compile(r'^(-|\|)*\s*(?:abs\()?([vas])(?:(\d+)|\[(\d+):(\d+)\])\)?\|?$')

def regs_of(tok):
    t = tok.strip()
    t = t.replace('|','').replace('-','',1) if t.startswith(('-','|')) else t
    t = t.replace('|','')
    if t == 'vcc': return [('s','vcc')]
    if t in ('vcc_lo','vcc_hi'): return [('s','vcc')]
    if t == 'exec' or t in('exec_lo','exec_hi'): return [('s','exec')]
    if t == 'm0': return [('s','m0')]
    if t == 'scc': return []
    m = re.match(r'^([vas])(\d+)$', t)
    if m: return [(m.group(1), int(m.group(2)))]
    m = re.match(r'^([vas])\[(\d+):(\d+)\]$', t)
    if m: return [(m.group(1), i) for i in range(int(m.group(2)), int(m.group(3))+1)]
    return []

class Ins:
    __slots__=('text','op','cls','dst','src','srcC','isx4store','dpp','label','target','lds','passes','raw','ssrc_const')
    def __init__(s,text):
        s.text=text; s.dst=[]; s.src=[]; s.srcC=[]; s.isx4store=False; s.dpp=False
        s.label=None; s.target=None; s.lds=False; s.passes=0; s.raw=False; s.cls='other'; s.op=''
        t=text.split(';')[0].strip()
        if not t: s.cls='nil'; return
        if t.endswith(':'):
            s.cls='label'; s.label=t[:-1]; return
        if t.startswith('.'):
            s.cls='nil'; return
        parts=t.split(None,1); op=parts[0]; s.op=op
        rest=parts[1] if len(parts)>1 else ''
        ops=[];cur='';d=0
        for ch in rest:
            if ch in '[(': d+=1
            if ch in '])': d-=1
            if ch==',' and d==0: ops.append(cur.strip()); cur=''
            else: cur+=ch
        if cur.strip(): ops.append(cur.strip())
        mods=''
        if ops:
            last=ops[-1].split(None,1)
            if len(last)>1 and not last[0].startswith(('hwreg','vmcnt','lgkmcnt')):
                ops[-1]=last[0]; mods=last[1]
        base=re.sub(r'_(e32|e64|dpp|sdwa)$','',op)
        R=lambda i: regs_of(ops[i]) if i<len(ops) else []
        if op.startswith('v_mfma'):
            s.cls='mfma'; s.dst=R(0); s.src=R(1)+R(2); s.srcC=R(3)
            s.passes=8 if '32x32' in op else 4
        elif op.startswith('v_'):
            s.cls='trans' if base in TRANS else 'valu'
            s.dpp=('row_' in mods or 'quad_perm' in mods or op.endswith('_dpp') or 'wave_' in mods)
            if base in('v_swap_b32','v_permlane32_swap_b32','v_permlane16_swap_b32'):
                s.dst=R(0)+R(1); s.src=R(0)+R(1)
            elif base.startswith('v_cmp'):
                s.dst=R(0); s.src=sum((R(i) for i in range(1,len(ops))),[])
            else:
                s.dst=R(0); s.src=sum((R(i) for i in range(1,len(ops))),[])
                if base in('v_fmac_f32','v_dot2c_f32_bf16','v_fmac_f32','v_pk_fmac_f16') or s.dpp: s.src+=R(0)
                if base=='v_cndmask_b32' and len(ops)==3: s.src+=[('s','vcc')]
                if base=='v_writelane_b32': s.src+=R(0)
        elif op.startswith('ds_'):
            s.cls='ds'
            if op.startswith('ds_read'): s.dst=R(0); s.src=sum((R(i) for i in range(1,len(ops))),[])
            elif op.startswith(('ds_bpermute','ds_permute','ds_swizzle')): s.dst=R(0); s.src=sum((R(i) for i in range(1,len(ops))),[])
            else: s.src=sum((R(i) for i in range(len(ops))),[])
        elif op.startswith(('buffer_','global_')):
            s.cls='vmem'
            words=(' '+mods+' ')
            s.lds=' lds ' in words
            if op in('buffer_inv','buffer_wbl2'): pass
            elif 'load' in op and not s.lds:
                s.dst=R(0); s.src=sum((R(i) for i in range(1,len(ops))),[])
                if 'd16' in op: s.src+=R(0)
            elif 'load' in op:
                s.src=sum((R(i) for i in range(len(ops))),[])+[('s','m0')]
            elif 'atomic' in op:
                s.src=sum((R(i) for i in range(len(ops))),[])
                if ' sc0 ' in words: s.dst=R(0) if op.startswith('buffer_') else R(0)
            else:
                s.src=sum((R(i) for i in range(len(ops))),[])
                if op.endswith(('x4','x3')):
                    s.isx4store=True
                    s.srcC=R(0) if op.startswith('buffer_') else R(1)
        elif op.startswith('s_'):
            s.cls='salu'
            if op in('s_branch',) or op.startswith('s_cbranch'):
                s.cls='branch'; s.target=ops[0]
                if 'vcc' in op: s.src=[('s','vcc')]
                if 'exec' in op: s.src=[('s','exec')]
            elif op=='s_nop': s.cls='nop'; s.passes=int(ops[0],0)+1
            elif op in('s_waitcnt','s_barrier','s_endpgm','s_sleep','s_setprio'): s.cls='misc'
            elif op.startswith('s_cmp'): s.src=sum((R(i) for i in range(len(ops))),[])
            elif op.startswith(('s_load','s_memtime','s_memrealtime','s_buffer_load')):
                s.cls='smem'; s.dst=R(0); s.src=sum((R(i) for i in range(1,len(ops))),[])
            else:
                s.dst=R(0); s.src=sum((R(i) for i in range(1,len(ops))),[])
                if 'saveexec' in op: s.dst+=[('s','exec')]; s.src+=[('s','exec')]

def need_between(p,c):
    n=0
    pd=set(p.dst);
    if p.cls in('valu','trans'):
        vd={r for r in pd if r[0] in 'va'}; sd={r for r in pd if r[0]=='s'}
        if c.cls=='mfma' and vd & (set(c.src)|set(c.srcC)): n=max(n,2)
        if p.cls=='trans' and c.cls in('valu',) and vd & set(c.src): n=max(n,1)
        if p.cls=='trans' and c.cls=='mfma' and vd & (set(c.src)|set(c.srcC)): n=max(n,2)
        if c.cls in('valu','trans'):
            if c.dpp and vd & set(c.src): n=max(n,2)
            if c.op.startswith('v_permlane') and vd & set(c.src): n=max(n,2)
            if c.op.startswith(('v_readfirstlane','v_readlane')) and vd & set(c.src): n=max(n,1)
            if sd & set(c.src):
                n=max(n,4 if c.op.startswith(('v_readlane','v_writelane')) else 2)
        if p.op.startswith('v_dot'):
            if c.op==p.op:
                if vd & set(c.src[:-1]): n=max(n,3)
            elif vd & (set(c.src)|set(c.dst)|set(c.srcC)): n=max(n,3)
        if c.cls=='vmem' and sd & set(c.src): n=max(n,5)
        if c.cls in('salu','branch','smem') and sd & set(c.src): n=max(n,3 if c.cls!='branch' else 5)
    if p.cls=='mfma':
        P=p.passes
        if c.cls=='mfma':
            if pd & set(c.src): n=max(n,8 if P==4 else 12)
            if pd & set(c.srcC):
                if p.dst==c.srcC and p.passes==c.passes: pass
                else: n=max(n,6 if P==4 else 10)
            elif pd & set(c.dst):
                n=max(n,8 if P==4 else 12)
        elif c.cls in('valu','trans','ds','vmem'):
            if pd & (set(c.src)|set(c.dst)): n=max(n,8 if P==4 else 12)
        if c.cls in('valu','trans') and set(p.srcC) & set(c.dst): n=max(n,3 if P==4 else 7)
    if p.cls=='vmem' and p.isx4store:
        if set(p.srcC) & set(c.dst): n=max(n,2)
    if p.cls=='salu' and ('s','m0') in pd:
        if c.cls=='vmem' and c.lds: n=max(n,1)
    if p.cls=='salu' and ('s','exec') in pd and c.dpp: n=max(n,1)
    return n

WINDOW=14
class Asm:
    def __init__(s):
        s.items=[]
        s.vm=0
        s.lg=0
        s.cond_depth=0
    def e(s,text):
        for line in text.split('\n'):
            line=line.strip()
            if not line: continue
            i=Ins(line); s.items.append(i)
            if i.cls=='vmem' and i.op not in('buffer_inv',): s.vm+=1
            if i.cls=='ds': s.lg+=1
        return s
    def vmtok(s): return s.vm
    def lgtok(s): return s.lg
    def wait_vm(s,tok):
        n=s.vm-tok
        assert n>=0
        s.e(f's_waitcnt vmcnt({min(n,62)})')
    def wait_lg(s,tok):
        n=s.lg-tok
        assert n>=0
        s.e(f's_waitcnt lgkmcnt({min(n,15)})')
    def wait_both(s,vtok,ltok):
        n=s.vm-vtok; m=s.lg-ltok
        assert 0<=n<=63
        s.e(f's_waitcnt vmcnt({n}) lgkmcnt({min(m,15)})')
    def cond_begin(s): s._saved=(s.vm,s.lg);
    def cond_end(s): s.vm,s.lg=s._saved
    def finalize(s):
        items=s.items
        incoming={}
        for it in range(3):
            out=[]; hist=[]
            newinc={}
            alive=True
            for ins in items:
                if ins.cls=='nil': out.append(ins); continue
                if ins.cls=='label':
                    hs=([hist] if alive else [])+incoming.get(ins.label,[])
                    merged={}
                    for h in hs:
                        for (p,d) in h:
                            k=id(p)
                            if k not in merged or merged[k][1]>d: merged[k]=(p,d)
                    hist=list(merged.values()); alive=True
                    out.append(ins); continue
                need=0
                for (p,d) in hist:
                    n=need_between(p,ins)
                    if n>d: need=max(need,n-d)
                if need>0:
                    k=need
                    while k>0:
                        t=min(k,16); nop=Ins(f's_nop {t-1}'); out.append(nop); k-=t
                    hist=[(p,d+need) for (p,d) in hist]
                out.append(ins)
                adv=ins.passes if ins.cls=='nop' else 1
                hist=[(p,d+adv) for (p,d) in hist if d+adv<WINDOW]
                if ins.cls!='nop': hist.append((ins,0))
                if ins.cls=='branch':
                    newinc.setdefault(ins.target,[]).append(list(hist))
                    if ins.op=='s_branch': alive=False; hist=[]
                if ins.op=='s_endpgm': alive=False; hist=[]
            incoming=newinc
        s.out=out
        return out
    def text(s):
        o=[]
        for i in s.finalize():
            t=i.text
            o.append(t if (i.cls in('label','nil')) else '  '+t)
        return '\n'.join(o)+'\n'
    def count(s):
        from collections import Counter
        return Counter(i.cls for i in s.out)

def verify_waits(items, take=lambda ins,n: False, name=''):
    labels={i.label:k for k,i in enumerate(items) if i.cls=='label'}
    vmq=[]; lgq=[]; errs=[]; seen={}
    pc=0; steps=0
    while pc<len(items):
        steps+=1
        if steps>400000: errs.append('path too long'); break
        i=items[pc]
        if i.cls in('nil','label','nop'): pc+=1; continue
        if i.op=='s_endpgm': break
        if i.op=='s_waitcnt':
            m=re.search(r'vmcnt\((\d+)\)',i.text)
            if m:
                n=int(m.group(1))
                while len(vmq)>n: vmq.pop(0)
            m=re.search(r'lgkmcnt\((\d+)\)',i.text)
            if m:
                n=int(m.group(1))
                if any(x[1]=='smem' for x in lgq):
                    if n==0: lgq=[]
                else:
                    while len(lgq)>n: lgq.pop(0)
            pc+=1; continue
        touched=set(i.src)|set(i.srcC)|set(i.dst)
        for q,nm in((vmq,'vm'),(lgq,'lg')):
            for (regs,kind,txt) in q:
                t=touched
                if i.cls=='vmem' and nm=='vm' and kind=='load':
                    t=set(i.src)|set(i.srcC)
                    if 'd16' in i.op: t=t-set(i.dst)
                hit=regs & t
                if hit: errs.append(f'{name}: `{i.text}` touches {sorted(hit,key=str)[:4]} pending from `{txt}`')
        if i.cls=='vmem' and i.op!='buffer_inv':
            vmq.append((set(i.dst),'load' if i.dst else 'other',i.text))
            if len(vmq)>63: vmq.pop(0)
        elif i.cls=='ds': lgq.append((set(i.dst),'ds',i.text))
        elif i.cls=='smem': lgq.append((set(i.dst),'smem',i.text))
        if i.cls=='branch':
            n=seen.get(pc,0); seen[pc]=n+1
            tgt=labels[i.target]
            if i.op=='s_branch': pc=tgt; continue
            if take(i,n): pc=tgt; continue
        pc+=1
    return errs
```

```python
import sys
from dsl import Asm, verify_waits

NAME='gated_mix__spectral_gfnet__dense_activation_mish__prompt'
WS_T   =0x000000
WS_WT  =0x200000
WS_QT  =0x400000
WS_G   =0x402000
WS_Y   =0x600000
WS_ACT =0x800000
WS_W2  =0x1000000
WS_SIZE=0x1200000
RT_STRIDE=56*4096
S_X,S_WR,S_WI,S_W1,S_B1,S_W2,S_GW,S_OUT,S_WS,S_DBG=8,12,16,20,24,28,32,36,40,44
def srd(n): return f's[{n}:{n+3}]'
SRDS=[(S_X,0,2048*1024),(S_WR,8,2048*514),(S_WI,16,2048*514),(S_W1,32,512*3584),(S_B1,40,3584),
      (S_W2,48,1792*1024),(S_GW,56,1024),(S_OUT,64,2048*1024),(S_WS,80,WS_SIZE),(S_DBG,72,256)]
def vr(b,n=1): return f'v{b}' if n==1 else f'v[{b}:{b+n-1}]'
def ar(b,n=1): return f'a{b}' if n==1 else f'a[{b}:{b+n-1}]'
S_WV=3
LOG2E=1.4426950408889634

class Cfg:
    sc=''

def prologue(a,which,end):
    a.e(f's_cmp_ge_u32 s2, 256')
    a.e(f's_cbranch_scc1 {end}')
    for (n,off,sz) in SRDS:
        if n in which: a.e(f's_load_dwordx2 s[{n}:{n+1}], s[0:1], {off}')
    a.e('v_lshrrev_b32 v1, 6, v0')
    a.e('v_and_b32 v0, 63, v0')
    a.e(f'v_readfirstlane_b32 s{S_WV}, v1')
    a.e('v_and_b32 v1, 15, v0')
    a.e('v_lshrrev_b32 v2, 4, v0')
    for (n,off,sz) in SRDS:
        if n in which:
            a.e(f's_mov_b32 s{n+2}, {hex(sz)}'); a.e(f's_mov_b32 s{n+3}, 0x20000')
    a.e('s_waitcnt lgkmcnt(0)')

def sincos(a,arg,dc,ds,negs=False):
    a.e(f'v_cos_f32 {dc}, {arg}')
    if negs: a.e(f'v_sin_f32_e64 {ds}, -{arg}')
    else: a.e(f'v_sin_f32 {ds}, {arg}')

def fl(x):
    import struct
    return hex(struct.unpack('<I',struct.pack('<f',float(x)))[0])

XA_BASE=0; XA_PITCH=1152
W1_BASE=9216; W1_GP=960
K1_LDS=W1_BASE+128*W1_GP

def k1(a,cfg,end):
    sc=cfg.sc
    a.e('''s_and_b32 s48, s2, 7
    s_lshr_b32 s49, s2, 3
    s_lshr_b32 s50, s2, 5
    s_and_b32 s51, s2, 31''')
    V_L16=3
    a.e(f'v_lshlrev_b32 v{V_L16}, 4, v0')
    a.e(f'''s_lshl_b32 s52, s50, 18
    s_lshl_b32 s53, s51, 10
    s_add_u32 s52, s52, s53
    s_lshl_b32 s53, s{S_WV}, 16
    s_add_u32 s52, s52, s53
    s_mul_i32 s53, s{S_WV}, {2*XA_PITCH}
    s_add_u32 s53, s53, {XA_BASE}
    s_mov_b32 m0, s53
    s_add_u32 s54, s52, 32768
    buffer_load_dwordx4 v{V_L16}, {srd(S_X)}, s52 offen lds
    s_add_u32 s53, s53, {XA_PITCH}
    s_mov_b32 m0, s53
    s_nop 0
    buffer_load_dwordx4 v{V_L16}, {srd(S_X)}, s54 offen lds''')
    tok_xa=a.vmtok()
    V_GW=4
    a.e(f'buffer_load_dwordx4 {vr(V_GW,4)}, v{V_L16}, {srd(S_GW)}, 0 offen')
    tok_gw=a.vmtok()
    a.e('''s_lshr_b32 s55, s51, 3
    s_lshr_b32 s56, s51, 2
    s_and_b32 s56, s56, 1
    s_and_b32 s57, s51, 3
    s_lshl_b32 s58, s55, 4
    s_lshl_b32 s59, s56, 10
    s_add_u32 s58, s58, s59
    s_lshl_b32 s59, s57, 8
    s_add_u32 s58, s58, s59''')
    V_C=8; V_KAP=9; V_T=10; V_WOFF=11
    a.e(f'''s_and_b32 s59, s{S_WV}, 1
    s_lshl_b32 s59, s59, 3
    v_and_b32 v{V_C}, 7, v0
    v_add_u32 v{V_C}, s59, v{V_C}
    s_lshr_b32 s59, s{S_WV}, 1
    s_lshl_b32 s59, s59, 3
    v_lshrrev_b32 v{V_KAP}, 3, v0
    v_add_u32 v{V_KAP}, s59, v{V_KAP}
    v_mul_u32_u24 v{V_WOFF}, 514, v{V_C}
    v_lshlrev_b32 v{V_T}, 2, v{V_KAP}
    v_add_u32 v{V_WOFF}, v{V_WOFF}, v{V_T}
    s_mul_i32 s60, s58, 514
    s_lshl_b32 s59, s50, 6
    s_add_u32 s60, s60, s59''')
    V_WR=12; V_WI=16
    for r in range(4):
        a.e(f'buffer_load_dword v{V_WR+r}, v{V_WOFF}, {srd(S_WR)}, s60 offen')
        a.e(f'buffer_load_dword v{V_WI+r}, v{V_WOFF}, {srd(S_WI)}, s60 offen')
        if r<3: a.e(f's_add_u32 s60, s60, {64*514}')
    tok_wt=a.vmtok()
    V_SP=20
    V_J=28; V_JR=29; V_SPO=30
    a.e(f'''s_lshl_b32 s59, s50, 2
    s_xor_b32 s61, s{S_WV}, 3
    s_or_b32 s61, s61, s59''')
    a.e('s_cmp_lg_u32 s61, 0')
    a.e('s_cbranch_scc1 L_k1_nospec1')
    a.cond_begin()
    a.e(f'''v_lshlrev_b32 v{V_J}, 6, v2
    v_add_u32 v{V_J}, v{V_J}, v1
    v_add_u32 v{V_J}, s58, v{V_J}
    v_sub_u32 v{V_JR}, 2048, v{V_J}
    v_and_b32 v{V_JR}, 2047, v{V_JR}
    v_mul_u32_u24 v{V_J}, 514, v{V_J}
    v_mul_u32_u24 v{V_JR}, 514, v{V_JR}''')
    for n,(S,vv,off) in enumerate([(S_WR,V_J,0),(S_WR,V_J,512),(S_WR,V_JR,0),(S_WR,V_JR,512),(S_WI,V_J,0),(S_WI,V_J,512),(S_WI,V_JR,0),(S_WI,V_JR,512)]):
        a.e(f'buffer_load_ushort v{V_SP+n}, v{vv}, {srd(S)}, 0 offen offset:{off}')
    a.cond_end()
    a.e('L_k1_nospec1:')
    tok_sp=a.vmtok()
    V_W2O=31; V_W2=32
    a.e(f'''s_lshl_b32 s62, s2, 2
    s_add_u32 s62, s62, s{S_WV}
    s_and_b32 s63, s62, 1
    s_lshr_b32 s64, s62, 1
    s_and_b32 s65, s64, 7
    s_lshr_b32 s64, s64, 3
    s_cmp_lt_u32 s62, 896
    s_cselect_b32 s66, 0, 0x40000000
    v_lshlrev_b32 v{V_W2O}, 12, v2
    v_lshlrev_b32 v{V_T}, 3, v1
    v_add3_u32 v{V_W2O}, v{V_W2O}, v{V_T}, s66
    s_lshl_b32 s67, s64, 15
    s_lshl_b32 s68, s65, 7
    s_add_u32 s67, s67, s68
    s_lshl_b32 s68, s63, 2
    s_add_u32 s67, s67, s68
    s_add_u32 s68, s67, 16384''')
    for e in range(8):
        a.e(f'buffer_load_dword v{V_W2+e}, v{V_W2O}, {srd(S_W2)}, s{67 if e<4 else 68} offen offset:{(e&3)*1024}')
    tok_w2=a.vmtok()
    a.e('''s_lshr_b32 s69, s48, 1
    s_lshl_b32 s69, s69, 2
    s_lshr_b32 s70, s49, 3
    s_add_u32 s69, s69, s70
    s_and_b32 s70, s48, 1
    s_lshl_b32 s70, s70, 3
    s_and_b32 s71, s49, 7
    s_add_u32 s70, s70, s71
    s_and_b32 s71, s70, 1''')
    V_BO=40; V_BRAW=42
    a.e(f'''v_lshlrev_b32 v{V_BO}, 3, v2
    s_mul_i32 s72, s70, 224
    s_lshl_b32 s73, s71, 5
    s_add_u32 s73, s72, s73
    s_cmp_eq_u32 s71, 0
    s_cselect_b32 s74, 192, 0
    s_add_u32 s74, s72, s74''')
    for t in range(6):
        a.e(f'buffer_load_dwordx2 {vr(V_BRAW+2*t,2)}, v{V_BO}, {srd(S_B1)}, s73 offen offset:{32*t}')
    a.e(f'buffer_load_dwordx2 {vr(V_BRAW+12,2)}, v{V_BO}, {srd(S_B1)}, s74 offen')
    tok_b=a.vmtok()
    V_XO=56; V_DO=57
    A_X=0
    a.e(f'''v_lshlrev_b32 v{V_XO}, 10, v1
    v_lshlrev_b32 v{V_T}, 4, v2
    v_add_u32 v{V_XO}, v{V_XO}, v{V_T}
    s_lshl_b32 s75, s69, 17
    s_lshl_b32 s76, s{S_WV}, 15
    s_add_u32 s75, s75, s76
    s_add_u32 s76, s75, 16384
    v_mul_u32_u24 v{V_T}, 4682, v0
    v_lshrrev_b32 v{V_T}, 16, v{V_T}
    v_mul_u32_u24 v{V_DO}, 3584, v{V_T}
    v_mul_u32_u24 v{V_T}, 14, v{V_T}
    v_sub_u32 v{V_T}, v0, v{V_T}
    v_lshlrev_b32 v{V_T}, 4, v{V_T}
    v_add_u32 v{V_DO}, v{V_DO}, v{V_T}
    s_mul_i32 s77, s{S_WV}, {8*14336}
    s_add_u32 s77, s77, s72
    s_mul_i32 s78, s{S_WV}, {8*W1_GP}
    s_add_u32 s78, s78, {W1_BASE}''')
    tok_c=[]
    def g1_chunk_loads(kc):
        for st in range(4*kc,4*kc+4):
            for nb in range(2):
                a.e(f'buffer_load_dwordx4 {ar(A_X+8*st+4*nb,4)}, v{V_XO}, {srd(S_X)}, s{75+nb} offen offset:{64*st}')
        a.e('s_mov_b32 exec_hi, 0x00ffffff')
        for u in range(8):
            a.e(f's_mov_b32 m0, s78')
            a.e(f's_add_u32 s78, s78, {W1_GP}')
            a.e(f'buffer_load_dwordx4 v{V_DO}, {srd(S_W1)}, s77 offen lds')
            a.e(f's_add_u32 s77, s77, 14336')
        a.e('s_mov_b32 exec_hi, -1')
        a.e(f's_add_u32 s77, s77, {24*14336}')
        a.e(f's_add_u32 s78, s78, {24*W1_GP}')
        tok_c.append(a.vmtok())
    g1_chunk_loads(0); g1_chunk_loads(1)
    V_B1C=60; V_B1S=68
    V_TC=76; V_TS=80
    V_A2=84; V_A2N=88
    T0=92
    a.e(f'''s_lshl_b32 s79, s{S_WV}, 4
    v_add_u32 v{T0}, s79, v1
    v_cvt_f32_u32 v{T0}, v{T0}
    v_mul_f32 v{T0+1}, {fl(1/64)}, v{T0}
    v_lshlrev_b32 v{T0+2}, 2, v2
    v_cvt_f32_u32 v{T0+2}, v{T0+2}
    v_mul_f32 v{T0+3}, v{T0+2}, v{T0+1}''')
    for ks in range(2):
        for hh in range(2):
            cs=[]
            for u in range(4):
                n=32*ks+16*hh+u
                arg=T0+4
                if n==0: src=f'v{T0+3}'
                else:
                    a.e(f'v_fmamk_f32 v{arg}, v{T0+1}, {fl(n)}, v{T0+3}'); src=f'v{arg}'
                sincos(a,src,f'v{T0+5+u}',f'v{T0+9+u}',negs=True)
            for d in range(2):
                a.e(f'v_cvt_pk_bf16_f32 v{V_B1C+4*ks+2*hh+d}, v{T0+5+2*d}, v{T0+6+2*d}')
                a.e(f'v_cvt_pk_bf16_f32 v{V_B1S+4*ks+2*hh+d}, v{T0+9+2*d}, v{T0+10+2*d}')
    a.e(f'''v_and_b32 v{T0+4}, 1, v2
    v_lshlrev_b32 v{T0+4}, 2, v{T0+4}
    v_cvt_f32_u32 v{T0+4}, v{T0+4}
    v_mul_f32 v{T0+5}, {fl(1/512)}, v{T0}
    v_mul_f32 v{T0+6}, v{T0+4}, v{T0+5}''')
    for r in range(4):
        if r==0: src=f'v{T0+6}'
        else:
            a.e(f'v_fmamk_f32 v{T0+7}, v{T0+5}, {fl(r)}, v{T0+6}'); src=f'v{T0+7}'
        sincos(a,src,f'v{V_TC+r}',f'v{V_TS+r}',negs=True)
    a.e(f'''v_lshrrev_b32 v{T0+5}, 2, v1
    v_cvt_f32_u32 v{T0+5}, v{T0+5}
    v_mul_f32 v{T0+5}, {fl(1/8)}, v{T0+5}
    v_and_b32 v{T0+6}, 1, v1
    v_cvt_f32_u32 v{T0+6}, v{T0+6}
    v_mul_f32 v{T0+6}, {fl(0.25)}, v{T0+6}
    v_fma_f32 v{T0+6}, v{T0+4}, v{T0+5}, v{T0+6}
    v_lshrrev_b32 v{T0+7}, 1, v1
    v_and_b32 v{T0+7}, 1, v{T0+7}
    v_lshrrev_b32 v{T0+8}, 1, v2
    v_cmp_eq_u32 s[80:81], v{T0+7}, v{T0+8}
    v_and_b32 v{T0+9}, 13, v1
    v_cmp_eq_u32 vcc, 1, v{T0+9}
    s_and_b64 s[82:83], vcc, s[80:81]''')
    for dw in range(4):
        if dw==0: src=f'v{T0+6}'
        else:
            a.e(f'v_fmamk_f32 v{T0+9}, v{T0+5}, {fl(dw)}, v{T0+6}'); src=f'v{T0+9}'
        sincos(a,src,f'v{T0+10}',f'v{T0+11}')
        a.e(f'v_cvt_pk_bf16_f32 v{T0+10}, v{T0+10}, v{T0+11}')
        a.e(f'v_cndmask_b32 v{V_A2+dw}, 0, v{T0+10}, s[80:81]')
        a.e(f'v_mov_b32 v{T0+10}, {hex(0x3F80 if dw%2==0 else 0xBF80)}')
        a.e(f'v_cndmask_b32 v{V_A2N+dw}, 0, v{T0+10}, s[82:83]')
    V_XA=108
    a.e(f'''v_and_b32 v{T0}, 3, v0
    v_lshrrev_b32 v{T0+1}, 1, v{T0}
    v_mul_u32_u24 v{V_XA}, {XA_PITCH}, v{T0+1}
    v_and_b32 v{T0}, 1, v{T0}
    v_lshlrev_b32 v{T0}, 3, v{T0}
    v_lshrrev_b32 v{T0+1}, 2, v1
    v_lshl_add_u32 v{T0+1}, v2, 2, v{T0+1}
    v_lshlrev_b32 v{T0+1}, 4, v{T0+1}
    v_add3_u32 v{V_XA}, v{V_XA}, v{T0}, v{T0+1}''')
    if XA_BASE: a.e(f'v_add_u32 v{V_XA}, {XA_BASE}, v{V_XA}')
    a.wait_vm(tok_xa)
    a.e('s_barrier')
    V_AF=112
    for pi in range(4):
        for ks in range(2):
            for hh in range(2):
                a.e(f'ds_read_b64_tr_b16 {vr(V_AF+8*pi+4*ks+2*hh,2)}, v{V_XA} offset:{pi*2*XA_PITCH+ks*512+hh*256}')
    V_GX=144
    a.e(f'''s_mul_i32 s84, s{S_WV}, {2*XA_PITCH}
    v_add_u32 v{T0}, s84, v{V_L16}''')
    lg_af=a.lgtok()
    a.e(f'ds_read_b128 {vr(V_GX,4)}, v{T0} offset:{XA_BASE}')
    a.e(f'ds_read_b128 {vr(V_GX+4,4)}, v{T0} offset:{XA_BASE+XA_PITCH}')
    lg_gx=a.lgtok()
    V_D1C=152; V_D1S=168
    a.wait_lg(lg_af)
    for pi in range(4):
        for ks in range(2):
            A=vr(V_AF+8*pi+4*ks,4)
            c=vr(V_D1C+4*pi,4); s=vr(V_D1S+4*pi,4)
            a.e(f'v_mfma_f32_16x16x32_bf16 {c}, {A}, {vr(V_B1C+4*ks,4)}, {c if ks else 0}')
            a.e(f'v_mfma_f32_16x16x32_bf16 {s}, {A}, {vr(V_B1S+4*ks,4)}, {s if ks else 0}')
    a.wait_vm(tok_gw); a.wait_lg(lg_gx)
    V_Z=T0+2
    for rr in range(2):
        a.e(f'v_dot2_f32_bf16 v{V_Z+rr}, v{V_GX+4*rr}, v{V_GW}, 0')
        for d in range(1,4):
            a.e(f'v_dot2_f32_bf16 v{V_Z+rr}, v{V_GX+4*rr+d}, v{V_GW+d}, v{V_Z+rr}')
    for sh,extra in [('row_shr:1',''),('row_shr:2',''),('row_shr:4',''),('row_shr:8',''),]:
        for rr in range(2):
            a.e(f'v_add_f32_dpp v{V_Z+rr}, v{V_Z+rr}, v{V_Z+rr} {sh} row_mask:0xf bank_mask:0xf bound_ctrl:1')
    for rr in range(2):
        a.e(f'v_add_f32_dpp v{V_Z+rr}, v{V_Z+rr}, v{V_Z+rr} row_bcast:15 row_mask:0xa bank_mask:0xf')
    for rr in range(2):
        a.e(f'v_add_f32_dpp v{V_Z+rr}, v{V_Z+rr}, v{V_Z+rr} row_bcast:31 row_mask:0xc bank_mask:0xf')
    for rr in range(2):
        a.e(f'v_mul_f32 v{V_Z+rr}, {fl(-LOG2E)}, v{V_Z+rr}')
    for rr in range(2): a.e(f'v_exp_f32 v{V_Z+rr}, v{V_Z+rr}')
    for rr in range(2): a.e(f'v_add_f32 v{V_Z+rr}, 1.0, v{V_Z+rr}')
    V_GOUT=T0+4
    for rr in range(2): a.e(f'v_rcp_f32 v{V_GOUT+rr}, v{V_Z+rr}')
    V_B2=V_AF
    TT=T0+8
    for pi in range(4):
        for h in range(2):
            c=V_D1C+4*pi+2*h; s=V_D1S+4*pi+2*h; tc=V_TC+2*h; ts=V_TS+2*h
            a.e(f'v_pk_mul_f32 {vr(TT,2)}, {vr(s,2)}, {vr(ts,2)}')
            a.e(f'v_pk_mul_f32 {vr(TT+2,2)}, {vr(s,2)}, {vr(tc,2)}')
            a.e(f'v_pk_fma_f32 {vr(TT,2)}, {vr(c,2)}, {vr(tc,2)}, {vr(TT,2)} neg_lo:[0,0,1] neg_hi:[0,0,1]')
            a.e(f'v_pk_fma_f32 {vr(TT+2,2)}, {vr(c,2)}, {vr(ts,2)}, {vr(TT+2,2)}')
            a.e(f'v_cvt_pk_bf16_f32 v{V_B2+4*pi+2*h}, v{TT}, v{TT+2}')
            a.e(f'v_cvt_pk_bf16_f32 v{V_B2+4*pi+2*h+1}, v{TT+1}, v{TT+3}')
    V_D2=V_D1C; V_D2N=V_D1S
    for pi in range(4):
        a.e(f'v_mfma_f32_16x16x32_bf16 {vr(V_D2+4*pi,4)}, {vr(V_A2,4)}, {vr(V_B2+4*pi,4)}, 0')
        a.e(f'v_mfma_f32_16x16x32_bf16 {vr(V_D2N+4*pi,4)}, {vr(V_A2N,4)}, {vr(V_B2+4*pi,4)}, 0')
    a.e(f'''s_cmp_eq_u32 s{S_WV}, 0
    s_cselect_b32 s84, 1, 0
    s_mov_b32 s85, 0''')
    V_TO=V_GX
    for pi in range(4):
        for rho in range(2):
            re=V_D2+4*pi+2*rho; im=re+1
            a.e(f'v_cndmask_b32 v{im}, v{im}, v{V_D2N+4*pi+2*rho+1}, s[84:85]')
            a.e(f'v_cvt_pk_bf16_f32 v{V_TO+2*pi+rho}, v{re}, v{im}')
    a.wait_vm(tok_wt)
    V_P0=V_D1S; V_P1=V_D1S+4
    a.e(f'''s_mov_b32 s84, 0x05040100
    s_mov_b32 s85, 0x07060302''')
    for r in range(4):
        a.e(f'v_perm_b32 v{V_P0+r}, v{V_WI+r}, v{V_WR+r}, s84')
        a.e(f'v_perm_b32 v{V_P1+r}, v{V_WI+r}, v{V_WR+r}, s85')
    V_PQ=V_B1C
    a.e('s_cmp_lg_u32 s61, 0')
    a.e('s_cbranch_scc1 L_k1_nospec2')
    a.wait_vm(tok_sp)
    for n in range(8): a.e(f'v_lshlrev_b32 v{V_SP+n}, 16, v{V_SP+n}')
    s=V_SP; t=V_B1S
    a.e(f'''v_add_f32 v{t}, v{s}, v{s+2}
    v_add_f32 v{t+1}, v{s+1}, v{s+3}
    v_sub_f32 v{t+2}, v{s+4}, v{s+6}
    v_sub_f32 v{t+3}, v{s+5}, v{s+7}
    v_add_f32 v{t+4}, v{t}, v{t+1}
    v_add_f32 v{t+5}, v{t+2}, v{t+3}
    v_sub_f32 v{t+6}, v{t}, v{t+1}
    v_sub_f32 v{t+7}, v{t+2}, v{t+3}
    v_mul_f32 v{t+4}, {fl(0.25)}, v{t+4}
    v_mul_f32 v{t+5}, {fl(0.25)}, v{t+5}
    v_mul_f32 v{t+6}, {fl(0.25)}, v{t+6}
    v_mul_f32 v{t+7}, {fl(0.25)}, v{t+7}
    v_cvt_pk_bf16_f32 v{V_PQ}, v{t+4}, v{t+5}
    v_cvt_pk_bf16_f32 v{V_PQ+1}, v{t+6}, v{t+7}''')
    a.e('L_k1_nospec2:')
    a.wait_vm(tok_w2)
    V_Q0=V_D1S+8; V_Q1=V_D1S+12
    for dw in range(4):
        a.e(f'v_perm_b32 v{V_Q0+dw}, v{V_W2+2*dw+1}, v{V_W2+2*dw}, s84')
        a.e(f'v_perm_b32 v{V_Q1+dw}, v{V_W2+2*dw+1}, v{V_W2+2*dw}, s85')
    V_BIAS=112
    a.wait_vm(tok_b)
    for t in range(7):
        for d in range(2):
            raw=V_BRAW+2*t+d
            a.e(f'v_lshlrev_b32 v{V_BIAS+4*t+2*d}, 16, v{raw}')
            a.e(f'v_and_b32 v{V_BIAS+4*t+2*d+1}, 0xffff0000, v{raw}')
    g1_chunk_loads(2); g1_chunk_loads(3)
    a.e(f'''v_lshlrev_b32 v{T0}, 6, v2
    v_add_u32 v{T0}, v{T0}, v1
    v_add_u32 v{T0}, s79, v{T0}
    v_lshlrev_b32 v{T0}, 4, v{T0}
    s_lshl_b32 s86, s2, 13
    s_add_u32 s86, s86, {WS_T}
    s_add_u32 s87, s86, 4096
    buffer_store_dwordx4 {vr(V_TO,4)}, v{T0}, {srd(S_WS)}, s86 offen {sc}
    buffer_store_dwordx4 {vr(V_TO+4,4)}, v{T0}, {srd(S_WS)}, s87 offen {sc}''')
    a.e(f'''s_lshl_b32 s86, s50, 3
    s_lshl_b32 s87, s{S_WV}, 1
    s_add_u32 s86, s86, s87
    s_lshr_b32 s87, s86, 4
    s_lshl_b32 s87, s87, 11
    s_lshr_b32 s88, s51, 4
    s_lshl_b32 s88, s88, 10
    s_add_u32 s87, s87, s88
    s_lshr_b32 s88, s86, 2
    s_and_b32 s88, s88, 3
    s_lshl_b32 s88, s88, 8
    s_add_u32 s87, s87, s88
    s_and_b32 s88, s51, 15
    s_lshl_b32 s88, s88, 4
    s_add_u32 s87, s87, s88
    s_and_b32 s88, s86, 3
    s_lshl_b32 s88, s88, 2
    s_add_u32 s87, s87, s88
    s_add_u32 s87, s87, {WS_G}
    v_mov_b32 v{T0+1}, 0
    s_mov_b32 exec_lo, 0
    s_mov_b32 exec_hi, 0x80000000
    buffer_store_dwordx2 {vr(V_GOUT,2)}, v{T0+1}, {srd(S_WS)}, s87 offen {sc}
    s_mov_b64 exec, -1''')
    a.e(f'''v_lshlrev_b32 v{T0+2}, 14, v{V_KAP}
    v_lshl_add_u32 v{T0+2}, v{V_C}, 4, v{T0+2}
    s_lshl_b32 s86, s50, 4
    v_add_u32 v{T0+3}, s86, v{V_KAP}
    v_cmp_eq_u32 vcc, 0, v{T0+3}
    v_mov_b32 v{T0+3}, 0x40000000
    v_cndmask_b32 v{T0+3}, v{T0+2}, v{T0+3}, vcc
    s_lshl_b32 s90, s55, 11
    s_lshl_b32 s87, s56, 10
    s_add_u32 s90, s90, s87
    s_lshl_b32 s87, s57, 8
    s_add_u32 s90, s90, s87
    s_lshl_b32 s86, s50, 18
    s_add_u32 s86, s86, s90
    s_add_u32 s86, s86, {WS_WT}
    s_add_u32 s87, s86, 8192
    buffer_store_dwordx4 {vr(V_P0,4)}, v{T0+3}, {srd(S_WS)}, s86 offen {sc}
    buffer_store_dwordx4 {vr(V_P1,4)}, v{T0+2}, {srd(S_WS)}, s87 offen {sc}''')
    a.e('s_cmp_lg_u32 s61, 0')
    a.e('s_cbranch_scc1 L_k1_nospec3')
    a.cond_begin()
    a.e(f'''v_lshlrev_b32 v{T0+4}, 4, v1
    v_lshl_add_u32 v{T0+4}, v2, 2, v{T0+4}
    s_add_u32 s87, s90, {WS_QT}
    s_add_u32 s86, s90, {WS_WT}
    buffer_store_dword v{V_PQ}, v{T0+4}, {srd(S_WS)}, s86 offen {sc}
    buffer_store_dword v{V_PQ+1}, v{T0+4}, {srd(S_WS)}, s87 offen {sc}''')
    a.cond_end()
    a.e('L_k1_nospec3:')
    a.e(f'''v_add_u32 v{T0+5}, s66, v{V_L16}
    s_mul_i32 s86, s65, {RT_STRIDE}
    s_lshl_b32 s87, s64, 12
    s_add_u32 s86, s86, s87
    s_lshl_b32 s87, s63, 11
    s_add_u32 s86, s86, s87
    s_add_u32 s86, s86, {WS_W2}
    buffer_store_dwordx4 {vr(V_Q0,4)}, v{T0+5}, {srd(S_WS)}, s86 offen {sc}
    buffer_store_dwordx4 {vr(V_Q1,4)}, v{T0+5}, {srd(S_WS)}, s86 offen offset:1024 {sc}''')
    V_VA=140; V_VA6=141; V_VAH=142; V_VA6H=143
    a.e(f'''v_mul_u32_u24 v{V_VA}, 1920, v2
    v_lshrrev_b32 v{T0}, 2, v1
    v_mul_u32_u24 v{T0}, 224, v{T0}
    v_and_b32 v{T0+1}, 3, v0
    v_lshlrev_b32 v{T0+1}, 3, v{T0+1}
    v_add3_u32 v{V_VA}, v{V_VA}, v{T0}, v{T0+1}
    v_add_u32 v{V_VA}, {W1_BASE}, v{V_VA}
    s_cmp_eq_u32 s71, 0
    s_cselect_b32 s86, 192, 0
    v_add_u32 v{V_VA6}, s86, v{V_VA}
    s_lshl_b32 s86, s71, 5
    v_add_u32 v{V_VA}, s86, v{V_VA}
    v_add_u32 v{V_VAH}, {8*7680}, v{V_VA}
    v_add_u32 v{V_VA6H}, {8*7680}, v{V_VA6}''')
    V_ACC=144
    V_WF=200
    def wf_reads(st,t):
        lo=st<8
        va=(V_VA if lo else V_VAH) if t<6 else (V_VA6 if lo else V_VA6H)
        off=(st%8)*7680+(32*t if t<6 else 0)
        for hh in range(2):
            a.e(f'ds_read_b64_tr_b16 {vr(V_WF+4*t+2*hh,2)}, v{va} offset:{off+960*hh}')
    a.wait_vm(tok_c[0]); a.e('s_barrier')
    for t in range(7): wf_reads(0,t)
    for st in range(16):
        last=(st==15)
        for t in range(7):
            n_out = (14 if not last else 2*(7-t))
            a.e(f's_waitcnt lgkmcnt({n_out-2})')
            for nb in range(2):
                acc=vr(V_ACC+28*nb+4*t,4)
                c=acc if st>0 else vr(V_BIAS+4*t,4)
                a.e(f'v_mfma_f32_16x16x32_bf16 {acc}, {vr(V_WF+4*t,4)}, {ar(A_X+8*st+4*nb,4)}, {c}')
            if not last:
                if t==0 and (st+1)%4==0:
                    a.wait_vm(tok_c[(st+1)//4]); a.e('s_barrier')
                wf_reads(st+1,t)
    a.lg=0
    V_E=V_WF
    V_O=112
    a.e(f's_mov_b32 s84, {fl(LOG2E)}')
    a.e(f's_mov_b32 s85, {fl(LOG2E)}')
    a.e(f's_mov_b32 s86, {fl(43.0)}')
    def mish_pair(h,o,t):
        a.e(f'v_pk_mul_f32 {vr(t,2)}, {vr(h,2)}, s[84:85]')
        a.e(f'v_min_f32 v{t}, s86, v{t}')
        a.e(f'v_min_f32 v{t+1}, s86, v{t+1}')
        a.e(f'v_exp_f32 v{t}, v{t}')
        a.e(f'v_exp_f32 v{t+1}, v{t+1}')
        return
    pairs=[(V_ACC+28*nb+4*t+2*d, V_O+14*nb+2*t+d) for nb in range(2) for t in range(7) for d in range(2)]
    G=4
    for g0 in range(0,len(pairs),G):
        grp=pairs[g0:g0+G]
        T=lambda i: V_E+6*i
        for i,(h,o) in enumerate(grp): a.e(f'v_pk_mul_f32 {vr(T(i),2)}, {vr(h,2)}, s[84:85]')
        for i,(h,o) in enumerate(grp):
            a.e(f'v_min_f32 v{T(i)}, s86, v{T(i)}'); a.e(f'v_min_f32 v{T(i)+1}, s86, v{T(i)+1}')
        for i,(h,o) in enumerate(grp):
            a.e(f'v_exp_f32 v{T(i)}, v{T(i)}'); a.e(f'v_exp_f32 v{T(i)+1}, v{T(i)+1}')
        for i,(h,o) in enumerate(grp): a.e(f'v_pk_add_f32 {vr(T(i)+2,2)}, {vr(T(i),2)}, 2.0 op_sel_hi:[1,0]')
        for i,(h,o) in enumerate(grp): a.e(f'v_pk_mul_f32 {vr(T(i),2)}, {vr(T(i),2)}, {vr(T(i)+2,2)}')
        for i,(h,o) in enumerate(grp): a.e(f'v_pk_add_f32 {vr(T(i)+2,2)}, {vr(T(i),2)}, 2.0 op_sel_hi:[1,0]')
        for i,(h,o) in enumerate(grp):
            a.e(f'v_rcp_f32 v{T(i)+2}, v{T(i)+2}'); a.e(f'v_rcp_f32 v{T(i)+3}, v{T(i)+3}')
        for i,(h,o) in enumerate(grp): a.e(f'v_pk_mul_f32 {vr(T(i),2)}, {vr(T(i),2)}, {vr(T(i)+2,2)}')
        for i,(h,o) in enumerate(grp): a.e(f'v_pk_mul_f32 {vr(T(i),2)}, {vr(T(i),2)}, {vr(h,2)}')
        for i,(h,o) in enumerate(grp): a.e(f'v_cvt_pk_bf16_f32 v{o}, v{T(i)}, v{T(i)+1}')
    a.e(f'''s_mul_i32 s86, s70, 7
    s_add_u32 s86, s86, s71
    s_lshr_b32 s86, s86, 1
    s_lshl_b32 s87, s86, 12
    s_mul_i32 s88, s69, {2*RT_STRIDE}
    s_lshl_b32 s89, s{S_WV}, 10
    s_add_u32 s88, s88, s89
    s_add_u32 s88, s88, {WS_ACT}
    s_add_u32 s88, s88, s87
    s_mov_b32 s89, {3*4096}
    s_cmp_eq_u32 s71, 0
    s_cselect_b32 s89, s89, {(-4096+512)&0xffffffff}
    s_add_u32 s89, s89, s88
    v_lshlrev_b32 v{T0}, 3, v0''')
    for nb in range(2):
        for pp in range(3):
            a.e(f'buffer_store_dwordx4 {vr(V_O+14*nb+4*pp,4)}, v{V_L16}, {srd(S_WS)}, s88 offen {sc}')
            a.e('s_add_u32 s88, s88, 4096')
        a.e(f'buffer_store_dwordx2 {vr(V_O+14*nb+12,2)}, v{T0}, {srd(S_WS)}, s89 offen {sc}')
        if nb==0:
            a.e(f's_add_u32 s88, s88, {RT_STRIDE-3*4096}')
            a.e(f's_add_u32 s89, s89, {RT_STRIDE}')

K2_LDS=8192+16384
XB_BASE=0; ZR_BASE=8192
def p2_tables(a,V_F64R,V_F64I,V_F32R,V_F32I,V_T1C,V_T1S,V_T3C,V_T3S,T0):
    a.e(f'''s_lshl_b32 s52, s{S_WV}, 4
    v_add_u32 v{T0}, s52, v1
    v_cvt_f32_u32 v{T0}, v{T0}
    v_lshlrev_b32 v{T0+2}, 2, v2
    v_cvt_f32_u32 v{T0+2}, v{T0+2}
    v_mul_f32 v{T0+1}, {fl(1/64)}, v{T0}
    v_mul_f32 v{T0+3}, v{T0+2}, v{T0+1}''')
    def fset(dr,di,sl,base,consts):
        for u,n in enumerate(consts):
            if n==0: src=f'v{base}'
            else:
                a.e(f'v_fmamk_f32 v{T0+4}, v{sl}, {fl(n)}, v{base}'); src=f'v{T0+4}'
            sincos(a,src,f'v{T0+5}',f'v{T0+6}')
            a.e(f'v_cvt_pk_bf16_f32 v{dr+u}, v{T0+5}, v{T0+6}')
            a.e(f'v_cvt_pk_bf16_f32 v{di+u}, -v{T0+6}, v{T0+5}')
    for ks in range(4): fset(V_F64R+4*ks,V_F64I+4*ks,T0+1,T0+3,[16*ks+u for u in range(4)])
    a.e(f'''v_mul_f32 v{T0+1}, {fl(1/2048)}, v{T0}
    v_mul_f32 v{T0+3}, v{T0+2}, v{T0+1}''')
    for mb in range(2):
        for r in range(4):
            n=16*mb+r
            if n==0: src=f'v{T0+3}'
            else:
                a.e(f'v_fmamk_f32 v{T0+4}, v{T0+1}, {fl(n)}, v{T0+3}'); src=f'v{T0+4}'
            sincos(a,src,f'v{V_T1C+4*mb+r}',f'v{V_T1S+4*mb+r}',negs=True)
    a.e(f'v_cvt_f32_u32 v{T0+7}, v1')
    for eh in range(2):
        a.e(f'''v_add_f32 v{T0+1}, {fl(16*eh)}, v{T0+7}
        v_mul_f32 v{T0+1}, {fl(1/32)}, v{T0+1}
        v_mul_f32 v{T0+3}, v{T0+2}, v{T0+1}''')
        for mb in range(2): fset(V_F32R+8*eh+4*mb,V_F32I+8*eh+4*mb,T0+1,T0+3,[16*mb+u for u in range(4)])
    a.e(f'''v_cvt_f32_u32 v{T0}, s52
    v_add_f32 v{T0+2}, v{T0}, v{T0+2}''')
    for nb in range(2):
        a.e(f'''v_add_f32 v{T0+1}, {fl(16*nb)}, v{T0+7}
        v_mul_f32 v{T0+1}, {fl(1/2048)}, v{T0+1}
        v_mul_f32 v{T0+3}, v{T0+2}, v{T0+1}''')
        for r in range(4):
            if r==0: src=f'v{T0+3}'
            else:
                a.e(f'v_fmamk_f32 v{T0+4}, v{T0+1}, {fl(r)}, v{T0+3}'); src=f'v{T0+4}'
            sincos(a,src,f'v{V_T3C+4*nb+r}',f'v{V_T3S+4*nb+r}',negs=True)

def cmul_pack(a,c,s,tc,ts,dst,TT,n=4,negim=False):
    for h in range(n//2):
        cc=c+2*h; ss=s+2*h; tcc=tc+2*h; tss=ts+2*h
        a.e(f'v_pk_mul_f32 {vr(TT,2)}, {vr(ss,2)}, {vr(tss,2)}')
        a.e(f'v_pk_mul_f32 {vr(TT+2,2)}, {vr(ss,2)}, {vr(tcc,2)}')
        a.e(f'v_pk_fma_f32 {vr(TT,2)}, {vr(cc,2)}, {vr(tcc,2)}, {vr(TT,2)} neg_lo:[0,0,1] neg_hi:[0,0,1]')
        a.e(f'v_pk_fma_f32 {vr(TT+2,2)}, {vr(cc,2)}, {vr(tss,2)}, {vr(TT+2,2)}')
        ng='-' if negim else ''
        a.e(f'v_cvt_pk_bf16_f32 v{dst+2*h}, v{TT}, {ng}v{TT+2}')
        a.e(f'v_cvt_pk_bf16_f32 v{dst+2*h+1}, v{TT+1}, {ng}v{TT+3}')

def k2(a,cfg,end):
    sc=cfg.sc
    a.e('''s_and_b32 s48, s2, 7
    s_lshr_b32 s49, s2, 3
    s_lshl_b32 s50, s48, 5
    s_add_u32 s50, s50, s49''')
    V_U=8
    V_W=40
    V_GT=48
    V_Q=56
    T0=64
    a.e(f'''v_lshrrev_b32 v{T0}, 1, v2
    v_lshlrev_b32 v{T0}, 18, v{T0}
    v_lshl_add_u32 v{T0}, v1, 13, v{T0}
    v_and_b32 v{T0+1}, 1, v2
    v_lshl_add_u32 v{T0}, v{T0+1}, 12, v{T0}
    s_lshl_b32 s51, s50, 4
    s_add_u32 s51, s51, {WS_T}''')
    for ks in range(4):
        for mb in range(2):
            a.e(f's_add_u32 s53, s51, {ks*524288+mb*131072}')
            a.e(f'buffer_load_dwordx4 {vr(V_U+16*mb+4*ks,4)}, v{T0}, {srd(S_WS)}, s53 offen {sc}')
    tok_u=a.vmtok()
    V_L16=3
    a.e(f'''v_lshlrev_b32 v{V_L16}, 4, v0
    s_lshl_b32 s54, s50, 13
    s_lshl_b32 s55, s{S_WV}, 11
    s_add_u32 s54, s54, s55
    s_add_u32 s56, s54, {WS_WT}
    s_add_u32 s57, s55, {WS_G}
    s_add_u32 s58, s55, {WS_QT}''')
    for eh in range(2): a.e(f'buffer_load_dwordx4 {vr(V_W+4*eh,4)}, v{V_L16}, {srd(S_WS)}, s56 offen offset:{1024*eh} {sc}')
    for nb in range(2): a.e(f'buffer_load_dwordx4 {vr(V_GT+4*nb,4)}, v{V_L16}, {srd(S_WS)}, s57 offen offset:{1024*nb} {sc}')
    for eh in range(2): a.e(f'buffer_load_dwordx4 {vr(V_Q+4*eh,4)}, v{V_L16}, {srd(S_WS)}, s58 offen offset:{1024*eh} {sc}')
    tok_w=a.vmtok()
    V_F64R=80; V_F64I=96; V_F32R=112; V_F32I=128; V_T1C=144; V_T1S=152; V_T3C=160; V_T3S=168
    p2_tables(a,V_F64R,V_F64I,V_F32R,V_F32I,V_T1C,V_T1S,V_T3C,V_T3S,T0)
    V_DR=176; V_DI=184
    V_B=192
    TT=T0
    a.wait_vm(tok_u)
    for ks in range(4):
        for mb in range(2):
            A=vr(V_U+16*mb+4*ks,4)
            for (D,Fm) in((V_DR,V_F64R),(V_DI,V_F64I)):
                d=vr(D+4*mb,4)
                a.e(f'v_mfma_f32_16x16x32_bf16 {d}, {A}, {vr(Fm+4*ks,4)}, {d if ks else 0}')
    for mb in range(2): cmul_pack(a,V_DR+4*mb,V_DI+4*mb,V_T1C+4*mb,V_T1S+4*mb,V_B+4*mb,TT)
    for mb in range(2):
        for eh in range(2):
            for (D,Fm) in((V_DR,V_F32R),(V_DI,V_F32I)):
                d=vr(D+4*eh,4)
                a.e(f'v_mfma_f32_16x16x32_bf16 {d}, {vr(Fm+8*eh+4*mb,4)}, {vr(V_B+4*mb,4)}, {d if mb else 0}')
    V_WR=V_U; V_WI=V_U+8
    a.wait_vm(tok_w)
    for e in range(8):
        a.e(f'v_lshlrev_b32 v{V_WR+e}, 16, v{V_W+e}')
        a.e(f'v_and_b32 v{V_WI+e}, 0xffff0000, v{V_W+e}')
    a.e('s_cmp_lg_u32 s50, 0')
    a.e('s_cbranch_scc0 L_k2_special')
    for eh in range(2): cmul_pack(a,V_DR+4*eh,V_DI+4*eh,V_WR+4*eh,V_WI+4*eh,V_B+4*eh,TT,negim=True)
    a.e('L_k2_join:')
    for ks in range(2):
        for nb in range(2):
            for (D,Fm) in((V_DR,V_F32R),(V_DI,V_F32I)):
                d=vr(D+4*nb,4)
                a.e(f'v_mfma_f32_16x16x32_bf16 {d}, {vr(V_B+4*ks,4)}, {vr(Fm+8*nb+4*ks,4)}, {d if ks else 0}')
    for nb in range(2): cmul_pack(a,V_DR+4*nb,V_DI+4*nb,V_T3C+4*nb,V_T3S+4*nb,V_B+4*nb,TT)
    a.e(f'''s_lshl_b32 s59, s{S_WV}, 11
    v_add_u32 v{T0+4}, s59, v{V_L16}''')
    for nb in range(2): a.e(f'ds_write_b128 v{T0+4}, {vr(V_B+4*nb,4)} offset:{XB_BASE+1024*nb}')
    a.e('s_waitcnt lgkmcnt(0)'); a.e('s_barrier')
    V_X=V_U
    for ks in range(4):
        for nb in range(2):
            a.e(f'ds_read_b128 {vr(V_X+8*ks+4*nb,4)}, v{V_L16} offset:{XB_BASE+2048*ks+1024*nb}')
    for ks in range(4):
        a.e(f's_waitcnt lgkmcnt({6-2*ks})')
        for nb in range(2):
            for (D,Fm) in((V_DR,V_F64R),(V_DI,V_F64I)):
                d=vr(D+4*nb,4)
                a.e(f'v_mfma_f32_16x16x32_bf16 {d}, {vr(Fm+4*ks,4)}, {vr(V_X+8*ks+4*nb,4)}, {d if ks else 0}')
    for e in range(8): a.e(f'v_mul_f32 v{V_GT+e}, {fl(2.0**-19)}, v{V_GT+e}')
    for nb in range(2):
        for h in range(2):
            a.e(f'v_pk_mul_f32 {vr(V_DR+4*nb+2*h,2)}, {vr(V_DR+4*nb+2*h,2)}, {vr(V_GT+4*nb+2*h,2)}')
            a.e(f'v_pk_mul_f32 {vr(V_DI+4*nb+2*h,2)}, {vr(V_DI+4*nb+2*h,2)}, {vr(V_GT+4*nb+2*h,2)}')
        for r in range(4): a.e(f'v_cvt_pk_bf16_f32 v{V_B+4*nb+r}, v{V_DR+4*nb+r}, v{V_DI+4*nb+r}')
    a.e(f's_add_u32 s56, s54, {WS_Y}')
    for nb in range(2): a.e(f'buffer_store_dwordx4 {vr(V_B+4*nb,4)}, v{V_L16}, {srd(S_WS)}, s56 offen offset:{1024*nb} {sc}')
    a.e(f's_branch {end}')
    a.e('L_k2_special:')
    a.cond_begin()
    V_J=T0+8; V_ZA=V_U+16
    a.e(f'''s_lshl_b32 s59, s{S_WV}, 4
    v_lshlrev_b32 v{V_J}, 8, v2
    v_add3_u32 v{V_J}, v{V_J}, v1, s59''')
    for eh in range(2):
        for r in range(4):
            n=1024*eh+64*r
            a.e(f'v_add_u32 v{T0}, {n}, v{V_J}')
            a.e(f'v_lshlrev_b32 v{T0}, 3, v{T0}')
            a.e(f'v_mov_b32 v{T0+2}, v{V_DR+4*eh+r}')
            a.e(f'v_mov_b32 v{T0+3}, v{V_DI+4*eh+r}')
            a.e(f'ds_write_b64 v{T0}, {vr(T0+2,2)} offset:{ZR_BASE}')
    a.e('s_waitcnt lgkmcnt(0)'); a.e('s_barrier')
    for eh in range(2):
        for r in range(4):
            n=1024*eh+64*r
            a.e(f'v_sub_u32 v{T0}, {2048-n}, v{V_J}')
            a.e(f'v_and_b32 v{T0}, 2047, v{T0}')
            a.e(f'v_lshlrev_b32 v{T0}, 3, v{T0}')
            a.e(f'ds_read_b64 {vr(V_ZA+2*(4*eh+r),2)}, v{T0} offset:{ZR_BASE}')
    a.e('s_waitcnt lgkmcnt(0)')
    for e in range(8):
        zr=V_DR+e; zi=V_DI+e; pr=V_WR+e; pi=V_WI+e; ar_=V_ZA+2*e; ai=ar_+1
        qr=T0; qi=T0+1; yr=T0+2; yi=T0+3
        a.e(f'''v_lshlrev_b32 v{qr}, 16, v{V_Q+e}
        v_and_b32 v{qi}, 0xffff0000, v{V_Q+e}
        v_mul_f32 v{yr}, v{zr}, v{pr}
        v_fma_f32 v{yr}, -v{zi}, v{pi}, v{yr}
        v_fma_f32 v{yr}, v{ar_}, v{qr}, v{yr}
        v_fma_f32 v{yr}, v{ai}, v{qi}, v{yr}
        v_mul_f32 v{yi}, v{zr}, v{pi}
        v_fma_f32 v{yi}, v{zi}, v{pr}, v{yi}
        v_fma_f32 v{yi}, v{ar_}, v{qi}, v{yi}
        v_fma_f32 v{yi}, -v{ai}, v{qr}, v{yi}
        v_cvt_pk_bf16_f32 v{V_B+e}, v{yr}, -v{yi}''')
    a.cond_end()
    a.e('s_branch L_k2_join')

K3_LDS=4*3*4*1024
DEPTH=4
def k3(a,cfg,end):
    sc=cfg.sc
    a.e('''s_and_b32 s48, s2, 7
    s_lshr_b32 s49, s2, 3
    s_lshl_b32 s50, s48, 2
    s_lshr_b32 s51, s49, 3
    s_add_u32 s50, s50, s51
    s_and_b32 s51, s49, 7''')
    V_L16=3; V_L8=4
    a.e(f'''v_lshlrev_b32 v{V_L16}, 4, v0
    v_lshlrev_b32 v{V_L8}, 3, v0
    s_mul_i32 s52, s50, {RT_STRIDE}
    s_mul_i32 s53, s{S_WV}, {14*4096}
    s_add_u32 s52, s52, s53
    s_add_u32 s52, s52, {WS_ACT}
    s_mul_i32 s54, s51, {RT_STRIDE}
    s_add_u32 s54, s54, s53
    s_add_u32 s54, s54, {WS_W2}''')
    A_R=0
    toks={}
    def loads(t):
        b=A_R+32*(t%DEPTH)
        if t in(3,10):
            for q in range(4):
                a.e(f'buffer_load_dwordx2 {ar(b+4*q,2)}, v{V_L8}, {srd(S_WS)}, s52 offen offset:{1024*q} {sc}')
                a.e(f'buffer_load_dwordx2 {ar(b+4*q+2,2)}, v{V_L8}, {srd(S_WS)}, s52 offen offset:{1024*q+512} {sc}')
        else:
            for q in range(4):
                a.e(f'buffer_load_dwordx4 {ar(b+4*q,4)}, v{V_L16}, {srd(S_WS)}, s52 offen offset:{1024*q} {sc}')
        for c in range(4):
            a.e(f'buffer_load_dwordx4 {ar(b+16+4*c,4)}, v{V_L16}, {srd(S_WS)}, s54 offen offset:{1024*c} {sc}')
        a.e('s_add_u32 s52, s52, 4096'); a.e('s_add_u32 s54, s54, 4096')
        toks[t]=a.vmtok()
    for t in range(DEPTH): loads(t)
    V_G=8
    a.e(f'''s_lshr_b32 s55, s50, 1
    s_and_b32 s56, s50, 1
    s_lshr_b32 s57, s55, 2
    s_lshl_b32 s57, s57, 11
    s_lshl_b32 s58, s56, 10
    s_add_u32 s57, s57, s58
    s_and_b32 s58, s55, 3
    s_lshl_b32 s58, s58, 8
    s_add_u32 s57, s57, s58
    v_lshlrev_b32 v5, 4, v1
    s_add_u32 s58, s57, {WS_G}
    buffer_load_dwordx4 {vr(V_G,4)}, v5, {srd(S_WS)}, s58 offen {sc}''')
    tok_g=a.vmtok()
    V_Y=16
    a.e(f'''v_lshlrev_b32 v6, 15, v2
    v_add_u32 v6, v6, v5
    s_lshl_b32 s59, s{S_WV}, 19
    s_add_u32 s59, s59, s57
    s_add_u32 s59, s59, {WS_Y}''')
    def yloads(psi):
        for u in range(4):
            a.e(f's_add_u32 s60, s59, {(16*psi+u)*8192}')
            a.e(f'buffer_load_dwordx4 {vr(V_Y+16*psi+4*u,4)}, v6, {srd(S_WS)}, s60 offen {sc}')
    V_GF=80
    T0=144
    V_ACC=160
    a.e(f'''s_lshl_b32 s61, s51, 6
    v_lshlrev_b32 v{T0}, 2, v1
    v_add_u32 v{T0}, s61, v{T0}
    v_cvt_f32_u32 v{T0}, v{T0}
    s_lshl_b32 s61, s{S_WV}, 6
    v_lshlrev_b32 v{T0+1}, 2, v2
    v_add_u32 v{T0+1}, s61, v{T0+1}
    v_cvt_f32_u32 v{T0+1}, v{T0+1}''')
    for c in range(4):
        a.e(f'v_add_f32 v{T0+2+c}, {fl(c)}, v{T0}' if c else f'v_mov_b32 v{T0+2}, v{T0}')
        a.e(f'v_mul_f32 v{T0+2+c}, {fl(1/512)}, v{T0+2+c}')
        a.e(f'v_mul_f32 v{T0+6+c}, v{T0+1}, v{T0+2+c}')
    gen=[(psi,c,u) for psi in range(4) for c in range(4) for u in range(4)]
    def gen_g(items):
        for (psi,c,u) in items:
            n=16*psi+u
            if n==0: src=f'v{T0+6+c}'
            else:
                a.e(f'v_fmamk_f32 v{T0+10}, v{T0+2+c}, {fl(n)}, v{T0+6+c}'); src=f'v{T0+10}'
            sincos(a,src,f'v{T0+11}',f'v{T0+12}')
            a.e(f'v_cvt_pk_bf16_f32 v{V_GF+16*psi+4*c+u}, v{T0+11}, v{T0+12}')
    gi=0
    for t in range(14):
        a.wait_vm(toks[t])
        b=A_R+32*(t%DEPTH)
        for c in range(4):
            for q in range(4):
                d=vr(V_ACC+16*q+4*c,4)
                a.e(f'v_mfma_f32_16x16x32_bf16 {d}, {ar(b+16+4*c,4)}, {ar(b+4*q,4)}, {d if t else 0}')
        if t+DEPTH<14: loads(t+DEPTH)
        if 10<=t<14: yloads(t-10); toks['y%d'%(t-10)]=a.vmtok()
        n=5 if t<12 else 2
        gen_g(gen[gi:gi+n]); gi+=n
    gen_g(gen[gi:])
    a.e(f'''s_cmp_eq_u32 s{S_WV}, 0
    s_cselect_b32 s62, 0xffff, 0
    s_mov_b32 s63, 0''')
    for c in range(4):
        a.e(f'v_mov_b32 v{T0+10}, {hex(0xBF003F00 if c%2==0 else 0x3F003F00)}')
        a.e(f'v_cndmask_b32 v{V_GF+4*c}, v{V_GF+4*c}, v{T0+10}, s[62:63]')
    a.wait_vm(tok_g) if False else None
    for q in range(4): a.e(f'v_sub_f32 v{V_G+q}, 1.0, v{V_G+q}')
    for q in range(4):
        for e in range(16): a.e(f'v_mul_f32 v{V_ACC+16*q+e}, v{V_G+q}, v{V_ACC+16*q+e}')
    for psi in range(4):
        a.wait_vm(toks['y%d'%psi])
        y=V_Y+16*psi
        for (i,j) in[(0,1),(0,2),(0,3),(1,2),(1,3),(2,3)]:
            a.e(f'v_swap_b32 v{y+4*i+j}, v{y+4*j+i}')
        for c in range(4):
            for q in range(4):
                d=vr(V_ACC+16*q+4*c,4)
                a.e(f'v_mfma_f32_16x16x32_bf16 {d}, {vr(V_GF+16*psi+4*c,4)}, {vr(y+4*q,4)}, {d}')
    a.e(f'''s_mul_i32 s64, s{S_WV}, {3*4096}
    v_add_u32 v7, s64, v{V_L16}''')
    for w in range(4):
        a.e(f's_cmp_lg_u32 s{S_WV}, {w}')
        a.e(f's_cbranch_scc1 L_k3_w{w}')
        a.cond_begin()
        slot=0
        for q in range(4):
            if q==w: continue
            for c in range(4):
                a.e(f'ds_write_b128 v7, {vr(V_ACC+16*q+4*c,4)} offset:{slot*4096+c*1024}')
            slot+=1
        if w!=0:
            for e in range(16): a.e(f'v_mov_b32 v{V_ACC+e}, v{V_ACC+16*w+e}')
        a.cond_end()
        a.e(f'L_k3_w{w}:')
    a.e('s_waitcnt lgkmcnt(0)'); a.e('s_barrier')
    V_RD=V_Y
    for k in range(1,4):
        a.e(f'''s_add_u32 s65, s{S_WV}, {k}
        s_and_b32 s65, s65, 3
        s_mul_i32 s66, s65, {3*4096}
        s_cmp_lt_u32 s{S_WV}, s65
        s_cselect_b32 s67, 0, 1
        s_sub_u32 s67, s{S_WV}, s67
        s_lshl_b32 s67, s67, 12
        s_add_u32 s66, s66, s67
        v_add_u32 v7, s66, v{V_L16}''')
        for c in range(4): a.e(f'ds_read_b128 {vr(V_RD+16*(k-1)+4*c,4)}, v7 offset:{c*1024}')
    a.e('s_waitcnt lgkmcnt(0)')
    for k in range(3):
        for h in range(8): a.e(f'v_pk_add_f32 {vr(V_ACC+2*h,2)}, {vr(V_ACC+2*h,2)}, {vr(V_RD+16*k+2*h,2)}')
    V_O=V_GF
    for r in range(4):
        a.e(f'v_cvt_pk_bf16_f32 v{V_O+2*r}, v{V_ACC+r}, v{V_ACC+4+r}')
        a.e(f'v_cvt_pk_bf16_f32 v{V_O+2*r+1}, v{V_ACC+8+r}, v{V_ACC+12+r}')
    a.e(f'''v_lshlrev_b32 v5, 10, v1
    v_lshl_add_u32 v5, v2, 5, v5
    s_lshl_b32 s64, s55, 17
    s_lshl_b32 s65, s{S_WV}, 15
    s_add_u32 s64, s64, s65
    s_lshl_b32 s65, s56, 14
    s_add_u32 s64, s64, s65
    s_lshl_b32 s65, s51, 7
    s_add_u32 s64, s64, s65
    buffer_store_dwordx4 {vr(V_O,4)}, v5, {srd(S_OUT)}, s64 offen
    buffer_store_dwordx4 {vr(V_O+4,4)}, v5, {srd(S_OUT)}, s64 offen offset:16''')

HEADER='''; Gated mix of a GFNet spectral filter and a dense->mish->dense block (generated by dev/gen.py)
'''
def kernel_text(label,body_fn,which,cfg,nvgpr,accoff):
    a=Asm(); end=f'L_end_{label}'
    prologue(a,which,end)
    body_fn(a,cfg,end)
    a.e(f'{end}:'); a.e('s_endpgm')
    txt=a.text()
    errs=[]
    for nm,pol in (('fall',lambda i,n:False),('taken',lambda i,n:(not i.target.startswith('L_end')) ),):
        errs+=verify_waits(a.out,pol,label+':'+nm)
    for e in sorted(set(errs))[:30]: print('WAITERR',e,file=sys.stderr)
    print(label,dict(a.count()),file=sys.stderr)
    s=f'.globl {label}\n.p2align 8\n.type {label},@function\n{label}:\n{txt}'
    kd=f'''.amdhsa_kernel {label}
  .amdhsa_next_free_vgpr {nvgpr}
  .amdhsa_next_free_sgpr 102
  .amdhsa_accum_offset {accoff}
  .amdhsa_group_segment_fixed_size 0
  .amdhsa_kernarg_size 88
  .amdhsa_user_sgpr_count 2
  .amdhsa_user_sgpr_kernarg_segment_ptr 1
  .amdhsa_system_sgpr_workgroup_id_x 1
.end_amdhsa_kernel
'''
    return s,kd

def build_multi():
    cfg=Cfg(); cfg.sc=''
    ks=[('k1_rowfft_gemm1_kernel',k1,[S_X,S_WR,S_WI,S_W1,S_B1,S_W2,S_GW,S_WS],512,256,K1_LDS),
        ('k2_colfft_kernel',k2,[S_WS],256,256,K2_LDS),
        ('k3_gemm2_kernel',k3,[S_OUT,S_WS],512,256,K3_LDS)]
    out=HEADER
    for (l,_,_,_,_,lds) in ks: out+=f'; @launch kernel={l} grid=(256,1,1) block=(256,1,1) lds={lds}\n'
    out+='.amdgcn_target "amdgcn-amd-amdhsa--gfx950"\n.text\n'
    kds=''
    for (l,fn,wh,nv,ao,lds) in ks:
        s,kd=kernel_text(l,fn,wh,cfg,nv,ao); out+=s; kds+='.p2align 6\n'+kd
    out+='.section .rodata,"a"\n'+kds
    return out

if __name__=='__main__':
    mode=sys.argv[1] if len(sys.argv)>1 else 'multi'
    txt=build_multi()
    open(sys.argv[2] if len(sys.argv)>2 else 'out.s','w').write(txt)
```

```python
import sys
from dsl import Asm, verify_waits

NAME='gated_mix__spectral_gfnet__dense_activation_mish__prompt'
WS_T   =0x000000
WS_WT  =0x200000
WS_QT  =0x400000
WS_G   =0x402000
WS_Y   =0x600000
WS_ACT =0x800000
WS_W2  =0x1000000
WS_STAMP=0x1200000
WS_SIZE=0x1240000
RT_STRIDE=56*4096
S_X,S_WR,S_WI,S_W1,S_B1,S_W2,S_GW,S_OUT,S_WS,S_DBG=8,12,16,20,24,28,32,36,40,44
def srd(n): return f's[{n}:{n+3}]'
SRDS=[(S_X,0,2048*1024),(S_WR,8,2048*514),(S_WI,16,2048*514),(S_W1,32,512*3584),(S_B1,40,3584),
      (S_W2,48,1792*1024),(S_GW,56,1024),(S_OUT,64,2048*1024),(S_WS,80,WS_SIZE),(S_DBG,72,256)]
def vr(b,n=1): return f'v{b}' if n==1 else f'v[{b}:{b+n-1}]'
def ar(b,n=1): return f'a{b}' if n==1 else f'a[{b}:{b+n-1}]'
S_WV=3
LOG2E=1.4426950408889634

class Cfg:
    off=set()
    def f(self,tag): return '' if (tag in self.off or 'all' in self.off) else self.sc
    stamps=False
    persist=False
    sc=''

def prologue(a,which,end):
    a.e(f's_cmp_ge_u32 s2, 256')
    a.e(f's_cbranch_scc1 {end}')
    for (n,off,sz) in SRDS:
        if n in which: a.e(f's_load_dwordx2 s[{n}:{n+1}], s[0:1], {off}')
    a.e('v_lshrrev_b32 v1, 6, v0')
    a.e('v_and_b32 v0, 63, v0')
    a.e(f'v_readfirstlane_b32 s{S_WV}, v1')
    a.e('v_and_b32 v1, 15, v0')
    a.e('v_lshrrev_b32 v2, 4, v0')
    for (n,off,sz) in SRDS:
        if n in which:
            a.e(f's_mov_b32 s{n+2}, {hex(sz)}'); a.e(f's_mov_b32 s{n+3}, 0x20000')
    a.e('s_waitcnt lgkmcnt(0)')

def sincos(a,arg,dc,ds,negs=False):
    a.e(f'v_cos_f32 {dc}, {arg}')
    if negs: a.e(f'v_sin_f32_e64 {ds}, -{arg}')
    else: a.e(f'v_sin_f32 {ds}, {arg}')

def fl(x):
    import struct
    return hex(struct.unpack('<I',struct.pack('<f',float(x)))[0])


SPIN_MAX=50000
import os
SLEEP=int(os.environ.get('SLEEP','8'))
S_STAMP=96
class Stamps:
    n=0
def stamp(a,cfg,idx):
    if not cfg.stamps: return
    a.e(f's_memrealtime s[{S_STAMP}:{S_STAMP+1}]')
    a.e('s_waitcnt lgkmcnt(0)')
    a.e(f'v_writelane_b32 v255, s{S_STAMP}, {idx}')

def stamps_flush(a,cfg):
    if not cfg.stamps: return
    a.e(f"""s_lshl_b32 s98, s2, 2
    s_add_u32 s98, s98, s{S_WV}
    s_lshl_b32 s98, s98, 7
    s_add_u32 s98, s98, {WS_STAMP}
    v_lshlrev_b32 v254, 2, v0
    s_mov_b32 exec_lo, -1
    s_mov_b32 exec_hi, 0
    buffer_store_dword v255, v254, {srd(S_WS)}, s98 offen
    s_mov_b64 exec, -1""")

def signal(a,soff,vt):
    a.e(f"""s_cmp_eq_u32 s{S_WV}, 0
    s_cselect_b32 s95, 0, 0x40000000
    v_mov_b32 v{vt}, 1
    v_mov_b32 v{vt+1}, s95
    s_mov_b64 exec, 1
    buffer_atomic_add v{vt}, v{vt+1}, {srd(S_DBG)}, {soff} offen sc1
    s_mov_b64 exec, -1""")

def poll_addr(a,vaddr,lanestride,base):
    a.e(f"""s_cmp_eq_u32 s{S_WV}, 0
    s_cselect_b32 s95, {base}, 0x40000000""" if base==0 else f"""s_mov_b32 s95, {base}
    s_cmp_eq_u32 s{S_WV}, 0
    s_cselect_b32 s95, s95, 0x40000000""")
    if lanestride:
        a.e(f'v_and_b32 v{vaddr}, 3, v0'); a.e(f'v_mul_u32_u24 v{vaddr}, {lanestride}, v{vaddr}')
        a.e(f'v_add_u32 v{vaddr}, s95, v{vaddr}')
    else: a.e(f'v_mov_b32 v{vaddr}, s95')

def poll_issue(a,vdst,vaddr,soff,nl):
    a.e(f's_mov_b64 exec, {hex((1<<nl)-1)}')
    a.e(f'buffer_load_dword v{vdst}, v{vaddr}, {srd(S_DBG)}, {soff} offen sc1')
    a.e('s_mov_b64 exec, -1')
    return a.vmtok()

def poll_check(a,tok,vdst,vaddr,soff,target,nl):
    lab=f'L_poll{len(a.items)}'
    a.e(f's_cmp_lg_u32 s{S_WV}, 0')
    a.e(f's_cbranch_scc1 {lab}_ok')
    a.wait_vm(tok)
    a.cond_begin()
    a.e(f's_mov_b64 exec, {hex((1<<nl)-1)}')
    a.e(f'v_cmp_ne_u32 vcc, {target}, v{vdst}')
    a.e(f's_cbranch_vccz {lab}_done')
    a.e(f's_mov_b32 s94, 0')
    a.e(f'{lab}:')
    a.e(f's_sleep {SLEEP}')
    a.e(f'buffer_load_dword v{vdst}, v{vaddr}, {srd(S_DBG)}, {soff} offen sc1')
    a.e(f's_add_u32 s94, s94, 1')
    a.e(f's_waitcnt vmcnt(0)')
    a.e(f'v_cmp_ne_u32 vcc, {target}, v{vdst}')
    a.e(f's_cmp_gt_u32 s94, {SPIN_MAX}')
    a.e(f's_cbranch_scc1 {lab}_done')
    a.e(f's_cbranch_vccnz {lab}')
    a.e(f'{lab}_done:')
    a.e('s_mov_b64 exec, -1')
    a.cond_end()
    a.e(f'{lab}_ok:')
    a.e('s_barrier')

XA_BASE=0; XA_PITCH=1152
W1_BASE=9216; W1_GP=960
K1_LDS=W1_BASE+128*W1_GP

def phase_a(a,cfg,ctx):
    sc=cfg.sc
    a.e('''s_and_b32 s48, s2, 7
    s_lshr_b32 s49, s2, 3
    s_lshr_b32 s50, s2, 5
    s_and_b32 s51, s2, 31''')
    V_L16=3
    a.e(f'v_lshlrev_b32 v{V_L16}, 4, v0')
    a.e(f'''s_lshl_b32 s52, s50, 18
    s_lshl_b32 s53, s51, 10
    s_add_u32 s52, s52, s53
    s_lshl_b32 s53, s{S_WV}, 16
    s_add_u32 s52, s52, s53
    s_mul_i32 s53, s{S_WV}, {2*XA_PITCH}
    s_add_u32 s53, s53, {XA_BASE}
    s_mov_b32 m0, s53
    s_add_u32 s54, s52, 32768
    buffer_load_dwordx4 v{V_L16}, {srd(S_X)}, s52 offen lds
    s_add_u32 s53, s53, {XA_PITCH}
    s_mov_b32 m0, s53
    s_nop 0
    buffer_load_dwordx4 v{V_L16}, {srd(S_X)}, s54 offen lds''')
    tok_xa=a.vmtok()
    V_GW=4
    a.e(f'buffer_load_dwordx4 {vr(V_GW,4)}, v{V_L16}, {srd(S_GW)}, 0 offen')
    tok_gw=a.vmtok()
    a.e('''s_lshr_b32 s55, s51, 3
    s_lshr_b32 s56, s51, 2
    s_and_b32 s56, s56, 1
    s_and_b32 s57, s51, 3
    s_lshl_b32 s58, s55, 4
    s_lshl_b32 s59, s56, 10
    s_add_u32 s58, s58, s59
    s_lshl_b32 s59, s57, 8
    s_add_u32 s58, s58, s59''')
    V_C=8; V_KAP=9; V_T=10; V_WOFF=11
    a.e(f'''s_and_b32 s59, s{S_WV}, 1
    s_lshl_b32 s59, s59, 3
    v_and_b32 v{V_C}, 7, v0
    v_add_u32 v{V_C}, s59, v{V_C}
    s_lshr_b32 s59, s{S_WV}, 1
    s_lshl_b32 s59, s59, 3
    v_lshrrev_b32 v{V_KAP}, 3, v0
    v_add_u32 v{V_KAP}, s59, v{V_KAP}
    v_mul_u32_u24 v{V_WOFF}, 514, v{V_C}
    v_lshlrev_b32 v{V_T}, 2, v{V_KAP}
    v_add_u32 v{V_WOFF}, v{V_WOFF}, v{V_T}
    s_mul_i32 s60, s58, 514
    s_lshl_b32 s59, s50, 6
    s_add_u32 s60, s60, s59''')
    V_WR=12; V_WI=16
    for r in range(4):
        a.e(f'buffer_load_dword v{V_WR+r}, v{V_WOFF}, {srd(S_WR)}, s60 offen')
        a.e(f'buffer_load_dword v{V_WI+r}, v{V_WOFF}, {srd(S_WI)}, s60 offen')
        if r<3: a.e(f's_add_u32 s60, s60, {64*514}')
    tok_wt=a.vmtok()
    V_SP=20
    V_J=28; V_JR=29; V_SPO=30
    a.e(f'''s_lshl_b32 s59, s50, 2
    s_xor_b32 s61, s{S_WV}, 3
    s_or_b32 s61, s61, s59''')
    a.e('s_cmp_lg_u32 s61, 0')
    a.e('s_cbranch_scc1 L_k1_nospec1')
    a.cond_begin()
    a.e(f'''v_lshlrev_b32 v{V_J}, 6, v2
    v_add_u32 v{V_J}, v{V_J}, v1
    v_add_u32 v{V_J}, s58, v{V_J}
    v_sub_u32 v{V_JR}, 2048, v{V_J}
    v_and_b32 v{V_JR}, 2047, v{V_JR}
    v_mul_u32_u24 v{V_J}, 514, v{V_J}
    v_mul_u32_u24 v{V_JR}, 514, v{V_JR}''')
    for n,(S,vv,off) in enumerate([(S_WR,V_J,0),(S_WR,V_J,512),(S_WR,V_JR,0),(S_WR,V_JR,512),(S_WI,V_J,0),(S_WI,V_J,512),(S_WI,V_JR,0),(S_WI,V_JR,512)]):
        a.e(f'buffer_load_ushort v{V_SP+n}, v{vv}, {srd(S)}, 0 offen offset:{off}')
    a.cond_end()
    a.e('L_k1_nospec1:')
    tok_sp=a.vmtok()
    V_W2O=31; V_W2=32
    a.e(f'''s_lshl_b32 s62, s2, 2
    s_add_u32 s62, s62, s{S_WV}
    s_and_b32 s63, s62, 1
    s_lshr_b32 s64, s62, 1
    s_and_b32 s65, s64, 7
    s_lshr_b32 s64, s64, 3
    s_cmp_lt_u32 s62, 896
    s_cselect_b32 s66, 0, 0x40000000
    v_lshlrev_b32 v{V_W2O}, 12, v2
    v_lshlrev_b32 v{V_T}, 3, v1
    v_add3_u32 v{V_W2O}, v{V_W2O}, v{V_T}, s66
    s_lshl_b32 s67, s64, 15
    s_lshl_b32 s68, s65, 7
    s_add_u32 s67, s67, s68
    s_lshl_b32 s68, s63, 2
    s_add_u32 s67, s67, s68
    s_add_u32 s68, s67, 16384''')
    for e in range(8):
        a.e(f'buffer_load_dword v{V_W2+e}, v{V_W2O}, {srd(S_W2)}, s{67 if e<4 else 68} offen offset:{(e&3)*1024}')
    tok_w2=a.vmtok()
    a.e('''s_lshr_b32 s69, s48, 1
    s_lshl_b32 s69, s69, 2
    s_lshr_b32 s70, s49, 3
    s_add_u32 s69, s69, s70
    s_and_b32 s70, s48, 1
    s_lshl_b32 s70, s70, 3
    s_and_b32 s71, s49, 7
    s_add_u32 s70, s70, s71
    s_and_b32 s71, s70, 1''')
    V_BO=40; V_BRAW=42
    a.e(f'''v_lshlrev_b32 v{V_BO}, 3, v2
    s_mul_i32 s72, s70, 224
    s_lshl_b32 s73, s71, 5
    s_add_u32 s73, s72, s73
    s_cmp_eq_u32 s71, 0
    s_cselect_b32 s74, 192, 0
    s_add_u32 s74, s72, s74''')
    for t in range(6):
        a.e(f'buffer_load_dwordx2 {vr(V_BRAW+2*t,2)}, v{V_BO}, {srd(S_B1)}, s73 offen offset:{32*t}')
    a.e(f'buffer_load_dwordx2 {vr(V_BRAW+12,2)}, v{V_BO}, {srd(S_B1)}, s74 offen')
    tok_b=a.vmtok()
    V_XO=56; V_DO=57
    A_X=0
    a.e(f'''v_lshlrev_b32 v{V_XO}, 10, v1
    v_lshlrev_b32 v{V_T}, 4, v2
    v_add_u32 v{V_XO}, v{V_XO}, v{V_T}
    s_lshl_b32 s75, s69, 17
    s_lshl_b32 s76, s{S_WV}, 15
    s_add_u32 s75, s75, s76
    s_add_u32 s76, s75, 16384
    v_mul_u32_u24 v{V_T}, 4682, v0
    v_lshrrev_b32 v{V_T}, 16, v{V_T}
    v_mul_u32_u24 v{V_DO}, 3584, v{V_T}
    v_mul_u32_u24 v{V_T}, 14, v{V_T}
    v_sub_u32 v{V_T}, v0, v{V_T}
    v_lshlrev_b32 v{V_T}, 4, v{V_T}
    v_add_u32 v{V_DO}, v{V_DO}, v{V_T}
    s_mul_i32 s77, s{S_WV}, {8*14336}
    s_add_u32 s77, s77, s72
    s_mul_i32 s78, s{S_WV}, {8*W1_GP}
    s_add_u32 s78, s78, {W1_BASE}''')
    tok_c=[]
    def g1_chunk_loads(kc):
        for st in range(4*kc,4*kc+4):
            for nb in range(2):
                a.e(f'buffer_load_dwordx4 {ar(A_X+8*st+4*nb,4)}, v{V_XO}, {srd(S_X)}, s{75+nb} offen offset:{64*st}')
        a.e('s_mov_b32 exec_hi, 0x00ffffff')
        for u in range(8):
            a.e(f's_mov_b32 m0, s78')
            a.e(f's_add_u32 s78, s78, {W1_GP}')
            a.e(f'buffer_load_dwordx4 v{V_DO}, {srd(S_W1)}, s77 offen lds')
            a.e(f's_add_u32 s77, s77, 14336')
        a.e('s_mov_b32 exec_hi, -1')
        a.e(f's_add_u32 s77, s77, {24*14336}')
        a.e(f's_add_u32 s78, s78, {24*W1_GP}')
        tok_c.append(a.vmtok())
    g1_chunk_loads(0); g1_chunk_loads(1)
    V_B1C=60; V_B1S=68
    V_TC=76; V_TS=80
    V_A2=84; V_A2N=88
    T0=92
    a.e(f'''s_lshl_b32 s79, s{S_WV}, 4
    v_add_u32 v{T0}, s79, v1
    v_cvt_f32_u32 v{T0}, v{T0}
    v_mul_f32 v{T0+1}, {fl(1/64)}, v{T0}
    v_lshlrev_b32 v{T0+2}, 2, v2
    v_cvt_f32_u32 v{T0+2}, v{T0+2}
    v_mul_f32 v{T0+3}, v{T0+2}, v{T0+1}''')
    for ks in range(2):
        for hh in range(2):
            cs=[]
            for u in range(4):
                n=32*ks+16*hh+u
                arg=T0+4
                if n==0: src=f'v{T0+3}'
                else:
                    a.e(f'v_fmamk_f32 v{arg}, v{T0+1}, {fl(n)}, v{T0+3}'); src=f'v{arg}'
                sincos(a,src,f'v{T0+5+u}',f'v{T0+9+u}',negs=True)
            for d in range(2):
                a.e(f'v_cvt_pk_bf16_f32 v{V_B1C+4*ks+2*hh+d}, v{T0+5+2*d}, v{T0+6+2*d}')
                a.e(f'v_cvt_pk_bf16_f32 v{V_B1S+4*ks+2*hh+d}, v{T0+9+2*d}, v{T0+10+2*d}')
    a.e(f'''v_and_b32 v{T0+4}, 1, v2
    v_lshlrev_b32 v{T0+4}, 2, v{T0+4}
    v_cvt_f32_u32 v{T0+4}, v{T0+4}
    v_mul_f32 v{T0+5}, {fl(1/512)}, v{T0}
    v_mul_f32 v{T0+6}, v{T0+4}, v{T0+5}''')
    for r in range(4):
        if r==0: src=f'v{T0+6}'
        else:
            a.e(f'v_fmamk_f32 v{T0+7}, v{T0+5}, {fl(r)}, v{T0+6}'); src=f'v{T0+7}'
        sincos(a,src,f'v{V_TC+r}',f'v{V_TS+r}',negs=True)
    a.e(f'''v_lshrrev_b32 v{T0+5}, 2, v1
    v_cvt_f32_u32 v{T0+5}, v{T0+5}
    v_mul_f32 v{T0+5}, {fl(1/8)}, v{T0+5}
    v_and_b32 v{T0+6}, 1, v1
    v_cvt_f32_u32 v{T0+6}, v{T0+6}
    v_mul_f32 v{T0+6}, {fl(0.25)}, v{T0+6}
    v_fma_f32 v{T0+6}, v{T0+4}, v{T0+5}, v{T0+6}
    v_lshrrev_b32 v{T0+7}, 1, v1
    v_and_b32 v{T0+7}, 1, v{T0+7}
    v_lshrrev_b32 v{T0+8}, 1, v2
    v_cmp_eq_u32 s[80:81], v{T0+7}, v{T0+8}
    v_and_b32 v{T0+9}, 13, v1
    v_cmp_eq_u32 vcc, 1, v{T0+9}
    s_and_b64 s[82:83], vcc, s[80:81]''')
    for dw in range(4):
        if dw==0: src=f'v{T0+6}'
        else:
            a.e(f'v_fmamk_f32 v{T0+9}, v{T0+5}, {fl(dw)}, v{T0+6}'); src=f'v{T0+9}'
        sincos(a,src,f'v{T0+10}',f'v{T0+11}')
        a.e(f'v_cvt_pk_bf16_f32 v{T0+10}, v{T0+10}, v{T0+11}')
        a.e(f'v_cndmask_b32 v{V_A2+dw}, 0, v{T0+10}, s[80:81]')
        a.e(f'v_mov_b32 v{T0+10}, {hex(0x3F80 if dw%2==0 else 0xBF80)}')
        a.e(f'v_cndmask_b32 v{V_A2N+dw}, 0, v{T0+10}, s[82:83]')
    V_XA=108
    a.e(f'''v_and_b32 v{T0}, 3, v0
    v_lshrrev_b32 v{T0+1}, 1, v{T0}
    v_mul_u32_u24 v{V_XA}, {XA_PITCH}, v{T0+1}
    v_and_b32 v{T0}, 1, v{T0}
    v_lshlrev_b32 v{T0}, 3, v{T0}
    v_lshrrev_b32 v{T0+1}, 2, v1
    v_lshl_add_u32 v{T0+1}, v2, 2, v{T0+1}
    v_lshlrev_b32 v{T0+1}, 4, v{T0+1}
    v_add3_u32 v{V_XA}, v{V_XA}, v{T0}, v{T0+1}''')
    if XA_BASE: a.e(f'v_add_u32 v{V_XA}, {XA_BASE}, v{V_XA}')
    stamp(a,cfg,0)
    a.wait_vm(tok_xa)
    a.e('s_barrier')
    stamp(a,cfg,1)
    V_AF=112
    for pi in range(4):
        for ks in range(2):
            for hh in range(2):
                a.e(f'ds_read_b64_tr_b16 {vr(V_AF+8*pi+4*ks+2*hh,2)}, v{V_XA} offset:{pi*2*XA_PITCH+ks*512+hh*256}')
    V_GX=144
    a.e(f'''s_mul_i32 s84, s{S_WV}, {2*XA_PITCH}
    v_add_u32 v{T0}, s84, v{V_L16}''')
    lg_af=a.lgtok()
    a.e(f'ds_read_b128 {vr(V_GX,4)}, v{T0} offset:{XA_BASE}')
    a.e(f'ds_read_b128 {vr(V_GX+4,4)}, v{T0} offset:{XA_BASE+XA_PITCH}')
    lg_gx=a.lgtok()
    V_D1C=152; V_D1S=168
    a.wait_lg(lg_af)
    for pi in range(4):
        for ks in range(2):
            A=vr(V_AF+8*pi+4*ks,4)
            c=vr(V_D1C+4*pi,4); s=vr(V_D1S+4*pi,4)
            a.e(f'v_mfma_f32_16x16x32_bf16 {c}, {A}, {vr(V_B1C+4*ks,4)}, {c if ks else 0}')
            a.e(f'v_mfma_f32_16x16x32_bf16 {s}, {A}, {vr(V_B1S+4*ks,4)}, {s if ks else 0}')
    stamp(a,cfg,17)
    a.wait_vm(tok_gw); a.wait_lg(lg_gx)
    V_Z=T0+2
    for rr in range(2):
        a.e(f'v_dot2_f32_bf16 v{V_Z+rr}, v{V_GX+4*rr}, v{V_GW}, 0')
        for d in range(1,4):
            a.e(f'v_dot2_f32_bf16 v{V_Z+rr}, v{V_GX+4*rr+d}, v{V_GW+d}, v{V_Z+rr}')
    for sh,extra in [('row_shr:1',''),('row_shr:2',''),('row_shr:4',''),('row_shr:8',''),]:
        for rr in range(2):
            a.e(f'v_add_f32_dpp v{V_Z+rr}, v{V_Z+rr}, v{V_Z+rr} {sh} row_mask:0xf bank_mask:0xf bound_ctrl:1')
    for rr in range(2):
        a.e(f'v_add_f32_dpp v{V_Z+rr}, v{V_Z+rr}, v{V_Z+rr} row_bcast:15 row_mask:0xa bank_mask:0xf')
    for rr in range(2):
        a.e(f'v_add_f32_dpp v{V_Z+rr}, v{V_Z+rr}, v{V_Z+rr} row_bcast:31 row_mask:0xc bank_mask:0xf')
    for rr in range(2):
        a.e(f'v_mul_f32 v{V_Z+rr}, {fl(-LOG2E)}, v{V_Z+rr}')
    for rr in range(2): a.e(f'v_exp_f32 v{V_Z+rr}, v{V_Z+rr}')
    for rr in range(2): a.e(f'v_add_f32 v{V_Z+rr}, 1.0, v{V_Z+rr}')
    V_GOUT=T0+4
    for rr in range(2): a.e(f'v_rcp_f32 v{V_GOUT+rr}, v{V_Z+rr}')
    stamp(a,cfg,18)
    V_B2=V_AF
    TT=T0+8
    for pi in range(4):
        for h in range(2):
            c=V_D1C+4*pi+2*h; s=V_D1S+4*pi+2*h; tc=V_TC+2*h; ts=V_TS+2*h
            a.e(f'v_pk_mul_f32 {vr(TT,2)}, {vr(s,2)}, {vr(ts,2)}')
            a.e(f'v_pk_mul_f32 {vr(TT+2,2)}, {vr(s,2)}, {vr(tc,2)}')
            a.e(f'v_pk_fma_f32 {vr(TT,2)}, {vr(c,2)}, {vr(tc,2)}, {vr(TT,2)} neg_lo:[0,0,1] neg_hi:[0,0,1]')
            a.e(f'v_pk_fma_f32 {vr(TT+2,2)}, {vr(c,2)}, {vr(ts,2)}, {vr(TT+2,2)}')
            a.e(f'v_cvt_pk_bf16_f32 v{V_B2+4*pi+2*h}, v{TT}, v{TT+2}')
            a.e(f'v_cvt_pk_bf16_f32 v{V_B2+4*pi+2*h+1}, v{TT+1}, v{TT+3}')
    V_D2=V_D1C; V_D2N=V_D1S
    for pi in range(4):
        a.e(f'v_mfma_f32_16x16x32_bf16 {vr(V_D2+4*pi,4)}, {vr(V_A2,4)}, {vr(V_B2+4*pi,4)}, 0')
        a.e(f'v_mfma_f32_16x16x32_bf16 {vr(V_D2N+4*pi,4)}, {vr(V_A2N,4)}, {vr(V_B2+4*pi,4)}, 0')
    a.e(f'''s_cmp_eq_u32 s{S_WV}, 0
    s_cselect_b32 s84, 1, 0
    s_mov_b32 s85, 0''')
    V_TO=V_GX
    for pi in range(4):
        for rho in range(2):
            re=V_D2+4*pi+2*rho; im=re+1
            a.e(f'v_cndmask_b32 v{im}, v{im}, v{V_D2N+4*pi+2*rho+1}, s[84:85]')
            a.e(f'v_cvt_pk_bf16_f32 v{V_TO+2*pi+rho}, v{re}, v{im}')
    stamp(a,cfg,19)
    a.wait_vm(tok_wt)
    V_P0=V_D1S; V_P1=V_D1S+4
    a.e(f'''s_mov_b32 s84, 0x05040100
    s_mov_b32 s85, 0x07060302''')
    for r in range(4):
        a.e(f'v_perm_b32 v{V_P0+r}, v{V_WI+r}, v{V_WR+r}, s84')
        a.e(f'v_perm_b32 v{V_P1+r}, v{V_WI+r}, v{V_WR+r}, s85')
    stamp(a,cfg,20)
    V_PQ=V_B1C
    a.e('s_cmp_lg_u32 s61, 0')
    a.e('s_cbranch_scc1 L_k1_nospec2')
    a.wait_vm(tok_sp)
    for n in range(8): a.e(f'v_lshlrev_b32 v{V_SP+n}, 16, v{V_SP+n}')
    s=V_SP; t=V_B1S
    a.e(f'''v_add_f32 v{t}, v{s}, v{s+2}
    v_add_f32 v{t+1}, v{s+1}, v{s+3}
    v_sub_f32 v{t+2}, v{s+4}, v{s+6}
    v_sub_f32 v{t+3}, v{s+5}, v{s+7}
    v_add_f32 v{t+4}, v{t}, v{t+1}
    v_add_f32 v{t+5}, v{t+2}, v{t+3}
    v_sub_f32 v{t+6}, v{t}, v{t+1}
    v_sub_f32 v{t+7}, v{t+2}, v{t+3}
    v_mul_f32 v{t+4}, {fl(0.25)}, v{t+4}
    v_mul_f32 v{t+5}, {fl(0.25)}, v{t+5}
    v_mul_f32 v{t+6}, {fl(0.25)}, v{t+6}
    v_mul_f32 v{t+7}, {fl(0.25)}, v{t+7}
    v_cvt_pk_bf16_f32 v{V_PQ}, v{t+4}, v{t+5}
    v_cvt_pk_bf16_f32 v{V_PQ+1}, v{t+6}, v{t+7}''')
    a.e('L_k1_nospec2:')
    a.wait_vm(tok_w2)
    V_Q0=V_D1S+8; V_Q1=V_D1S+12
    for dw in range(4):
        a.e(f'v_perm_b32 v{V_Q0+dw}, v{V_W2+2*dw+1}, v{V_W2+2*dw}, s84')
        a.e(f'v_perm_b32 v{V_Q1+dw}, v{V_W2+2*dw+1}, v{V_W2+2*dw}, s85')
    stamp(a,cfg,21)
    V_BIAS=112
    a.wait_vm(tok_b)
    for t in range(7):
        for d in range(2):
            raw=V_BRAW+2*t+d
            a.e(f'v_lshlrev_b32 v{V_BIAS+4*t+2*d}, 16, v{raw}')
            a.e(f'v_and_b32 v{V_BIAS+4*t+2*d+1}, 0xffff0000, v{raw}')
    stamp(a,cfg,22)
    a.e(f'''v_lshlrev_b32 v{T0}, 6, v2
    v_add_u32 v{T0}, v{T0}, v1
    v_add_u32 v{T0}, s79, v{T0}
    v_lshlrev_b32 v{T0}, 5, v{T0}
    s_lshl_b32 s86, s2, 13
    s_add_u32 s86, s86, {WS_T}
    buffer_store_dwordx4 {vr(V_TO,4)}, v{T0}, {srd(S_WS)}, s86 offen {cfg.f("stT")}
    buffer_store_dwordx4 {vr(V_TO+4,4)}, v{T0}, {srd(S_WS)}, s86 offen offset:16 {cfg.f("stT")}''')
    a.e(f'''s_lshl_b32 s86, s50, 3
    s_lshl_b32 s87, s{S_WV}, 1
    s_add_u32 s86, s86, s87
    s_lshr_b32 s87, s86, 4
    s_lshl_b32 s87, s87, 11
    s_lshr_b32 s88, s51, 4
    s_lshl_b32 s88, s88, 10
    s_add_u32 s87, s87, s88
    s_lshr_b32 s88, s86, 2
    s_and_b32 s88, s88, 3
    s_lshl_b32 s88, s88, 8
    s_add_u32 s87, s87, s88
    s_and_b32 s88, s51, 15
    s_lshl_b32 s88, s88, 4
    s_add_u32 s87, s87, s88
    s_and_b32 s88, s86, 3
    s_lshl_b32 s88, s88, 2
    s_add_u32 s87, s87, s88
    s_add_u32 s87, s87, {WS_G}
    v_mov_b32 v{T0+1}, 0
    s_mov_b32 exec_lo, 0
    s_mov_b32 exec_hi, 0x80000000
    buffer_store_dwordx2 {vr(V_GOUT,2)}, v{T0+1}, {srd(S_WS)}, s87 offen {cfg.f("stG")}
    s_mov_b64 exec, -1''')
    a.e(f'''v_lshlrev_b32 v{T0+2}, 14, v{V_KAP}
    v_lshl_add_u32 v{T0+2}, v{V_C}, 4, v{T0+2}
    s_lshl_b32 s86, s50, 4
    v_add_u32 v{T0+3}, s86, v{V_KAP}
    v_cmp_eq_u32 vcc, 0, v{T0+3}
    v_mov_b32 v{T0+3}, 0x40000000
    v_cndmask_b32 v{T0+3}, v{T0+2}, v{T0+3}, vcc
    s_lshl_b32 s90, s55, 11
    s_lshl_b32 s87, s56, 10
    s_add_u32 s90, s90, s87
    s_lshl_b32 s87, s57, 8
    s_add_u32 s90, s90, s87
    s_lshl_b32 s86, s50, 18
    s_add_u32 s86, s86, s90
    s_add_u32 s86, s86, {WS_WT}
    s_add_u32 s87, s86, 8192
    buffer_store_dwordx4 {vr(V_P0,4)}, v{T0+3}, {srd(S_WS)}, s86 offen {cfg.f("stW")}
    buffer_store_dwordx4 {vr(V_P1,4)}, v{T0+2}, {srd(S_WS)}, s87 offen {cfg.f("stW")}''')
    a.e('s_cmp_lg_u32 s61, 0')
    a.e('s_cbranch_scc1 L_k1_nospec3')
    a.cond_begin()
    a.e(f'''v_lshlrev_b32 v{T0+4}, 4, v1
    v_lshl_add_u32 v{T0+4}, v2, 2, v{T0+4}
    s_add_u32 s87, s90, {WS_QT}
    s_add_u32 s86, s90, {WS_WT}
    buffer_store_dword v{V_PQ}, v{T0+4}, {srd(S_WS)}, s86 offen {cfg.f("stW")}
    buffer_store_dword v{V_PQ+1}, v{T0+4}, {srd(S_WS)}, s87 offen {cfg.f("stW")}''')
    a.cond_end()
    a.e('L_k1_nospec3:')
    a.e(f'''v_add_u32 v{T0+5}, s66, v{V_L16}
    s_mul_i32 s86, s65, {RT_STRIDE}
    s_lshl_b32 s87, s64, 12
    s_add_u32 s86, s86, s87
    s_lshl_b32 s87, s63, 11
    s_add_u32 s86, s86, s87
    s_add_u32 s86, s86, {WS_W2}
    buffer_store_dwordx4 {vr(V_Q0,4)}, v{T0+5}, {srd(S_WS)}, s86 offen {cfg.f("stW2")}
    buffer_store_dwordx4 {vr(V_Q1,4)}, v{T0+5}, {srd(S_WS)}, s86 offen offset:1024 {cfg.f("stW2")}''')
    stamp(a,cfg,23)
    g1_chunk_loads(2); g1_chunk_loads(3)
    stamp(a,cfg,2)
    V_VA=140; V_VA6=141; V_VAH=142; V_VA6H=143
    a.e(f'''v_mul_u32_u24 v{V_VA}, 1920, v2
    v_lshrrev_b32 v{T0}, 2, v1
    v_mul_u32_u24 v{T0}, 224, v{T0}
    v_and_b32 v{T0+1}, 3, v0
    v_lshlrev_b32 v{T0+1}, 3, v{T0+1}
    v_add3_u32 v{V_VA}, v{V_VA}, v{T0}, v{T0+1}
    v_add_u32 v{V_VA}, {W1_BASE}, v{V_VA}
    s_cmp_eq_u32 s71, 0
    s_cselect_b32 s86, 192, 0
    v_add_u32 v{V_VA6}, s86, v{V_VA}
    s_lshl_b32 s86, s71, 5
    v_add_u32 v{V_VA}, s86, v{V_VA}
    v_add_u32 v{V_VAH}, {8*7680}, v{V_VA}
    v_add_u32 v{V_VA6H}, {8*7680}, v{V_VA6}''')
    V_ACC=144
    V_WF=200
    def wf_reads(st,t):
        lo=st<8
        va=(V_VA if lo else V_VAH) if t<6 else (V_VA6 if lo else V_VA6H)
        off=(st%8)*7680+(32*t if t<6 else 0)
        for hh in range(2):
            a.e(f'ds_read_b64_tr_b16 {vr(V_WF+4*t+2*hh,2)}, v{va} offset:{off+960*hh}')
    a.wait_vm(tok_c[0]); a.e('s_barrier')
    stamp(a,cfg,3)
    for t in range(7): wf_reads(0,t)
    for st in range(16):
        last=(st==15)
        for t in range(7):
            n_out = (14 if not last else 2*(7-t))
            a.e(f's_waitcnt lgkmcnt({n_out-2})')
            for nb in range(2):
                acc=vr(V_ACC+28*nb+4*t,4)
                c=acc if st>0 else vr(V_BIAS+4*t,4)
                a.e(f'v_mfma_f32_16x16x32_bf16 {acc}, {vr(V_WF+4*t,4)}, {ar(A_X+8*st+4*nb,4)}, {c}')
            if not last:
                if t==0 and (st+1)%4==0:
                    a.wait_vm(tok_c[(st+1)//4]); a.e('s_barrier')
                    stamp(a,cfg,14+(st+1)//4-1)
                    if st==7:
                        a.e('s_and_b32 s92, s49, 3'); a.e('s_lshl_b32 s92, s92, 6')
                        signal(a,'s92',V_SIG)

                wf_reads(st+1,t)
    a.lg=0
    stamp(a,cfg,4)
    V_E=V_WF
    V_O=112
    a.e(f's_mov_b32 s84, {fl(LOG2E)}')
    a.e(f's_mov_b32 s85, {fl(LOG2E)}')
    a.e(f's_mov_b32 s86, {fl(43.0)}')
    def mish_pair(h,o,t):
        a.e(f'v_pk_mul_f32 {vr(t,2)}, {vr(h,2)}, s[84:85]')
        a.e(f'v_min_f32 v{t}, s86, v{t}')
        a.e(f'v_min_f32 v{t+1}, s86, v{t+1}')
        a.e(f'v_exp_f32 v{t}, v{t}')
        a.e(f'v_exp_f32 v{t+1}, v{t+1}')
        return
    pairs=[(V_ACC+28*nb+4*t+2*d, V_O+14*nb+2*t+d) for nb in range(2) for t in range(7) for d in range(2)]
    G=4
    for g0 in range(0,len(pairs),G):
        grp=pairs[g0:g0+G]
        T=lambda i: V_E+6*i
        for i,(h,o) in enumerate(grp): a.e(f'v_pk_mul_f32 {vr(T(i),2)}, {vr(h,2)}, s[84:85]')
        for i,(h,o) in enumerate(grp):
            a.e(f'v_min_f32 v{T(i)}, s86, v{T(i)}'); a.e(f'v_min_f32 v{T(i)+1}, s86, v{T(i)+1}')
        for i,(h,o) in enumerate(grp):
            a.e(f'v_exp_f32 v{T(i)}, v{T(i)}'); a.e(f'v_exp_f32 v{T(i)+1}, v{T(i)+1}')
        for i,(h,o) in enumerate(grp): a.e(f'v_pk_add_f32 {vr(T(i)+2,2)}, {vr(T(i),2)}, 2.0 op_sel_hi:[1,0]')
        for i,(h,o) in enumerate(grp): a.e(f'v_pk_mul_f32 {vr(T(i),2)}, {vr(T(i),2)}, {vr(T(i)+2,2)}')
        for i,(h,o) in enumerate(grp): a.e(f'v_pk_add_f32 {vr(T(i)+2,2)}, {vr(T(i),2)}, 2.0 op_sel_hi:[1,0]')
        for i,(h,o) in enumerate(grp):
            a.e(f'v_rcp_f32 v{T(i)+2}, v{T(i)+2}'); a.e(f'v_rcp_f32 v{T(i)+3}, v{T(i)+3}')
        for i,(h,o) in enumerate(grp): a.e(f'v_pk_mul_f32 {vr(T(i),2)}, {vr(T(i),2)}, {vr(T(i)+2,2)}')
        for i,(h,o) in enumerate(grp): a.e(f'v_pk_mul_f32 {vr(T(i),2)}, {vr(T(i),2)}, {vr(h,2)}')
        for i,(h,o) in enumerate(grp): a.e(f'v_cvt_pk_bf16_f32 v{o}, v{T(i)}, v{T(i)+1}')
    ctx.update(V_O=V_O,T0=T0,V_L16=V_L16)
    stamp(a,cfg,5)

def act_stores(a,cfg,ctx):
    sc=cfg.sc; V_O=ctx['V_O']; V_L16=ctx['V_L16']; T0=5
    a.e(f'''s_mul_i32 s86, s70, 7
    s_add_u32 s86, s86, s71
    s_lshr_b32 s86, s86, 1
    s_lshl_b32 s87, s86, 12
    s_mul_i32 s88, s69, {2*RT_STRIDE}
    s_lshl_b32 s89, s{S_WV}, 10
    s_add_u32 s88, s88, s89
    s_add_u32 s88, s88, {WS_ACT}
    s_add_u32 s88, s88, s87
    s_mov_b32 s89, {3*4096}
    s_cmp_eq_u32 s71, 0
    s_cselect_b32 s89, s89, {(-4096+512)&0xffffffff}
    s_add_u32 s89, s89, s88
    v_lshlrev_b32 v{T0}, 3, v0''')
    for nb in range(2):
        for pp in range(3):
            a.e(f'buffer_store_dwordx4 {vr(V_O+14*nb+4*pp,4)}, v{V_L16}, {srd(S_WS)}, s88 offen {cfg.f("stA")}')
            a.e('s_add_u32 s88, s88, 4096')
        a.e(f'buffer_store_dwordx2 {vr(V_O+14*nb+12,2)}, v{T0}, {srd(S_WS)}, s89 offen {cfg.f("stA")}')
        if nb==0:
            a.e(f's_add_u32 s88, s88, {RT_STRIDE-3*4096}')
            a.e(f's_add_u32 s89, s89, {RT_STRIDE}')

    ctx['tok_act']=a.vmtok()

K2_LDS=8192+16384
TB_BASE=0; XB_BASE=16384; ZR_BASE=24576
def p2_tables(a,V_F64R,V_F64I,V_F32R,V_F32I,V_T1C,V_T1S,V_T3C,V_T3S,T0):
    a.e(f'''s_lshl_b32 s52, s{S_WV}, 4
    v_add_u32 v{T0}, s52, v1
    v_cvt_f32_u32 v{T0}, v{T0}
    v_lshlrev_b32 v{T0+2}, 2, v2
    v_cvt_f32_u32 v{T0+2}, v{T0+2}
    v_mul_f32 v{T0+1}, {fl(1/64)}, v{T0}
    v_mul_f32 v{T0+3}, v{T0+2}, v{T0+1}''')
    def fset(dr,di,sl,base,consts):
        for u,n in enumerate(consts):
            if n==0: src=f'v{base}'
            else:
                a.e(f'v_fmamk_f32 v{T0+4}, v{sl}, {fl(n)}, v{base}'); src=f'v{T0+4}'
            sincos(a,src,f'v{T0+5}',f'v{T0+6}')
            a.e(f'v_cvt_pk_bf16_f32 v{dr+u}, v{T0+5}, v{T0+6}')
            a.e(f'v_cvt_pk_bf16_f32 v{di+u}, -v{T0+6}, v{T0+5}')
    for ks in range(4): fset(V_F64R+4*ks,V_F64I+4*ks,T0+1,T0+3,[16*ks+u for u in range(4)])
    a.e(f'''v_mul_f32 v{T0+1}, {fl(1/2048)}, v{T0}
    v_mul_f32 v{T0+3}, v{T0+2}, v{T0+1}''')
    for mb in range(2):
        for r in range(4):
            n=16*mb+r
            if n==0: src=f'v{T0+3}'
            else:
                a.e(f'v_fmamk_f32 v{T0+4}, v{T0+1}, {fl(n)}, v{T0+3}'); src=f'v{T0+4}'
            sincos(a,src,f'v{V_T1C+4*mb+r}',f'v{V_T1S+4*mb+r}',negs=True)
    a.e(f'v_cvt_f32_u32 v{T0+7}, v1')
    for eh in range(2):
        a.e(f'''v_add_f32 v{T0+1}, {fl(16*eh)}, v{T0+7}
        v_mul_f32 v{T0+1}, {fl(1/32)}, v{T0+1}
        v_mul_f32 v{T0+3}, v{T0+2}, v{T0+1}''')
        for mb in range(2): fset(V_F32R+8*eh+4*mb,V_F32I+8*eh+4*mb,T0+1,T0+3,[16*mb+u for u in range(4)])
    a.e(f'''v_cvt_f32_u32 v{T0}, s52
    v_add_f32 v{T0+2}, v{T0}, v{T0+2}''')
    for nb in range(2):
        a.e(f'''v_add_f32 v{T0+1}, {fl(16*nb)}, v{T0+7}
        v_mul_f32 v{T0+1}, {fl(1/2048)}, v{T0+1}
        v_mul_f32 v{T0+3}, v{T0+2}, v{T0+1}''')
        for r in range(4):
            if r==0: src=f'v{T0+3}'
            else:
                a.e(f'v_fmamk_f32 v{T0+4}, v{T0+1}, {fl(r)}, v{T0+3}'); src=f'v{T0+4}'
            sincos(a,src,f'v{V_T3C+4*nb+r}',f'v{V_T3S+4*nb+r}',negs=True)

def cmul_pack(a,c,s,tc,ts,dst,TT,n=4,negim=False):
    for h in range(n//2):
        cc=c+2*h; ss=s+2*h; tcc=tc+2*h; tss=ts+2*h
        a.e(f'v_pk_mul_f32 {vr(TT,2)}, {vr(ss,2)}, {vr(tss,2)}')
        a.e(f'v_pk_mul_f32 {vr(TT+2,2)}, {vr(ss,2)}, {vr(tcc,2)}')
        a.e(f'v_pk_fma_f32 {vr(TT,2)}, {vr(cc,2)}, {vr(tcc,2)}, {vr(TT,2)} neg_lo:[0,0,1] neg_hi:[0,0,1]')
        a.e(f'v_pk_fma_f32 {vr(TT+2,2)}, {vr(cc,2)}, {vr(tss,2)}, {vr(TT+2,2)}')
        ng='-' if negim else ''
        a.e(f'v_cvt_pk_bf16_f32 v{dst+2*h}, v{TT}, {ng}v{TT+2}')
        a.e(f'v_cvt_pk_bf16_f32 v{dst+2*h+1}, v{TT+1}, {ng}v{TT+3}')

def p2_loads(a,cfg,ctx):
    sc=cfg.sc
    a.e('''s_and_b32 s48, s2, 7
    s_lshr_b32 s49, s2, 3
    s_lshl_b32 s50, s48, 5
    s_add_u32 s50, s50, s49''')
    V_U=8
    V_W=40
    V_GT=48
    V_Q=56
    T0=64
    a.e(f'''v_lshrrev_b32 v{T0}, 5, v0
    v_lshlrev_b32 v{T0}, 18, v{T0}
    v_bfe_u32 v{T0+1}, v0, 1, 4
    v_lshl_add_u32 v{T0}, v{T0+1}, 13, v{T0}
    v_and_b32 v{T0+1}, 1, v0
    v_lshl_add_u32 v{T0}, v{T0+1}, 4, v{T0}
    s_lshl_b32 s51, s50, 5
    s_lshl_b32 s53, s{S_WV}, 19
    s_add_u32 s51, s51, s53
    s_add_u32 s51, s51, {WS_T}
    s_lshl_b32 s53, s{S_WV}, 11
    s_add_u32 s53, s53, {TB_BASE}
    s_mov_b32 m0, s53
    s_add_u32 s52, s51, 131072
    buffer_load_dwordx4 v{T0}, {srd(S_WS)}, s51 offen {cfg.f("ldT")} lds
    s_add_u32 s53, s53, 1024
    s_mov_b32 m0, s53
    s_nop 0
    buffer_load_dwordx4 v{T0}, {srd(S_WS)}, s52 offen {cfg.f("ldT")} lds''')
    tok_u=a.vmtok()
    V_L16=3
    a.e(f'''v_lshlrev_b32 v{V_L16}, 4, v0
    s_lshl_b32 s54, s50, 13
    s_lshl_b32 s55, s{S_WV}, 11
    s_add_u32 s54, s54, s55
    s_add_u32 s56, s54, {WS_WT}
    s_add_u32 s57, s55, {WS_G}
    s_add_u32 s58, s55, {WS_QT}''')
    for eh in range(2): a.e(f'buffer_load_dwordx4 {vr(V_W+4*eh,4)}, v{V_L16}, {srd(S_WS)}, s56 offen offset:{1024*eh} {cfg.f("ldW")}')
    for nb in range(2): a.e(f'buffer_load_dwordx4 {vr(V_GT+4*nb,4)}, v{V_L16}, {srd(S_WS)}, s57 offen offset:{1024*nb} {cfg.f("ldW")}')
    a.e(f'''s_cmp_eq_u32 s50, 0
    s_cselect_b32 s59, 0, 0x40000000
    v_add_u32 v{T0+2}, s59, v{V_L16}''')
    for eh in range(2): a.e(f'buffer_load_dwordx4 {vr(V_Q+4*eh,4)}, v{T0+2}, {srd(S_WS)}, s58 offen offset:{1024*eh} {cfg.f("ldW")}')
    tok_w=a.vmtok()
    ctx.update(tok_u=tok_u,tok_w=tok_w)

def p2_tab(a,cfg,ctx):
    T0=64
    V_F64R=80; V_F64I=96; V_F32R=112; V_F32I=128; V_T1C=144; V_T1S=152; V_T3C=160; V_T3S=168
    p2_tables(a,V_F64R,V_F64I,V_F32R,V_F32I,V_T1C,V_T1S,V_T3C,V_T3S,T0)

def p2_compute(a,cfg,ctx):
    sc=cfg.sc
    V_U=8; V_W=40; V_GT=48; V_Q=56; T0=64; V_L16=3
    V_F64R=80; V_F64I=96; V_F32R=112; V_F32I=128; V_T1C=144; V_T1S=152; V_T3C=160; V_T3S=168
    tok_u=ctx['tok_u']; tok_w=ctx['tok_w']
    V_DR=176; V_DI=184
    V_B=192
    TT=T0
    a.e(f'''v_lshrrev_b32 v{T0+4}, 1, v2
    v_lshlrev_b32 v{T0+4}, 5, v{T0+4}
    v_lshl_add_u32 v{T0+4}, v1, 1, v{T0+4}
    v_and_b32 v{T0+5}, 1, v2
    v_add_u32 v{T0+4}, v{T0+4}, v{T0+5}
    v_lshlrev_b32 v{T0+4}, 4, v{T0+4}''')
    for ks in range(4):
        for mb in range(2):
            a.e(f'ds_read_b128 {vr(V_U+16*mb+4*ks,4)}, v{T0+4} offset:{TB_BASE+2048*ks+1024*mb}')
    for ks in range(4):
        a.e(f's_waitcnt lgkmcnt({6-2*ks})')
        for mb in range(2):
            A=vr(V_U+16*mb+4*ks,4)
            for (D,Fm) in((V_DR,V_F64R),(V_DI,V_F64I)):
                d=vr(D+4*mb,4)
                a.e(f'v_mfma_f32_16x16x32_bf16 {d}, {A}, {vr(Fm+4*ks,4)}, {d if ks else 0}')
    for mb in range(2): cmul_pack(a,V_DR+4*mb,V_DI+4*mb,V_T1C+4*mb,V_T1S+4*mb,V_B+4*mb,TT)
    for mb in range(2):
        for eh in range(2):
            for (D,Fm) in((V_DR,V_F32R),(V_DI,V_F32I)):
                d=vr(D+4*eh,4)
                a.e(f'v_mfma_f32_16x16x32_bf16 {d}, {vr(Fm+8*eh+4*mb,4)}, {vr(V_B+4*mb,4)}, {d if mb else 0}')
    V_WR=V_U; V_WI=V_U+8
    a.wait_vm(tok_w)
    for e in range(8):
        a.e(f'v_lshlrev_b32 v{V_WR+e}, 16, v{V_W+e}')
        a.e(f'v_and_b32 v{V_WI+e}, 0xffff0000, v{V_W+e}')
    a.e('s_cmp_lg_u32 s50, 0')
    a.e('s_cbranch_scc0 L_p2_special')
    for eh in range(2): cmul_pack(a,V_DR+4*eh,V_DI+4*eh,V_WR+4*eh,V_WI+4*eh,V_B+4*eh,TT,negim=True)
    a.e('L_p2_join:')
    for ks in range(2):
        for nb in range(2):
            for (D,Fm) in((V_DR,V_F32R),(V_DI,V_F32I)):
                d=vr(D+4*nb,4)
                a.e(f'v_mfma_f32_16x16x32_bf16 {d}, {vr(V_B+4*ks,4)}, {vr(Fm+8*nb+4*ks,4)}, {d if ks else 0}')
    for nb in range(2): cmul_pack(a,V_DR+4*nb,V_DI+4*nb,V_T3C+4*nb,V_T3S+4*nb,V_B+4*nb,TT)
    a.e(f'''s_lshl_b32 s59, s{S_WV}, 11
    v_add_u32 v{T0+4}, s59, v{V_L16}''')
    for nb in range(2): a.e(f'ds_write_b128 v{T0+4}, {vr(V_B+4*nb,4)} offset:{XB_BASE+1024*nb}')
    a.e('s_waitcnt lgkmcnt(0)'); a.e('s_barrier')
    V_X=V_U
    for ks in range(4):
        for nb in range(2):
            a.e(f'ds_read_b128 {vr(V_X+8*ks+4*nb,4)}, v{V_L16} offset:{XB_BASE+2048*ks+1024*nb}')
    for ks in range(4):
        a.e(f's_waitcnt lgkmcnt({6-2*ks})')
        for nb in range(2):
            for (D,Fm) in((V_DR,V_F64R),(V_DI,V_F64I)):
                d=vr(D+4*nb,4)
                a.e(f'v_mfma_f32_16x16x32_bf16 {d}, {vr(Fm+4*ks,4)}, {vr(V_X+8*ks+4*nb,4)}, {d if ks else 0}')
    for e in range(8): a.e(f'v_mul_f32 v{V_GT+e}, {fl(2.0**-19)}, v{V_GT+e}')
    for nb in range(2):
        for h in range(2):
            a.e(f'v_pk_mul_f32 {vr(V_DR+4*nb+2*h,2)}, {vr(V_DR+4*nb+2*h,2)}, {vr(V_GT+4*nb+2*h,2)}')
            a.e(f'v_pk_mul_f32 {vr(V_DI+4*nb+2*h,2)}, {vr(V_DI+4*nb+2*h,2)}, {vr(V_GT+4*nb+2*h,2)}')
        for r in range(4): a.e(f'v_cvt_pk_bf16_f32 v{V_B+4*nb+r}, v{V_DR+4*nb+r}, v{V_DI+4*nb+r}')
    a.e(f's_add_u32 s56, s54, {WS_Y}')
    for nb in range(2): a.e(f'buffer_store_dwordx4 {vr(V_B+4*nb,4)}, v{V_L16}, {srd(S_WS)}, s56 offen offset:{1024*nb} {cfg.f("stY")}')
    ctx['tok_y']=a.vmtok()
    return

def p2_special(a,cfg,ctx):
    V_U=8; V_W=40; V_GT=48; V_Q=56; T0=64; V_L16=3; V_DR=176; V_DI=184; V_B=192; V_WR=V_U; V_WI=V_U+8
    a.e('L_p2_special:')
    a.cond_begin()
    V_J=T0+8; V_ZA=V_U+16
    a.e(f'''s_lshl_b32 s59, s{S_WV}, 4
    v_lshlrev_b32 v{V_J}, 8, v2
    v_add3_u32 v{V_J}, v{V_J}, v1, s59''')
    for eh in range(2):
        for r in range(4):
            n=1024*eh+64*r
            a.e(f'v_add_u32 v{T0}, {n}, v{V_J}')
            a.e(f'v_lshlrev_b32 v{T0}, 3, v{T0}')
            a.e(f'v_mov_b32 v{T0+2}, v{V_DR+4*eh+r}')
            a.e(f'v_mov_b32 v{T0+3}, v{V_DI+4*eh+r}')
            a.e(f'ds_write_b64 v{T0}, {vr(T0+2,2)} offset:{ZR_BASE}')
    a.e('s_waitcnt lgkmcnt(0)'); a.e('s_barrier')
    for eh in range(2):
        for r in range(4):
            n=1024*eh+64*r
            a.e(f'v_sub_u32 v{T0}, {2048-n}, v{V_J}')
            a.e(f'v_and_b32 v{T0}, 2047, v{T0}')
            a.e(f'v_lshlrev_b32 v{T0}, 3, v{T0}')
            a.e(f'ds_read_b64 {vr(V_ZA+2*(4*eh+r),2)}, v{T0} offset:{ZR_BASE}')
    a.e('s_waitcnt lgkmcnt(0)')
    for e in range(8):
        zr=V_DR+e; zi=V_DI+e; pr=V_WR+e; pi=V_WI+e; ar_=V_ZA+2*e; ai=ar_+1
        qr=T0; qi=T0+1; yr=T0+2; yi=T0+3
        a.e(f'''v_lshlrev_b32 v{qr}, 16, v{V_Q+e}
        v_and_b32 v{qi}, 0xffff0000, v{V_Q+e}
        v_mul_f32 v{yr}, v{zr}, v{pr}
        v_fma_f32 v{yr}, -v{zi}, v{pi}, v{yr}
        v_fma_f32 v{yr}, v{ar_}, v{qr}, v{yr}
        v_fma_f32 v{yr}, v{ai}, v{qi}, v{yr}
        v_mul_f32 v{yi}, v{zr}, v{pi}
        v_fma_f32 v{yi}, v{zi}, v{pr}, v{yi}
        v_fma_f32 v{yi}, v{ar_}, v{qi}, v{yi}
        v_fma_f32 v{yi}, -v{ai}, v{qr}, v{yi}
        v_cvt_pk_bf16_f32 v{V_B+e}, v{yr}, -v{yi}''')
    a.cond_end()
    a.e('s_branch L_p2_join')


K3_LDS=4*3*4*1024
DEPTH=4
A_R=0
def g2_setup(a,cfg,ctx):
    a.e(f"""s_and_b32 s60, s2, 7
    s_lshr_b32 s61, s2, 3
    s_lshl_b32 s62, s60, 2
    s_lshr_b32 s63, s61, 3
    s_add_u32 s62, s62, s63
    s_and_b32 s63, s61, 7
    s_mul_i32 s64, s62, {RT_STRIDE}
    s_mul_i32 s65, s{S_WV}, {14*4096}
    s_add_u32 s64, s64, s65
    s_add_u32 s64, s64, {WS_ACT}
    s_mul_i32 s66, s63, {RT_STRIDE}
    s_add_u32 s66, s66, s65
    s_add_u32 s66, s66, {WS_W2}
    s_lshr_b32 s67, s62, 1
    s_and_b32 s68, s62, 1
    s_lshr_b32 s69, s67, 2
    s_lshl_b32 s69, s69, 11
    s_lshl_b32 s70, s68, 10
    s_add_u32 s69, s69, s70
    s_and_b32 s70, s67, 3
    s_lshl_b32 s70, s70, 8
    s_add_u32 s69, s69, s70""")
    ctx['toks']={}

def g2_wloads(a,cfg,t):
    b=A_R+32*(t%DEPTH)
    for c in range(4):
        a.e(f'buffer_load_dwordx4 {ar(b+16+4*c,4)}, v3, {srd(S_WS)}, s66 offen offset:{1024*c} {cfg.f("ldW2")}')
    a.e('s_add_u32 s66, s66, 4096')

def g2_aloads(a,cfg,ctx,t):
    b=A_R+32*(t%DEPTH); sc=cfg.sc
    if t in(3,10):
        for q in range(4):
            a.e(f'buffer_load_dwordx2 {ar(b+4*q,2)}, v4, {srd(S_WS)}, s64 offen offset:{1024*q} {cfg.f("ldA")}')
            a.e(f'buffer_load_dwordx2 {ar(b+4*q+2,2)}, v4, {srd(S_WS)}, s64 offen offset:{1024*q+512} {cfg.f("ldA")}')
    else:
        for q in range(4):
            a.e(f'buffer_load_dwordx4 {ar(b+4*q,4)}, v3, {srd(S_WS)}, s64 offen offset:{1024*q} {cfg.f("ldA")}')
    a.e('s_add_u32 s64, s64, 4096')
    ctx['toks'][t]=a.vmtok()

V_GF=80; GT0=144; V_ACC2=160; V_Y=16; V_G2=8
def g_tables(a,cfg,ctx,items=None,init=True):
    T0=GT0
    if init:
        a.e(f"""s_lshl_b32 s71, s63, 6
        v_lshlrev_b32 v{T0}, 2, v1
        v_add_u32 v{T0}, s71, v{T0}
        v_cvt_f32_u32 v{T0}, v{T0}
        s_lshl_b32 s71, s{S_WV}, 6
        v_lshlrev_b32 v{T0+1}, 2, v2
        v_add_u32 v{T0+1}, s71, v{T0+1}
        v_cvt_f32_u32 v{T0+1}, v{T0+1}""")
        for c in range(4):
            a.e(f'v_add_f32 v{T0+2+c}, {fl(c)}, v{T0}' if c else f'v_mov_b32 v{T0+2}, v{T0}')
            a.e(f'v_mul_f32 v{T0+2+c}, {fl(1/512)}, v{T0+2+c}')
            a.e(f'v_mul_f32 v{T0+6+c}, v{T0+1}, v{T0+2+c}')
    for n_,(psi,c,u) in enumerate(items):
        n=16*psi+u
        tt=T0+10+3*(n_%2)
        if n==0: src=f'v{T0+6+c}'
        else:
            a.e(f'v_fmamk_f32 v{tt}, v{T0+2+c}, {fl(n)}, v{T0+6+c}'); src=f'v{tt}'
        sincos(a,src,f'v{tt+1}',f'v{tt+2}')
        a.e(f'v_cvt_pk_bf16_f32 v{V_GF+16*psi+4*c+u}, v{tt+1}, v{tt+2}')

def g_fix0(a):
    T0=GT0
    a.e(f"""s_cmp_eq_u32 s{S_WV}, 0
    s_cselect_b32 s72, 0xffff, 0
    s_mov_b32 s73, 0""")
    for c in range(4):
        a.e(f'v_mov_b32 v{T0+10}, {hex(0xBF003F00 if c%2==0 else 0x3F003F00)}')
        a.e(f'v_cndmask_b32 v{V_GF+4*c}, v{V_GF+4*c}, v{T0+10}, s[72:73]')

def g2_main(a,cfg,ctx):
    sc=cfg.sc; toks=ctx['toks']; V_ACC=V_ACC2; V_G=V_G2; V_L16=3
    a.e(f"""v_lshlrev_b32 v5, 4, v1
    s_add_u32 s70, s69, {WS_G}
    buffer_load_dwordx4 {vr(V_G,4)}, v5, {srd(S_WS)}, s70 offen {cfg.f("ldW")}
    v_lshlrev_b32 v6, 15, v2
    v_add_u32 v6, v6, v5
    s_lshl_b32 s74, s{S_WV}, 19
    s_add_u32 s74, s74, s69
    s_add_u32 s74, s74, {WS_Y}""")
    def yloads(psi):
        for u in range(4):
            a.e(f's_add_u32 s75, s74, {(16*psi+u)*8192}')
            a.e(f'buffer_load_dwordx4 {vr(V_Y+16*psi+4*u,4)}, v6, {srd(S_WS)}, s75 offen {cfg.f("ldY")}')
    for t in range(14):
        a.wait_vm(toks[t])
        b=A_R+32*(t%DEPTH)
        for c in range(4):
            for q in range(4):
                d=vr(V_ACC+16*q+4*c,4)
                a.e(f'v_mfma_f32_16x16x32_bf16 {d}, {ar(b+16+4*c,4)}, {ar(b+4*q,4)}, {d if t else 0}')
        if t+DEPTH<14:
            g2_wloads(a,cfg,t+DEPTH); g2_aloads(a,cfg,ctx,t+DEPTH)
        if t==5:
            poll_addr(a,V_PA,64,4)
            tok_s3=poll_issue(a,V_PD,V_PA,'0',4)
        if t==9: poll_check(a,tok_s3,V_PD,V_PA,'0',64,4)
        if 10<=t<14: yloads(t-10); toks['y%d'%(t-10)]=a.vmtok()
    stamp(a,cfg,11)
    for q in range(4): a.e(f'v_sub_f32 v{V_G+q}, 1.0, v{V_G+q}')
    for q in range(4):
        for e in range(16): a.e(f'v_mul_f32 v{V_ACC+16*q+e}, v{V_G+q}, v{V_ACC+16*q+e}')
    for psi in range(4):
        a.wait_vm(toks['y%d'%psi])
        y=V_Y+16*psi
        for (i,j) in[(0,1),(0,2),(0,3),(1,2),(1,3),(2,3)]:
            a.e(f'v_swap_b32 v{y+4*i+j}, v{y+4*j+i}')
        for c in range(4):
            for q in range(4):
                d=vr(V_ACC+16*q+4*c,4)
                a.e(f'v_mfma_f32_16x16x32_bf16 {d}, {vr(V_GF+16*psi+4*c,4)}, {vr(y+4*q,4)}, {d}')
    stamp(a,cfg,12)
    a.e(f"""s_mul_i32 s76, s{S_WV}, {3*4096}
    v_add_u32 v7, s76, v{V_L16}""")
    for w in range(4):
        a.e(f's_cmp_lg_u32 s{S_WV}, {w}')
        a.e(f's_cbranch_scc1 L_k3_w{w}')
        a.cond_begin()
        slot=0
        for q in range(4):
            if q==w: continue
            for c in range(4):
                a.e(f'ds_write_b128 v7, {vr(V_ACC+16*q+4*c,4)} offset:{slot*4096+c*1024}')
            slot+=1
        if w!=0:
            for e in range(16): a.e(f'v_mov_b32 v{V_ACC+e}, v{V_ACC+16*w+e}')
        a.cond_end()
        a.e(f'L_k3_w{w}:')
    a.e('s_waitcnt lgkmcnt(0)'); a.e('s_barrier')
    V_RD=V_Y
    for k in range(1,4):
        a.e(f"""s_add_u32 s76, s{S_WV}, {k}
        s_and_b32 s76, s76, 3
        s_mul_i32 s77, s76, {3*4096}
        s_cmp_lt_u32 s{S_WV}, s76
        s_cselect_b32 s78, 0, 1
        s_sub_u32 s78, s{S_WV}, s78
        s_lshl_b32 s78, s78, 12
        s_add_u32 s77, s77, s78
        v_add_u32 v7, s77, v{V_L16}""")
        for c in range(4): a.e(f'ds_read_b128 {vr(V_RD+16*(k-1)+4*c,4)}, v7 offset:{c*1024}')
    a.e('s_waitcnt lgkmcnt(0)')
    for k in range(3):
        for h in range(8): a.e(f'v_pk_add_f32 {vr(V_ACC+2*h,2)}, {vr(V_ACC+2*h,2)}, {vr(V_RD+16*k+2*h,2)}')
    V_O=V_GF
    for r in range(4):
        a.e(f'v_cvt_pk_bf16_f32 v{V_O+2*r}, v{V_ACC+r}, v{V_ACC+4+r}')
        a.e(f'v_cvt_pk_bf16_f32 v{V_O+2*r+1}, v{V_ACC+8+r}, v{V_ACC+12+r}')
    a.e(f"""v_lshlrev_b32 v5, 10, v1
    v_lshl_add_u32 v5, v2, 5, v5
    s_lshl_b32 s76, s67, 17
    s_lshl_b32 s77, s{S_WV}, 15
    s_add_u32 s76, s76, s77
    s_lshl_b32 s77, s68, 14
    s_add_u32 s76, s76, s77
    s_lshl_b32 s77, s63, 7
    s_add_u32 s76, s76, s77
    buffer_store_dwordx4 {vr(V_O,4)}, v5, {srd(S_OUT)}, s76 offen
    buffer_store_dwordx4 {vr(V_O+4,4)}, v5, {srd(S_OUT)}, s76 offen offset:16""")

V_SIG=252; V_PA=251; V_PD=250
def persist(a,cfg,end):
    ctx={}
    stamp(a,cfg,26)
    phase_a(a,cfg,ctx)
    poll_addr(a,V_PA,64,0)
    ctx['tok_s1']=poll_issue(a,V_PD,V_PA,'0',4)
    poll_check(a,ctx['tok_s1'],V_PD,V_PA,'0',64,4)
    stamp(a,cfg,6)
    p2_loads(a,cfg,ctx)
    act_stores(a,cfg,ctx)
    g2_setup(a,cfg,ctx)
    for t in range(DEPTH): g2_wloads(a,cfg,t)
    stamp(a,cfg,24)
    p2_tab(a,cfg,ctx)
    stamp(a,cfg,25)
    a.wait_vm(ctx['tok_act']); a.e('s_barrier')
    a.e("""s_lshr_b32 s90, s60, 1
    s_lshl_b32 s90, s90, 2
    s_lshr_b32 s91, s61, 3
    s_add_u32 s90, s90, s91
    s_and_b32 s91, s90, 3
    s_lshl_b32 s91, s91, 6
    s_lshr_b32 s90, s90, 2
    s_lshl_b32 s90, s90, 2
    s_add_u32 s92, s90, s91
    s_add_u32 s92, s92, 8""")
    signal(a,'s92',V_SIG)
    stamp(a,cfg,7)
    p2_compute(a,cfg,ctx)
    stamp(a,cfg,8)
    a.e(f"""s_and_b32 s91, s67, 3
    s_lshl_b32 s91, s91, 6
    s_lshr_b32 s90, s67, 2
    s_lshl_b32 s90, s90, 2
    s_add_u32 s93, s90, s91
    s_add_u32 s93, s93, 8""")
    poll_addr(a,V_PA,0,0)
    tok_s2=poll_issue(a,V_PD,V_PA,'s93',1)
    g_tables(a,cfg,ctx,[(psi,c,u) for psi in range(4) for c in range(4) for u in range(4)])
    g_fix0(a)
    stamp(a,cfg,9)
    poll_check(a,tok_s2,V_PD,V_PA,'s93',16,1)
    stamp(a,cfg,10)
    a.e('v_lshlrev_b32 v4, 3, v0')
    for t in range(DEPTH): g2_aloads(a,cfg,ctx,t)
    a.wait_vm(ctx['tok_y']); a.e('s_barrier')
    a.e('s_and_b32 s92, s61, 3'); a.e('s_lshl_b32 s92, s92, 6'); a.e('s_add_u32 s92, s92, 4')
    signal(a,'s92',V_SIG)
    g2_main(a,cfg,ctx)
    stamp(a,cfg,13)
    stamps_flush(a,cfg)
    a.e(f's_branch {end}')
    p2_special(a,cfg,ctx)

HEADER='''; Gated mix of a GFNet spectral filter and a dense->mish->dense block (generated by dev/gen.py)
'''
def kernel_text(label,body_fn,which,cfg,nvgpr,accoff):
    a=Asm(); end=f'L_end_{label}'
    prologue(a,which,end)
    body_fn(a,cfg,end)
    a.e(f'{end}:'); a.e('s_endpgm')
    txt=a.text()
    errs=[]
    for nm,pol in (('fall',lambda i,n:False),('taken',lambda i,n:(not i.target.startswith('L_end')) ),):
        errs+=verify_waits(a.out,pol,label+':'+nm)
    for e in sorted(set(errs))[:30]: print('WAITERR',e,file=sys.stderr)
    print(label,dict(a.count()),file=sys.stderr)
    s=f'.globl {label}\n.p2align 8\n.type {label},@function\n{label}:\n{txt}'
    kd=f'''.amdhsa_kernel {label}
  .amdhsa_next_free_vgpr {nvgpr}
  .amdhsa_next_free_sgpr 102
  .amdhsa_accum_offset {accoff}
  .amdhsa_group_segment_fixed_size 0
  .amdhsa_kernarg_size 88
  .amdhsa_user_sgpr_count 2
  .amdhsa_user_sgpr_kernarg_segment_ptr 1
  .amdhsa_system_sgpr_workgroup_id_x 1
.end_amdhsa_kernel
'''
    return s,kd

def build_persist(stamps=False,off=()):
    cfg=Cfg(); cfg.off=set(off); cfg.sc='sc1'; cfg.stamps=stamps; cfg.persist=True
    label=NAME+'_kernel'
    out=HEADER+f'; @launch grid=(256,1,1) block=(256,1,1) lds={K1_LDS}\n'
    out+='.amdgcn_target "amdgcn-amd-amdhsa--gfx950"\n.text\n'
    s,kd=kernel_text(label,persist,[n for (n,_,_) in SRDS],cfg,512,256)
    return out+s+'.section .rodata,"a"\n.p2align 6\n'+kd

if __name__=='__main__':
    mode=sys.argv[1] if len(sys.argv)>1 else 'multi'
    txt=build_persist(stamps=(mode=='stamps'),off=(sys.argv[3].split(',') if len(sys.argv)>3 else ()))
    open(sys.argv[2] if len(sys.argv)>2 else 'out.s','w').write(txt)
```

```python
import sys
from dsl import Asm, verify_waits

NAME='gated_mix__spectral_gfnet__dense_activation_mish__prompt'
WS_T   =0x000000
WS_WT  =0x200000
WS_QT  =0x400000
WS_G   =0x402000
WS_Y   =0x600000
WS_ACT =0x800000
WS_W2  =0x1000000
WS_STAMP=0x1200000
WS_SIZE=0x1240000
RT_STRIDE=56*4096
S_X,S_WR,S_WI,S_W1,S_B1,S_W2,S_GW,S_OUT,S_WS,S_DBG=8,12,16,20,24,28,32,36,40,44
def srd(n): return f's[{n}:{n+3}]'
SRDS=[(S_X,0,2048*1024),(S_WR,8,2048*514),(S_WI,16,2048*514),(S_W1,32,512*3584),(S_B1,40,3584),
      (S_W2,48,1792*1024),(S_GW,56,1024),(S_OUT,64,2048*1024),(S_WS,80,WS_SIZE),(S_DBG,72,256)]
def vr(b,n=1): return f'v{b}' if n==1 else f'v[{b}:{b+n-1}]'
def ar(b,n=1): return f'a{b}' if n==1 else f'a[{b}:{b+n-1}]'
S_WV=3
LOG2E=1.4426950408889634

class Cfg:
    dbgst=False
    off=set()
    def f(self,tag): return '' if (tag in self.off or 'all' in self.off) else self.sc
    stamps=False
    persist=False
    sc=''

def prologue(a,which,end):
    a.e(f's_cmp_ge_u32 s2, 256')
    a.e(f's_cbranch_scc1 {end}')
    for (n,off,sz) in SRDS:
        if n in which: a.e(f's_load_dwordx2 s[{n}:{n+1}], s[0:1], {off}')
    a.e('v_lshrrev_b32 v1, 6, v0')
    a.e('v_and_b32 v0, 63, v0')
    a.e(f'v_readfirstlane_b32 s{S_WV}, v1')
    a.e('v_and_b32 v1, 15, v0')
    a.e('v_lshrrev_b32 v2, 4, v0')
    for (n,off,sz) in SRDS:
        if n in which:
            a.e(f's_mov_b32 s{n+2}, {hex(sz)}'); a.e(f's_mov_b32 s{n+3}, 0x20000')
    a.e('s_waitcnt lgkmcnt(0)')

def sincos(a,arg,dc,ds,negs=False):
    a.e(f'v_cos_f32 {dc}, {arg}')
    if negs: a.e(f'v_sin_f32_e64 {ds}, -{arg}')
    else: a.e(f'v_sin_f32 {ds}, {arg}')

def fl(x):
    import struct
    return hex(struct.unpack('<I',struct.pack('<f',float(x)))[0])


SPIN_MAX=50000
import os
SLEEP=int(os.environ.get('SLEEP','8'))
S_STAMP=96
class Stamps:
    n=0
def stamp(a,cfg,idx):
    if not cfg.stamps: return
    if cfg.dbgst and idx not in (26,2,4,5,7,10,11,13): return
    a.e(f's_memrealtime s[{S_STAMP}:{S_STAMP+1}]')
    a.e('s_waitcnt lgkmcnt(0)')
    a.e(f'v_writelane_b32 v255, s{S_STAMP}, {idx}')

def stamps_flush(a,cfg):
    if not cfg.stamps: return
    if cfg.dbgst:
        sel=[2,4,5,7,10,11,13]
        a.e('s_or_b32 s98, s2, s3'); a.e('s_cmp_lg_u32 s98, 0'); a.e('s_cbranch_scc1 L_nodbg')
        a.e('v_readlane_b32 s97, v255, 26')
        a.e('s_memtime s[98:99]'); a.e('s_waitcnt lgkmcnt(0)')
        a.e('v_readlane_b32 s96, v255, 27'); a.e('s_nop 3'); a.e('s_sub_u32 s98, s98, s96')
        a.e('v_writelane_b32 v254, s98, 7')
        for n,i in enumerate(sel):
            a.e(f'v_readlane_b32 s98, v255, {i}'); a.e('s_nop 3'); a.e('s_sub_u32 s98, s98, s97'); a.e(f'v_writelane_b32 v254, s98, {n}')
        a.e('v_lshlrev_b32 v253, 2, v0'); a.e('s_mov_b64 exec, 0xff')
        a.e(f'buffer_store_dword v254, v253, {srd(S_DBG)}, 0 offen offset:32')
        a.e('s_mov_b64 exec, -1'); a.e('L_nodbg:')
        return
    a.e(f"""s_lshl_b32 s98, s2, 2
    s_add_u32 s98, s98, s{S_WV}
    s_lshl_b32 s98, s98, 7
    s_add_u32 s98, s98, {WS_STAMP}
    v_lshlrev_b32 v254, 2, v0
    s_mov_b32 exec_lo, -1
    s_mov_b32 exec_hi, 0
    buffer_store_dword v255, v254, {srd(S_WS)}, s98 offen
    s_mov_b64 exec, -1""")

def signal(a,soff,vt):
    a.e(f"""s_cmp_eq_u32 s{S_WV}, 0
    s_cselect_b32 s95, 0, 0x40000000
    v_mov_b32 v{vt}, 1
    v_mov_b32 v{vt+1}, s95
    s_mov_b64 exec, 1
    buffer_atomic_add v{vt}, v{vt+1}, {srd(S_DBG)}, {soff} offen sc1
    s_mov_b64 exec, -1""")

def poll_addr(a,vaddr,lanestride,base):
    a.e(f"""s_cmp_eq_u32 s{S_WV}, 0
    s_cselect_b32 s95, {base}, 0x40000000""" if base==0 else f"""s_mov_b32 s95, {base}
    s_cmp_eq_u32 s{S_WV}, 0
    s_cselect_b32 s95, s95, 0x40000000""")
    if lanestride:
        a.e(f'v_and_b32 v{vaddr}, 3, v0'); a.e(f'v_mul_u32_u24 v{vaddr}, {lanestride}, v{vaddr}')
        a.e(f'v_add_u32 v{vaddr}, s95, v{vaddr}')
    else: a.e(f'v_mov_b32 v{vaddr}, s95')

def poll_issue(a,vdst,vaddr,soff,nl):
    a.e(f's_mov_b64 exec, {hex((1<<nl)-1)}')
    a.e(f'buffer_load_dword v{vdst}, v{vaddr}, {srd(S_DBG)}, {soff} offen sc1')
    a.e('s_mov_b64 exec, -1')
    return a.vmtok()

def poll_check(a,tok,vdst,vaddr,soff,target,nl):
    lab=f'L_poll{len(a.items)}'
    a.e(f's_cmp_lg_u32 s{S_WV}, 0')
    a.e(f's_cbranch_scc1 {lab}_ok')
    a.wait_vm(tok)
    a.cond_begin()
    a.e(f's_mov_b64 exec, {hex((1<<nl)-1)}')
    a.e(f'v_cmp_gt_u32 vcc, {target}, v{vdst}')
    a.e(f's_cbranch_vccz {lab}_done')
    a.e(f's_mov_b32 s94, 0')
    a.e(f'{lab}:')
    a.e(f's_sleep {SLEEP}')
    a.e(f'buffer_load_dword v{vdst}, v{vaddr}, {srd(S_DBG)}, {soff} offen sc1')
    a.e(f's_add_u32 s94, s94, 1')
    a.e(f's_waitcnt vmcnt(0)')
    a.e(f'v_cmp_gt_u32 vcc, {target}, v{vdst}')
    a.e(f's_cmp_gt_u32 s94, {SPIN_MAX}')
    a.e(f's_cbranch_scc1 {lab}_done')
    a.e(f's_cbranch_vccnz {lab}')
    a.e(f'{lab}_done:')
    a.e('s_mov_b64 exec, -1')
    a.cond_end()
    a.e(f'{lab}_ok:')
    a.e('s_barrier')

XA_BASE=0; XA_PITCH=1152
W1_BASE=9216; W1_GP=960
K1_LDS=W1_BASE+128*W1_GP

def phase_a(a,cfg,ctx):
    sc=cfg.sc
    a.e('''s_and_b32 s48, s2, 7
    s_lshr_b32 s49, s2, 3
    s_lshr_b32 s50, s2, 5
    s_and_b32 s51, s2, 31''')
    V_L16=3
    a.e(f'v_lshlrev_b32 v{V_L16}, 4, v0')
    a.e(f'''s_lshl_b32 s52, s50, 18
    s_lshl_b32 s53, s51, 10
    s_add_u32 s52, s52, s53
    s_lshl_b32 s53, s{S_WV}, 16
    s_add_u32 s52, s52, s53
    s_mul_i32 s53, s{S_WV}, {2*XA_PITCH}
    s_add_u32 s53, s53, {XA_BASE}
    s_mov_b32 m0, s53
    s_add_u32 s54, s52, 32768
    buffer_load_dwordx4 v{V_L16}, {srd(S_X)}, s52 offen lds
    s_add_u32 s53, s53, {XA_PITCH}
    s_mov_b32 m0, s53
    s_nop 0
    buffer_load_dwordx4 v{V_L16}, {srd(S_X)}, s54 offen lds''')
    tok_xa=a.vmtok()
    V_GW=4
    a.e(f'buffer_load_dwordx4 {vr(V_GW,4)}, v{V_L16}, {srd(S_GW)}, 0 offen')
    tok_gw=a.vmtok()
    a.e('''s_lshr_b32 s55, s51, 3
    s_lshr_b32 s56, s51, 2
    s_and_b32 s56, s56, 1
    s_and_b32 s57, s51, 3
    s_lshl_b32 s58, s55, 4
    s_lshl_b32 s59, s56, 10
    s_add_u32 s58, s58, s59
    s_lshl_b32 s59, s57, 8
    s_add_u32 s58, s58, s59''')
    V_C=8; V_KAP=9; V_T=10; V_WOFF=11
    a.e(f'''s_and_b32 s59, s{S_WV}, 1
    s_lshl_b32 s59, s59, 3
    v_and_b32 v{V_C}, 7, v0
    v_add_u32 v{V_C}, s59, v{V_C}
    s_lshr_b32 s59, s{S_WV}, 1
    s_lshl_b32 s59, s59, 3
    v_lshrrev_b32 v{V_KAP}, 3, v0
    v_add_u32 v{V_KAP}, s59, v{V_KAP}
    v_mul_u32_u24 v{V_WOFF}, 514, v{V_C}
    v_lshlrev_b32 v{V_T}, 2, v{V_KAP}
    v_add_u32 v{V_WOFF}, v{V_WOFF}, v{V_T}
    s_mul_i32 s60, s58, 514
    s_lshl_b32 s59, s50, 6
    s_add_u32 s60, s60, s59''')
    V_WR=12; V_WI=16
    for r in range(4):
        a.e(f'buffer_load_dword v{V_WR+r}, v{V_WOFF}, {srd(S_WR)}, s60 offen')
        a.e(f'buffer_load_dword v{V_WI+r}, v{V_WOFF}, {srd(S_WI)}, s60 offen')
        if r<3: a.e(f's_add_u32 s60, s60, {64*514}')
    tok_wt=a.vmtok()
    V_SP=20
    V_J=28; V_JR=29; V_SPO=30
    a.e(f'''s_lshl_b32 s59, s50, 2
    s_xor_b32 s61, s{S_WV}, 3
    s_or_b32 s61, s61, s59''')
    a.e('s_cmp_lg_u32 s61, 0')
    a.e('s_cbranch_scc1 L_k1_nospec1')
    a.cond_begin()
    a.e(f'''v_lshlrev_b32 v{V_J}, 6, v2
    v_add_u32 v{V_J}, v{V_J}, v1
    v_add_u32 v{V_J}, s58, v{V_J}
    v_sub_u32 v{V_JR}, 2048, v{V_J}
    v_and_b32 v{V_JR}, 2047, v{V_JR}
    v_mul_u32_u24 v{V_J}, 514, v{V_J}
    v_mul_u32_u24 v{V_JR}, 514, v{V_JR}''')
    for n,(S,vv,off) in enumerate([(S_WR,V_J,0),(S_WR,V_J,512),(S_WR,V_JR,0),(S_WR,V_JR,512),(S_WI,V_J,0),(S_WI,V_J,512),(S_WI,V_JR,0),(S_WI,V_JR,512)]):
        a.e(f'buffer_load_ushort v{V_SP+n}, v{vv}, {srd(S)}, 0 offen offset:{off}')
    a.cond_end()
    a.e('L_k1_nospec1:')
    tok_sp=a.vmtok()
    V_W2O=31; V_W2=32
    a.e(f'''s_lshl_b32 s62, s2, 2
    s_add_u32 s62, s62, s{S_WV}
    s_and_b32 s63, s62, 1
    s_lshr_b32 s64, s62, 1
    s_and_b32 s65, s64, 7
    s_lshr_b32 s64, s64, 3
    s_cmp_lt_u32 s62, 896
    s_cselect_b32 s66, 0, 0x40000000
    v_lshlrev_b32 v{V_W2O}, 12, v2
    v_lshlrev_b32 v{V_T}, 3, v1
    v_add3_u32 v{V_W2O}, v{V_W2O}, v{V_T}, s66
    s_lshl_b32 s67, s64, 15
    s_lshl_b32 s68, s65, 7
    s_add_u32 s67, s67, s68
    s_lshl_b32 s68, s63, 2
    s_add_u32 s67, s67, s68
    s_add_u32 s68, s67, 16384''')
    for e in range(8):
        a.e(f'buffer_load_dword v{V_W2+e}, v{V_W2O}, {srd(S_W2)}, s{67 if e<4 else 68} offen offset:{(e&3)*1024}')
    tok_w2=a.vmtok()
    a.e('''s_lshr_b32 s69, s48, 1
    s_lshl_b32 s69, s69, 2
    s_lshr_b32 s70, s49, 3
    s_add_u32 s69, s69, s70
    s_and_b32 s70, s48, 1
    s_lshl_b32 s70, s70, 3
    s_and_b32 s71, s49, 7
    s_add_u32 s70, s70, s71
    s_and_b32 s71, s70, 1''')
    V_BO=40; V_BRAW=42
    a.e(f'''v_lshlrev_b32 v{V_BO}, 3, v2
    s_mul_i32 s72, s70, 224
    s_lshl_b32 s73, s71, 5
    s_add_u32 s73, s72, s73
    s_cmp_eq_u32 s71, 0
    s_cselect_b32 s74, 192, 0
    s_add_u32 s74, s72, s74''')
    for t in range(6):
        a.e(f'buffer_load_dwordx2 {vr(V_BRAW+2*t,2)}, v{V_BO}, {srd(S_B1)}, s73 offen offset:{32*t}')
    a.e(f'buffer_load_dwordx2 {vr(V_BRAW+12,2)}, v{V_BO}, {srd(S_B1)}, s74 offen')
    tok_b=a.vmtok()
    V_XO=56; V_DO=57
    A_X=0
    a.e(f'''v_lshlrev_b32 v{V_XO}, 10, v1
    v_lshlrev_b32 v{V_T}, 4, v2
    v_add_u32 v{V_XO}, v{V_XO}, v{V_T}
    s_lshl_b32 s75, s69, 17
    s_lshl_b32 s76, s{S_WV}, 15
    s_add_u32 s75, s75, s76
    s_add_u32 s76, s75, 16384
    v_mul_u32_u24 v{V_T}, 4682, v0
    v_lshrrev_b32 v{V_T}, 16, v{V_T}
    v_mul_u32_u24 v{V_DO}, 3584, v{V_T}
    v_mul_u32_u24 v{V_T}, 14, v{V_T}
    v_sub_u32 v{V_T}, v0, v{V_T}
    v_lshlrev_b32 v{V_T}, 4, v{V_T}
    v_add_u32 v{V_DO}, v{V_DO}, v{V_T}
    s_mul_i32 s77, s{S_WV}, {8*14336}
    s_add_u32 s77, s77, s72
    s_mul_i32 s78, s{S_WV}, {8*W1_GP}
    s_add_u32 s78, s78, {W1_BASE}''')
    tok_c=[]
    def g1_chunk_loads(kc):
        for st in range(4*kc,4*kc+4):
            for nb in range(2):
                a.e(f'buffer_load_dwordx4 {ar(A_X+8*st+4*nb,4)}, v{V_XO}, {srd(S_X)}, s{75+nb} offen offset:{64*st}')
        a.e('s_mov_b32 exec_hi, 0x00ffffff')
        for u in range(8):
            a.e(f's_mov_b32 m0, s78')
            a.e(f's_add_u32 s78, s78, {W1_GP}')
            a.e(f'buffer_load_dwordx4 v{V_DO}, {srd(S_W1)}, s77 offen lds')
            a.e(f's_add_u32 s77, s77, 14336')
        a.e('s_mov_b32 exec_hi, -1')
        a.e(f's_add_u32 s77, s77, {24*14336}')
        a.e(f's_add_u32 s78, s78, {24*W1_GP}')
        tok_c.append(a.vmtok())
    g1_chunk_loads(0); g1_chunk_loads(1)
    V_B1C=60; V_B1S=68
    V_TC=76; V_TS=80
    V_A2=84; V_A2N=88
    T0=92
    a.e(f'''s_lshl_b32 s79, s{S_WV}, 4
    v_add_u32 v{T0}, s79, v1
    v_cvt_f32_u32 v{T0}, v{T0}
    v_mul_f32 v{T0+1}, {fl(1/64)}, v{T0}
    v_lshlrev_b32 v{T0+2}, 2, v2
    v_cvt_f32_u32 v{T0+2}, v{T0+2}
    v_mul_f32 v{T0+3}, v{T0+2}, v{T0+1}''')
    for ks in range(2):
        for hh in range(2):
            cs=[]
            for u in range(4):
                n=32*ks+16*hh+u
                arg=T0+4
                if n==0: src=f'v{T0+3}'
                else:
                    a.e(f'v_fmamk_f32 v{arg}, v{T0+1}, {fl(n)}, v{T0+3}'); src=f'v{arg}'
                sincos(a,src,f'v{T0+5+u}',f'v{T0+9+u}',negs=True)
            for d in range(2):
                a.e(f'v_cvt_pk_bf16_f32 v{V_B1C+4*ks+2*hh+d}, v{T0+5+2*d}, v{T0+6+2*d}')
                a.e(f'v_cvt_pk_bf16_f32 v{V_B1S+4*ks+2*hh+d}, v{T0+9+2*d}, v{T0+10+2*d}')
    a.e(f'''v_and_b32 v{T0+4}, 1, v2
    v_lshlrev_b32 v{T0+4}, 2, v{T0+4}
    v_cvt_f32_u32 v{T0+4}, v{T0+4}
    v_mul_f32 v{T0+5}, {fl(1/512)}, v{T0}
    v_mul_f32 v{T0+6}, v{T0+4}, v{T0+5}''')
    for r in range(4):
        if r==0: src=f'v{T0+6}'
        else:
            a.e(f'v_fmamk_f32 v{T0+7}, v{T0+5}, {fl(r)}, v{T0+6}'); src=f'v{T0+7}'
        sincos(a,src,f'v{V_TC+r}',f'v{V_TS+r}',negs=True)
    a.e(f'''v_lshrrev_b32 v{T0+5}, 2, v1
    v_cvt_f32_u32 v{T0+5}, v{T0+5}
    v_mul_f32 v{T0+5}, {fl(1/8)}, v{T0+5}
    v_and_b32 v{T0+6}, 1, v1
    v_cvt_f32_u32 v{T0+6}, v{T0+6}
    v_mul_f32 v{T0+6}, {fl(0.25)}, v{T0+6}
    v_fma_f32 v{T0+6}, v{T0+4}, v{T0+5}, v{T0+6}
    v_lshrrev_b32 v{T0+7}, 1, v1
    v_and_b32 v{T0+7}, 1, v{T0+7}
    v_lshrrev_b32 v{T0+8}, 1, v2
    v_cmp_eq_u32 s[80:81], v{T0+7}, v{T0+8}
    v_and_b32 v{T0+9}, 13, v1
    v_cmp_eq_u32 vcc, 1, v{T0+9}
    s_and_b64 s[82:83], vcc, s[80:81]''')
    for dw in range(4):
        if dw==0: src=f'v{T0+6}'
        else:
            a.e(f'v_fmamk_f32 v{T0+9}, v{T0+5}, {fl(dw)}, v{T0+6}'); src=f'v{T0+9}'
        sincos(a,src,f'v{T0+10}',f'v{T0+11}')
        a.e(f'v_cvt_pk_bf16_f32 v{T0+10}, v{T0+10}, v{T0+11}')
        a.e(f'v_cndmask_b32 v{V_A2+dw}, 0, v{T0+10}, s[80:81]')
        a.e(f'v_mov_b32 v{T0+10}, {hex(0x3F80 if dw%2==0 else 0xBF80)}')
        a.e(f'v_cndmask_b32 v{V_A2N+dw}, 0, v{T0+10}, s[82:83]')
    V_XA=108
    a.e(f'''v_and_b32 v{T0}, 3, v0
    v_lshrrev_b32 v{T0+1}, 1, v{T0}
    v_mul_u32_u24 v{V_XA}, {XA_PITCH}, v{T0+1}
    v_and_b32 v{T0}, 1, v{T0}
    v_lshlrev_b32 v{T0}, 3, v{T0}
    v_lshrrev_b32 v{T0+1}, 2, v1
    v_lshl_add_u32 v{T0+1}, v2, 2, v{T0+1}
    v_lshlrev_b32 v{T0+1}, 4, v{T0+1}
    v_add3_u32 v{V_XA}, v{V_XA}, v{T0}, v{T0+1}''')
    if XA_BASE: a.e(f'v_add_u32 v{V_XA}, {XA_BASE}, v{V_XA}')
    stamp(a,cfg,0)
    a.wait_vm(tok_xa)
    a.e('s_barrier')
    stamp(a,cfg,1)
    V_AF=112
    for pi in range(4):
        for ks in range(2):
            for hh in range(2):
                a.e(f'ds_read_b64_tr_b16 {vr(V_AF+8*pi+4*ks+2*hh,2)}, v{V_XA} offset:{pi*2*XA_PITCH+ks*512+hh*256}')
    V_GX=144
    a.e(f'''s_mul_i32 s84, s{S_WV}, {2*XA_PITCH}
    v_add_u32 v{T0}, s84, v{V_L16}''')
    lg_af=a.lgtok()
    a.e(f'ds_read_b128 {vr(V_GX,4)}, v{T0} offset:{XA_BASE}')
    a.e(f'ds_read_b128 {vr(V_GX+4,4)}, v{T0} offset:{XA_BASE+XA_PITCH}')
    lg_gx=a.lgtok()
    V_D1C=152; V_D1S=168
    a.wait_lg(lg_af)
    for pi in range(4):
        for ks in range(2):
            A=vr(V_AF+8*pi+4*ks,4)
            c=vr(V_D1C+4*pi,4); s=vr(V_D1S+4*pi,4)
            a.e(f'v_mfma_f32_16x16x32_bf16 {c}, {A}, {vr(V_B1C+4*ks,4)}, {c if ks else 0}')
            a.e(f'v_mfma_f32_16x16x32_bf16 {s}, {A}, {vr(V_B1S+4*ks,4)}, {s if ks else 0}')
    stamp(a,cfg,17)
    a.wait_vm(tok_gw); a.wait_lg(lg_gx)
    V_Z=T0+2
    for rr in range(2):
        a.e(f'v_dot2_f32_bf16 v{V_Z+rr}, v{V_GX+4*rr}, v{V_GW}, 0')
        for d in range(1,4):
            a.e(f'v_dot2_f32_bf16 v{V_Z+rr}, v{V_GX+4*rr+d}, v{V_GW+d}, v{V_Z+rr}')
    for sh,extra in [('row_shr:1',''),('row_shr:2',''),('row_shr:4',''),('row_shr:8',''),]:
        for rr in range(2):
            a.e(f'v_add_f32_dpp v{V_Z+rr}, v{V_Z+rr}, v{V_Z+rr} {sh} row_mask:0xf bank_mask:0xf bound_ctrl:1')
    for rr in range(2):
        a.e(f'v_add_f32_dpp v{V_Z+rr}, v{V_Z+rr}, v{V_Z+rr} row_bcast:15 row_mask:0xa bank_mask:0xf')
    for rr in range(2):
        a.e(f'v_add_f32_dpp v{V_Z+rr}, v{V_Z+rr}, v{V_Z+rr} row_bcast:31 row_mask:0xc bank_mask:0xf')
    for rr in range(2):
        a.e(f'v_mul_f32 v{V_Z+rr}, {fl(-LOG2E)}, v{V_Z+rr}')
    for rr in range(2): a.e(f'v_exp_f32 v{V_Z+rr}, v{V_Z+rr}')
    for rr in range(2): a.e(f'v_add_f32 v{V_Z+rr}, 1.0, v{V_Z+rr}')
    V_GOUT=T0+4
    for rr in range(2): a.e(f'v_rcp_f32 v{V_GOUT+rr}, v{V_Z+rr}')
    stamp(a,cfg,18)
    V_B2=V_AF
    TT=T0+8
    for pi in range(4):
        for h in range(2):
            c=V_D1C+4*pi+2*h; s=V_D1S+4*pi+2*h; tc=V_TC+2*h; ts=V_TS+2*h
            a.e(f'v_pk_mul_f32 {vr(TT,2)}, {vr(s,2)}, {vr(ts,2)}')
            a.e(f'v_pk_mul_f32 {vr(TT+2,2)}, {vr(s,2)}, {vr(tc,2)}')
            a.e(f'v_pk_fma_f32 {vr(TT,2)}, {vr(c,2)}, {vr(tc,2)}, {vr(TT,2)} neg_lo:[0,0,1] neg_hi:[0,0,1]')
            a.e(f'v_pk_fma_f32 {vr(TT+2,2)}, {vr(c,2)}, {vr(ts,2)}, {vr(TT+2,2)}')
            a.e(f'v_cvt_pk_bf16_f32 v{V_B2+4*pi+2*h}, v{TT}, v{TT+2}')
            a.e(f'v_cvt_pk_bf16_f32 v{V_B2+4*pi+2*h+1}, v{TT+1}, v{TT+3}')
    V_D2=V_D1C; V_D2N=V_D1S
    for pi in range(4):
        a.e(f'v_mfma_f32_16x16x32_bf16 {vr(V_D2+4*pi,4)}, {vr(V_A2,4)}, {vr(V_B2+4*pi,4)}, 0')
        a.e(f'v_mfma_f32_16x16x32_bf16 {vr(V_D2N+4*pi,4)}, {vr(V_A2N,4)}, {vr(V_B2+4*pi,4)}, 0')
    a.e(f'''s_cmp_eq_u32 s{S_WV}, 0
    s_cselect_b32 s84, 1, 0
    s_mov_b32 s85, 0''')
    V_TO=V_GX
    for pi in range(4):
        for rho in range(2):
            re=V_D2+4*pi+2*rho; im=re+1
            a.e(f'v_cndmask_b32 v{im}, v{im}, v{V_D2N+4*pi+2*rho+1}, s[84:85]')
            a.e(f'v_cvt_pk_bf16_f32 v{V_TO+2*pi+rho}, v{re}, v{im}')
    stamp(a,cfg,19)
    a.wait_vm(tok_wt)
    V_P0=V_D1S; V_P1=V_D1S+4
    a.e(f'''s_mov_b32 s84, 0x05040100
    s_mov_b32 s85, 0x07060302''')
    for r in range(4):
        a.e(f'v_perm_b32 v{V_P0+r}, v{V_WI+r}, v{V_WR+r}, s84')
        a.e(f'v_perm_b32 v{V_P1+r}, v{V_WI+r}, v{V_WR+r}, s85')
    stamp(a,cfg,20)
    V_PQ=V_B1C
    a.e('s_cmp_lg_u32 s61, 0')
    a.e('s_cbranch_scc1 L_k1_nospec2')
    a.wait_vm(tok_sp)
    for n in range(8): a.e(f'v_lshlrev_b32 v{V_SP+n}, 16, v{V_SP+n}')
    s=V_SP; t=V_B1S
    a.e(f'''v_add_f32 v{t}, v{s}, v{s+2}
    v_add_f32 v{t+1}, v{s+1}, v{s+3}
    v_sub_f32 v{t+2}, v{s+4}, v{s+6}
    v_sub_f32 v{t+3}, v{s+5}, v{s+7}
    v_add_f32 v{t+4}, v{t}, v{t+1}
    v_add_f32 v{t+5}, v{t+2}, v{t+3}
    v_sub_f32 v{t+6}, v{t}, v{t+1}
    v_sub_f32 v{t+7}, v{t+2}, v{t+3}
    v_mul_f32 v{t+4}, {fl(0.25)}, v{t+4}
    v_mul_f32 v{t+5}, {fl(0.25)}, v{t+5}
    v_mul_f32 v{t+6}, {fl(0.25)}, v{t+6}
    v_mul_f32 v{t+7}, {fl(0.25)}, v{t+7}
    v_cvt_pk_bf16_f32 v{V_PQ}, v{t+4}, v{t+5}
    v_cvt_pk_bf16_f32 v{V_PQ+1}, v{t+6}, v{t+7}''')
    a.e('L_k1_nospec2:')
    a.wait_vm(tok_w2)
    V_Q0=V_D1S+8; V_Q1=V_D1S+12
    for dw in range(4):
        a.e(f'v_perm_b32 v{V_Q0+dw}, v{V_W2+2*dw+1}, v{V_W2+2*dw}, s84')
        a.e(f'v_perm_b32 v{V_Q1+dw}, v{V_W2+2*dw+1}, v{V_W2+2*dw}, s85')
    stamp(a,cfg,21)
    V_BIAS=112
    a.wait_vm(tok_b)
    for t in range(7):
        for d in range(2):
            raw=V_BRAW+2*t+d
            a.e(f'v_lshlrev_b32 v{V_BIAS+4*t+2*d}, 16, v{raw}')
            a.e(f'v_and_b32 v{V_BIAS+4*t+2*d+1}, 0xffff0000, v{raw}')
    stamp(a,cfg,22)
    a.e(f'''v_lshlrev_b32 v{T0}, 6, v2
    v_add_u32 v{T0}, v{T0}, v1
    v_add_u32 v{T0}, s79, v{T0}
    v_lshlrev_b32 v{T0}, 5, v{T0}
    s_lshl_b32 s86, s2, 13
    s_add_u32 s86, s86, {WS_T}
    buffer_store_dwordx4 {vr(V_TO,4)}, v{T0}, {srd(S_WS)}, s86 offen {cfg.f("stT")}
    buffer_store_dwordx4 {vr(V_TO+4,4)}, v{T0}, {srd(S_WS)}, s86 offen offset:16 {cfg.f("stT")}''')
    a.e(f'''s_lshl_b32 s86, s50, 3
    s_lshl_b32 s87, s{S_WV}, 1
    s_add_u32 s86, s86, s87
    s_lshr_b32 s87, s86, 4
    s_lshl_b32 s87, s87, 11
    s_lshr_b32 s88, s51, 4
    s_lshl_b32 s88, s88, 10
    s_add_u32 s87, s87, s88
    s_lshr_b32 s88, s86, 2
    s_and_b32 s88, s88, 3
    s_lshl_b32 s88, s88, 8
    s_add_u32 s87, s87, s88
    s_and_b32 s88, s51, 15
    s_lshl_b32 s88, s88, 4
    s_add_u32 s87, s87, s88
    s_and_b32 s88, s86, 3
    s_lshl_b32 s88, s88, 2
    s_add_u32 s87, s87, s88
    s_add_u32 s87, s87, {WS_G}
    v_mov_b32 v{T0+1}, 0
    s_mov_b32 exec_lo, 0
    s_mov_b32 exec_hi, 0x80000000
    buffer_store_dwordx2 {vr(V_GOUT,2)}, v{T0+1}, {srd(S_WS)}, s87 offen {cfg.f("stG")}
    s_mov_b64 exec, -1''')
    a.e(f'''v_lshlrev_b32 v{T0+2}, 14, v{V_KAP}
    v_lshl_add_u32 v{T0+2}, v{V_C}, 4, v{T0+2}
    s_lshl_b32 s86, s50, 4
    v_add_u32 v{T0+3}, s86, v{V_KAP}
    v_cmp_eq_u32 vcc, 0, v{T0+3}
    v_mov_b32 v{T0+3}, 0x40000000
    v_cndmask_b32 v{T0+3}, v{T0+2}, v{T0+3}, vcc
    s_lshl_b32 s90, s55, 11
    s_lshl_b32 s87, s56, 10
    s_add_u32 s90, s90, s87
    s_lshl_b32 s87, s57, 8
    s_add_u32 s90, s90, s87
    s_lshl_b32 s86, s50, 18
    s_add_u32 s86, s86, s90
    s_add_u32 s86, s86, {WS_WT}
    s_add_u32 s87, s86, 8192
    buffer_store_dwordx4 {vr(V_P0,4)}, v{T0+3}, {srd(S_WS)}, s86 offen {cfg.f("stW")}
    buffer_store_dwordx4 {vr(V_P1,4)}, v{T0+2}, {srd(S_WS)}, s87 offen {cfg.f("stW")}''')
    a.e('s_cmp_lg_u32 s61, 0')
    a.e('s_cbranch_scc1 L_k1_nospec3')
    a.cond_begin()
    a.e(f'''v_lshlrev_b32 v{T0+4}, 4, v1
    v_lshl_add_u32 v{T0+4}, v2, 2, v{T0+4}
    s_add_u32 s87, s90, {WS_QT}
    s_add_u32 s86, s90, {WS_WT}
    buffer_store_dword v{V_PQ}, v{T0+4}, {srd(S_WS)}, s86 offen {cfg.f("stW")}
    buffer_store_dword v{V_PQ+1}, v{T0+4}, {srd(S_WS)}, s87 offen {cfg.f("stW")}''')
    a.cond_end()
    a.e('L_k1_nospec3:')
    a.e(f'''v_add_u32 v{T0+5}, s66, v{V_L16}
    s_mul_i32 s86, s65, {RT_STRIDE}
    s_lshl_b32 s87, s64, 12
    s_add_u32 s86, s86, s87
    s_lshl_b32 s87, s63, 11
    s_add_u32 s86, s86, s87
    s_add_u32 s86, s86, {WS_W2}
    buffer_store_dwordx4 {vr(V_Q0,4)}, v{T0+5}, {srd(S_WS)}, s86 offen {cfg.f("stW2")}
    buffer_store_dwordx4 {vr(V_Q1,4)}, v{T0+5}, {srd(S_WS)}, s86 offen offset:1024 {cfg.f("stW2")}''')
    stamp(a,cfg,23)
    g1_chunk_loads(2); g1_chunk_loads(3)
    stamp(a,cfg,2)
    V_VA=140; V_VA6=141; V_VAH=142; V_VA6H=143
    a.e(f'''v_mul_u32_u24 v{V_VA}, 1920, v2
    v_lshrrev_b32 v{T0}, 2, v1
    v_mul_u32_u24 v{T0}, 224, v{T0}
    v_and_b32 v{T0+1}, 3, v0
    v_lshlrev_b32 v{T0+1}, 3, v{T0+1}
    v_add3_u32 v{V_VA}, v{V_VA}, v{T0}, v{T0+1}
    v_add_u32 v{V_VA}, {W1_BASE}, v{V_VA}
    s_cmp_eq_u32 s71, 0
    s_cselect_b32 s86, 192, 0
    v_add_u32 v{V_VA6}, s86, v{V_VA}
    s_lshl_b32 s86, s71, 5
    v_add_u32 v{V_VA}, s86, v{V_VA}
    v_add_u32 v{V_VAH}, {8*7680}, v{V_VA}
    v_add_u32 v{V_VA6H}, {8*7680}, v{V_VA6}''')
    V_ACC=144
    V_WF=200
    def wf_reads(st,t):
        lo=st<8
        va=(V_VA if lo else V_VAH) if t<6 else (V_VA6 if lo else V_VA6H)
        off=(st%8)*7680+(32*t if t<6 else 0)
        for hh in range(2):
            a.e(f'ds_read_b64_tr_b16 {vr(V_WF+4*t+2*hh,2)}, v{va} offset:{off+960*hh}')
    a.wait_vm(tok_c[0]); a.e('s_barrier')
    stamp(a,cfg,3)
    for t in range(7): wf_reads(0,t)
    for st in range(16):
        last=(st==15)
        for t in range(7):
            n_out = (14 if not last else 2*(7-t))
            a.e(f's_waitcnt lgkmcnt({n_out-2})')
            for nb in range(2):
                acc=vr(V_ACC+28*nb+4*t,4)
                c=acc if st>0 else vr(V_BIAS+4*t,4)
                a.e(f'v_mfma_f32_16x16x32_bf16 {acc}, {vr(V_WF+4*t,4)}, {ar(A_X+8*st+4*nb,4)}, {c}')
            if not last:
                if t==0 and (st+1)%4==0:
                    a.wait_vm(tok_c[(st+1)//4]); a.e('s_barrier')
                    stamp(a,cfg,14+(st+1)//4-1)
                    if st==7:
                        a.e('s_and_b32 s92, s49, 3'); a.e('s_lshl_b32 s92, s92, 6')
                        signal(a,'s92',V_SIG)

                wf_reads(st+1,t)
    a.lg=0
    stamp(a,cfg,4)
    V_E=V_WF
    V_O=112
    a.e(f's_mov_b32 s84, {fl(LOG2E)}')
    a.e(f's_mov_b32 s85, {fl(LOG2E)}')
    a.e(f's_mov_b32 s86, {fl(43.0)}')
    def mish_pair(h,o,t):
        a.e(f'v_pk_mul_f32 {vr(t,2)}, {vr(h,2)}, s[84:85]')
        a.e(f'v_min_f32 v{t}, s86, v{t}')
        a.e(f'v_min_f32 v{t+1}, s86, v{t+1}')
        a.e(f'v_exp_f32 v{t}, v{t}')
        a.e(f'v_exp_f32 v{t+1}, v{t+1}')
        return
    pairs=[(V_ACC+28*nb+4*t+2*d, V_O+14*nb+2*t+d) for nb in range(2) for t in range(7) for d in range(2)]
    G=4
    for g0 in range(0,len(pairs),G):
        grp=pairs[g0:g0+G]
        T=lambda i: V_E+6*i
        for i,(h,o) in enumerate(grp): a.e(f'v_pk_mul_f32 {vr(T(i),2)}, {vr(h,2)}, s[84:85]')
        for i,(h,o) in enumerate(grp):
            a.e(f'v_min_f32 v{T(i)}, s86, v{T(i)}'); a.e(f'v_min_f32 v{T(i)+1}, s86, v{T(i)+1}')
        for i,(h,o) in enumerate(grp):
            a.e(f'v_exp_f32 v{T(i)}, v{T(i)}'); a.e(f'v_exp_f32 v{T(i)+1}, v{T(i)+1}')
        for i,(h,o) in enumerate(grp): a.e(f'v_pk_add_f32 {vr(T(i)+2,2)}, {vr(T(i),2)}, 2.0 op_sel_hi:[1,0]')
        for i,(h,o) in enumerate(grp): a.e(f'v_pk_mul_f32 {vr(T(i),2)}, {vr(T(i),2)}, {vr(T(i)+2,2)}')
        for i,(h,o) in enumerate(grp): a.e(f'v_pk_add_f32 {vr(T(i)+2,2)}, {vr(T(i),2)}, 2.0 op_sel_hi:[1,0]')
        for i,(h,o) in enumerate(grp):
            a.e(f'v_rcp_f32 v{T(i)+2}, v{T(i)+2}'); a.e(f'v_rcp_f32 v{T(i)+3}, v{T(i)+3}')
        for i,(h,o) in enumerate(grp): a.e(f'v_pk_mul_f32 {vr(T(i),2)}, {vr(T(i),2)}, {vr(T(i)+2,2)}')
        for i,(h,o) in enumerate(grp): a.e(f'v_pk_mul_f32 {vr(T(i),2)}, {vr(T(i),2)}, {vr(h,2)}')
        for i,(h,o) in enumerate(grp): a.e(f'v_cvt_pk_bf16_f32 v{o}, v{T(i)}, v{T(i)+1}')
    ctx.update(V_O=V_O,T0=T0,V_L16=V_L16)
    stamp(a,cfg,5)

def act_stores(a,cfg,ctx):
    sc=cfg.sc; V_O=ctx['V_O']; V_L16=ctx['V_L16']; T0=5
    a.e(f'''s_mul_i32 s86, s70, 7
    s_add_u32 s86, s86, s71
    s_lshr_b32 s86, s86, 1
    s_lshl_b32 s87, s86, 12
    s_mul_i32 s88, s69, {2*RT_STRIDE}
    s_lshl_b32 s89, s{S_WV}, 10
    s_add_u32 s88, s88, s89
    s_add_u32 s88, s88, {WS_ACT}
    s_add_u32 s88, s88, s87
    s_mov_b32 s89, {3*4096}
    s_cmp_eq_u32 s71, 0
    s_cselect_b32 s89, s89, {(-4096+512)&0xffffffff}
    s_add_u32 s89, s89, s88
    v_lshlrev_b32 v{T0}, 3, v0''')
    for nb in range(2):
        for pp in range(3):
            a.e(f'buffer_store_dwordx4 {vr(V_O+14*nb+4*pp,4)}, v{V_L16}, {srd(S_WS)}, s88 offen {cfg.f("stA")}')
            a.e('s_add_u32 s88, s88, 4096')
        a.e(f'buffer_store_dwordx2 {vr(V_O+14*nb+12,2)}, v{T0}, {srd(S_WS)}, s89 offen {cfg.f("stA")}')
        if nb==0:
            a.e(f's_add_u32 s88, s88, {RT_STRIDE-3*4096}')
            a.e(f's_add_u32 s89, s89, {RT_STRIDE}')

    ctx['tok_act']=a.vmtok()

K2_LDS=8192+16384
TB_BASE=0; XB_BASE=16384; ZR_BASE=24576
def p2_tables(a,V_F64R,V_F64I,V_F32R,V_F32I,V_T1C,V_T1S,V_T3C,V_T3S,T0):
    a.e(f'''s_lshl_b32 s52, s{S_WV}, 4
    v_add_u32 v{T0}, s52, v1
    v_cvt_f32_u32 v{T0}, v{T0}
    v_lshlrev_b32 v{T0+2}, 2, v2
    v_cvt_f32_u32 v{T0+2}, v{T0+2}
    v_mul_f32 v{T0+1}, {fl(1/64)}, v{T0}
    v_mul_f32 v{T0+3}, v{T0+2}, v{T0+1}''')
    def fset(dr,di,sl,base,consts):
        for u,n in enumerate(consts):
            if n==0: src=f'v{base}'
            else:
                a.e(f'v_fmamk_f32 v{T0+4}, v{sl}, {fl(n)}, v{base}'); src=f'v{T0+4}'
            sincos(a,src,f'v{T0+5}',f'v{T0+6}')
            a.e(f'v_cvt_pk_bf16_f32 v{dr+u}, v{T0+5}, v{T0+6}')
            a.e(f'v_cvt_pk_bf16_f32 v{di+u}, -v{T0+6}, v{T0+5}')
    for ks in range(4): fset(V_F64R+4*ks,V_F64I+4*ks,T0+1,T0+3,[16*ks+u for u in range(4)])
    a.e(f'''v_mul_f32 v{T0+1}, {fl(1/2048)}, v{T0}
    v_mul_f32 v{T0+3}, v{T0+2}, v{T0+1}''')
    for mb in range(2):
        for r in range(4):
            n=16*mb+r
            if n==0: src=f'v{T0+3}'
            else:
                a.e(f'v_fmamk_f32 v{T0+4}, v{T0+1}, {fl(n)}, v{T0+3}'); src=f'v{T0+4}'
            sincos(a,src,f'v{V_T1C+4*mb+r}',f'v{V_T1S+4*mb+r}',negs=True)
    a.e(f'v_cvt_f32_u32 v{T0+7}, v1')
    for eh in range(2):
        a.e(f'''v_add_f32 v{T0+1}, {fl(16*eh)}, v{T0+7}
        v_mul_f32 v{T0+1}, {fl(1/32)}, v{T0+1}
        v_mul_f32 v{T0+3}, v{T0+2}, v{T0+1}''')
        for mb in range(2): fset(V_F32R+8*eh+4*mb,V_F32I+8*eh+4*mb,T0+1,T0+3,[16*mb+u for u in range(4)])
    a.e(f'''v_cvt_f32_u32 v{T0}, s52
    v_add_f32 v{T0+2}, v{T0}, v{T0+2}''')
    for nb in range(2):
        a.e(f'''v_add_f32 v{T0+1}, {fl(16*nb)}, v{T0+7}
        v_mul_f32 v{T0+1}, {fl(1/2048)}, v{T0+1}
        v_mul_f32 v{T0+3}, v{T0+2}, v{T0+1}''')
        for r in range(4):
            if r==0: src=f'v{T0+3}'
            else:
                a.e(f'v_fmamk_f32 v{T0+4}, v{T0+1}, {fl(r)}, v{T0+3}'); src=f'v{T0+4}'
            sincos(a,src,f'v{V_T3C+4*nb+r}',f'v{V_T3S+4*nb+r}',negs=True)

def cmul_pack(a,c,s,tc,ts,dst,TT,n=4,negim=False):
    for h in range(n//2):
        cc=c+2*h; ss=s+2*h; tcc=tc+2*h; tss=ts+2*h
        a.e(f'v_pk_mul_f32 {vr(TT,2)}, {vr(ss,2)}, {vr(tss,2)}')
        a.e(f'v_pk_mul_f32 {vr(TT+2,2)}, {vr(ss,2)}, {vr(tcc,2)}')
        a.e(f'v_pk_fma_f32 {vr(TT,2)}, {vr(cc,2)}, {vr(tcc,2)}, {vr(TT,2)} neg_lo:[0,0,1] neg_hi:[0,0,1]')
        a.e(f'v_pk_fma_f32 {vr(TT+2,2)}, {vr(cc,2)}, {vr(tss,2)}, {vr(TT+2,2)}')
        ng='-' if negim else ''
        a.e(f'v_cvt_pk_bf16_f32 v{dst+2*h}, v{TT}, {ng}v{TT+2}')
        a.e(f'v_cvt_pk_bf16_f32 v{dst+2*h+1}, v{TT+1}, {ng}v{TT+3}')

def p2_loads(a,cfg,ctx):
    sc=cfg.sc
    a.e('''s_and_b32 s48, s2, 7
    s_lshr_b32 s49, s2, 3
    s_lshl_b32 s50, s48, 5
    s_add_u32 s50, s50, s49''')
    V_U=8
    V_W=40
    V_GT=48
    V_Q=56
    T0=64
    a.e(f'''v_lshrrev_b32 v{T0}, 5, v0
    v_lshlrev_b32 v{T0}, 18, v{T0}
    v_bfe_u32 v{T0+1}, v0, 1, 4
    v_lshl_add_u32 v{T0}, v{T0+1}, 13, v{T0}
    v_and_b32 v{T0+1}, 1, v0
    v_lshl_add_u32 v{T0}, v{T0+1}, 4, v{T0}
    s_lshl_b32 s51, s50, 5
    s_lshl_b32 s53, s{S_WV}, 19
    s_add_u32 s51, s51, s53
    s_add_u32 s51, s51, {WS_T}
    s_lshl_b32 s53, s{S_WV}, 11
    s_add_u32 s53, s53, {TB_BASE}
    s_mov_b32 m0, s53
    s_add_u32 s52, s51, 131072
    buffer_load_dwordx4 v{T0}, {srd(S_WS)}, s51 offen {cfg.f("ldT")} lds
    s_add_u32 s53, s53, 1024
    s_mov_b32 m0, s53
    s_nop 0
    buffer_load_dwordx4 v{T0}, {srd(S_WS)}, s52 offen {cfg.f("ldT")} lds''')
    tok_u=a.vmtok()
    V_L16=3
    a.e(f'''v_lshlrev_b32 v{V_L16}, 4, v0
    s_lshl_b32 s54, s50, 13
    s_lshl_b32 s55, s{S_WV}, 11
    s_add_u32 s54, s54, s55
    s_add_u32 s56, s54, {WS_WT}
    s_add_u32 s57, s55, {WS_G}
    s_add_u32 s58, s55, {WS_QT}''')
    for eh in range(2): a.e(f'buffer_load_dwordx4 {vr(V_W+4*eh,4)}, v{V_L16}, {srd(S_WS)}, s56 offen offset:{1024*eh} {cfg.f("ldW")}')
    for nb in range(2): a.e(f'buffer_load_dwordx4 {vr(V_GT+4*nb,4)}, v{V_L16}, {srd(S_WS)}, s57 offen offset:{1024*nb} {cfg.f("ldW")}')
    a.e(f'''s_cmp_eq_u32 s50, 0
    s_cselect_b32 s59, 0, 0x40000000
    v_add_u32 v{T0+2}, s59, v{V_L16}''')
    for eh in range(2): a.e(f'buffer_load_dwordx4 {vr(V_Q+4*eh,4)}, v{T0+2}, {srd(S_WS)}, s58 offen offset:{1024*eh} {cfg.f("ldW")}')
    tok_w=a.vmtok()
    ctx.update(tok_u=tok_u,tok_w=tok_w)

def p2_tab(a,cfg,ctx):
    T0=64
    V_F64R=80; V_F64I=96; V_F32R=112; V_F32I=128; V_T1C=144; V_T1S=152; V_T3C=160; V_T3S=168
    p2_tables(a,V_F64R,V_F64I,V_F32R,V_F32I,V_T1C,V_T1S,V_T3C,V_T3S,T0)

def p2_compute(a,cfg,ctx):
    sc=cfg.sc
    V_U=8; V_W=40; V_GT=48; V_Q=56; T0=64; V_L16=3
    V_F64R=80; V_F64I=96; V_F32R=112; V_F32I=128; V_T1C=144; V_T1S=152; V_T3C=160; V_T3S=168
    tok_u=ctx['tok_u']; tok_w=ctx['tok_w']
    V_DR=176; V_DI=184
    V_B=192
    TT=T0
    a.e(f'''v_lshrrev_b32 v{T0+4}, 1, v2
    v_lshlrev_b32 v{T0+4}, 5, v{T0+4}
    v_lshl_add_u32 v{T0+4}, v1, 1, v{T0+4}
    v_and_b32 v{T0+5}, 1, v2
    v_add_u32 v{T0+4}, v{T0+4}, v{T0+5}
    v_lshlrev_b32 v{T0+4}, 4, v{T0+4}''')
    for ks in range(4):
        for mb in range(2):
            a.e(f'ds_read_b128 {vr(V_U+16*mb+4*ks,4)}, v{T0+4} offset:{TB_BASE+2048*ks+1024*mb}')
    for ks in range(4):
        a.e(f's_waitcnt lgkmcnt({6-2*ks})')
        for mb in range(2):
            A=vr(V_U+16*mb+4*ks,4)
            for (D,Fm) in((V_DR,V_F64R),(V_DI,V_F64I)):
                d=vr(D+4*mb,4)
                a.e(f'v_mfma_f32_16x16x32_bf16 {d}, {A}, {vr(Fm+4*ks,4)}, {d if ks else 0}')
    for mb in range(2): cmul_pack(a,V_DR+4*mb,V_DI+4*mb,V_T1C+4*mb,V_T1S+4*mb,V_B+4*mb,TT)
    for mb in range(2):
        for eh in range(2):
            for (D,Fm) in((V_DR,V_F32R),(V_DI,V_F32I)):
                d=vr(D+4*eh,4)
                a.e(f'v_mfma_f32_16x16x32_bf16 {d}, {vr(Fm+8*eh+4*mb,4)}, {vr(V_B+4*mb,4)}, {d if mb else 0}')
    V_WR=V_U; V_WI=V_U+8
    a.wait_vm(tok_w)
    for e in range(8):
        a.e(f'v_lshlrev_b32 v{V_WR+e}, 16, v{V_W+e}')
        a.e(f'v_and_b32 v{V_WI+e}, 0xffff0000, v{V_W+e}')
    a.e('s_cmp_lg_u32 s50, 0')
    a.e('s_cbranch_scc0 L_p2_special')
    for eh in range(2): cmul_pack(a,V_DR+4*eh,V_DI+4*eh,V_WR+4*eh,V_WI+4*eh,V_B+4*eh,TT,negim=True)
    a.e('L_p2_join:')
    for ks in range(2):
        for nb in range(2):
            for (D,Fm) in((V_DR,V_F32R),(V_DI,V_F32I)):
                d=vr(D+4*nb,4)
                a.e(f'v_mfma_f32_16x16x32_bf16 {d}, {vr(V_B+4*ks,4)}, {vr(Fm+8*nb+4*ks,4)}, {d if ks else 0}')
    for nb in range(2): cmul_pack(a,V_DR+4*nb,V_DI+4*nb,V_T3C+4*nb,V_T3S+4*nb,V_B+4*nb,TT)
    a.e(f'''s_lshl_b32 s59, s{S_WV}, 11
    v_add_u32 v{T0+4}, s59, v{V_L16}''')
    for nb in range(2): a.e(f'ds_write_b128 v{T0+4}, {vr(V_B+4*nb,4)} offset:{XB_BASE+1024*nb}')
    a.e('s_waitcnt lgkmcnt(0)'); a.e('s_barrier')
    V_X=V_U
    for ks in range(4):
        for nb in range(2):
            a.e(f'ds_read_b128 {vr(V_X+8*ks+4*nb,4)}, v{V_L16} offset:{XB_BASE+2048*ks+1024*nb}')
    for ks in range(4):
        a.e(f's_waitcnt lgkmcnt({6-2*ks})')
        for nb in range(2):
            for (D,Fm) in((V_DR,V_F64R),(V_DI,V_F64I)):
                d=vr(D+4*nb,4)
                a.e(f'v_mfma_f32_16x16x32_bf16 {d}, {vr(Fm+4*ks,4)}, {vr(V_X+8*ks+4*nb,4)}, {d if ks else 0}')
    for e in range(8): a.e(f'v_mul_f32 v{V_GT+e}, {fl(2.0**-19)}, v{V_GT+e}')
    for nb in range(2):
        for h in range(2):
            a.e(f'v_pk_mul_f32 {vr(V_DR+4*nb+2*h,2)}, {vr(V_DR+4*nb+2*h,2)}, {vr(V_GT+4*nb+2*h,2)}')
            a.e(f'v_pk_mul_f32 {vr(V_DI+4*nb+2*h,2)}, {vr(V_DI+4*nb+2*h,2)}, {vr(V_GT+4*nb+2*h,2)}')
        for r in range(4): a.e(f'v_cvt_pk_bf16_f32 v{V_B+4*nb+r}, v{V_DR+4*nb+r}, v{V_DI+4*nb+r}')
    a.e(f's_add_u32 s56, s54, {WS_Y}')
    for nb in range(2): a.e(f'buffer_store_dwordx4 {vr(V_B+4*nb,4)}, v{V_L16}, {srd(S_WS)}, s56 offen offset:{1024*nb} {cfg.f("stY")}')
    ctx['tok_y']=a.vmtok()
    return

def p2_special(a,cfg,ctx):
    V_U=8; V_W=40; V_GT=48; V_Q=56; T0=64; V_L16=3; V_DR=176; V_DI=184; V_B=192; V_WR=V_U; V_WI=V_U+8
    a.e('L_p2_special:')
    a.cond_begin()
    V_J=T0+8; V_ZA=V_U+16
    a.e(f'''s_lshl_b32 s59, s{S_WV}, 4
    v_lshlrev_b32 v{V_J}, 8, v2
    v_add3_u32 v{V_J}, v{V_J}, v1, s59''')
    for eh in range(2):
        for r in range(4):
            n=1024*eh+64*r
            a.e(f'v_add_u32 v{T0}, {n}, v{V_J}')
            a.e(f'v_lshlrev_b32 v{T0}, 3, v{T0}')
            a.e(f'v_mov_b32 v{T0+2}, v{V_DR+4*eh+r}')
            a.e(f'v_mov_b32 v{T0+3}, v{V_DI+4*eh+r}')
            a.e(f'ds_write_b64 v{T0}, {vr(T0+2,2)} offset:{ZR_BASE}')
    a.e('s_waitcnt lgkmcnt(0)'); a.e('s_barrier')
    for eh in range(2):
        for r in range(4):
            n=1024*eh+64*r
            a.e(f'v_sub_u32 v{T0}, {2048-n}, v{V_J}')
            a.e(f'v_and_b32 v{T0}, 2047, v{T0}')
            a.e(f'v_lshlrev_b32 v{T0}, 3, v{T0}')
            a.e(f'ds_read_b64 {vr(V_ZA+2*(4*eh+r),2)}, v{T0} offset:{ZR_BASE}')
    a.e('s_waitcnt lgkmcnt(0)')
    for e in range(8):
        zr=V_DR+e; zi=V_DI+e; pr=V_WR+e; pi=V_WI+e; ar_=V_ZA+2*e; ai=ar_+1
        qr=T0; qi=T0+1; yr=T0+2; yi=T0+3
        a.e(f'''v_lshlrev_b32 v{qr}, 16, v{V_Q+e}
        v_and_b32 v{qi}, 0xffff0000, v{V_Q+e}
        v_mul_f32 v{yr}, v{zr}, v{pr}
        v_fma_f32 v{yr}, -v{zi}, v{pi}, v{yr}
        v_fma_f32 v{yr}, v{ar_}, v{qr}, v{yr}
        v_fma_f32 v{yr}, v{ai}, v{qi}, v{yr}
        v_mul_f32 v{yi}, v{zr}, v{pi}
        v_fma_f32 v{yi}, v{zi}, v{pr}, v{yi}
        v_fma_f32 v{yi}, v{ar_}, v{qi}, v{yi}
        v_fma_f32 v{yi}, -v{ai}, v{qr}, v{yi}
        v_cvt_pk_bf16_f32 v{V_B+e}, v{yr}, -v{yi}''')
    a.cond_end()
    a.e('s_branch L_p2_join')


K3_LDS=4*3*4*1024
DEPTH=4
A_R=0
def g2_setup(a,cfg,ctx):
    a.e(f"""s_and_b32 s60, s2, 7
    s_lshr_b32 s61, s2, 3
    s_lshl_b32 s62, s60, 2
    s_lshr_b32 s63, s61, 3
    s_add_u32 s62, s62, s63
    s_and_b32 s63, s61, 7
    s_mul_i32 s64, s62, {RT_STRIDE}
    s_mul_i32 s65, s{S_WV}, {14*4096}
    s_add_u32 s64, s64, s65
    s_add_u32 s64, s64, {WS_ACT}
    s_mul_i32 s66, s63, {RT_STRIDE}
    s_add_u32 s66, s66, s65
    s_add_u32 s66, s66, {WS_W2}
    s_lshr_b32 s67, s62, 1
    s_and_b32 s68, s62, 1
    s_lshr_b32 s69, s67, 2
    s_lshl_b32 s69, s69, 11
    s_lshl_b32 s70, s68, 10
    s_add_u32 s69, s69, s70
    s_and_b32 s70, s67, 3
    s_lshl_b32 s70, s70, 8
    s_add_u32 s69, s69, s70""")
    ctx['toks']={}

def g2_wloads(a,cfg,t):
    b=A_R+32*(t%DEPTH)
    for c in range(4):
        a.e(f'buffer_load_dwordx4 {ar(b+16+4*c,4)}, v3, {srd(S_WS)}, s66 offen offset:{1024*c} {cfg.f("ldW2")}')
    a.e('s_add_u32 s66, s66, 4096')

def g2_aloads(a,cfg,ctx,t):
    b=A_R+32*(t%DEPTH); sc=cfg.sc
    if t in(3,10):
        for q in range(4):
            a.e(f'buffer_load_dwordx2 {ar(b+4*q,2)}, v4, {srd(S_WS)}, s64 offen offset:{1024*q} {cfg.f("ldA")}')
            a.e(f'buffer_load_dwordx2 {ar(b+4*q+2,2)}, v4, {srd(S_WS)}, s64 offen offset:{1024*q+512} {cfg.f("ldA")}')
    else:
        for q in range(4):
            a.e(f'buffer_load_dwordx4 {ar(b+4*q,4)}, v3, {srd(S_WS)}, s64 offen offset:{1024*q} {cfg.f("ldA")}')
    a.e('s_add_u32 s64, s64, 4096')
    ctx['toks'][t]=a.vmtok()

V_GF=80; GT0=144; V_ACC2=160; V_Y=16; V_G2=8
def g_tables(a,cfg,ctx,items=None,init=True):
    T0=GT0
    if init:
        a.e(f"""s_lshl_b32 s71, s63, 6
        v_lshlrev_b32 v{T0}, 2, v1
        v_add_u32 v{T0}, s71, v{T0}
        v_cvt_f32_u32 v{T0}, v{T0}
        s_lshl_b32 s71, s{S_WV}, 6
        v_lshlrev_b32 v{T0+1}, 2, v2
        v_add_u32 v{T0+1}, s71, v{T0+1}
        v_cvt_f32_u32 v{T0+1}, v{T0+1}""")
        for c in range(4):
            a.e(f'v_add_f32 v{T0+2+c}, {fl(c)}, v{T0}' if c else f'v_mov_b32 v{T0+2}, v{T0}')
            a.e(f'v_mul_f32 v{T0+2+c}, {fl(1/512)}, v{T0+2+c}')
            a.e(f'v_mul_f32 v{T0+6+c}, v{T0+1}, v{T0+2+c}')
    for n_,(psi,c,u) in enumerate(items):
        n=16*psi+u
        tt=T0+10+3*(n_%2)
        if n==0: src=f'v{T0+6+c}'
        else:
            a.e(f'v_fmamk_f32 v{tt}, v{T0+2+c}, {fl(n)}, v{T0+6+c}'); src=f'v{tt}'
        sincos(a,src,f'v{tt+1}',f'v{tt+2}')
        a.e(f'v_cvt_pk_bf16_f32 v{V_GF+16*psi+4*c+u}, v{tt+1}, v{tt+2}')

def g_fix0(a):
    T0=GT0
    a.e(f"""s_cmp_eq_u32 s{S_WV}, 0
    s_cselect_b32 s72, 0xffff, 0
    s_mov_b32 s73, 0""")
    for c in range(4):
        a.e(f'v_mov_b32 v{T0+10}, {hex(0xBF003F00 if c%2==0 else 0x3F003F00)}')
        a.e(f'v_cndmask_b32 v{V_GF+4*c}, v{V_GF+4*c}, v{T0+10}, s[72:73]')

def g2_main(a,cfg,ctx):
    sc=cfg.sc; toks=ctx['toks']; V_ACC=V_ACC2; V_G=V_G2; V_L16=3
    a.e(f"""v_lshlrev_b32 v5, 4, v1
    s_add_u32 s70, s69, {WS_G}
    buffer_load_dwordx4 {vr(V_G,4)}, v5, {srd(S_WS)}, s70 offen {cfg.f("ldW")}
    v_lshlrev_b32 v6, 15, v2
    v_add_u32 v6, v6, v5
    s_lshl_b32 s74, s{S_WV}, 19
    s_add_u32 s74, s74, s69
    s_add_u32 s74, s74, {WS_Y}""")
    def yloads(psi):
        for u in range(4):
            a.e(f's_add_u32 s75, s74, {(16*psi+u)*8192}')
            a.e(f'buffer_load_dwordx4 {vr(V_Y+16*psi+4*u,4)}, v6, {srd(S_WS)}, s75 offen {cfg.f("ldY")}')
    for t in range(14):
        a.wait_vm(toks[t])
        b=A_R+32*(t%DEPTH)
        for c in range(4):
            for q in range(4):
                d=vr(V_ACC+16*q+4*c,4)
                a.e(f'v_mfma_f32_16x16x32_bf16 {d}, {ar(b+16+4*c,4)}, {ar(b+4*q,4)}, {d if t else 0}')
        if t+DEPTH<14:
            g2_wloads(a,cfg,t+DEPTH); g2_aloads(a,cfg,ctx,t+DEPTH)
        if t==5:
            poll_addr(a,V_PA,64,4)
            tok_s3=poll_issue(a,V_PD,V_PA,'0',4)
        if t==9: poll_check(a,tok_s3,V_PD,V_PA,'0',64,4)
        if 10<=t<14: yloads(t-10); toks['y%d'%(t-10)]=a.vmtok()
    stamp(a,cfg,11)
    for q in range(4): a.e(f'v_sub_f32 v{V_G+q}, 1.0, v{V_G+q}')
    for q in range(4):
        for e in range(16): a.e(f'v_mul_f32 v{V_ACC+16*q+e}, v{V_G+q}, v{V_ACC+16*q+e}')
    for psi in range(4):
        a.wait_vm(toks['y%d'%psi])
        y=V_Y+16*psi
        for (i,j) in[(0,1),(0,2),(0,3),(1,2),(1,3),(2,3)]:
            a.e(f'v_swap_b32 v{y+4*i+j}, v{y+4*j+i}')
        for c in range(4):
            for q in range(4):
                d=vr(V_ACC+16*q+4*c,4)
                a.e(f'v_mfma_f32_16x16x32_bf16 {d}, {vr(V_GF+16*psi+4*c,4)}, {vr(y+4*q,4)}, {d}')
    stamp(a,cfg,12)
    a.e(f"""s_mul_i32 s76, s{S_WV}, {3*4096}
    v_add_u32 v7, s76, v{V_L16}""")
    for w in range(4):
        a.e(f's_cmp_lg_u32 s{S_WV}, {w}')
        a.e(f's_cbranch_scc1 L_k3_w{w}')
        a.cond_begin()
        slot=0
        for q in range(4):
            if q==w: continue
            for c in range(4):
                a.e(f'ds_write_b128 v7, {vr(V_ACC+16*q+4*c,4)} offset:{slot*4096+c*1024}')
            slot+=1
        if w!=0:
            for e in range(16): a.e(f'v_mov_b32 v{V_ACC+e}, v{V_ACC+16*w+e}')
        a.cond_end()
        a.e(f'L_k3_w{w}:')
    a.e('s_waitcnt lgkmcnt(0)'); a.e('s_barrier')
    V_RD=V_Y
    for k in range(1,4):
        a.e(f"""s_add_u32 s76, s{S_WV}, {k}
        s_and_b32 s76, s76, 3
        s_mul_i32 s77, s76, {3*4096}
        s_cmp_lt_u32 s{S_WV}, s76
        s_cselect_b32 s78, 0, 1
        s_sub_u32 s78, s{S_WV}, s78
        s_lshl_b32 s78, s78, 12
        s_add_u32 s77, s77, s78
        v_add_u32 v7, s77, v{V_L16}""")
        for c in range(4): a.e(f'ds_read_b128 {vr(V_RD+16*(k-1)+4*c,4)}, v7 offset:{c*1024}')
    a.e('s_waitcnt lgkmcnt(0)')
    for k in range(3):
        for h in range(8): a.e(f'v_pk_add_f32 {vr(V_ACC+2*h,2)}, {vr(V_ACC+2*h,2)}, {vr(V_RD+16*k+2*h,2)}')
    V_O=V_GF
    for r in range(4):
        a.e(f'v_cvt_pk_bf16_f32 v{V_O+2*r}, v{V_ACC+r}, v{V_ACC+4+r}')
        a.e(f'v_cvt_pk_bf16_f32 v{V_O+2*r+1}, v{V_ACC+8+r}, v{V_ACC+12+r}')
    a.e(f"""v_lshlrev_b32 v5, 10, v1
    v_lshl_add_u32 v5, v2, 5, v5
    s_lshl_b32 s76, s67, 17
    s_lshl_b32 s77, s{S_WV}, 15
    s_add_u32 s76, s76, s77
    s_lshl_b32 s77, s68, 14
    s_add_u32 s76, s76, s77
    s_lshl_b32 s77, s63, 7
    s_add_u32 s76, s76, s77
    buffer_store_dwordx4 {vr(V_O,4)}, v5, {srd(S_OUT)}, s76 offen
    buffer_store_dwordx4 {vr(V_O+4,4)}, v5, {srd(S_OUT)}, s76 offen offset:16""")

V_SIG=252; V_PA=251; V_PD=250
def persist(a,cfg,end):
    ctx={}
    stamp(a,cfg,26)
    if cfg.stamps:
        a.e('s_memtime s[96:97]'); a.e('s_waitcnt lgkmcnt(0)'); a.e('v_writelane_b32 v255, s96, 27')
    phase_a(a,cfg,ctx)
    poll_addr(a,V_PA,64,0)
    ctx['tok_s1']=poll_issue(a,V_PD,V_PA,'0',4)
    poll_check(a,ctx['tok_s1'],V_PD,V_PA,'0',64,4)
    stamp(a,cfg,6)
    p2_loads(a,cfg,ctx)
    act_stores(a,cfg,ctx)
    g2_setup(a,cfg,ctx)
    for t in range(DEPTH): g2_wloads(a,cfg,t)
    stamp(a,cfg,24)
    p2_tab(a,cfg,ctx)
    stamp(a,cfg,25)
    a.wait_vm(ctx['tok_act']); a.e('s_barrier')
    a.e("""s_lshr_b32 s90, s60, 1
    s_lshl_b32 s90, s90, 2
    s_lshr_b32 s91, s61, 3
    s_add_u32 s90, s90, s91
    s_and_b32 s91, s90, 3
    s_lshl_b32 s91, s91, 6
    s_lshr_b32 s90, s90, 2
    s_lshl_b32 s90, s90, 2
    s_add_u32 s92, s90, s91
    s_add_u32 s92, s92, 8""")
    signal(a,'s92',V_SIG)
    stamp(a,cfg,7)
    p2_compute(a,cfg,ctx)
    stamp(a,cfg,8)
    a.e(f"""s_and_b32 s91, s67, 3
    s_lshl_b32 s91, s91, 6
    s_lshr_b32 s90, s67, 2
    s_lshl_b32 s90, s90, 2
    s_add_u32 s93, s90, s91
    s_add_u32 s93, s93, 8""")
    poll_addr(a,V_PA,0,0)
    tok_s2=poll_issue(a,V_PD,V_PA,'s93',1)
    g_tables(a,cfg,ctx,[(psi,c,u) for psi in range(4) for c in range(4) for u in range(4)])
    g_fix0(a)
    stamp(a,cfg,9)
    poll_check(a,tok_s2,V_PD,V_PA,'s93',16,1)
    stamp(a,cfg,10)
    a.e('v_lshlrev_b32 v4, 3, v0')
    for t in range(DEPTH): g2_aloads(a,cfg,ctx,t)
    a.wait_vm(ctx['tok_y']); a.e('s_barrier')
    a.e('s_and_b32 s92, s61, 3'); a.e('s_lshl_b32 s92, s92, 6'); a.e('s_add_u32 s92, s92, 4')
    signal(a,'s92',V_SIG)
    g2_main(a,cfg,ctx)
    stamp(a,cfg,13)
    stamps_flush(a,cfg)
    a.e(f's_branch {end}')
    p2_special(a,cfg,ctx)

HEADER='''; Gated mix of a GFNet spectral filter and a dense->mish->dense block (generated by dev/gen.py)
'''
def kernel_text(label,body_fn,which,cfg,nvgpr,accoff):
    a=Asm(); end=f'L_end_{label}'
    prologue(a,which,end)
    body_fn(a,cfg,end)
    a.e(f'{end}:'); a.e('s_endpgm')
    txt=a.text()
    errs=[]
    for nm,pol in (('fall',lambda i,n:False),('taken',lambda i,n:(not i.target.startswith('L_end')) ),):
        errs+=verify_waits(a.out,pol,label+':'+nm)
    for e in sorted(set(errs))[:30]: print('WAITERR',e,file=sys.stderr)
    print(label,dict(a.count()),file=sys.stderr)
    s=f'.globl {label}\n.p2align 8\n.type {label},@function\n{label}:\n{txt}'
    kd=f'''.amdhsa_kernel {label}
  .amdhsa_next_free_vgpr {nvgpr}
  .amdhsa_next_free_sgpr 102
  .amdhsa_accum_offset {accoff}
  .amdhsa_group_segment_fixed_size 0
  .amdhsa_kernarg_size 88
  .amdhsa_user_sgpr_count 2
  .amdhsa_user_sgpr_kernarg_segment_ptr 1
  .amdhsa_system_sgpr_workgroup_id_x 1
.end_amdhsa_kernel
'''
    return s,kd

def build_persist(stamps=False,off=(),dbgst=False):
    cfg=Cfg(); cfg.dbgst=dbgst; cfg.off=set(off); cfg.sc='sc1'; cfg.stamps=stamps; cfg.persist=True
    label=NAME+'_kernel'
    out=HEADER+f'; @launch grid=(256,1,1) block=(256,1,1) lds={K1_LDS}\n'
    out+='.amdgcn_target "amdgcn-amd-amdhsa--gfx950"\n.text\n'
    s,kd=kernel_text(label,persist,[n for (n,_,_) in SRDS],cfg,512,256)
    return out+s+'.section .rodata,"a"\n.p2align 6\n'+kd

if __name__=='__main__':
    mode=sys.argv[1] if len(sys.argv)>1 else 'multi'
    txt=build_persist(stamps=(mode in('stamps','dbgst')),dbgst=(mode=='dbgst'),off=(sys.argv[3].split(',') if len(sys.argv)>3 else ()))
    open(sys.argv[2] if len(sys.argv)>2 else 'out.s','w').write(txt)
```

```python
import re

TRANS = ('v_exp_f32','v_log_f32','v_rcp_f32','v_rsq_f32','v_sqrt_f32','v_sin_f32','v_cos_f32')
REG_RE = re.compile(r'^(-|\|)*\s*(?:abs\()?([vas])(?:(\d+)|\[(\d+):(\d+)\])\)?\|?$')

def regs_of(tok):
    t = tok.strip()
    t = t.replace('|','').replace('-','',1) if t.startswith(('-','|')) else t
    t = t.replace('|','')
    if t == 'vcc': return [('s','vcc')]
    if t in ('vcc_lo','vcc_hi'): return [('s','vcc')]
    if t == 'exec' or t in('exec_lo','exec_hi'): return [('s','exec')]
    if t == 'm0': return [('s','m0')]
    if t == 'scc': return []
    m = re.match(r'^([vas])(\d+)$', t)
    if m: return [(m.group(1), int(m.group(2)))]
    m = re.match(r'^([vas])\[(\d+):(\d+)\]$', t)
    if m: return [(m.group(1), i) for i in range(int(m.group(2)), int(m.group(3))+1)]
    return []

class Ins:
    __slots__=('text','op','cls','dst','src','srcC','isx4store','dpp','label','target','lds','passes','raw','ssrc_const')
    def __init__(s,text):
        s.text=text; s.dst=[]; s.src=[]; s.srcC=[]; s.isx4store=False; s.dpp=False
        s.label=None; s.target=None; s.lds=False; s.passes=0; s.raw=False; s.cls='other'; s.op=''
        t=text.split(';')[0].strip()
        if not t: s.cls='nil'; return
        if t.endswith(':'):
            s.cls='label'; s.label=t[:-1]; return
        if t.startswith('.'):
            s.cls='nil'; return
        parts=t.split(None,1); op=parts[0]; s.op=op
        rest=parts[1] if len(parts)>1 else ''
        ops=[];cur='';d=0
        for ch in rest:
            if ch in '[(': d+=1
            if ch in '])': d-=1
            if ch==',' and d==0: ops.append(cur.strip()); cur=''
            else: cur+=ch
        if cur.strip(): ops.append(cur.strip())
        mods=''
        if ops:
            last=ops[-1].split(None,1)
            if len(last)>1 and not last[0].startswith(('hwreg','vmcnt','lgkmcnt')):
                ops[-1]=last[0]; mods=last[1]
        base=re.sub(r'_(e32|e64|dpp|sdwa)$','',op)
        R=lambda i: regs_of(ops[i]) if i<len(ops) else []
        if op.startswith('v_mfma'):
            s.cls='mfma'; s.dst=R(0); s.src=R(1)+R(2); s.srcC=R(3)
            s.passes=8 if '32x32' in op else 4
        elif op.startswith('v_'):
            s.cls='trans' if base in TRANS else 'valu'
            s.dpp=('row_' in mods or 'quad_perm' in mods or op.endswith('_dpp') or 'wave_' in mods)
            if base in('v_swap_b32','v_permlane32_swap_b32','v_permlane16_swap_b32'):
                s.dst=R(0)+R(1); s.src=R(0)+R(1)
            elif base.startswith('v_cmp'):
                s.dst=R(0); s.src=sum((R(i) for i in range(1,len(ops))),[])
            else:
                s.dst=R(0); s.src=sum((R(i) for i in range(1,len(ops))),[])
                if base in('v_fmac_f32','v_dot2c_f32_bf16','v_fmac_f32','v_pk_fmac_f16') or s.dpp: s.src+=R(0)
                if base=='v_cndmask_b32' and len(ops)==3: s.src+=[('s','vcc')]
                if base=='v_writelane_b32': s.src+=R(0)
        elif op.startswith('ds_'):
            s.cls='ds'
            if op.startswith('ds_read'): s.dst=R(0); s.src=sum((R(i) for i in range(1,len(ops))),[])
            elif op.startswith(('ds_bpermute','ds_permute','ds_swizzle')): s.dst=R(0); s.src=sum((R(i) for i in range(1,len(ops))),[])
            else: s.src=sum((R(i) for i in range(len(ops))),[])
        elif op.startswith(('buffer_','global_')):
            s.cls='vmem'
            words=(' '+mods+' ')
            s.lds=' lds ' in words
            if op in('buffer_inv','buffer_wbl2'): pass
            elif 'load' in op and not s.lds:
                s.dst=R(0); s.src=sum((R(i) for i in range(1,len(ops))),[])
                if 'd16' in op: s.src+=R(0)
            elif 'load' in op:
                s.src=sum((R(i) for i in range(len(ops))),[])+[('s','m0')]
            elif 'atomic' in op:
                s.src=sum((R(i) for i in range(len(ops))),[])
                if ' sc0 ' in words: s.dst=R(0) if op.startswith('buffer_') else R(0)
            else:
                s.src=sum((R(i) for i in range(len(ops))),[])
                if op.endswith(('x4','x3')):
                    s.isx4store=True
                    s.srcC=R(0) if op.startswith('buffer_') else R(1)
        elif op.startswith('s_'):
            s.cls='salu'
            if op in('s_branch',) or op.startswith('s_cbranch'):
                s.cls='branch'; s.target=ops[0]
                if 'vcc' in op: s.src=[('s','vcc')]
                if 'exec' in op: s.src=[('s','exec')]
            elif op=='s_nop': s.cls='nop'; s.passes=int(ops[0],0)+1
            elif op in('s_waitcnt','s_barrier','s_endpgm','s_sleep','s_setprio'): s.cls='misc'
            elif op.startswith('s_cmp'): s.src=sum((R(i) for i in range(len(ops))),[])
            elif op.startswith(('s_load','s_memtime','s_memrealtime','s_buffer_load','s_atomic')):
                s.cls='smem'; s.dst=R(0); s.src=sum((R(i) for i in range(1,len(ops))),[])
                if op.startswith('s_atomic') and 'glc' not in t: s.src+=s.dst; s.dst=[]
            else:
                s.dst=R(0); s.src=sum((R(i) for i in range(1,len(ops))),[])
                if 'saveexec' in op: s.dst+=[('s','exec')]; s.src+=[('s','exec')]

def need_between(p,c):
    n=0
    pd=set(p.dst);
    if p.cls in('valu','trans'):
        vd={r for r in pd if r[0] in 'va'}; sd={r for r in pd if r[0]=='s'}
        if c.cls=='mfma' and vd & (set(c.src)|set(c.srcC)): n=max(n,2)
        if p.cls=='trans' and c.cls in('valu',) and vd & set(c.src): n=max(n,1)
        if p.cls=='trans' and c.cls=='mfma' and vd & (set(c.src)|set(c.srcC)): n=max(n,2)
        if c.cls in('valu','trans'):
            if c.dpp and vd & set(c.src): n=max(n,2)
            if c.op.startswith('v_permlane') and vd & set(c.src): n=max(n,2)
            if c.op.startswith(('v_readfirstlane','v_readlane')) and vd & set(c.src): n=max(n,1)
            if sd & set(c.src):
                n=max(n,4 if c.op.startswith(('v_readlane','v_writelane')) else 2)
        if p.op.startswith('v_dot'):
            if c.op==p.op:
                if vd & set(c.src[:-1]): n=max(n,3)
            elif vd & (set(c.src)|set(c.dst)|set(c.srcC)): n=max(n,3)
        if c.cls=='vmem' and sd & set(c.src): n=max(n,5)
        if c.cls in('salu','branch','smem') and sd & set(c.src): n=max(n,3 if c.cls!='branch' else 5)
    if p.cls=='mfma':
        P=p.passes
        if c.cls=='mfma':
            if pd & set(c.src): n=max(n,8 if P==4 else 12)
            if pd & set(c.srcC):
                if p.dst==c.srcC and p.passes==c.passes: pass
                else: n=max(n,6 if P==4 else 10)
            elif pd & set(c.dst):
                n=max(n,8 if P==4 else 12)
        elif c.cls in('valu','trans','ds','vmem'):
            if pd & (set(c.src)|set(c.dst)): n=max(n,8 if P==4 else 12)
        if c.cls in('valu','trans') and set(p.srcC) & set(c.dst): n=max(n,3 if P==4 else 7)
    if p.cls=='vmem' and p.isx4store:
        if set(p.srcC) & set(c.dst): n=max(n,2)
    if p.cls=='salu' and ('s','m0') in pd:
        if c.cls=='vmem' and c.lds: n=max(n,1)
    if p.cls=='salu' and ('s','exec') in pd and c.dpp: n=max(n,1)
    return n

WINDOW=14
class Asm:
    def __init__(s):
        s.items=[]
        s.vm=0
        s.lg=0
        s.cond=0; s.bg=[]; s.bg_rate=0; s.bg_acc=0; s.bg_mw=2; s.scc_pending=False; s.exec_full=True
    def _emit(s,line):
        i=Ins(line); s.items.append(i)
        if i.cls=='vmem' and i.op not in('buffer_inv',): s.vm+=1
        if i.cls=='ds': s.lg+=1
        if i.op.startswith('s_cmp'): s.scc_pending=True
        elif i.op.startswith(('s_cbranch_scc','s_cselect','s_addc','s_cmov')): s.scc_pending=False
        if ('s','exec') in i.dst:
            t=i.text.replace(' ','')
            s.exec_full = t.endswith(('exec,-1','exec_hi,-1'))
        return i
    def e(s,text):
        for line in text.split('\n'):
            line=line.strip()
            if not line: continue
            i=s._emit(line)
            if s.bg and s.bg_rate and s.cond==0 and not s.scc_pending and s.exec_full and i.cls in('valu','trans','mfma','ds'):
                s.bg_acc+= {'trans':2,'mfma':s.bg_mw}.get(i.cls,1)
                if s.bg_acc>=s.bg_rate:
                    s.bg_acc=0; s.bg_pop()
        return s
    def bg_push(s,lines,cb=None): s.bg.append((lines,cb))
    def bg_set(s,rate,mfma_weight=2): s.bg_rate=rate; s.bg_acc=0; s.bg_mw=mfma_weight
    def bg_pop(s):
        lines,cb=s.bg.pop(0)
        for l in lines: s._emit(l)
        if cb: cb()
    def bg_flush(s,n=None):
        assert s.cond==0 and not s.scc_pending and s.exec_full
        while s.bg and (n is None or n>0):
            s.bg_pop()
            if n is not None: n-=1
    def vmtok(s): return s.vm
    def lgtok(s): return s.lg
    def wait_vm(s,tok):
        n=s.vm-tok
        assert n>=0
        s.e(f's_waitcnt vmcnt({min(n,62)})')
    def wait_lg(s,tok):
        n=s.lg-tok
        assert n>=0
        s.e(f's_waitcnt lgkmcnt({min(n,15)})')
    def cons_wait(s,tok,extra):
        s.wait_vm(tok)
    def need_vm(s,tok):
        assert tok is not None
        s.wait_vm(tok)
    def wait_both(s,vtok,ltok):
        n=s.vm-vtok; m=s.lg-ltok
        assert 0<=n<=63
        s.e(f's_waitcnt vmcnt({n}) lgkmcnt({min(m,15)})')
    def cond_begin(s):
        assert s.cond==0
        s._saved=(s.vm,s.lg); s.cond=1
    def cond_end(s):
        s.vm,s.lg=s._saved; s.cond=0; s.scc_pending=False
    def finalize(s):
        items=s.items
        incoming={}
        for it in range(3):
            out=[]; hist=[]
            newinc={}
            alive=True
            for ins in items:
                if ins.cls=='nil': out.append(ins); continue
                if ins.cls=='label':
                    hs=([hist] if alive else [])+incoming.get(ins.label,[])
                    merged={}
                    for h in hs:
                        for (p,d) in h:
                            k=id(p)
                            if k not in merged or merged[k][1]>d: merged[k]=(p,d)
                    hist=list(merged.values()); alive=True
                    out.append(ins); continue
                need=0
                for (p,d) in hist:
                    n=need_between(p,ins)
                    if n>d: need=max(need,n-d)
                if need>0:
                    k=need
                    while k>0:
                        t=min(k,16); nop=Ins(f's_nop {t-1}'); out.append(nop); k-=t
                    hist=[(p,d+need) for (p,d) in hist]
                out.append(ins)
                adv=ins.passes if ins.cls=='nop' else 1
                hist=[(p,d+adv) for (p,d) in hist if d+adv<WINDOW]
                if ins.cls!='nop': hist.append((ins,0))
                if ins.cls=='branch':
                    newinc.setdefault(ins.target,[]).append(list(hist))
                    if ins.op=='s_branch': alive=False; hist=[]
                if ins.op=='s_endpgm': alive=False; hist=[]
            incoming=newinc
        s.out=out
        return out
    def text(s):
        o=[]
        for i in s.finalize():
            t=i.text
            o.append(t if (i.cls in('label','nil')) else '  '+t)
        return '\n'.join(o)+'\n'
    def count(s):
        from collections import Counter
        return Counter(i.cls for i in s.out)

def verify_waits(items, take=lambda ins,n: False, name=''):
    labels={i.label:k for k,i in enumerate(items) if i.cls=='label'}
    vmq=[]; lgq=[]; errs=[]; seen={}
    pc=0; steps=0
    while pc<len(items):
        steps+=1
        if steps>400000: errs.append('path too long'); break
        i=items[pc]
        if i.cls in('nil','label','nop'): pc+=1; continue
        if i.op=='s_endpgm': break
        if i.op=='s_waitcnt':
            m=re.search(r'vmcnt\((\d+)\)',i.text)
            if m:
                n=int(m.group(1))
                while len(vmq)>n: vmq.pop(0)
            m=re.search(r'lgkmcnt\((\d+)\)',i.text)
            if m:
                n=int(m.group(1))
                if any(x[1]=='smem' for x in lgq):
                    if n==0: lgq=[]
                else:
                    while len(lgq)>n: lgq.pop(0)
            pc+=1; continue
        touched=set(i.src)|set(i.srcC)|set(i.dst)
        for q,nm in((vmq,'vm'),(lgq,'lg')):
            for (regs,kind,txt) in q:
                t=touched
                if i.cls=='vmem' and nm=='vm' and kind=='load':
                    t=set(i.src)|set(i.srcC)
                    if 'd16' in i.op: t=t-set(i.dst)
                hit=regs & t
                if hit: errs.append(f'{name}: `{i.text}` touches {sorted(hit,key=str)[:4]} pending from `{txt}`')
        if i.cls=='vmem' and i.op!='buffer_inv':
            vmq.append((set(i.dst),'load' if i.dst else 'other',i.text))
            if len(vmq)>63: vmq.pop(0)
        elif i.cls=='ds': lgq.append((set(i.dst),'ds',i.text))
        elif i.cls=='smem': lgq.append((set(i.dst),'smem',i.text))
        if i.cls=='branch':
            n=seen.get(pc,0); seen[pc]=n+1
            tgt=labels[i.target]
            if i.op=='s_branch': pc=tgt; continue
            if take(i,n): pc=tgt; continue
        pc+=1
    return errs
```

```python
import sys, os, struct
from dsl import Asm, verify_waits

NAME='gated_mix__spectral_gfnet__dense_activation_mish__prompt'
WS_T   =0x000000
WS_WT  =0x200000
WS_QT  =0x400000
WS_G   =0x402000
WS_CNT =0x404000
WS_Y   =0x600000
WS_ACT =0x800000
WS_STAMP=0x1000000
WS_SIZE=0x1080000
RT_STRIDE=56*4096
S_X,S_WR,S_WI,S_W1,S_B1,S_W2,S_GW,S_OUT,S_WS,S_DBG=8,12,16,20,24,28,32,36,40,44
def srd(n): return f's[{n}:{n+3}]'
SRDS=[(S_X,0,2048*1024),(S_WR,8,2048*514),(S_WI,16,2048*514),(S_W1,32,512*3584),(S_B1,40,3584),
      (S_W2,48,1792*1024),(S_GW,56,1024),(S_OUT,64,2048*1024),(S_WS,80,WS_SIZE),(S_DBG,72,256)]
def vr(b,n=1): return f'v{b}' if n==1 else f'v[{b}:{b+n-1}]'
def ar(b,n=1): return f'a{b}' if n==1 else f'a[{b}:{b+n-1}]'
def fl(x): return hex(struct.unpack('<I',struct.pack('<f',float(x)))[0])
S_WV=3
LOG2E=1.4426950408889634
OOB=0x40000000
SLEEP=int(os.environ.get('SLEEP','8'))
SPIN_MAX=50000
SLOT=31744; def_SB=lambda c:(c%5)*SLOT
SB=def_SB
XA_BASE=4*SLOT; XA_PITCH=1152
GW_LDS=5*SLOT; B1_LDS=GW_LDS+1024
W2R=32768
TB_BASE=131072; XB_BASE=139264; ZR_BASE=147456
LDS_TOTAL=163840
V_L16=3
V_PD,V_PA,V_SIG=250,251,252

class Cfg:
    stamps=False; dbgst=False; sc='sc1'
    off=set()
    def f(self,tag): return '' if (tag in self.off or 'all' in self.off) else self.sc

DBG_SEL=[2,4,5,7,10,11,13]
def stamp(a,cfg,idx):
    if not cfg.stamps: return
    if cfg.dbgst and idx not in [26]+DBG_SEL: return
    r=a.bg_rate; a.bg_rate=0
    a.e('s_memrealtime s[96:97]'); a.e('s_waitcnt lgkmcnt(0)'); a.e(f'v_writelane_b32 v255, s96, {idx}')
    a.bg_rate=r
def stamps_flush(a,cfg):
    if not cfg.stamps: return
    if cfg.dbgst:
        a.e('s_or_b32 s98, s2, s3'); a.e('s_cmp_lg_u32 s98, 0'); a.e('s_cbranch_scc1 L_nodbg')
        a.e('v_readlane_b32 s97, v255, 26')
        for n,i in enumerate(DBG_SEL):
            a.e(f'v_readlane_b32 s98, v255, {i}'); a.e('s_nop 3'); a.e('s_sub_u32 s98, s98, s97'); a.e(f'v_writelane_b32 v254, s98, {n}')
        a.e('v_lshlrev_b32 v253, 2, v0'); a.e('s_mov_b64 exec, 0x7f')
        a.e(f'buffer_store_dword v254, v253, {srd(S_DBG)}, 0 offen offset:32')
        a.e('s_mov_b64 exec, -1'); a.e('L_nodbg:')
        return
    a.e(f"""s_lshl_b32 s98, s2, 2
    s_add_u32 s98, s98, s{S_WV}
    s_lshl_b32 s98, s98, 8
    s_add_u32 s98, s98, {WS_STAMP}
    v_lshlrev_b32 v254, 2, v0
    buffer_store_dword v255, v254, {srd(S_WS)}, s98 offen""")

def signal(a,S,soff):
    vt=V_SIG
    a.e(f"""s_cmp_eq_u32 s{S_WV}, 0
    s_cselect_b32 s95, 0, {OOB}
    v_mov_b32 v{vt}, 1
    v_mov_b32 v{vt+1}, s95
    s_mov_b64 exec, 1
    buffer_atomic_add v{vt}, v{vt+1}, {srd(S)}, {soff} offen sc1
    s_mov_b64 exec, -1""")

def poll(a,S,soff,nl,stride,target,early=None):
    lab=f'L_poll{len(a.items)}'
    a.e(f's_cmp_lg_u32 s{S_WV}, 0')
    a.e(f's_cbranch_scc1 {lab}_ok')
    a.cond_begin()
    a.e(f'v_mul_u32_u24 v{V_PA}, {stride}, v0')
    a.e(f's_mov_b64 exec, {hex((1<<nl)-1)}')
    a.e(f's_mov_b32 s94, 0')
    a.e(f'{lab}:')
    a.e(f'buffer_load_dword v{V_PD}, v{V_PA}, {srd(S)}, {soff} offen sc1')
    a.e(f's_add_u32 s94, s94, 1')
    a.e(f's_waitcnt vmcnt(0)')
    a.e(f'v_cmp_gt_u32 vcc, {target}, v{V_PD}')
    a.e(f's_cbranch_vccz {lab}_done')
    a.e(f's_cmp_gt_u32 s94, {SPIN_MAX}')
    a.e(f's_cbranch_scc1 {lab}_done')
    a.e(f's_sleep {SLEEP}')
    a.e(f's_branch {lab}')
    a.e(f'{lab}_done:')
    a.e('s_mov_b64 exec, -1')
    a.cond_end()
    a.e(f'{lab}_ok:')
    a.e('s_barrier')

def angles(a,items,T):
    for i0 in range(0,len(items),4):
        grp=items[i0:i0+4]; src=[]
        for j,(sl,base,n,fin,neg) in enumerate(grp):
            if n==0: src.append(f'v{base}')
            else:
                a.e(f'v_fmamk_f32 v{T+j}, v{sl}, {fl(n)}, v{base}'); src.append(f'v{T+j}')
        outs=[]
        for j,(sl,base,n,fin,neg) in enumerate(grp):
            c,s=fin[0] if fin[0] is not None else T+4+j, fin[1] if fin[1] is not None else T+8+j
            a.e(f'v_cos_f32 v{c}, {src[j]}')
            a.e(f'v_sin_f32_e64 v{s}, -{src[j]}' if neg else f'v_sin_f32 v{s}, {src[j]}')
            outs.append((c,s))
        for j,(sl,base,n,fin,neg) in enumerate(grp):
            if fin[2]: fin[2](*outs[j])

def cmul_pack(a,c,s,tc,ts,dst,TT,n=4,negim=False):
    H=n//2
    for h in range(H): a.e(f'v_pk_mul_f32 {vr(TT+4*h,2)}, {vr(s+2*h,2)}, {vr(ts+2*h,2)}')
    for h in range(H): a.e(f'v_pk_mul_f32 {vr(TT+4*h+2,2)}, {vr(s+2*h,2)}, {vr(tc+2*h,2)}')
    for h in range(H): a.e(f'v_pk_fma_f32 {vr(TT+4*h,2)}, {vr(c+2*h,2)}, {vr(tc+2*h,2)}, {vr(TT+4*h,2)} neg_lo:[0,0,1] neg_hi:[0,0,1]')
    for h in range(H): a.e(f'v_pk_fma_f32 {vr(TT+4*h+2,2)}, {vr(c+2*h,2)}, {vr(ts+2*h,2)}, {vr(TT+4*h+2,2)}')
    ng='-' if negim else ''
    for h in range(H):
        a.e(f'v_cvt_pk_bf16_f32 v{dst+2*h}, v{TT+4*h}, {ng}v{TT+4*h+2}')
        a.e(f'v_cvt_pk_bf16_f32 v{dst+2*h+1}, v{TT+4*h+1}, {ng}v{TT+4*h+3}')

def prologue(a,end):
    a.e('s_cmp_ge_u32 s2, 256'); a.e(f's_cbranch_scc1 {end}')
    for (n,off,sz) in SRDS: a.e(f's_load_dwordx2 s[{n}:{n+1}], s[0:1], {off}')
    a.e('v_lshrrev_b32 v1, 6, v0')
    a.e('v_and_b32 v0, 63, v0')
    a.e(f'v_readfirstlane_b32 s{S_WV}, v1')
    a.e('v_and_b32 v1, 15, v0')
    a.e('v_lshrrev_b32 v2, 4, v0')
    a.e(f'v_lshlrev_b32 v{V_L16}, 4, v0')
    for (n,off,sz) in SRDS:
        a.e(f's_mov_b32 s{n+2}, {hex(sz)}'); a.e(f's_mov_b32 s{n+3}, 0x20000')

def phase_a(a,cfg,ctx):
    wv=f's{S_WV}'
    a.e(f'''s_and_b32 s4, s2, 7
    s_lshr_b32 s5, s2, 3
    s_lshr_b32 s49, s2, 5
    s_and_b32 s50, s2, 31
    s_lshr_b32 s6, s4, 1
    s_lshl_b32 s6, s6, 2
    s_lshr_b32 s56, s5, 3
    s_add_u32 s6, s6, s56
    s_and_b32 s7, s4, 1
    s_lshl_b32 s7, s7, 3
    s_and_b32 s56, s5, 7
    s_add_u32 s7, s7, s56
    s_and_b32 s48, s7, 1
    s_lshl_b32 s51, s6, 17
    s_lshl_b32 s56, {wv}, 13
    s_add_u32 s51, s51, s56
    s_mul_i32 s52, s7, 224
    s_mul_i32 s56, {wv}, 14336
    s_add_u32 s52, s52, s56
    s_lshl_b32 s53, {wv}, 10
    s_mul_i32 s54, {wv}, 960
    s_add_u32 s54, s54, 16384''')
    T=6
    V_XD=4; V_WD=5
    a.e(f'''v_lshrrev_b32 v{T}, 3, v0
    v_lshlrev_b32 v{V_XD}, 10, v{T}
    v_lshrrev_b32 v{T}, 1, v{T}
    s_and_b32 s56, {wv}, 1
    s_lshl_b32 s56, s56, 2
    v_add_u32 v{T}, s56, v{T}
    v_and_b32 v{T+1}, 7, v0
    v_xor_b32 v{T}, v{T}, v{T+1}
    v_lshl_add_u32 v{V_XD}, v{T}, 4, v{V_XD}
    v_mul_u32_u24 v{T}, 4682, v0
    v_lshrrev_b32 v{T}, 16, v{T}
    v_mul_u32_u24 v{V_WD}, 3584, v{T}
    v_mul_u32_u24 v{T}, 14, v{T}
    v_sub_u32 v{T}, v0, v{T}
    v_lshl_add_u32 v{V_WD}, v{T}, 4, v{V_WD}''')
    a.e(f'''s_lshl_b32 s56, s49, 18
    s_lshl_b32 s57, s50, 10
    s_add_u32 s56, s56, s57
    s_lshl_b32 s57, {wv}, 16
    s_add_u32 s56, s56, s57
    s_add_u32 s58, s56, 32768
    s_mul_i32 s57, {wv}, {2*XA_PITCH}
    s_add_u32 s57, s57, {XA_BASE}''')
    a.e('''s_lshr_b32 s59, s50, 3
    s_lshr_b32 s60, s50, 2
    s_and_b32 s60, s60, 1
    s_and_b32 s61, s50, 3
    s_lshl_b32 s62, s59, 4
    s_lshl_b32 s63, s60, 10
    s_add_u32 s62, s62, s63
    s_lshl_b32 s63, s61, 8
    s_add_u32 s62, s62, s63
    s_lshl_b32 s63, s59, 11
    s_lshl_b32 s64, s60, 10
    s_add_u32 s63, s63, s64
    s_lshl_b32 s64, s61, 8
    s_add_u32 s63, s63, s64''')
    a.e('s_waitcnt lgkmcnt(0)')
    stamp(a,cfg,26)
    a.e(f's_cmp_lg_u32 {wv}, 0'); a.e('s_cbranch_scc1 L_a_r0'); a.cond_begin()
    a.e(f's_mov_b32 m0, {GW_LDS}'); a.e('s_nop 0')
    a.e(f'buffer_load_dwordx4 v{V_L16}, {srd(S_GW)}, 0 offen lds')
    a.cond_end(); a.e('L_a_r0:')
    a.e(f's_cmp_lg_u32 {wv}, 1'); a.e('s_cbranch_scc1 L_a_r1'); a.cond_begin()
    a.e(f's_mul_i32 s64, s7, 224'); a.e(f's_mov_b32 m0, {B1_LDS}'); a.e('s_mov_b64 exec, 0x3fff')
    a.e(f'buffer_load_dwordx4 v{V_L16}, {srd(S_B1)}, s64 offen lds')
    a.e('s_mov_b64 exec, -1')
    a.cond_end(); a.e('L_a_r1:')
    a.e(f'''s_mov_b32 m0, s57
    s_add_u32 s57, s57, {XA_PITCH}
    buffer_load_dwordx4 v{V_L16}, {srd(S_X)}, s56 offen lds
    s_mov_b32 m0, s57
    s_nop 0
    buffer_load_dwordx4 v{V_L16}, {srd(S_X)}, s58 offen lds''')
    tok_xa=a.vmtok()
    V_WR=8; V_WI=24; V_WO=7
    a.e(f's_cmp_lg_u32 {wv}, 3'); a.e('s_cbranch_scc1 L_a_r3'); a.cond_begin()
    a.e(f'''v_lshrrev_b32 v{V_WO}, 2, v0
    v_mul_u32_u24 v{V_WO}, 514, v{V_WO}
    v_and_b32 v{T}, 3, v0
    v_lshl_add_u32 v{V_WO}, v{T}, 4, v{V_WO}
    s_mul_i32 s64, s62, 514
    s_lshl_b32 s65, s49, 6
    s_add_u32 s64, s64, s65''')
    for r in range(4):
        a.e(f'buffer_load_dwordx4 {vr(V_WR+4*r,4)}, v{V_WO}, {srd(S_WR)}, s64 offen')
        a.e(f'buffer_load_dwordx4 {vr(V_WI+4*r,4)}, v{V_WO}, {srd(S_WI)}, s64 offen')
        if r<3: a.e(f's_add_u32 s64, s64, {64*514}')
    a.cond_end(); a.e('L_a_r3:')
    V_SP=40; V_J=48; V_JR=49
    a.e(f'''s_lshl_b32 s65, s49, 2
    s_xor_b32 s66, {wv}, 2
    s_or_b32 s66, s66, s65''')
    a.e('s_cmp_lg_u32 s66, 0'); a.e('s_cbranch_scc1 L_a_r2'); a.cond_begin()
    a.e(f'''v_lshlrev_b32 v{V_J}, 6, v2
    v_add_u32 v{V_J}, v{V_J}, v1
    v_add_u32 v{V_J}, s62, v{V_J}
    v_sub_u32 v{V_JR}, 2048, v{V_J}
    v_and_b32 v{V_JR}, 2047, v{V_JR}
    v_mul_u32_u24 v{V_J}, 514, v{V_J}
    v_mul_u32_u24 v{V_JR}, 514, v{V_JR}''')
    for n,(S,vv,off) in enumerate([(S_WR,V_J,0),(S_WR,V_J,512),(S_WR,V_JR,0),(S_WR,V_JR,512),(S_WI,V_J,0),(S_WI,V_J,512),(S_WI,V_JR,0),(S_WI,V_JR,512)]):
        a.e(f'buffer_load_ushort v{V_SP+n}, v{vv}, {srd(S)}, 0 offen offset:{off}')
    a.cond_end(); a.e('L_a_r2:')
    tok_role=a.vmtok()
    tok_c={}
    def push_chunk(c):
        for u in range(4):
            last=False
            a.bg_push([f's_add_u32 m0, s53, {SB(c)+u*4096}', f's_add_u32 s55, s51, {u*32768+c*128}',
                       f'buffer_load_dwordx4 v{V_XD}, {srd(S_X)}, s55 offen lds'])
        for u in range(4):
            cb=(lambda c=c: tok_c.__setitem__(c,a.vmtok())) if u==3 else None
            a.bg_push([f's_add_u32 m0, s54, {SB(c)+u*3840}', f's_add_u32 s55, s52, {u*57344+c*229376}',
                       's_mov_b32 exec_hi, 0x00ffffff',
                       f'buffer_load_dwordx4 v{V_WD}, {srd(S_W1)}, s55 offen lds',
                       's_mov_b32 exec_hi, -1'],cb)
    for c in range(4): push_chunk(c)
    a.bg_set(cfg.bg1)
    V_B1C=60; V_B1S=68; V_TC=76; V_TS=80; V_A2=84; V_A2N=88; T0=92; TA=100
    a.e(f'''s_lshl_b32 s67, {wv}, 4
    v_add_u32 v{T0}, s67, v1
    v_cvt_f32_u32 v{T0}, v{T0}
    v_mul_f32 v{T0+1}, {fl(1/64)}, v{T0}
    v_lshlrev_b32 v{T0+2}, 2, v2
    v_cvt_f32_u32 v{T0+2}, v{T0+2}
    v_mul_f32 v{T0+3}, v{T0+2}, v{T0+1}''')
    for ks in range(2):
        for hh in range(2):
            angles(a,[(T0+1,T0+3,32*ks+16*hh+u,(None,None,None),True) for u in range(4)],TA)
            for d in range(2):
                a.e(f'v_cvt_pk_bf16_f32 v{V_B1C+4*ks+2*hh+d}, v{TA+4+2*d}, v{TA+5+2*d}')
                a.e(f'v_cvt_pk_bf16_f32 v{V_B1S+4*ks+2*hh+d}, v{TA+8+2*d}, v{TA+9+2*d}')
    a.e(f'''v_and_b32 v{T0+4}, 1, v2
    v_lshlrev_b32 v{T0+4}, 2, v{T0+4}
    v_cvt_f32_u32 v{T0+4}, v{T0+4}
    v_mul_f32 v{T0+5}, {fl(1/512)}, v{T0}
    v_mul_f32 v{T0+6}, v{T0+4}, v{T0+5}''')
    angles(a,[(T0+5,T0+6,r,(V_TC+r,V_TS+r,None),True) for r in range(4)],TA)
    a.e(f'''v_lshrrev_b32 v{T0+5}, 2, v1
    v_cvt_f32_u32 v{T0+5}, v{T0+5}
    v_mul_f32 v{T0+5}, {fl(1/8)}, v{T0+5}
    v_and_b32 v{T0+6}, 1, v1
    v_cvt_f32_u32 v{T0+6}, v{T0+6}
    v_mul_f32 v{T0+6}, {fl(0.25)}, v{T0+6}
    v_fma_f32 v{T0+6}, v{T0+4}, v{T0+5}, v{T0+6}
    v_lshrrev_b32 v{T0+7}, 1, v1
    v_and_b32 v{T0+7}, 1, v{T0+7}
    v_lshrrev_b32 v{T0}, 1, v2
    v_cmp_eq_u32 s[68:69], v{T0+7}, v{T0}
    v_and_b32 v{T0+7}, 13, v1
    v_cmp_eq_u32 vcc, 1, v{T0+7}''')
    a.e('s_and_b64 s[70:71], vcc, s[68:69]')
    angles(a,[(T0+5,T0+6,dw,(None,None,None),False) for dw in range(4)],TA)
    for dw in range(4): a.e(f'v_cvt_pk_bf16_f32 v{TA+dw}, v{TA+4+dw}, v{TA+8+dw}')
    a.e(f'v_mov_b32 v{TA+4}, 0x3f80'); a.e(f'v_mov_b32 v{TA+5}, 0xbf80')
    for dw in range(4):
        a.e(f'v_cndmask_b32 v{V_A2+dw}, 0, v{TA+dw}, s[68:69]')
        a.e(f'v_cndmask_b32 v{V_A2N+dw}, 0, v{TA+4+(dw&1)}, s[70:71]')
    V_XA=112-4
    a.e(f'''v_and_b32 v{T0}, 3, v0
    v_lshrrev_b32 v{T0+1}, 1, v{T0}
    v_mul_u32_u24 v{V_XA}, {XA_PITCH}, v{T0+1}
    v_and_b32 v{T0}, 1, v{T0}
    v_lshlrev_b32 v{T0}, 3, v{T0}
    v_lshrrev_b32 v{T0+1}, 2, v1
    v_lshl_add_u32 v{T0+1}, v2, 2, v{T0+1}
    v_lshlrev_b32 v{T0+1}, 4, v{T0+1}
    v_add3_u32 v{V_XA}, v{V_XA}, v{T0}, v{T0+1}
    v_add_u32 v{V_XA}, {XA_BASE}, v{V_XA}
    s_mul_i32 s72, {wv}, {2*XA_PITCH}
    s_add_u32 s72, s72, {XA_BASE}
    v_add_u32 v{V_XA+1}, s72, v{V_L16}''')
    stamp(a,cfg,0)
    a.wait_vm(tok_xa); a.e('s_barrier')
    stamp(a,cfg,1)
    a.bg_set(cfg.bg2)
    V_AF=112; V_GX=144; V_GW=184; V_D1C=152; V_D1S=168
    for pi in range(4):
        for ks in range(2):
            for hh in range(2):
                a.e(f'ds_read_b64_tr_b16 {vr(V_AF+8*pi+4*ks+2*hh,2)}, v{V_XA} offset:{pi*2*XA_PITCH+ks*512+hh*256}')
        if pi==1: lg_01=a.lgtok()
    lg_af=a.lgtok()
    a.e(f'ds_read_b128 {vr(V_GX,4)}, v{V_XA+1}')
    a.e(f'ds_read_b128 {vr(V_GX+4,4)}, v{V_XA+1} offset:{XA_PITCH}')
    a.e(f'v_add_u32 v{T0}, {GW_LDS}, v{V_L16}')
    a.e(f'ds_read_b128 {vr(V_GW,4)}, v{T0}')
    lg_gx=a.lgtok()
    for pi in range(4):
        if pi==0: a.wait_lg(lg_01)
        if pi==2: a.wait_lg(lg_af)
        for ks in range(2):
            A=vr(V_AF+8*pi+4*ks,4); c=vr(V_D1C+4*pi,4); s=vr(V_D1S+4*pi,4)
            a.e(f'v_mfma_f32_16x16x32_bf16 {c}, {A}, {vr(V_B1C+4*ks,4)}, {c if ks else 0}')
            a.e(f'v_mfma_f32_16x16x32_bf16 {s}, {A}, {vr(V_B1S+4*ks,4)}, {s if ks else 0}')
    a.wait_lg(lg_gx)
    V_Z=T0+2; V_GOUT=T0+4
    for d in range(4):
        for rr in range(2):
            a.e(f'v_dot2_f32_bf16 v{V_Z+rr}, v{V_GX+4*rr+d}, v{V_GW+d}, {("v%d"%(V_Z+rr)) if d else 0}')
    TT=TA
    V_B2=V_AF
    red=[('row_shr:1 row_mask:0xf bank_mask:0xf bound_ctrl:1'),('row_shr:2 row_mask:0xf bank_mask:0xf bound_ctrl:1'),
         ('row_shr:4 row_mask:0xf bank_mask:0xf bound_ctrl:1'),('row_shr:8 row_mask:0xf bank_mask:0xf bound_ctrl:1'),
         ('row_bcast:15 row_mask:0xa bank_mask:0xf'),('row_bcast:31 row_mask:0xc bank_mask:0xf')]
    ri=0
    for pi in range(4):
        cmul_pack(a,V_D1C+4*pi,V_D1S+4*pi,V_TC,V_TS,V_B2+4*pi,TT)
        for _ in range(2 if pi<2 else 1):
            for rr in range(2): a.e(f'v_add_f32_dpp v{V_Z+rr}, v{V_Z+rr}, v{V_Z+rr} {red[ri]}')
            ri+=1
    V_D2=V_D1C; V_D2N=V_D1S
    for pi in range(4):
        a.e(f'v_mfma_f32_16x16x32_bf16 {vr(V_D2+4*pi,4)}, {vr(V_A2,4)}, {vr(V_B2+4*pi,4)}, 0')
        a.e(f'v_mfma_f32_16x16x32_bf16 {vr(V_D2N+4*pi,4)}, {vr(V_A2N,4)}, {vr(V_B2+4*pi,4)}, 0')
    for rr in range(2): a.e(f'v_mul_f32 v{V_Z+rr}, {fl(-LOG2E)}, v{V_Z+rr}')
    for rr in range(2): a.e(f'v_exp_f32 v{V_Z+rr}, v{V_Z+rr}')
    V_BRAW=40+12
    V_BRAW=224
    a.e(f'''v_lshlrev_b32 v{T0}, 3, v2
    s_lshl_b32 s72, s48, 5
    s_add_u32 s73, s72, {B1_LDS}
    v_add_u32 v{T0+1}, s73, v{T0}
    s_cmp_eq_u32 s48, 0
    s_cselect_b32 s73, 192, 0
    s_add_u32 s73, s73, {B1_LDS}
    v_add_u32 v{T0}, s73, v{T0}''')
    for t in range(6): a.e(f'ds_read_b64 {vr(V_BRAW+2*t,2)}, v{T0+1} offset:{32*t}')
    a.e(f'ds_read_b64 {vr(V_BRAW+12,2)}, v{T0}')
    lg_b=a.lgtok()
    for rr in range(2): a.e(f'v_add_f32 v{V_Z+rr}, 1.0, v{V_Z+rr}')
    for rr in range(2): a.e(f'v_rcp_f32 v{V_GOUT+rr}, v{V_Z+rr}')
    a.e(f'''s_cmp_eq_u32 {wv}, 0
    s_cselect_b32 s74, 1, 0
    s_mov_b32 s75, 0''')
    V_TO=V_GX
    for pi in range(4):
        for rho in range(2):
            re=V_D2+4*pi+2*rho; im=re+1
            a.e(f'v_cndmask_b32 v{im}, v{im}, v{V_D2N+4*pi+2*rho+1}, s[74:75]')
            a.e(f'v_cvt_pk_bf16_f32 v{V_TO+2*pi+rho}, v{re}, v{im}')
    a.bg_flush()
    stamp(a,cfg,17)
    a.e(f'''v_lshlrev_b32 v{T0}, 6, v2
    v_add3_u32 v{T0}, v{T0}, v1, s67
    v_lshlrev_b32 v{T0}, 5, v{T0}
    s_lshl_b32 s76, s2, 13
    s_add_u32 s76, s76, {WS_T}
    buffer_store_dwordx4 {vr(V_TO,4)}, v{T0}, {srd(S_WS)}, s76 offen {cfg.f("stT")}
    buffer_store_dwordx4 {vr(V_TO+4,4)}, v{T0}, {srd(S_WS)}, s76 offen offset:16 {cfg.f("stT")}''')
    a.e(f'''s_lshl_b32 s76, s49, 3
    s_lshl_b32 s77, {wv}, 1
    s_add_u32 s76, s76, s77
    s_lshr_b32 s77, s76, 4
    s_lshl_b32 s77, s77, 11
    s_lshr_b32 s78, s50, 4
    s_lshl_b32 s78, s78, 10
    s_add_u32 s77, s77, s78
    s_lshr_b32 s78, s76, 2
    s_and_b32 s78, s78, 3
    s_lshl_b32 s78, s78, 8
    s_add_u32 s77, s77, s78
    s_and_b32 s78, s50, 15
    s_lshl_b32 s78, s78, 4
    s_add_u32 s77, s77, s78
    s_and_b32 s78, s76, 3
    s_lshl_b32 s78, s78, 2
    s_add_u32 s77, s77, s78
    s_add_u32 s77, s77, {WS_G}
    v_mov_b32 v{T0+1}, 0
    s_mov_b32 exec_lo, 0
    s_mov_b32 exec_hi, 0x80000000
    buffer_store_dwordx2 {vr(V_GOUT,2)}, v{T0+1}, {srd(S_WS)}, s77 offen {cfg.f("stG")}
    s_mov_b64 exec, -1''')
    a.e(f'''s_xor_b32 s76, {wv}, 1
    s_or_b32 s76, s76, s2
    s_cmp_eq_u32 s76, 0
    s_cselect_b32 s76, 0, {OOB}
    v_lshlrev_b32 v{T0+2}, 7, v0
    v_add_u32 v{T0+2}, s76, v{T0+2}
    v_mov_b32 v{T0+3}, 0
    s_mov_b32 s76, {WS_CNT}
    s_mov_b32 exec_hi, 0
    buffer_store_dword v{T0+3}, v{T0+2}, {srd(S_WS)}, s76 offen sc1
    s_mov_b32 exec_hi, -1''')
    a.e(f's_cmp_lg_u32 {wv}, 3'); a.e('s_cbranch_scc1 L_a_w3')
    a.wait_vm(tok_role); a.cond_begin()
    V_WP=188
    a.e('s_mov_b32 s78, 0x05040100'); a.e('s_mov_b32 s79, 0x07060302')
    for kk in range(8):
        for r in range(4):
            a.e(f'v_perm_b32 v{V_WP+4*kk+r}, v{V_WI+4*r+(kk>>1)}, v{V_WR+4*r+(kk>>1)}, s{78+(kk&1)}')
    a.e(f'''v_and_b32 v{T0+4}, 3, v0
    v_lshlrev_b32 v{T0+5}, 16, v{T0+4}
    v_lshrrev_b32 v{T0+6}, 2, v0
    v_lshl_add_u32 v{T0+5}, v{T0+6}, 4, v{T0+5}
    s_lshl_b32 s76, s49, 2
    v_add_u32 v{T0+4}, s76, v{T0+4}
    v_cmp_eq_u32 vcc, 0, v{T0+4}
    v_mov_b32 v{T0+6}, {OOB}
    v_cndmask_b32 v{T0+6}, v{T0+5}, v{T0+6}, vcc
    s_lshl_b32 s76, s49, 18
    s_add_u32 s76, s76, s63
    s_add_u32 s76, s76, {WS_WT}''')
    for kk in range(8):
        a.e(f'buffer_store_dwordx4 {vr(V_WP+4*kk,4)}, v{T0+6 if kk==0 else T0+5}, {srd(S_WS)}, s76 offen {cfg.f("stW")}')
        if kk<7: a.e('s_add_u32 s76, s76, 8192')
    a.cond_end(); a.e('L_a_w3:')
    a.e('s_cmp_lg_u32 s66, 0'); a.e('s_cbranch_scc1 L_a_w2')
    a.wait_vm(tok_role); a.cond_begin()
    for n in range(8): a.e(f'v_lshlrev_b32 v{V_SP+n}, 16, v{V_SP+n}')
    s=V_SP; t=V_B1S
    a.e(f'''v_add_f32 v{t}, v{s}, v{s+2}
    v_add_f32 v{t+1}, v{s+1}, v{s+3}
    v_sub_f32 v{t+2}, v{s+4}, v{s+6}
    v_sub_f32 v{t+3}, v{s+5}, v{s+7}
    v_add_f32 v{t+4}, v{t}, v{t+1}
    v_add_f32 v{t+5}, v{t+2}, v{t+3}
    v_sub_f32 v{t+6}, v{t}, v{t+1}
    v_sub_f32 v{t+7}, v{t+2}, v{t+3}
    v_mul_f32 v{t+4}, {fl(0.25)}, v{t+4}
    v_mul_f32 v{t+5}, {fl(0.25)}, v{t+5}
    v_mul_f32 v{t+6}, {fl(0.25)}, v{t+6}
    v_mul_f32 v{t+7}, {fl(0.25)}, v{t+7}
    v_cvt_pk_bf16_f32 v{t}, v{t+4}, v{t+5}
    v_cvt_pk_bf16_f32 v{t+1}, v{t+6}, v{t+7}
    v_lshlrev_b32 v{t+2}, 4, v1
    v_lshl_add_u32 v{t+2}, v2, 2, v{t+2}
    s_add_u32 s77, s63, {WS_QT}
    s_add_u32 s76, s63, {WS_WT}
    buffer_store_dword v{t}, v{t+2}, {srd(S_WS)}, s76 offen {cfg.f("stW")}
    buffer_store_dword v{t+1}, v{t+2}, {srd(S_WS)}, s77 offen {cfg.f("stW")}''')
    a.cond_end(); a.e('L_a_w2:')
    stamp(a,cfg,18)
    V_BIAS=112; V_ACC=144; V_WF=200; V_XF=8
    V_XR=24
    V_VA=30
    a.wait_lg(lg_b)
    for t in range(7):
        for d in range(2):
            raw=V_BRAW+2*t+d
            a.e(f'v_lshlrev_b32 v{V_BIAS+4*t+2*d}, 16, v{raw}')
            a.e(f'v_and_b32 v{V_BIAS+4*t+2*d+1}, 0xffff0000, v{raw}')
    a.e(f'''s_lshl_b32 s76, {wv}, 12
    v_lshlrev_b32 v{T0}, 7, v1
    v_add_u32 v{T0}, s76, v{T0}
    v_lshrrev_b32 v{T0+1}, 1, v1
    v_xor_b32 v{T0+1}, v{T0+1}, v2
    v_lshl_add_u32 v{V_XR}, v{T0+1}, 4, v{T0}
    v_xor_b32 v{T0+1}, 4, v{T0+1}
    v_lshl_add_u32 v{V_XR+1}, v{T0+1}, 4, v{T0}
    v_mul_u32_u24 v{V_VA}, 1920, v2
    v_lshrrev_b32 v{T0}, 2, v1
    v_mul_u32_u24 v{T0}, 224, v{T0}
    v_and_b32 v{T0+1}, 3, v0
    v_lshlrev_b32 v{T0+1}, 3, v{T0+1}
    v_add3_u32 v{V_VA}, v{V_VA}, v{T0}, v{T0+1}
    v_add_u32 v{V_VA}, 16384, v{V_VA}
    s_cmp_eq_u32 s48, 0
    s_cselect_b32 s76, 192, 0
    v_add_u32 v{V_VA+1}, s76, v{V_VA}
    s_lshl_b32 s76, s48, 5
    v_add_u32 v{V_VA}, s76, v{V_VA}''')
    for st_ in (1,2):
        for j in range(2):
            a.e(f'v_add_u32 v{V_XR+2*st_+j}, {2*st_*SLOT}, v{V_XR+j}')
            a.e(f'v_add_u32 v{V_VA+2*st_+j}, {2*st_*SLOT}, v{V_VA+j}')
    def slot_set(c):
        j=c%5; return (j//2, (j%2)*SLOT)
    def x_reads(s):
        c,kk=s//2,s%2; st_,off=slot_set(c)
        for nb in range(2):
            a.e(f'ds_read_b128 {vr(V_XF+8*(s%2)+4*nb,4)}, v{V_XR+2*st_+kk} offset:{off+2048*nb}')
    def w_reads(s,t):
        c,kk=s//2,s%2; st_,off=slot_set(c)
        va=V_VA+2*st_+(1 if t==6 else 0)
        o=off+kk*7680+(32*t if t<6 else 0)
        for hh in range(2):
            a.e(f'ds_read_b64_tr_b16 {vr(V_WF+4*t+2*hh,2)}, v{va} offset:{o+960*hh}')
    a.wait_vm(tok_c[0]); a.e('s_barrier')
    push_chunk(4)
    a.bg_set(cfg.bg3,mfma_weight=2)
    stamp(a,cfg,3)
    w_reads(0,0); x_reads(0)
    for t in range(1,7): w_reads(0,t)
    for s in range(16):
        last=(s==15); c=s//2
        for t in range(7):
            if not last: n=12 if t==0 else 14
            else: n=2*(6-t)
            a.e(f's_waitcnt lgkmcnt({n})')
            for nb in range(2):
                acc=vr(V_ACC+28*nb+4*t,4)
                cc=acc if s>0 else vr(V_BIAS+4*t,4)
                a.e(f'v_mfma_f32_16x16x32_bf16 {acc}, {vr(V_WF+4*t,4)}, {vr(V_XF+8*(s%2)+4*nb,4)}, {cc}')
            if not last:
                if t==0 and s%2==1:
                    if (c+1) not in tok_c: a.bg_flush()
                    if cfg.fine: stamp(a,cfg,32+2*c)
                    a.wait_vm(tok_c[c+1]); a.e('s_barrier')
                    if cfg.fine: stamp(a,cfg,33+2*c)
                    if c==3:
                        a.e('s_and_b32 s92, s5, 3'); a.e('s_lshl_b32 s92, s92, 6')
                        signal(a,S_DBG,'s92')
                    if c>=1 and c+4<8: push_chunk(c+4)
                w_reads(s+1,t)
                if t==0: x_reads(s+1)
    a.bg_flush()
    a.e('s_barrier')
    stamp(a,cfg,4)
    g2_ids(a,cfg,ctx)
    for t in range(8): push_w2(a,cfg,ctx,t)
    a.bg_set(cfg.bg4)
    V_E=V_WF; V_O=112
    a.e(f's_mov_b32 s84, {fl(LOG2E)}'); a.e(f's_mov_b32 s85, {fl(LOG2E)}'); a.e(f's_mov_b32 s86, {fl(30.0)}')
    pairs=[(V_ACC+28*nb+4*t+2*d, V_O+14*nb+2*t+d) for nb in range(2) for t in range(7) for d in range(2)]
    G=4
    for g0 in range(0,len(pairs),G):
        grp=pairs[g0:g0+G]
        Tq=lambda i: V_E+4*i
        for i,(h,o) in enumerate(grp): a.e(f'v_pk_mul_f32 {vr(Tq(i),2)}, {vr(h,2)}, s[84:85]')
        for i,(h,o) in enumerate(grp):
            a.e(f'v_min_f32 v{Tq(i)}, s86, v{Tq(i)}'); a.e(f'v_min_f32 v{Tq(i)+1}, s86, v{Tq(i)+1}')
        for i,(h,o) in enumerate(grp):
            a.e(f'v_exp_f32 v{Tq(i)}, v{Tq(i)}'); a.e(f'v_exp_f32 v{Tq(i)+1}, v{Tq(i)+1}')
        for i,(h,o) in enumerate(grp): a.e(f'v_pk_add_f32 {vr(Tq(i)+2,2)}, {vr(Tq(i),2)}, 2.0 op_sel_hi:[1,0]')
        for i,(h,o) in enumerate(grp): a.e(f'v_pk_mul_f32 {vr(Tq(i),2)}, {vr(Tq(i),2)}, {vr(Tq(i)+2,2)}')
        for i,(h,o) in enumerate(grp): a.e(f'v_pk_add_f32 {vr(Tq(i)+2,2)}, {vr(Tq(i),2)}, 2.0 op_sel_hi:[1,0]')
        for i,(h,o) in enumerate(grp):
            a.e(f'v_rcp_f32 v{Tq(i)+2}, v{Tq(i)+2}'); a.e(f'v_rcp_f32 v{Tq(i)+3}, v{Tq(i)+3}')
        for i,(h,o) in enumerate(grp): a.e(f'v_pk_mul_f32 {vr(Tq(i),2)}, {vr(Tq(i),2)}, {vr(Tq(i)+2,2)}')
        for i,(h,o) in enumerate(grp): a.e(f'v_pk_mul_f32 {vr(Tq(i),2)}, {vr(Tq(i),2)}, {vr(h,2)}')
        for i,(h,o) in enumerate(grp): a.e(f'v_cvt_pk_bf16_f32 v{o}, v{Tq(i)}, v{Tq(i)+1}')
    a.bg_flush(); a.bg_set(0)
    ctx['V_O']=V_O
    stamp(a,cfg,5)

def act_stores(a,cfg,ctx):
    V_O=ctx['V_O']; T0=6
    a.e(f'''s_mul_i32 s86, s7, 7
    s_add_u32 s86, s86, s48
    s_lshr_b32 s86, s86, 1
    s_lshl_b32 s87, s86, 12
    s_mul_i32 s88, s6, {2*RT_STRIDE}
    s_lshl_b32 s89, s{S_WV}, 10
    s_add_u32 s88, s88, s89
    s_add_u32 s88, s88, {WS_ACT}
    s_add_u32 s88, s88, s87
    s_mov_b32 s89, {3*4096}
    s_cmp_eq_u32 s48, 0
    s_cselect_b32 s89, s89, {(-4096+512)&0xffffffff}
    s_add_u32 s89, s89, s88
    v_lshlrev_b32 v{T0}, 3, v0''')
    for nb in range(2):
        for pp in range(3):
            a.e(f'buffer_store_dwordx4 {vr(V_O+14*nb+4*pp,4)}, v{V_L16}, {srd(S_WS)}, s88 offen {cfg.f("stA")}')
            a.e('s_add_u32 s88, s88, 4096')
        a.e(f'buffer_store_dwordx2 {vr(V_O+14*nb+12,2)}, v{T0}, {srd(S_WS)}, s89 offen {cfg.f("stA")}')
        if nb==0:
            a.e(f's_add_u32 s88, s88, {RT_STRIDE-3*4096}')
            a.e(f's_add_u32 s89, s89, {RT_STRIDE}')
    ctx['tok_act']=a.vmtok()

P2=dict(V_U=8,V_W=40,V_GT=48,V_Q=56,T0=64,V_F64R=80,V_F64I=96,V_F32R=112,V_F32I=128,V_T1C=144,V_T1S=152,V_T3C=160,V_T3S=168,V_DR=176,V_DI=184,V_B=192)
def p2_loads(a,cfg,ctx):
    wv=f's{S_WV}'; V_W,V_GT,V_Q,T0=P2['V_W'],P2['V_GT'],P2['V_Q'],P2['T0']
    a.e(f'''s_lshl_b32 s56, s4, 5
    s_add_u32 s56, s56, s5''')
    a.e(f'''v_lshrrev_b32 v{T0}, 5, v0
    v_lshlrev_b32 v{T0}, 18, v{T0}
    v_bfe_u32 v{T0+1}, v0, 1, 4
    v_lshl_add_u32 v{T0}, v{T0+1}, 13, v{T0}
    v_and_b32 v{T0+1}, 1, v0
    v_lshl_add_u32 v{T0}, v{T0+1}, 4, v{T0}
    s_lshl_b32 s57, s56, 5
    s_lshl_b32 s58, {wv}, 19
    s_add_u32 s57, s57, s58
    s_add_u32 s57, s57, {WS_T}
    s_lshl_b32 s58, {wv}, 11
    s_add_u32 s58, s58, {TB_BASE}
    s_mov_b32 m0, s58
    s_add_u32 s59, s57, 131072
    buffer_load_dwordx4 v{T0}, {srd(S_WS)}, s57 offen {cfg.f("ldT")} lds
    s_add_u32 s58, s58, 1024
    s_mov_b32 m0, s58
    s_nop 0
    buffer_load_dwordx4 v{T0}, {srd(S_WS)}, s59 offen {cfg.f("ldT")} lds
    s_lshl_b32 s60, s56, 13
    s_lshl_b32 s61, {wv}, 11
    s_add_u32 s60, s60, s61
    s_add_u32 s62, s60, {WS_WT}
    s_add_u32 s63, s61, {WS_G}
    s_add_u32 s64, s61, {WS_QT}''')
    for eh in range(2): a.e(f'buffer_load_dwordx4 {vr(V_W+4*eh,4)}, v{V_L16}, {srd(S_WS)}, s62 offen offset:{1024*eh} {cfg.f("ldW")}')
    for nb in range(2): a.e(f'buffer_load_dwordx4 {vr(V_GT+4*nb,4)}, v{V_L16}, {srd(S_WS)}, s63 offen offset:{1024*nb} {cfg.f("ldW")}')
    a.e(f'''s_cmp_eq_u32 s56, 0
    s_cselect_b32 s65, 0, {OOB}
    v_add_u32 v{T0+2}, s65, v{V_L16}''')
    for eh in range(2): a.e(f'buffer_load_dwordx4 {vr(V_Q+4*eh,4)}, v{T0+2}, {srd(S_WS)}, s64 offen offset:{1024*eh} {cfg.f("ldW")}')
    ctx['tok_w']=a.vmtok()

def p2_tables(a,cfg,ctx):
    p=P2; T0=p['T0']; TA=T0+4+4
    TA=200
    wv=f's{S_WV}'
    a.e(f'''s_lshl_b32 s66, {wv}, 4
    v_add_u32 v{T0}, s66, v1
    v_cvt_f32_u32 v{T0}, v{T0}
    v_lshlrev_b32 v{T0+2}, 2, v2
    v_cvt_f32_u32 v{T0+2}, v{T0+2}
    v_mul_f32 v{T0+1}, {fl(1/64)}, v{T0}
    v_mul_f32 v{T0+3}, v{T0+2}, v{T0+1}''')
    def pk(dr,di):
        def f(c,s):
            a.e(f'v_cvt_pk_bf16_f32 v{dr}, v{c}, v{s}')
            a.e(f'v_cvt_pk_bf16_f32 v{di}, -v{s}, v{c}')
        return f
    angles(a,[(T0+1,T0+3,16*ks+u,(None,None,pk(p['V_F64R']+4*ks+u,p['V_F64I']+4*ks+u)),False) for ks in range(4) for u in range(4)],TA)
    a.e(f'''v_mul_f32 v{T0+1}, {fl(1/2048)}, v{T0}
    v_mul_f32 v{T0+3}, v{T0+2}, v{T0+1}''')
    angles(a,[(T0+1,T0+3,16*mb+r,(p['V_T1C']+4*mb+r,p['V_T1S']+4*mb+r,None),True) for mb in range(2) for r in range(4)],TA)
    a.e(f'v_cvt_f32_u32 v{T0+7}, v1')
    for eh in range(2):
        a.e(f'''v_add_f32 v{T0+1}, {fl(16*eh)}, v{T0+7}
        v_mul_f32 v{T0+1}, {fl(1/32)}, v{T0+1}
        v_mul_f32 v{T0+3}, v{T0+2}, v{T0+1}''')
        angles(a,[(T0+1,T0+3,16*mb+u,(None,None,pk(p['V_F32R']+8*eh+4*mb+u,p['V_F32I']+8*eh+4*mb+u)),False) for mb in range(2) for u in range(4)],TA)
    a.e(f'''v_cvt_f32_u32 v{T0}, s66
    v_add_f32 v{T0+2}, v{T0}, v{T0+2}''')
    for nb in range(2):
        a.e(f'''v_add_f32 v{T0+1}, {fl(16*nb)}, v{T0+7}
        v_mul_f32 v{T0+1}, {fl(1/2048)}, v{T0+1}
        v_mul_f32 v{T0+3}, v{T0+2}, v{T0+1}''')
        angles(a,[(T0+1,T0+3,r,(p['V_T3C']+4*nb+r,p['V_T3S']+4*nb+r,None),True) for r in range(4)],TA)

def p2_compute(a,cfg,ctx):
    p=P2; wv=f's{S_WV}'
    V_U,V_W,V_GT,T0=p['V_U'],p['V_W'],p['V_GT'],p['T0']
    V_F64R,V_F64I,V_F32R,V_F32I=p['V_F64R'],p['V_F64I'],p['V_F32R'],p['V_F32I']
    V_T1C,V_T1S,V_T3C,V_T3S=p['V_T1C'],p['V_T1S'],p['V_T3C'],p['V_T3S']
    V_DR,V_DI,V_B=p['V_DR'],p['V_DI'],p['V_B']; TT=200
    a.e(f'''v_lshrrev_b32 v{T0+4}, 1, v2
    v_lshlrev_b32 v{T0+4}, 5, v{T0+4}
    v_lshl_add_u32 v{T0+4}, v1, 1, v{T0+4}
    v_and_b32 v{T0+5}, 1, v2
    v_add_u32 v{T0+4}, v{T0+4}, v{T0+5}
    v_lshlrev_b32 v{T0+4}, 4, v{T0+4}
    v_add_u32 v{T0+4}, {TB_BASE}, v{T0+4}''')
    for ks in range(4):
        for mb in range(2):
            a.e(f'ds_read_b128 {vr(V_U+16*mb+4*ks,4)}, v{T0+4} offset:{2048*ks+1024*mb}')
    for ks in range(4):
        a.e(f's_waitcnt lgkmcnt({6-2*ks})')
        for mb in range(2):
            A=vr(V_U+16*mb+4*ks,4)
            for (D,Fm) in((V_DR,V_F64R),(V_DI,V_F64I)):
                d=vr(D+4*mb,4)
                a.e(f'v_mfma_f32_16x16x32_bf16 {d}, {A}, {vr(Fm+4*ks,4)}, {d if ks else 0}')
    V_WR=V_U; V_WI=V_U+8
    a.wait_vm(ctx['tok_w'])
    V_WR=216; V_WI=224
    for e in range(8):
        a.e(f'v_lshlrev_b32 v{V_WR+e}, 16, v{V_W+e}')
        a.e(f'v_and_b32 v{V_WI+e}, 0xffff0000, v{V_W+e}')
    for mb in range(2): cmul_pack(a,V_DR+4*mb,V_DI+4*mb,V_T1C+4*mb,V_T1S+4*mb,V_B+4*mb,TT)
    for mb in range(2):
        for eh in range(2):
            for (D,Fm) in((V_DR,V_F32R),(V_DI,V_F32I)):
                d=vr(D+4*eh,4)
                a.e(f'v_mfma_f32_16x16x32_bf16 {d}, {vr(Fm+8*eh+4*mb,4)}, {vr(V_B+4*mb,4)}, {d if mb else 0}')
    for e in range(8): a.e(f'v_mul_f32 v{V_GT+e}, {fl(2.0**-19)}, v{V_GT+e}')
    a.e('s_cmp_lg_u32 s56, 0')
    a.e('s_cbranch_scc0 L_p2_special')
    for eh in range(2): cmul_pack(a,V_DR+4*eh,V_DI+4*eh,V_WR+4*eh,V_WI+4*eh,V_B+4*eh,TT,negim=True)
    a.e('L_p2_join:')
    for ks in range(2):
        for nb in range(2):
            for (D,Fm) in((V_DR,V_F32R),(V_DI,V_F32I)):
                d=vr(D+4*nb,4)
                a.e(f'v_mfma_f32_16x16x32_bf16 {d}, {vr(V_B+4*ks,4)}, {vr(Fm+8*nb+4*ks,4)}, {d if ks else 0}')
    a.e(f'''s_lshl_b32 s65, {wv}, 11
    s_add_u32 s65, s65, {XB_BASE}
    v_add_u32 v{T0+4}, s65, v{V_L16}
    v_add_u32 v{T0+5}, {XB_BASE}, v{V_L16}''')
    for nb in range(2):
        cmul_pack(a,V_DR+4*nb,V_DI+4*nb,V_T3C+4*nb,V_T3S+4*nb,V_B+4*nb,TT)
        a.e(f'ds_write_b128 v{T0+4}, {vr(V_B+4*nb,4)} offset:{1024*nb}')
    a.e('s_waitcnt lgkmcnt(0)'); a.e('s_barrier')
    V_X=V_U
    for ks in range(4):
        for nb in range(2):
            a.e(f'ds_read_b128 {vr(V_X+8*ks+4*nb,4)}, v{T0+5} offset:{2048*ks+1024*nb}')
    for ks in range(4):
        a.e(f's_waitcnt lgkmcnt({6-2*ks})')
        for nb in range(2):
            for (D,Fm) in((V_DR,V_F64R),(V_DI,V_F64I)):
                d=vr(D+4*nb,4)
                a.e(f'v_mfma_f32_16x16x32_bf16 {d}, {vr(Fm+4*ks,4)}, {vr(V_X+8*ks+4*nb,4)}, {d if ks else 0}')
    a.e(f's_add_u32 s62, s60, {WS_Y}')
    for nb in range(2):
        for h in range(2):
            a.e(f'v_pk_mul_f32 {vr(V_DR+4*nb+2*h,2)}, {vr(V_DR+4*nb+2*h,2)}, {vr(V_GT+4*nb+2*h,2)}')
            a.e(f'v_pk_mul_f32 {vr(V_DI+4*nb+2*h,2)}, {vr(V_DI+4*nb+2*h,2)}, {vr(V_GT+4*nb+2*h,2)}')
        for r in range(4): a.e(f'v_cvt_pk_bf16_f32 v{V_B+4*nb+r}, v{V_DR+4*nb+r}, v{V_DI+4*nb+r}')
        a.e(f'buffer_store_dwordx4 {vr(V_B+4*nb,4)}, v{V_L16}, {srd(S_WS)}, s62 offen offset:{1024*nb} {cfg.f("stY")}')
    ctx['tok_y']=a.vmtok()

def p2_special(a,cfg,ctx):
    p=P2; wv=f's{S_WV}'
    V_U,V_Q,T0,V_DR,V_DI,V_B=p['V_U'],p['V_Q'],p['T0'],p['V_DR'],p['V_DI'],p['V_B']
    V_WR=216; V_WI=224
    a.e('L_p2_special:')
    a.cond_begin()
    V_J=T0+8; V_ZA=V_U+16
    a.e(f'''s_lshl_b32 s65, {wv}, 4
    v_lshlrev_b32 v{V_J}, 8, v2
    v_add3_u32 v{V_J}, v{V_J}, v1, s65''')
    for eh in range(2):
        for r in range(4):
            n=1024*eh+64*r
            a.e(f'v_add_u32 v{T0}, {n}, v{V_J}')
            a.e(f'v_lshlrev_b32 v{T0}, 3, v{T0}')
            a.e(f'v_add_u32 v{T0}, {ZR_BASE}, v{T0}')
            a.e(f'v_mov_b32 v{T0+2}, v{V_DR+4*eh+r}')
            a.e(f'v_mov_b32 v{T0+3}, v{V_DI+4*eh+r}')
            a.e(f'ds_write_b64 v{T0}, {vr(T0+2,2)}')
    a.e('s_waitcnt lgkmcnt(0)'); a.e('s_barrier')
    for eh in range(2):
        for r in range(4):
            n=1024*eh+64*r
            a.e(f'v_sub_u32 v{T0}, {2048-n}, v{V_J}')
            a.e(f'v_and_b32 v{T0}, 2047, v{T0}')
            a.e(f'v_lshlrev_b32 v{T0}, 3, v{T0}')
            a.e(f'v_add_u32 v{T0}, {ZR_BASE}, v{T0}')
            a.e(f'ds_read_b64 {vr(V_ZA+2*(4*eh+r),2)}, v{T0}')
    a.e('s_waitcnt lgkmcnt(0)')
    for e in range(8):
        zr=V_DR+e; zi=V_DI+e; pr=V_WR+e; pi=V_WI+e; ar_=V_ZA+2*e; ai=ar_+1
        qr=T0; qi=T0+1; yr=T0+2; yi=T0+3
        a.e(f'''v_lshlrev_b32 v{qr}, 16, v{V_Q+e}
        v_and_b32 v{qi}, 0xffff0000, v{V_Q+e}
        v_mul_f32 v{yr}, v{zr}, v{pr}
        v_fma_f32 v{yr}, -v{zi}, v{pi}, v{yr}
        v_fma_f32 v{yr}, v{ar_}, v{qr}, v{yr}
        v_fma_f32 v{yr}, v{ai}, v{qi}, v{yr}
        v_mul_f32 v{yi}, v{zr}, v{pi}
        v_fma_f32 v{yi}, v{zi}, v{pr}, v{yi}
        v_fma_f32 v{yi}, v{ar_}, v{qi}, v{yi}
        v_fma_f32 v{yi}, -v{ai}, v{qr}, v{yi}
        v_cvt_pk_bf16_f32 v{V_B+e}, v{yr}, -v{yi}''')
    a.cond_end()
    a.e('s_branch L_p2_join')

V_W2D=244
V_W2A=240
A_R=0; ADEPTH=8
V_GF=80; GT0=144; V_ACC2=160; V_Y=16; V_G2=8; V_AF2=224
def g2_ids(a,cfg,ctx):
    wv=f's{S_WV}'
    a.e(f"""s_lshl_b32 s67, s4, 2
    s_lshr_b32 s68, s5, 3
    s_add_u32 s67, s67, s68
    s_and_b32 s68, s5, 7
    s_mul_i32 s69, s67, {RT_STRIDE}
    s_mul_i32 s70, {wv}, {14*4096}
    s_add_u32 s69, s69, s70
    s_add_u32 s69, s69, {WS_ACT}
    s_mul_i32 s70, {wv}, {14*32*1024}
    s_lshl_b32 s71, s68, 7
    s_add_u32 s70, s70, s71
    s_lshl_b32 s71, {wv}, 15
    s_lshr_b32 s72, s67, 1
    s_and_b32 s73, s67, 1
    s_lshr_b32 s74, s72, 2
    s_lshl_b32 s74, s74, 11
    s_lshl_b32 s75, s73, 10
    s_add_u32 s74, s74, s75
    s_and_b32 s75, s72, 3
    s_lshl_b32 s75, s75, 8
    s_add_u32 s74, s74, s75""")
    T=6
    a.e(f"""v_lshrrev_b32 v{T}, 3, v0
    v_lshlrev_b32 v{V_W2D}, 10, v{T}
    v_lshrrev_b32 v{T}, 1, v{T}
    v_and_b32 v{T}, 3, v{T}
    v_bfe_u32 v{T+1}, v0, 1, 2
    v_xor_b32 v{T}, v{T}, v{T+1}
    v_lshlrev_b32 v{T}, 1, v{T}
    v_and_b32 v{T+1}, 1, v0
    v_add_u32 v{T}, v{T}, v{T+1}
    v_lshl_add_u32 v{V_W2D}, v{T}, 4, v{V_W2D}""")
    a.e(f"""v_lshrrev_b32 v{T}, 2, v1
    v_lshl_add_u32 v{T+1}, v2, 2, v{T}
    v_lshlrev_b32 v{V_W2A}, 7, v{T+1}
    v_lshrrev_b32 v{T+1}, 1, v{T+1}
    v_and_b32 v{T+1}, 3, v{T+1}
    v_and_b32 v{T}, 3, v0
    v_lshl_add_u32 v{V_W2A}, v{T}, 3, v{V_W2A}
    v_add_u32 v{V_W2A}, s71, v{V_W2A}""")
    for c in (3,2,1,0):
        a.e(f'v_xor_b32 v{T}, {c}, v{T+1}')
        a.e(f'v_lshl_add_u32 v{V_W2A+c}, v{T}, 5, v{V_W2A}')
    ctx['toks']={}; ctx['tokw']={}

def push_w2(a,cfg,ctx,t):
    for v in range(4):
        cb=(lambda t=t: ctx['tokw'].__setitem__(t,a.vmtok())) if v==3 else None
        a.bg_push([f's_add_u32 m0, s71, {(t%8)*4096+v*1024}', f's_add_u32 s55, s70, {(32*t+8*v)*1024}',
                   f'buffer_load_dwordx4 v{V_W2D}, {srd(S_W2)}, s55 offen lds'],cb)

def g2_aloads(a,cfg,ctx,t):
    b=A_R+16*(t%ADEPTH); sc=cfg.f('ldA')
    if t in(3,10):
        for q in range(4):
            a.e(f'buffer_load_dwordx2 {ar(b+4*q,2)}, v4, {srd(S_WS)}, s69 offen offset:{1024*q} {sc}')
            a.e(f'buffer_load_dwordx2 {ar(b+4*q+2,2)}, v4, {srd(S_WS)}, s69 offen offset:{1024*q+512} {sc}')
    else:
        for q in range(4):
            a.e(f'buffer_load_dwordx4 {ar(b+4*q,4)}, v{V_L16}, {srd(S_WS)}, s69 offen offset:{1024*q} {sc}')
    a.e('s_add_u32 s69, s69, 4096')
    ctx['toks'][t]=a.vmtok()

G_ITEMS=[(psi,c,u) for psi in range(4) for c in range(4) for u in range(4)]
def g_init(a,cfg,ctx):
    T0=GT0; wv=f's{S_WV}'
    a.e(f"""s_lshl_b32 s75, s68, 6
    v_add_u32 v{T0}, s75, v1
    v_cvt_f32_u32 v{T0}, v{T0}
    s_lshl_b32 s75, {wv}, 6
    v_lshlrev_b32 v{T0+1}, 2, v2
    v_add_u32 v{T0+1}, s75, v{T0+1}
    v_cvt_f32_u32 v{T0+1}, v{T0+1}""")
    for c in range(4):
        a.e(f'v_add_f32 v{T0+2+c}, {fl(16*c)}, v{T0}' if c else f'v_mov_b32 v{T0+2}, v{T0}')
        a.e(f'v_mul_f32 v{T0+2+c}, {fl(1/512)}, v{T0+2+c}')
        a.e(f'v_mul_f32 v{T0+6+c}, v{T0+1}, v{T0+2+c}')
TA_G=64
def g_gen(a,items):
    T0=GT0
    def pk(d):
        return lambda c,s: a.e(f'v_cvt_pk_bf16_f32 v{d}, v{c}, v{s}')
    angles(a,[(T0+2+c,T0+6+c,16*psi+u,(None,None,pk(V_GF+16*psi+4*c+u)),False) for (psi,c,u) in items],TA_G)
def g_fix0(a):
    a.e(f"""s_cmp_eq_u32 s{S_WV}, 0
    s_cselect_b32 s76, 0xffff, 0
    s_mov_b32 s77, 0""")
    a.e(f'v_mov_b32 v{GT0+10}, {hex(0xBF003F00)}')
    a.e(f"""v_and_b32 v{GT0+11}, 1, v1
    v_lshlrev_b32 v{GT0+11}, 31, v{GT0+11}
    v_xor_b32 v{GT0+10}, v{GT0+10}, v{GT0+11}""")
    for c in range(4):
        a.e(f'v_cndmask_b32 v{V_GF+4*c}, v{V_GF+4*c}, v{GT0+10}, s[76:77]')

def g2_main(a,cfg,ctx,gi):
    wv=f's{S_WV}'; toks=ctx['toks']; tokw=ctx['tokw']; V_ACC=V_ACC2; V_G=V_G2
    a.e(f"""v_lshlrev_b32 v5, 4, v1
    s_add_u32 s75, s74, {WS_G}
    buffer_load_dwordx4 {vr(V_G,4)}, v5, {srd(S_WS)}, s75 offen {cfg.f("ldW")}
    v_lshlrev_b32 v6, 15, v2
    v_add_u32 v6, v6, v5
    s_lshl_b32 s78, {wv}, 19
    s_add_u32 s78, s78, s74
    s_add_u32 s78, s78, {WS_Y}""")
    def yloads(psi):
        for u in range(4):
            a.e(f's_add_u32 s79, s78, {(16*psi+u)*8192}')
            a.e(f'buffer_load_dwordx4 {vr(V_Y+16*psi+4*u,4)}, v6, {srd(S_WS)}, s79 offen {cfg.f("ldY")}')
    def a_reads(t,c):
        for hh in range(2):
            a.e(f'ds_read_b64_tr_b16 {vr(V_AF2+4*c+2*hh,2)}, v{V_W2A+c} offset:{(t%8)*4096+2048*hh}')
    a.wait_vm(tokw[0])
    for c in range(4): a_reads(0,c)
    nper=cfg.g_per_step
    for t in range(14):
        last=(t==13)
        if cfg.fine: stamp(a,cfg,48+t)
        a.wait_vm(toks[t])
        if not last: a.wait_vm(tokw[t+1])
        b=A_R+16*(t%ADEPTH)
        for c in range(4):
            n=6 if not last else 2*(3-c)
            a.e(f's_waitcnt lgkmcnt({n})')
            for q in range(4):
                d=vr(V_ACC+16*q+4*c,4)
                a.e(f'v_mfma_f32_16x16x32_bf16 {d}, {vr(V_AF2+4*c,4)}, {ar(b+4*q,4)}, {d if t else 0}')
            if not last: a_reads(t+1,c)
            if c==0:
                if 1<=t and t-1+8<14:
                    push_w2(a,cfg,ctx,t-1+8); a.bg_flush()
            if c==1 and t>=1 and t-1+ADEPTH<14: g2_aloads(a,cfg,ctx,t-1+ADEPTH)
            if c==2 and gi<len(G_ITEMS):
                g_gen(a,G_ITEMS[gi:gi+nper]); gi=min(len(G_ITEMS),gi+nper)
        if t==8:
            a.e(f's_mov_b32 s93, {WS_CNT+16*128}')
            poll(a,S_WS,'s93',16,128,16)
        if 9<=t<13: yloads(t-9); toks['y%d'%(t-9)]=a.vmtok()
    assert gi>=len(G_ITEMS)
    g_fix0(a)
    stamp(a,cfg,11)
    for q in range(4): a.e(f'v_sub_f32 v{V_G+q}, 1.0, v{V_G+q}')
    for q in range(4):
        for h in range(8):
            a.e(f'v_pk_mul_f32 {vr(V_ACC+16*q+2*h,2)}, {vr(V_ACC+16*q+2*h,2)}, {vr(V_G+(q&~1),2)} op_sel:[0,{q&1}] op_sel_hi:[1,{q&1}]')
    for psi in range(4):
        a.wait_vm(toks['y%d'%psi])
        y=V_Y+16*psi
        for (i,j) in[(0,1),(0,2),(0,3),(1,2),(1,3),(2,3)]:
            a.e(f'v_swap_b32 v{y+4*i+j}, v{y+4*j+i}')
        for c in range(4):
            for q in range(4):
                d=vr(V_ACC+16*q+4*c,4)
                a.e(f'v_mfma_f32_16x16x32_bf16 {d}, {vr(V_GF+16*psi+4*c,4)}, {vr(y+4*q,4)}, {d}')
    stamp(a,cfg,12)
    a.e(f'v_add_u32 v7, s71, v{V_L16}')
    for w in range(4):
        a.e(f's_cmp_lg_u32 {wv}, {w}')
        a.e(f's_cbranch_scc1 L_k3_w{w}')
        a.cond_begin()
        slot=0
        for q in range(4):
            if q==w: continue
            for c in range(4):
                a.e(f'ds_write_b128 v7, {vr(V_ACC+16*q+4*c,4)} offset:{slot*4096+c*1024}')
            slot+=1
        if w!=0:
            for h in range(8): a.e(f'v_pk_mov_b32 {vr(V_ACC+2*h,2)}, {vr(V_ACC+16*w+2*h,2)}, {vr(V_ACC+16*w+2*h,2)} op_sel:[0,1]')
        a.cond_end()
        a.e(f'L_k3_w{w}:')
    a.e('s_waitcnt lgkmcnt(0)'); a.e('s_barrier')
    V_RD=V_Y
    for k in range(1,4):
        a.e(f"""s_add_u32 s76, {wv}, {k}
        s_and_b32 s76, s76, 3
        s_lshl_b32 s77, s76, 15
        s_cmp_lt_u32 {wv}, s76
        s_cselect_b32 s79, 0, 1
        s_sub_u32 s79, {wv}, s79
        s_lshl_b32 s79, s79, 12
        s_add_u32 s77, s77, s79
        v_add_u32 v7, s77, v{V_L16}""")
        for c in range(4): a.e(f'ds_read_b128 {vr(V_RD+16*(k-1)+4*c,4)}, v7 offset:{c*1024}')
    a.e(f"""v_lshlrev_b32 v5, 10, v1
    v_lshl_add_u32 v5, v2, 3, v5
    s_lshl_b32 s76, s72, 17
    s_lshl_b32 s77, {wv}, 15
    s_add_u32 s76, s76, s77
    s_lshl_b32 s77, s73, 14
    s_add_u32 s76, s76, s77
    s_lshl_b32 s77, s68, 7
    s_add_u32 s76, s76, s77""")
    for k in range(3):
        a.e(f's_waitcnt lgkmcnt({8-4*k})')
        for h in range(8): a.e(f'v_pk_add_f32 {vr(V_ACC+2*h,2)}, {vr(V_ACC+2*h,2)}, {vr(V_RD+16*k+2*h,2)}')
    V_O=V_GF
    for c in range(4):
        a.e(f'v_cvt_pk_bf16_f32 v{V_O+2*c}, v{V_ACC+4*c}, v{V_ACC+4*c+1}')
        a.e(f'v_cvt_pk_bf16_f32 v{V_O+2*c+1}, v{V_ACC+4*c+2}, v{V_ACC+4*c+3}')
        a.e(f'buffer_store_dwordx2 {vr(V_O+2*c,2)}, v5, {srd(S_OUT)}, s76 offen offset:{32*c}')

def persist(a,cfg,end):
    ctx={}
    phase_a(a,cfg,ctx)
    a.e('s_mov_b32 s93, 0')
    poll(a,S_DBG,'s93',4,64,64)
    stamp(a,cfg,6)
    p2_loads(a,cfg,ctx)
    act_stores(a,cfg,ctx)
    stamp(a,cfg,24)
    p2_tables(a,cfg,ctx)
    stamp(a,cfg,25)
    a.wait_vm(ctx['tok_act']); a.e('s_barrier')
    a.e(f's_lshl_b32 s92, s6, 7'); a.e(f's_add_u32 s92, s92, {WS_CNT}')
    signal(a,S_WS,'s92')
    stamp(a,cfg,7)
    p2_compute(a,cfg,ctx)
    stamp(a,cfg,8)
    g_init(a,cfg,ctx)
    gi=cfg.g_pre
    g_gen(a,G_ITEMS[:gi])
    stamp(a,cfg,9)
    a.e(f's_lshl_b32 s93, s72, 7'); a.e(f's_add_u32 s93, s93, {WS_CNT}')
    poll(a,S_WS,'s93',1,0,16)
    stamp(a,cfg,10)
    a.e('v_lshlrev_b32 v4, 3, v0')
    g2_aloads(a,cfg,ctx,0); g2_aloads(a,cfg,ctx,1)
    a.wait_vm(ctx['tok_y']); a.e('s_barrier')
    a.e('s_and_b32 s92, s2, 15'); a.e('s_lshl_b32 s92, s92, 7'); a.e(f's_add_u32 s92, s92, {WS_CNT+16*128}')
    signal(a,S_WS,'s92')
    for t in range(2,ADEPTH): g2_aloads(a,cfg,ctx,t)
    g2_main(a,cfg,ctx,gi)
    stamp(a,cfg,13)
    stamps_flush(a,cfg)
    a.e(f's_branch {end}')
    p2_special(a,cfg,ctx)

HEADER='''; Gated mix of a GFNet spectral filter and a dense->mish->dense block, one persistent launch.
; (text generated by the author's own generator script; 256 workgroups, one per CU, hand-offs through counters)
'''
def build(stamps=False,dbgst=False,off=(),**kw):
    cfg=Cfg(); cfg.stamps=stamps; cfg.dbgst=dbgst; cfg.off=set(off)
    cfg.bg1=kw.get('bg1',9); cfg.bg2=kw.get('bg2',14); cfg.bg3=kw.get('bg3',8); cfg.bg4=kw.get('bg4',11)
    cfg.fine=kw.get('fine',0)
    cfg.g_pre=kw.get('g_pre',16); cfg.g_per_step=kw.get('g_per_step',4)
    label=NAME+'_kernel'
    a=Asm(); end='L_end'
    prologue(a,end)
    persist(a,cfg,end)
    a.e(f'{end}:'); a.e('s_endpgm')
    txt=a.text()
    errs=[]
    for nm,pol in (('fall',lambda i,n:i.target.endswith('_done')),('taken',lambda i,n:(not i.target.startswith('L_end')) and n==0)):
        errs+=verify_waits(a.out,pol,nm)
    for e in sorted(set(errs))[:30]: print('WAITERR',e,file=sys.stderr)
    print(dict(a.count()),file=sys.stderr)
    out=HEADER+f'; @launch grid=(256,1,1) block=(256,1,1) lds={LDS_TOTAL}\n'
    out+='.amdgcn_target "amdgcn-amd-amdhsa--gfx950"\n.text\n'
    out+=f'.globl {label}\n.p2align 8\n.type {label},@function\n{label}:\n{txt}'
    out+=f'''.section .rodata,"a"
.p2align 6
.amdhsa_kernel {label}
  .amdhsa_next_free_vgpr 512
  .amdhsa_next_free_sgpr 102
  .amdhsa_accum_offset 256
  .amdhsa_group_segment_fixed_size 0
  .amdhsa_kernarg_size 88
  .amdhsa_user_sgpr_count 2
  .amdhsa_user_sgpr_kernarg_segment_ptr 1
  .amdhsa_system_sgpr_workgroup_id_x 1
.end_amdhsa_kernel
'''
    return out

if __name__=='__main__':
    mode=sys.argv[1] if len(sys.argv)>1 else 'persist'
    kw={}
    for x in sys.argv[3:]:
        k,v=x.split('='); kw[k]=int(v) if v.lstrip('-').isdigit() else v
    off=kw.pop('off','').split(',') if 'off' in kw else ()
    txt=build(stamps=(mode in('stamps','dbgst')),dbgst=(mode=='dbgst'),off=off,**kw)
    open(sys.argv[2] if len(sys.argv)>2 else 'out.s','w').write(txt)
```

```python
import sys, os, struct
from dsl import Asm, verify_waits

NAME='gated_mix__spectral_gfnet__dense_activation_mish__prompt'
WS_T   =0x000000
WS_WT  =0x200000
WS_QT  =0x400000
WS_G   =0x402000
WS_CNT =0x404000
WS_Y   =0x600000
WS_ACT =0x800000
WS_STAMP=0x1000000
WS_SIZE=0x1080000
RT_STRIDE=56*4096
S_X,S_WR,S_WI,S_W1,S_B1,S_W2,S_GW,S_OUT,S_WS,S_DBG=8,12,16,20,24,28,32,36,40,44
def srd(n): return f's[{n}:{n+3}]'
SRDS=[(S_X,0,2048*1024),(S_WR,8,2048*514),(S_WI,16,2048*514),(S_W1,32,512*3584),(S_B1,40,3584),
      (S_W2,48,1792*1024),(S_GW,56,1024),(S_OUT,64,2048*1024),(S_WS,80,WS_SIZE),(S_DBG,72,256)]
def vr(b,n=1): return f'v{b}' if n==1 else f'v[{b}:{b+n-1}]'
def ar(b,n=1): return f'a{b}' if n==1 else f'a[{b}:{b+n-1}]'
def fl(x): return hex(struct.unpack('<I',struct.pack('<f',float(x)))[0])
S_WV=3
LOG2E=1.4426950408889634
OOB=0x40000000
SLEEP=int(os.environ.get('SLEEP','8'))
SPIN_MAX=50000
SLOT=31744; def_SB=lambda c:(c%5)*SLOT
SB=def_SB
XA_BASE=4*SLOT; XA_PITCH=1152
GW_LDS=5*SLOT; B1_LDS=GW_LDS+1024
W2R=32768
TB_BASE=131072; XB_BASE=139264; ZR_BASE=147456
LDS_TOTAL=163840
V_L16=3
V_PD,V_PA,V_SIG=250,251,252

class Cfg:
    stamps=False; dbgst=False; sc='sc1'
    off=set()
    def f(self,tag): return '' if (tag in self.off or 'all' in self.off) else self.sc

DBG_SEL=[2,4,5,7,10,11,13]
def stamp(a,cfg,idx):
    if not cfg.stamps: return
    if cfg.dbgst and idx not in [26]+DBG_SEL: return
    r=a.bg_rate; a.bg_rate=0
    a.e('s_memrealtime s[96:97]'); a.e('s_waitcnt lgkmcnt(0)'); a.e(f'v_writelane_b32 v255, s96, {idx}')
    a.bg_rate=r
def cstamp(a,cfg,idx):
    if not cfg.stamps or cfg.dbgst or not cfg.x.get('cyc'): return
    r=a.bg_rate; a.bg_rate=0
    a.e('s_memtime s[96:97]'); a.e('s_waitcnt lgkmcnt(0)'); a.e(f'v_writelane_b32 v255, s96, {idx}')
    a.bg_rate=r
def stamps_flush(a,cfg):
    if not cfg.stamps: return
    if cfg.dbgst:
        a.e('s_or_b32 s98, s2, s3'); a.e('s_cmp_lg_u32 s98, 0'); a.e('s_cbranch_scc1 L_nodbg')
        a.e('v_readlane_b32 s97, v255, 26')
        for n,i in enumerate(DBG_SEL):
            a.e(f'v_readlane_b32 s98, v255, {i}'); a.e('s_nop 3'); a.e('s_sub_u32 s98, s98, s97'); a.e(f'v_writelane_b32 v254, s98, {n}')
        a.e('v_lshlrev_b32 v253, 2, v0'); a.e('s_mov_b64 exec, 0x7f')
        a.e(f'buffer_store_dword v254, v253, {srd(S_DBG)}, 0 offen offset:32')
        a.e('s_mov_b64 exec, -1'); a.e('L_nodbg:')
        return
    a.e(f"""s_lshl_b32 s98, s2, 2
    s_add_u32 s98, s98, s{S_WV}
    s_lshl_b32 s98, s98, 8
    s_add_u32 s98, s98, {WS_STAMP}
    v_lshlrev_b32 v254, 2, v0
    buffer_store_dword v255, v254, {srd(S_WS)}, s98 offen""")

def signal(a,S,soff):
    vt=V_SIG
    a.e(f"""s_cmp_eq_u32 s{S_WV}, 0
    s_cselect_b32 s95, 0, {OOB}
    v_mov_b32 v{vt}, 1
    v_mov_b32 v{vt+1}, s95
    s_mov_b64 exec, 1
    buffer_atomic_add v{vt}, v{vt+1}, {srd(S)}, {soff} offen sc1
    s_mov_b64 exec, -1""")

def poll(a,S,soff,nl,stride,target,early=None):
    lab=f'L_poll{len(a.items)}'
    a.e(f's_cmp_lg_u32 s{S_WV}, 0')
    a.e(f's_cbranch_scc1 {lab}_ok')
    a.cond_begin()
    a.e(f'v_mul_u32_u24 v{V_PA}, {stride}, v0')
    a.e(f's_mov_b64 exec, {hex((1<<nl)-1)}')
    a.e(f's_mov_b32 s94, 0')
    a.e(f'{lab}:')
    a.e(f'buffer_load_dword v{V_PD}, v{V_PA}, {srd(S)}, {soff} offen sc1')
    a.e(f's_add_u32 s94, s94, 1')
    a.e(f's_waitcnt vmcnt(0)')
    a.e(f'v_cmp_gt_u32 vcc, {target}, v{V_PD}')
    a.e(f's_cbranch_vccz {lab}_done')
    a.e(f's_cmp_gt_u32 s94, {SPIN_MAX}')
    a.e(f's_cbranch_scc1 {lab}_done')
    a.e(f's_sleep {SLEEP}')
    a.e(f's_branch {lab}')
    a.e(f'{lab}_done:')
    a.e('s_mov_b64 exec, -1')
    a.cond_end()
    a.e(f'{lab}_ok:')
    a.e('s_barrier')

def angles(a,items,T):
    for i0 in range(0,len(items),4):
        grp=items[i0:i0+4]; src=[]
        for j,(sl,base,n,fin,neg) in enumerate(grp):
            if n==0: src.append(f'v{base}')
            else:
                a.e(f'v_fmamk_f32 v{T+j}, v{sl}, {fl(n)}, v{base}'); src.append(f'v{T+j}')
        outs=[]
        for j,(sl,base,n,fin,neg) in enumerate(grp):
            c,s=fin[0] if fin[0] is not None else T+4+j, fin[1] if fin[1] is not None else T+8+j
            a.e(f'v_cos_f32 v{c}, {src[j]}')
            a.e(f'v_sin_f32_e64 v{s}, -{src[j]}' if neg else f'v_sin_f32 v{s}, {src[j]}')
            outs.append((c,s))
        for j,(sl,base,n,fin,neg) in enumerate(grp):
            if fin[2]: fin[2](*outs[j])

def cmul_pack(a,c,s,tc,ts,dst,TT,n=4,negim=False):
    H=n//2
    for h in range(H): a.e(f'v_pk_mul_f32 {vr(TT+4*h,2)}, {vr(s+2*h,2)}, {vr(ts+2*h,2)}')
    for h in range(H): a.e(f'v_pk_mul_f32 {vr(TT+4*h+2,2)}, {vr(s+2*h,2)}, {vr(tc+2*h,2)}')
    for h in range(H): a.e(f'v_pk_fma_f32 {vr(TT+4*h,2)}, {vr(c+2*h,2)}, {vr(tc+2*h,2)}, {vr(TT+4*h,2)} neg_lo:[0,0,1] neg_hi:[0,0,1]')
    for h in range(H): a.e(f'v_pk_fma_f32 {vr(TT+4*h+2,2)}, {vr(c+2*h,2)}, {vr(ts+2*h,2)}, {vr(TT+4*h+2,2)}')
    ng='-' if negim else ''
    for h in range(H):
        a.e(f'v_cvt_pk_bf16_f32 v{dst+2*h}, v{TT+4*h}, {ng}v{TT+4*h+2}')
        a.e(f'v_cvt_pk_bf16_f32 v{dst+2*h+1}, v{TT+4*h+1}, {ng}v{TT+4*h+3}')

def prologue(a,end):
    a.e('s_cmp_ge_u32 s2, 256'); a.e(f's_cbranch_scc1 {end}')
    for (n,off,sz) in SRDS: a.e(f's_load_dwordx2 s[{n}:{n+1}], s[0:1], {off}')
    a.e('v_lshrrev_b32 v1, 6, v0')
    a.e('v_and_b32 v0, 63, v0')
    a.e(f'v_readfirstlane_b32 s{S_WV}, v1')
    a.e('v_and_b32 v1, 15, v0')
    a.e('v_lshrrev_b32 v2, 4, v0')
    a.e(f'v_lshlrev_b32 v{V_L16}, 4, v0')
    for (n,off,sz) in SRDS:
        a.e(f's_mov_b32 s{n+2}, {hex(sz)}'); a.e(f's_mov_b32 s{n+3}, 0x20000')

def phase_a(a,cfg,ctx):
    wv=f's{S_WV}'
    a.e(f'''s_and_b32 s4, s2, 7
    s_lshr_b32 s5, s2, 3
    s_lshr_b32 s49, s2, 5
    s_and_b32 s50, s2, 31
    s_lshr_b32 s6, s4, 1
    s_lshl_b32 s6, s6, 2
    s_lshr_b32 s56, s5, 3
    s_add_u32 s6, s6, s56
    s_and_b32 s7, s4, 1
    s_lshl_b32 s7, s7, 3
    s_and_b32 s56, s5, 7
    s_add_u32 s7, s7, s56
    s_and_b32 s48, s7, 1
    s_lshl_b32 s51, s6, 17
    s_lshl_b32 s56, {wv}, 13
    s_add_u32 s51, s51, s56
    s_mul_i32 s52, s7, 224
    s_mul_i32 s56, {wv}, 14336
    s_add_u32 s52, s52, s56
    s_lshl_b32 s53, {wv}, 10
    s_mul_i32 s54, {wv}, 960
    s_add_u32 s54, s54, 16384''')
    T=6
    V_XD=4; V_WD=5
    a.e(f'''v_lshrrev_b32 v{T}, 3, v0
    v_lshlrev_b32 v{V_XD}, 10, v{T}
    v_lshrrev_b32 v{T}, 1, v{T}
    s_and_b32 s56, {wv}, 1
    s_lshl_b32 s56, s56, 2
    v_add_u32 v{T}, s56, v{T}
    v_and_b32 v{T+1}, 7, v0
    v_xor_b32 v{T}, v{T}, v{T+1}
    v_lshl_add_u32 v{V_XD}, v{T}, 4, v{V_XD}
    v_mul_u32_u24 v{T}, 4682, v0
    v_lshrrev_b32 v{T}, 16, v{T}
    v_mul_u32_u24 v{V_WD}, 3584, v{T}
    v_mul_u32_u24 v{T}, 14, v{T}
    v_sub_u32 v{T}, v0, v{T}
    v_lshl_add_u32 v{V_WD}, v{T}, 4, v{V_WD}''')
    a.e(f'''s_lshl_b32 s56, s49, 18
    s_lshl_b32 s57, s50, 10
    s_add_u32 s56, s56, s57
    s_lshl_b32 s57, {wv}, 16
    s_add_u32 s56, s56, s57
    s_add_u32 s58, s56, 32768
    s_mul_i32 s57, {wv}, {2*XA_PITCH}
    s_add_u32 s57, s57, {XA_BASE}''')
    a.e('''s_lshr_b32 s59, s50, 3
    s_lshr_b32 s60, s50, 2
    s_and_b32 s60, s60, 1
    s_and_b32 s61, s50, 3
    s_lshl_b32 s62, s59, 4
    s_lshl_b32 s63, s60, 10
    s_add_u32 s62, s62, s63
    s_lshl_b32 s63, s61, 8
    s_add_u32 s62, s62, s63
    s_lshl_b32 s63, s59, 11
    s_lshl_b32 s64, s60, 10
    s_add_u32 s63, s63, s64
    s_lshl_b32 s64, s61, 8
    s_add_u32 s63, s63, s64''')
    a.e('s_waitcnt lgkmcnt(0)')
    stamp(a,cfg,26); cstamp(a,cfg,45)
    if cfg.x.get('pf_code'):
        a.e('s_getpc_b64 s[64:65]')
        a.e('L_pc:')
        a.e(f's_lshl_b32 s56x, s5, 10'.replace('s56x','s66'))
        a.e('s_add_u32 s64, s64, s66'); a.e('s_addc_u32 s65, s65, 0')
        a.e(f'v_mov_b32 v57, s65'); a.e(f'v_add_co_u32 v56, vcc, s64, v{V_L16}'); a.e(f'v_addc_co_u32 v57, vcc, 0, v57, vcc')
        a.e(f's_cmp_lt_u32 s5, {cfg.x["pf_code"]}'); a.e('s_cbranch_scc0 L_nopf'); a.cond_begin()
        a.e(f's_cmp_lg_u32 {wv}, 2'); a.e('s_cbranch_scc1 L_nopf')
        a.e('global_load_dwordx4 v[52:55], v[56:57], off')
        a.cond_end(); a.e('L_nopf:')
    a.e(f's_cmp_lg_u32 {wv}, 0'); a.e('s_cbranch_scc1 L_a_r0'); a.cond_begin()
    a.e(f's_mov_b32 m0, {GW_LDS}'); a.e('s_nop 0')
    a.e(f'buffer_load_dwordx4 v{V_L16}, {srd(S_GW)}, 0 offen lds')
    a.cond_end(); a.e('L_a_r0:')
    a.e(f's_cmp_lg_u32 {wv}, 1'); a.e('s_cbranch_scc1 L_a_r1'); a.cond_begin()
    a.e(f's_mul_i32 s64, s7, 224'); a.e(f's_mov_b32 m0, {B1_LDS}'); a.e('s_mov_b64 exec, 0x3fff')
    a.e(f'buffer_load_dwordx4 v{V_L16}, {srd(S_B1)}, s64 offen lds')
    a.e('s_mov_b64 exec, -1')
    a.cond_end(); a.e('L_a_r1:')
    a.e(f'''s_mov_b32 m0, s57
    s_add_u32 s57, s57, {XA_PITCH}
    buffer_load_dwordx4 v{V_L16}, {srd(S_X)}, s56 offen lds
    s_mov_b32 m0, s57
    s_nop 0
    buffer_load_dwordx4 v{V_L16}, {srd(S_X)}, s58 offen lds''')
    tok_xa=a.vmtok()
    V_WR=8; V_WI=24; V_WO=7
    a.e(f's_cmp_lg_u32 {wv}, 3'); a.e('s_cbranch_scc1 L_a_r3'); a.cond_begin()
    a.e(f'''v_lshrrev_b32 v{V_WO}, 2, v0
    v_mul_u32_u24 v{V_WO}, 514, v{V_WO}
    v_and_b32 v{T}, 3, v0
    v_lshl_add_u32 v{V_WO}, v{T}, 4, v{V_WO}
    s_mul_i32 s64, s62, 514
    s_lshl_b32 s65, s49, 6
    s_add_u32 s64, s64, s65''')
    for r in range(4):
        a.e(f'buffer_load_dwordx4 {vr(V_WR+4*r,4)}, v{V_WO}, {srd(S_WR)}, s64 offen')
        a.e(f'buffer_load_dwordx4 {vr(V_WI+4*r,4)}, v{V_WO}, {srd(S_WI)}, s64 offen')
        if r<3: a.e(f's_add_u32 s64, s64, {64*514}')
    a.cond_end(); a.e('L_a_r3:')
    V_SP=40; V_J=48; V_JR=49
    a.e(f'''s_lshl_b32 s65, s49, 2
    s_xor_b32 s66, {wv}, 2
    s_or_b32 s66, s66, s65''')
    a.e('s_cmp_lg_u32 s66, 0'); a.e('s_cbranch_scc1 L_a_r2'); a.cond_begin()
    a.e(f'''v_lshlrev_b32 v{V_J}, 6, v2
    v_add_u32 v{V_J}, v{V_J}, v1
    v_add_u32 v{V_J}, s62, v{V_J}
    v_sub_u32 v{V_JR}, 2048, v{V_J}
    v_and_b32 v{V_JR}, 2047, v{V_JR}
    v_mul_u32_u24 v{V_J}, 514, v{V_J}
    v_mul_u32_u24 v{V_JR}, 514, v{V_JR}''')
    for n,(S,vv,off) in enumerate([(S_WR,V_J,0),(S_WR,V_J,512),(S_WR,V_JR,0),(S_WR,V_JR,512),(S_WI,V_J,0),(S_WI,V_J,512),(S_WI,V_JR,0),(S_WI,V_JR,512)]):
        a.e(f'buffer_load_ushort v{V_SP+n}, v{vv}, {srd(S)}, 0 offen offset:{off}')
    a.cond_end(); a.e('L_a_r2:')
    tok_role=a.vmtok()
    tok_c={}
    def push_chunk(c):
        for u in range(4):
            last=False
            a.bg_push([f's_add_u32 m0, s53, {SB(c)+u*4096}', f's_add_u32 s55, s51, {u*32768+c*128}',
                       f'buffer_load_dwordx4 v{V_XD}, {srd(S_X)}, s55 offen lds'])
        for u in range(4):
            cb=(lambda c=c: tok_c.__setitem__(c,a.vmtok())) if u==3 else None
            a.bg_push([f's_add_u32 m0, s54, {SB(c)+u*3840}', f's_add_u32 s55, s52, {u*57344+c*229376}',
                       's_mov_b32 exec_hi, 0x00ffffff',
                       f'buffer_load_dwordx4 v{V_WD}, {srd(S_W1)}, s55 offen lds',
                       's_mov_b32 exec_hi, -1'],cb)
    for c in range(4): push_chunk(c)
    if cfg.x.get('pf'):
        V_PF=56
        a.e(f'''v_lshrrev_b32 v{V_PF}, 2, v0
        v_lshlrev_b32 v{V_PF}, 10, v{V_PF}
        v_and_b32 v{V_PF+1}, 3, v0
        v_lshl_add_u32 v{V_PF}, v{V_PF+1}, 7, v{V_PF}
        s_cmp_eq_u32 {wv}, 0
        s_cselect_b32 s64, 0, {OOB}
        v_add_u32 v{V_PF}, s64, v{V_PF}
        s_and_b32 s64, s5, 7
        s_lshl_b32 s64, s64, 14
        s_lshl_b32 s65, s6, 17
        s_add_u32 s64, s64, s65
        s_add_u32 s80, s64, 512''')
        a.e(f'''v_mul_u32_u24 v{V_PF+2}, 3584, v0
        s_cmp_lt_u32 {wv}, 3
        s_cselect_b32 s64, 0, {OOB}
        v_add_u32 v{V_PF+2}, s64, v{V_PF+2}
        s_lshr_b32 s64, s5, 3
        s_lshl_b32 s64, s64, 6
        s_add_u32 s64, s64, 256
        s_mul_i32 s64, s64, 3584
        s_mul_i32 s65, s7, 224
        s_add_u32 s64, s64, s65
        s_lshl_b32 s65, {wv}, 7
        s_min_u32 s65, s65, 220
        s_add_u32 s81, s64, s65''')
        a.e(f'''v_lshlrev_b32 v{V_PF+3}, 7, v0
        v_mov_b32 v{V_PF+1}, {OOB}
        v_cmp_gt_u32 vcc, 56, v0
        v_cndmask_b32 v{V_PF+3}, v{V_PF+1}, v{V_PF+3}, vcc
        s_cmp_eq_u32 {wv}, 3
        s_cselect_b32 s64, 0, {OOB}
        v_add_u32 v{V_PF+3}, s64, v{V_PF+3}
        s_mul_i32 s82, s2, 7168''')
        pfl=[]
        if 'x' in cfg.x['pf']: pfl.append([f'buffer_load_dword v50, v{V_PF}, {srd(S_X)}, s80 offen'])
        if 'w' in cfg.x['pf']: pfl.append([f'buffer_load_dword v50, v{V_PF+2}, {srd(S_W1)}, s81 offen'])
        if '2' in cfg.x['pf']: pfl.append([f'buffer_load_dword v50, v{V_PF+3}, {srd(S_W2)}, s82 offen'])
        pos=cfg.x.get('pfpos',32)
        for g_ in pfl: a.bg.insert(pos,(g_,None)); pos+=1
    a.bg_set(cfg.bg1)
    V_B1C=60; V_B1S=68; V_TC=76; V_TS=80; V_A2=84; V_A2N=88; T0=92; TA=100
    a.e(f'''s_lshl_b32 s67, {wv}, 4
    v_add_u32 v{T0}, s67, v1
    v_cvt_f32_u32 v{T0}, v{T0}
    v_mul_f32 v{T0+1}, {fl(1/64)}, v{T0}
    v_lshlrev_b32 v{T0+2}, 2, v2
    v_cvt_f32_u32 v{T0+2}, v{T0+2}
    v_mul_f32 v{T0+3}, v{T0+2}, v{T0+1}''')
    for ks in range(2):
        for hh in range(2):
            angles(a,[(T0+1,T0+3,32*ks+16*hh+u,(None,None,None),True) for u in range(4)],TA)
            for d in range(2):
                a.e(f'v_cvt_pk_bf16_f32 v{V_B1C+4*ks+2*hh+d}, v{TA+4+2*d}, v{TA+5+2*d}')
                a.e(f'v_cvt_pk_bf16_f32 v{V_B1S+4*ks+2*hh+d}, v{TA+8+2*d}, v{TA+9+2*d}')
    a.e(f'''v_and_b32 v{T0+4}, 1, v2
    v_lshlrev_b32 v{T0+4}, 2, v{T0+4}
    v_cvt_f32_u32 v{T0+4}, v{T0+4}
    v_mul_f32 v{T0+5}, {fl(1/512)}, v{T0}
    v_mul_f32 v{T0+6}, v{T0+4}, v{T0+5}''')
    angles(a,[(T0+5,T0+6,r,(V_TC+r,V_TS+r,None),True) for r in range(4)],TA)
    a.e(f'''v_lshrrev_b32 v{T0+5}, 2, v1
    v_cvt_f32_u32 v{T0+5}, v{T0+5}
    v_mul_f32 v{T0+5}, {fl(1/8)}, v{T0+5}
    v_and_b32 v{T0+6}, 1, v1
    v_cvt_f32_u32 v{T0+6}, v{T0+6}
    v_mul_f32 v{T0+6}, {fl(0.25)}, v{T0+6}
    v_fma_f32 v{T0+6}, v{T0+4}, v{T0+5}, v{T0+6}
    v_lshrrev_b32 v{T0+7}, 1, v1
    v_and_b32 v{T0+7}, 1, v{T0+7}
    v_lshrrev_b32 v{T0}, 1, v2
    v_cmp_eq_u32 s[68:69], v{T0+7}, v{T0}
    v_and_b32 v{T0+7}, 13, v1
    v_cmp_eq_u32 vcc, 1, v{T0+7}''')
    a.e('s_and_b64 s[70:71], vcc, s[68:69]')
    angles(a,[(T0+5,T0+6,dw,(None,None,None),False) for dw in range(4)],TA)
    for dw in range(4): a.e(f'v_cvt_pk_bf16_f32 v{TA+dw}, v{TA+4+dw}, v{TA+8+dw}')
    a.e(f'v_mov_b32 v{TA+4}, 0x3f80'); a.e(f'v_mov_b32 v{TA+5}, 0xbf80')
    for dw in range(4):
        a.e(f'v_cndmask_b32 v{V_A2+dw}, 0, v{TA+dw}, s[68:69]')
        a.e(f'v_cndmask_b32 v{V_A2N+dw}, 0, v{TA+4+(dw&1)}, s[70:71]')
    V_XA=112-4
    a.e(f'''v_and_b32 v{T0}, 3, v0
    v_lshrrev_b32 v{T0+1}, 1, v{T0}
    v_mul_u32_u24 v{V_XA}, {XA_PITCH}, v{T0+1}
    v_and_b32 v{T0}, 1, v{T0}
    v_lshlrev_b32 v{T0}, 3, v{T0}
    v_lshrrev_b32 v{T0+1}, 2, v1
    v_lshl_add_u32 v{T0+1}, v2, 2, v{T0+1}
    v_lshlrev_b32 v{T0+1}, 4, v{T0+1}
    v_add3_u32 v{V_XA}, v{V_XA}, v{T0}, v{T0+1}
    v_add_u32 v{V_XA}, {XA_BASE}, v{V_XA}
    s_mul_i32 s72, {wv}, {2*XA_PITCH}
    s_add_u32 s72, s72, {XA_BASE}
    v_add_u32 v{V_XA+1}, s72, v{V_L16}''')
    stamp(a,cfg,0)
    a.wait_vm(tok_xa); a.e('s_barrier')
    stamp(a,cfg,1)
    a.bg_set(cfg.bg2)
    V_AF=112; V_GX=144; V_GW=184; V_D1C=152; V_D1S=168
    for pi in range(4):
        for ks in range(2):
            for hh in range(2):
                a.e(f'ds_read_b64_tr_b16 {vr(V_AF+8*pi+4*ks+2*hh,2)}, v{V_XA} offset:{pi*2*XA_PITCH+ks*512+hh*256}')
        if pi==1: lg_01=a.lgtok()
    lg_af=a.lgtok()
    a.e(f'ds_read_b128 {vr(V_GX,4)}, v{V_XA+1}')
    a.e(f'ds_read_b128 {vr(V_GX+4,4)}, v{V_XA+1} offset:{XA_PITCH}')
    a.e(f'v_add_u32 v{T0}, {GW_LDS}, v{V_L16}')
    a.e(f'ds_read_b128 {vr(V_GW,4)}, v{T0}')
    lg_gx=a.lgtok()
    for pi in range(4):
        if pi==0: a.wait_lg(lg_01)
        if pi==2: a.wait_lg(lg_af)
        for ks in range(2):
            A=vr(V_AF+8*pi+4*ks,4); c=vr(V_D1C+4*pi,4); s=vr(V_D1S+4*pi,4)
            a.e(f'v_mfma_f32_16x16x32_bf16 {c}, {A}, {vr(V_B1C+4*ks,4)}, {c if ks else 0}')
            a.e(f'v_mfma_f32_16x16x32_bf16 {s}, {A}, {vr(V_B1S+4*ks,4)}, {s if ks else 0}')
    a.wait_lg(lg_gx)
    V_Z=T0+2; V_GOUT=T0+4
    for d in range(4):
        for rr in range(2):
            a.e(f'v_dot2_f32_bf16 v{V_Z+rr}, v{V_GX+4*rr+d}, v{V_GW+d}, {("v%d"%(V_Z+rr)) if d else 0}')
    TT=TA
    V_B2=V_AF
    red=[('row_shr:1 row_mask:0xf bank_mask:0xf bound_ctrl:1'),('row_shr:2 row_mask:0xf bank_mask:0xf bound_ctrl:1'),
         ('row_shr:4 row_mask:0xf bank_mask:0xf bound_ctrl:1'),('row_shr:8 row_mask:0xf bank_mask:0xf bound_ctrl:1'),
         ('row_bcast:15 row_mask:0xa bank_mask:0xf'),('row_bcast:31 row_mask:0xc bank_mask:0xf')]
    ri=0
    for pi in range(4):
        cmul_pack(a,V_D1C+4*pi,V_D1S+4*pi,V_TC,V_TS,V_B2+4*pi,TT)
        for _ in range(2 if pi<2 else 1):
            for rr in range(2): a.e(f'v_add_f32_dpp v{V_Z+rr}, v{V_Z+rr}, v{V_Z+rr} {red[ri]}')
            ri+=1
    V_D2=V_D1C; V_D2N=V_D1S
    for pi in range(4):
        a.e(f'v_mfma_f32_16x16x32_bf16 {vr(V_D2+4*pi,4)}, {vr(V_A2,4)}, {vr(V_B2+4*pi,4)}, 0')
        a.e(f'v_mfma_f32_16x16x32_bf16 {vr(V_D2N+4*pi,4)}, {vr(V_A2N,4)}, {vr(V_B2+4*pi,4)}, 0')
    for rr in range(2): a.e(f'v_mul_f32 v{V_Z+rr}, {fl(-LOG2E)}, v{V_Z+rr}')
    for rr in range(2): a.e(f'v_exp_f32 v{V_Z+rr}, v{V_Z+rr}')
    V_BRAW=40+12
    V_BRAW=224
    a.e(f'''v_lshlrev_b32 v{T0}, 3, v2
    s_lshl_b32 s72, s48, 5
    s_add_u32 s73, s72, {B1_LDS}
    v_add_u32 v{T0+1}, s73, v{T0}
    s_cmp_eq_u32 s48, 0
    s_cselect_b32 s73, 192, 0
    s_add_u32 s73, s73, {B1_LDS}
    v_add_u32 v{T0}, s73, v{T0}''')
    for t in range(6): a.e(f'ds_read_b64 {vr(V_BRAW+2*t,2)}, v{T0+1} offset:{32*t}')
    a.e(f'ds_read_b64 {vr(V_BRAW+12,2)}, v{T0}')
    lg_b=a.lgtok()
    for rr in range(2): a.e(f'v_add_f32 v{V_Z+rr}, 1.0, v{V_Z+rr}')
    for rr in range(2): a.e(f'v_rcp_f32 v{V_GOUT+rr}, v{V_Z+rr}')
    a.e(f'''s_cmp_eq_u32 {wv}, 0
    s_cselect_b32 s74, 1, 0
    s_mov_b32 s75, 0''')
    V_TO=V_GX
    for pi in range(4):
        for rho in range(2):
            re=V_D2+4*pi+2*rho; im=re+1
            a.e(f'v_cndmask_b32 v{im}, v{im}, v{V_D2N+4*pi+2*rho+1}, s[74:75]')
            a.e(f'v_cvt_pk_bf16_f32 v{V_TO+2*pi+rho}, v{re}, v{im}')
    a.bg_flush()
    stamp(a,cfg,17); cstamp(a,cfg,46)
    a.e(f'''v_lshlrev_b32 v{T0}, 6, v2
    v_add3_u32 v{T0}, v{T0}, v1, s67
    v_lshlrev_b32 v{T0}, 5, v{T0}
    s_lshl_b32 s76, s2, 13
    s_add_u32 s76, s76, {WS_T}
    buffer_store_dwordx4 {vr(V_TO,4)}, v{T0}, {srd(S_WS)}, s76 offen {cfg.f("stT")}
    buffer_store_dwordx4 {vr(V_TO+4,4)}, v{T0}, {srd(S_WS)}, s76 offen offset:16 {cfg.f("stT")}''')
    a.e(f'''s_lshl_b32 s76, s49, 3
    s_lshl_b32 s77, {wv}, 1
    s_add_u32 s76, s76, s77
    s_lshr_b32 s77, s76, 4
    s_lshl_b32 s77, s77, 11
    s_lshr_b32 s78, s50, 4
    s_lshl_b32 s78, s78, 10
    s_add_u32 s77, s77, s78
    s_lshr_b32 s78, s76, 2
    s_and_b32 s78, s78, 3
    s_lshl_b32 s78, s78, 8
    s_add_u32 s77, s77, s78
    s_and_b32 s78, s50, 15
    s_lshl_b32 s78, s78, 4
    s_add_u32 s77, s77, s78
    s_and_b32 s78, s76, 3
    s_lshl_b32 s78, s78, 2
    s_add_u32 s77, s77, s78
    s_add_u32 s77, s77, {WS_G}
    v_mov_b32 v{T0+1}, 0
    s_mov_b32 exec_lo, 0
    s_mov_b32 exec_hi, 0x80000000
    buffer_store_dwordx2 {vr(V_GOUT,2)}, v{T0+1}, {srd(S_WS)}, s77 offen {cfg.f("stG")}
    s_mov_b64 exec, -1''')
    a.e(f'''s_xor_b32 s76, {wv}, 1
    s_or_b32 s76, s76, s2
    s_cmp_eq_u32 s76, 0
    s_cselect_b32 s76, 0, {OOB}
    v_lshlrev_b32 v{T0+2}, 7, v0
    v_add_u32 v{T0+2}, s76, v{T0+2}
    v_mov_b32 v{T0+3}, 0
    s_mov_b32 s76, {WS_CNT}
    s_mov_b32 exec_hi, 0
    buffer_store_dword v{T0+3}, v{T0+2}, {srd(S_WS)}, s76 offen sc1
    s_mov_b32 exec_hi, -1''')
    a.e(f's_cmp_lg_u32 {wv}, 3'); a.e('s_cbranch_scc1 L_a_w3')
    a.wait_vm(tok_role); a.cond_begin()
    V_WP=188
    a.e('s_mov_b32 s78, 0x05040100'); a.e('s_mov_b32 s79, 0x07060302')
    for kk in range(8):
        for r in range(4):
            a.e(f'v_perm_b32 v{V_WP+4*kk+r}, v{V_WI+4*r+(kk>>1)}, v{V_WR+4*r+(kk>>1)}, s{78+(kk&1)}')
    a.e(f'''v_and_b32 v{T0+4}, 3, v0
    v_lshlrev_b32 v{T0+5}, 16, v{T0+4}
    v_lshrrev_b32 v{T0+6}, 2, v0
    v_lshl_add_u32 v{T0+5}, v{T0+6}, 4, v{T0+5}
    s_lshl_b32 s76, s49, 2
    v_add_u32 v{T0+4}, s76, v{T0+4}
    v_cmp_eq_u32 vcc, 0, v{T0+4}
    v_mov_b32 v{T0+6}, {OOB}
    v_cndmask_b32 v{T0+6}, v{T0+5}, v{T0+6}, vcc
    s_lshl_b32 s76, s49, 18
    s_add_u32 s76, s76, s63
    s_add_u32 s76, s76, {WS_WT}''')
    for kk in range(8):
        a.e(f'buffer_store_dwordx4 {vr(V_WP+4*kk,4)}, v{T0+6 if kk==0 else T0+5}, {srd(S_WS)}, s76 offen {cfg.f("stW")}')
        if kk<7: a.e('s_add_u32 s76, s76, 8192')
    a.cond_end(); a.e('L_a_w3:')
    a.e('s_cmp_lg_u32 s66, 0'); a.e('s_cbranch_scc1 L_a_w2')
    a.wait_vm(tok_role); a.cond_begin()
    for n in range(8): a.e(f'v_lshlrev_b32 v{V_SP+n}, 16, v{V_SP+n}')
    s=V_SP; t=V_B1S
    a.e(f'''v_add_f32 v{t}, v{s}, v{s+2}
    v_add_f32 v{t+1}, v{s+1}, v{s+3}
    v_sub_f32 v{t+2}, v{s+4}, v{s+6}
    v_sub_f32 v{t+3}, v{s+5}, v{s+7}
    v_add_f32 v{t+4}, v{t}, v{t+1}
    v_add_f32 v{t+5}, v{t+2}, v{t+3}
    v_sub_f32 v{t+6}, v{t}, v{t+1}
    v_sub_f32 v{t+7}, v{t+2}, v{t+3}
    v_mul_f32 v{t+4}, {fl(0.25)}, v{t+4}
    v_mul_f32 v{t+5}, {fl(0.25)}, v{t+5}
    v_mul_f32 v{t+6}, {fl(0.25)}, v{t+6}
    v_mul_f32 v{t+7}, {fl(0.25)}, v{t+7}
    v_cvt_pk_bf16_f32 v{t}, v{t+4}, v{t+5}
    v_cvt_pk_bf16_f32 v{t+1}, v{t+6}, v{t+7}
    v_lshlrev_b32 v{t+2}, 4, v1
    v_lshl_add_u32 v{t+2}, v2, 2, v{t+2}
    s_add_u32 s77, s63, {WS_QT}
    s_add_u32 s76, s63, {WS_WT}
    buffer_store_dword v{t}, v{t+2}, {srd(S_WS)}, s76 offen {cfg.f("stW")}
    buffer_store_dword v{t+1}, v{t+2}, {srd(S_WS)}, s77 offen {cfg.f("stW")}''')
    a.cond_end(); a.e('L_a_w2:')
    stamp(a,cfg,18)
    V_BIAS=112; V_ACC=144; V_WF=200; V_XF=8
    V_XR=24
    V_VA=30
    a.wait_lg(lg_b)
    for t in range(7):
        for d in range(2):
            raw=V_BRAW+2*t+d
            a.e(f'v_lshlrev_b32 v{V_BIAS+4*t+2*d}, 16, v{raw}')
            a.e(f'v_and_b32 v{V_BIAS+4*t+2*d+1}, 0xffff0000, v{raw}')
    a.e(f'''s_lshl_b32 s76, {wv}, 12
    v_lshlrev_b32 v{T0}, 7, v1
    v_add_u32 v{T0}, s76, v{T0}
    v_lshrrev_b32 v{T0+1}, 1, v1
    v_xor_b32 v{T0+1}, v{T0+1}, v2
    v_lshl_add_u32 v{V_XR}, v{T0+1}, 4, v{T0}
    v_xor_b32 v{T0+1}, 4, v{T0+1}
    v_lshl_add_u32 v{V_XR+1}, v{T0+1}, 4, v{T0}
    v_mul_u32_u24 v{V_VA}, 1920, v2
    v_lshrrev_b32 v{T0}, 2, v1
    v_mul_u32_u24 v{T0}, 224, v{T0}
    v_and_b32 v{T0+1}, 3, v0
    v_lshlrev_b32 v{T0+1}, 3, v{T0+1}
    v_add3_u32 v{V_VA}, v{V_VA}, v{T0}, v{T0+1}
    v_add_u32 v{V_VA}, 16384, v{V_VA}
    s_cmp_eq_u32 s48, 0
    s_cselect_b32 s76, 192, 0
    v_add_u32 v{V_VA+1}, s76, v{V_VA}
    s_lshl_b32 s76, s48, 5
    v_add_u32 v{V_VA}, s76, v{V_VA}''')
    for st_ in (1,2):
        for j in range(2):
            a.e(f'v_add_u32 v{V_XR+2*st_+j}, {2*st_*SLOT}, v{V_XR+j}')
            a.e(f'v_add_u32 v{V_VA+2*st_+j}, {2*st_*SLOT}, v{V_VA+j}')
    def slot_set(c):
        j=c%5; return (j//2, (j%2)*SLOT)
    def x_reads(s):
        c,kk=s//2,s%2; st_,off=slot_set(c)
        for nb in range(2):
            a.e(f'ds_read_b128 {vr(V_XF+8*(s%2)+4*nb,4)}, v{V_XR+2*st_+kk} offset:{off+2048*nb}')
    def w_reads(s,t):
        c,kk=s//2,s%2; st_,off=slot_set(c)
        va=V_VA+2*st_+(1 if t==6 else 0)
        o=off+kk*7680+(32*t if t<6 else 0)
        for hh in range(2):
            a.e(f'ds_read_b64_tr_b16 {vr(V_WF+4*t+2*hh,2)}, v{va} offset:{o+960*hh}')
    a.wait_vm(tok_c[0]); a.e('s_barrier')
    if not cfg.x.get('g1_nodma'): push_chunk(4)
    else:
        for c_ in range(4,8): tok_c[c_]=a.vmtok()
    a.bg_set(cfg.bg3,mfma_weight=2)
    stamp(a,cfg,3); cstamp(a,cfg,40)
    def w_read1(s,t,hh):
        c,kk=s//2,s%2; st_,off=slot_set(c)
        va=V_VA+2*st_+(1 if t==6 else 0)
        o=off+kk*7680+(32*t if t<6 else 0)
        a.e(f'ds_read_b64_tr_b16 {vr(V_WF+4*t+2*hh,2)}, v{va} offset:{o+960*hh}')
        return a.lgtok()
    def x_read1(s,nb):
        c,kk=s//2,s%2; st_,off=slot_set(c)
        a.e(f'ds_read_b128 {vr(V_XF+8*(s%2)+4*nb,4)}, v{V_XR+2*st_+kk} offset:{off+2048*nb}')
        return a.lgtok()
    tw={}; tx={}
    for nb in range(2): tx[(0,nb)]=x_read1(0,nb)
    for t in range(7):
        for hh in range(2): tw[(0,t,hh)]=w_read1(0,t,hh)
    for s in range(16):
        c=s//2
        for t in range(7):
            need=max(tw[(s,t,1)],tx[(s,1)])
            n=a.lg-need
            if n<15: a.e(f's_waitcnt lgkmcnt({n})')
            else: a.e('s_waitcnt lgkmcnt(15)')
            for nb in range(2):
                acc=vr(V_ACC+28*nb+4*t,4)
                cc=acc if s>0 else vr(V_BIAS+4*t,4)
                a.e(f'v_mfma_f32_16x16x32_bf16 {acc}, {vr(V_WF+4*t,4)}, {vr(V_XF+8*(s%2)+4*nb,4)}, {cc}')
                if nb==0 and t==1 and s%2==1 and s<15:
                    if (c+1) not in tok_c: a.bg_flush()
                    if cfg.fine: stamp(a,cfg,32+2*c)
                    a.wait_vm(tok_c[c+1])
                    if not cfg.x.get('g1_nobar'): a.e('s_barrier')
                    if cfg.fine: stamp(a,cfg,33+2*c)
                    if c==3:
                        a.e('s_and_b32 s92, s5, 3'); a.e('s_lshl_b32 s92, s92, 6')
                        signal(a,S_DBG,'s92')
                    if c>=1 and c+4<8 and not cfg.x.get('g1_nodma'): push_chunk(c+4)
                ps,pt=(s+1,t-1) if t>=1 else (s,6)
                if (t>=1 and s<15) or (t==0 and 1<=s<=15 and (s,6,nb) not in tw):
                    tw[(ps,pt,nb)]=w_read1(ps,pt,nb)
                if t==2 and s<15: tx[(s+1,nb)]=x_read1(s+1,nb)
    a.bg_flush()
    a.e('s_barrier')
    stamp(a,cfg,4); cstamp(a,cfg,41)
    g2_ids(a,cfg,ctx)
    for t in range(8): push_w2(a,cfg,ctx,t)
    a.bg_set(cfg.bg4)
    V_E=V_WF; V_O=112
    a.e(f's_mov_b32 s84, {fl(LOG2E)}'); a.e(f's_mov_b32 s85, {fl(LOG2E)}'); a.e(f's_mov_b32 s86, {fl(30.0)}')
    pairs=[(V_ACC+28*nb+4*t+2*d, V_O+14*nb+2*t+d) for nb in range(2) for t in range(7) for d in range(2)]
    G=4
    for g0 in range(0,len(pairs),G):
        grp=pairs[g0:g0+G]
        Tq=lambda i: V_E+4*i
        for i,(h,o) in enumerate(grp): a.e(f'v_pk_mul_f32 {vr(Tq(i),2)}, {vr(h,2)}, s[84:85]')
        for i,(h,o) in enumerate(grp):
            a.e(f'v_min_f32 v{Tq(i)}, s86, v{Tq(i)}'); a.e(f'v_min_f32 v{Tq(i)+1}, s86, v{Tq(i)+1}')
        for i,(h,o) in enumerate(grp):
            a.e(f'v_exp_f32 v{Tq(i)}, v{Tq(i)}'); a.e(f'v_exp_f32 v{Tq(i)+1}, v{Tq(i)+1}')
        for i,(h,o) in enumerate(grp): a.e(f'v_pk_add_f32 {vr(Tq(i)+2,2)}, {vr(Tq(i),2)}, 2.0 op_sel_hi:[1,0]')
        for i,(h,o) in enumerate(grp): a.e(f'v_pk_mul_f32 {vr(Tq(i),2)}, {vr(Tq(i),2)}, {vr(Tq(i)+2,2)}')
        for i,(h,o) in enumerate(grp): a.e(f'v_pk_add_f32 {vr(Tq(i)+2,2)}, {vr(Tq(i),2)}, 2.0 op_sel_hi:[1,0]')
        for i,(h,o) in enumerate(grp):
            a.e(f'v_rcp_f32 v{Tq(i)+2}, v{Tq(i)+2}'); a.e(f'v_rcp_f32 v{Tq(i)+3}, v{Tq(i)+3}')
        for i,(h,o) in enumerate(grp): a.e(f'v_pk_mul_f32 {vr(Tq(i),2)}, {vr(Tq(i),2)}, {vr(Tq(i)+2,2)}')
        for i,(h,o) in enumerate(grp): a.e(f'v_pk_mul_f32 {vr(Tq(i),2)}, {vr(Tq(i),2)}, {vr(h,2)}')
        for i,(h,o) in enumerate(grp): a.e(f'v_cvt_pk_bf16_f32 v{o}, v{Tq(i)}, v{Tq(i)+1}')
    a.bg_flush(); a.bg_set(0)
    ctx['V_O']=V_O
    stamp(a,cfg,5); cstamp(a,cfg,42)

def act_stores(a,cfg,ctx):
    V_O=ctx['V_O']; T0=6
    a.e(f'''s_mul_i32 s86, s7, 7
    s_add_u32 s86, s86, s48
    s_lshr_b32 s86, s86, 1
    s_lshl_b32 s87, s86, 12
    s_mul_i32 s88, s6, {2*RT_STRIDE}
    s_lshl_b32 s89, s{S_WV}, 10
    s_add_u32 s88, s88, s89
    s_add_u32 s88, s88, {WS_ACT}
    s_add_u32 s88, s88, s87
    s_mov_b32 s89, {3*4096}
    s_cmp_eq_u32 s48, 0
    s_cselect_b32 s89, s89, {(-4096+512)&0xffffffff}
    s_add_u32 s89, s89, s88
    v_lshlrev_b32 v{T0}, 3, v0''')
    for nb in range(2):
        for pp in range(3):
            a.e(f'buffer_store_dwordx4 {vr(V_O+14*nb+4*pp,4)}, v{V_L16}, {srd(S_WS)}, s88 offen {cfg.f("stA")}')
            a.e('s_add_u32 s88, s88, 4096')
        a.e(f'buffer_store_dwordx2 {vr(V_O+14*nb+12,2)}, v{T0}, {srd(S_WS)}, s89 offen {cfg.f("stA")}')
        if nb==0:
            a.e(f's_add_u32 s88, s88, {RT_STRIDE-3*4096}')
            a.e(f's_add_u32 s89, s89, {RT_STRIDE}')
    ctx['tok_act']=a.vmtok()

P2=dict(V_U=8,V_W=40,V_GT=48,V_Q=56,T0=64,V_F64R=80,V_F64I=96,V_F32R=112,V_F32I=128,V_T1C=144,V_T1S=152,V_T3C=160,V_T3S=168,V_DR=176,V_DI=184,V_B=192)
def p2_loads(a,cfg,ctx):
    wv=f's{S_WV}'; V_W,V_GT,V_Q,T0=P2['V_W'],P2['V_GT'],P2['V_Q'],P2['T0']
    a.e(f'''s_lshl_b32 s56, s4, 5
    s_add_u32 s56, s56, s5''')
    a.e(f'''v_lshrrev_b32 v{T0}, 5, v0
    v_lshlrev_b32 v{T0}, 18, v{T0}
    v_bfe_u32 v{T0+1}, v0, 1, 4
    v_lshl_add_u32 v{T0}, v{T0+1}, 13, v{T0}
    v_and_b32 v{T0+1}, 1, v0
    v_lshl_add_u32 v{T0}, v{T0+1}, 4, v{T0}
    s_lshl_b32 s57, s56, 5
    s_lshl_b32 s58, {wv}, 19
    s_add_u32 s57, s57, s58
    s_add_u32 s57, s57, {WS_T}
    s_lshl_b32 s58, {wv}, 11
    s_add_u32 s58, s58, {TB_BASE}
    s_mov_b32 m0, s58
    s_add_u32 s59, s57, 131072
    buffer_load_dwordx4 v{T0}, {srd(S_WS)}, s57 offen {cfg.f("ldT")} lds
    s_add_u32 s58, s58, 1024
    s_mov_b32 m0, s58
    s_nop 0
    buffer_load_dwordx4 v{T0}, {srd(S_WS)}, s59 offen {cfg.f("ldT")} lds
    s_lshl_b32 s60, s56, 13
    s_lshl_b32 s61, {wv}, 11
    s_add_u32 s60, s60, s61
    s_add_u32 s62, s60, {WS_WT}
    s_add_u32 s63, s61, {WS_G}
    s_add_u32 s64, s61, {WS_QT}''')
    for eh in range(2): a.e(f'buffer_load_dwordx4 {vr(V_W+4*eh,4)}, v{V_L16}, {srd(S_WS)}, s62 offen offset:{1024*eh} {cfg.f("ldW")}')
    for nb in range(2): a.e(f'buffer_load_dwordx4 {vr(V_GT+4*nb,4)}, v{V_L16}, {srd(S_WS)}, s63 offen offset:{1024*nb} {cfg.f("ldW")}')
    a.e(f'''s_cmp_eq_u32 s56, 0
    s_cselect_b32 s65, 0, {OOB}
    v_add_u32 v{T0+2}, s65, v{V_L16}''')
    for eh in range(2): a.e(f'buffer_load_dwordx4 {vr(V_Q+4*eh,4)}, v{T0+2}, {srd(S_WS)}, s64 offen offset:{1024*eh} {cfg.f("ldW")}')
    ctx['tok_w']=a.vmtok()

def p2_tables(a,cfg,ctx):
    p=P2; T0=p['T0']; TA=T0+4+4
    TA=200
    wv=f's{S_WV}'
    a.e(f'''s_lshl_b32 s66, {wv}, 4
    v_add_u32 v{T0}, s66, v1
    v_cvt_f32_u32 v{T0}, v{T0}
    v_lshlrev_b32 v{T0+2}, 2, v2
    v_cvt_f32_u32 v{T0+2}, v{T0+2}
    v_mul_f32 v{T0+1}, {fl(1/64)}, v{T0}
    v_mul_f32 v{T0+3}, v{T0+2}, v{T0+1}''')
    def pk(dr,di):
        def f(c,s):
            a.e(f'v_cvt_pk_bf16_f32 v{dr}, v{c}, v{s}')
            a.e(f'v_cvt_pk_bf16_f32 v{di}, -v{s}, v{c}')
        return f
    angles(a,[(T0+1,T0+3,16*ks+u,(None,None,pk(p['V_F64R']+4*ks+u,p['V_F64I']+4*ks+u)),False) for ks in range(4) for u in range(4)],TA)
    a.e(f'''v_mul_f32 v{T0+1}, {fl(1/2048)}, v{T0}
    v_mul_f32 v{T0+3}, v{T0+2}, v{T0+1}''')
    angles(a,[(T0+1,T0+3,16*mb+r,(p['V_T1C']+4*mb+r,p['V_T1S']+4*mb+r,None),True) for mb in range(2) for r in range(4)],TA)
    a.e(f'v_cvt_f32_u32 v{T0+7}, v1')
    for eh in range(2):
        a.e(f'''v_add_f32 v{T0+1}, {fl(16*eh)}, v{T0+7}
        v_mul_f32 v{T0+1}, {fl(1/32)}, v{T0+1}
        v_mul_f32 v{T0+3}, v{T0+2}, v{T0+1}''')
        angles(a,[(T0+1,T0+3,16*mb+u,(None,None,pk(p['V_F32R']+8*eh+4*mb+u,p['V_F32I']+8*eh+4*mb+u)),False) for mb in range(2) for u in range(4)],TA)
    a.e(f'''v_cvt_f32_u32 v{T0}, s66
    v_add_f32 v{T0+2}, v{T0}, v{T0+2}''')
    for nb in range(2):
        a.e(f'''v_add_f32 v{T0+1}, {fl(16*nb)}, v{T0+7}
        v_mul_f32 v{T0+1}, {fl(1/2048)}, v{T0+1}
        v_mul_f32 v{T0+3}, v{T0+2}, v{T0+1}''')
        angles(a,[(T0+1,T0+3,r,(p['V_T3C']+4*nb+r,p['V_T3S']+4*nb+r,None),True) for r in range(4)],TA)

def p2_compute(a,cfg,ctx):
    p=P2; wv=f's{S_WV}'
    V_U,V_W,V_GT,T0=p['V_U'],p['V_W'],p['V_GT'],p['T0']
    V_F64R,V_F64I,V_F32R,V_F32I=p['V_F64R'],p['V_F64I'],p['V_F32R'],p['V_F32I']
    V_T1C,V_T1S,V_T3C,V_T3S=p['V_T1C'],p['V_T1S'],p['V_T3C'],p['V_T3S']
    V_DR,V_DI,V_B=p['V_DR'],p['V_DI'],p['V_B']; TT=200
    a.e(f'''v_lshrrev_b32 v{T0+4}, 1, v2
    v_lshlrev_b32 v{T0+4}, 5, v{T0+4}
    v_lshl_add_u32 v{T0+4}, v1, 1, v{T0+4}
    v_and_b32 v{T0+5}, 1, v2
    v_add_u32 v{T0+4}, v{T0+4}, v{T0+5}
    v_lshlrev_b32 v{T0+4}, 4, v{T0+4}
    v_add_u32 v{T0+4}, {TB_BASE}, v{T0+4}''')
    for ks in range(4):
        for mb in range(2):
            a.e(f'ds_read_b128 {vr(V_U+16*mb+4*ks,4)}, v{T0+4} offset:{2048*ks+1024*mb}')
    for ks in range(4):
        a.e(f's_waitcnt lgkmcnt({6-2*ks})')
        for mb in range(2):
            A=vr(V_U+16*mb+4*ks,4)
            for (D,Fm) in((V_DR,V_F64R),(V_DI,V_F64I)):
                d=vr(D+4*mb,4)
                a.e(f'v_mfma_f32_16x16x32_bf16 {d}, {A}, {vr(Fm+4*ks,4)}, {d if ks else 0}')
    V_WR=V_U; V_WI=V_U+8
    a.wait_vm(ctx['tok_w'])
    V_WR=216; V_WI=224
    for e in range(8):
        a.e(f'v_lshlrev_b32 v{V_WR+e}, 16, v{V_W+e}')
        a.e(f'v_and_b32 v{V_WI+e}, 0xffff0000, v{V_W+e}')
    for mb in range(2): cmul_pack(a,V_DR+4*mb,V_DI+4*mb,V_T1C+4*mb,V_T1S+4*mb,V_B+4*mb,TT)
    for mb in range(2):
        for eh in range(2):
            for (D,Fm) in((V_DR,V_F32R),(V_DI,V_F32I)):
                d=vr(D+4*eh,4)
                a.e(f'v_mfma_f32_16x16x32_bf16 {d}, {vr(Fm+8*eh+4*mb,4)}, {vr(V_B+4*mb,4)}, {d if mb else 0}')
    for e in range(8): a.e(f'v_mul_f32 v{V_GT+e}, {fl(2.0**-19)}, v{V_GT+e}')
    a.e('s_cmp_lg_u32 s56, 0')
    a.e('s_cbranch_scc0 L_p2_special')
    for eh in range(2): cmul_pack(a,V_DR+4*eh,V_DI+4*eh,V_WR+4*eh,V_WI+4*eh,V_B+4*eh,TT,negim=True)
    a.e('L_p2_join:')
    for ks in range(2):
        for nb in range(2):
            for (D,Fm) in((V_DR,V_F32R),(V_DI,V_F32I)):
                d=vr(D+4*nb,4)
                a.e(f'v_mfma_f32_16x16x32_bf16 {d}, {vr(V_B+4*ks,4)}, {vr(Fm+8*nb+4*ks,4)}, {d if ks else 0}')
    a.e(f'''s_lshl_b32 s65, {wv}, 11
    s_add_u32 s65, s65, {XB_BASE}
    v_add_u32 v{T0+4}, s65, v{V_L16}
    v_add_u32 v{T0+5}, {XB_BASE}, v{V_L16}''')
    for nb in range(2):
        cmul_pack(a,V_DR+4*nb,V_DI+4*nb,V_T3C+4*nb,V_T3S+4*nb,V_B+4*nb,TT)
        a.e(f'ds_write_b128 v{T0+4}, {vr(V_B+4*nb,4)} offset:{1024*nb}')
    a.e('s_waitcnt lgkmcnt(0)'); a.e('s_barrier')
    V_X=V_U
    for ks in range(4):
        for nb in range(2):
            a.e(f'ds_read_b128 {vr(V_X+8*ks+4*nb,4)}, v{T0+5} offset:{2048*ks+1024*nb}')
    for ks in range(4):
        a.e(f's_waitcnt lgkmcnt({6-2*ks})')
        for nb in range(2):
            for (D,Fm) in((V_DR,V_F64R),(V_DI,V_F64I)):
                d=vr(D+4*nb,4)
                a.e(f'v_mfma_f32_16x16x32_bf16 {d}, {vr(Fm+4*ks,4)}, {vr(V_X+8*ks+4*nb,4)}, {d if ks else 0}')
    a.e(f's_add_u32 s62, s60, {WS_Y}')
    for nb in range(2):
        for h in range(2):
            a.e(f'v_pk_mul_f32 {vr(V_DR+4*nb+2*h,2)}, {vr(V_DR+4*nb+2*h,2)}, {vr(V_GT+4*nb+2*h,2)}')
            a.e(f'v_pk_mul_f32 {vr(V_DI+4*nb+2*h,2)}, {vr(V_DI+4*nb+2*h,2)}, {vr(V_GT+4*nb+2*h,2)}')
        for r in range(4): a.e(f'v_cvt_pk_bf16_f32 v{V_B+4*nb+r}, v{V_DR+4*nb+r}, v{V_DI+4*nb+r}')
        a.e(f'buffer_store_dwordx4 {vr(V_B+4*nb,4)}, v{V_L16}, {srd(S_WS)}, s62 offen offset:{1024*nb} {cfg.f("stY")}')
    ctx['tok_y']=a.vmtok()

def p2_special(a,cfg,ctx):
    p=P2; wv=f's{S_WV}'
    V_U,V_Q,T0,V_DR,V_DI,V_B=p['V_U'],p['V_Q'],p['T0'],p['V_DR'],p['V_DI'],p['V_B']
    V_WR=216; V_WI=224
    a.e('L_p2_special:')
    a.cond_begin()
    V_J=T0+8; V_ZA=V_U+16
    a.e(f'''s_lshl_b32 s65, {wv}, 4
    v_lshlrev_b32 v{V_J}, 8, v2
    v_add3_u32 v{V_J}, v{V_J}, v1, s65''')
    for eh in range(2):
        for r in range(4):
            n=1024*eh+64*r
            a.e(f'v_add_u32 v{T0}, {n}, v{V_J}')
            a.e(f'v_lshlrev_b32 v{T0}, 3, v{T0}')
            a.e(f'v_add_u32 v{T0}, {ZR_BASE}, v{T0}')
            a.e(f'v_mov_b32 v{T0+2}, v{V_DR+4*eh+r}')
            a.e(f'v_mov_b32 v{T0+3}, v{V_DI+4*eh+r}')
            a.e(f'ds_write_b64 v{T0}, {vr(T0+2,2)}')
    a.e('s_waitcnt lgkmcnt(0)'); a.e('s_barrier')
    for eh in range(2):
        for r in range(4):
            n=1024*eh+64*r
            a.e(f'v_sub_u32 v{T0}, {2048-n}, v{V_J}')
            a.e(f'v_and_b32 v{T0}, 2047, v{T0}')
            a.e(f'v_lshlrev_b32 v{T0}, 3, v{T0}')
            a.e(f'v_add_u32 v{T0}, {ZR_BASE}, v{T0}')
            a.e(f'ds_read_b64 {vr(V_ZA+2*(4*eh+r),2)}, v{T0}')
    a.e('s_waitcnt lgkmcnt(0)')
    for e in range(8):
        zr=V_DR+e; zi=V_DI+e; pr=V_WR+e; pi=V_WI+e; ar_=V_ZA+2*e; ai=ar_+1
        qr=T0; qi=T0+1; yr=T0+2; yi=T0+3
        a.e(f'''v_lshlrev_b32 v{qr}, 16, v{V_Q+e}
        v_and_b32 v{qi}, 0xffff0000, v{V_Q+e}
        v_mul_f32 v{yr}, v{zr}, v{pr}
        v_fma_f32 v{yr}, -v{zi}, v{pi}, v{yr}
        v_fma_f32 v{yr}, v{ar_}, v{qr}, v{yr}
        v_fma_f32 v{yr}, v{ai}, v{qi}, v{yr}
        v_mul_f32 v{yi}, v{zr}, v{pi}
        v_fma_f32 v{yi}, v{zi}, v{pr}, v{yi}
        v_fma_f32 v{yi}, v{ar_}, v{qi}, v{yi}
        v_fma_f32 v{yi}, -v{ai}, v{qr}, v{yi}
        v_cvt_pk_bf16_f32 v{V_B+e}, v{yr}, -v{yi}''')
    a.cond_end()
    a.e('s_branch L_p2_join')

V_W2D=244
V_W2A=240
A_R=0; ADEPTH=8
V_GF=80; GT0=144; V_ACC2=160; V_Y=16; V_G2=8; V_AF2=224
def g2_ids(a,cfg,ctx):
    wv=f's{S_WV}'
    a.e(f"""s_lshl_b32 s67, s4, 2
    s_lshr_b32 s68, s5, 3
    s_add_u32 s67, s67, s68
    s_and_b32 s68, s5, 7
    s_mul_i32 s69, s67, {RT_STRIDE}
    s_mul_i32 s70, {wv}, {14*4096}
    s_add_u32 s69, s69, s70
    s_add_u32 s69, s69, {WS_ACT}
    s_mul_i32 s70, {wv}, {14*32*1024}
    s_lshl_b32 s71, s68, 7
    s_add_u32 s70, s70, s71
    s_lshl_b32 s71, {wv}, 15
    s_lshr_b32 s72, s67, 1
    s_and_b32 s73, s67, 1
    s_lshr_b32 s74, s72, 2
    s_lshl_b32 s74, s74, 11
    s_lshl_b32 s75, s73, 10
    s_add_u32 s74, s74, s75
    s_and_b32 s75, s72, 3
    s_lshl_b32 s75, s75, 8
    s_add_u32 s74, s74, s75""")
    T=6
    a.e(f"""v_lshrrev_b32 v{T}, 3, v0
    v_lshlrev_b32 v{V_W2D}, 10, v{T}
    v_lshrrev_b32 v{T}, 1, v{T}
    v_and_b32 v{T}, 3, v{T}
    v_bfe_u32 v{T+1}, v0, 1, 2
    v_xor_b32 v{T}, v{T}, v{T+1}
    v_lshlrev_b32 v{T}, 1, v{T}
    v_and_b32 v{T+1}, 1, v0
    v_add_u32 v{T}, v{T}, v{T+1}
    v_lshl_add_u32 v{V_W2D}, v{T}, 4, v{V_W2D}""")
    a.e(f"""v_lshrrev_b32 v{T}, 2, v1
    v_lshl_add_u32 v{T+1}, v2, 2, v{T}
    v_lshlrev_b32 v{V_W2A}, 7, v{T+1}
    v_lshrrev_b32 v{T+1}, 1, v{T+1}
    v_and_b32 v{T+1}, 3, v{T+1}
    v_and_b32 v{T}, 3, v0
    v_lshl_add_u32 v{V_W2A}, v{T}, 3, v{V_W2A}
    v_add_u32 v{V_W2A}, s71, v{V_W2A}""")
    for c in (3,2,1,0):
        a.e(f'v_xor_b32 v{T}, {c}, v{T+1}')
        a.e(f'v_lshl_add_u32 v{V_W2A+c}, v{T}, 5, v{V_W2A}')
    ctx['toks']={}; ctx['tokw']={}

def push_w2(a,cfg,ctx,t):
    for v in range(4):
        cb=(lambda t=t: ctx['tokw'].__setitem__(t,a.vmtok())) if v==3 else None
        a.bg_push([f's_add_u32 m0, s71, {(t%8)*4096+v*1024}', f's_add_u32 s55, s70, {(32*t+8*v)*1024}',
                   f'buffer_load_dwordx4 v{V_W2D}, {srd(S_W2)}, s55 offen lds'],cb)

def g2_aloads(a,cfg,ctx,t):
    b=A_R+16*(t%ADEPTH); sc=cfg.f('ldA')
    if t in(3,10):
        for q in range(4):
            a.e(f'buffer_load_dwordx2 {ar(b+4*q,2)}, v4, {srd(S_WS)}, s69 offen offset:{1024*q} {sc}')
            a.e(f'buffer_load_dwordx2 {ar(b+4*q+2,2)}, v4, {srd(S_WS)}, s69 offen offset:{1024*q+512} {sc}')
    else:
        for q in range(4):
            a.e(f'buffer_load_dwordx4 {ar(b+4*q,4)}, v{V_L16}, {srd(S_WS)}, s69 offen offset:{1024*q} {sc}')
    a.e('s_add_u32 s69, s69, 4096')
    ctx['toks'][t]=a.vmtok()

G_ITEMS=[(psi,c,u) for psi in range(4) for c in range(4) for u in range(4)]
def g_init(a,cfg,ctx):
    T0=GT0; wv=f's{S_WV}'
    a.e(f"""s_lshl_b32 s75, s68, 6
    v_add_u32 v{T0}, s75, v1
    v_cvt_f32_u32 v{T0}, v{T0}
    s_lshl_b32 s75, {wv}, 6
    v_lshlrev_b32 v{T0+1}, 2, v2
    v_add_u32 v{T0+1}, s75, v{T0+1}
    v_cvt_f32_u32 v{T0+1}, v{T0+1}""")
    for c in range(4):
        a.e(f'v_add_f32 v{T0+2+c}, {fl(16*c)}, v{T0}' if c else f'v_mov_b32 v{T0+2}, v{T0}')
        a.e(f'v_mul_f32 v{T0+2+c}, {fl(1/512)}, v{T0+2+c}')
        a.e(f'v_mul_f32 v{T0+6+c}, v{T0+1}, v{T0+2+c}')
TA_G=64
def g_gen(a,items):
    T0=GT0
    def pk(d):
        return lambda c,s: a.e(f'v_cvt_pk_bf16_f32 v{d}, v{c}, v{s}')
    angles(a,[(T0+2+c,T0+6+c,16*psi+u,(None,None,pk(V_GF+16*psi+4*c+u)),False) for (psi,c,u) in items],TA_G)
def g_fix0(a):
    a.e(f"""s_cmp_eq_u32 s{S_WV}, 0
    s_cselect_b32 s76, 0xffff, 0
    s_mov_b32 s77, 0""")
    a.e(f'v_mov_b32 v{GT0+10}, {hex(0xBF003F00)}')
    a.e(f"""v_and_b32 v{GT0+11}, 1, v1
    v_lshlrev_b32 v{GT0+11}, 31, v{GT0+11}
    v_xor_b32 v{GT0+10}, v{GT0+10}, v{GT0+11}""")
    for c in range(4):
        a.e(f'v_cndmask_b32 v{V_GF+4*c}, v{V_GF+4*c}, v{GT0+10}, s[76:77]')

def g2_main(a,cfg,ctx,gi):
    wv=f's{S_WV}'; toks=ctx['toks']; tokw=ctx['tokw']; V_ACC=V_ACC2; V_G=V_G2
    a.e(f"""v_lshlrev_b32 v5, 4, v1
    s_add_u32 s75, s74, {WS_G}
    buffer_load_dwordx4 {vr(V_G,4)}, v5, {srd(S_WS)}, s75 offen {cfg.f("ldW")}
    v_lshlrev_b32 v6, 15, v2
    v_add_u32 v6, v6, v5
    s_lshl_b32 s78, {wv}, 19
    s_add_u32 s78, s78, s74
    s_add_u32 s78, s78, {WS_Y}""")
    def yloads(psi):
        for u in range(4):
            a.e(f's_add_u32 s79, s78, {(16*psi+u)*8192}')
            a.e(f'buffer_load_dwordx4 {vr(V_Y+16*psi+4*u,4)}, v6, {srd(S_WS)}, s79 offen {cfg.f("ldY")}')
    def a_read1(t,c,hh):
        a.e(f'ds_read_b64_tr_b16 {vr(V_AF2+4*c+2*hh,2)}, v{V_W2A+c} offset:{(t%8)*4096+2048*hh}')
        return a.lgtok()
    def need(d,k):
        while k not in d: a.bg_pop()
    def push_aloads(t):
        b=A_R+16*(t%ADEPTH); sc=cfg.f('ldA')
        if t in(3,10):
            for q in range(4):
                a.bg_push([f'buffer_load_dwordx2 {ar(b+4*q,2)}, v4, {srd(S_WS)}, s69 offen offset:{1024*q} {sc}',
                           f'buffer_load_dwordx2 {ar(b+4*q+2,2)}, v4, {srd(S_WS)}, s69 offen offset:{1024*q+512} {sc}']+(['s_add_u32 s69, s69, 4096'] if q==3 else []),
                          (lambda t=t: toks.__setitem__(t,a.vmtok())) if q==3 else None)
        else:
            for q in range(4):
                a.bg_push([f'buffer_load_dwordx4 {ar(b+4*q,4)}, v{V_L16}, {srd(S_WS)}, s69 offen offset:{1024*q} {sc}']+(['s_add_u32 s69, s69, 4096'] if q==3 else []),
                          (lambda t=t: toks.__setitem__(t,a.vmtok())) if q==3 else None)
    def push_y(psi):
        for u in range(4):
            a.bg_push([f's_add_u32 s79, s78, {(16*psi+u)*8192}',
                       f'buffer_load_dwordx4 {vr(V_Y+16*psi+4*u,4)}, v6, {srd(S_WS)}, s79 offen {cfg.f("ldY")}'],
                      (lambda psi=psi: toks.__setitem__('y%d'%psi,a.vmtok())) if u==3 else None)
    def push_g(items):
        T0=GT0
        for i0 in range(0,len(items),2):
            grp=items[i0:i0+2]; l1=[];l2=[];l3=[]
            for j,(psi,c,u) in enumerate(grp):
                n=16*psi+u; tt=TA_G+3*j+6*((i0//2)%2)
                if n==0: src=f'v{T0+6+c}'
                else:
                    l1.append(f'v_fmamk_f32 v{tt}, v{T0+2+c}, {fl(n)}, v{T0+6+c}'); src=f'v{tt}'
                l2.append(f'v_cos_f32 v{tt+1}, {src}'); l2.append(f'v_sin_f32 v{tt+2}, {src}')
                l3.append(f'v_cvt_pk_bf16_f32 v{V_GF+16*psi+4*c+u}, v{tt+1}, v{tt+2}')
            if l1: a.bg_push(l1)
            a.bg_push(l2[:2]); a.bg_push(l2[2:]); a.bg_push(l3)
    ta={}
    need(tokw,0); a.wait_vm(tokw[0])
    for c in range(4):
        for hh in range(2): ta[(0,c,hh)]=a_read1(0,c,hh)
    nper=cfg.g_per_step
    a.bg_set(2,mfma_weight=cfg.x.get('g2_mw',2))
    for t in range(14):
        last=(t==13)
        if cfg.fine: stamp(a,cfg,48+t)
        need(toks,t); a.wait_vm(toks[t])
        if not last:
            need(tokw,t+1); a.wait_vm(tokw[t+1])
        if 1<=t and t-1+8<14: push_w2(a,cfg,ctx,t-1+8)
        if t>=1 and t-1+ADEPTH<14: push_aloads(t-1+ADEPTH)
        if 9<=t<13: push_y(t-9)
        if gi<len(G_ITEMS):
            push_g(G_ITEMS[gi:gi+nper]); gi=min(len(G_ITEMS),gi+nper)
        b=A_R+16*(t%ADEPTH)
        for c in range(4):
            n=a.lg-ta[(t,c,1)]
            a.e(f's_waitcnt lgkmcnt({min(n,15)})')
            for q in range(4):
                d=vr(V_ACC+16*q+4*c,4)
                r=a.bg_rate
                if q<2: a.bg_rate=0
                a.e(f'v_mfma_f32_16x16x32_bf16 {d}, {vr(V_AF2+4*c,4)}, {ar(b+4*q,4)}, {d if t else 0}')
                if q<2:
                    if c>=1 and not last: ta[(t+1,c-1,q)]=a_read1(t+1,c-1,q)
                    if c==0 and t>=1: ta[(t,3,q)]=a_read1(t,3,q)
                a.bg_rate=r
        if t==8:
            a.bg_flush()
            a.e(f's_mov_b32 s93, {WS_CNT+16*128}')
            poll(a,S_WS,'s93',16,128,16)
    a.bg_flush(); a.bg_set(0)
    assert gi>=len(G_ITEMS)
    g_fix0(a)
    stamp(a,cfg,11); cstamp(a,cfg,44)
    for q in range(4): a.e(f'v_sub_f32 v{V_G+q}, 1.0, v{V_G+q}')
    for q in range(4):
        for h in range(8):
            a.e(f'v_pk_mul_f32 {vr(V_ACC+16*q+2*h,2)}, {vr(V_ACC+16*q+2*h,2)}, {vr(V_G+(q&~1),2)} op_sel:[0,{q&1}] op_sel_hi:[1,{q&1}]')
    for psi in range(4):
        a.wait_vm(toks['y%d'%psi])
        y=V_Y+16*psi
        for (i,j) in[(0,1),(0,2),(0,3),(1,2),(1,3),(2,3)]:
            a.e(f'v_swap_b32 v{y+4*i+j}, v{y+4*j+i}')
        for c in range(4):
            for q in range(4):
                d=vr(V_ACC+16*q+4*c,4)
                a.e(f'v_mfma_f32_16x16x32_bf16 {d}, {vr(V_GF+16*psi+4*c,4)}, {vr(y+4*q,4)}, {d}')
    stamp(a,cfg,12)
    a.e(f'v_add_u32 v7, s71, v{V_L16}')
    for w in range(4):
        a.e(f's_cmp_lg_u32 {wv}, {w}')
        a.e(f's_cbranch_scc1 L_k3_w{w}')
        a.cond_begin()
        slot=0
        for q in range(4):
            if q==w: continue
            for c in range(4):
                a.e(f'ds_write_b128 v7, {vr(V_ACC+16*q+4*c,4)} offset:{slot*4096+c*1024}')
            slot+=1
        if w!=0:
            for h in range(8): a.e(f'v_pk_mov_b32 {vr(V_ACC+2*h,2)}, {vr(V_ACC+16*w+2*h,2)}, {vr(V_ACC+16*w+2*h,2)} op_sel:[0,1]')
        a.cond_end()
        a.e(f'L_k3_w{w}:')
    a.e('s_waitcnt lgkmcnt(0)'); a.e('s_barrier')
    V_RD=V_Y
    for k in range(1,4):
        a.e(f"""s_add_u32 s76, {wv}, {k}
        s_and_b32 s76, s76, 3
        s_lshl_b32 s77, s76, 15
        s_cmp_lt_u32 {wv}, s76
        s_cselect_b32 s79, 0, 1
        s_sub_u32 s79, {wv}, s79
        s_lshl_b32 s79, s79, 12
        s_add_u32 s77, s77, s79
        v_add_u32 v7, s77, v{V_L16}""")
        for c in range(4): a.e(f'ds_read_b128 {vr(V_RD+16*(k-1)+4*c,4)}, v7 offset:{c*1024}')
    a.e(f"""v_lshlrev_b32 v5, 10, v1
    v_lshl_add_u32 v5, v2, 3, v5
    s_lshl_b32 s76, s72, 17
    s_lshl_b32 s77, {wv}, 15
    s_add_u32 s76, s76, s77
    s_lshl_b32 s77, s73, 14
    s_add_u32 s76, s76, s77
    s_lshl_b32 s77, s68, 7
    s_add_u32 s76, s76, s77""")
    for k in range(3):
        a.e(f's_waitcnt lgkmcnt({8-4*k})')
        for h in range(8): a.e(f'v_pk_add_f32 {vr(V_ACC+2*h,2)}, {vr(V_ACC+2*h,2)}, {vr(V_RD+16*k+2*h,2)}')
    V_O=V_GF
    for c in range(4):
        a.e(f'v_cvt_pk_bf16_f32 v{V_O+2*c}, v{V_ACC+4*c}, v{V_ACC+4*c+1}')
        a.e(f'v_cvt_pk_bf16_f32 v{V_O+2*c+1}, v{V_ACC+4*c+2}, v{V_ACC+4*c+3}')
        a.e(f'buffer_store_dwordx2 {vr(V_O+2*c,2)}, v5, {srd(S_OUT)}, s76 offen offset:{32*c}')

def persist(a,cfg,end):
    ctx={}
    phase_a(a,cfg,ctx)
    a.e('s_mov_b32 s93, 0')
    poll(a,S_DBG,'s93',4,64,64)
    stamp(a,cfg,6)
    p2_loads(a,cfg,ctx)
    act_stores(a,cfg,ctx)
    stamp(a,cfg,24); cstamp(a,cfg,47)
    p2_tables(a,cfg,ctx)
    stamp(a,cfg,25); cstamp(a,cfg,48)
    a.wait_vm(ctx['tok_act']); a.e('s_barrier')
    a.e(f's_lshl_b32 s92, s6, 7'); a.e(f's_add_u32 s92, s92, {WS_CNT}')
    signal(a,S_WS,'s92')
    stamp(a,cfg,7)
    p2_compute(a,cfg,ctx)
    stamp(a,cfg,8)
    g_init(a,cfg,ctx)
    gi=cfg.g_pre
    g_gen(a,G_ITEMS[:gi])
    stamp(a,cfg,9)
    a.e(f's_lshl_b32 s93, s72, 7'); a.e(f's_add_u32 s93, s93, {WS_CNT}')
    poll(a,S_WS,'s93',1,0,16)
    stamp(a,cfg,10); cstamp(a,cfg,43)
    a.e('v_lshlrev_b32 v4, 3, v0')
    g2_aloads(a,cfg,ctx,0); g2_aloads(a,cfg,ctx,1)
    a.wait_vm(ctx['tok_y']); a.e('s_barrier')
    a.e('s_and_b32 s92, s2, 15'); a.e('s_lshl_b32 s92, s92, 7'); a.e(f's_add_u32 s92, s92, {WS_CNT+16*128}')
    signal(a,S_WS,'s92')
    for t in range(2,ADEPTH): g2_aloads(a,cfg,ctx,t)
    g2_main(a,cfg,ctx,gi)
    stamp(a,cfg,13)
    stamps_flush(a,cfg)
    a.e(f's_branch {end}')
    p2_special(a,cfg,ctx)

HEADER='''; Gated mix of a GFNet spectral filter and a dense->mish->dense block, one persistent launch.
; (text generated by the author's own generator script; 256 workgroups, one per CU, hand-offs through counters)
'''
def build(stamps=False,dbgst=False,off=(),**kw):
    cfg=Cfg(); cfg.stamps=stamps; cfg.dbgst=dbgst; cfg.off=set(off)
    cfg.bg1=kw.get('bg1',9); cfg.bg2=kw.get('bg2',14); cfg.bg3=kw.get('bg3',8); cfg.bg4=kw.get('bg4',11)
    cfg.x=kw
    cfg.fine=kw.get('fine',0)
    cfg.g_pre=kw.get('g_pre',16); cfg.g_per_step=kw.get('g_per_step',4)
    label=NAME+'_kernel'
    a=Asm(); end='L_end'
    prologue(a,end)
    persist(a,cfg,end)
    a.e(f'{end}:'); a.e('s_endpgm')
    txt=a.text()
    errs=[]
    for nm,pol in (('fall',lambda i,n:i.target.endswith('_done')),('taken',lambda i,n:(not i.target.startswith('L_end')) and n==0)):
        errs+=verify_waits(a.out,pol,nm)
    for e in sorted(set(errs))[:30]: print('WAITERR',e,file=sys.stderr)
    print(dict(a.count()),file=sys.stderr)
    out=HEADER+f'; @launch grid=(256,1,1) block=(256,1,1) lds={LDS_TOTAL}\n'
    out+='.amdgcn_target "amdgcn-amd-amdhsa--gfx950"\n.text\n'
    out+=f'.globl {label}\n.p2align 8\n.type {label},@function\n{label}:\n{txt}'
    out+=f'''.section .rodata,"a"
.p2align 6
.amdhsa_kernel {label}
  .amdhsa_next_free_vgpr 512
  .amdhsa_next_free_sgpr 102
  .amdhsa_accum_offset 256
  .amdhsa_group_segment_fixed_size 0
  .amdhsa_kernarg_size 88
  .amdhsa_user_sgpr_count 2
  .amdhsa_user_sgpr_kernarg_segment_ptr 1
  .amdhsa_system_sgpr_workgroup_id_x 1
.end_amdhsa_kernel
'''
    return out

if __name__=='__main__':
    mode=sys.argv[1] if len(sys.argv)>1 else 'persist'
    kw={}
    for x in sys.argv[3:]:
        k,v=x.split('='); kw[k]=int(v) if v.lstrip('-').isdigit() else v
    off=kw.pop('off','').split(',') if 'off' in kw else ()
    txt=build(stamps=(mode in('stamps','dbgst')),dbgst=(mode=='dbgst'),off=off,**kw)
    open(sys.argv[2] if len(sys.argv)>2 else 'out.s','w').write(txt)
```

```python
import sys, os, struct
from dsl import Asm, verify_waits

NAME='gated_mix__spectral_gfnet__dense_activation_mish__prompt'
WS_T   =0x000000
WS_WT  =0x200000
WS_QT  =0x400000
WS_G   =0x402000
WS_CNT =0x404000
WS_Y   =0x600000
WS_ACT =0x800000
WS_STAMP=0x1000000
WS_SIZE=0x1080000
RT_STRIDE=56*4096
S_X,S_WR,S_WI,S_W1,S_B1,S_W2,S_GW,S_OUT,S_WS,S_DBG=8,12,16,20,24,28,32,36,40,44
def srd(n): return f's[{n}:{n+3}]'
SRDS=[(S_X,0,2048*1024),(S_WR,8,2048*514),(S_WI,16,2048*514),(S_W1,32,512*3584),(S_B1,40,3584),
      (S_W2,48,1792*1024),(S_GW,56,1024),(S_OUT,64,2048*1024),(S_WS,80,WS_SIZE),(S_DBG,72,256)]
def vr(b,n=1): return f'v{b}' if n==1 else f'v[{b}:{b+n-1}]'
def fl(x): return hex(struct.unpack('<I',struct.pack('<f',float(x)))[0])
S_WV=3; S_W8=49
wv=f's{S_WV}'
LOG2E=1.4426950408889634
OOB=0x40000000
SLEEP=int(os.environ.get('SLEEP','8'))
SPIN_MAX=50000
SLOT=31744
SB=lambda c:(c%5)*SLOT
XA_BASE=4*SLOT; XA_PITCH=1152
GW_LDS=5*SLOT; B1_LDS=GW_LDS+1024
LC_BASE=GW_LDS+2048
TB_BASE=131072; XB_BASE=139264; ZR_BASE=147456
LDS_TOTAL=163840
V_L16=3
V_PD,V_PA,V_SIG=250,251,252

class Cfg:
    stamps=False; dbgst=False; sc='sc1'
    off=set()
    def f(self,tag): return '' if (tag in self.off or 'all' in self.off) else self.sc

def stamp(a,cfg,idx):
    if not cfg.stamps: return
    r=a.bg_rate; a.bg_rate=0
    a.e('s_memrealtime s[96:97]'); a.e('s_waitcnt lgkmcnt(0)'); a.e(f'v_writelane_b32 v255, s96, {idx}')
    a.bg_rate=r
def stamps_flush(a,cfg):
    if not cfg.stamps: return
    a.e(f"""v_lshrrev_b32 v254, 6, v249
    s_nop 0
    v_readfirstlane_b32 s98, v254
    s_lshl_b32 s99, s2, 3
    s_add_u32 s98, s98, s99
    s_lshl_b32 s98, s98, 8
    s_add_u32 s98, s98, {WS_STAMP}
    v_lshlrev_b32 v254, 2, v0
    buffer_store_dword v255, v254, {srd(S_WS)}, s98 offen""")

def signal(a,S,soff):
    vt=V_SIG
    a.e(f"""s_cmp_eq_u32 {wv}, 0
    s_cselect_b32 s95, 0, {OOB}
    v_mov_b32 v{vt}, 1
    v_mov_b32 v{vt+1}, s95
    s_mov_b64 exec, 1
    buffer_atomic_add v{vt}, v{vt+1}, {srd(S)}, {soff} offen sc1
    s_mov_b64 exec, -1""")

def spin_global(a,S,soff,nl,stride,target):
    lab=f'L_poll{len(a.items)}'
    a.e(f'v_mul_u32_u24 v{V_PA}, {stride}, v0')
    a.e(f's_mov_b64 exec, {hex((1<<nl)-1)}')
    a.e(f's_mov_b32 s94, 0')
    a.e(f'{lab}:')
    a.e(f'buffer_load_dword v{V_PD}, v{V_PA}, {srd(S)}, {soff} offen sc1')
    a.e(f's_add_u32 s94, s94, 1')
    a.e(f's_waitcnt vmcnt(0)')
    a.e(f'v_cmp_gt_u32 vcc, {target}, v{V_PD}')
    a.e(f's_cbranch_vccz {lab}_done')
    a.e(f's_cmp_gt_u32 s94, {SPIN_MAX}')
    a.e(f's_cbranch_scc1 {lab}_done')
    a.e(f's_sleep {SLEEP}')
    a.e(f's_branch {lab}')
    a.e(f'{lab}_done:')
    a.e('s_mov_b64 exec, -1')

def poll_w0(a,S,soff,nl,stride,target):
    lab=f'L_pw{len(a.items)}'
    a.e(f's_cmp_lg_u32 {wv}, 0'); a.e(f's_cbranch_scc1 {lab}')
    a.cond_begin(); spin_global(a,S,soff,nl,stride,target); a.cond_end()
    a.e(f'{lab}:')

V_LC=248
def lc_add(a,idx,rtn=None):
    a.e(f'v_mov_b32 v{V_LC-1}, 1')
    a.e('s_mov_b64 exec, 1')
    if rtn is None: a.e(f'ds_add_u32 v{V_LC}, v{V_LC-1} offset:{4*idx}')
    else: a.e(f'ds_add_rtn_u32 v{rtn}, v{V_LC}, v{V_LC-1} offset:{4*idx}')
    a.e('s_mov_b64 exec, -1')
def lc_wait(a,idx,target):
    lab=f'L_lc{len(a.items)}'
    a.e('s_mov_b32 s94, 0')
    a.e(f'{lab}:')
    a.e(f'ds_read_b32 v{V_LC-1}, v{V_LC} offset:{4*idx}')
    a.e('s_add_u32 s94, s94, 1')
    a.e('s_waitcnt lgkmcnt(0)')
    a.e(f'v_readfirstlane_b32 s93, v{V_LC-1}')
    a.e(f's_cmp_ge_u32 s93, {target}')
    a.e(f's_cbranch_scc1 {lab}_done')
    a.e('s_sleep 1')
    a.e(f's_cmp_lt_u32 s94, {20*SPIN_MAX}')
    a.e(f's_cbranch_scc1 {lab}')
    a.e(f'{lab}_done:')

def angles(a,items,T):
    for i0 in range(0,len(items),4):
        grp=items[i0:i0+4]; src=[]
        for j,(sl,base,n,fin,neg) in enumerate(grp):
            if n==0: src.append(f'v{base}')
            else:
                a.e(f'v_fmamk_f32 v{T+j}, v{sl}, {fl(n)}, v{base}'); src.append(f'v{T+j}')
        outs=[]
        for j,(sl,base,n,fin,neg) in enumerate(grp):
            c,s=fin[0] if fin[0] is not None else T+4+j, fin[1] if fin[1] is not None else T+8+j
            a.e(f'v_cos_f32 v{c}, {src[j]}')
            a.e(f'v_sin_f32_e64 v{s}, -{src[j]}' if neg else f'v_sin_f32 v{s}, {src[j]}')
            outs.append((c,s))
        for j,(sl,base,n,fin,neg) in enumerate(grp):
            if fin[2]: fin[2](*outs[j])

def cmul_pack(a,c,s,tc,ts,dst,TT,n=4,negim=False):
    H=n//2
    for h in range(H): a.e(f'v_pk_mul_f32 {vr(TT+4*h,2)}, {vr(s+2*h,2)}, {vr(ts+2*h,2)}')
    for h in range(H): a.e(f'v_pk_mul_f32 {vr(TT+4*h+2,2)}, {vr(s+2*h,2)}, {vr(tc+2*h,2)}')
    for h in range(H): a.e(f'v_pk_fma_f32 {vr(TT+4*h,2)}, {vr(c+2*h,2)}, {vr(tc+2*h,2)}, {vr(TT+4*h,2)} neg_lo:[0,0,1] neg_hi:[0,0,1]')
    for h in range(H): a.e(f'v_pk_fma_f32 {vr(TT+4*h+2,2)}, {vr(c+2*h,2)}, {vr(ts+2*h,2)}, {vr(TT+4*h+2,2)}')
    ng='-' if negim else ''
    for h in range(H):
        a.e(f'v_cvt_pk_bf16_f32 v{dst+2*h}, v{TT+4*h}, {ng}v{TT+4*h+2}')
        a.e(f'v_cvt_pk_bf16_f32 v{dst+2*h+1}, v{TT+4*h+1}, {ng}v{TT+4*h+3}')

def prologue(a,cfg,end):
    a.e('s_cmp_ge_u32 s2, 256'); a.e(f's_cbranch_scc1 {end}')
    for (n,off,sz) in SRDS: a.e(f's_load_dwordx2 s[{n}:{n+1}], s[0:1], {off}')
    if cfg.stamps: a.e('v_mov_b32 v249, v0')
    a.e('v_lshrrev_b32 v1, 6, v0')
    a.e('v_and_b32 v0, 63, v0')
    a.e('v_readfirstlane_b32 s48, v1')
    a.e('v_and_b32 v1, 15, v0')
    a.e('v_lshrrev_b32 v2, 4, v0')
    a.e(f'v_lshlrev_b32 v{V_L16}, 4, v0')
    for (n,off,sz) in SRDS:
        a.e(f's_mov_b32 s{n+2}, {hex(sz)}'); a.e(f's_mov_b32 s{n+3}, 0x20000')
    a.e(f'''s_mov_b32 s51, s48
    s_and_b32 {wv}, s48, 3
    s_lshr_b32 s50, s48, 2
    s_and_b32 s4, s2, 7
    s_lshr_b32 s5, s2, 3
    s_lshr_b32 s6, s4, 1
    s_lshl_b32 s6, s6, 2
    s_lshr_b32 s56, s5, 3
    s_add_u32 s6, s6, s56
    s_and_b32 s7, s4, 1
    s_lshl_b32 s7, s7, 3
    s_and_b32 s56, s5, 7
    s_add_u32 s7, s7, s56
    s_and_b32 s48, s7, 1''')
    a.e('s_waitcnt lgkmcnt(0)')
    if cfg.x.get('pf_code'):
        a.e('s_getpc_b64 s[64:65]')
        a.e('s_lshl_b32 s66, s5, 10')
        a.e('s_add_u32 s64, s64, s66'); a.e('s_addc_u32 s65, s65, 0')
        a.e(f'v_mov_b32 v57, s65'); a.e(f'v_add_co_u32 v56, vcc, s64, v{V_L16}'); a.e(f'v_addc_co_u32 v57, vcc, 0, v57, vcc')
        a.e(f's_cmp_lt_u32 s5, {cfg.x["pf_code"]}'); a.e('s_cbranch_scc0 L_nopf'); a.cond_begin()
        a.e(f's_cmp_lg_u32 s51, 2'); a.e('s_cbranch_scc1 L_nopf')
        a.e('global_load_dwordx4 v[52:55], v[56:57], off')
        a.cond_end(); a.e('L_nopf:')
    mt=str(cfg.x.get('mt','xw'))
    if mt!='0':
        a.e(f'''v_lshlrev_b32 v5, 7, v0
        v_mov_b32 v6, {OOB}
        v_cmp_gt_u32 vcc, 56, v0
        v_cndmask_b32 v6, v6, v5, vcc
        s_cmp_eq_u32 s51, 0
        s_cselect_b32 s56, 0, {OOB}
        v_add_u32 v5, s56, v5
        s_cmp_eq_u32 s51, 1
        s_cselect_b32 s56, 0, {OOB}
        v_add_u32 v7, s56, v6
        s_lshl_b32 s56, s2, 13
        s_mul_i32 s57, s2, 7168''')
        if 'x' in mt: a.e(f'buffer_load_dword v245, v5, {srd(S_X)}, s56 offen')
        if 'w' in mt: a.e(f'buffer_load_dword v245, v7, {srd(S_W1)}, s57 offen')
    a.e('s_cmp_lg_u32 s50, 0'); a.e('s_cbranch_scc1 L_F')

V_GF=8
V_W2A=240; V_W2D=244
NS3=int(os.environ.get('NS3','8'))
GSLOT=[6,7,0,1]
GT0=224; GTA=234
G_ITEMS=[(psi,c,u) for psi in range(4) for c in range(4) for u in range(4)]
def m_g2_ids(a,cfg):
    a.e(f"""s_lshl_b32 s67, s4, 2
    s_lshr_b32 s68, s5, 3
    s_add_u32 s67, s67, s68
    s_and_b32 s68, s5, 7
    s_mul_i32 s69, s67, {RT_STRIDE}
    s_mul_i32 s70, {wv}, {14*4096}
    s_add_u32 s69, s69, s70
    s_add_u32 s69, s69, {WS_ACT}
    s_mul_i32 s70, {wv}, {14*32*1024}
    s_lshl_b32 s71, s68, 7
    s_add_u32 s70, s70, s71
    s_lshl_b32 s71, {wv}, 15
    s_lshr_b32 s72, s67, 1
    s_and_b32 s73, s67, 1
    s_lshr_b32 s74, s72, 2
    s_lshl_b32 s74, s74, 11
    s_lshl_b32 s75, s73, 10
    s_add_u32 s74, s74, s75
    s_and_b32 s75, s72, 3
    s_lshl_b32 s75, s75, 8
    s_add_u32 s74, s74, s75""")
def w2_dma_addr(a,V,T):
    a.e(f"""v_lshrrev_b32 v{T}, 3, v0
    v_lshlrev_b32 v{V}, 10, v{T}
    v_lshrrev_b32 v{T}, 1, v{T}
    v_and_b32 v{T}, 3, v{T}
    v_bfe_u32 v{T+1}, v0, 1, 2
    v_xor_b32 v{T}, v{T}, v{T+1}
    v_lshlrev_b32 v{T}, 1, v{T}
    v_and_b32 v{T+1}, 1, v0
    v_add_u32 v{T}, v{T}, v{T+1}
    v_lshl_add_u32 v{V}, v{T}, 4, v{V}""")
def w2_group(t,v,V):
    return [f's_add_u32 m0, s71, {(t%8)*4096+v*1024}', f's_add_u32 s55, s70, {(32*t+8*v)*1024}',
            f'buffer_load_dwordx4 v{V}, {srd(S_W2)}, s55 offen lds']

def m_stream(a,cfg,end):
    a.e('s_waitcnt lgkmcnt(0)')
    if cfg.x.get('prio0'): a.e(f's_setprio {cfg.x["prio0"]}')
    stamp(a,cfg,26)
    a.e(f'''s_xor_b32 s56, {wv}, 3
    s_or_b32 s58, s56, s2
    s_cmp_eq_u32 s58, 0
    s_cselect_b32 s56, 0, {OOB}
    v_lshlrev_b32 v5, 7, v0
    v_add_u32 v5, s56, v5
    v_mov_b32 v6, 0
    s_mov_b32 s57, {WS_CNT}
    s_mov_b32 exec_hi, 0
    buffer_store_dword v6, v5, {srd(S_WS)}, s57 offen sc1
    s_mov_b32 exec_hi, -1''')
    mt=str(cfg.x.get('mt','xw'))
    a.e(f'''s_lshr_b32 s49, s2, 5
    s_and_b32 s50, s2, 31''')
    V_B1C=60; V_B1S=68; V_TC=76; V_TS=80; V_A2=84; V_A2N=88; T0=92; TA=100
    a.e(f'''s_lshl_b32 s67, {wv}, 4
    v_add_u32 v{T0}, s67, v1
    v_cvt_f32_u32 v{T0}, v{T0}
    v_mul_f32 v{T0+1}, {fl(1/64)}, v{T0}
    v_lshlrev_b32 v{T0+2}, 2, v2
    v_cvt_f32_u32 v{T0+2}, v{T0+2}
    v_mul_f32 v{T0+3}, v{T0+2}, v{T0+1}''')
    for ks in range(2):
        for hh in range(2):
            angles(a,[(T0+1,T0+3,32*ks+16*hh+u,(None,None,None),True) for u in range(4)],TA)
            for d in range(2):
                a.e(f'v_cvt_pk_bf16_f32 v{V_B1C+4*ks+2*hh+d}, v{TA+4+2*d}, v{TA+5+2*d}')
                a.e(f'v_cvt_pk_bf16_f32 v{V_B1S+4*ks+2*hh+d}, v{TA+8+2*d}, v{TA+9+2*d}')
    a.e(f'''v_and_b32 v{T0+4}, 1, v2
    v_lshlrev_b32 v{T0+4}, 2, v{T0+4}
    v_cvt_f32_u32 v{T0+4}, v{T0+4}
    v_mul_f32 v{T0+5}, {fl(1/512)}, v{T0}
    v_mul_f32 v{T0+6}, v{T0+4}, v{T0+5}''')
    angles(a,[(T0+5,T0+6,r,(V_TC+r,V_TS+r,None),True) for r in range(4)],TA)
    a.e(f'''v_lshrrev_b32 v{T0+5}, 2, v1
    v_cvt_f32_u32 v{T0+5}, v{T0+5}
    v_mul_f32 v{T0+5}, {fl(1/8)}, v{T0+5}
    v_and_b32 v{T0+6}, 1, v1
    v_cvt_f32_u32 v{T0+6}, v{T0+6}
    v_mul_f32 v{T0+6}, {fl(0.25)}, v{T0+6}
    v_fma_f32 v{T0+6}, v{T0+4}, v{T0+5}, v{T0+6}
    v_lshrrev_b32 v{T0+7}, 1, v1
    v_and_b32 v{T0+7}, 1, v{T0+7}
    v_lshrrev_b32 v{T0}, 1, v2
    v_cmp_eq_u32 s[68:69], v{T0+7}, v{T0}
    v_and_b32 v{T0+7}, 13, v1
    v_cmp_eq_u32 vcc, 1, v{T0+7}''')
    a.e('s_and_b64 s[70:71], vcc, s[68:69]')
    angles(a,[(T0+5,T0+6,dw,(None,None,None),False) for dw in range(4)],TA)
    for dw in range(4): a.e(f'v_cvt_pk_bf16_f32 v{TA+dw}, v{TA+4+dw}, v{TA+8+dw}')
    a.e(f'v_mov_b32 v{TA+4}, 0x3f80'); a.e(f'v_mov_b32 v{TA+5}, 0xbf80')
    for dw in range(4):
        a.e(f'v_cndmask_b32 v{V_A2+dw}, 0, v{TA+dw}, s[68:69]')
        a.e(f'v_cndmask_b32 v{V_A2N+dw}, 0, v{TA+4+(dw&1)}, s[70:71]')
    V_XA=108
    a.e(f'''v_and_b32 v{T0}, 3, v0
    v_lshrrev_b32 v{T0+1}, 1, v{T0}
    v_mul_u32_u24 v{V_XA}, {XA_PITCH}, v{T0+1}
    v_and_b32 v{T0}, 1, v{T0}
    v_lshlrev_b32 v{T0}, 3, v{T0}
    v_lshrrev_b32 v{T0+1}, 2, v1
    v_lshl_add_u32 v{T0+1}, v2, 2, v{T0+1}
    v_lshlrev_b32 v{T0+1}, 4, v{T0+1}
    v_add3_u32 v{V_XA}, v{V_XA}, v{T0}, v{T0+1}
    v_add_u32 v{V_XA}, {XA_BASE}, v{V_XA}
    s_mul_i32 s72, {wv}, {2*XA_PITCH}
    s_add_u32 s72, s72, {XA_BASE}
    v_add_u32 v{V_XA+1}, s72, v{V_L16}
    v_add_u32 v{V_XA+2}, {GW_LDS}, v{V_L16}''')
    a.e(f'''s_lshl_b32 s84, s49, 3
    s_lshl_b32 s85, {wv}, 1
    s_add_u32 s84, s84, s85
    s_lshr_b32 s85, s84, 4
    s_lshl_b32 s85, s85, 11
    s_lshr_b32 s86, s50, 4
    s_lshl_b32 s86, s86, 10
    s_add_u32 s85, s85, s86
    s_lshr_b32 s86, s84, 2
    s_and_b32 s86, s86, 3
    s_lshl_b32 s86, s86, 8
    s_add_u32 s85, s85, s86
    s_and_b32 s86, s50, 15
    s_lshl_b32 s86, s86, 4
    s_add_u32 s85, s85, s86
    s_and_b32 s86, s84, 3
    s_lshl_b32 s86, s86, 2
    s_add_u32 s85, s85, s86
    s_add_u32 s85, s85, {WS_G}
    ''')
    if mt!='0' and ('W' in mt or '2' in mt):
        a.e(f'''v_lshlrev_b32 v5, 7, v0
        v_mov_b32 v6, {OOB}
        v_cmp_gt_u32 vcc, 33, v0
        v_cndmask_b32 v7, v6, v5, vcc
        v_cmp_gt_u32 vcc, 56, v0
        v_cndmask_b32 v6, v6, v5, vcc
        s_cmp_eq_u32 {wv}, 2
        s_cselect_b32 s56, 0, {OOB}
        v_add_u32 v5, s56, v7
        s_cmp_eq_u32 {wv}, 3
        s_cselect_b32 s56, 0, {OOB}
        v_add_u32 v7, s56, v7
        s_cmp_eq_u32 {wv}, 0
        s_cselect_b32 s56, 0, {OOB}
        v_add_u32 v6, s56, v6
        s_mul_i32 s56, s2, {33*128}
        v_add_u32 v5, s56, v5
        v_add_u32 v7, s56, v7
        s_mul_i32 s57, s2, 7168''')
        if 'W' in mt:
            a.e(f'buffer_load_dword v245, v5, {srd(S_WR)}, 0 offen')
            a.e(f'buffer_load_dword v245, v7, {srd(S_WI)}, 0 offen')
        if '2' in mt: a.e(f'buffer_load_dword v245, v6, {srd(S_W2)}, s57 offen')
    a.e('s_cmp_lg_u32 s58, 0'); a.e('s_cbranch_scc1 L_m_nos0'); a.cond_begin()
    a.e(f'''s_waitcnt vmcnt(0)
    v_mov_b32 v5, 1
    v_mov_b32 v6, 32
    s_mov_b64 exec, 1
    buffer_store_dword v5, v6, {srd(S_DBG)}, 0 offen sc1
    s_mov_b64 exec, -1''')
    a.cond_end(); a.e('L_m_nos0:')
    stamp(a,cfg,0)
    a.e('s_barrier')
    stamp(a,cfg,1)
    V_AF=112; V_GX=144; V_GW=184; V_D1C=152; V_D1S=168
    for pi in range(4):
        for ks in range(2):
            for hh in range(2):
                a.e(f'ds_read_b64_tr_b16 {vr(V_AF+8*pi+4*ks+2*hh,2)}, v{V_XA} offset:{pi*2*XA_PITCH+ks*512+hh*256}')
        if pi==1: lg_01=a.lgtok()
    lg_af=a.lgtok()
    a.e(f'ds_read_b128 {vr(V_GX,4)}, v{V_XA+1}')
    a.e(f'ds_read_b128 {vr(V_GX+4,4)}, v{V_XA+1} offset:{XA_PITCH}')
    a.e(f'ds_read_b128 {vr(V_GW,4)}, v{V_XA+2}')
    lg_gx=a.lgtok()
    for pi in range(4):
        if pi==0: a.wait_lg(lg_01)
        if pi==2: a.wait_lg(lg_af)
        for ks in range(2):
            A=vr(V_AF+8*pi+4*ks,4); c=vr(V_D1C+4*pi,4); s=vr(V_D1S+4*pi,4)
            a.e(f'v_mfma_f32_16x16x32_bf16 {c}, {A}, {vr(V_B1C+4*ks,4)}, {c if ks else 0}')
            a.e(f'v_mfma_f32_16x16x32_bf16 {s}, {A}, {vr(V_B1S+4*ks,4)}, {s if ks else 0}')
    a.wait_lg(lg_gx)
    V_Z=T0+2; V_GOUT=T0+4
    for d in range(4):
        for rr in range(2):
            a.e(f'v_dot2_f32_bf16 v{V_Z+rr}, v{V_GX+4*rr+d}, v{V_GW+d}, {("v%d"%(V_Z+rr)) if d else 0}')
    TT=TA; V_B2=V_AF
    red=[('row_shr:1 row_mask:0xf bank_mask:0xf bound_ctrl:1'),('row_shr:2 row_mask:0xf bank_mask:0xf bound_ctrl:1'),
         ('row_shr:4 row_mask:0xf bank_mask:0xf bound_ctrl:1'),('row_shr:8 row_mask:0xf bank_mask:0xf bound_ctrl:1'),
         ('row_bcast:15 row_mask:0xa bank_mask:0xf'),('row_bcast:31 row_mask:0xc bank_mask:0xf')]
    ri=0
    for pi in range(4):
        cmul_pack(a,V_D1C+4*pi,V_D1S+4*pi,V_TC,V_TS,V_B2+4*pi,TT)
        for _ in range(2 if pi<2 else 1):
            for rr in range(2): a.e(f'v_add_f32_dpp v{V_Z+rr}, v{V_Z+rr}, v{V_Z+rr} {red[ri]}')
            ri+=1
    V_D2=V_D1C; V_D2N=V_D1S
    for pi in range(4):
        a.e(f'v_mfma_f32_16x16x32_bf16 {vr(V_D2+4*pi,4)}, {vr(V_A2,4)}, {vr(V_B2+4*pi,4)}, 0')
        a.e(f'v_mfma_f32_16x16x32_bf16 {vr(V_D2N+4*pi,4)}, {vr(V_A2N,4)}, {vr(V_B2+4*pi,4)}, 0')
    for rr in range(2): a.e(f'v_mul_f32 v{V_Z+rr}, {fl(-LOG2E)}, v{V_Z+rr}')
    for rr in range(2): a.e(f'v_exp_f32 v{V_Z+rr}, v{V_Z+rr}')
    for rr in range(2): a.e(f'v_add_f32 v{V_Z+rr}, 1.0, v{V_Z+rr}')
    for rr in range(2): a.e(f'v_rcp_f32 v{V_GOUT+rr}, v{V_Z+rr}')
    a.e(f'''s_cmp_eq_u32 {wv}, 0
    s_cselect_b32 s74, 1, 0
    s_mov_b32 s75, 0''')
    V_TO=8
    for pi in range(4):
        for rho in range(2):
            re=V_D2+4*pi+2*rho; im=re+1
            a.e(f'v_cndmask_b32 v{im}, v{im}, v{V_D2N+4*pi+2*rho+1}, s[74:75]')
            a.e(f'v_cvt_pk_bf16_f32 v{V_TO+2*pi+rho}, v{re}, v{im}')
    a.e(f'''v_lshlrev_b32 v18, 6, v2
    v_add3_u32 v18, v18, v1, s67
    v_lshlrev_b32 v18, 5, v18
    s_lshl_b32 s90, s2, 13
    s_add_u32 s90, s90, {WS_T}
    v_mov_b32 v16, v{V_GOUT}
    v_mov_b32 v17, v{V_GOUT+1}
    v_mov_b32 v19, 0
    s_mov_b32 s91, s85''')
    def row_stores():
        a.e(f'''buffer_store_dwordx4 v[8:11], v18, {srd(S_WS)}, s90 offen {cfg.f("stT")}
        buffer_store_dwordx4 v[12:15], v18, {srd(S_WS)}, s90 offen offset:16 {cfg.f("stT")}
        s_mov_b32 exec_lo, 0
        s_mov_b32 exec_hi, 0x80000000
        buffer_store_dwordx2 v[16:17], v19, {srd(S_WS)}, s91 offen {cfg.f("stG")}
        s_mov_b64 exec, -1''')
    if cfg.x.get('rs_at',9)<0: row_stores()
    stamp(a,cfg,17)
    V_XF=80; V_XR=96; V_VA=102; V_BIAS=108; V_ACC=136; V_WF=192; V_BRAW=220; T0=234
    a.e(f'''s_lshl_b32 s76, {wv}, 12
    v_lshlrev_b32 v{T0}, 7, v1
    v_add_u32 v{T0}, s76, v{T0}
    v_lshrrev_b32 v{T0+1}, 1, v1
    v_xor_b32 v{T0+1}, v{T0+1}, v2
    v_lshl_add_u32 v{V_XR}, v{T0+1}, 4, v{T0}
    v_xor_b32 v{T0+1}, 4, v{T0+1}
    v_lshl_add_u32 v{V_XR+1}, v{T0+1}, 4, v{T0}
    v_mul_u32_u24 v{V_VA}, 1920, v2
    v_lshrrev_b32 v{T0}, 2, v1
    v_mul_u32_u24 v{T0}, 224, v{T0}
    v_and_b32 v{T0+1}, 3, v0
    v_lshlrev_b32 v{T0+1}, 3, v{T0+1}
    v_add3_u32 v{V_VA}, v{V_VA}, v{T0}, v{T0+1}
    v_add_u32 v{V_VA}, 16384, v{V_VA}
    s_cmp_eq_u32 s48, 0
    s_cselect_b32 s76, 192, 0
    v_add_u32 v{V_VA+1}, s76, v{V_VA}
    s_lshl_b32 s76, s48, 5
    v_add_u32 v{V_VA}, s76, v{V_VA}''')
    for st_ in (1,2):
        for j in range(2):
            a.e(f'v_add_u32 v{V_XR+2*st_+j}, {2*st_*SLOT}, v{V_XR+j}')
            a.e(f'v_add_u32 v{V_VA+2*st_+j}, {2*st_*SLOT}, v{V_VA+j}')
    a.e(f'''v_lshlrev_b32 v{T0}, 3, v2
    s_lshl_b32 s76, s48, 5
    s_add_u32 s77, s76, {B1_LDS}
    v_add_u32 v{T0+1}, s77, v{T0}
    s_cmp_eq_u32 s48, 0
    s_cselect_b32 s77, 192, 0
    s_add_u32 s77, s77, {B1_LDS}
    v_add_u32 v{T0}, s77, v{T0}''')
    if cfg.x.get('prio'): a.e(f's_setprio {cfg.x["prio"]}')
    a.e('s_barrier')
    stamp(a,cfg,3)
    def slot_set(c):
        j=c%5; return (j//2, (j%2)*SLOT)
    def w_read1(s,t,hh):
        c,kk=s//2,s%2; st_,off=slot_set(c)
        va=V_VA+2*st_+(1 if t==6 else 0)
        o=off+kk*7680+(32*t if t<6 else 0)
        a.e(f'ds_read_b64_tr_b16 {vr(V_WF+4*t+2*hh,2)}, v{va} offset:{o+960*hh}')
        return a.lgtok()
    def x_read1(s,nb):
        c,kk=s//2,s%2; st_,off=slot_set(c)
        a.e(f'ds_read_b128 {vr(V_XF+8*(s%2)+4*nb,4)}, v{V_XR+2*st_+kk} offset:{off+2048*nb}')
        return a.lgtok()
    for t in range(6): a.e(f'ds_read_b64 {vr(V_BRAW+2*t,2)}, v{T0+1} offset:{32*t}')
    a.e(f'ds_read_b64 {vr(V_BRAW+12,2)}, v{T0}')
    lg_b=a.lgtok()
    tw={}; tx={}
    for nb in range(2): tx[(0,nb)]=x_read1(0,nb)
    for t in range(3):
        for hh in range(2): tw[(0,t,hh)]=w_read1(0,t,hh)
    a.wait_lg(lg_b)
    for t in range(7):
        for d in range(2):
            raw=V_BRAW+2*t+d
            a.e(f'v_lshlrev_b32 v{V_BIAS+4*t+2*d}, 16, v{raw}')
            a.e(f'v_and_b32 v{V_BIAS+4*t+2*d+1}, 0xffff0000, v{raw}')
    for t in range(3,7):
        for hh in range(2): tw[(0,t,hh)]=w_read1(0,t,hh)
    for s in range(16):
        for t in range(7):
            need=max(tw[(s,t,1)],tx[(s,1)])
            n=a.lg-need
            if t%2==0 or t==1 or s==0 or True: a.e(f's_waitcnt lgkmcnt({min(n,15)})')
            for nb in range(2):
                acc=vr(V_ACC+28*nb+4*t,4)
                cc=acc if s>0 else vr(V_BIAS+4*t,4)
                a.e(f'v_mfma_f32_16x16x32_bf16 {acc}, {vr(V_WF+4*t,4)}, {vr(V_XF+8*(s%2)+4*nb,4)}, {cc}')
                if nb==0 and t==1 and s%2==1 and s<15:
                    if cfg.fine==2: stamp(a,cfg,32+2*(s//2))
                    if s==(7 if cfg.x.get('s1two',0) else 13): a.e('s_waitcnt vmcnt(0)')
                    a.e('s_barrier')
                    if cfg.fine==2: stamp(a,cfg,33+2*(s//2))
                ps,pt=(s+1,t-1) if t>=1 else (s,6)
                if (t>=1 and s<15) or (t==0 and 1<=s<=15 and (s,6,nb) not in tw):
                    tw[(ps,pt,nb)]=w_read1(ps,pt,nb)
                if t==2 and s<15: tx[(s+1,nb)]=x_read1(s+1,nb)
                if t==4 and nb==1 and s==cfg.x.get('rs_at',9): row_stores()
    a.e('s_barrier')
    stamp(a,cfg,4)
    V_E=V_WF; V_O=V_BIAS
    a.e(f's_mov_b32 s84, {fl(LOG2E)}'); a.e(f's_mov_b32 s85, {fl(LOG2E)}'); a.e(f's_mov_b32 s86, {fl(30.0)}')
    a.e(f'''s_mul_i32 s87, s7, 7
    s_add_u32 s87, s87, s48
    s_lshr_b32 s87, s87, 1
    s_lshl_b32 s87, s87, 12
    s_mul_i32 s88, s6, {2*RT_STRIDE}
    s_lshl_b32 s89, {wv}, 10
    s_add_u32 s88, s88, s89
    s_add_u32 s88, s88, {WS_ACT}
    s_add_u32 s88, s88, s87
    s_mov_b32 s89, {3*4096}
    s_cmp_eq_u32 s48, 0
    s_cselect_b32 s89, s89, {(-4096+512)&0xffffffff}
    s_add_u32 s89, s89, s88
    v_lshlrev_b32 v4, 3, v0''')
    G=4
    for nb in range(2):
        pairs=[(V_ACC+28*nb+4*t+2*d, V_O+14*nb+2*t+d) for t in range(7) for d in range(2)]
        for g0 in range(0,len(pairs),G):
            grp=pairs[g0:g0+G]
            Tq=lambda i: V_E+4*i
            for i,(h,o) in enumerate(grp): a.e(f'v_pk_mul_f32 {vr(Tq(i),2)}, {vr(h,2)}, s[84:85]')
            for i,(h,o) in enumerate(grp):
                a.e(f'v_min_f32 v{Tq(i)}, s86, v{Tq(i)}'); a.e(f'v_min_f32 v{Tq(i)+1}, s86, v{Tq(i)+1}')
            for i,(h,o) in enumerate(grp):
                a.e(f'v_exp_f32 v{Tq(i)}, v{Tq(i)}'); a.e(f'v_exp_f32 v{Tq(i)+1}, v{Tq(i)+1}')
            for i,(h,o) in enumerate(grp): a.e(f'v_pk_add_f32 {vr(Tq(i)+2,2)}, {vr(Tq(i),2)}, 2.0 op_sel_hi:[1,0]')
            for i,(h,o) in enumerate(grp): a.e(f'v_pk_mul_f32 {vr(Tq(i),2)}, {vr(Tq(i),2)}, {vr(Tq(i)+2,2)}')
            for i,(h,o) in enumerate(grp): a.e(f'v_pk_add_f32 {vr(Tq(i)+2,2)}, {vr(Tq(i),2)}, 2.0 op_sel_hi:[1,0]')
            for i,(h,o) in enumerate(grp):
                a.e(f'v_rcp_f32 v{Tq(i)+2}, v{Tq(i)+2}'); a.e(f'v_rcp_f32 v{Tq(i)+3}, v{Tq(i)+3}')
            for i,(h,o) in enumerate(grp): a.e(f'v_pk_mul_f32 {vr(Tq(i),2)}, {vr(Tq(i),2)}, {vr(Tq(i)+2,2)}')
            for i,(h,o) in enumerate(grp): a.e(f'v_pk_mul_f32 {vr(Tq(i),2)}, {vr(Tq(i),2)}, {vr(h,2)}')
            for i,(h,o) in enumerate(grp): a.e(f'v_cvt_pk_bf16_f32 v{o}, v{Tq(i)}, v{Tq(i)+1}')
            done=min(len(pairs),g0+G)
            if cfg.x.get('actil'):
                for pp in range(3):
                    if g0<4*(pp+1)<=done:
                        a.e(f'buffer_store_dwordx4 {vr(V_O+14*nb+4*pp,4)}, v{V_L16}, {srd(S_WS)}, s88 offen {cfg.f("stA")}')
                        a.e('s_add_u32 s88, s88, 4096')
                if done==14:
                    a.e(f'buffer_store_dwordx2 {vr(V_O+14*nb+12,2)}, v4, {srd(S_WS)}, s89 offen {cfg.f("stA")}')
        if nb==0 and cfg.x.get('actil'):
            a.e(f's_add_u32 s88, s88, {RT_STRIDE-3*4096}')
            a.e(f's_add_u32 s89, s89, {RT_STRIDE}')
    if not cfg.x.get('actil'):
        for nb in range(2):
            for pp in range(3):
                a.e(f'buffer_store_dwordx4 {vr(V_O+14*nb+4*pp,4)}, v{V_L16}, {srd(S_WS)}, s88 offen {cfg.f("stA")}')
                a.e('s_add_u32 s88, s88, 4096')
            a.e(f'buffer_store_dwordx2 {vr(V_O+14*nb+12,2)}, v4, {srd(S_WS)}, s89 offen {cfg.f("stA")}')
            if nb==0:
                a.e(f's_add_u32 s88, s88, {RT_STRIDE-3*4096}')
                a.e(f's_add_u32 s89, s89, {RT_STRIDE}')
    stamp(a,cfg,5)
    a.e('s_mov_b32 s93, 32'); poll_w0(a,S_DBG,'s93',1,0,1)
    a.e('s_waitcnt vmcnt(0)')
    a.e('s_barrier')
    stamp(a,cfg,7)
    a.e(f's_lshl_b32 s92, s6, 7'); a.e(f's_add_u32 s92, s92, {WS_CNT}')
    signal(a,S_WS,'s92')
    p2_small_loads(a,cfg)
    tok_w=a.vmtok()
    for part in p2_table_parts(a,cfg): part()
    stamp(a,cfg,25)
    p2_compute(a,cfg,tok_w)
    tok_y=a.vmtok()
    stamp(a,cfg,8)
    m_g2_ids(a,cfg)
    T=5
    w2_dma_addr(a,V_W2D,T)
    a.e(f"""v_lshrrev_b32 v{T}, 2, v1
    v_lshl_add_u32 v{T+1}, v2, 2, v{T}
    v_lshlrev_b32 v{V_W2A}, 7, v{T+1}
    v_lshrrev_b32 v{T+1}, 1, v{T+1}
    v_and_b32 v{T+1}, 3, v{T+1}
    v_and_b32 v{T}, 3, v0
    v_lshl_add_u32 v{V_W2A}, v{T}, 3, v{V_W2A}
    v_add_u32 v{V_W2A}, s71, v{V_W2A}""")
    for c in (3,2,1,0):
        a.e(f'v_xor_b32 v{T}, {c}, v{T+1}')
        a.e(f'v_lshl_add_u32 v{V_W2A+c}, v{T}, 5, v{V_W2A}')
    stamp(a,cfg,9)
    a.e('s_waitcnt vmcnt(0)')
    a.e(f's_lshl_b32 s93, s72, 7'); a.e(f's_add_u32 s93, s93, {WS_CNT}')
    poll_w0(a,S_WS,'s93',1,0,16)
    a.e('s_barrier')
    a.e(f's_and_b32 s92, s2, {NS3-1}'); a.e('s_lshl_b32 s92, s92, 7'); a.e(f's_add_u32 s92, s92, {WS_CNT+16*128}')
    signal(a,S_WS,'s92')
    stamp(a,cfg,10)
    m_gemm2(a,cfg,tok_y)
    stamp(a,cfg,13)
    stamps_flush(a,cfg)
    a.e(f's_branch {end}')
    p2_special(a,cfg)

def m_gemm2(a,cfg,tok_y):
    V_ACC=80; V_AF=144; D=8; V_G=72
    RB=lambda t: (8+16*(t%D)) if (t%D)<4 else (160+16*(t%D-4))
    toks={}; tokw={}
    def need(d,k):
        while k not in d: a.bg_pop()
    def a_read1(t,c,hh):
        a.e(f'ds_read_b64_tr_b16 {vr(V_AF+4*c+2*hh,2)}, v{V_W2A+c} offset:{(t%8)*4096+2048*hh}')
        return a.lgtok()
    def push_loads(t):
        b=RB(t)
        if t>=14:
            psi=t-14
            for u in range(4):
                a.bg_push([f's_add_u32 s79, s78, {(16*psi+u)*8192}',
                           f'buffer_load_dwordx4 {vr(b+4*u,4)}, v6, {srd(S_WS)}, s79 offen {cfg.f("ldY")}'],
                          (lambda t=t: toks.__setitem__(t,a.vmtok())) if u==3 else None)
            return
        sc=cfg.f('ldA')
        for q in range(4):
            if t in(3,10):
                l=[f'buffer_load_dwordx2 {vr(b+4*q,2)}, v4, {srd(S_WS)}, s69 offen offset:{1024*q} {sc}',
                   f'buffer_load_dwordx2 {vr(b+4*q+2,2)}, v4, {srd(S_WS)}, s69 offen offset:{1024*q+512} {sc}']
            else:
                l=[f'buffer_load_dwordx4 {vr(b+4*q,4)}, v{V_L16}, {srd(S_WS)}, s69 offen offset:{1024*q} {sc}']
            if q==3: l.append('s_add_u32 s69, s69, 4096')
            a.bg_push(l,(lambda t=t: toks.__setitem__(t,a.vmtok())) if q==3 else None)
    def push_w2(t):
        for v in range(4):
            a.bg_push(w2_group(t,v,V_W2D),(lambda t=t: tokw.__setitem__(t,a.vmtok())) if v==3 else None)
    a.e('v_lshlrev_b32 v4, 3, v0')
    npre=cfg.x.get('npre',4)
    for t in range(npre): push_loads(t)
    a.bg_flush()
    nxt=npre
    a.e(f"""v_lshlrev_b32 v5, 4, v1
    v_lshlrev_b32 v6, 15, v2
    v_add_u32 v6, v6, v5
    v_add_u32 v7, s71, v{V_L16}
    s_lshl_b32 s78, {wv}, 19
    s_add_u32 s78, s78, s74
    s_add_u32 s78, s78, {WS_Y}""")
    ta={}
    for c in range(4):
        for hh in range(2): ta[(0,c,hh)]=a_read1(0,c,hh)
    a.bg_set(cfg.x.get('g2r',2),mfma_weight=2)
    TS3=cfg.x.get('ts3',10)
    for t in range(18):
        if cfg.fine==1: stamp(a,cfg,32+t)
        need(toks,t); a.wait_vm(toks[t])
        if t+1 in range(8,14):
            need(tokw,t+1); a.wait_vm(tokw[t+1])
        k_=0
        while nxt<14 and nxt-D<t and k_<2 and t<14:
            if nxt-D==t-0 and False: break
            if nxt-D>=t: break
            push_loads(nxt); nxt+=1; k_+=1
        if 1<=t and t-1+8<14: push_w2(t-1+8)
        if t==TS3+1: push_loads(14); push_loads(15)
        if t==TS3+2: push_loads(16); push_loads(17)
        b=RB(t)
        if t==14:
            a.need_vm(tok_g)
            for q in range(4): a.e(f'v_sub_f32 v{V_G+q}, 1.0, v{V_G+q}')
            for q in range(4):
                for h in range(8):
                    a.e(f'v_pk_mul_f32 {vr(V_ACC+16*q+2*h,2)}, {vr(V_ACC+16*q+2*h,2)}, {vr(V_G+(q&~1),2)} op_sel:[0,{q&1}] op_sel_hi:[1,{q&1}]')
            stamp(a,cfg,11)
        if t>=14:
            tg=[]
            for c in range(4):
                a.e(f'ds_read_b128 {vr(V_AF+4*c,4)}, v7 offset:{GSLOT[t-14]*4096+c*1024}'); tg.append(a.lgtok())
            for (i,j) in[(0,1),(0,2),(0,3),(1,2),(1,3),(2,3)]:
                a.e(f'v_swap_b32 v{b+4*i+j}, v{b+4*j+i}')
        for c in range(4):
            if t<14:
                n=a.lg-ta[(t,c,1)]
                a.e(f's_waitcnt lgkmcnt({min(n,15)})')
            else:
                a.e(f's_waitcnt lgkmcnt({min(a.lg-tg[c],15)})')
            A=vr(V_AF+4*c,4)
            for q in range(4):
                d=vr(V_ACC+16*q+4*c,4)
                r=a.bg_rate
                if q<2 and t<14: a.bg_rate=0
                a.e(f'v_mfma_f32_16x16x32_bf16 {d}, {A}, {vr(b+4*q,4)}, {d if t else 0}')
                if q<2 and t<14:
                    if c>=1 and t<13: ta[(t+1,c-1,q)]=a_read1(t+1,c-1,q)
                    if c==0 and t>=1: ta[(t,3,q)]=a_read1(t,3,q)
                a.bg_rate=r
        if t==TS3:
            a.bg_flush()
            a.e(f's_mov_b32 s93, {WS_CNT+16*128}')
            poll_w0(a,S_WS,'s93',NS3,128,256//NS3)
            a.e('s_barrier')
            a.e(f's_add_u32 s75, s74, {WS_G}')
            a.e(f'buffer_load_dwordx4 {vr(V_G,4)}, v5, {srd(S_WS)}, s75 offen {cfg.f("ldW")}')
            tok_g=a.vmtok()
        if t==13: a.e('s_barrier')
    a.bg_flush(); a.bg_set(0)
    stamp(a,cfg,12)
    a.e(f'v_add_u32 v7, s71, v{V_L16}')
    for w in range(4):
        a.e(f's_cmp_lg_u32 {wv}, {w}')
        a.e(f's_cbranch_scc1 L_k3_w{w}')
        a.cond_begin()
        slot=0
        for q in range(4):
            if q==w: continue
            for c in range(4):
                a.e(f'ds_write_b128 v7, {vr(V_ACC+16*q+4*c,4)} offset:{slot*4096+c*1024}')
            slot+=1
        if w!=0:
            for h in range(8): a.e(f'v_pk_mov_b32 {vr(V_ACC+2*h,2)}, {vr(V_ACC+16*w+2*h,2)}, {vr(V_ACC+16*w+2*h,2)} op_sel:[0,1]')
        a.cond_end()
        a.e(f'L_k3_w{w}:')
    a.e('s_waitcnt lgkmcnt(0)'); a.e('s_barrier')
    V_RD=160
    for k in range(1,4):
        a.e(f"""s_add_u32 s76, {wv}, {k}
        s_and_b32 s76, s76, 3
        s_lshl_b32 s77, s76, 15
        s_cmp_lt_u32 {wv}, s76
        s_cselect_b32 s79, 0, 1
        s_sub_u32 s79, {wv}, s79
        s_lshl_b32 s79, s79, 12
        s_add_u32 s77, s77, s79
        v_add_u32 v7, s77, v{V_L16}""")
        for c in range(4): a.e(f'ds_read_b128 {vr(V_RD+16*(k-1)+4*c,4)}, v7 offset:{c*1024}')
    a.e(f"""v_lshlrev_b32 v5, 10, v1
    v_lshl_add_u32 v5, v2, 3, v5
    s_lshl_b32 s76, s72, 17
    s_lshl_b32 s77, {wv}, 15
    s_add_u32 s76, s76, s77
    s_lshl_b32 s77, s73, 14
    s_add_u32 s76, s76, s77
    s_lshl_b32 s77, s68, 7
    s_add_u32 s76, s76, s77""")
    for k in range(3):
        a.e(f's_waitcnt lgkmcnt({8-4*k})')
        for h in range(8): a.e(f'v_pk_add_f32 {vr(V_ACC+2*h,2)}, {vr(V_ACC+2*h,2)}, {vr(V_RD+16*k+2*h,2)}')
    V_O=8
    for c in range(4):
        a.e(f'v_cvt_pk_bf16_f32 v{V_O+2*c}, v{V_ACC+4*c}, v{V_ACC+4*c+1}')
        a.e(f'v_cvt_pk_bf16_f32 v{V_O+2*c+1}, v{V_ACC+4*c+2}, v{V_ACC+4*c+3}')
        a.e(f'buffer_store_dwordx2 {vr(V_O+2*c,2)}, v5, {srd(S_OUT)}, s76 offen offset:{32*c}')

P2=dict(V_U=8,V_W=40,V_GT=48,V_Q=56,T0=64,V_F64R=80,V_F64I=96,V_F32R=112,V_F32I=128,V_T1C=144,V_T1S=152,V_T3C=160,V_T3S=168,V_DR=176,V_DI=184,V_B=192)
V_FW2D=246
def f_stream(a,cfg,end):
    a.e('L_F:')
    if cfg.x.get('fprio'): a.e(f's_setprio {cfg.x["fprio"]}')
    a.e(f'''s_lshr_b32 s49, s2, 5
    s_and_b32 s50, s2, 31
    s_lshl_b32 s51, s6, 17
    s_lshl_b32 s56, {wv}, 13
    s_add_u32 s51, s51, s56
    s_mul_i32 s52, s7, 224
    s_mul_i32 s56, {wv}, 14336
    s_add_u32 s52, s52, s56
    s_lshl_b32 s53, {wv}, 10
    s_mul_i32 s54, {wv}, 960
    s_add_u32 s54, s54, 16384''')
    T=6; V_XD=4; V_WD=5
    a.e(f'''v_lshrrev_b32 v{T}, 3, v0
    v_lshlrev_b32 v{V_XD}, 10, v{T}
    v_lshrrev_b32 v{T}, 1, v{T}
    s_and_b32 s56, {wv}, 1
    s_lshl_b32 s56, s56, 2
    v_add_u32 v{T}, s56, v{T}
    v_and_b32 v{T+1}, 7, v0
    v_xor_b32 v{T}, v{T}, v{T+1}
    v_lshl_add_u32 v{V_XD}, v{T}, 4, v{V_XD}
    v_mul_u32_u24 v{T}, 4682, v0
    v_lshrrev_b32 v{T}, 16, v{T}
    v_mul_u32_u24 v{V_WD}, 3584, v{T}
    v_mul_u32_u24 v{T}, 14, v{T}
    v_sub_u32 v{T}, v0, v{T}
    v_lshl_add_u32 v{V_WD}, v{T}, 4, v{V_WD}
    v_mov_b32 v{V_LC}, {LC_BASE}''')
    a.e(f'''s_lshl_b32 s56, s49, 18
    s_lshl_b32 s57, s50, 10
    s_add_u32 s56, s56, s57
    s_lshl_b32 s57, {wv}, 16
    s_add_u32 s56, s56, s57
    s_add_u32 s58, s56, 32768
    s_mul_i32 s57, {wv}, {2*XA_PITCH}
    s_add_u32 s57, s57, {XA_BASE}''')
    a.e('s_waitcnt lgkmcnt(0)')
    stamp(a,cfg,26)
    a.e(f's_cmp_lg_u32 {wv}, 0'); a.e('s_cbranch_scc1 L_a_r0'); a.cond_begin()
    a.e(f's_mov_b32 m0, {GW_LDS}'); a.e('s_nop 0')
    a.e(f'buffer_load_dwordx4 v{V_L16}, {srd(S_GW)}, 0 offen lds')
    a.cond_end(); a.e('L_a_r0:')
    a.e(f's_cmp_lg_u32 {wv}, 1'); a.e('s_cbranch_scc1 L_a_r1'); a.cond_begin()
    a.e(f's_mul_i32 s64, s7, 224'); a.e(f's_mov_b32 m0, {B1_LDS}'); a.e('s_mov_b64 exec, 0x3fff')
    a.e(f'buffer_load_dwordx4 v{V_L16}, {srd(S_B1)}, s64 offen lds')
    a.e('s_mov_b64 exec, -1')
    a.cond_end(); a.e('L_a_r1:')
    tok_c={}
    def chunk_groups(c):
        gs=[]
        for u in range(4):
            gs.append(([f's_add_u32 m0, s53, {SB(c)+u*4096}', f's_add_u32 s55, s51, {u*32768+c*128}',
                        f'buffer_load_dwordx4 v{V_XD}, {srd(S_X)}, s55 offen lds'],None))
        for u in range(4):
            cb=(lambda c=c: tok_c.__setitem__(c,a.vmtok())) if u==3 else None
            gs.append(([f's_add_u32 m0, s54, {SB(c)+u*3840}', f's_add_u32 s55, s52, {u*57344+c*229376}',
                        's_mov_b32 exec_hi, 0x00ffffff',
                        f'buffer_load_dwordx4 v{V_WD}, {srd(S_W1)}, s55 offen lds',
                        's_mov_b32 exec_hi, -1'],cb))
        return gs
    def push_chunk(c):
        for g_ in chunk_groups(c): a.bg_push(*g_)
    def wait_role(tok,e3,e2):
        n=a.vm-tok; lab=f'L_wr{len(a.items)}'
        a.e(f's_cmp_eq_u32 {wv}, 3'); a.e(f's_cbranch_scc1 {lab}_3')
        a.e('s_cmp_eq_u32 s66, 0'); a.e(f's_cbranch_scc1 {lab}_2')
        a.e(f's_waitcnt vmcnt({n})'); a.e(f's_branch {lab}_e')
        a.e(f'{lab}_3:'); a.e(f's_waitcnt vmcnt({min(n+e3,62)})'); a.e(f's_branch {lab}_e')
        a.e(f'{lab}_2:'); a.e(f's_waitcnt vmcnt({min(n+e2,62)})')
        a.e(f'{lab}_e:')
    def chunk_now(c):
        if cfg.fine==3: stamp(a,cfg,48+2*c%16 if False else 40+c)
        push_chunk(c); a.bg_flush()
        if cfg.fine==3: stamp(a,cfg,50+c)
    a.e(f'''s_mov_b32 m0, s57
    s_add_u32 s57, s57, {XA_PITCH}
    buffer_load_dwordx4 v{V_L16}, {srd(S_X)}, s56 offen lds
    s_mov_b32 m0, s57
    s_nop 0
    buffer_load_dwordx4 v{V_L16}, {srd(S_X)}, s58 offen lds''')
    tok_xa=a.vmtok()
    chunk_now(0)
    if cfg.x.get('c1pre',1): chunk_now(1)
    if cfg.x.get('fprio'): a.e('s_setprio 0')
    stamp(a,cfg,0)
    a.wait_vm(tok_xa); a.e('s_barrier')
    stamp(a,cfg,1)
    if not cfg.x.get('c1pre',1): chunk_now(1)
    chunk_now(2)
    T0=92; V_B1S=68
    a.wait_vm(tok_c[0]); a.e('s_barrier')
    if cfg.fine==3: stamp(a,cfg,27)
    chunk_now(3)
    a.wait_vm(tok_c[1]); a.e('s_barrier')
    if cfg.fine==3: stamp(a,cfg,29)
    chunk_now(4)
    a.wait_vm(tok_c[2]); a.e('s_barrier')
    if cfg.fine==3: stamp(a,cfg,30)
    chunk_now(5)
    a.e('''s_lshr_b32 s59, s50, 3
    s_lshr_b32 s60, s50, 2
    s_and_b32 s60, s60, 1
    s_and_b32 s61, s50, 3
    s_lshl_b32 s62, s59, 4
    s_lshl_b32 s63, s60, 10
    s_add_u32 s62, s62, s63
    s_lshl_b32 s63, s61, 8
    s_add_u32 s62, s62, s63
    s_lshl_b32 s63, s59, 11
    s_lshl_b32 s64, s60, 10
    s_add_u32 s63, s63, s64
    s_lshl_b32 s64, s61, 8
    s_add_u32 s63, s63, s64''')
    V_WR=8; V_WI=24; V_WO=7
    a.e(f's_cmp_lg_u32 {wv}, 3'); a.e('s_cbranch_scc1 L_a_r3'); a.cond_begin()
    a.e(f'''v_lshrrev_b32 v{V_WO}, 2, v0
    v_mul_u32_u24 v{V_WO}, 514, v{V_WO}
    v_and_b32 v{T}, 3, v0
    v_lshl_add_u32 v{V_WO}, v{T}, 4, v{V_WO}
    s_mul_i32 s64, s62, 514
    s_lshl_b32 s65, s49, 6
    s_add_u32 s64, s64, s65''')
    for r in range(4):
        a.e(f'buffer_load_dwordx4 {vr(V_WR+4*r,4)}, v{V_WO}, {srd(S_WR)}, s64 offen')
        a.e(f'buffer_load_dwordx4 {vr(V_WI+4*r,4)}, v{V_WO}, {srd(S_WI)}, s64 offen')
        if r<3: a.e(f's_add_u32 s64, s64, {64*514}')
    a.cond_end(); a.e('L_a_r3:')
    V_SP=40; V_J=48; V_JR=49
    a.e(f'''s_lshl_b32 s65, s49, 2
    s_xor_b32 s66, {wv}, 2
    s_or_b32 s66, s66, s65''')
    a.e('s_cmp_lg_u32 s66, 0'); a.e('s_cbranch_scc1 L_a_r2'); a.cond_begin()
    a.e(f'''v_lshlrev_b32 v{V_J}, 6, v2
    v_add_u32 v{V_J}, v{V_J}, v1
    v_add_u32 v{V_J}, s62, v{V_J}
    v_sub_u32 v{V_JR}, 2048, v{V_J}
    v_and_b32 v{V_JR}, 2047, v{V_JR}
    v_mul_u32_u24 v{V_J}, 514, v{V_J}
    v_mul_u32_u24 v{V_JR}, 514, v{V_JR}''')
    for n,(S,vv,off) in enumerate([(S_WR,V_J,0),(S_WR,V_J,512),(S_WR,V_JR,0),(S_WR,V_JR,512),(S_WI,V_J,0),(S_WI,V_J,512),(S_WI,V_JR,0),(S_WI,V_JR,512)]):
        a.e(f'buffer_load_ushort v{V_SP+n}, v{vv}, {srd(S)}, 0 offen offset:{off}')
    a.cond_end(); a.e('L_a_r2:')
    tok_role=a.vmtok()
    wait_role(tok_c[3],8,8); a.e('s_barrier')
    if cfg.fine==3: stamp(a,cfg,31)
    chunk_now(6)
    wait_role(tok_c[4],8,8); a.e('s_barrier')
    two=cfg.x.get('s1two',0)
    if two:
        a.e('s_and_b32 s92, s5, 3'); a.e('s_lshl_b32 s92, s92, 6')
        signal(a,S_DBG,'s92')
    if cfg.fine==3: stamp(a,cfg,32)
    chunk_now(7)
    a.e(f's_cmp_lg_u32 {wv}, 3'); a.e('s_cbranch_scc1 L_a_w3')
    a.wait_vm(tok_role); a.cond_begin()
    V_WP=188
    a.e('s_mov_b32 s78, 0x05040100'); a.e('s_mov_b32 s79, 0x07060302')
    for kk in range(8):
        for r in range(4):
            a.e(f'v_perm_b32 v{V_WP+4*kk+r}, v{V_WI+4*r+(kk>>1)}, v{V_WR+4*r+(kk>>1)}, s{78+(kk&1)}')
    a.e(f'''v_and_b32 v{T0+4}, 3, v0
    v_lshlrev_b32 v{T0+5}, 16, v{T0+4}
    v_lshrrev_b32 v{T0+6}, 2, v0
    v_lshl_add_u32 v{T0+5}, v{T0+6}, 4, v{T0+5}
    s_lshl_b32 s76, s49, 2
    v_add_u32 v{T0+4}, s76, v{T0+4}
    v_cmp_eq_u32 vcc, 0, v{T0+4}
    v_mov_b32 v{T0+6}, {OOB}
    v_cndmask_b32 v{T0+6}, v{T0+5}, v{T0+6}, vcc
    s_lshl_b32 s76, s49, 18
    s_add_u32 s76, s76, s63
    s_add_u32 s76, s76, {WS_WT}''')
    for kk in range(8):
        a.e(f'buffer_store_dwordx4 {vr(V_WP+4*kk,4)}, v{T0+6 if kk==0 else T0+5}, {srd(S_WS)}, s76 offen {cfg.f("stW")}')
        if kk<7: a.e('s_add_u32 s76, s76, 8192')
    a.cond_end(); a.e('L_a_w3:')
    a.e('s_cmp_lg_u32 s66, 0'); a.e('s_cbranch_scc1 L_a_w2')
    a.wait_vm(tok_role); a.cond_begin()
    for n in range(8): a.e(f'v_lshlrev_b32 v{V_SP+n}, 16, v{V_SP+n}')
    s=V_SP; t=V_B1S
    a.e(f'''v_add_f32 v{t}, v{s}, v{s+2}
    v_add_f32 v{t+1}, v{s+1}, v{s+3}
    v_sub_f32 v{t+2}, v{s+4}, v{s+6}
    v_sub_f32 v{t+3}, v{s+5}, v{s+7}
    v_add_f32 v{t+4}, v{t}, v{t+1}
    v_add_f32 v{t+5}, v{t+2}, v{t+3}
    v_sub_f32 v{t+6}, v{t}, v{t+1}
    v_sub_f32 v{t+7}, v{t+2}, v{t+3}
    v_mul_f32 v{t+4}, {fl(0.25)}, v{t+4}
    v_mul_f32 v{t+5}, {fl(0.25)}, v{t+5}
    v_mul_f32 v{t+6}, {fl(0.25)}, v{t+6}
    v_mul_f32 v{t+7}, {fl(0.25)}, v{t+7}
    v_cvt_pk_bf16_f32 v{t}, v{t+4}, v{t+5}
    v_cvt_pk_bf16_f32 v{t+1}, v{t+6}, v{t+7}
    v_lshlrev_b32 v{t+2}, 4, v1
    v_lshl_add_u32 v{t+2}, v2, 2, v{t+2}
    s_add_u32 s77, s63, {WS_QT}
    s_add_u32 s76, s63, {WS_WT}
    buffer_store_dword v{t}, v{t+2}, {srd(S_WS)}, s76 offen {cfg.f("stW")}
    buffer_store_dword v{t+1}, v{t+2}, {srd(S_WS)}, s77 offen {cfg.f("stW")}''')
    a.cond_end(); a.e('L_a_w2:')
    a.wait_vm(tok_c[5]) if False else None
    a.e(f's_waitcnt vmcnt({cfg.x.get("b5n",18)})') if False else None
    wait_role(tok_c[5],16,10); a.e('s_barrier')
    if cfg.fine==3: stamp(a,cfg,33)
    m_g2_ids(a,cfg)
    w2_dma_addr(a,V_FW2D,244)
    wait_role(tok_c[6],8,2); a.e('s_barrier')
    if cfg.fine==3: stamp(a,cfg,34)
    if two:
        wait_role(tok_c[7],8,2); a.e('s_barrier')
    else:
        a.e('s_waitcnt vmcnt(0)'); a.e('s_barrier')
        a.e('s_and_b32 s92, s5, 3'); a.e('s_lshl_b32 s92, s92, 6')
        signal(a,S_DBG,'s92')
    if cfg.fine==3: stamp(a,cfg,35)
    a.e('s_barrier')
    if two:
        a.e(f's_cmp_eq_u32 {wv}, 3'); a.e('s_cbranch_scc1 L_f_s1b')
        a.e('s_cmp_lg_u32 s66, 0'); a.e('s_cbranch_scc1 L_f_nos1b')
        a.e('L_f_s1b:')
        a.cond_begin()
        a.e(f"""s_waitcnt vmcnt(0)
        s_and_b32 s92, s5, 3
        s_lshl_b32 s92, s92, 6
        s_add_u32 s92, s92, 4
        v_mov_b32 v{V_SIG}, 1
        v_mov_b32 v{V_SIG+1}, 0
        s_mov_b64 exec, 1
        buffer_atomic_add v{V_SIG}, v{V_SIG+1}, {srd(S_DBG)}, s92 offen sc1
        s_mov_b64 exec, -1""")
        a.cond_end(); a.e('L_f_nos1b:')
    stamp(a,cfg,4)
    def w2slots(lo,hi):
        for t in range(lo,hi):
            for v in range(4): a.bg_push(w2_group(t,v,V_FW2D))
        a.bg_flush()
    w2slots(0,cfg.x.get('w2pre',4))
    stamp(a,cfg,5)
    a.e(f's_cmp_lg_u32 {wv}, 0'); a.e('s_cbranch_scc1 L_f_s1'); a.cond_begin()
    if cfg.x.get('s1drain',1): a.e('s_waitcnt vmcnt(0)')
    a.e('s_mov_b32 s93, 0')
    spin_global(a,S_DBG,'s93',4,64,64)
    p2_t_loads(a,cfg)
    if two:
        a.e('s_mov_b32 s93, 4')
        spin_global(a,S_DBG,'s93',4,64,72)
    a.cond_end(); a.e('L_f_s1:')
    stamp(a,cfg,6)
    a.e('s_waitcnt vmcnt(0)'); a.e('s_barrier')
    stamp(a,cfg,7)
    w2slots(cfg.x.get('w2pre',4),8)
    a.e('s_waitcnt vmcnt(0)'); a.e('s_barrier')
    a.e('s_lshl_b32 s56, s4, 5'); a.e('s_add_u32 s56, s56, s5')
    a.e('s_cmp_lg_u32 s56, 0'); a.e('s_cbranch_scc1 L_f_nospec'); a.cond_begin()
    a.e('s_barrier')
    a.cond_end(); a.e('L_f_nospec:')
    a.e('s_barrier')
    T0=80; TA=92
    a.e(f"""s_lshl_b32 s75, s68, 6
    v_add_u32 v{T0}, s75, v1
    v_cvt_f32_u32 v{T0}, v{T0}
    s_lshl_b32 s75, {wv}, 6
    v_lshlrev_b32 v{T0+1}, 2, v2
    v_add_u32 v{T0+1}, s75, v{T0+1}
    v_cvt_f32_u32 v{T0+1}, v{T0+1}""")
    for c in range(4):
        a.e(f'v_add_f32 v{T0+2+c}, {fl(16*c)}, v{T0}' if c else f'v_mov_b32 v{T0+2}, v{T0}')
        a.e(f'v_mul_f32 v{T0+2+c}, {fl(1/512)}, v{T0+2+c}')
        a.e(f'v_mul_f32 v{T0+6+c}, v{T0+1}, v{T0+2+c}')
    def pk(d): return lambda c,s: a.e(f'v_cvt_pk_bf16_f32 v{d}, v{c}, v{s}')
    angles(a,[(T0+2+c,T0+6+c,16*psi+u,(None,None,pk(V_GF+16*psi+4*c+u)),False) for (psi,c,u) in G_ITEMS],TA)
    a.e(f"""s_cmp_eq_u32 {wv}, 0
    s_cselect_b32 s76, 0xffff, 0
    s_mov_b32 s77, 0
    v_mov_b32 v{T0}, {hex(0xBF003F00)}
    v_and_b32 v{T0+1}, 1, v1
    v_lshlrev_b32 v{T0+1}, 31, v{T0+1}
    v_xor_b32 v{T0}, v{T0}, v{T0+1}""")
    for c in range(4): a.e(f'v_cndmask_b32 v{V_GF+4*c}, v{V_GF+4*c}, v{T0}, s[76:77]')
    a.e(f'v_add_u32 v7, s71, v{V_L16}')
    a.e('s_barrier')
    for psi in range(4):
        for c in range(4):
            a.e(f'ds_write_b128 v7, {vr(V_GF+16*psi+4*c,4)} offset:{GSLOT[psi]*4096+c*1024}')
    a.e('s_waitcnt lgkmcnt(0)'); a.e('s_barrier')
    stamps_flush(a,cfg)
    a.e(f's_branch {end}')

def p2_t_loads(a,cfg):
    T0=64
    a.e(f'''s_lshl_b32 s56, s4, 5
    s_add_u32 s56, s56, s5
    v_lshrrev_b32 v{T0}, 5, v0
    v_lshlrev_b32 v{T0}, 18, v{T0}
    v_bfe_u32 v{T0+1}, v0, 1, 4
    v_lshl_add_u32 v{T0}, v{T0+1}, 13, v{T0}
    v_and_b32 v{T0+1}, 1, v0
    v_lshl_add_u32 v{T0}, v{T0+1}, 4, v{T0}
    s_lshl_b32 s57, s56, 5
    s_add_u32 s57, s57, {WS_T}''')
    for ks in range(4):
        for mb in range(2):
            a.e(f's_mov_b32 m0, {TB_BASE+2048*ks+1024*mb}')
            a.e(f's_add_u32 s58, s57, {ks*524288+mb*131072}')
            a.e(f'buffer_load_dwordx4 v{T0}, {srd(S_WS)}, s58 offen {cfg.f("ldT")} lds')

def p2_small_loads(a,cfg):
    V_W,V_GT,V_Q,T0=P2['V_W'],P2['V_GT'],P2['V_Q'],P2['T0']
    a.e(f'''s_lshl_b32 s56, s4, 5
    s_add_u32 s56, s56, s5
    s_lshl_b32 s60, s56, 13
    s_lshl_b32 s61, {wv}, 11
    s_add_u32 s60, s60, s61
    s_add_u32 s62, s60, {WS_WT}
    s_add_u32 s63, s61, {WS_G}
    s_add_u32 s64, s61, {WS_QT}''')
    for eh in range(2): a.e(f'buffer_load_dwordx4 {vr(V_W+4*eh,4)}, v{V_L16}, {srd(S_WS)}, s62 offen offset:{1024*eh} {cfg.f("ldW")}')
    for nb in range(2): a.e(f'buffer_load_dwordx4 {vr(V_GT+4*nb,4)}, v{V_L16}, {srd(S_WS)}, s63 offen offset:{1024*nb} {cfg.f("ldW")}')
    a.e(f'''s_cmp_eq_u32 s56, 0
    s_cselect_b32 s65, 0, {OOB}
    v_add_u32 v{T0+2}, s65, v{V_L16}''')
    for eh in range(2): a.e(f'buffer_load_dwordx4 {vr(V_Q+4*eh,4)}, v{T0+2}, {srd(S_WS)}, s64 offen offset:{1024*eh} {cfg.f("ldW")}')

def p2_table_parts(a,cfg):
    p=P2; T0=232; TA=200
    def pk(dr,di):
        def f(c,s):
            a.e(f'v_cvt_pk_bf16_f32 v{dr}, v{c}, v{s}')
            a.e(f'v_cvt_pk_bf16_f32 v{di}, -v{s}, v{c}')
        return f
    def part0():
        a.e(f'''s_lshl_b32 s83, {wv}, 4
        v_add_u32 v{T0}, s83, v1
        v_cvt_f32_u32 v{T0}, v{T0}
        v_lshlrev_b32 v{T0+2}, 2, v2
        v_cvt_f32_u32 v{T0+2}, v{T0+2}
        v_mul_f32 v{T0+1}, {fl(1/64)}, v{T0}
        v_mul_f32 v{T0+3}, v{T0+2}, v{T0+1}''')
        angles(a,[(T0+1,T0+3,16*ks+u,(None,None,pk(p['V_F64R']+4*ks+u,p['V_F64I']+4*ks+u)),False) for ks in range(3) for u in range(4)],TA)
    def part1():
        angles(a,[(T0+1,T0+3,16*ks+u,(None,None,pk(p['V_F64R']+4*ks+u,p['V_F64I']+4*ks+u)),False) for ks in range(3,4) for u in range(4)],TA)
        a.e(f'''v_mul_f32 v{T0+1}, {fl(1/2048)}, v{T0}
        v_mul_f32 v{T0+3}, v{T0+2}, v{T0+1}''')
        angles(a,[(T0+1,T0+3,16*mb+r,(p['V_T1C']+4*mb+r,p['V_T1S']+4*mb+r,None),True) for mb in range(2) for r in range(4)],TA)
    def part2():
        a.e(f'v_cvt_f32_u32 v{T0+7}, v1')
        for eh in range(2):
            a.e(f'''v_add_f32 v{T0+1}, {fl(16*eh)}, v{T0+7}
            v_mul_f32 v{T0+1}, {fl(1/32)}, v{T0+1}
            v_mul_f32 v{T0+3}, v{T0+2}, v{T0+1}''')
            angles(a,[(T0+1,T0+3,16*mb+u,(None,None,pk(p['V_F32R']+8*eh+4*mb+u,p['V_F32I']+8*eh+4*mb+u)),False) for mb in range(2) for u in range(4)],TA)
    def part3():
        a.e(f'''v_cvt_f32_u32 v{T0}, s83
        v_add_f32 v{T0+2}, v{T0}, v{T0+2}''')
        for nb in range(2):
            a.e(f'''v_add_f32 v{T0+1}, {fl(16*nb)}, v{T0+7}
            v_mul_f32 v{T0+1}, {fl(1/2048)}, v{T0+1}
            v_mul_f32 v{T0+3}, v{T0+2}, v{T0+1}''')
            angles(a,[(T0+1,T0+3,r,(p['V_T3C']+4*nb+r,p['V_T3S']+4*nb+r,None),True) for r in range(4)],TA)
    return [part0,part1,part2,part3]

def p2_compute(a,cfg,tok_w):
    p=P2
    V_U,V_W,V_GT,T0=p['V_U'],p['V_W'],p['V_GT'],p['T0']
    V_F64R,V_F64I,V_F32R,V_F32I=p['V_F64R'],p['V_F64I'],p['V_F32R'],p['V_F32I']
    V_T1C,V_T1S,V_T3C,V_T3S=p['V_T1C'],p['V_T1S'],p['V_T3C'],p['V_T3S']
    V_DR,V_DI,V_B=p['V_DR'],p['V_DI'],p['V_B']; TT=200
    a.e(f'''v_lshrrev_b32 v{T0+4}, 1, v2
    v_lshlrev_b32 v{T0+4}, 5, v{T0+4}
    v_lshl_add_u32 v{T0+4}, v1, 1, v{T0+4}
    v_and_b32 v{T0+5}, 1, v2
    v_add_u32 v{T0+4}, v{T0+4}, v{T0+5}
    v_lshlrev_b32 v{T0+4}, 4, v{T0+4}
    v_add_u32 v{T0+4}, {TB_BASE}, v{T0+4}''')
    for ks in range(4):
        for mb in range(2):
            a.e(f'ds_read_b128 {vr(V_U+16*mb+4*ks,4)}, v{T0+4} offset:{2048*ks+1024*mb}')
    V_WR=216; V_WI=224
    a.wait_vm(tok_w)
    for e in range(8):
        a.e(f'v_lshlrev_b32 v{V_WR+e}, 16, v{V_W+e}')
        a.e(f'v_and_b32 v{V_WI+e}, 0xffff0000, v{V_W+e}')
    for ks in range(4):
        a.e(f's_waitcnt lgkmcnt({6-2*ks})')
        for mb in range(2):
            A=vr(V_U+16*mb+4*ks,4)
            for (D,Fm) in((V_DR,V_F64R),(V_DI,V_F64I)):
                d=vr(D+4*mb,4)
                a.e(f'v_mfma_f32_16x16x32_bf16 {d}, {A}, {vr(Fm+4*ks,4)}, {d if ks else 0}')
    for e in range(8): a.e(f'v_mul_f32 v{V_GT+e}, {fl(2.0**-19)}, v{V_GT+e}')
    for mb in range(2): cmul_pack(a,V_DR+4*mb,V_DI+4*mb,V_T1C+4*mb,V_T1S+4*mb,V_B+4*mb,TT)
    for mb in range(2):
        for eh in range(2):
            for (D,Fm) in((V_DR,V_F32R),(V_DI,V_F32I)):
                d=vr(D+4*eh,4)
                a.e(f'v_mfma_f32_16x16x32_bf16 {d}, {vr(Fm+8*eh+4*mb,4)}, {vr(V_B+4*mb,4)}, {d if mb else 0}')
    a.e(f'''s_lshl_b32 s65, {wv}, 11
    s_add_u32 s65, s65, {XB_BASE}
    v_add_u32 v{T0+4}, s65, v{V_L16}
    v_add_u32 v{T0+5}, {XB_BASE}, v{V_L16}''')
    a.e('s_cmp_lg_u32 s56, 0')
    a.e('s_cbranch_scc0 L_p2_special')
    for eh in range(2): cmul_pack(a,V_DR+4*eh,V_DI+4*eh,V_WR+4*eh,V_WI+4*eh,V_B+4*eh,TT,negim=True)
    a.e('L_p2_join:')
    for ks in range(2):
        for nb in range(2):
            for (D,Fm) in((V_DR,V_F32R),(V_DI,V_F32I)):
                d=vr(D+4*nb,4)
                a.e(f'v_mfma_f32_16x16x32_bf16 {d}, {vr(V_B+4*ks,4)}, {vr(Fm+8*nb+4*ks,4)}, {d if ks else 0}')
    for nb in range(2):
        cmul_pack(a,V_DR+4*nb,V_DI+4*nb,V_T3C+4*nb,V_T3S+4*nb,V_B+4*nb,TT)
        a.e(f'ds_write_b128 v{T0+4}, {vr(V_B+4*nb,4)} offset:{1024*nb}')
    a.e('s_waitcnt lgkmcnt(0)')
    a.e('s_barrier')
    V_X=V_U
    for ks in range(4):
        for nb in range(2):
            a.e(f'ds_read_b128 {vr(V_X+8*ks+4*nb,4)}, v{T0+5} offset:{2048*ks+1024*nb}')
    for ks in range(4):
        a.e(f's_waitcnt lgkmcnt({6-2*ks})')
        for nb in range(2):
            for (D,Fm) in((V_DR,V_F64R),(V_DI,V_F64I)):
                d=vr(D+4*nb,4)
                a.e(f'v_mfma_f32_16x16x32_bf16 {d}, {vr(Fm+4*ks,4)}, {vr(V_X+8*ks+4*nb,4)}, {d if ks else 0}')
    a.e(f's_add_u32 s62, s60, {WS_Y}')
    for nb in range(2):
        for h in range(2):
            a.e(f'v_pk_mul_f32 {vr(V_DR+4*nb+2*h,2)}, {vr(V_DR+4*nb+2*h,2)}, {vr(V_GT+4*nb+2*h,2)}')
            a.e(f'v_pk_mul_f32 {vr(V_DI+4*nb+2*h,2)}, {vr(V_DI+4*nb+2*h,2)}, {vr(V_GT+4*nb+2*h,2)}')
        for r in range(4): a.e(f'v_cvt_pk_bf16_f32 v{V_B+4*nb+r}, v{V_DR+4*nb+r}, v{V_DI+4*nb+r}')
        a.e(f'buffer_store_dwordx4 {vr(V_B+4*nb,4)}, v{V_L16}, {srd(S_WS)}, s62 offen offset:{1024*nb} {cfg.f("stY")}')

def p2_special(a,cfg):
    p=P2
    V_U,V_Q,T0,V_DR,V_DI,V_B=p['V_U'],p['V_Q'],p['T0'],p['V_DR'],p['V_DI'],p['V_B']
    V_WR=216; V_WI=224
    a.e('L_p2_special:')
    a.cond_begin()
    V_J=T0+8; V_ZA=V_U+16
    a.e(f'''s_lshl_b32 s65, {wv}, 4
    v_lshlrev_b32 v{V_J}, 8, v2
    v_add3_u32 v{V_J}, v{V_J}, v1, s65''')
    for eh in range(2):
        for r in range(4):
            n=1024*eh+64*r
            a.e(f'v_add_u32 v{T0}, {n}, v{V_J}')
            a.e(f'v_lshlrev_b32 v{T0}, 2, v{T0}')
            a.e(f'v_cvt_pk_bf16_f32 v{T0+2}, v{V_DR+4*eh+r}, v{V_DI+4*eh+r}')
            a.e(f'v_add_u32 v{T0}, {ZR_BASE}, v{T0}')
            a.e(f'ds_write_b32 v{T0}, v{T0+2}')
    a.e('s_waitcnt lgkmcnt(0)')
    a.e('s_barrier')
    for eh in range(2):
        for r in range(4):
            n=1024*eh+64*r
            a.e(f'v_sub_u32 v{T0}, {2048-n}, v{V_J}')
            a.e(f'v_and_b32 v{T0}, 2047, v{T0}')
            a.e(f'v_lshlrev_b32 v{T0}, 2, v{T0}')
            a.e(f'v_add_u32 v{T0}, {ZR_BASE}, v{T0}')
            a.e(f'ds_read_b32 v{V_ZA+4*eh+r}, v{T0}')
    a.e('s_waitcnt lgkmcnt(0)')
    for e in range(8):
        zr=V_DR+e; zi=V_DI+e; pr=V_WR+e; pi=V_WI+e; ar_=T0+6; ai=T0+7
        qr=T0; qi=T0+1; yr=T0+2; yi=T0+3
        a.e(f'''v_lshlrev_b32 v{qr}, 16, v{V_Q+e}
        v_and_b32 v{qi}, 0xffff0000, v{V_Q+e}
        v_lshlrev_b32 v{ar_}, 16, v{V_ZA+e}
        v_and_b32 v{ai}, 0xffff0000, v{V_ZA+e}
        v_mul_f32 v{yr}, v{zr}, v{pr}
        v_fma_f32 v{yr}, -v{zi}, v{pi}, v{yr}
        v_fma_f32 v{yr}, v{ar_}, v{qr}, v{yr}
        v_fma_f32 v{yr}, v{ai}, v{qi}, v{yr}
        v_mul_f32 v{yi}, v{zr}, v{pi}
        v_fma_f32 v{yi}, v{zi}, v{pr}, v{yi}
        v_fma_f32 v{yi}, v{ar_}, v{qi}, v{yi}
        v_fma_f32 v{yi}, -v{ai}, v{qr}, v{yi}
        v_cvt_pk_bf16_f32 v{V_B+e}, v{yr}, -v{yi}''')
    a.cond_end()
    a.e('s_branch L_p2_join')

HEADER='''; Gated mix of a GFNet spectral filter and a dense->mish->dense block, one persistent launch.
; (text generated by the author's own generator script; 256 workgroups, one per CU, hand-offs through counters)
'''
def build(stamps=False,off=(),**kw):
    cfg=Cfg(); cfg.stamps=stamps; cfg.off=set(off); cfg.x=kw; cfg.fine=kw.get('fine',0)
    label=NAME+'_kernel'
    a=Asm(); end='L_end'
    prologue(a,cfg,end)
    sv=(a.vm,a.lg)
    m_stream(a,cfg,end)
    nbM=sum(1 for i in a.items if i.op=='s_barrier'); n0=len(a.items)
    a.vm,a.lg=sv; a.bg_rate=0; assert not a.bg
    f_stream(a,cfg,end)
    nbF=sum(1 for i in a.items[n0:] if i.op=='s_barrier')
    a.e(f'{end}:'); a.e('s_endpgm')
    txt=a.text()
    errs=[]
    for role in (False,True):
        for nm,pol in (('fall',lambda i,n:i.target.endswith('_done') or (role and i.target=='L_F')),
                       ('taken',lambda i,n:((not i.target.startswith('L_end')) and n==0 and (i.target!='L_F' or role)))):
            errs+=verify_waits(a.out,pol,('F' if role else 'M')+nm)
    for e in sorted(set(errs))[:30]: print('WAITERR',e,file=sys.stderr)
    print(dict(a.count()),'barriers M',nbM,'F',nbF,file=sys.stderr)
    out=HEADER+f'; @launch grid=(256,1,1) block=(512,1,1) lds={LDS_TOTAL}\n'
    out+='.amdgcn_target "amdgcn-amd-amdhsa--gfx950"\n.text\n'
    out+=f'.globl {label}\n.p2align 8\n.type {label},@function\n{label}:\n{txt}'
    out+=f'''.section .rodata,"a"
.p2align 6
.amdhsa_kernel {label}
  .amdhsa_next_free_vgpr 256
  .amdhsa_next_free_sgpr 102
  .amdhsa_accum_offset 256
  .amdhsa_group_segment_fixed_size 0
  .amdhsa_kernarg_size 88
  .amdhsa_user_sgpr_count 2
  .amdhsa_user_sgpr_kernarg_segment_ptr 1
  .amdhsa_system_sgpr_workgroup_id_x 1
.end_amdhsa_kernel
'''
    return out

if __name__=='__main__':
    mode=sys.argv[1] if len(sys.argv)>1 else 'persist'
    kw={}
    for x in sys.argv[3:]:
        k,v=x.split('='); kw[k]=int(v) if v.lstrip('-').isdigit() else v
    off=kw.pop('off','').split(',') if 'off' in kw else ()
    txt=build(stamps=(mode=='stamps'),off=off,**kw)
    open(sys.argv[2] if len(sys.argv)>2 else 'out.s','w').write(txt)
```

```python
import sys, os, struct
from dsl import Asm, verify_waits

NAME='gated_mix__spectral_gfnet__dense_activation_mish__prompt'
WS_T   =0x000000
WS_WT  =0x200000
WS_QT  =0x400000
WS_G   =0x402000
WS_CNT =0x404000
WS_Y   =0x600000
WS_ACT =0x800000
WS_STAMP=0x1000000
WS_SIZE=0x1080000
RT_STRIDE=56*4096
S_X,S_WR,S_WI,S_W1,S_B1,S_W2,S_GW,S_OUT,S_WS,S_DBG=8,12,16,20,24,28,32,36,40,44
def srd(n): return f's[{n}:{n+3}]'
SRDS=[(S_X,0,2048*1024),(S_WR,8,2048*514),(S_WI,16,2048*514),(S_W1,32,512*3584),(S_B1,40,3584),
      (S_W2,48,1792*1024),(S_GW,56,1024),(S_OUT,64,2048*1024),(S_WS,80,WS_SIZE),(S_DBG,72,256)]
def vr(b,n=1): return f'v{b}' if n==1 else f'v[{b}:{b+n-1}]'
def fl(x): return hex(struct.unpack('<I',struct.pack('<f',float(x)))[0])
S_WV=3; S_W8=49
wv=f's{S_WV}'
LOG2E=1.4426950408889634
OOB=0x40000000
SLEEP=int(os.environ.get('SLEEP','8'))
SPIN_MAX=50000
SLOT=31744
SB=lambda c:(c%5)*SLOT
XA_BASE=4*SLOT; XA_PITCH=1152
GW_LDS=5*SLOT; B1_LDS=GW_LDS+1024
LC_BASE=GW_LDS+2048
TB_BASE=131072; XB_BASE=139264; ZR_BASE=147456
LDS_TOTAL=163840
V_L16=3
V_PD,V_PA,V_SIG=250,251,252

class Cfg:
    stamps=False; dbgst=False; sc='sc1'
    off=set()
    def f(self,tag): return '' if (tag in self.off or 'all' in self.off) else self.sc

def stamp(a,cfg,idx):
    if not cfg.stamps: return
    r=a.bg_rate; a.bg_rate=0
    a.e('s_memrealtime s[96:97]'); a.e('s_waitcnt lgkmcnt(0)'); a.e(f'v_writelane_b32 v255, s96, {idx}')
    a.bg_rate=r
def stamps_flush(a,cfg):
    if not cfg.stamps: return
    a.e(f"""v_lshrrev_b32 v254, 6, v249
    s_nop 0
    v_readfirstlane_b32 s98, v254
    s_lshl_b32 s99, s2, 3
    s_add_u32 s98, s98, s99
    s_lshl_b32 s98, s98, 8
    s_add_u32 s98, s98, {WS_STAMP}
    v_lshlrev_b32 v254, 2, v0
    buffer_store_dword v255, v254, {srd(S_WS)}, s98 offen""")

def signal(a,S,soff):
    vt=V_SIG
    a.e(f"""s_cmp_eq_u32 {wv}, 0
    s_cselect_b32 s95, 0, {OOB}
    v_mov_b32 v{vt}, 1
    v_mov_b32 v{vt+1}, s95
    s_mov_b64 exec, 1
    buffer_atomic_add v{vt}, v{vt+1}, {srd(S)}, {soff} offen sc1
    s_mov_b64 exec, -1""")

def ssignal(a,S,soff):
    lab=f'L_ss{len(a.items)}'
    a.e(f's_cmp_lg_u32 {wv}, 0'); a.e(f's_cbranch_scc1 {lab}')
    a.e(f's_atomic_add s90, s[{S}:{S+1}], {soff}')
    a.e(f'{lab}:')

def spin_global(a,S,soff,nl,stride,target):
    lab=f'L_poll{len(a.items)}'
    a.e(f'v_mul_u32_u24 v{V_PA}, {stride}, v0')
    a.e(f's_mov_b64 exec, {hex((1<<nl)-1)}')
    a.e(f's_mov_b32 s94, 0')
    a.e(f'{lab}:')
    a.e(f'buffer_load_dword v{V_PD}, v{V_PA}, {srd(S)}, {soff} offen sc1')
    a.e(f's_add_u32 s94, s94, 1')
    a.e(f's_waitcnt vmcnt(0)')
    a.e(f'v_cmp_gt_u32 vcc, {target}, v{V_PD}')
    a.e(f's_cbranch_vccz {lab}_done')
    a.e(f's_cmp_gt_u32 s94, {SPIN_MAX}')
    a.e(f's_cbranch_scc1 {lab}_done')
    a.e(f's_sleep {SLEEP}')
    a.e(f's_branch {lab}')
    a.e(f'{lab}_done:')
    a.e('s_mov_b64 exec, -1')

def poll_w0(a,S,soff,nl,stride,target):
    lab=f'L_pw{len(a.items)}'
    a.e(f's_cmp_lg_u32 {wv}, 0'); a.e(f's_cbranch_scc1 {lab}')
    a.cond_begin(); spin_global(a,S,soff,nl,stride,target); a.cond_end()
    a.e(f'{lab}:')

V_LC=248
def lc_add(a,idx,rtn=None):
    a.e(f'v_mov_b32 v{V_LC-1}, 1')
    a.e('s_mov_b64 exec, 1')
    if rtn is None: a.e(f'ds_add_u32 v{V_LC}, v{V_LC-1} offset:{4*idx}')
    else: a.e(f'ds_add_rtn_u32 v{rtn}, v{V_LC}, v{V_LC-1} offset:{4*idx}')
    a.e('s_mov_b64 exec, -1')
def lc_wait(a,idx,target):
    lab=f'L_lc{len(a.items)}'
    a.e('s_mov_b32 s94, 0')
    a.e(f'{lab}:')
    a.e(f'ds_read_b32 v{V_LC-1}, v{V_LC} offset:{4*idx}')
    a.e('s_add_u32 s94, s94, 1')
    a.e('s_waitcnt lgkmcnt(0)')
    a.e(f'v_readfirstlane_b32 s93, v{V_LC-1}')
    a.e(f's_cmp_ge_u32 s93, {target}')
    a.e(f's_cbranch_scc1 {lab}_done')
    a.e('s_sleep 1')
    a.e(f's_cmp_lt_u32 s94, {20*SPIN_MAX}')
    a.e(f's_cbranch_scc1 {lab}')
    a.e(f'{lab}_done:')

def angles(a,items,T):
    for i0 in range(0,len(items),4):
        grp=items[i0:i0+4]; src=[]
        for j,(sl,base,n,fin,neg) in enumerate(grp):
            if n==0: src.append(f'v{base}')
            else:
                a.e(f'v_fmamk_f32 v{T+j}, v{sl}, {fl(n)}, v{base}'); src.append(f'v{T+j}')
        outs=[]
        for j,(sl,base,n,fin,neg) in enumerate(grp):
            c,s=fin[0] if fin[0] is not None else T+4+j, fin[1] if fin[1] is not None else T+8+j
            a.e(f'v_cos_f32 v{c}, {src[j]}')
            a.e(f'v_sin_f32_e64 v{s}, -{src[j]}' if neg else f'v_sin_f32 v{s}, {src[j]}')
            outs.append((c,s))
        for j,(sl,base,n,fin,neg) in enumerate(grp):
            if fin[2]: fin[2](*outs[j])

def cmul_pack(a,c,s,tc,ts,dst,TT,n=4,negim=False):
    H=n//2
    for h in range(H): a.e(f'v_pk_mul_f32 {vr(TT+4*h,2)}, {vr(s+2*h,2)}, {vr(ts+2*h,2)}')
    for h in range(H): a.e(f'v_pk_mul_f32 {vr(TT+4*h+2,2)}, {vr(s+2*h,2)}, {vr(tc+2*h,2)}')
    for h in range(H): a.e(f'v_pk_fma_f32 {vr(TT+4*h,2)}, {vr(c+2*h,2)}, {vr(tc+2*h,2)}, {vr(TT+4*h,2)} neg_lo:[0,0,1] neg_hi:[0,0,1]')
    for h in range(H): a.e(f'v_pk_fma_f32 {vr(TT+4*h+2,2)}, {vr(c+2*h,2)}, {vr(ts+2*h,2)}, {vr(TT+4*h+2,2)}')
    ng='-' if negim else ''
    for h in range(H):
        a.e(f'v_cvt_pk_bf16_f32 v{dst+2*h}, v{TT+4*h}, {ng}v{TT+4*h+2}')
        a.e(f'v_cvt_pk_bf16_f32 v{dst+2*h+1}, v{TT+4*h+1}, {ng}v{TT+4*h+3}')

def prologue(a,cfg,end):
    a.e('s_cmp_ge_u32 s2, 256'); a.e(f's_cbranch_scc1 {end}')
    for (n,off,sz) in SRDS: a.e(f's_load_dwordx2 s[{n}:{n+1}], s[0:1], {off}')
    if cfg.stamps: a.e('v_mov_b32 v249, v0')
    a.e('v_lshrrev_b32 v1, 6, v0')
    a.e('v_and_b32 v0, 63, v0')
    a.e('v_readfirstlane_b32 s48, v1')
    a.e('v_and_b32 v1, 15, v0')
    a.e('v_lshrrev_b32 v2, 4, v0')
    a.e(f'v_lshlrev_b32 v{V_L16}, 4, v0')
    for (n,off,sz) in SRDS:
        a.e(f's_mov_b32 s{n+2}, {hex(sz)}'); a.e(f's_mov_b32 s{n+3}, 0x20000')
    a.e(f'''s_mov_b32 s51, s48
    s_and_b32 {wv}, s48, 3
    s_lshr_b32 s50, s48, 2
    s_and_b32 s4, s2, 7
    s_lshr_b32 s5, s2, 3
    s_lshr_b32 s6, s4, 1
    s_lshl_b32 s6, s6, 2
    s_lshr_b32 s56, s5, 3
    s_add_u32 s6, s6, s56
    s_and_b32 s7, s4, 1
    s_lshl_b32 s7, s7, 3
    s_and_b32 s56, s5, 7
    s_add_u32 s7, s7, s56
    s_and_b32 s48, s7, 1''')
    a.e('s_waitcnt lgkmcnt(0)')
    if cfg.x.get('pf_code'):
        a.e('s_getpc_b64 s[64:65]')
        a.e('s_lshl_b32 s66, s5, 10')
        a.e('s_add_u32 s64, s64, s66'); a.e('s_addc_u32 s65, s65, 0')
        a.e(f'v_mov_b32 v57, s65'); a.e(f'v_add_co_u32 v56, vcc, s64, v{V_L16}'); a.e(f'v_addc_co_u32 v57, vcc, 0, v57, vcc')
        a.e(f's_cmp_lt_u32 s5, {cfg.x["pf_code"]}'); a.e('s_cbranch_scc0 L_nopf'); a.cond_begin()
        a.e(f's_cmp_lg_u32 s51, 2'); a.e('s_cbranch_scc1 L_nopf')
        a.e('global_load_dwordx4 v[52:55], v[56:57], off')
        a.cond_end(); a.e('L_nopf:')
    mt=str(cfg.x.get('mt','xw'))
    if mt!='0':
        a.e(f'''v_lshlrev_b32 v5, 7, v0
        v_mov_b32 v6, {OOB}
        v_cmp_gt_u32 vcc, 56, v0
        v_cndmask_b32 v6, v6, v5, vcc
        s_cmp_eq_u32 s51, 0
        s_cselect_b32 s56, 0, {OOB}
        v_add_u32 v5, s56, v5
        s_cmp_eq_u32 s51, 1
        s_cselect_b32 s56, 0, {OOB}
        v_add_u32 v7, s56, v6
        s_lshl_b32 s56, s2, 13
        s_mul_i32 s57, s2, 7168''')
        if 'x' in mt: a.e(f'buffer_load_dword v245, v5, {srd(S_X)}, s56 offen')
        if 'w' in mt: a.e(f'buffer_load_dword v245, v7, {srd(S_W1)}, s57 offen')
    a.e('s_cmp_lg_u32 s50, 0'); a.e('s_cbranch_scc1 L_F')

V_GF=8
V_W2A=240; V_W2D=244
NS3=int(os.environ.get('NS3','8'))
GSLOT=[6,7,0,1]
GT0=224; GTA=234
G_ITEMS=[(psi,c,u) for psi in range(4) for c in range(4) for u in range(4)]
def m_g2_ids(a,cfg):
    a.e(f"""s_lshl_b32 s67, s4, 2
    s_lshr_b32 s68, s5, 3
    s_add_u32 s67, s67, s68
    s_and_b32 s68, s5, 7
    s_mul_i32 s69, s67, {RT_STRIDE}
    s_mul_i32 s70, {wv}, {14*4096}
    s_add_u32 s69, s69, s70
    s_add_u32 s69, s69, {WS_ACT}
    s_mul_i32 s70, {wv}, {14*32*1024}
    s_lshl_b32 s71, s68, 7
    s_add_u32 s70, s70, s71
    s_lshl_b32 s71, {wv}, 15
    s_lshr_b32 s72, s67, 1
    s_and_b32 s73, s67, 1
    s_lshr_b32 s74, s72, 2
    s_lshl_b32 s74, s74, 11
    s_lshl_b32 s75, s73, 10
    s_add_u32 s74, s74, s75
    s_and_b32 s75, s72, 3
    s_lshl_b32 s75, s75, 8
    s_add_u32 s74, s74, s75""")
def w2_dma_addr(a,V,T):
    a.e(f"""v_lshrrev_b32 v{T}, 3, v0
    v_lshlrev_b32 v{V}, 10, v{T}
    v_lshrrev_b32 v{T}, 1, v{T}
    v_and_b32 v{T}, 3, v{T}
    v_bfe_u32 v{T+1}, v0, 1, 2
    v_xor_b32 v{T}, v{T}, v{T+1}
    v_lshlrev_b32 v{T}, 1, v{T}
    v_and_b32 v{T+1}, 1, v0
    v_add_u32 v{T}, v{T}, v{T+1}
    v_lshl_add_u32 v{V}, v{T}, 4, v{V}""")
def w2_group(t,v,V):
    return [f's_add_u32 m0, s71, {(t%8)*4096+v*1024}', f's_add_u32 s55, s70, {(32*t+8*v)*1024}',
            f'buffer_load_dwordx4 v{V}, {srd(S_W2)}, s55 offen lds']

def m_stream(a,cfg,end):
    a.e('s_waitcnt lgkmcnt(0)')
    if cfg.x.get('prio0'): a.e(f's_setprio {cfg.x["prio0"]}')
    stamp(a,cfg,26)
    a.e(f'''s_xor_b32 s56, {wv}, 3
    s_or_b32 s58, s56, s2
    s_cmp_eq_u32 s58, 0
    s_cselect_b32 s56, 0, {OOB}
    v_lshlrev_b32 v5, 7, v0
    v_add_u32 v5, s56, v5
    v_mov_b32 v6, 0
    s_mov_b32 s57, {WS_CNT}
    s_mov_b32 exec_hi, 0
    buffer_store_dword v6, v5, {srd(S_WS)}, s57 offen sc1
    s_mov_b32 exec_hi, -1''')
    mt=str(cfg.x.get('mt','xw'))
    a.e(f'''s_lshr_b32 s49, s2, 5
    s_and_b32 s50, s2, 31''')
    V_B1C=60; V_B1S=68; V_TC=76; V_TS=80; V_A2=84; V_A2N=88; T0=92; TA=100
    a.e(f'''s_lshl_b32 s67, {wv}, 4
    v_add_u32 v{T0}, s67, v1
    v_cvt_f32_u32 v{T0}, v{T0}
    v_mul_f32 v{T0+1}, {fl(1/64)}, v{T0}
    v_lshlrev_b32 v{T0+2}, 2, v2
    v_cvt_f32_u32 v{T0+2}, v{T0+2}
    v_mul_f32 v{T0+3}, v{T0+2}, v{T0+1}''')
    for ks in range(2):
        for hh in range(2):
            angles(a,[(T0+1,T0+3,32*ks+16*hh+u,(None,None,None),True) for u in range(4)],TA)
            for d in range(2):
                a.e(f'v_cvt_pk_bf16_f32 v{V_B1C+4*ks+2*hh+d}, v{TA+4+2*d}, v{TA+5+2*d}')
                a.e(f'v_cvt_pk_bf16_f32 v{V_B1S+4*ks+2*hh+d}, v{TA+8+2*d}, v{TA+9+2*d}')
    a.e(f'''v_and_b32 v{T0+4}, 1, v2
    v_lshlrev_b32 v{T0+4}, 2, v{T0+4}
    v_cvt_f32_u32 v{T0+4}, v{T0+4}
    v_mul_f32 v{T0+5}, {fl(1/512)}, v{T0}
    v_mul_f32 v{T0+6}, v{T0+4}, v{T0+5}''')
    angles(a,[(T0+5,T0+6,r,(V_TC+r,V_TS+r,None),True) for r in range(4)],TA)
    a.e(f'''v_lshrrev_b32 v{T0+5}, 2, v1
    v_cvt_f32_u32 v{T0+5}, v{T0+5}
    v_mul_f32 v{T0+5}, {fl(1/8)}, v{T0+5}
    v_and_b32 v{T0+6}, 1, v1
    v_cvt_f32_u32 v{T0+6}, v{T0+6}
    v_mul_f32 v{T0+6}, {fl(0.25)}, v{T0+6}
    v_fma_f32 v{T0+6}, v{T0+4}, v{T0+5}, v{T0+6}
    v_lshrrev_b32 v{T0+7}, 1, v1
    v_and_b32 v{T0+7}, 1, v{T0+7}
    v_lshrrev_b32 v{T0}, 1, v2
    v_cmp_eq_u32 s[68:69], v{T0+7}, v{T0}
    v_and_b32 v{T0+7}, 13, v1
    v_cmp_eq_u32 vcc, 1, v{T0+7}''')
    a.e('s_and_b64 s[70:71], vcc, s[68:69]')
    angles(a,[(T0+5,T0+6,dw,(None,None,None),False) for dw in range(4)],TA)
    for dw in range(4): a.e(f'v_cvt_pk_bf16_f32 v{TA+dw}, v{TA+4+dw}, v{TA+8+dw}')
    a.e(f'v_mov_b32 v{TA+4}, 0x3f80'); a.e(f'v_mov_b32 v{TA+5}, 0xbf80')
    for dw in range(4):
        a.e(f'v_cndmask_b32 v{V_A2+dw}, 0, v{TA+dw}, s[68:69]')
        a.e(f'v_cndmask_b32 v{V_A2N+dw}, 0, v{TA+4+(dw&1)}, s[70:71]')
    V_XA=108
    a.e(f'''v_and_b32 v{T0}, 3, v0
    v_lshrrev_b32 v{T0+1}, 1, v{T0}
    v_mul_u32_u24 v{V_XA}, {XA_PITCH}, v{T0+1}
    v_and_b32 v{T0}, 1, v{T0}
    v_lshlrev_b32 v{T0}, 3, v{T0}
    v_lshrrev_b32 v{T0+1}, 2, v1
    v_lshl_add_u32 v{T0+1}, v2, 2, v{T0+1}
    v_lshlrev_b32 v{T0+1}, 4, v{T0+1}
    v_add3_u32 v{V_XA}, v{V_XA}, v{T0}, v{T0+1}
    v_add_u32 v{V_XA}, {XA_BASE}, v{V_XA}
    s_mul_i32 s72, {wv}, {2*XA_PITCH}
    s_add_u32 s72, s72, {XA_BASE}
    v_add_u32 v{V_XA+1}, s72, v{V_L16}
    v_add_u32 v{V_XA+2}, {GW_LDS}, v{V_L16}''')
    a.e(f'''s_lshl_b32 s84, s49, 3
    s_lshl_b32 s85, {wv}, 1
    s_add_u32 s84, s84, s85
    s_lshr_b32 s85, s84, 4
    s_lshl_b32 s85, s85, 11
    s_lshr_b32 s86, s50, 4
    s_lshl_b32 s86, s86, 10
    s_add_u32 s85, s85, s86
    s_lshr_b32 s86, s84, 2
    s_and_b32 s86, s86, 3
    s_lshl_b32 s86, s86, 8
    s_add_u32 s85, s85, s86
    s_and_b32 s86, s50, 15
    s_lshl_b32 s86, s86, 4
    s_add_u32 s85, s85, s86
    s_and_b32 s86, s84, 3
    s_lshl_b32 s86, s86, 2
    s_add_u32 s85, s85, s86
    s_add_u32 s85, s85, {WS_G}
    ''')
    if mt!='0' and ('W' in mt or '2' in mt):
        a.e(f'''v_lshlrev_b32 v5, 7, v0
        v_mov_b32 v6, {OOB}
        v_cmp_gt_u32 vcc, 33, v0
        v_cndmask_b32 v7, v6, v5, vcc
        v_cmp_gt_u32 vcc, 56, v0
        v_cndmask_b32 v6, v6, v5, vcc
        s_cmp_eq_u32 {wv}, 2
        s_cselect_b32 s56, 0, {OOB}
        v_add_u32 v5, s56, v7
        s_cmp_eq_u32 {wv}, 3
        s_cselect_b32 s56, 0, {OOB}
        v_add_u32 v7, s56, v7
        s_cmp_eq_u32 {wv}, 0
        s_cselect_b32 s56, 0, {OOB}
        v_add_u32 v6, s56, v6
        s_mul_i32 s56, s2, {33*128}
        v_add_u32 v5, s56, v5
        v_add_u32 v7, s56, v7
        s_mul_i32 s57, s2, 7168''')
        if 'W' in mt:
            a.e(f'buffer_load_dword v245, v5, {srd(S_WR)}, 0 offen')
            a.e(f'buffer_load_dword v245, v7, {srd(S_WI)}, 0 offen')
        if '2' in mt: a.e(f'buffer_load_dword v245, v6, {srd(S_W2)}, s57 offen')
    a.e('s_cmp_lg_u32 s58, 0'); a.e('s_cbranch_scc1 L_m_nos0'); a.cond_begin()
    a.e(f'''s_waitcnt vmcnt(0)
    v_mov_b32 v5, 1
    v_mov_b32 v6, 32
    s_mov_b64 exec, 1
    buffer_store_dword v5, v6, {srd(S_DBG)}, 0 offen sc1
    s_mov_b64 exec, -1''')
    a.cond_end(); a.e('L_m_nos0:')
    stamp(a,cfg,0)
    a.e('s_barrier')
    stamp(a,cfg,1)
    V_AF=112; V_GX=144; V_GW=184; V_D1C=152; V_D1S=168
    for pi in range(4):
        for ks in range(2):
            for hh in range(2):
                a.e(f'ds_read_b64_tr_b16 {vr(V_AF+8*pi+4*ks+2*hh,2)}, v{V_XA} offset:{pi*2*XA_PITCH+ks*512+hh*256}')
        if pi==1: lg_01=a.lgtok()
    lg_af=a.lgtok()
    a.e(f'ds_read_b128 {vr(V_GX,4)}, v{V_XA+1}')
    a.e(f'ds_read_b128 {vr(V_GX+4,4)}, v{V_XA+1} offset:{XA_PITCH}')
    a.e(f'ds_read_b128 {vr(V_GW,4)}, v{V_XA+2}')
    lg_gx=a.lgtok()
    for pi in range(4):
        if pi==0: a.wait_lg(lg_01)
        if pi==2: a.wait_lg(lg_af)
        for ks in range(2):
            A=vr(V_AF+8*pi+4*ks,4); c=vr(V_D1C+4*pi,4); s=vr(V_D1S+4*pi,4)
            a.e(f'v_mfma_f32_16x16x32_bf16 {c}, {A}, {vr(V_B1C+4*ks,4)}, {c if ks else 0}')
            a.e(f'v_mfma_f32_16x16x32_bf16 {s}, {A}, {vr(V_B1S+4*ks,4)}, {s if ks else 0}')
    a.wait_lg(lg_gx)
    V_Z=T0+2; V_GOUT=T0+4
    for d in range(4):
        for rr in range(2):
            a.e(f'v_dot2_f32_bf16 v{V_Z+rr}, v{V_GX+4*rr+d}, v{V_GW+d}, {("v%d"%(V_Z+rr)) if d else 0}')
    TT=TA; V_B2=V_AF
    red=[('row_shr:1 row_mask:0xf bank_mask:0xf bound_ctrl:1'),('row_shr:2 row_mask:0xf bank_mask:0xf bound_ctrl:1'),
         ('row_shr:4 row_mask:0xf bank_mask:0xf bound_ctrl:1'),('row_shr:8 row_mask:0xf bank_mask:0xf bound_ctrl:1'),
         ('row_bcast:15 row_mask:0xa bank_mask:0xf'),('row_bcast:31 row_mask:0xc bank_mask:0xf')]
    ri=0
    for pi in range(4):
        cmul_pack(a,V_D1C+4*pi,V_D1S+4*pi,V_TC,V_TS,V_B2+4*pi,TT)
        for _ in range(2 if pi<2 else 1):
            for rr in range(2): a.e(f'v_add_f32_dpp v{V_Z+rr}, v{V_Z+rr}, v{V_Z+rr} {red[ri]}')
            ri+=1
    V_D2=V_D1C; V_D2N=V_D1S
    for pi in range(4):
        a.e(f'v_mfma_f32_16x16x32_bf16 {vr(V_D2+4*pi,4)}, {vr(V_A2,4)}, {vr(V_B2+4*pi,4)}, 0')
        a.e(f'v_mfma_f32_16x16x32_bf16 {vr(V_D2N+4*pi,4)}, {vr(V_A2N,4)}, {vr(V_B2+4*pi,4)}, 0')
    for rr in range(2): a.e(f'v_mul_f32 v{V_Z+rr}, {fl(-LOG2E)}, v{V_Z+rr}')
    for rr in range(2): a.e(f'v_exp_f32 v{V_Z+rr}, v{V_Z+rr}')
    for rr in range(2): a.e(f'v_add_f32 v{V_Z+rr}, 1.0, v{V_Z+rr}')
    for rr in range(2): a.e(f'v_rcp_f32 v{V_GOUT+rr}, v{V_Z+rr}')
    a.e(f'''s_cmp_eq_u32 {wv}, 0
    s_cselect_b32 s74, 1, 0
    s_mov_b32 s75, 0''')
    V_TO=8
    for pi in range(4):
        for rho in range(2):
            re=V_D2+4*pi+2*rho; im=re+1
            a.e(f'v_cndmask_b32 v{im}, v{im}, v{V_D2N+4*pi+2*rho+1}, s[74:75]')
            a.e(f'v_cvt_pk_bf16_f32 v{V_TO+2*pi+rho}, v{re}, v{im}')
    a.e(f'''v_lshlrev_b32 v18, 6, v2
    v_add3_u32 v18, v18, v1, s67
    v_lshlrev_b32 v18, 5, v18
    s_lshl_b32 s90, s2, 13
    s_add_u32 s90, s90, {WS_T}
    v_mov_b32 v16, v{V_GOUT}
    v_mov_b32 v17, v{V_GOUT+1}
    v_mov_b32 v19, 0
    s_mov_b32 s91, s85''')
    def row_stores():
        a.e(f'''buffer_store_dwordx4 v[8:11], v18, {srd(S_WS)}, s90 offen {cfg.f("stT")}
        buffer_store_dwordx4 v[12:15], v18, {srd(S_WS)}, s90 offen offset:16 {cfg.f("stT")}
        s_mov_b32 exec_lo, 0
        s_mov_b32 exec_hi, 0x80000000
        buffer_store_dwordx2 v[16:17], v19, {srd(S_WS)}, s91 offen {cfg.f("stG")}
        s_mov_b64 exec, -1''')
    if cfg.x.get('rs_at',9)<0: row_stores()
    stamp(a,cfg,17)
    V_XF=80; V_XR=96; V_VA=102; V_BIAS=108; V_ACC=136; V_WF=192; V_BRAW=220; T0=234
    a.e(f'''s_lshl_b32 s76, {wv}, 12
    v_lshlrev_b32 v{T0}, 7, v1
    v_add_u32 v{T0}, s76, v{T0}
    v_lshrrev_b32 v{T0+1}, 1, v1
    v_xor_b32 v{T0+1}, v{T0+1}, v2
    v_lshl_add_u32 v{V_XR}, v{T0+1}, 4, v{T0}
    v_xor_b32 v{T0+1}, 4, v{T0+1}
    v_lshl_add_u32 v{V_XR+1}, v{T0+1}, 4, v{T0}
    v_mul_u32_u24 v{V_VA}, 1920, v2
    v_lshrrev_b32 v{T0}, 2, v1
    v_mul_u32_u24 v{T0}, 224, v{T0}
    v_and_b32 v{T0+1}, 3, v0
    v_lshlrev_b32 v{T0+1}, 3, v{T0+1}
    v_add3_u32 v{V_VA}, v{V_VA}, v{T0}, v{T0+1}
    v_add_u32 v{V_VA}, 16384, v{V_VA}
    s_cmp_eq_u32 s48, 0
    s_cselect_b32 s76, 192, 0
    v_add_u32 v{V_VA+1}, s76, v{V_VA}
    s_lshl_b32 s76, s48, 5
    v_add_u32 v{V_VA}, s76, v{V_VA}''')
    for st_ in (1,2):
        for j in range(2):
            a.e(f'v_add_u32 v{V_XR+2*st_+j}, {2*st_*SLOT}, v{V_XR+j}')
            a.e(f'v_add_u32 v{V_VA+2*st_+j}, {2*st_*SLOT}, v{V_VA+j}')
    a.e(f'''v_lshlrev_b32 v{T0}, 3, v2
    s_lshl_b32 s76, s48, 5
    s_add_u32 s77, s76, {B1_LDS}
    v_add_u32 v{T0+1}, s77, v{T0}
    s_cmp_eq_u32 s48, 0
    s_cselect_b32 s77, 192, 0
    s_add_u32 s77, s77, {B1_LDS}
    v_add_u32 v{T0}, s77, v{T0}''')
    if cfg.x.get('prio'): a.e(f's_setprio {cfg.x["prio"]}')
    a.e('s_barrier')
    stamp(a,cfg,3)
    def slot_set(c):
        j=c%5; return (j//2, (j%2)*SLOT)
    def w_read1(s,t,hh):
        c,kk=s//2,s%2; st_,off=slot_set(c)
        va=V_VA+2*st_+(1 if t==6 else 0)
        o=off+kk*7680+(32*t if t<6 else 0)
        a.e(f'ds_read_b64_tr_b16 {vr(V_WF+4*t+2*hh,2)}, v{va} offset:{o+960*hh}')
        return a.lgtok()
    def x_read1(s,nb):
        c,kk=s//2,s%2; st_,off=slot_set(c)
        a.e(f'ds_read_b128 {vr(V_XF+8*(s%2)+4*nb,4)}, v{V_XR+2*st_+kk} offset:{off+2048*nb}')
        return a.lgtok()
    for t in range(6): a.e(f'ds_read_b64 {vr(V_BRAW+2*t,2)}, v{T0+1} offset:{32*t}')
    a.e(f'ds_read_b64 {vr(V_BRAW+12,2)}, v{T0}')
    lg_b=a.lgtok()
    tw={}; tx={}
    for nb in range(2): tx[(0,nb)]=x_read1(0,nb)
    for t in range(3):
        for hh in range(2): tw[(0,t,hh)]=w_read1(0,t,hh)
    a.wait_lg(lg_b)
    for t in range(7):
        for d in range(2):
            raw=V_BRAW+2*t+d
            a.e(f'v_lshlrev_b32 v{V_BIAS+4*t+2*d}, 16, v{raw}')
            a.e(f'v_and_b32 v{V_BIAS+4*t+2*d+1}, 0xffff0000, v{raw}')
    for t in range(3,7):
        for hh in range(2): tw[(0,t,hh)]=w_read1(0,t,hh)
    for s in range(16):
        for t in range(7):
            need=max(tw[(s,t,1)],tx[(s,1)])
            n=a.lg-need
            if t%2==0 or t==1 or s==0 or True: a.e(f's_waitcnt lgkmcnt({min(n,15)})')
            for nb in range(2):
                acc=vr(V_ACC+28*nb+4*t,4)
                cc=acc if s>0 else vr(V_BIAS+4*t,4)
                a.e(f'v_mfma_f32_16x16x32_bf16 {acc}, {vr(V_WF+4*t,4)}, {vr(V_XF+8*(s%2)+4*nb,4)}, {cc}')
                if nb==0 and t==1 and s%2==1 and s<15:
                    if cfg.fine==2: stamp(a,cfg,32+2*(s//2))
                    if s==(7 if cfg.x.get('s1two',0) else 13): a.e('s_waitcnt vmcnt(0)')
                    a.e('s_barrier')
                    if cfg.fine==2: stamp(a,cfg,33+2*(s//2))
                ps,pt=(s+1,t-1) if t>=1 else (s,6)
                if (t>=1 and s<15) or (t==0 and 1<=s<=15 and (s,6,nb) not in tw):
                    tw[(ps,pt,nb)]=w_read1(ps,pt,nb)
                if t==2 and s<15: tx[(s+1,nb)]=x_read1(s+1,nb)
                if t==4 and nb==1 and s==cfg.x.get('rs_at',9): row_stores()
    a.e('s_barrier')
    stamp(a,cfg,4)
    V_E=V_WF; V_O=V_BIAS
    a.e(f's_mov_b32 s84, {fl(LOG2E)}'); a.e(f's_mov_b32 s85, {fl(LOG2E)}'); a.e(f's_mov_b32 s86, {fl(30.0)}')
    a.e(f'''s_mul_i32 s87, s7, 7
    s_add_u32 s87, s87, s48
    s_lshr_b32 s87, s87, 1
    s_lshl_b32 s87, s87, 12
    s_mul_i32 s88, s6, {2*RT_STRIDE}
    s_lshl_b32 s89, {wv}, 10
    s_add_u32 s88, s88, s89
    s_add_u32 s88, s88, {WS_ACT}
    s_add_u32 s88, s88, s87
    s_mov_b32 s89, {3*4096}
    s_cmp_eq_u32 s48, 0
    s_cselect_b32 s89, s89, {(-4096+512)&0xffffffff}
    s_add_u32 s89, s89, s88
    v_lshlrev_b32 v4, 3, v0''')
    G=4
    for nb in range(2):
        pairs=[(V_ACC+28*nb+4*t+2*d, V_O+14*nb+2*t+d) for t in range(7) for d in range(2)]
        for g0 in range(0,len(pairs),G):
            grp=pairs[g0:g0+G]
            Tq=lambda i: V_E+4*i
            for i,(h,o) in enumerate(grp): a.e(f'v_pk_mul_f32 {vr(Tq(i),2)}, {vr(h,2)}, s[84:85]')
            for i,(h,o) in enumerate(grp):
                a.e(f'v_min_f32 v{Tq(i)}, s86, v{Tq(i)}'); a.e(f'v_min_f32 v{Tq(i)+1}, s86, v{Tq(i)+1}')
            for i,(h,o) in enumerate(grp):
                a.e(f'v_exp_f32 v{Tq(i)}, v{Tq(i)}'); a.e(f'v_exp_f32 v{Tq(i)+1}, v{Tq(i)+1}')
            for i,(h,o) in enumerate(grp): a.e(f'v_pk_add_f32 {vr(Tq(i)+2,2)}, {vr(Tq(i),2)}, 2.0 op_sel_hi:[1,0]')
            for i,(h,o) in enumerate(grp): a.e(f'v_pk_mul_f32 {vr(Tq(i),2)}, {vr(Tq(i),2)}, {vr(Tq(i)+2,2)}')
            for i,(h,o) in enumerate(grp): a.e(f'v_pk_add_f32 {vr(Tq(i)+2,2)}, {vr(Tq(i),2)}, 2.0 op_sel_hi:[1,0]')
            for i,(h,o) in enumerate(grp):
                a.e(f'v_rcp_f32 v{Tq(i)+2}, v{Tq(i)+2}'); a.e(f'v_rcp_f32 v{Tq(i)+3}, v{Tq(i)+3}')
            for i,(h,o) in enumerate(grp): a.e(f'v_pk_mul_f32 {vr(Tq(i),2)}, {vr(Tq(i),2)}, {vr(Tq(i)+2,2)}')
            for i,(h,o) in enumerate(grp): a.e(f'v_pk_mul_f32 {vr(Tq(i),2)}, {vr(Tq(i),2)}, {vr(h,2)}')
            for i,(h,o) in enumerate(grp): a.e(f'v_cvt_pk_bf16_f32 v{o}, v{Tq(i)}, v{Tq(i)+1}')
            done=min(len(pairs),g0+G)
            if cfg.x.get('actil'):
                for pp in range(3):
                    if g0<4*(pp+1)<=done:
                        a.e(f'buffer_store_dwordx4 {vr(V_O+14*nb+4*pp,4)}, v{V_L16}, {srd(S_WS)}, s88 offen {cfg.f("stA")}')
                        a.e('s_add_u32 s88, s88, 4096')
                if done==14:
                    a.e(f'buffer_store_dwordx2 {vr(V_O+14*nb+12,2)}, v4, {srd(S_WS)}, s89 offen {cfg.f("stA")}')
        if nb==0 and cfg.x.get('actil'):
            a.e(f's_add_u32 s88, s88, {RT_STRIDE-3*4096}')
            a.e(f's_add_u32 s89, s89, {RT_STRIDE}')
    if not cfg.x.get('actil'):
        for nb in range(2):
            for pp in range(3):
                a.e(f'buffer_store_dwordx4 {vr(V_O+14*nb+4*pp,4)}, v{V_L16}, {srd(S_WS)}, s88 offen {cfg.f("stA")}')
                a.e('s_add_u32 s88, s88, 4096')
            a.e(f'buffer_store_dwordx2 {vr(V_O+14*nb+12,2)}, v4, {srd(S_WS)}, s89 offen {cfg.f("stA")}')
            if nb==0:
                a.e(f's_add_u32 s88, s88, {RT_STRIDE-3*4096}')
                a.e(f's_add_u32 s89, s89, {RT_STRIDE}')
    stamp(a,cfg,5)
    a.e('s_mov_b32 s93, 32'); poll_w0(a,S_DBG,'s93',1,0,1)
    a.e('s_waitcnt vmcnt(0)')
    a.e('s_barrier')
    stamp(a,cfg,7)
    p2_small_loads(a,cfg)
    tok_w=a.vmtok()
    for part in p2_table_parts(a,cfg): part()
    stamp(a,cfg,25)
    p2_compute(a,cfg,tok_w)
    tok_y=a.vmtok()
    stamp(a,cfg,8)
    m_g2_ids(a,cfg)
    T=5
    w2_dma_addr(a,V_W2D,T)
    a.e(f"""v_lshrrev_b32 v{T}, 2, v1
    v_lshl_add_u32 v{T+1}, v2, 2, v{T}
    v_lshlrev_b32 v{V_W2A}, 7, v{T+1}
    v_lshrrev_b32 v{T+1}, 1, v{T+1}
    v_and_b32 v{T+1}, 3, v{T+1}
    v_and_b32 v{T}, 3, v0
    v_lshl_add_u32 v{V_W2A}, v{T}, 3, v{V_W2A}
    v_add_u32 v{V_W2A}, s71, v{V_W2A}""")
    for c in (3,2,1,0):
        a.e(f'v_xor_b32 v{T}, {c}, v{T+1}')
        a.e(f'v_lshl_add_u32 v{V_W2A+c}, v{T}, 5, v{V_W2A}')
    stamp(a,cfg,9)
    a.e('s_waitcnt vmcnt(0)')
    a.e(f's_lshl_b32 s93, s72, 7'); a.e(f's_add_u32 s93, s93, {WS_CNT}')
    poll_w0(a,S_WS,'s93',1,0,16)
    a.e('s_barrier')
    stamp(a,cfg,10)
    m_gemm2(a,cfg,tok_y)
    stamp(a,cfg,13)
    stamps_flush(a,cfg)
    a.e(f's_branch {end}')
    p2_special(a,cfg)

def m_gemm2(a,cfg,tok_y):
    V_ACC=80; V_AF=144; D=8; V_G=72
    RB=lambda t: (8+16*(t%D)) if (t%D)<4 else (160+16*(t%D-4))
    toks={}; tokw={}
    def need(d,k):
        while k not in d: a.bg_pop()
    def a_read1(t,c,hh):
        a.e(f'ds_read_b64_tr_b16 {vr(V_AF+4*c+2*hh,2)}, v{V_W2A+c} offset:{(t%8)*4096+2048*hh}')
        return a.lgtok()
    def push_loads(t):
        b=RB(t)
        if t>=14:
            psi=t-14
            for u in range(4):
                a.bg_push([f's_add_u32 s79, s78, {(16*psi+u)*8192}',
                           f'buffer_load_dwordx4 {vr(b+4*u,4)}, v6, {srd(S_WS)}, s79 offen {cfg.f("ldY")}'],
                          (lambda t=t: toks.__setitem__(t,a.vmtok())) if u==3 else None)
            return
        sc=cfg.f('ldA')
        for q in range(4):
            if t in(3,10):
                l=[f'buffer_load_dwordx2 {vr(b+4*q,2)}, v4, {srd(S_WS)}, s69 offen offset:{1024*q} {sc}',
                   f'buffer_load_dwordx2 {vr(b+4*q+2,2)}, v4, {srd(S_WS)}, s69 offen offset:{1024*q+512} {sc}']
            else:
                l=[f'buffer_load_dwordx4 {vr(b+4*q,4)}, v{V_L16}, {srd(S_WS)}, s69 offen offset:{1024*q} {sc}']
            if q==3: l.append('s_add_u32 s69, s69, 4096')
            a.bg_push(l,(lambda t=t: toks.__setitem__(t,a.vmtok())) if q==3 else None)
    def push_w2(t):
        for v in range(4):
            a.bg_push(w2_group(t,v,V_W2D),(lambda t=t: tokw.__setitem__(t,a.vmtok())) if v==3 else None)
    a.e('v_lshlrev_b32 v4, 3, v0')
    npre=cfg.x.get('npre',4)
    for t in range(npre): push_loads(t)
    a.bg_flush()
    nxt=npre
    a.e(f"""v_lshlrev_b32 v5, 4, v1
    v_lshlrev_b32 v6, 15, v2
    v_add_u32 v6, v6, v5
    v_add_u32 v7, s71, v{V_L16}
    s_lshl_b32 s78, {wv}, 19
    s_add_u32 s78, s78, s74
    s_add_u32 s78, s78, {WS_Y}""")
    ta={}
    for c in range(4):
        for hh in range(2): ta[(0,c,hh)]=a_read1(0,c,hh)
    a.bg_set(cfg.x.get('g2r',2),mfma_weight=2)
    TS3=cfg.x.get('ts3',10)
    for t in range(18):
        if cfg.fine==1: stamp(a,cfg,32+t)
        need(toks,t); a.wait_vm(toks[t])
        if t+1 in range(8,14):
            need(tokw,t+1); a.wait_vm(tokw[t+1])
        k_=0
        while nxt<14 and nxt-D<t and k_<2 and t<14:
            if nxt-D==t-0 and False: break
            if nxt-D>=t: break
            push_loads(nxt); nxt+=1; k_+=1
        if 1<=t and t-1+8<14: push_w2(t-1+8)
        if t==TS3+1: push_loads(14); push_loads(15)
        if t==TS3+2: push_loads(16); push_loads(17)
        b=RB(t)
        if t==14:
            a.need_vm(tok_g)
            for q in range(4): a.e(f'v_sub_f32 v{V_G+q}, 1.0, v{V_G+q}')
            for q in range(4):
                for h in range(8):
                    a.e(f'v_pk_mul_f32 {vr(V_ACC+16*q+2*h,2)}, {vr(V_ACC+16*q+2*h,2)}, {vr(V_G+(q&~1),2)} op_sel:[0,{q&1}] op_sel_hi:[1,{q&1}]')
            stamp(a,cfg,11)
        if t>=14:
            tg=[]
            for c in range(4):
                a.e(f'ds_read_b128 {vr(V_AF+4*c,4)}, v7 offset:{GSLOT[t-14]*4096+c*1024}'); tg.append(a.lgtok())
            for (i,j) in[(0,1),(0,2),(0,3),(1,2),(1,3),(2,3)]:
                a.e(f'v_swap_b32 v{b+4*i+j}, v{b+4*j+i}')
        for c in range(4):
            if t<14:
                n=a.lg-ta[(t,c,1)]
                a.e(f's_waitcnt lgkmcnt({min(n,15)})')
            else:
                a.e(f's_waitcnt lgkmcnt({min(a.lg-tg[c],15)})')
            A=vr(V_AF+4*c,4)
            for q in range(4):
                d=vr(V_ACC+16*q+4*c,4)
                r=a.bg_rate
                if q<2 and t<14: a.bg_rate=0
                a.e(f'v_mfma_f32_16x16x32_bf16 {d}, {A}, {vr(b+4*q,4)}, {d if t else 0}')
                if q<2 and t<14:
                    if c>=1 and t<13: ta[(t+1,c-1,q)]=a_read1(t+1,c-1,q)
                    if c==0 and t>=1: ta[(t,3,q)]=a_read1(t,3,q)
                a.bg_rate=r
        if t==TS3:
            a.bg_flush()
            a.e(f's_mov_b32 s93, {WS_CNT+16*128}')
            poll_w0(a,S_WS,'s93',NS3,128,256//NS3)
            a.e('s_barrier')
            a.e(f's_add_u32 s75, s74, {WS_G}')
            a.e(f'buffer_load_dwordx4 {vr(V_G,4)}, v5, {srd(S_WS)}, s75 offen {cfg.f("ldW")}')
            tok_g=a.vmtok()
        if t==13: a.e('s_barrier')
    a.bg_flush(); a.bg_set(0)
    stamp(a,cfg,12)
    a.e(f'v_add_u32 v7, s71, v{V_L16}')
    for w in range(4):
        a.e(f's_cmp_lg_u32 {wv}, {w}')
        a.e(f's_cbranch_scc1 L_k3_w{w}')
        a.cond_begin()
        slot=0
        for q in range(4):
            if q==w: continue
            for c in range(4):
                a.e(f'ds_write_b128 v7, {vr(V_ACC+16*q+4*c,4)} offset:{slot*4096+c*1024}')
            slot+=1
        if w!=0:
            for h in range(8): a.e(f'v_pk_mov_b32 {vr(V_ACC+2*h,2)}, {vr(V_ACC+16*w+2*h,2)}, {vr(V_ACC+16*w+2*h,2)} op_sel:[0,1]')
        a.cond_end()
        a.e(f'L_k3_w{w}:')
    a.e('s_waitcnt lgkmcnt(0)'); a.e('s_barrier')
    V_RD=160
    for k in range(1,4):
        a.e(f"""s_add_u32 s76, {wv}, {k}
        s_and_b32 s76, s76, 3
        s_lshl_b32 s77, s76, 15
        s_cmp_lt_u32 {wv}, s76
        s_cselect_b32 s79, 0, 1
        s_sub_u32 s79, {wv}, s79
        s_lshl_b32 s79, s79, 12
        s_add_u32 s77, s77, s79
        v_add_u32 v7, s77, v{V_L16}""")
        for c in range(4): a.e(f'ds_read_b128 {vr(V_RD+16*(k-1)+4*c,4)}, v7 offset:{c*1024}')
    a.e(f"""v_lshlrev_b32 v5, 10, v1
    v_lshl_add_u32 v5, v2, 3, v5
    s_lshl_b32 s76, s72, 17
    s_lshl_b32 s77, {wv}, 15
    s_add_u32 s76, s76, s77
    s_lshl_b32 s77, s73, 14
    s_add_u32 s76, s76, s77
    s_lshl_b32 s77, s68, 7
    s_add_u32 s76, s76, s77""")
    for k in range(3):
        a.e(f's_waitcnt lgkmcnt({8-4*k})')
        for h in range(8): a.e(f'v_pk_add_f32 {vr(V_ACC+2*h,2)}, {vr(V_ACC+2*h,2)}, {vr(V_RD+16*k+2*h,2)}')
    V_O=8
    for c in range(4):
        a.e(f'v_cvt_pk_bf16_f32 v{V_O+2*c}, v{V_ACC+4*c}, v{V_ACC+4*c+1}')
        a.e(f'v_cvt_pk_bf16_f32 v{V_O+2*c+1}, v{V_ACC+4*c+2}, v{V_ACC+4*c+3}')
        a.e(f'buffer_store_dwordx2 {vr(V_O+2*c,2)}, v5, {srd(S_OUT)}, s76 offen offset:{32*c}')

P2=dict(V_U=8,V_W=40,V_GT=48,V_Q=56,T0=64,V_F64R=80,V_F64I=96,V_F32R=112,V_F32I=128,V_T1C=144,V_T1S=152,V_T3C=160,V_T3S=168,V_DR=176,V_DI=184,V_B=192)
V_FW2D=246
def f_stream(a,cfg,end):
    a.e('L_F:')
    a.e('s_mov_b32 s90, 1')
    if cfg.x.get('fprio'): a.e(f's_setprio {cfg.x["fprio"]}')
    a.e(f'''s_lshr_b32 s49, s2, 5
    s_and_b32 s50, s2, 31
    s_lshl_b32 s51, s6, 17
    s_lshl_b32 s56, {wv}, 13
    s_add_u32 s51, s51, s56
    s_mul_i32 s52, s7, 224
    s_mul_i32 s56, {wv}, 14336
    s_add_u32 s52, s52, s56
    s_lshl_b32 s53, {wv}, 10
    s_mul_i32 s54, {wv}, 960
    s_add_u32 s54, s54, 16384''')
    T=6; V_XD=4; V_WD=5
    a.e(f'''v_lshrrev_b32 v{T}, 3, v0
    v_lshlrev_b32 v{V_XD}, 10, v{T}
    v_lshrrev_b32 v{T}, 1, v{T}
    s_and_b32 s56, {wv}, 1
    s_lshl_b32 s56, s56, 2
    v_add_u32 v{T}, s56, v{T}
    v_and_b32 v{T+1}, 7, v0
    v_xor_b32 v{T}, v{T}, v{T+1}
    v_lshl_add_u32 v{V_XD}, v{T}, 4, v{V_XD}
    v_mul_u32_u24 v{T}, 4682, v0
    v_lshrrev_b32 v{T}, 16, v{T}
    v_mul_u32_u24 v{V_WD}, 3584, v{T}
    v_mul_u32_u24 v{T}, 14, v{T}
    v_sub_u32 v{T}, v0, v{T}
    v_lshl_add_u32 v{V_WD}, v{T}, 4, v{V_WD}
    v_mov_b32 v{V_LC}, {LC_BASE}''')
    a.e(f'''s_lshl_b32 s56, s49, 18
    s_lshl_b32 s57, s50, 10
    s_add_u32 s56, s56, s57
    s_lshl_b32 s57, {wv}, 16
    s_add_u32 s56, s56, s57
    s_add_u32 s58, s56, 32768
    s_mul_i32 s57, {wv}, {2*XA_PITCH}
    s_add_u32 s57, s57, {XA_BASE}''')
    a.e('s_waitcnt lgkmcnt(0)')
    stamp(a,cfg,26)
    a.e(f's_cmp_lg_u32 {wv}, 0'); a.e('s_cbranch_scc1 L_a_r0'); a.cond_begin()
    a.e(f's_mov_b32 m0, {GW_LDS}'); a.e('s_nop 0')
    a.e(f'buffer_load_dwordx4 v{V_L16}, {srd(S_GW)}, 0 offen lds')
    a.cond_end(); a.e('L_a_r0:')
    a.e(f's_cmp_lg_u32 {wv}, 1'); a.e('s_cbranch_scc1 L_a_r1'); a.cond_begin()
    a.e(f's_mul_i32 s64, s7, 224'); a.e(f's_mov_b32 m0, {B1_LDS}'); a.e('s_mov_b64 exec, 0x3fff')
    a.e(f'buffer_load_dwordx4 v{V_L16}, {srd(S_B1)}, s64 offen lds')
    a.e('s_mov_b64 exec, -1')
    a.cond_end(); a.e('L_a_r1:')
    tok_c={}
    def chunk_groups(c):
        gs=[]
        for u in range(4):
            gs.append(([f's_add_u32 m0, s53, {SB(c)+u*4096}', f's_add_u32 s55, s51, {u*32768+c*128}',
                        f'buffer_load_dwordx4 v{V_XD}, {srd(S_X)}, s55 offen lds'],None))
        for u in range(4):
            cb=(lambda c=c: tok_c.__setitem__(c,a.vmtok())) if u==3 else None
            gs.append(([f's_add_u32 m0, s54, {SB(c)+u*3840}', f's_add_u32 s55, s52, {u*57344+c*229376}',
                        's_mov_b32 exec_hi, 0x00ffffff',
                        f'buffer_load_dwordx4 v{V_WD}, {srd(S_W1)}, s55 offen lds',
                        's_mov_b32 exec_hi, -1'],cb))
        return gs
    def push_chunk(c):
        for g_ in chunk_groups(c): a.bg_push(*g_)
    def wait_role(tok,e3,e2):
        n=a.vm-tok; lab=f'L_wr{len(a.items)}'
        a.e(f's_cmp_eq_u32 {wv}, 3'); a.e(f's_cbranch_scc1 {lab}_3')
        a.e('s_cmp_eq_u32 s66, 0'); a.e(f's_cbranch_scc1 {lab}_2')
        a.e(f's_waitcnt vmcnt({n})'); a.e(f's_branch {lab}_e')
        a.e(f'{lab}_3:'); a.e(f's_waitcnt vmcnt({min(n+e3,62)})'); a.e(f's_branch {lab}_e')
        a.e(f'{lab}_2:'); a.e(f's_waitcnt vmcnt({min(n+e2,62)})')
        a.e(f'{lab}_e:')
    def chunk_now(c):
        if cfg.fine==3: stamp(a,cfg,48+2*c%16 if False else 40+c)
        push_chunk(c); a.bg_flush()
        if cfg.fine==3: stamp(a,cfg,50+c)
    a.e(f'''s_mov_b32 m0, s57
    s_add_u32 s57, s57, {XA_PITCH}
    buffer_load_dwordx4 v{V_L16}, {srd(S_X)}, s56 offen lds
    s_mov_b32 m0, s57
    s_nop 0
    buffer_load_dwordx4 v{V_L16}, {srd(S_X)}, s58 offen lds''')
    tok_xa=a.vmtok()
    chunk_now(0)
    if cfg.x.get('c1pre',1): chunk_now(1)
    if cfg.x.get('fprio'): a.e('s_setprio 0')
    stamp(a,cfg,0)
    a.wait_vm(tok_xa); a.e('s_barrier')
    stamp(a,cfg,1)
    if not cfg.x.get('c1pre',1): chunk_now(1)
    chunk_now(2)
    T0=92; V_B1S=68
    a.wait_vm(tok_c[0]); a.e('s_barrier')
    if cfg.fine==3: stamp(a,cfg,27)
    chunk_now(3)
    a.wait_vm(tok_c[1]); a.e('s_barrier')
    if cfg.fine==3: stamp(a,cfg,29)
    chunk_now(4)
    a.wait_vm(tok_c[2]); a.e('s_barrier')
    if cfg.fine==3: stamp(a,cfg,30)
    chunk_now(5)
    a.e('''s_lshr_b32 s59, s50, 3
    s_lshr_b32 s60, s50, 2
    s_and_b32 s60, s60, 1
    s_and_b32 s61, s50, 3
    s_lshl_b32 s62, s59, 4
    s_lshl_b32 s63, s60, 10
    s_add_u32 s62, s62, s63
    s_lshl_b32 s63, s61, 8
    s_add_u32 s62, s62, s63
    s_lshl_b32 s63, s59, 11
    s_lshl_b32 s64, s60, 10
    s_add_u32 s63, s63, s64
    s_lshl_b32 s64, s61, 8
    s_add_u32 s63, s63, s64''')
    V_WR=8; V_WI=24; V_WO=7
    a.e(f's_cmp_lg_u32 {wv}, 3'); a.e('s_cbranch_scc1 L_a_r3'); a.cond_begin()
    a.e(f'''v_lshrrev_b32 v{V_WO}, 2, v0
    v_mul_u32_u24 v{V_WO}, 514, v{V_WO}
    v_and_b32 v{T}, 3, v0
    v_lshl_add_u32 v{V_WO}, v{T}, 4, v{V_WO}
    s_mul_i32 s64, s62, 514
    s_lshl_b32 s65, s49, 6
    s_add_u32 s64, s64, s65''')
    for r in range(4):
        a.e(f'buffer_load_dwordx4 {vr(V_WR+4*r,4)}, v{V_WO}, {srd(S_WR)}, s64 offen')
        a.e(f'buffer_load_dwordx4 {vr(V_WI+4*r,4)}, v{V_WO}, {srd(S_WI)}, s64 offen')
        if r<3: a.e(f's_add_u32 s64, s64, {64*514}')
    a.cond_end(); a.e('L_a_r3:')
    V_SP=40; V_J=48; V_JR=49
    a.e(f'''s_lshl_b32 s65, s49, 2
    s_xor_b32 s66, {wv}, 2
    s_or_b32 s66, s66, s65''')
    a.e('s_cmp_lg_u32 s66, 0'); a.e('s_cbranch_scc1 L_a_r2'); a.cond_begin()
    a.e(f'''v_lshlrev_b32 v{V_J}, 6, v2
    v_add_u32 v{V_J}, v{V_J}, v1
    v_add_u32 v{V_J}, s62, v{V_J}
    v_sub_u32 v{V_JR}, 2048, v{V_J}
    v_and_b32 v{V_JR}, 2047, v{V_JR}
    v_mul_u32_u24 v{V_J}, 514, v{V_J}
    v_mul_u32_u24 v{V_JR}, 514, v{V_JR}''')
    for n,(S,vv,off) in enumerate([(S_WR,V_J,0),(S_WR,V_J,512),(S_WR,V_JR,0),(S_WR,V_JR,512),(S_WI,V_J,0),(S_WI,V_J,512),(S_WI,V_JR,0),(S_WI,V_JR,512)]):
        a.e(f'buffer_load_ushort v{V_SP+n}, v{vv}, {srd(S)}, 0 offen offset:{off}')
    a.cond_end(); a.e('L_a_r2:')
    tok_role=a.vmtok()
    wait_role(tok_c[3],8,8); a.e('s_barrier')
    if cfg.fine==3: stamp(a,cfg,31)
    chunk_now(6)
    wait_role(tok_c[4],8,8); a.e('s_barrier')
    two=cfg.x.get('s1two',0)
    if two:
        a.e('s_and_b32 s92, s5, 3'); a.e('s_lshl_b32 s92, s92, 6')
        ssignal(a,S_DBG,'s92')
    if cfg.fine==3: stamp(a,cfg,32)
    chunk_now(7)
    a.e(f's_cmp_lg_u32 {wv}, 3'); a.e('s_cbranch_scc1 L_a_w3')
    a.wait_vm(tok_role); a.cond_begin()
    V_WP=188
    a.e('s_mov_b32 s78, 0x05040100'); a.e('s_mov_b32 s79, 0x07060302')
    for kk in range(8):
        for r in range(4):
            a.e(f'v_perm_b32 v{V_WP+4*kk+r}, v{V_WI+4*r+(kk>>1)}, v{V_WR+4*r+(kk>>1)}, s{78+(kk&1)}')
    a.e(f'''v_and_b32 v{T0+4}, 3, v0
    v_lshlrev_b32 v{T0+5}, 16, v{T0+4}
    v_lshrrev_b32 v{T0+6}, 2, v0
    v_lshl_add_u32 v{T0+5}, v{T0+6}, 4, v{T0+5}
    s_lshl_b32 s76, s49, 2
    v_add_u32 v{T0+4}, s76, v{T0+4}
    v_cmp_eq_u32 vcc, 0, v{T0+4}
    v_mov_b32 v{T0+6}, {OOB}
    v_cndmask_b32 v{T0+6}, v{T0+5}, v{T0+6}, vcc
    s_lshl_b32 s76, s49, 18
    s_add_u32 s76, s76, s63
    s_add_u32 s76, s76, {WS_WT}''')
    for kk in range(8):
        a.e(f'buffer_store_dwordx4 {vr(V_WP+4*kk,4)}, v{T0+6 if kk==0 else T0+5}, {srd(S_WS)}, s76 offen {cfg.f("stW")}')
        if kk<7: a.e('s_add_u32 s76, s76, 8192')
    a.cond_end(); a.e('L_a_w3:')
    a.e('s_cmp_lg_u32 s66, 0'); a.e('s_cbranch_scc1 L_a_w2')
    a.wait_vm(tok_role); a.cond_begin()
    for n in range(8): a.e(f'v_lshlrev_b32 v{V_SP+n}, 16, v{V_SP+n}')
    s=V_SP; t=V_B1S
    a.e(f'''v_add_f32 v{t}, v{s}, v{s+2}
    v_add_f32 v{t+1}, v{s+1}, v{s+3}
    v_sub_f32 v{t+2}, v{s+4}, v{s+6}
    v_sub_f32 v{t+3}, v{s+5}, v{s+7}
    v_add_f32 v{t+4}, v{t}, v{t+1}
    v_add_f32 v{t+5}, v{t+2}, v{t+3}
    v_sub_f32 v{t+6}, v{t}, v{t+1}
    v_sub_f32 v{t+7}, v{t+2}, v{t+3}
    v_mul_f32 v{t+4}, {fl(0.25)}, v{t+4}
    v_mul_f32 v{t+5}, {fl(0.25)}, v{t+5}
    v_mul_f32 v{t+6}, {fl(0.25)}, v{t+6}
    v_mul_f32 v{t+7}, {fl(0.25)}, v{t+7}
    v_cvt_pk_bf16_f32 v{t}, v{t+4}, v{t+5}
    v_cvt_pk_bf16_f32 v{t+1}, v{t+6}, v{t+7}
    v_lshlrev_b32 v{t+2}, 4, v1
    v_lshl_add_u32 v{t+2}, v2, 2, v{t+2}
    s_add_u32 s77, s63, {WS_QT}
    s_add_u32 s76, s63, {WS_WT}
    buffer_store_dword v{t}, v{t+2}, {srd(S_WS)}, s76 offen {cfg.f("stW")}
    buffer_store_dword v{t+1}, v{t+2}, {srd(S_WS)}, s77 offen {cfg.f("stW")}''')
    a.cond_end(); a.e('L_a_w2:')
    a.wait_vm(tok_c[5]) if False else None
    a.e(f's_waitcnt vmcnt({cfg.x.get("b5n",18)})') if False else None
    wait_role(tok_c[5],16,10); a.e('s_barrier')
    if cfg.fine==3: stamp(a,cfg,33)
    m_g2_ids(a,cfg)
    w2_dma_addr(a,V_FW2D,244)
    wait_role(tok_c[6],8,2); a.e('s_barrier')
    if cfg.fine==3: stamp(a,cfg,34)
    if two:
        wait_role(tok_c[7],8,2); a.e('s_barrier')
    else:
        a.e('s_waitcnt vmcnt(0)'); a.e('s_barrier')
        a.e('s_and_b32 s92, s5, 3'); a.e('s_lshl_b32 s92, s92, 6')
        ssignal(a,S_DBG,'s92')
    if cfg.fine==3: stamp(a,cfg,35)
    a.e('s_barrier')
    if two:
        a.e(f's_cmp_eq_u32 {wv}, 3'); a.e('s_cbranch_scc1 L_f_s1b')
        a.e('s_cmp_lg_u32 s66, 0'); a.e('s_cbranch_scc1 L_f_nos1b')
        a.e('L_f_s1b:')
        a.cond_begin()
        a.e(f"""s_waitcnt vmcnt(0)
        s_and_b32 s92, s5, 3
        s_lshl_b32 s92, s92, 6
        s_add_u32 s92, s92, 4
        v_mov_b32 v{V_SIG}, 1
        v_mov_b32 v{V_SIG+1}, 0
        s_mov_b64 exec, 1
        buffer_atomic_add v{V_SIG}, v{V_SIG+1}, {srd(S_DBG)}, s92 offen sc1
        s_mov_b64 exec, -1""")
        a.cond_end(); a.e('L_f_nos1b:')
    stamp(a,cfg,4)
    def w2slots(lo,hi):
        for t in range(lo,hi):
            for v in range(4): a.bg_push(w2_group(t,v,V_FW2D))
        a.bg_flush()
    w2slots(0,cfg.x.get('w2pre',4))
    stamp(a,cfg,5)
    a.e(f's_cmp_lg_u32 {wv}, 0'); a.e('s_cbranch_scc1 L_f_s1'); a.cond_begin()
    if cfg.x.get('s1drain',1): a.e('s_waitcnt vmcnt(0)')
    a.e('s_mov_b32 s93, 0')
    spin_global(a,S_DBG,'s93',4,64,64)
    p2_t_loads(a,cfg)
    if two:
        a.e('s_mov_b32 s93, 4')
        spin_global(a,S_DBG,'s93',4,64,72)
    a.cond_end(); a.e('L_f_s1:')
    stamp(a,cfg,6)
    a.e('s_waitcnt vmcnt(0)'); a.e('s_barrier')
    a.e(f's_lshl_b32 s92, s6, 7'); a.e(f's_add_u32 s92, s92, {WS_CNT}')
    ssignal(a,S_WS,'s92')
    stamp(a,cfg,7)
    w2slots(cfg.x.get('w2pre',4),8)
    a.e('s_waitcnt vmcnt(0)'); a.e('s_barrier')
    a.e('s_lshl_b32 s56, s4, 5'); a.e('s_add_u32 s56, s56, s5')
    a.e('s_cmp_lg_u32 s56, 0'); a.e('s_cbranch_scc1 L_f_nospec'); a.cond_begin()
    a.e('s_barrier')
    a.cond_end(); a.e('L_f_nospec:')
    a.e('s_barrier')
    a.e(f's_and_b32 s92, s2, {NS3-1}'); a.e('s_lshl_b32 s92, s92, 7'); a.e(f's_add_u32 s92, s92, {WS_CNT+16*128}')
    ssignal(a,S_WS,'s92')
    T0=80; TA=92
    a.e(f"""s_lshl_b32 s75, s68, 6
    v_add_u32 v{T0}, s75, v1
    v_cvt_f32_u32 v{T0}, v{T0}
    s_lshl_b32 s75, {wv}, 6
    v_lshlrev_b32 v{T0+1}, 2, v2
    v_add_u32 v{T0+1}, s75, v{T0+1}
    v_cvt_f32_u32 v{T0+1}, v{T0+1}""")
    for c in range(4):
        a.e(f'v_add_f32 v{T0+2+c}, {fl(16*c)}, v{T0}' if c else f'v_mov_b32 v{T0+2}, v{T0}')
        a.e(f'v_mul_f32 v{T0+2+c}, {fl(1/512)}, v{T0+2+c}')
        a.e(f'v_mul_f32 v{T0+6+c}, v{T0+1}, v{T0+2+c}')
    def pk(d): return lambda c,s: a.e(f'v_cvt_pk_bf16_f32 v{d}, v{c}, v{s}')
    angles(a,[(T0+2+c,T0+6+c,16*psi+u,(None,None,pk(V_GF+16*psi+4*c+u)),False) for (psi,c,u) in G_ITEMS],TA)
    a.e(f"""s_cmp_eq_u32 {wv}, 0
    s_cselect_b32 s76, 0xffff, 0
    s_mov_b32 s77, 0
    v_mov_b32 v{T0}, {hex(0xBF003F00)}
    v_and_b32 v{T0+1}, 1, v1
    v_lshlrev_b32 v{T0+1}, 31, v{T0+1}
    v_xor_b32 v{T0}, v{T0}, v{T0+1}""")
    for c in range(4): a.e(f'v_cndmask_b32 v{V_GF+4*c}, v{V_GF+4*c}, v{T0}, s[76:77]')
    a.e(f'v_add_u32 v7, s71, v{V_L16}')
    a.e('s_barrier')
    for psi in range(4):
        for c in range(4):
            a.e(f'ds_write_b128 v7, {vr(V_GF+16*psi+4*c,4)} offset:{GSLOT[psi]*4096+c*1024}')
    a.e('s_waitcnt lgkmcnt(0)'); a.e('s_barrier')
    stamps_flush(a,cfg)
    a.e(f's_branch {end}')

def p2_t_loads(a,cfg):
    T0=64
    a.e(f'''s_lshl_b32 s56, s4, 5
    s_add_u32 s56, s56, s5
    v_lshrrev_b32 v{T0}, 5, v0
    v_lshlrev_b32 v{T0}, 18, v{T0}
    v_bfe_u32 v{T0+1}, v0, 1, 4
    v_lshl_add_u32 v{T0}, v{T0+1}, 13, v{T0}
    v_and_b32 v{T0+1}, 1, v0
    v_lshl_add_u32 v{T0}, v{T0+1}, 4, v{T0}
    s_lshl_b32 s57, s56, 5
    s_add_u32 s57, s57, {WS_T}''')
    for ks in range(4):
        for mb in range(2):
            a.e(f's_mov_b32 m0, {TB_BASE+2048*ks+1024*mb}')
            a.e(f's_add_u32 s58, s57, {ks*524288+mb*131072}')
            a.e(f'buffer_load_dwordx4 v{T0}, {srd(S_WS)}, s58 offen {cfg.f("ldT")} lds')

def p2_small_loads(a,cfg):
    V_W,V_GT,V_Q,T0=P2['V_W'],P2['V_GT'],P2['V_Q'],P2['T0']
    a.e(f'''s_lshl_b32 s56, s4, 5
    s_add_u32 s56, s56, s5
    s_lshl_b32 s60, s56, 13
    s_lshl_b32 s61, {wv}, 11
    s_add_u32 s60, s60, s61
    s_add_u32 s62, s60, {WS_WT}
    s_add_u32 s63, s61, {WS_G}
    s_add_u32 s64, s61, {WS_QT}''')
    for eh in range(2): a.e(f'buffer_load_dwordx4 {vr(V_W+4*eh,4)}, v{V_L16}, {srd(S_WS)}, s62 offen offset:{1024*eh} {cfg.f("ldW")}')
    for nb in range(2): a.e(f'buffer_load_dwordx4 {vr(V_GT+4*nb,4)}, v{V_L16}, {srd(S_WS)}, s63 offen offset:{1024*nb} {cfg.f("ldW")}')
    a.e(f'''s_cmp_eq_u32 s56, 0
    s_cselect_b32 s65, 0, {OOB}
    v_add_u32 v{T0+2}, s65, v{V_L16}''')
    for eh in range(2): a.e(f'buffer_load_dwordx4 {vr(V_Q+4*eh,4)}, v{T0+2}, {srd(S_WS)}, s64 offen offset:{1024*eh} {cfg.f("ldW")}')

def p2_table_parts(a,cfg):
    p=P2; T0=232; TA=200
    def pk(dr,di):
        def f(c,s):
            a.e(f'v_cvt_pk_bf16_f32 v{dr}, v{c}, v{s}')
            a.e(f'v_cvt_pk_bf16_f32 v{di}, -v{s}, v{c}')
        return f
    def part0():
        a.e(f'''s_lshl_b32 s83, {wv}, 4
        v_add_u32 v{T0}, s83, v1
        v_cvt_f32_u32 v{T0}, v{T0}
        v_lshlrev_b32 v{T0+2}, 2, v2
        v_cvt_f32_u32 v{T0+2}, v{T0+2}
        v_mul_f32 v{T0+1}, {fl(1/64)}, v{T0}
        v_mul_f32 v{T0+3}, v{T0+2}, v{T0+1}''')
        angles(a,[(T0+1,T0+3,16*ks+u,(None,None,pk(p['V_F64R']+4*ks+u,p['V_F64I']+4*ks+u)),False) for ks in range(3) for u in range(4)],TA)
    def part1():
        angles(a,[(T0+1,T0+3,16*ks+u,(None,None,pk(p['V_F64R']+4*ks+u,p['V_F64I']+4*ks+u)),False) for ks in range(3,4) for u in range(4)],TA)
        a.e(f'''v_mul_f32 v{T0+1}, {fl(1/2048)}, v{T0}
        v_mul_f32 v{T0+3}, v{T0+2}, v{T0+1}''')
        angles(a,[(T0+1,T0+3,16*mb+r,(p['V_T1C']+4*mb+r,p['V_T1S']+4*mb+r,None),True) for mb in range(2) for r in range(4)],TA)
    def part2():
        a.e(f'v_cvt_f32_u32 v{T0+7}, v1')
        for eh in range(2):
            a.e(f'''v_add_f32 v{T0+1}, {fl(16*eh)}, v{T0+7}
            v_mul_f32 v{T0+1}, {fl(1/32)}, v{T0+1}
            v_mul_f32 v{T0+3}, v{T0+2}, v{T0+1}''')
            angles(a,[(T0+1,T0+3,16*mb+u,(None,None,pk(p['V_F32R']+8*eh+4*mb+u,p['V_F32I']+8*eh+4*mb+u)),False) for mb in range(2) for u in range(4)],TA)
    def part3():
        a.e(f'''v_cvt_f32_u32 v{T0}, s83
        v_add_f32 v{T0+2}, v{T0}, v{T0+2}''')
        for nb in range(2):
            a.e(f'''v_add_f32 v{T0+1}, {fl(16*nb)}, v{T0+7}
            v_mul_f32 v{T0+1}, {fl(1/2048)}, v{T0+1}
            v_mul_f32 v{T0+3}, v{T0+2}, v{T0+1}''')
            angles(a,[(T0+1,T0+3,r,(p['V_T3C']+4*nb+r,p['V_T3S']+4*nb+r,None),True) for r in range(4)],TA)
    return [part0,part1,part2,part3]

def p2_compute(a,cfg,tok_w):
    p=P2
    V_U,V_W,V_GT,T0=p['V_U'],p['V_W'],p['V_GT'],p['T0']
    V_F64R,V_F64I,V_F32R,V_F32I=p['V_F64R'],p['V_F64I'],p['V_F32R'],p['V_F32I']
    V_T1C,V_T1S,V_T3C,V_T3S=p['V_T1C'],p['V_T1S'],p['V_T3C'],p['V_T3S']
    V_DR,V_DI,V_B=p['V_DR'],p['V_DI'],p['V_B']; TT=200
    a.e(f'''v_lshrrev_b32 v{T0+4}, 1, v2
    v_lshlrev_b32 v{T0+4}, 5, v{T0+4}
    v_lshl_add_u32 v{T0+4}, v1, 1, v{T0+4}
    v_and_b32 v{T0+5}, 1, v2
    v_add_u32 v{T0+4}, v{T0+4}, v{T0+5}
    v_lshlrev_b32 v{T0+4}, 4, v{T0+4}
    v_add_u32 v{T0+4}, {TB_BASE}, v{T0+4}''')
    for ks in range(4):
        for mb in range(2):
            a.e(f'ds_read_b128 {vr(V_U+16*mb+4*ks,4)}, v{T0+4} offset:{2048*ks+1024*mb}')
    V_WR=216; V_WI=224
    a.wait_vm(tok_w)
    for e in range(8):
        a.e(f'v_lshlrev_b32 v{V_WR+e}, 16, v{V_W+e}')
        a.e(f'v_and_b32 v{V_WI+e}, 0xffff0000, v{V_W+e}')
    for ks in range(4):
        a.e(f's_waitcnt lgkmcnt({6-2*ks})')
        for mb in range(2):
            A=vr(V_U+16*mb+4*ks,4)
            for (D,Fm) in((V_DR,V_F64R),(V_DI,V_F64I)):
                d=vr(D+4*mb,4)
                a.e(f'v_mfma_f32_16x16x32_bf16 {d}, {A}, {vr(Fm+4*ks,4)}, {d if ks else 0}')
    for e in range(8): a.e(f'v_mul_f32 v{V_GT+e}, {fl(2.0**-19)}, v{V_GT+e}')
    for mb in range(2): cmul_pack(a,V_DR+4*mb,V_DI+4*mb,V_T1C+4*mb,V_T1S+4*mb,V_B+4*mb,TT)
    for mb in range(2):
        for eh in range(2):
            for (D,Fm) in((V_DR,V_F32R),(V_DI,V_F32I)):
                d=vr(D+4*eh,4)
                a.e(f'v_mfma_f32_16x16x32_bf16 {d}, {vr(Fm+8*eh+4*mb,4)}, {vr(V_B+4*mb,4)}, {d if mb else 0}')
    a.e(f'''s_lshl_b32 s65, {wv}, 11
    s_add_u32 s65, s65, {XB_BASE}
    v_add_u32 v{T0+4}, s65, v{V_L16}
    v_add_u32 v{T0+5}, {XB_BASE}, v{V_L16}''')
    a.e('s_cmp_lg_u32 s56, 0')
    a.e('s_cbranch_scc0 L_p2_special')
    for eh in range(2): cmul_pack(a,V_DR+4*eh,V_DI+4*eh,V_WR+4*eh,V_WI+4*eh,V_B+4*eh,TT,negim=True)
    a.e('L_p2_join:')
    for ks in range(2):
        for nb in range(2):
            for (D,Fm) in((V_DR,V_F32R),(V_DI,V_F32I)):
                d=vr(D+4*nb,4)
                a.e(f'v_mfma_f32_16x16x32_bf16 {d}, {vr(V_B+4*ks,4)}, {vr(Fm+8*nb+4*ks,4)}, {d if ks else 0}')
    for nb in range(2):
        cmul_pack(a,V_DR+4*nb,V_DI+4*nb,V_T3C+4*nb,V_T3S+4*nb,V_B+4*nb,TT)
        a.e(f'ds_write_b128 v{T0+4}, {vr(V_B+4*nb,4)} offset:{1024*nb}')
    a.e('s_waitcnt lgkmcnt(0)')
    a.e('s_barrier')
    V_X=V_U
    for ks in range(4):
        for nb in range(2):
            a.e(f'ds_read_b128 {vr(V_X+8*ks+4*nb,4)}, v{T0+5} offset:{2048*ks+1024*nb}')
    for ks in range(4):
        a.e(f's_waitcnt lgkmcnt({6-2*ks})')
        for nb in range(2):
            for (D,Fm) in((V_DR,V_F64R),(V_DI,V_F64I)):
                d=vr(D+4*nb,4)
                a.e(f'v_mfma_f32_16x16x32_bf16 {d}, {vr(Fm+4*ks,4)}, {vr(V_X+8*ks+4*nb,4)}, {d if ks else 0}')
    a.e(f's_add_u32 s62, s60, {WS_Y}')
    for nb in range(2):
        for h in range(2):
            a.e(f'v_pk_mul_f32 {vr(V_DR+4*nb+2*h,2)}, {vr(V_DR+4*nb+2*h,2)}, {vr(V_GT+4*nb+2*h,2)}')
            a.e(f'v_pk_mul_f32 {vr(V_DI+4*nb+2*h,2)}, {vr(V_DI+4*nb+2*h,2)}, {vr(V_GT+4*nb+2*h,2)}')
        for r in range(4): a.e(f'v_cvt_pk_bf16_f32 v{V_B+4*nb+r}, v{V_DR+4*nb+r}, v{V_DI+4*nb+r}')
        a.e(f'buffer_store_dwordx4 {vr(V_B+4*nb,4)}, v{V_L16}, {srd(S_WS)}, s62 offen offset:{1024*nb} {cfg.f("stY")}')

def p2_special(a,cfg):
    p=P2
    V_U,V_Q,T0,V_DR,V_DI,V_B=p['V_U'],p['V_Q'],p['T0'],p['V_DR'],p['V_DI'],p['V_B']
    V_WR=216; V_WI=224
    a.e('L_p2_special:')
    a.cond_begin()
    V_J=T0+8; V_ZA=V_U+16
    a.e(f'''s_lshl_b32 s65, {wv}, 4
    v_lshlrev_b32 v{V_J}, 8, v2
    v_add3_u32 v{V_J}, v{V_J}, v1, s65''')
    for eh in range(2):
        for r in range(4):
            n=1024*eh+64*r
            a.e(f'v_add_u32 v{T0}, {n}, v{V_J}')
            a.e(f'v_lshlrev_b32 v{T0}, 2, v{T0}')
            a.e(f'v_cvt_pk_bf16_f32 v{T0+2}, v{V_DR+4*eh+r}, v{V_DI+4*eh+r}')
            a.e(f'v_add_u32 v{T0}, {ZR_BASE}, v{T0}')
            a.e(f'ds_write_b32 v{T0}, v{T0+2}')
    a.e('s_waitcnt lgkmcnt(0)')
    a.e('s_barrier')
    for eh in range(2):
        for r in range(4):
            n=1024*eh+64*r
            a.e(f'v_sub_u32 v{T0}, {2048-n}, v{V_J}')
            a.e(f'v_and_b32 v{T0}, 2047, v{T0}')
            a.e(f'v_lshlrev_b32 v{T0}, 2, v{T0}')
            a.e(f'v_add_u32 v{T0}, {ZR_BASE}, v{T0}')
            a.e(f'ds_read_b32 v{V_ZA+4*eh+r}, v{T0}')
    a.e('s_waitcnt lgkmcnt(0)')
    for e in range(8):
        zr=V_DR+e; zi=V_DI+e; pr=V_WR+e; pi=V_WI+e; ar_=T0+6; ai=T0+7
        qr=T0; qi=T0+1; yr=T0+2; yi=T0+3
        a.e(f'''v_lshlrev_b32 v{qr}, 16, v{V_Q+e}
        v_and_b32 v{qi}, 0xffff0000, v{V_Q+e}
        v_lshlrev_b32 v{ar_}, 16, v{V_ZA+e}
        v_and_b32 v{ai}, 0xffff0000, v{V_ZA+e}
        v_mul_f32 v{yr}, v{zr}, v{pr}
        v_fma_f32 v{yr}, -v{zi}, v{pi}, v{yr}
        v_fma_f32 v{yr}, v{ar_}, v{qr}, v{yr}
        v_fma_f32 v{yr}, v{ai}, v{qi}, v{yr}
        v_mul_f32 v{yi}, v{zr}, v{pi}
        v_fma_f32 v{yi}, v{zi}, v{pr}, v{yi}
        v_fma_f32 v{yi}, v{ar_}, v{qi}, v{yi}
        v_fma_f32 v{yi}, -v{ai}, v{qr}, v{yi}
        v_cvt_pk_bf16_f32 v{V_B+e}, v{yr}, -v{yi}''')
    a.cond_end()
    a.e('s_branch L_p2_join')

HEADER='''; Gated mix of a GFNet spectral filter and a dense->mish->dense block, one persistent launch.
; (text generated by the author's own generator script; 256 workgroups, one per CU, hand-offs through counters)
'''
def build(stamps=False,off=(),**kw):
    cfg=Cfg(); cfg.stamps=stamps; cfg.off=set(off); cfg.x=kw; cfg.fine=kw.get('fine',0)
    label=NAME+'_kernel'
    a=Asm(); end='L_end'
    prologue(a,cfg,end)
    sv=(a.vm,a.lg)
    m_stream(a,cfg,end)
    nbM=sum(1 for i in a.items if i.op=='s_barrier'); n0=len(a.items)
    a.vm,a.lg=sv; a.bg_rate=0; assert not a.bg
    f_stream(a,cfg,end)
    nbF=sum(1 for i in a.items[n0:] if i.op=='s_barrier')
    a.e(f'{end}:'); a.e('s_endpgm')
    txt=a.text()
    errs=[]
    for role in (False,True):
        for nm,pol in (('fall',lambda i,n:i.target.endswith('_done') or (role and i.target=='L_F')),
                       ('taken',lambda i,n:((not i.target.startswith('L_end')) and n==0 and (i.target!='L_F' or role)))):
            errs+=verify_waits(a.out,pol,('F' if role else 'M')+nm)
    for e in sorted(set(errs))[:30]: print('WAITERR',e,file=sys.stderr)
    print(dict(a.count()),'barriers M',nbM,'F',nbF,file=sys.stderr)
    out=HEADER+f'; @launch grid=(256,1,1) block=(512,1,1) lds={LDS_TOTAL}\n'
    out+='.amdgcn_target "amdgcn-amd-amdhsa--gfx950"\n.text\n'
    out+=f'.globl {label}\n.p2align 8\n.type {label},@function\n{label}:\n{txt}'
    out+=f'''.section .rodata,"a"
.p2align 6
.amdhsa_kernel {label}
  .amdhsa_next_free_vgpr 256
  .amdhsa_next_free_sgpr 102
  .amdhsa_accum_offset 256
  .amdhsa_group_segment_fixed_size 0
  .amdhsa_kernarg_size 88
  .amdhsa_user_sgpr_count 2
  .amdhsa_user_sgpr_kernarg_segment_ptr 1
  .amdhsa_system_sgpr_workgroup_id_x 1
.end_amdhsa_kernel
'''
    return out

if __name__=='__main__':
    mode=sys.argv[1] if len(sys.argv)>1 else 'persist'
    kw={}
    for x in sys.argv[3:]:
        k,v=x.split('='); kw[k]=int(v) if v.lstrip('-').isdigit() else v
    off=kw.pop('off','').split(',') if 'off' in kw else ()
    txt=build(stamps=(mode=='stamps'),off=off,**kw)
    open(sys.argv[2] if len(sys.argv)>2 else 'out.s','w').write(txt)
```

```python
import sys, os, struct
from dsl import Asm, verify_waits

NAME='gated_mix__spectral_gfnet__dense_activation_mish__prompt'
WS_T   =0x000000
WS_WT  =0x200000
WS_QT  =0x400000
WS_G   =0x402000
WS_CNT =0x404000
WS_Y   =0x600000
WS_ACT =0x800000
WS_STAMP=0x1000000
WS_SIZE=0x1080000
RT_STRIDE=56*4096
S_X,S_WR,S_WI,S_W1,S_B1,S_W2,S_GW,S_OUT,S_WS,S_DBG=8,12,16,20,24,28,32,36,40,44
def srd(n): return f's[{n}:{n+3}]'
SRDS=[(S_X,0,2048*1024),(S_WR,8,2048*514),(S_WI,16,2048*514),(S_W1,32,512*3584),(S_B1,40,3584),
      (S_W2,48,1792*1024),(S_GW,56,1024),(S_OUT,64,2048*1024),(S_WS,80,WS_SIZE),(S_DBG,72,256)]
def vr(b,n=1): return f'v{b}' if n==1 else f'v[{b}:{b+n-1}]'
def fl(x): return hex(struct.unpack('<I',struct.pack('<f',float(x)))[0])
S_WV=3; S_W8=49
wv=f's{S_WV}'
LOG2E=1.4426950408889634
OOB=0x40000000
SLEEP=int(os.environ.get('SLEEP','8'))
SPIN_MAX=50000
SLOT=31744
SB=lambda c:(c%5)*SLOT
XA_BASE=4*SLOT; XA_PITCH=1152
GW_LDS=5*SLOT; B1_LDS=GW_LDS+1024
LC_BASE=GW_LDS+2048
TB_BASE=131072; XB_BASE=139264; ZR_BASE=147456
LDS_TOTAL=163840
V_L16=3
V_PD,V_PA,V_SIG=250,251,252

class Cfg:
    stamps=False; dbgst=False; sc='sc1'
    off=set()
    def f(self,tag): return '' if (tag in self.off or 'all' in self.off) else self.sc

def stamp(a,cfg,idx):
    if not cfg.stamps: return
    r=a.bg_rate; a.bg_rate=0
    a.e('s_memrealtime s[96:97]'); a.e('s_waitcnt lgkmcnt(0)'); a.e(f'v_writelane_b32 v255, s96, {idx}')
    a.bg_rate=r
def stamps_flush(a,cfg):
    if not cfg.stamps: return
    a.e(f"""v_lshrrev_b32 v254, 6, v249
    s_nop 0
    v_readfirstlane_b32 s98, v254
    s_lshl_b32 s99, s2, 3
    s_add_u32 s98, s98, s99
    s_lshl_b32 s98, s98, 8
    s_add_u32 s98, s98, {WS_STAMP}
    v_lshlrev_b32 v254, 2, v0
    buffer_store_dword v255, v254, {srd(S_WS)}, s98 offen""")

def signal(a,S,soff):
    vt=V_SIG
    a.e(f"""s_cmp_eq_u32 {wv}, 0
    s_cselect_b32 s95, 0, {OOB}
    v_mov_b32 v{vt}, 1
    v_mov_b32 v{vt+1}, s95
    s_mov_b64 exec, 1
    buffer_atomic_add v{vt}, v{vt+1}, {srd(S)}, {soff} offen sc1
    s_mov_b64 exec, -1""")

def ssignal(a,S,soff):
    lab=f'L_ss{len(a.items)}'
    a.e(f's_cmp_lg_u32 {wv}, 0'); a.e(f's_cbranch_scc1 {lab}')
    a.e(f's_atomic_add s90, s[{S}:{S+1}], {soff}')
    a.e(f'{lab}:')

def spin_global(a,S,soff,nl,stride,target):
    lab=f'L_poll{len(a.items)}'
    a.e(f'v_mul_u32_u24 v{V_PA}, {stride}, v0')
    a.e(f's_mov_b64 exec, {hex((1<<nl)-1)}')
    a.e(f's_mov_b32 s94, 0')
    a.e(f'{lab}:')
    a.e(f'buffer_load_dword v{V_PD}, v{V_PA}, {srd(S)}, {soff} offen sc1')
    a.e(f's_add_u32 s94, s94, 1')
    a.e(f's_waitcnt vmcnt(0)')
    a.e(f'v_cmp_gt_u32 vcc, {target}, v{V_PD}')
    a.e(f's_cbranch_vccz {lab}_done')
    a.e(f's_cmp_gt_u32 s94, {SPIN_MAX}')
    a.e(f's_cbranch_scc1 {lab}_done')
    a.e(f's_sleep {SLEEP}')
    a.e(f's_branch {lab}')
    a.e(f'{lab}_done:')
    a.e('s_mov_b64 exec, -1')

def poll_w0(a,S,soff,nl,stride,target):
    lab=f'L_pw{len(a.items)}'
    a.e(f's_cmp_lg_u32 {wv}, 0'); a.e(f's_cbranch_scc1 {lab}')
    a.cond_begin(); spin_global(a,S,soff,nl,stride,target); a.cond_end()
    a.e(f'{lab}:')

V_LC=248
def lc_add(a,idx,rtn=None):
    a.e(f'v_mov_b32 v{V_LC-1}, 1')
    a.e('s_mov_b64 exec, 1')
    if rtn is None: a.e(f'ds_add_u32 v{V_LC}, v{V_LC-1} offset:{4*idx}')
    else: a.e(f'ds_add_rtn_u32 v{rtn}, v{V_LC}, v{V_LC-1} offset:{4*idx}')
    a.e('s_mov_b64 exec, -1')
def lc_wait(a,idx,target):
    lab=f'L_lc{len(a.items)}'
    a.e('s_mov_b32 s94, 0')
    a.e(f'{lab}:')
    a.e(f'ds_read_b32 v{V_LC-1}, v{V_LC} offset:{4*idx}')
    a.e('s_add_u32 s94, s94, 1')
    a.e('s_waitcnt lgkmcnt(0)')
    a.e(f'v_readfirstlane_b32 s93, v{V_LC-1}')
    a.e(f's_cmp_ge_u32 s93, {target}')
    a.e(f's_cbranch_scc1 {lab}_done')
    a.e('s_sleep 1')
    a.e(f's_cmp_lt_u32 s94, {20*SPIN_MAX}')
    a.e(f's_cbranch_scc1 {lab}')
    a.e(f'{lab}_done:')

def angles(a,items,T):
    for i0 in range(0,len(items),4):
        grp=items[i0:i0+4]; src=[]
        for j,(sl,base,n,fin,neg) in enumerate(grp):
            if n==0: src.append(f'v{base}')
            else:
                a.e(f'v_fmamk_f32 v{T+j}, v{sl}, {fl(n)}, v{base}'); src.append(f'v{T+j}')
        outs=[]
        for j,(sl,base,n,fin,neg) in enumerate(grp):
            c,s=fin[0] if fin[0] is not None else T+4+j, fin[1] if fin[1] is not None else T+8+j
            a.e(f'v_cos_f32 v{c}, {src[j]}')
            a.e(f'v_sin_f32_e64 v{s}, -{src[j]}' if neg else f'v_sin_f32 v{s}, {src[j]}')
            outs.append((c,s))
        for j,(sl,base,n,fin,neg) in enumerate(grp):
            if fin[2]: fin[2](*outs[j])

def cmul_pack(a,c,s,tc,ts,dst,TT,n=4,negim=False):
    H=n//2
    for h in range(H): a.e(f'v_pk_mul_f32 {vr(TT+4*h,2)}, {vr(s+2*h,2)}, {vr(ts+2*h,2)}')
    for h in range(H): a.e(f'v_pk_mul_f32 {vr(TT+4*h+2,2)}, {vr(s+2*h,2)}, {vr(tc+2*h,2)}')
    for h in range(H): a.e(f'v_pk_fma_f32 {vr(TT+4*h,2)}, {vr(c+2*h,2)}, {vr(tc+2*h,2)}, {vr(TT+4*h,2)} neg_lo:[0,0,1] neg_hi:[0,0,1]')
    for h in range(H): a.e(f'v_pk_fma_f32 {vr(TT+4*h+2,2)}, {vr(c+2*h,2)}, {vr(ts+2*h,2)}, {vr(TT+4*h+2,2)}')
    ng='-' if negim else ''
    for h in range(H):
        a.e(f'v_cvt_pk_bf16_f32 v{dst+2*h}, v{TT+4*h}, {ng}v{TT+4*h+2}')
        a.e(f'v_cvt_pk_bf16_f32 v{dst+2*h+1}, v{TT+4*h+1}, {ng}v{TT+4*h+3}')

def prologue(a,cfg,end):
    a.e('s_cmp_ge_u32 s2, 256'); a.e(f's_cbranch_scc1 {end}')
    for (n,off,sz) in SRDS: a.e(f's_load_dwordx2 s[{n}:{n+1}], s[0:1], {off}')
    if cfg.stamps: a.e('v_mov_b32 v249, v0')
    a.e('v_lshrrev_b32 v1, 6, v0')
    a.e('v_and_b32 v0, 63, v0')
    a.e('v_readfirstlane_b32 s48, v1')
    a.e('v_and_b32 v1, 15, v0')
    a.e('v_lshrrev_b32 v2, 4, v0')
    a.e(f'v_lshlrev_b32 v{V_L16}, 4, v0')
    for (n,off,sz) in SRDS:
        a.e(f's_mov_b32 s{n+2}, {hex(sz)}'); a.e(f's_mov_b32 s{n+3}, 0x20000')
    a.e(f'''s_mov_b32 s51, s48
    s_and_b32 {wv}, s48, 3
    s_lshr_b32 s50, s48, 2
    s_and_b32 s4, s2, 7
    s_lshr_b32 s5, s2, 3
    s_lshr_b32 s6, s4, 1
    s_lshl_b32 s6, s6, 2
    s_lshr_b32 s56, s5, 3
    s_add_u32 s6, s6, s56
    s_and_b32 s7, s4, 1
    s_lshl_b32 s7, s7, 3
    s_and_b32 s56, s5, 7
    s_add_u32 s7, s7, s56
    s_and_b32 s48, s7, 1''')
    a.e('s_waitcnt lgkmcnt(0)')
    if cfg.x.get('pf_code'):
        a.e('s_getpc_b64 s[64:65]')
        a.e('s_lshl_b32 s66, s5, 10')
        a.e('s_add_u32 s64, s64, s66'); a.e('s_addc_u32 s65, s65, 0')
        a.e(f'v_mov_b32 v57, s65'); a.e(f'v_add_co_u32 v56, vcc, s64, v{V_L16}'); a.e(f'v_addc_co_u32 v57, vcc, 0, v57, vcc')
        a.e(f's_cmp_lt_u32 s5, {cfg.x["pf_code"]}'); a.e('s_cbranch_scc0 L_nopf'); a.cond_begin()
        a.e(f's_cmp_lg_u32 s51, 2'); a.e('s_cbranch_scc1 L_nopf')
        a.e('global_load_dwordx4 v[52:55], v[56:57], off')
        a.cond_end(); a.e('L_nopf:')
    mt=str(cfg.x.get('mt','xw'))
    if mt!='0':
        a.e(f'''v_lshlrev_b32 v5, 7, v0
        v_mov_b32 v6, {OOB}
        v_cmp_gt_u32 vcc, 56, v0
        v_cndmask_b32 v6, v6, v5, vcc
        s_cmp_eq_u32 s51, 0
        s_cselect_b32 s56, 0, {OOB}
        v_add_u32 v5, s56, v5
        s_cmp_eq_u32 s51, 1
        s_cselect_b32 s56, 0, {OOB}
        v_add_u32 v7, s56, v6
        s_lshl_b32 s56, s2, 13
        s_mul_i32 s57, s2, 7168''')
        if 'x' in mt: a.e(f'buffer_load_dword v245, v5, {srd(S_X)}, s56 offen')
        if 'w' in mt: a.e(f'buffer_load_dword v245, v7, {srd(S_W1)}, s57 offen')
    a.e('s_cmp_lg_u32 s50, 0'); a.e('s_cbranch_scc1 L_F')

V_GF=8
V_W2A=240; V_W2D=244
NS3=int(os.environ.get('NS3','8'))
GSLOT=[6,7,0,1]
GT0=224; GTA=234
G_ITEMS=[(psi,c,u) for psi in range(4) for c in range(4) for u in range(4)]
def m_g2_ids(a,cfg):
    a.e(f"""s_lshl_b32 s67, s4, 2
    s_lshr_b32 s68, s5, 3
    s_add_u32 s67, s67, s68
    s_and_b32 s68, s5, 7
    s_mul_i32 s69, s67, {RT_STRIDE}
    s_mul_i32 s70, {wv}, {14*4096}
    s_add_u32 s69, s69, s70
    s_add_u32 s69, s69, {WS_ACT}
    s_mul_i32 s70, {wv}, {14*32*1024}
    s_lshl_b32 s71, s68, 7
    s_add_u32 s70, s70, s71
    s_lshl_b32 s71, {wv}, 15
    s_lshr_b32 s72, s67, 1
    s_and_b32 s73, s67, 1
    s_lshr_b32 s74, s72, 2
    s_lshl_b32 s74, s74, 11
    s_lshl_b32 s75, s73, 10
    s_add_u32 s74, s74, s75
    s_and_b32 s75, s72, 3
    s_lshl_b32 s75, s75, 8
    s_add_u32 s74, s74, s75""")
def w2_dma_addr(a,V,T):
    a.e(f"""v_lshrrev_b32 v{T}, 3, v0
    v_lshlrev_b32 v{V}, 10, v{T}
    v_lshrrev_b32 v{T}, 1, v{T}
    v_and_b32 v{T}, 3, v{T}
    v_bfe_u32 v{T+1}, v0, 1, 2
    v_xor_b32 v{T}, v{T}, v{T+1}
    v_lshlrev_b32 v{T}, 1, v{T}
    v_and_b32 v{T+1}, 1, v0
    v_add_u32 v{T}, v{T}, v{T+1}
    v_lshl_add_u32 v{V}, v{T}, 4, v{V}""")
def w2_group(t,v,V):
    return [f's_add_u32 m0, s71, {(t%8)*4096+v*1024}', f's_add_u32 s55, s70, {(32*t+8*v)*1024}',
            f'buffer_load_dwordx4 v{V}, {srd(S_W2)}, s55 offen lds']

def m_stream(a,cfg,end):
    a.e('s_waitcnt lgkmcnt(0)')
    if cfg.x.get('prio0'): a.e(f's_setprio {cfg.x["prio0"]}')
    stamp(a,cfg,26)
    a.e(f'''s_xor_b32 s56, {wv}, 3
    s_or_b32 s58, s56, s2
    s_cmp_eq_u32 s58, 0
    s_cselect_b32 s56, 0, {OOB}
    v_lshlrev_b32 v5, 7, v0
    v_add_u32 v5, s56, v5
    v_mov_b32 v6, 0
    s_mov_b32 s57, {WS_CNT}
    s_mov_b32 exec_hi, 0
    buffer_store_dword v6, v5, {srd(S_WS)}, s57 offen sc1
    s_mov_b32 exec_hi, -1''')
    mt=str(cfg.x.get('mt','xw'))
    a.e(f'''s_lshr_b32 s49, s2, 5
    s_and_b32 s50, s2, 31''')
    V_B1C=60; V_B1S=68; V_TC=76; V_TS=80; V_A2=84; V_A2N=88; T0=92; TA=100
    a.e(f'''s_lshl_b32 s67, {wv}, 4
    v_add_u32 v{T0}, s67, v1
    v_cvt_f32_u32 v{T0}, v{T0}
    v_mul_f32 v{T0+1}, {fl(1/64)}, v{T0}
    v_lshlrev_b32 v{T0+2}, 2, v2
    v_cvt_f32_u32 v{T0+2}, v{T0+2}
    v_mul_f32 v{T0+3}, v{T0+2}, v{T0+1}''')
    for ks in range(2):
        for hh in range(2):
            angles(a,[(T0+1,T0+3,32*ks+16*hh+u,(None,None,None),True) for u in range(4)],TA)
            for d in range(2):
                a.e(f'v_cvt_pk_bf16_f32 v{V_B1C+4*ks+2*hh+d}, v{TA+4+2*d}, v{TA+5+2*d}')
                a.e(f'v_cvt_pk_bf16_f32 v{V_B1S+4*ks+2*hh+d}, v{TA+8+2*d}, v{TA+9+2*d}')
    a.e(f'''v_and_b32 v{T0+4}, 1, v2
    v_lshlrev_b32 v{T0+4}, 2, v{T0+4}
    v_cvt_f32_u32 v{T0+4}, v{T0+4}
    v_mul_f32 v{T0+5}, {fl(1/512)}, v{T0}
    v_mul_f32 v{T0+6}, v{T0+4}, v{T0+5}''')
    angles(a,[(T0+5,T0+6,r,(V_TC+r,V_TS+r,None),True) for r in range(4)],TA)
    a.e(f'''v_lshrrev_b32 v{T0+5}, 2, v1
    v_cvt_f32_u32 v{T0+5}, v{T0+5}
    v_mul_f32 v{T0+5}, {fl(1/8)}, v{T0+5}
    v_and_b32 v{T0+6}, 1, v1
    v_cvt_f32_u32 v{T0+6}, v{T0+6}
    v_mul_f32 v{T0+6}, {fl(0.25)}, v{T0+6}
    v_fma_f32 v{T0+6}, v{T0+4}, v{T0+5}, v{T0+6}
    v_lshrrev_b32 v{T0+7}, 1, v1
    v_and_b32 v{T0+7}, 1, v{T0+7}
    v_lshrrev_b32 v{T0}, 1, v2
    v_cmp_eq_u32 s[68:69], v{T0+7}, v{T0}
    v_and_b32 v{T0+7}, 13, v1
    v_cmp_eq_u32 vcc, 1, v{T0+7}''')
    a.e('s_and_b64 s[70:71], vcc, s[68:69]')
    angles(a,[(T0+5,T0+6,dw,(None,None,None),False) for dw in range(4)],TA)
    for dw in range(4): a.e(f'v_cvt_pk_bf16_f32 v{TA+dw}, v{TA+4+dw}, v{TA+8+dw}')
    a.e(f'v_mov_b32 v{TA+4}, 0x3f80'); a.e(f'v_mov_b32 v{TA+5}, 0xbf80')
    for dw in range(4):
        a.e(f'v_cndmask_b32 v{V_A2+dw}, 0, v{TA+dw}, s[68:69]')
        a.e(f'v_cndmask_b32 v{V_A2N+dw}, 0, v{TA+4+(dw&1)}, s[70:71]')
    V_XA=108
    a.e(f'''v_and_b32 v{T0}, 3, v0
    v_lshrrev_b32 v{T0+1}, 1, v{T0}
    v_mul_u32_u24 v{V_XA}, {XA_PITCH}, v{T0+1}
    v_and_b32 v{T0}, 1, v{T0}
    v_lshlrev_b32 v{T0}, 3, v{T0}
    v_lshrrev_b32 v{T0+1}, 2, v1
    v_lshl_add_u32 v{T0+1}, v2, 2, v{T0+1}
    v_lshlrev_b32 v{T0+1}, 4, v{T0+1}
    v_add3_u32 v{V_XA}, v{V_XA}, v{T0}, v{T0+1}
    v_add_u32 v{V_XA}, {XA_BASE}, v{V_XA}
    s_mul_i32 s72, {wv}, {2*XA_PITCH}
    s_add_u32 s72, s72, {XA_BASE}
    v_add_u32 v{V_XA+1}, s72, v{V_L16}
    v_add_u32 v{V_XA+2}, {GW_LDS}, v{V_L16}''')
    a.e(f'''s_lshl_b32 s84, s49, 3
    s_lshl_b32 s85, {wv}, 1
    s_add_u32 s84, s84, s85
    s_lshr_b32 s85, s84, 4
    s_lshl_b32 s85, s85, 11
    s_lshr_b32 s86, s50, 4
    s_lshl_b32 s86, s86, 10
    s_add_u32 s85, s85, s86
    s_lshr_b32 s86, s84, 2
    s_and_b32 s86, s86, 3
    s_lshl_b32 s86, s86, 8
    s_add_u32 s85, s85, s86
    s_and_b32 s86, s50, 15
    s_lshl_b32 s86, s86, 4
    s_add_u32 s85, s85, s86
    s_and_b32 s86, s84, 3
    s_lshl_b32 s86, s86, 2
    s_add_u32 s85, s85, s86
    s_add_u32 s85, s85, {WS_G}
    ''')
    if mt!='0' and ('W' in mt or '2' in mt):
        a.e(f'''v_lshlrev_b32 v5, 7, v0
        v_mov_b32 v6, {OOB}
        v_cmp_gt_u32 vcc, 33, v0
        v_cndmask_b32 v7, v6, v5, vcc
        v_cmp_gt_u32 vcc, 56, v0
        v_cndmask_b32 v6, v6, v5, vcc
        s_cmp_eq_u32 {wv}, 2
        s_cselect_b32 s56, 0, {OOB}
        v_add_u32 v5, s56, v7
        s_cmp_eq_u32 {wv}, 3
        s_cselect_b32 s56, 0, {OOB}
        v_add_u32 v7, s56, v7
        s_cmp_eq_u32 {wv}, 0
        s_cselect_b32 s56, 0, {OOB}
        v_add_u32 v6, s56, v6
        s_mul_i32 s56, s2, {33*128}
        v_add_u32 v5, s56, v5
        v_add_u32 v7, s56, v7
        s_mul_i32 s57, s2, 7168''')
        if 'W' in mt:
            a.e(f'buffer_load_dword v245, v5, {srd(S_WR)}, 0 offen')
            a.e(f'buffer_load_dword v245, v7, {srd(S_WI)}, 0 offen')
        if '2' in mt: a.e(f'buffer_load_dword v245, v6, {srd(S_W2)}, s57 offen')
    a.e('s_cmp_lg_u32 s58, 0'); a.e('s_cbranch_scc1 L_m_nos0'); a.cond_begin()
    a.e(f'''s_waitcnt vmcnt(0)
    v_mov_b32 v5, 1
    v_mov_b32 v6, 32
    s_mov_b64 exec, 1
    buffer_store_dword v5, v6, {srd(S_DBG)}, 0 offen sc1
    s_mov_b64 exec, -1''')
    a.cond_end(); a.e('L_m_nos0:')
    stamp(a,cfg,0)
    a.e('s_barrier')
    stamp(a,cfg,1)
    V_AF=112; V_GX=144; V_GW=184; V_D1C=152; V_D1S=168
    for pi in range(4):
        for ks in range(2):
            for hh in range(2):
                a.e(f'ds_read_b64_tr_b16 {vr(V_AF+8*pi+4*ks+2*hh,2)}, v{V_XA} offset:{pi*2*XA_PITCH+ks*512+hh*256}')
        if pi==1: lg_01=a.lgtok()
    lg_af=a.lgtok()
    a.e(f'ds_read_b128 {vr(V_GX,4)}, v{V_XA+1}')
    a.e(f'ds_read_b128 {vr(V_GX+4,4)}, v{V_XA+1} offset:{XA_PITCH}')
    a.e(f'ds_read_b128 {vr(V_GW,4)}, v{V_XA+2}')
    lg_gx=a.lgtok()
    for pi in range(4):
        if pi==0: a.wait_lg(lg_01)
        if pi==2: a.wait_lg(lg_af)
        for ks in range(2):
            A=vr(V_AF+8*pi+4*ks,4); c=vr(V_D1C+4*pi,4); s=vr(V_D1S+4*pi,4)
            a.e(f'v_mfma_f32_16x16x32_bf16 {c}, {A}, {vr(V_B1C+4*ks,4)}, {c if ks else 0}')
            a.e(f'v_mfma_f32_16x16x32_bf16 {s}, {A}, {vr(V_B1S+4*ks,4)}, {s if ks else 0}')
    a.wait_lg(lg_gx)
    V_Z=T0+2; V_GOUT=T0+4
    for d in range(4):
        for rr in range(2):
            a.e(f'v_dot2_f32_bf16 v{V_Z+rr}, v{V_GX+4*rr+d}, v{V_GW+d}, {("v%d"%(V_Z+rr)) if d else 0}')
    TT=TA; V_B2=V_AF
    red=[('row_shr:1 row_mask:0xf bank_mask:0xf bound_ctrl:1'),('row_shr:2 row_mask:0xf bank_mask:0xf bound_ctrl:1'),
         ('row_shr:4 row_mask:0xf bank_mask:0xf bound_ctrl:1'),('row_shr:8 row_mask:0xf bank_mask:0xf bound_ctrl:1'),
         ('row_bcast:15 row_mask:0xa bank_mask:0xf'),('row_bcast:31 row_mask:0xc bank_mask:0xf')]
    ri=0
    for pi in range(4):
        cmul_pack(a,V_D1C+4*pi,V_D1S+4*pi,V_TC,V_TS,V_B2+4*pi,TT)
        for _ in range(2 if pi<2 else 1):
            for rr in range(2): a.e(f'v_add_f32_dpp v{V_Z+rr}, v{V_Z+rr}, v{V_Z+rr} {red[ri]}')
            ri+=1
    V_D2=V_D1C; V_D2N=V_D1S
    for pi in range(4):
        a.e(f'v_mfma_f32_16x16x32_bf16 {vr(V_D2+4*pi,4)}, {vr(V_A2,4)}, {vr(V_B2+4*pi,4)}, 0')
        a.e(f'v_mfma_f32_16x16x32_bf16 {vr(V_D2N+4*pi,4)}, {vr(V_A2N,4)}, {vr(V_B2+4*pi,4)}, 0')
    for rr in range(2): a.e(f'v_mul_f32 v{V_Z+rr}, {fl(-LOG2E)}, v{V_Z+rr}')
    for rr in range(2): a.e(f'v_exp_f32 v{V_Z+rr}, v{V_Z+rr}')
    for rr in range(2): a.e(f'v_add_f32 v{V_Z+rr}, 1.0, v{V_Z+rr}')
    for rr in range(2): a.e(f'v_rcp_f32 v{V_GOUT+rr}, v{V_Z+rr}')
    a.e(f'''s_cmp_eq_u32 {wv}, 0
    s_cselect_b32 s74, 1, 0
    s_mov_b32 s75, 0''')
    V_TO=8
    for pi in range(4):
        for rho in range(2):
            re=V_D2+4*pi+2*rho; im=re+1
            a.e(f'v_cndmask_b32 v{im}, v{im}, v{V_D2N+4*pi+2*rho+1}, s[74:75]')
            a.e(f'v_cvt_pk_bf16_f32 v{V_TO+2*pi+rho}, v{re}, v{im}')
    a.e(f'''v_lshrrev_b32 v18, 5, v0
    v_lshlrev_b32 v18, 11, v18
    v_and_b32 v19, 31, v0
    v_lshl_add_u32 v18, v19, 4, v18
    s_lshl_b32 s93, {wv}, 9
    v_add_u32 v18, s93, v18
    s_lshl_b32 s90, s2, 13
    s_add_u32 s90, s90, {WS_T}
    v_mov_b32 v16, v{V_GOUT}
    v_mov_b32 v17, v{V_GOUT+1}
    v_mov_b32 v19, 0
    s_mov_b32 s91, s85''')
    def row_stores():
        if cfg.x.get('x_nors'): return
        a.e(f'''s_add_u32 s93, s90, 4096
        buffer_store_dwordx4 v[8:11], v18, {srd(S_WS)}, s90 offen {cfg.f("stT")}
        buffer_store_dwordx4 v[12:15], v18, {srd(S_WS)}, s93 offen {cfg.f("stT")}
        s_mov_b32 exec_lo, 0
        s_mov_b32 exec_hi, 0x80000000
        buffer_store_dwordx2 v[16:17], v19, {srd(S_WS)}, s91 offen {cfg.f("stG")}
        s_mov_b64 exec, -1''')
    if cfg.x.get('rs_at',9)<0: row_stores()
    stamp(a,cfg,17)
    V_XF=80; V_XR=96; V_VA=102; V_BIAS=108; V_ACC=136; V_WF=192; V_BRAW=220; T0=234
    a.e(f'''s_lshl_b32 s76, {wv}, 12
    v_lshlrev_b32 v{T0}, 7, v1
    v_add_u32 v{T0}, s76, v{T0}
    v_lshrrev_b32 v{T0+1}, 1, v1
    v_xor_b32 v{T0+1}, v{T0+1}, v2
    v_lshl_add_u32 v{V_XR}, v{T0+1}, 4, v{T0}
    v_xor_b32 v{T0+1}, 4, v{T0+1}
    v_lshl_add_u32 v{V_XR+1}, v{T0+1}, 4, v{T0}
    v_mul_u32_u24 v{V_VA}, 1920, v2
    v_lshrrev_b32 v{T0}, 2, v1
    v_mul_u32_u24 v{T0}, 224, v{T0}
    v_and_b32 v{T0+1}, 3, v0
    v_lshlrev_b32 v{T0+1}, 3, v{T0+1}
    v_add3_u32 v{V_VA}, v{V_VA}, v{T0}, v{T0+1}
    v_add_u32 v{V_VA}, 16384, v{V_VA}
    s_cmp_eq_u32 s48, 0
    s_cselect_b32 s76, 192, 0
    v_add_u32 v{V_VA+1}, s76, v{V_VA}
    s_lshl_b32 s76, s48, 5
    v_add_u32 v{V_VA}, s76, v{V_VA}''')
    for st_ in (1,2):
        for j in range(2):
            a.e(f'v_add_u32 v{V_XR+2*st_+j}, {2*st_*SLOT}, v{V_XR+j}')
            a.e(f'v_add_u32 v{V_VA+2*st_+j}, {2*st_*SLOT}, v{V_VA+j}')
    a.e(f'''v_lshlrev_b32 v{T0}, 3, v2
    s_lshl_b32 s76, s48, 5
    s_add_u32 s77, s76, {B1_LDS}
    v_add_u32 v{T0+1}, s77, v{T0}
    s_cmp_eq_u32 s48, 0
    s_cselect_b32 s77, 192, 0
    s_add_u32 s77, s77, {B1_LDS}
    v_add_u32 v{T0}, s77, v{T0}''')
    if cfg.x.get('prio'): a.e(f's_setprio {cfg.x["prio"]}')
    a.e('s_barrier')
    stamp(a,cfg,3)
    a.e(f'''s_mul_i32 s93, {wv}, {2*XA_PITCH}
    s_add_u32 s93, s93, {XA_BASE}
    v_lshl_add_u32 v20, v0, 5, s93
    v_add_u32 v21, s93, v{V_L16}
    ds_write_b128 v20, v[8:11]
    ds_write_b128 v20, v[12:15] offset:16
    s_waitcnt lgkmcnt(0)
    ds_read_b128 v[8:11], v21
    ds_read_b128 v[12:15], v21 offset:1024''')
    def slot_set(c):
        j=c%5; return (j//2, (j%2)*SLOT)
    def w_read1(s,t,hh):
        c,kk=s//2,s%2; st_,off=slot_set(c)
        va=V_VA+2*st_+(1 if t==6 else 0)
        o=off+kk*7680+(32*t if t<6 else 0)
        a.e(f'ds_read_b64_tr_b16 {vr(V_WF+4*t+2*hh,2)}, v{va} offset:{o+960*hh}')
        return a.lgtok()
    def x_read1(s,nb):
        c,kk=s//2,s%2; st_,off=slot_set(c)
        a.e(f'ds_read_b128 {vr(V_XF+8*(s%2)+4*nb,4)}, v{V_XR+2*st_+kk} offset:{off+2048*nb}')
        return a.lgtok()
    for t in range(6): a.e(f'ds_read_b64 {vr(V_BRAW+2*t,2)}, v{T0+1} offset:{32*t}')
    a.e(f'ds_read_b64 {vr(V_BRAW+12,2)}, v{T0}')
    lg_b=a.lgtok()
    tw={}; tx={}
    for nb in range(2): tx[(0,nb)]=x_read1(0,nb)
    for t in range(3):
        for hh in range(2): tw[(0,t,hh)]=w_read1(0,t,hh)
    a.wait_lg(lg_b)
    for t in range(7):
        for d in range(2):
            raw=V_BRAW+2*t+d
            a.e(f'v_lshlrev_b32 v{V_BIAS+4*t+2*d}, 16, v{raw}')
            a.e(f'v_and_b32 v{V_BIAS+4*t+2*d+1}, 0xffff0000, v{raw}')
    for t in range(3,7):
        for hh in range(2): tw[(0,t,hh)]=w_read1(0,t,hh)
    for s in range(16):
        for t in range(7):
            need=max(tw[(s,t,1)],tx[(s,1)])
            n=a.lg-need
            if t%2==0 or t==1 or s==0 or True: a.e(f's_waitcnt lgkmcnt({min(n,15)})')
            for nb in range(2):
                acc=vr(V_ACC+28*nb+4*t,4)
                cc=acc if s>0 else vr(V_BIAS+4*t,4)
                a.e(f'v_mfma_f32_16x16x32_bf16 {acc}, {vr(V_WF+4*t,4)}, {vr(V_XF+8*(s%2)+4*nb,4)}, {cc}')
                if nb==0 and t==1 and s%2==1 and s<15:
                    if cfg.fine==2: stamp(a,cfg,32+2*(s//2))
                    if s==(7 if cfg.x.get('s1two',0) else 13): a.e('s_waitcnt vmcnt(0)')
                    a.e('s_barrier')
                    if cfg.fine==2: stamp(a,cfg,33+2*(s//2))
                ps,pt=(s+1,t-1) if t>=1 else (s,6)
                if (t>=1 and s<15) or (t==0 and 1<=s<=15 and (s,6,nb) not in tw):
                    tw[(ps,pt,nb)]=w_read1(ps,pt,nb)
                if t==2 and s<15: tx[(s+1,nb)]=x_read1(s+1,nb)
                if t==4 and nb==1 and s==cfg.x.get('rs_at',9): row_stores()
    a.e('s_barrier')
    stamp(a,cfg,4)
    V_E=V_WF; V_O=V_BIAS
    a.e(f's_mov_b32 s84, {fl(LOG2E)}'); a.e(f's_mov_b32 s85, {fl(LOG2E)}'); a.e(f's_mov_b32 s86, {fl(30.0)}')
    a.e(f'''s_mul_i32 s87, s7, 7
    s_add_u32 s87, s87, s48
    s_lshr_b32 s87, s87, 1
    s_lshl_b32 s87, s87, 12
    s_mul_i32 s88, s6, {2*RT_STRIDE}
    s_lshl_b32 s89, {wv}, 10
    s_add_u32 s88, s88, s89
    s_add_u32 s88, s88, {WS_ACT}
    s_add_u32 s88, s88, s87
    s_mov_b32 s89, {3*4096}
    s_cmp_eq_u32 s48, 0
    s_cselect_b32 s89, s89, {(-4096+512)&0xffffffff}
    s_add_u32 s89, s89, s88
    v_lshlrev_b32 v4, 3, v0''')
    G=4
    for nb in range(2):
        pairs=[(V_ACC+28*nb+4*t+2*d, V_O+14*nb+2*t+d) for t in range(7) for d in range(2)]
        for g0 in range(0,len(pairs),G):
            grp=pairs[g0:g0+G]
            Tq=lambda i: V_E+4*i
            for i,(h,o) in enumerate(grp): a.e(f'v_pk_mul_f32 {vr(Tq(i),2)}, {vr(h,2)}, s[84:85]')
            for i,(h,o) in enumerate(grp):
                a.e(f'v_min_f32 v{Tq(i)}, s86, v{Tq(i)}'); a.e(f'v_min_f32 v{Tq(i)+1}, s86, v{Tq(i)+1}')
            for i,(h,o) in enumerate(grp):
                a.e(f'v_exp_f32 v{Tq(i)}, v{Tq(i)}'); a.e(f'v_exp_f32 v{Tq(i)+1}, v{Tq(i)+1}')
            for i,(h,o) in enumerate(grp): a.e(f'v_pk_add_f32 {vr(Tq(i)+2,2)}, {vr(Tq(i),2)}, 2.0 op_sel_hi:[1,0]')
            for i,(h,o) in enumerate(grp): a.e(f'v_pk_mul_f32 {vr(Tq(i),2)}, {vr(Tq(i),2)}, {vr(Tq(i)+2,2)}')
            for i,(h,o) in enumerate(grp): a.e(f'v_pk_add_f32 {vr(Tq(i)+2,2)}, {vr(Tq(i),2)}, 2.0 op_sel_hi:[1,0]')
            for i,(h,o) in enumerate(grp):
                a.e(f'v_rcp_f32 v{Tq(i)+2}, v{Tq(i)+2}'); a.e(f'v_rcp_f32 v{Tq(i)+3}, v{Tq(i)+3}')
            for i,(h,o) in enumerate(grp): a.e(f'v_pk_mul_f32 {vr(Tq(i),2)}, {vr(Tq(i),2)}, {vr(Tq(i)+2,2)}')
            for i,(h,o) in enumerate(grp): a.e(f'v_pk_mul_f32 {vr(Tq(i),2)}, {vr(Tq(i),2)}, {vr(h,2)}')
            for i,(h,o) in enumerate(grp): a.e(f'v_cvt_pk_bf16_f32 v{o}, v{Tq(i)}, v{Tq(i)+1}')
            done=min(len(pairs),g0+G)
            if cfg.x.get('actil'):
                for pp in range(3):
                    if g0<4*(pp+1)<=done:
                        a.e(f'buffer_store_dwordx4 {vr(V_O+14*nb+4*pp,4)}, v{V_L16}, {srd(S_WS)}, s88 offen {cfg.f("stA")}')
                        a.e('s_add_u32 s88, s88, 4096')
                if done==14:
                    a.e(f'buffer_store_dwordx2 {vr(V_O+14*nb+12,2)}, v4, {srd(S_WS)}, s89 offen {cfg.f("stA")}')
        if nb==0 and cfg.x.get('actil'):
            a.e(f's_add_u32 s88, s88, {RT_STRIDE-3*4096}')
            a.e(f's_add_u32 s89, s89, {RT_STRIDE}')
    if not cfg.x.get('actil'):
        for nb in range(2):
            for pp in range(3):
                a.e(f'buffer_store_dwordx4 {vr(V_O+14*nb+4*pp,4)}, v{V_L16}, {srd(S_WS)}, s88 offen {cfg.f("stA")}')
                a.e('s_add_u32 s88, s88, 4096')
            a.e(f'buffer_store_dwordx2 {vr(V_O+14*nb+12,2)}, v4, {srd(S_WS)}, s89 offen {cfg.f("stA")}')
            if nb==0:
                a.e(f's_add_u32 s88, s88, {RT_STRIDE-3*4096}')
                a.e(f's_add_u32 s89, s89, {RT_STRIDE}')
    stamp(a,cfg,5)
    parts=p2_table_parts(a,cfg); npre=cfg.x.get('tabpre',4)
    for part in parts[:npre]: part()
    stamp(a,cfg,24)
    a.e('s_mov_b32 s93, 32'); poll_w0(a,S_DBG,'s93',1,0,1)
    a.e('s_waitcnt vmcnt(0)')
    a.e('s_barrier')
    stamp(a,cfg,7)
    p2_small_loads(a,cfg)
    tok_w=a.vmtok()
    for part in parts[npre:]: part()
    stamp(a,cfg,25)
    p2_compute(a,cfg,tok_w)
    tok_y=a.vmtok()
    stamp(a,cfg,8)
    m_g2_ids(a,cfg)
    T=5
    w2_dma_addr(a,V_W2D,T)
    a.e(f"""v_lshrrev_b32 v{T}, 2, v1
    v_lshl_add_u32 v{T+1}, v2, 2, v{T}
    v_lshlrev_b32 v{V_W2A}, 7, v{T+1}
    v_lshrrev_b32 v{T+1}, 1, v{T+1}
    v_and_b32 v{T+1}, 3, v{T+1}
    v_and_b32 v{T}, 3, v0
    v_lshl_add_u32 v{V_W2A}, v{T}, 3, v{V_W2A}
    v_add_u32 v{V_W2A}, s71, v{V_W2A}""")
    for c in (3,2,1,0):
        a.e(f'v_xor_b32 v{T}, {c}, v{T+1}')
        a.e(f'v_lshl_add_u32 v{V_W2A+c}, v{T}, 5, v{V_W2A}')
    stamp(a,cfg,9)
    a.e('s_waitcnt vmcnt(0)')
    a.e(f's_lshl_b32 s93, s72, 7'); a.e(f's_add_u32 s93, s93, {WS_CNT}')
    poll_w0(a,S_WS,'s93',1,0,16)
    a.e('s_barrier')
    stamp(a,cfg,10)
    m_gemm2(a,cfg,tok_y)
    stamp(a,cfg,13)
    stamps_flush(a,cfg)
    a.e(f's_branch {end}')
    p2_special(a,cfg)

def m_gemm2(a,cfg,tok_y):
    V_ACC=80; V_AF=144; D=8; V_G=72
    RB=lambda t: (8+16*(t%D)) if (t%D)<4 else (160+16*(t%D-4))
    toks={}; tokw={}
    def need(d,k):
        while k not in d: a.bg_pop()
    def a_read1(t,c,hh):
        a.e(f'ds_read_b64_tr_b16 {vr(V_AF+4*c+2*hh,2)}, v{V_W2A+c} offset:{(t%8)*4096+2048*hh}')
        return a.lgtok()
    def push_loads(t):
        b=RB(t)
        if t>=14:
            psi=t-14
            for u in range(4):
                a.bg_push([f's_add_u32 s79, s78, {(16*psi+u)*8192}',
                           f'buffer_load_dwordx4 {vr(b+4*u,4)}, v6, {srd(S_WS)}, s79 offen {cfg.f("ldY")}'],
                          (lambda t=t: toks.__setitem__(t,a.vmtok())) if u==3 else None)
            return
        sc=cfg.f('ldA')
        for q in range(4):
            if t in(3,10):
                l=[f'buffer_load_dwordx2 {vr(b+4*q,2)}, v4, {srd(S_WS)}, s69 offen offset:{1024*q} {sc}',
                   f'buffer_load_dwordx2 {vr(b+4*q+2,2)}, v4, {srd(S_WS)}, s69 offen offset:{1024*q+512} {sc}']
            else:
                l=[f'buffer_load_dwordx4 {vr(b+4*q,4)}, v{V_L16}, {srd(S_WS)}, s69 offen offset:{1024*q} {sc}']
            if q==3: l.append('s_add_u32 s69, s69, 4096')
            a.bg_push(l,(lambda t=t: toks.__setitem__(t,a.vmtok())) if q==3 else None)
    def push_w2(t):
        for v in range(4):
            a.bg_push(w2_group(t,v,V_W2D),(lambda t=t: tokw.__setitem__(t,a.vmtok())) if v==3 else None)
    a.e('v_lshlrev_b32 v4, 3, v0')
    npre=cfg.x.get('npre',4)
    for t in range(npre): push_loads(t)
    a.bg_flush()
    nxt=npre
    a.e(f"""v_lshlrev_b32 v5, 4, v1
    v_lshlrev_b32 v6, 15, v2
    v_add_u32 v6, v6, v5
    v_add_u32 v7, s71, v{V_L16}
    s_lshl_b32 s78, {wv}, 19
    s_add_u32 s78, s78, s74
    s_add_u32 s78, s78, {WS_Y}""")
    ta={}
    for c in range(4):
        for hh in range(2): ta[(0,c,hh)]=a_read1(0,c,hh)
    a.bg_set(cfg.x.get('g2r',2),mfma_weight=2)
    TS3=cfg.x.get('ts3',10)
    for t in range(18):
        if cfg.fine==1: stamp(a,cfg,32+t)
        need(toks,t); a.wait_vm(toks[t])
        if t+1 in range(8,14):
            need(tokw,t+1); a.wait_vm(tokw[t+1])
        k_=0
        while nxt<14 and nxt-D<t and k_<2 and t<14:
            if nxt-D==t-0 and False: break
            if nxt-D>=t: break
            push_loads(nxt); nxt+=1; k_+=1
        if 1<=t and t-1+8<14: push_w2(t-1+8)
        if t==TS3+1: push_loads(14); push_loads(15)
        if t==TS3+2: push_loads(16); push_loads(17)
        b=RB(t)
        if t==14:
            a.need_vm(tok_g)
            for q in range(4): a.e(f'v_sub_f32 v{V_G+q}, 1.0, v{V_G+q}')
            for q in range(4):
                for h in range(8):
                    a.e(f'v_pk_mul_f32 {vr(V_ACC+16*q+2*h,2)}, {vr(V_ACC+16*q+2*h,2)}, {vr(V_G+(q&~1),2)} op_sel:[0,{q&1}] op_sel_hi:[1,{q&1}]')
            stamp(a,cfg,11)
        if t>=14:
            tg=[]
            for c in range(4):
                a.e(f'ds_read_b128 {vr(V_AF+4*c,4)}, v7 offset:{GSLOT[t-14]*4096+c*1024}'); tg.append(a.lgtok())
            for (i,j) in[(0,1),(0,2),(0,3),(1,2),(1,3),(2,3)]:
                a.e(f'v_swap_b32 v{b+4*i+j}, v{b+4*j+i}')
        for c in range(4):
            if t<14:
                n=a.lg-ta[(t,c,1)]
                a.e(f's_waitcnt lgkmcnt({min(n,15)})')
            else:
                a.e(f's_waitcnt lgkmcnt({min(a.lg-tg[c],15)})')
            A=vr(V_AF+4*c,4)
            for q in range(4):
                d=vr(V_ACC+16*q+4*c,4)
                r=a.bg_rate
                if q<2 and t<14: a.bg_rate=0
                a.e(f'v_mfma_f32_16x16x32_bf16 {d}, {A}, {vr(b+4*q,4)}, {d if t else 0}')
                if q<2 and t<14:
                    if c>=1 and t<13: ta[(t+1,c-1,q)]=a_read1(t+1,c-1,q)
                    if c==0 and t>=1: ta[(t,3,q)]=a_read1(t,3,q)
                a.bg_rate=r
        if t==TS3:
            a.bg_flush()
            a.e(f's_mov_b32 s93, {WS_CNT+16*128}')
            poll_w0(a,S_WS,'s93',NS3,128,256//NS3)
            a.e('s_barrier')
            a.e(f's_add_u32 s75, s74, {WS_G}')
            a.e(f'buffer_load_dwordx4 {vr(V_G,4)}, v5, {srd(S_WS)}, s75 offen {cfg.f("ldW")}')
            tok_g=a.vmtok()
        if t==13: a.e('s_barrier')
    a.bg_flush(); a.bg_set(0)
    stamp(a,cfg,12)
    a.e(f'v_add_u32 v7, s71, v{V_L16}')
    for w in range(4):
        a.e(f's_cmp_lg_u32 {wv}, {w}')
        a.e(f's_cbranch_scc1 L_k3_w{w}')
        a.cond_begin()
        slot=0
        for q in range(4):
            if q==w: continue
            for c in range(4):
                a.e(f'ds_write_b128 v7, {vr(V_ACC+16*q+4*c,4)} offset:{slot*4096+c*1024}')
            slot+=1
        if w!=0:
            for h in range(8): a.e(f'v_pk_mov_b32 {vr(V_ACC+2*h,2)}, {vr(V_ACC+16*w+2*h,2)}, {vr(V_ACC+16*w+2*h,2)} op_sel:[0,1]')
        a.cond_end()
        a.e(f'L_k3_w{w}:')
    a.e('s_waitcnt lgkmcnt(0)'); a.e('s_barrier')
    V_RD=160
    for k in range(1,4):
        a.e(f"""s_add_u32 s76, {wv}, {k}
        s_and_b32 s76, s76, 3
        s_lshl_b32 s77, s76, 15
        s_cmp_lt_u32 {wv}, s76
        s_cselect_b32 s79, 0, 1
        s_sub_u32 s79, {wv}, s79
        s_lshl_b32 s79, s79, 12
        s_add_u32 s77, s77, s79
        v_add_u32 v7, s77, v{V_L16}""")
        for c in range(4): a.e(f'ds_read_b128 {vr(V_RD+16*(k-1)+4*c,4)}, v7 offset:{c*1024}')
    a.e(f"""v_lshlrev_b32 v5, 10, v1
    v_lshl_add_u32 v5, v2, 3, v5
    s_lshl_b32 s76, s72, 17
    s_lshl_b32 s77, {wv}, 15
    s_add_u32 s76, s76, s77
    s_lshl_b32 s77, s73, 14
    s_add_u32 s76, s76, s77
    s_lshl_b32 s77, s68, 7
    s_add_u32 s76, s76, s77""")
    for k in range(3):
        a.e(f's_waitcnt lgkmcnt({8-4*k})')
        for h in range(8): a.e(f'v_pk_add_f32 {vr(V_ACC+2*h,2)}, {vr(V_ACC+2*h,2)}, {vr(V_RD+16*k+2*h,2)}')
    V_O=8
    for c in range(4):
        a.e(f'v_cvt_pk_bf16_f32 v{V_O+2*c}, v{V_ACC+4*c}, v{V_ACC+4*c+1}')
        a.e(f'v_cvt_pk_bf16_f32 v{V_O+2*c+1}, v{V_ACC+4*c+2}, v{V_ACC+4*c+3}')
        a.e(f'buffer_store_dwordx2 {vr(V_O+2*c,2)}, v5, {srd(S_OUT)}, s76 offen offset:{32*c}')

P2=dict(V_U=8,V_W=40,V_GT=48,V_Q=56,T0=64,V_F64R=80,V_F64I=96,V_F32R=112,V_F32I=128,V_T1C=144,V_T1S=152,V_T3C=160,V_T3S=168,V_DR=176,V_DI=184,V_B=192)
V_FW2D=246
def f_stream(a,cfg,end):
    a.e('L_F:')
    a.e('s_mov_b32 s90, 1')
    if cfg.x.get('fprio'): a.e(f's_setprio {cfg.x["fprio"]}')
    a.e(f'''s_lshr_b32 s49, s2, 5
    s_and_b32 s50, s2, 31
    s_lshl_b32 s51, s6, 17
    s_lshl_b32 s56, {wv}, 13
    s_add_u32 s51, s51, s56
    s_mul_i32 s52, s7, 224
    s_mul_i32 s56, {wv}, 14336
    s_add_u32 s52, s52, s56
    s_lshl_b32 s53, {wv}, 10
    s_mul_i32 s54, {wv}, 960
    s_add_u32 s54, s54, 16384''')
    T=6; V_XD=4; V_WD=5
    a.e(f'''v_lshrrev_b32 v{T}, 3, v0
    v_lshlrev_b32 v{V_XD}, 10, v{T}
    v_lshrrev_b32 v{T}, 1, v{T}
    s_and_b32 s56, {wv}, 1
    s_lshl_b32 s56, s56, 2
    v_add_u32 v{T}, s56, v{T}
    v_and_b32 v{T+1}, 7, v0
    v_xor_b32 v{T}, v{T}, v{T+1}
    v_lshl_add_u32 v{V_XD}, v{T}, 4, v{V_XD}
    v_mul_u32_u24 v{T}, 4682, v0
    v_lshrrev_b32 v{T}, 16, v{T}
    v_mul_u32_u24 v{V_WD}, 3584, v{T}
    v_mul_u32_u24 v{T}, 14, v{T}
    v_sub_u32 v{T}, v0, v{T}
    v_lshl_add_u32 v{V_WD}, v{T}, 4, v{V_WD}
    v_mov_b32 v{V_LC}, {LC_BASE}''')
    a.e(f'''s_lshl_b32 s56, s49, 18
    s_lshl_b32 s57, s50, 10
    s_add_u32 s56, s56, s57
    s_lshl_b32 s57, {wv}, 16
    s_add_u32 s56, s56, s57
    s_add_u32 s58, s56, 32768
    s_mul_i32 s57, {wv}, {2*XA_PITCH}
    s_add_u32 s57, s57, {XA_BASE}''')
    a.e('s_waitcnt lgkmcnt(0)')
    stamp(a,cfg,26)
    a.e(f's_cmp_lg_u32 {wv}, 0'); a.e('s_cbranch_scc1 L_a_r0'); a.cond_begin()
    a.e(f's_mov_b32 m0, {GW_LDS}'); a.e('s_nop 0')
    a.e(f'buffer_load_dwordx4 v{V_L16}, {srd(S_GW)}, 0 offen lds')
    a.cond_end(); a.e('L_a_r0:')
    a.e(f's_cmp_lg_u32 {wv}, 1'); a.e('s_cbranch_scc1 L_a_r1'); a.cond_begin()
    a.e(f's_mul_i32 s64, s7, 224'); a.e(f's_mov_b32 m0, {B1_LDS}'); a.e('s_mov_b64 exec, 0x3fff')
    a.e(f'buffer_load_dwordx4 v{V_L16}, {srd(S_B1)}, s64 offen lds')
    a.e('s_mov_b64 exec, -1')
    a.cond_end(); a.e('L_a_r1:')
    tok_c={}
    def chunk_groups(c):
        gs=[]
        for u in range(4):
            gs.append(([f's_add_u32 m0, s53, {SB(c)+u*4096}', f's_add_u32 s55, s51, {u*32768+c*128}',
                        f'buffer_load_dwordx4 v{V_XD}, {srd(S_X)}, s55 offen lds'],None))
        for u in range(4):
            cb=(lambda c=c: tok_c.__setitem__(c,a.vmtok())) if u==3 else None
            gs.append(([f's_add_u32 m0, s54, {SB(c)+u*3840}', f's_add_u32 s55, s52, {u*57344+c*229376}',
                        's_mov_b32 exec_hi, 0x00ffffff',
                        f'buffer_load_dwordx4 v{V_WD}, {srd(S_W1)}, s55 offen lds',
                        's_mov_b32 exec_hi, -1'],cb))
        return gs
    def push_chunk(c):
        for g_ in chunk_groups(c): a.bg_push(*g_)
    def wait_role(tok,e3,e2):
        n=a.vm-tok; lab=f'L_wr{len(a.items)}'
        a.e(f's_cmp_eq_u32 {wv}, 3'); a.e(f's_cbranch_scc1 {lab}_3')
        a.e('s_cmp_eq_u32 s66, 0'); a.e(f's_cbranch_scc1 {lab}_2')
        a.e(f's_waitcnt vmcnt({n})'); a.e(f's_branch {lab}_e')
        a.e(f'{lab}_3:'); a.e(f's_waitcnt vmcnt({min(n+e3,62)})'); a.e(f's_branch {lab}_e')
        a.e(f'{lab}_2:'); a.e(f's_waitcnt vmcnt({min(n+e2,62)})')
        a.e(f'{lab}_e:')
    def chunk_now(c):
        if cfg.fine==3: stamp(a,cfg,48+2*c%16 if False else 40+c)
        push_chunk(c); a.bg_flush()
        if cfg.fine==3: stamp(a,cfg,50+c)
    a.e(f'''s_mov_b32 m0, s57
    s_add_u32 s57, s57, {XA_PITCH}
    buffer_load_dwordx4 v{V_L16}, {srd(S_X)}, s56 offen lds
    s_mov_b32 m0, s57
    s_nop 0
    buffer_load_dwordx4 v{V_L16}, {srd(S_X)}, s58 offen lds''')
    tok_xa=a.vmtok()
    chunk_now(0)
    if cfg.x.get('c1pre',1): chunk_now(1)
    if cfg.x.get('fprio'): a.e('s_setprio 0')
    stamp(a,cfg,0)
    a.wait_vm(tok_xa); a.e('s_barrier')
    stamp(a,cfg,1)
    if not cfg.x.get('c1pre',1): chunk_now(1)
    chunk_now(2)
    T0=92; V_B1S=68
    a.wait_vm(tok_c[0]); a.e('s_barrier')
    if cfg.fine==3: stamp(a,cfg,27)
    chunk_now(3)
    a.wait_vm(tok_c[1]); a.e('s_barrier')
    if cfg.fine==3: stamp(a,cfg,29)
    chunk_now(4)
    a.wait_vm(tok_c[2]); a.e('s_barrier')
    if cfg.fine==3: stamp(a,cfg,30)
    chunk_now(5)
    a.e('''s_lshr_b32 s59, s50, 3
    s_lshr_b32 s60, s50, 2
    s_and_b32 s60, s60, 1
    s_and_b32 s61, s50, 3
    s_lshl_b32 s62, s59, 4
    s_lshl_b32 s63, s60, 10
    s_add_u32 s62, s62, s63
    s_lshl_b32 s63, s61, 8
    s_add_u32 s62, s62, s63
    s_lshl_b32 s63, s59, 11
    s_lshl_b32 s64, s60, 10
    s_add_u32 s63, s63, s64
    s_lshl_b32 s64, s61, 8
    s_add_u32 s63, s63, s64''')
    V_WR=8; V_WI=24; V_WO=7
    a.e(f's_cmp_lg_u32 {wv}, {9 if cfg.x.get("x_norole") else 3}'); a.e('s_cbranch_scc1 L_a_r3'); a.cond_begin()
    a.e(f'''v_lshrrev_b32 v{V_WO}, 2, v0
    v_mul_u32_u24 v{V_WO}, 514, v{V_WO}
    v_and_b32 v{T}, 3, v0
    v_lshl_add_u32 v{V_WO}, v{T}, 4, v{V_WO}
    s_mul_i32 s64, s62, 514
    s_lshl_b32 s65, s49, 6
    s_add_u32 s64, s64, s65''')
    for r in range(4):
        a.e(f'buffer_load_dwordx4 {vr(V_WR+4*r,4)}, v{V_WO}, {srd(S_WR)}, s64 offen')
        a.e(f'buffer_load_dwordx4 {vr(V_WI+4*r,4)}, v{V_WO}, {srd(S_WI)}, s64 offen')
        if r<3: a.e(f's_add_u32 s64, s64, {64*514}')
    a.cond_end(); a.e('L_a_r3:')
    V_SP=40; V_J=48; V_JR=49
    a.e(f'''s_lshl_b32 s65, s49, 2
    s_xor_b32 s66, {wv}, 2
    s_or_b32 s66, s66, s65''')
    a.e('s_cmp_lg_u32 s66, 0'); a.e('s_cbranch_scc1 L_a_r2'); a.cond_begin()
    a.e(f'''v_lshlrev_b32 v{V_J}, 6, v2
    v_add_u32 v{V_J}, v{V_J}, v1
    v_add_u32 v{V_J}, s62, v{V_J}
    v_sub_u32 v{V_JR}, 2048, v{V_J}
    v_and_b32 v{V_JR}, 2047, v{V_JR}
    v_mul_u32_u24 v{V_J}, 514, v{V_J}
    v_mul_u32_u24 v{V_JR}, 514, v{V_JR}''')
    for n,(S,vv,off) in enumerate([(S_WR,V_J,0),(S_WR,V_J,512),(S_WR,V_JR,0),(S_WR,V_JR,512),(S_WI,V_J,0),(S_WI,V_J,512),(S_WI,V_JR,0),(S_WI,V_JR,512)]):
        a.e(f'buffer_load_ushort v{V_SP+n}, v{vv}, {srd(S)}, 0 offen offset:{off}')
    a.cond_end(); a.e('L_a_r2:')
    tok_role=a.vmtok()
    wait_role(tok_c[3],8,8); a.e('s_barrier')
    if cfg.fine==3: stamp(a,cfg,31)
    chunk_now(6)
    wait_role(tok_c[4],8,8); a.e('s_barrier')
    two=cfg.x.get('s1two',0)
    if two:
        a.e('s_and_b32 s92, s5, 3'); a.e('s_lshl_b32 s92, s92, 6')
        ssignal(a,S_DBG,'s92')
    if cfg.fine==3: stamp(a,cfg,32)
    chunk_now(7)
    a.e(f's_cmp_lg_u32 {wv}, {9 if cfg.x.get("x_norole") else 3}'); a.e('s_cbranch_scc1 L_a_w3')
    a.wait_vm(tok_role); a.cond_begin()
    V_WP=188
    a.e('s_mov_b32 s78, 0x05040100'); a.e('s_mov_b32 s79, 0x07060302')
    for kk in range(8):
        for r in range(4):
            a.e(f'v_perm_b32 v{V_WP+4*kk+r}, v{V_WI+4*r+(kk>>1)}, v{V_WR+4*r+(kk>>1)}, s{78+(kk&1)}')
    a.e(f'''v_and_b32 v{T0+4}, 3, v0
    v_lshlrev_b32 v{T0+5}, 16, v{T0+4}
    v_lshrrev_b32 v{T0+6}, 2, v0
    v_lshl_add_u32 v{T0+5}, v{T0+6}, 4, v{T0+5}
    s_lshl_b32 s76, s49, 2
    v_add_u32 v{T0+4}, s76, v{T0+4}
    v_cmp_eq_u32 vcc, 0, v{T0+4}
    v_mov_b32 v{T0+6}, {OOB}
    v_cndmask_b32 v{T0+6}, v{T0+5}, v{T0+6}, vcc
    s_lshl_b32 s76, s49, 18
    s_add_u32 s76, s76, s63
    s_add_u32 s76, s76, {WS_WT}''')
    for kk in range(8):
        a.e(f'buffer_store_dwordx4 {vr(V_WP+4*kk,4)}, v{T0+6 if kk==0 else T0+5}, {srd(S_WS)}, s76 offen {cfg.f("stW")}')
        if kk<7: a.e('s_add_u32 s76, s76, 8192')
    a.cond_end(); a.e('L_a_w3:')
    a.e('s_cmp_lg_u32 s66, 0'); a.e('s_cbranch_scc1 L_a_w2')
    a.wait_vm(tok_role); a.cond_begin()
    for n in range(8): a.e(f'v_lshlrev_b32 v{V_SP+n}, 16, v{V_SP+n}')
    s=V_SP; t=V_B1S
    a.e(f'''v_add_f32 v{t}, v{s}, v{s+2}
    v_add_f32 v{t+1}, v{s+1}, v{s+3}
    v_sub_f32 v{t+2}, v{s+4}, v{s+6}
    v_sub_f32 v{t+3}, v{s+5}, v{s+7}
    v_add_f32 v{t+4}, v{t}, v{t+1}
    v_add_f32 v{t+5}, v{t+2}, v{t+3}
    v_sub_f32 v{t+6}, v{t}, v{t+1}
    v_sub_f32 v{t+7}, v{t+2}, v{t+3}
    v_mul_f32 v{t+4}, {fl(0.25)}, v{t+4}
    v_mul_f32 v{t+5}, {fl(0.25)}, v{t+5}
    v_mul_f32 v{t+6}, {fl(0.25)}, v{t+6}
    v_mul_f32 v{t+7}, {fl(0.25)}, v{t+7}
    v_cvt_pk_bf16_f32 v{t}, v{t+4}, v{t+5}
    v_cvt_pk_bf16_f32 v{t+1}, v{t+6}, v{t+7}
    v_lshlrev_b32 v{t+2}, 4, v1
    v_lshl_add_u32 v{t+2}, v2, 2, v{t+2}
    s_add_u32 s77, s63, {WS_QT}
    s_add_u32 s76, s63, {WS_WT}
    buffer_store_dword v{t}, v{t+2}, {srd(S_WS)}, s76 offen {cfg.f("stW")}
    buffer_store_dword v{t+1}, v{t+2}, {srd(S_WS)}, s77 offen {cfg.f("stW")}''')
    a.cond_end(); a.e('L_a_w2:')
    a.wait_vm(tok_c[5]) if False else None
    a.e(f's_waitcnt vmcnt({cfg.x.get("b5n",18)})') if False else None
    wait_role(tok_c[5],16,10); a.e('s_barrier')
    if cfg.fine==3: stamp(a,cfg,33)
    m_g2_ids(a,cfg)
    w2_dma_addr(a,V_FW2D,244)
    wait_role(tok_c[6],8,2); a.e('s_barrier')
    if cfg.fine==3: stamp(a,cfg,34)
    if two:
        wait_role(tok_c[7],8,2); a.e('s_barrier')
    else:
        a.e('s_waitcnt vmcnt(0)'); a.e('s_barrier')
        a.e('s_and_b32 s92, s5, 3'); a.e('s_lshl_b32 s92, s92, 6')
        ssignal(a,S_DBG,'s92')
    if cfg.fine==3: stamp(a,cfg,35)
    a.e('s_barrier')
    if two:
        a.e(f's_cmp_eq_u32 {wv}, 3'); a.e('s_cbranch_scc1 L_f_s1b')
        a.e('s_cmp_lg_u32 s66, 0'); a.e('s_cbranch_scc1 L_f_nos1b')
        a.e('L_f_s1b:')
        a.cond_begin()
        a.e(f"""s_waitcnt vmcnt(0)
        s_and_b32 s92, s5, 3
        s_lshl_b32 s92, s92, 6
        s_add_u32 s92, s92, 4
        v_mov_b32 v{V_SIG}, 1
        v_mov_b32 v{V_SIG+1}, 0
        s_mov_b64 exec, 1
        buffer_atomic_add v{V_SIG}, v{V_SIG+1}, {srd(S_DBG)}, s92 offen sc1
        s_mov_b64 exec, -1""")
        a.cond_end(); a.e('L_f_nos1b:')
    stamp(a,cfg,4)
    def w2slots(lo,hi):
        for t in range(lo,hi):
            for v in range(4): a.bg_push(w2_group(t,v,V_FW2D))
        a.bg_flush()
    w2slots(0,cfg.x.get('w2pre',4))
    stamp(a,cfg,5)
    a.e(f's_cmp_lg_u32 {wv}, 0'); a.e('s_cbranch_scc1 L_f_s1'); a.cond_begin()
    if cfg.x.get('s1drain',1): a.e('s_waitcnt vmcnt(0)')
    a.e('s_mov_b32 s93, 0')
    spin_global(a,S_DBG,'s93',4,64,64)
    p2_t_loads(a,cfg)
    if two:
        a.e('s_mov_b32 s93, 4')
        spin_global(a,S_DBG,'s93',4,64,72)
    a.cond_end(); a.e('L_f_s1:')
    stamp(a,cfg,6)
    a.e('s_waitcnt vmcnt(0)'); a.e('s_barrier')
    a.e(f's_lshl_b32 s92, s6, 7'); a.e(f's_add_u32 s92, s92, {WS_CNT}')
    ssignal(a,S_WS,'s92')
    stamp(a,cfg,7)
    w2slots(cfg.x.get('w2pre',4),8)
    a.e('s_waitcnt vmcnt(0)'); a.e('s_barrier')
    a.e('s_lshl_b32 s56, s4, 5'); a.e('s_add_u32 s56, s56, s5')
    a.e('s_cmp_lg_u32 s56, 0'); a.e('s_cbranch_scc1 L_f_nospec'); a.cond_begin()
    a.e('s_barrier')
    a.cond_end(); a.e('L_f_nospec:')
    a.e('s_barrier')
    a.e(f's_and_b32 s92, s2, {NS3-1}'); a.e('s_lshl_b32 s92, s92, 7'); a.e(f's_add_u32 s92, s92, {WS_CNT+16*128}')
    ssignal(a,S_WS,'s92')
    T0=80; TA=92
    a.e(f"""s_lshl_b32 s75, s68, 6
    v_add_u32 v{T0}, s75, v1
    v_cvt_f32_u32 v{T0}, v{T0}
    s_lshl_b32 s75, {wv}, 6
    v_lshlrev_b32 v{T0+1}, 2, v2
    v_add_u32 v{T0+1}, s75, v{T0+1}
    v_cvt_f32_u32 v{T0+1}, v{T0+1}""")
    for c in range(4):
        a.e(f'v_add_f32 v{T0+2+c}, {fl(16*c)}, v{T0}' if c else f'v_mov_b32 v{T0+2}, v{T0}')
        a.e(f'v_mul_f32 v{T0+2+c}, {fl(1/512)}, v{T0+2+c}')
        a.e(f'v_mul_f32 v{T0+6+c}, v{T0+1}, v{T0+2+c}')
    def pk(d): return lambda c,s: a.e(f'v_cvt_pk_bf16_f32 v{d}, v{c}, v{s}')
    angles(a,[(T0+2+c,T0+6+c,16*psi+u,(None,None,pk(V_GF+16*psi+4*c+u)),False) for (psi,c,u) in G_ITEMS],TA)
    a.e(f"""s_cmp_eq_u32 {wv}, 0
    s_cselect_b32 s76, 0xffff, 0
    s_mov_b32 s77, 0
    v_mov_b32 v{T0}, {hex(0xBF003F00)}
    v_and_b32 v{T0+1}, 1, v1
    v_lshlrev_b32 v{T0+1}, 31, v{T0+1}
    v_xor_b32 v{T0}, v{T0}, v{T0+1}""")
    for c in range(4): a.e(f'v_cndmask_b32 v{V_GF+4*c}, v{V_GF+4*c}, v{T0}, s[76:77]')
    a.e(f'v_add_u32 v7, s71, v{V_L16}')
    a.e('s_barrier')
    for psi in range(4):
        for c in range(4):
            a.e(f'ds_write_b128 v7, {vr(V_GF+16*psi+4*c,4)} offset:{GSLOT[psi]*4096+c*1024}')
    a.e('s_waitcnt lgkmcnt(0)'); a.e('s_barrier')
    stamps_flush(a,cfg)
    a.e(f's_branch {end}')

def p2_t_loads(a,cfg):
    T0=64
    a.e(f'''s_lshl_b32 s56, s4, 5
    s_add_u32 s56, s56, s5
    v_lshrrev_b32 v{T0}, 5, v0
    v_lshlrev_b32 v{T0}, 18, v{T0}
    v_bfe_u32 v{T0+1}, v0, 1, 4
    v_lshl_add_u32 v{T0}, v{T0+1}, 13, v{T0}
    v_and_b32 v{T0+1}, 1, v0
    v_lshl_add_u32 v{T0}, v{T0+1}, 4, v{T0}
    s_lshl_b32 s57, s56, 5
    s_add_u32 s57, s57, {WS_T}''')
    for ks in range(4):
        for mb in range(2):
            a.e(f's_mov_b32 m0, {TB_BASE+2048*ks+1024*mb}')
            a.e(f's_add_u32 s58, s57, {ks*524288+mb*131072}')
            a.e(f'buffer_load_dwordx4 v{T0}, {srd(S_WS)}, s58 offen {cfg.f("ldT")} lds')

def p2_small_loads(a,cfg):
    V_W,V_GT,V_Q,T0=P2['V_W'],P2['V_GT'],P2['V_Q'],P2['T0']
    a.e(f'''s_lshl_b32 s56, s4, 5
    s_add_u32 s56, s56, s5
    s_lshl_b32 s60, s56, 13
    s_lshl_b32 s61, {wv}, 11
    s_add_u32 s60, s60, s61
    s_add_u32 s62, s60, {WS_WT}
    s_add_u32 s63, s61, {WS_G}
    s_add_u32 s64, s61, {WS_QT}''')
    for eh in range(2): a.e(f'buffer_load_dwordx4 {vr(V_W+4*eh,4)}, v{V_L16}, {srd(S_WS)}, s62 offen offset:{1024*eh} {cfg.f("ldW")}')
    for nb in range(2): a.e(f'buffer_load_dwordx4 {vr(V_GT+4*nb,4)}, v{V_L16}, {srd(S_WS)}, s63 offen offset:{1024*nb} {cfg.f("ldW")}')
    a.e(f'''s_cmp_eq_u32 s56, 0
    s_cselect_b32 s65, 0, {OOB}
    v_add_u32 v{T0+2}, s65, v{V_L16}''')
    for eh in range(2): a.e(f'buffer_load_dwordx4 {vr(V_Q+4*eh,4)}, v{T0+2}, {srd(S_WS)}, s64 offen offset:{1024*eh} {cfg.f("ldW")}')

def p2_table_parts(a,cfg):
    p=P2; T0=232; TA=200
    def pk(dr,di):
        def f(c,s):
            a.e(f'v_cvt_pk_bf16_f32 v{dr}, v{c}, v{s}')
            a.e(f'v_cvt_pk_bf16_f32 v{di}, -v{s}, v{c}')
        return f
    def part0():
        a.e(f'''s_lshl_b32 s83, {wv}, 4
        v_add_u32 v{T0}, s83, v1
        v_cvt_f32_u32 v{T0}, v{T0}
        v_lshlrev_b32 v{T0+2}, 2, v2
        v_cvt_f32_u32 v{T0+2}, v{T0+2}
        v_mul_f32 v{T0+1}, {fl(1/64)}, v{T0}
        v_mul_f32 v{T0+3}, v{T0+2}, v{T0+1}''')
        angles(a,[(T0+1,T0+3,16*ks+u,(None,None,pk(p['V_F64R']+4*ks+u,p['V_F64I']+4*ks+u)),False) for ks in range(3) for u in range(4)],TA)
    def part1():
        angles(a,[(T0+1,T0+3,16*ks+u,(None,None,pk(p['V_F64R']+4*ks+u,p['V_F64I']+4*ks+u)),False) for ks in range(3,4) for u in range(4)],TA)
        a.e(f'''v_mul_f32 v{T0+1}, {fl(1/2048)}, v{T0}
        v_mul_f32 v{T0+3}, v{T0+2}, v{T0+1}''')
        angles(a,[(T0+1,T0+3,16*mb+r,(p['V_T1C']+4*mb+r,p['V_T1S']+4*mb+r,None),True) for mb in range(2) for r in range(4)],TA)
    def part2():
        a.e(f'v_cvt_f32_u32 v{T0+7}, v1')
        for eh in range(2):
            a.e(f'''v_add_f32 v{T0+1}, {fl(16*eh)}, v{T0+7}
            v_mul_f32 v{T0+1}, {fl(1/32)}, v{T0+1}
            v_mul_f32 v{T0+3}, v{T0+2}, v{T0+1}''')
            angles(a,[(T0+1,T0+3,16*mb+u,(None,None,pk(p['V_F32R']+8*eh+4*mb+u,p['V_F32I']+8*eh+4*mb+u)),False) for mb in range(2) for u in range(4)],TA)
    def part3():
        a.e(f'''v_cvt_f32_u32 v{T0}, s83
        v_add_f32 v{T0+2}, v{T0}, v{T0+2}''')
        for nb in range(2):
            a.e(f'''v_add_f32 v{T0+1}, {fl(16*nb)}, v{T0+7}
            v_mul_f32 v{T0+1}, {fl(1/2048)}, v{T0+1}
            v_mul_f32 v{T0+3}, v{T0+2}, v{T0+1}''')
            angles(a,[(T0+1,T0+3,r,(p['V_T3C']+4*nb+r,p['V_T3S']+4*nb+r,None),True) for r in range(4)],TA)
    return [part0,part1,part2,part3]

def p2_compute(a,cfg,tok_w):
    p=P2
    V_U,V_W,V_GT,T0=p['V_U'],p['V_W'],p['V_GT'],p['T0']
    V_F64R,V_F64I,V_F32R,V_F32I=p['V_F64R'],p['V_F64I'],p['V_F32R'],p['V_F32I']
    V_T1C,V_T1S,V_T3C,V_T3S=p['V_T1C'],p['V_T1S'],p['V_T3C'],p['V_T3S']
    V_DR,V_DI,V_B=p['V_DR'],p['V_DI'],p['V_B']; TT=200
    a.e(f'''v_lshrrev_b32 v{T0+4}, 1, v2
    v_lshlrev_b32 v{T0+4}, 5, v{T0+4}
    v_lshl_add_u32 v{T0+4}, v1, 1, v{T0+4}
    v_and_b32 v{T0+5}, 1, v2
    v_add_u32 v{T0+4}, v{T0+4}, v{T0+5}
    v_lshlrev_b32 v{T0+4}, 4, v{T0+4}
    v_add_u32 v{T0+4}, {TB_BASE}, v{T0+4}''')
    for ks in range(4):
        for mb in range(2):
            a.e(f'ds_read_b128 {vr(V_U+16*mb+4*ks,4)}, v{T0+4} offset:{2048*ks+1024*mb}')
    V_WR=216; V_WI=224
    a.wait_vm(tok_w)
    for e in range(8):
        a.e(f'v_lshlrev_b32 v{V_WR+e}, 16, v{V_W+e}')
        a.e(f'v_and_b32 v{V_WI+e}, 0xffff0000, v{V_W+e}')
    for ks in range(4):
        a.e(f's_waitcnt lgkmcnt({6-2*ks})')
        for mb in range(2):
            A=vr(V_U+16*mb+4*ks,4)
            for (D,Fm) in((V_DR,V_F64R),(V_DI,V_F64I)):
                d=vr(D+4*mb,4)
                a.e(f'v_mfma_f32_16x16x32_bf16 {d}, {A}, {vr(Fm+4*ks,4)}, {d if ks else 0}')
    for e in range(8): a.e(f'v_mul_f32 v{V_GT+e}, {fl(2.0**-19)}, v{V_GT+e}')
    for mb in range(2): cmul_pack(a,V_DR+4*mb,V_DI+4*mb,V_T1C+4*mb,V_T1S+4*mb,V_B+4*mb,TT)
    for mb in range(2):
        for eh in range(2):
            for (D,Fm) in((V_DR,V_F32R),(V_DI,V_F32I)):
                d=vr(D+4*eh,4)
                a.e(f'v_mfma_f32_16x16x32_bf16 {d}, {vr(Fm+8*eh+4*mb,4)}, {vr(V_B+4*mb,4)}, {d if mb else 0}')
    a.e(f'''s_lshl_b32 s65, {wv}, 11
    s_add_u32 s65, s65, {XB_BASE}
    v_add_u32 v{T0+4}, s65, v{V_L16}
    v_add_u32 v{T0+5}, {XB_BASE}, v{V_L16}''')
    a.e('s_cmp_lg_u32 s56, 0')
    a.e('s_cbranch_scc0 L_p2_special')
    for eh in range(2): cmul_pack(a,V_DR+4*eh,V_DI+4*eh,V_WR+4*eh,V_WI+4*eh,V_B+4*eh,TT,negim=True)
    a.e('L_p2_join:')
    for ks in range(2):
        for nb in range(2):
            for (D,Fm) in((V_DR,V_F32R),(V_DI,V_F32I)):
                d=vr(D+4*nb,4)
                a.e(f'v_mfma_f32_16x16x32_bf16 {d}, {vr(V_B+4*ks,4)}, {vr(Fm+8*nb+4*ks,4)}, {d if ks else 0}')
    for nb in range(2):
        cmul_pack(a,V_DR+4*nb,V_DI+4*nb,V_T3C+4*nb,V_T3S+4*nb,V_B+4*nb,TT)
        a.e(f'ds_write_b128 v{T0+4}, {vr(V_B+4*nb,4)} offset:{1024*nb}')
    a.e('s_waitcnt lgkmcnt(0)')
    a.e('s_barrier')
    V_X=V_U
    for ks in range(4):
        for nb in range(2):
            a.e(f'ds_read_b128 {vr(V_X+8*ks+4*nb,4)}, v{T0+5} offset:{2048*ks+1024*nb}')
    for ks in range(4):
        a.e(f's_waitcnt lgkmcnt({6-2*ks})')
        for nb in range(2):
            for (D,Fm) in((V_DR,V_F64R),(V_DI,V_F64I)):
                d=vr(D+4*nb,4)
                a.e(f'v_mfma_f32_16x16x32_bf16 {d}, {vr(Fm+4*ks,4)}, {vr(V_X+8*ks+4*nb,4)}, {d if ks else 0}')
    a.e(f's_add_u32 s62, s60, {WS_Y}')
    for nb in range(2):
        for h in range(2):
            a.e(f'v_pk_mul_f32 {vr(V_DR+4*nb+2*h,2)}, {vr(V_DR+4*nb+2*h,2)}, {vr(V_GT+4*nb+2*h,2)}')
            a.e(f'v_pk_mul_f32 {vr(V_DI+4*nb+2*h,2)}, {vr(V_DI+4*nb+2*h,2)}, {vr(V_GT+4*nb+2*h,2)}')
        for r in range(4): a.e(f'v_cvt_pk_bf16_f32 v{V_B+4*nb+r}, v{V_DR+4*nb+r}, v{V_DI+4*nb+r}')
        a.e(f'buffer_store_dwordx4 {vr(V_B+4*nb,4)}, v{V_L16}, {srd(S_WS)}, s62 offen offset:{1024*nb} {cfg.f("stY")}')

def p2_special(a,cfg):
    p=P2
    V_U,V_Q,T0,V_DR,V_DI,V_B=p['V_U'],p['V_Q'],p['T0'],p['V_DR'],p['V_DI'],p['V_B']
    V_WR=216; V_WI=224
    a.e('L_p2_special:')
    a.cond_begin()
    V_J=T0+8; V_ZA=V_U+16
    a.e(f'''s_lshl_b32 s65, {wv}, 4
    v_lshlrev_b32 v{V_J}, 8, v2
    v_add3_u32 v{V_J}, v{V_J}, v1, s65''')
    for eh in range(2):
        for r in range(4):
            n=1024*eh+64*r
            a.e(f'v_add_u32 v{T0}, {n}, v{V_J}')
            a.e(f'v_lshlrev_b32 v{T0}, 2, v{T0}')
            a.e(f'v_cvt_pk_bf16_f32 v{T0+2}, v{V_DR+4*eh+r}, v{V_DI+4*eh+r}')
            a.e(f'v_add_u32 v{T0}, {ZR_BASE}, v{T0}')
            a.e(f'ds_write_b32 v{T0}, v{T0+2}')
    a.e('s_waitcnt lgkmcnt(0)')
    a.e('s_barrier')
    for eh in range(2):
        for r in range(4):
            n=1024*eh+64*r
            a.e(f'v_sub_u32 v{T0}, {2048-n}, v{V_J}')
            a.e(f'v_and_b32 v{T0}, 2047, v{T0}')
            a.e(f'v_lshlrev_b32 v{T0}, 2, v{T0}')
            a.e(f'v_add_u32 v{T0}, {ZR_BASE}, v{T0}')
            a.e(f'ds_read_b32 v{V_ZA+4*eh+r}, v{T0}')
    a.e('s_waitcnt lgkmcnt(0)')
    for e in range(8):
        zr=V_DR+e; zi=V_DI+e; pr=V_WR+e; pi=V_WI+e; ar_=T0+6; ai=T0+7
        qr=T0; qi=T0+1; yr=T0+2; yi=T0+3
        a.e(f'''v_lshlrev_b32 v{qr}, 16, v{V_Q+e}
        v_and_b32 v{qi}, 0xffff0000, v{V_Q+e}
        v_lshlrev_b32 v{ar_}, 16, v{V_ZA+e}
        v_and_b32 v{ai}, 0xffff0000, v{V_ZA+e}
        v_mul_f32 v{yr}, v{zr}, v{pr}
        v_fma_f32 v{yr}, -v{zi}, v{pi}, v{yr}
        v_fma_f32 v{yr}, v{ar_}, v{qr}, v{yr}
        v_fma_f32 v{yr}, v{ai}, v{qi}, v{yr}
        v_mul_f32 v{yi}, v{zr}, v{pi}
        v_fma_f32 v{yi}, v{zi}, v{pr}, v{yi}
        v_fma_f32 v{yi}, v{ar_}, v{qi}, v{yi}
        v_fma_f32 v{yi}, -v{ai}, v{qr}, v{yi}
        v_cvt_pk_bf16_f32 v{V_B+e}, v{yr}, -v{yi}''')
    a.cond_end()
    a.e('s_branch L_p2_join')

HEADER='''; Gated mix of a GFNet spectral filter and a dense->mish->dense block, one persistent launch.
; (text generated by the author's own generator script; 256 workgroups, one per CU, hand-offs through counters)
'''
def build(stamps=False,off=(),**kw):
    cfg=Cfg(); cfg.stamps=stamps; cfg.off=set(off); cfg.x=kw; cfg.fine=kw.get('fine',0)
    label=NAME+'_kernel'
    a=Asm(); end='L_end'
    prologue(a,cfg,end)
    sv=(a.vm,a.lg)
    m_stream(a,cfg,end)
    nbM=sum(1 for i in a.items if i.op=='s_barrier'); n0=len(a.items)
    a.vm,a.lg=sv; a.bg_rate=0; assert not a.bg
    f_stream(a,cfg,end)
    nbF=sum(1 for i in a.items[n0:] if i.op=='s_barrier')
    a.e(f'{end}:'); a.e('s_endpgm')
    txt=a.text()
    errs=[]
    for role in (False,True):
        for nm,pol in (('fall',lambda i,n:i.target.endswith('_done') or (role and i.target=='L_F')),
                       ('taken',lambda i,n:((not i.target.startswith('L_end')) and n==0 and (i.target!='L_F' or role)))):
            errs+=verify_waits(a.out,pol,('F' if role else 'M')+nm)
    for e in sorted(set(errs))[:30]: print('WAITERR',e,file=sys.stderr)
    print(dict(a.count()),'barriers M',nbM,'F',nbF,file=sys.stderr)
    out=HEADER+f'; @launch grid=(256,1,1) block=(512,1,1) lds={LDS_TOTAL}\n'
    out+='.amdgcn_target "amdgcn-amd-amdhsa--gfx950"\n.text\n'
    out+=f'.globl {label}\n.p2align 8\n.type {label},@function\n{label}:\n{txt}'
    out+=f'''.section .rodata,"a"
.p2align 6
.amdhsa_kernel {label}
  .amdhsa_next_free_vgpr 256
  .amdhsa_next_free_sgpr 102
  .amdhsa_accum_offset 256
  .amdhsa_group_segment_fixed_size 0
  .amdhsa_kernarg_size 88
  .amdhsa_user_sgpr_count 2
  .amdhsa_user_sgpr_kernarg_segment_ptr 1
  .amdhsa_system_sgpr_workgroup_id_x 1
.end_amdhsa_kernel
'''
    return out

if __name__=='__main__':
    mode=sys.argv[1] if len(sys.argv)>1 else 'persist'
    kw={}
    for x in sys.argv[3:]:
        k,v=x.split('='); kw[k]=int(v) if v.lstrip('-').isdigit() else v
    off=kw.pop('off','').split(',') if 'off' in kw else ()
    txt=build(stamps=(mode=='stamps'),off=off,**kw)
    open(sys.argv[2] if len(sys.argv)>2 else 'out.s','w').write(txt)
```

```python
import sys, os, struct
from dsl import Asm, verify_waits

NAME='gated_mix__spectral_gfnet__dense_activation_mish__prompt'
WS_T   =0x000000
WS_WT  =0x200000
WS_QT  =0x400000
WS_G   =0x402000
WS_CNT =0x404000
WS_Y   =0x600000
WS_ACT =0x800000
WS_STAMP=0x1000000
WS_SIZE=0x1080000
RT_STRIDE=56*4096
S_X,S_WR,S_WI,S_W1,S_B1,S_W2,S_GW,S_OUT,S_WS,S_DBG=8,12,16,20,24,28,32,36,40,44
def srd(n): return f's[{n}:{n+3}]'
SRDS=[(S_X,0,2048*1024),(S_WR,8,2048*514),(S_WI,16,2048*514),(S_W1,32,512*3584),(S_B1,40,3584),
      (S_W2,48,1792*1024),(S_GW,56,1024),(S_OUT,64,2048*1024),(S_WS,80,WS_SIZE),(S_DBG,72,256)]
def vr(b,n=1): return f'v{b}' if n==1 else f'v[{b}:{b+n-1}]'
def fl(x): return hex(struct.unpack('<I',struct.pack('<f',float(x)))[0])
S_WV=3; S_W8=49
wv=f's{S_WV}'
LOG2E=1.4426950408889634
OOB=0x40000000
SLEEP=int(os.environ.get('SLEEP','8'))
SPIN_MAX=50000
SLOT=31744
SB=lambda c:(c%5)*SLOT
XA_BASE=4*SLOT; XA_PITCH=1152
GW_LDS=5*SLOT; B1_LDS=GW_LDS+1024
LC_BASE=GW_LDS+2048
TB_BASE=131072; XB_BASE=139264; ZR_BASE=147456
LDS_TOTAL=163840
V_L16=3
V_PD,V_PA,V_SIG=250,251,252

class Cfg:
    stamps=False; dbgst=False; sc='sc1'
    off=set()
    def f(self,tag): return '' if (tag in self.off or 'all' in self.off) else self.sc

def stamp(a,cfg,idx):
    if not cfg.stamps: return
    r=a.bg_rate; a.bg_rate=0
    a.e('s_memrealtime s[96:97]'); a.e('s_waitcnt lgkmcnt(0)'); a.e(f'v_writelane_b32 v255, s96, {idx}')
    a.bg_rate=r
def stamps_flush(a,cfg):
    if not cfg.stamps: return
    a.e(f"""v_lshrrev_b32 v254, 6, v249
    s_nop 0
    v_readfirstlane_b32 s98, v254
    s_lshl_b32 s99, s2, 3
    s_add_u32 s98, s98, s99
    s_lshl_b32 s98, s98, 8
    s_add_u32 s98, s98, {WS_STAMP}
    v_lshlrev_b32 v254, 2, v0
    buffer_store_dword v255, v254, {srd(S_WS)}, s98 offen""")

def signal(a,S,soff):
    vt=V_SIG
    a.e(f"""s_cmp_eq_u32 {wv}, 0
    s_cselect_b32 s95, 0, {OOB}
    v_mov_b32 v{vt}, 1
    v_mov_b32 v{vt+1}, s95
    s_mov_b64 exec, 1
    buffer_atomic_add v{vt}, v{vt+1}, {srd(S)}, {soff} offen sc1
    s_mov_b64 exec, -1""")

def ssignal(a,S,soff):
    lab=f'L_ss{len(a.items)}'
    a.e(f's_cmp_lg_u32 {wv}, 0'); a.e(f's_cbranch_scc1 {lab}')
    a.e(f's_atomic_add s90, s[{S}:{S+1}], {soff}')
    a.e(f'{lab}:')

def spin_global(a,S,soff,nl,stride,target):
    lab=f'L_poll{len(a.items)}'
    a.e(f'v_mul_u32_u24 v{V_PA}, {stride}, v0')
    a.e(f's_mov_b64 exec, {hex((1<<nl)-1)}')
    a.e(f's_mov_b32 s94, 0')
    a.e(f'{lab}:')
    a.e(f'buffer_load_dword v{V_PD}, v{V_PA}, {srd(S)}, {soff} offen sc1')
    a.e(f's_add_u32 s94, s94, 1')
    a.e(f's_waitcnt vmcnt(0)')
    a.e(f'v_cmp_gt_u32 vcc, {target}, v{V_PD}')
    a.e(f's_cbranch_vccz {lab}_done')
    a.e(f's_cmp_gt_u32 s94, {SPIN_MAX}')
    a.e(f's_cbranch_scc1 {lab}_done')
    a.e(f's_sleep {SLEEP}')
    a.e(f's_branch {lab}')
    a.e(f'{lab}_done:')
    a.e('s_mov_b64 exec, -1')

def poll_w0(a,S,soff,nl,stride,target):
    lab=f'L_pw{len(a.items)}'
    a.e(f's_cmp_lg_u32 {wv}, 0'); a.e(f's_cbranch_scc1 {lab}')
    a.cond_begin(); spin_global(a,S,soff,nl,stride,target); a.cond_end()
    a.e(f'{lab}:')

V_LC=248
def lc_add(a,idx,rtn=None):
    a.e(f'v_mov_b32 v{V_LC-1}, 1')
    a.e('s_mov_b64 exec, 1')
    if rtn is None: a.e(f'ds_add_u32 v{V_LC}, v{V_LC-1} offset:{4*idx}')
    else: a.e(f'ds_add_rtn_u32 v{rtn}, v{V_LC}, v{V_LC-1} offset:{4*idx}')
    a.e('s_mov_b64 exec, -1')
def lc_wait(a,idx,target):
    lab=f'L_lc{len(a.items)}'
    a.e('s_mov_b32 s94, 0')
    a.e(f'{lab}:')
    a.e(f'ds_read_b32 v{V_LC-1}, v{V_LC} offset:{4*idx}')
    a.e('s_add_u32 s94, s94, 1')
    a.e('s_waitcnt lgkmcnt(0)')
    a.e(f'v_readfirstlane_b32 s93, v{V_LC-1}')
    a.e(f's_cmp_ge_u32 s93, {target}')
    a.e(f's_cbranch_scc1 {lab}_done')
    a.e('s_sleep 1')
    a.e(f's_cmp_lt_u32 s94, {20*SPIN_MAX}')
    a.e(f's_cbranch_scc1 {lab}')
    a.e(f'{lab}_done:')

def angles(a,items,T):
    for i0 in range(0,len(items),4):
        grp=items[i0:i0+4]; src=[]
        for j,(sl,base,n,fin,neg) in enumerate(grp):
            if n==0: src.append(f'v{base}')
            else:
                a.e(f'v_fmamk_f32 v{T+j}, v{sl}, {fl(n)}, v{base}'); src.append(f'v{T+j}')
        outs=[]
        for j,(sl,base,n,fin,neg) in enumerate(grp):
            c,s=fin[0] if fin[0] is not None else T+4+j, fin[1] if fin[1] is not None else T+8+j
            a.e(f'v_cos_f32 v{c}, {src[j]}')
            a.e(f'v_sin_f32_e64 v{s}, -{src[j]}' if neg else f'v_sin_f32 v{s}, {src[j]}')
            outs.append((c,s))
        for j,(sl,base,n,fin,neg) in enumerate(grp):
            if fin[2]: fin[2](*outs[j])

def cmul_pack(a,c,s,tc,ts,dst,TT,n=4,negim=False):
    H=n//2
    for h in range(H): a.e(f'v_pk_mul_f32 {vr(TT+4*h,2)}, {vr(s+2*h,2)}, {vr(ts+2*h,2)}')
    for h in range(H): a.e(f'v_pk_mul_f32 {vr(TT+4*h+2,2)}, {vr(s+2*h,2)}, {vr(tc+2*h,2)}')
    for h in range(H): a.e(f'v_pk_fma_f32 {vr(TT+4*h,2)}, {vr(c+2*h,2)}, {vr(tc+2*h,2)}, {vr(TT+4*h,2)} neg_lo:[0,0,1] neg_hi:[0,0,1]')
    for h in range(H): a.e(f'v_pk_fma_f32 {vr(TT+4*h+2,2)}, {vr(c+2*h,2)}, {vr(ts+2*h,2)}, {vr(TT+4*h+2,2)}')
    ng='-' if negim else ''
    for h in range(H):
        a.e(f'v_cvt_pk_bf16_f32 v{dst+2*h}, v{TT+4*h}, {ng}v{TT+4*h+2}')
        a.e(f'v_cvt_pk_bf16_f32 v{dst+2*h+1}, v{TT+4*h+1}, {ng}v{TT+4*h+3}')

def prologue(a,cfg,end):
    a.e('s_cmp_ge_u32 s2, 256'); a.e(f's_cbranch_scc1 {end}')
    for (n,off,sz) in SRDS: a.e(f's_load_dwordx2 s[{n}:{n+1}], s[0:1], {off}')
    if cfg.stamps: a.e('v_mov_b32 v249, v0')
    a.e('v_lshrrev_b32 v1, 6, v0')
    a.e('v_and_b32 v0, 63, v0')
    a.e('v_readfirstlane_b32 s48, v1')
    a.e('v_and_b32 v1, 15, v0')
    a.e('v_lshrrev_b32 v2, 4, v0')
    a.e(f'v_lshlrev_b32 v{V_L16}, 4, v0')
    for (n,off,sz) in SRDS:
        a.e(f's_mov_b32 s{n+2}, {hex(sz)}'); a.e(f's_mov_b32 s{n+3}, 0x20000')
    a.e(f'''s_mov_b32 s51, s48
    s_and_b32 {wv}, s48, 3
    s_lshr_b32 s50, s48, 2
    s_and_b32 s4, s2, 7
    s_lshr_b32 s5, s2, 3
    s_lshr_b32 s6, s4, 1
    s_lshl_b32 s6, s6, 2
    s_lshr_b32 s56, s5, 3
    s_add_u32 s6, s6, s56
    s_and_b32 s7, s4, 1
    s_lshl_b32 s7, s7, 3
    s_and_b32 s56, s5, 7
    s_add_u32 s7, s7, s56
    s_and_b32 s48, s7, 1''')
    a.e('s_waitcnt lgkmcnt(0)')
    if cfg.x.get('pf_code'):
        a.e('s_getpc_b64 s[64:65]')
        a.e('s_lshl_b32 s66, s5, 10')
        a.e('s_add_u32 s64, s64, s66'); a.e('s_addc_u32 s65, s65, 0')
        a.e(f'v_mov_b32 v57, s65'); a.e(f'v_add_co_u32 v56, vcc, s64, v{V_L16}'); a.e(f'v_addc_co_u32 v57, vcc, 0, v57, vcc')
        a.e(f's_cmp_lt_u32 s5, {cfg.x["pf_code"]}'); a.e('s_cbranch_scc0 L_nopf'); a.cond_begin()
        a.e(f's_cmp_lg_u32 s51, 2'); a.e('s_cbranch_scc1 L_nopf')
        a.e('global_load_dwordx4 v[52:55], v[56:57], off')
        a.cond_end(); a.e('L_nopf:')
    mt=str(cfg.x.get('mt','xw'))
    if mt!='0':
        a.e(f'''v_lshlrev_b32 v5, 7, v0
        v_mov_b32 v6, {OOB}
        v_cmp_gt_u32 vcc, 56, v0
        v_cndmask_b32 v6, v6, v5, vcc
        s_cmp_eq_u32 s51, 0
        s_cselect_b32 s56, 0, {OOB}
        v_add_u32 v5, s56, v5
        s_cmp_eq_u32 s51, 1
        s_cselect_b32 s56, 0, {OOB}
        v_add_u32 v7, s56, v6
        s_lshl_b32 s56, s2, 13
        s_mul_i32 s57, s2, 7168''')
        if 'x' in mt: a.e(f'buffer_load_dword v245, v5, {srd(S_X)}, s56 offen')
        if 'w' in mt: a.e(f'buffer_load_dword v245, v7, {srd(S_W1)}, s57 offen')
    if cfg.x.get('tlb'):
        a.e(f'''v_lshlrev_b32 v5, 21, v0
        v_mov_b32 v6, {OOB}
        v_cmp_gt_u32 vcc, 9, v0
        v_cndmask_b32 v5, v6, v5, vcc
        s_cmp_eq_u32 s51, 2
        s_cselect_b32 s56, 0, {OOB}
        v_or_b32 v5, s56, v5
        s_cmp_eq_u32 s51, 3
        s_cselect_b32 s56, 0, {OOB}
        v_cmp_gt_u32 vcc, 1, v0
        v_cndmask_b32 v6, v6, v0, vcc
        v_or_b32 v6, s56, v6
        buffer_load_dword v245, v5, {srd(S_WS)}, 0 offen
        buffer_load_dword v245, v6, {srd(S_OUT)}, 0 offen''')
    a.e('s_cmp_lg_u32 s50, 0'); a.e('s_cbranch_scc1 L_F')

V_GF=8
V_W2A=240; V_W2D=244
NS3=int(os.environ.get('NS3','8'))
GSLOT=[6,7,0,1]
GT0=224; GTA=234
G_ITEMS=[(psi,c,u) for psi in range(4) for c in range(4) for u in range(4)]
def m_g2_ids(a,cfg):
    a.e(f"""s_lshl_b32 s67, s4, 2
    s_lshr_b32 s68, s5, 3
    s_add_u32 s67, s67, s68
    s_and_b32 s68, s5, 7
    s_mul_i32 s69, s67, {RT_STRIDE}
    s_mul_i32 s70, {wv}, {14*4096}
    s_add_u32 s69, s69, s70
    s_add_u32 s69, s69, {WS_ACT}
    s_mul_i32 s70, {wv}, {14*32*1024}
    s_lshl_b32 s71, s68, 7
    s_add_u32 s70, s70, s71
    s_lshl_b32 s71, {wv}, 15
    s_lshr_b32 s72, s67, 1
    s_and_b32 s73, s67, 1
    s_lshr_b32 s74, s72, 2
    s_lshl_b32 s74, s74, 11
    s_lshl_b32 s75, s73, 10
    s_add_u32 s74, s74, s75
    s_and_b32 s75, s72, 3
    s_lshl_b32 s75, s75, 8
    s_add_u32 s74, s74, s75""")
def w2_dma_addr(a,V,T):
    a.e(f"""v_lshrrev_b32 v{T}, 3, v0
    v_lshlrev_b32 v{V}, 10, v{T}
    v_lshrrev_b32 v{T}, 1, v{T}
    v_and_b32 v{T}, 3, v{T}
    v_bfe_u32 v{T+1}, v0, 1, 2
    v_xor_b32 v{T}, v{T}, v{T+1}
    v_lshlrev_b32 v{T}, 1, v{T}
    v_and_b32 v{T+1}, 1, v0
    v_add_u32 v{T}, v{T}, v{T+1}
    v_lshl_add_u32 v{V}, v{T}, 4, v{V}""")
def w2_group(t,v,V):
    return [f's_add_u32 m0, s71, {(t%8)*4096+v*1024}', f's_add_u32 s55, s70, {(32*t+8*v)*1024}',
            f'buffer_load_dwordx4 v{V}, {srd(S_W2)}, s55 offen lds']

def m_stream(a,cfg,end):
    a.e('s_waitcnt lgkmcnt(0)')
    if cfg.x.get('prio0'): a.e(f's_setprio {cfg.x["prio0"]}')
    stamp(a,cfg,26)
    a.e(f'''s_xor_b32 s56, {wv}, 3
    s_or_b32 s58, s56, s2
    s_cmp_eq_u32 s58, 0
    s_cselect_b32 s56, 0, {OOB}
    v_lshlrev_b32 v5, 7, v0
    v_add_u32 v5, s56, v5
    v_mov_b32 v6, 0
    s_mov_b32 s57, {WS_CNT}
    s_mov_b32 exec_hi, 0
    buffer_store_dword v6, v5, {srd(S_WS)}, s57 offen sc1
    s_mov_b32 exec_hi, -1''')
    mt=str(cfg.x.get('mt','xw'))
    a.e(f'''s_lshr_b32 s49, s2, 5
    s_and_b32 s50, s2, 31''')
    V_B1C=60; V_B1S=68; V_TC=76; V_TS=80; V_A2=84; V_A2N=88; T0=92; TA=100
    a.e(f'''s_lshl_b32 s67, {wv}, 4
    v_add_u32 v{T0}, s67, v1
    v_cvt_f32_u32 v{T0}, v{T0}
    v_mul_f32 v{T0+1}, {fl(1/64)}, v{T0}
    v_lshlrev_b32 v{T0+2}, 2, v2
    v_cvt_f32_u32 v{T0+2}, v{T0+2}
    v_mul_f32 v{T0+3}, v{T0+2}, v{T0+1}''')
    for ks in range(2):
        for hh in range(2):
            angles(a,[(T0+1,T0+3,32*ks+16*hh+u,(None,None,None),True) for u in range(4)],TA)
            for d in range(2):
                a.e(f'v_cvt_pk_bf16_f32 v{V_B1C+4*ks+2*hh+d}, v{TA+4+2*d}, v{TA+5+2*d}')
                a.e(f'v_cvt_pk_bf16_f32 v{V_B1S+4*ks+2*hh+d}, v{TA+8+2*d}, v{TA+9+2*d}')
    a.e(f'''v_and_b32 v{T0+4}, 1, v2
    v_lshlrev_b32 v{T0+4}, 2, v{T0+4}
    v_cvt_f32_u32 v{T0+4}, v{T0+4}
    v_mul_f32 v{T0+5}, {fl(1/512)}, v{T0}
    v_mul_f32 v{T0+6}, v{T0+4}, v{T0+5}''')
    angles(a,[(T0+5,T0+6,r,(V_TC+r,V_TS+r,None),True) for r in range(4)],TA)
    a.e(f'''v_lshrrev_b32 v{T0+5}, 2, v1
    v_cvt_f32_u32 v{T0+5}, v{T0+5}
    v_mul_f32 v{T0+5}, {fl(1/8)}, v{T0+5}
    v_and_b32 v{T0+6}, 1, v1
    v_cvt_f32_u32 v{T0+6}, v{T0+6}
    v_mul_f32 v{T0+6}, {fl(0.25)}, v{T0+6}
    v_fma_f32 v{T0+6}, v{T0+4}, v{T0+5}, v{T0+6}
    v_lshrrev_b32 v{T0+7}, 1, v1
    v_and_b32 v{T0+7}, 1, v{T0+7}
    v_lshrrev_b32 v{T0}, 1, v2
    v_cmp_eq_u32 s[68:69], v{T0+7}, v{T0}
    v_and_b32 v{T0+7}, 13, v1
    v_cmp_eq_u32 vcc, 1, v{T0+7}''')
    a.e('s_and_b64 s[70:71], vcc, s[68:69]')
    angles(a,[(T0+5,T0+6,dw,(None,None,None),False) for dw in range(4)],TA)
    for dw in range(4): a.e(f'v_cvt_pk_bf16_f32 v{TA+dw}, v{TA+4+dw}, v{TA+8+dw}')
    a.e(f'v_mov_b32 v{TA+4}, 0x3f80'); a.e(f'v_mov_b32 v{TA+5}, 0xbf80')
    for dw in range(4):
        a.e(f'v_cndmask_b32 v{V_A2+dw}, 0, v{TA+dw}, s[68:69]')
        a.e(f'v_cndmask_b32 v{V_A2N+dw}, 0, v{TA+4+(dw&1)}, s[70:71]')
    V_XA=108
    a.e(f'''v_and_b32 v{T0}, 3, v0
    v_lshrrev_b32 v{T0+1}, 1, v{T0}
    v_mul_u32_u24 v{V_XA}, {XA_PITCH}, v{T0+1}
    v_and_b32 v{T0}, 1, v{T0}
    v_lshlrev_b32 v{T0}, 3, v{T0}
    v_lshrrev_b32 v{T0+1}, 2, v1
    v_lshl_add_u32 v{T0+1}, v2, 2, v{T0+1}
    v_lshlrev_b32 v{T0+1}, 4, v{T0+1}
    v_add3_u32 v{V_XA}, v{V_XA}, v{T0}, v{T0+1}
    v_add_u32 v{V_XA}, {XA_BASE}, v{V_XA}
    s_mul_i32 s72, {wv}, {2*XA_PITCH}
    s_add_u32 s72, s72, {XA_BASE}
    v_add_u32 v{V_XA+1}, s72, v{V_L16}
    v_add_u32 v{V_XA+2}, {GW_LDS}, v{V_L16}''')
    a.e(f'''s_lshl_b32 s84, s49, 3
    s_lshl_b32 s85, {wv}, 1
    s_add_u32 s84, s84, s85
    s_lshr_b32 s85, s84, 4
    s_lshl_b32 s85, s85, 11
    s_lshr_b32 s86, s50, 4
    s_lshl_b32 s86, s86, 10
    s_add_u32 s85, s85, s86
    s_lshr_b32 s86, s84, 2
    s_and_b32 s86, s86, 3
    s_lshl_b32 s86, s86, 8
    s_add_u32 s85, s85, s86
    s_and_b32 s86, s50, 15
    s_lshl_b32 s86, s86, 4
    s_add_u32 s85, s85, s86
    s_and_b32 s86, s84, 3
    s_lshl_b32 s86, s86, 2
    s_add_u32 s85, s85, s86
    s_add_u32 s85, s85, {WS_G}
    ''')
    if mt!='0' and ('W' in mt or '2' in mt):
        a.e(f'''v_lshlrev_b32 v5, 7, v0
        v_mov_b32 v6, {OOB}
        v_cmp_gt_u32 vcc, 33, v0
        v_cndmask_b32 v7, v6, v5, vcc
        v_cmp_gt_u32 vcc, 56, v0
        v_cndmask_b32 v6, v6, v5, vcc
        s_cmp_eq_u32 {wv}, 2
        s_cselect_b32 s56, 0, {OOB}
        v_add_u32 v5, s56, v7
        s_cmp_eq_u32 {wv}, 3
        s_cselect_b32 s56, 0, {OOB}
        v_add_u32 v7, s56, v7
        s_cmp_eq_u32 {wv}, 0
        s_cselect_b32 s56, 0, {OOB}
        v_add_u32 v6, s56, v6
        s_mul_i32 s56, s2, {33*128}
        v_add_u32 v5, s56, v5
        v_add_u32 v7, s56, v7
        s_mul_i32 s57, s2, 7168''')
        if 'W' in mt:
            a.e(f'buffer_load_dword v245, v5, {srd(S_WR)}, 0 offen')
            a.e(f'buffer_load_dword v245, v7, {srd(S_WI)}, 0 offen')
        if '2' in mt: a.e(f'buffer_load_dword v245, v6, {srd(S_W2)}, s57 offen')
    a.e('s_cmp_lg_u32 s58, 0'); a.e('s_cbranch_scc1 L_m_nos0'); a.cond_begin()
    a.e(f'''s_waitcnt vmcnt(0)
    v_mov_b32 v5, 1
    v_mov_b32 v6, 32
    s_mov_b64 exec, 1
    buffer_store_dword v5, v6, {srd(S_DBG)}, 0 offen sc1
    s_mov_b64 exec, -1''')
    a.cond_end(); a.e('L_m_nos0:')
    stamp(a,cfg,0)
    a.e('s_barrier')
    stamp(a,cfg,1)
    V_AF=112; V_GX=144; V_GW=184; V_D1C=152; V_D1S=168
    for pi in range(4):
        for ks in range(2):
            for hh in range(2):
                a.e(f'ds_read_b64_tr_b16 {vr(V_AF+8*pi+4*ks+2*hh,2)}, v{V_XA} offset:{pi*2*XA_PITCH+ks*512+hh*256}')
        if pi==1: lg_01=a.lgtok()
    lg_af=a.lgtok()
    a.e(f'ds_read_b128 {vr(V_GX,4)}, v{V_XA+1}')
    a.e(f'ds_read_b128 {vr(V_GX+4,4)}, v{V_XA+1} offset:{XA_PITCH}')
    a.e(f'ds_read_b128 {vr(V_GW,4)}, v{V_XA+2}')
    lg_gx=a.lgtok()
    for pi in range(4):
        if pi==0: a.wait_lg(lg_01)
        if pi==2: a.wait_lg(lg_af)
        for ks in range(2):
            A=vr(V_AF+8*pi+4*ks,4); c=vr(V_D1C+4*pi,4); s=vr(V_D1S+4*pi,4)
            a.e(f'v_mfma_f32_16x16x32_bf16 {c}, {A}, {vr(V_B1C+4*ks,4)}, {c if ks else 0}')
            a.e(f'v_mfma_f32_16x16x32_bf16 {s}, {A}, {vr(V_B1S+4*ks,4)}, {s if ks else 0}')
    a.wait_lg(lg_gx)
    V_Z=T0+2; V_GOUT=T0+4
    for d in range(4):
        for rr in range(2):
            a.e(f'v_dot2_f32_bf16 v{V_Z+rr}, v{V_GX+4*rr+d}, v{V_GW+d}, {("v%d"%(V_Z+rr)) if d else 0}')
    TT=TA; V_B2=V_AF
    red=[('row_shr:1 row_mask:0xf bank_mask:0xf bound_ctrl:1'),('row_shr:2 row_mask:0xf bank_mask:0xf bound_ctrl:1'),
         ('row_shr:4 row_mask:0xf bank_mask:0xf bound_ctrl:1'),('row_shr:8 row_mask:0xf bank_mask:0xf bound_ctrl:1'),
         ('row_bcast:15 row_mask:0xa bank_mask:0xf'),('row_bcast:31 row_mask:0xc bank_mask:0xf')]
    ri=0
    for pi in range(4):
        cmul_pack(a,V_D1C+4*pi,V_D1S+4*pi,V_TC,V_TS,V_B2+4*pi,TT)
        for _ in range(2 if pi<2 else 1):
            for rr in range(2): a.e(f'v_add_f32_dpp v{V_Z+rr}, v{V_Z+rr}, v{V_Z+rr} {red[ri]}')
            ri+=1
    V_D2=V_D1C; V_D2N=V_D1S
    for pi in range(4):
        a.e(f'v_mfma_f32_16x16x32_bf16 {vr(V_D2+4*pi,4)}, {vr(V_A2,4)}, {vr(V_B2+4*pi,4)}, 0')
        a.e(f'v_mfma_f32_16x16x32_bf16 {vr(V_D2N+4*pi,4)}, {vr(V_A2N,4)}, {vr(V_B2+4*pi,4)}, 0')
    for rr in range(2): a.e(f'v_mul_f32 v{V_Z+rr}, {fl(-LOG2E)}, v{V_Z+rr}')
    for rr in range(2): a.e(f'v_exp_f32 v{V_Z+rr}, v{V_Z+rr}')
    for rr in range(2): a.e(f'v_add_f32 v{V_Z+rr}, 1.0, v{V_Z+rr}')
    for rr in range(2): a.e(f'v_rcp_f32 v{V_GOUT+rr}, v{V_Z+rr}')
    a.e(f'''s_cmp_eq_u32 {wv}, 0
    s_cselect_b32 s74, 1, 0
    s_mov_b32 s75, 0''')
    V_TO=8
    for pi in range(4):
        for rho in range(2):
            re=V_D2+4*pi+2*rho; im=re+1
            a.e(f'v_cndmask_b32 v{im}, v{im}, v{V_D2N+4*pi+2*rho+1}, s[74:75]')
            a.e(f'v_cvt_pk_bf16_f32 v{V_TO+2*pi+rho}, v{re}, v{im}')
    a.e(f'''v_lshrrev_b32 v18, 5, v0
    v_lshlrev_b32 v18, 11, v18
    v_and_b32 v19, 31, v0
    v_lshl_add_u32 v18, v19, 4, v18
    s_lshl_b32 s93, {wv}, 9
    v_add_u32 v18, s93, v18
    s_lshl_b32 s90, s2, 13
    s_add_u32 s90, s90, {WS_T}
    v_mov_b32 v16, v{V_GOUT}
    v_mov_b32 v17, v{V_GOUT+1}
    v_mov_b32 v19, 0
    s_mov_b32 s91, s85''')
    def row_stores():
        if cfg.x.get('x_nors'): return
        a.e(f'''s_add_u32 s93, s90, 4096
        buffer_store_dwordx4 v[8:11], v18, {srd(S_WS)}, s90 offen {cfg.f("stT")}
        buffer_store_dwordx4 v[12:15], v18, {srd(S_WS)}, s93 offen {cfg.f("stT")}
        s_mov_b32 exec_lo, 0
        s_mov_b32 exec_hi, 0x80000000
        buffer_store_dwordx2 v[16:17], v19, {srd(S_WS)}, s91 offen {cfg.f("stG")}
        s_mov_b64 exec, -1''')
    if cfg.x.get('rs_at',9)<0: row_stores()
    stamp(a,cfg,17)
    V_XF=80; V_XR=96; V_VA=102; V_BIAS=108; V_ACC=136; V_WF=192; V_BRAW=220; T0=234
    a.e(f'''s_lshl_b32 s76, {wv}, 12
    v_lshlrev_b32 v{T0}, 7, v1
    v_add_u32 v{T0}, s76, v{T0}
    v_lshrrev_b32 v{T0+1}, 1, v1
    v_xor_b32 v{T0+1}, v{T0+1}, v2
    v_lshl_add_u32 v{V_XR}, v{T0+1}, 4, v{T0}
    v_xor_b32 v{T0+1}, 4, v{T0+1}
    v_lshl_add_u32 v{V_XR+1}, v{T0+1}, 4, v{T0}
    v_mul_u32_u24 v{V_VA}, 1920, v2
    v_lshrrev_b32 v{T0}, 2, v1
    v_mul_u32_u24 v{T0}, 224, v{T0}
    v_and_b32 v{T0+1}, 3, v0
    v_lshlrev_b32 v{T0+1}, 3, v{T0+1}
    v_add3_u32 v{V_VA}, v{V_VA}, v{T0}, v{T0+1}
    v_add_u32 v{V_VA}, 16384, v{V_VA}
    s_cmp_eq_u32 s48, 0
    s_cselect_b32 s76, 192, 0
    v_add_u32 v{V_VA+1}, s76, v{V_VA}
    s_lshl_b32 s76, s48, 5
    v_add_u32 v{V_VA}, s76, v{V_VA}''')
    for st_ in (1,2):
        for j in range(2):
            a.e(f'v_add_u32 v{V_XR+2*st_+j}, {2*st_*SLOT}, v{V_XR+j}')
            a.e(f'v_add_u32 v{V_VA+2*st_+j}, {2*st_*SLOT}, v{V_VA+j}')
    a.e(f'''v_lshlrev_b32 v{T0}, 3, v2
    s_lshl_b32 s76, s48, 5
    s_add_u32 s77, s76, {B1_LDS}
    v_add_u32 v{T0+1}, s77, v{T0}
    s_cmp_eq_u32 s48, 0
    s_cselect_b32 s77, 192, 0
    s_add_u32 s77, s77, {B1_LDS}
    v_add_u32 v{T0}, s77, v{T0}''')
    if cfg.x.get('prio'): a.e(f's_setprio {cfg.x["prio"]}')
    a.e('s_barrier')
    stamp(a,cfg,3)
    a.e(f'''s_mul_i32 s93, {wv}, {2*XA_PITCH}
    s_add_u32 s93, s93, {XA_BASE}
    v_lshl_add_u32 v20, v0, 5, s93
    v_add_u32 v21, s93, v{V_L16}
    ds_write_b128 v20, v[8:11]
    ds_write_b128 v20, v[12:15] offset:16
    s_waitcnt lgkmcnt(0)
    ds_read_b128 v[8:11], v21
    ds_read_b128 v[12:15], v21 offset:1024''')
    def slot_set(c):
        j=c%5; return (j//2, (j%2)*SLOT)
    def w_read1(s,t,hh):
        c,kk=s//2,s%2; st_,off=slot_set(c)
        va=V_VA+2*st_+(1 if t==6 else 0)
        o=off+kk*7680+(32*t if t<6 else 0)
        a.e(f'ds_read_b64_tr_b16 {vr(V_WF+4*t+2*hh,2)}, v{va} offset:{o+960*hh}')
        return a.lgtok()
    def x_read1(s,nb):
        c,kk=s//2,s%2; st_,off=slot_set(c)
        a.e(f'ds_read_b128 {vr(V_XF+8*(s%2)+4*nb,4)}, v{V_XR+2*st_+kk} offset:{off+2048*nb}')
        return a.lgtok()
    for t in range(6): a.e(f'ds_read_b64 {vr(V_BRAW+2*t,2)}, v{T0+1} offset:{32*t}')
    a.e(f'ds_read_b64 {vr(V_BRAW+12,2)}, v{T0}')
    lg_b=a.lgtok()
    tw={}; tx={}
    for nb in range(2): tx[(0,nb)]=x_read1(0,nb)
    for t in range(3):
        for hh in range(2): tw[(0,t,hh)]=w_read1(0,t,hh)
    a.wait_lg(lg_b)
    for t in range(7):
        for d in range(2):
            raw=V_BRAW+2*t+d
            a.e(f'v_lshlrev_b32 v{V_BIAS+4*t+2*d}, 16, v{raw}')
            a.e(f'v_and_b32 v{V_BIAS+4*t+2*d+1}, 0xffff0000, v{raw}')
    for t in range(3,7):
        for hh in range(2): tw[(0,t,hh)]=w_read1(0,t,hh)
    for s in range(16):
        for t in range(7):
            need=max(tw[(s,t,1)],tx[(s,1)])
            n=a.lg-need
            if t%2==0 or t==1 or s==0 or True: a.e(f's_waitcnt lgkmcnt({min(n,15)})')
            for nb in range(2):
                acc=vr(V_ACC+28*nb+4*t,4)
                cc=acc if s>0 else vr(V_BIAS+4*t,4)
                a.e(f'v_mfma_f32_16x16x32_bf16 {acc}, {vr(V_WF+4*t,4)}, {vr(V_XF+8*(s%2)+4*nb,4)}, {cc}')
                if nb==0 and t==1 and s%2==1 and s<15:
                    if cfg.fine==2: stamp(a,cfg,32+2*(s//2))
                    if s==(7 if cfg.x.get('s1two',0) else 13): a.e('s_waitcnt vmcnt(0)')
                    a.e('s_barrier')
                    if cfg.fine==2: stamp(a,cfg,33+2*(s//2))
                ps,pt=(s+1,t-1) if t>=1 else (s,6)
                if (t>=1 and s<15) or (t==0 and 1<=s<=15 and (s,6,nb) not in tw):
                    tw[(ps,pt,nb)]=w_read1(ps,pt,nb)
                if t==2 and s<15: tx[(s+1,nb)]=x_read1(s+1,nb)
                if t==4 and nb==1 and s==cfg.x.get('rs_at',9): row_stores()
    a.e('s_barrier')
    stamp(a,cfg,4)
    V_E=V_WF; V_O=V_BIAS
    a.e(f's_mov_b32 s84, {fl(LOG2E)}'); a.e(f's_mov_b32 s85, {fl(LOG2E)}'); a.e(f's_mov_b32 s86, {fl(30.0)}')
    a.e(f'''s_mul_i32 s87, s7, 7
    s_add_u32 s87, s87, s48
    s_lshr_b32 s87, s87, 1
    s_lshl_b32 s87, s87, 12
    s_mul_i32 s88, s6, {2*RT_STRIDE}
    s_lshl_b32 s89, {wv}, 10
    s_add_u32 s88, s88, s89
    s_add_u32 s88, s88, {WS_ACT}
    s_add_u32 s88, s88, s87
    s_mov_b32 s89, {3*4096}
    s_cmp_eq_u32 s48, 0
    s_cselect_b32 s89, s89, {(-4096+512)&0xffffffff}
    s_add_u32 s89, s89, s88
    v_lshlrev_b32 v4, 3, v0''')
    G=4
    for nb in range(2):
        pairs=[(V_ACC+28*nb+4*t+2*d, V_O+14*nb+2*t+d) for t in range(7) for d in range(2)]
        for g0 in range(0,len(pairs),G):
            grp=pairs[g0:g0+G]
            Tq=lambda i: V_E+4*i
            for i,(h,o) in enumerate(grp): a.e(f'v_pk_mul_f32 {vr(Tq(i),2)}, {vr(h,2)}, s[84:85]')
            for i,(h,o) in enumerate(grp):
                a.e(f'v_min_f32 v{Tq(i)}, s86, v{Tq(i)}'); a.e(f'v_min_f32 v{Tq(i)+1}, s86, v{Tq(i)+1}')
            for i,(h,o) in enumerate(grp):
                a.e(f'v_exp_f32 v{Tq(i)}, v{Tq(i)}'); a.e(f'v_exp_f32 v{Tq(i)+1}, v{Tq(i)+1}')
            for i,(h,o) in enumerate(grp): a.e(f'v_pk_add_f32 {vr(Tq(i)+2,2)}, {vr(Tq(i),2)}, 2.0 op_sel_hi:[1,0]')
            for i,(h,o) in enumerate(grp): a.e(f'v_pk_mul_f32 {vr(Tq(i),2)}, {vr(Tq(i),2)}, {vr(Tq(i)+2,2)}')
            for i,(h,o) in enumerate(grp): a.e(f'v_pk_add_f32 {vr(Tq(i)+2,2)}, {vr(Tq(i),2)}, 2.0 op_sel_hi:[1,0]')
            for i,(h,o) in enumerate(grp):
                a.e(f'v_rcp_f32 v{Tq(i)+2}, v{Tq(i)+2}'); a.e(f'v_rcp_f32 v{Tq(i)+3}, v{Tq(i)+3}')
            for i,(h,o) in enumerate(grp): a.e(f'v_pk_mul_f32 {vr(Tq(i),2)}, {vr(Tq(i),2)}, {vr(Tq(i)+2,2)}')
            for i,(h,o) in enumerate(grp): a.e(f'v_pk_mul_f32 {vr(Tq(i),2)}, {vr(Tq(i),2)}, {vr(h,2)}')
            for i,(h,o) in enumerate(grp): a.e(f'v_cvt_pk_bf16_f32 v{o}, v{Tq(i)}, v{Tq(i)+1}')
            done=min(len(pairs),g0+G)
            if cfg.x.get('actil'):
                for pp in range(3):
                    if g0<4*(pp+1)<=done:
                        a.e(f'buffer_store_dwordx4 {vr(V_O+14*nb+4*pp,4)}, v{V_L16}, {srd(S_WS)}, s88 offen {cfg.f("stA")}')
                        a.e('s_add_u32 s88, s88, 4096')
                if done==14:
                    a.e(f'buffer_store_dwordx2 {vr(V_O+14*nb+12,2)}, v4, {srd(S_WS)}, s89 offen {cfg.f("stA")}')
        if nb==0 and cfg.x.get('actil'):
            a.e(f's_add_u32 s88, s88, {RT_STRIDE-3*4096}')
            a.e(f's_add_u32 s89, s89, {RT_STRIDE}')
    if not cfg.x.get('actil'):
        for nb in range(2):
            for pp in range(3):
                a.e(f'buffer_store_dwordx4 {vr(V_O+14*nb+4*pp,4)}, v{V_L16}, {srd(S_WS)}, s88 offen {cfg.f("stA")}')
                a.e('s_add_u32 s88, s88, 4096')
            a.e(f'buffer_store_dwordx2 {vr(V_O+14*nb+12,2)}, v4, {srd(S_WS)}, s89 offen {cfg.f("stA")}')
            if nb==0:
                a.e(f's_add_u32 s88, s88, {RT_STRIDE-3*4096}')
                a.e(f's_add_u32 s89, s89, {RT_STRIDE}')
    stamp(a,cfg,5)
    parts=p2_table_parts(a,cfg); npre=cfg.x.get('tabpre',4)
    for part in parts[:npre]: part()
    stamp(a,cfg,24)
    a.e('s_mov_b32 s93, 32'); poll_w0(a,S_DBG,'s93',1,0,1)
    a.e('s_waitcnt vmcnt(0)')
    a.e('s_barrier')
    stamp(a,cfg,7)
    p2_small_loads(a,cfg)
    tok_w=a.vmtok()
    for part in parts[npre:]: part()
    stamp(a,cfg,25)
    p2_compute(a,cfg,tok_w)
    tok_y=a.vmtok()
    stamp(a,cfg,8)
    m_g2_ids(a,cfg)
    T=5
    w2_dma_addr(a,V_W2D,T)
    a.e(f"""v_lshrrev_b32 v{T}, 2, v1
    v_lshl_add_u32 v{T+1}, v2, 2, v{T}
    v_lshlrev_b32 v{V_W2A}, 7, v{T+1}
    v_lshrrev_b32 v{T+1}, 1, v{T+1}
    v_and_b32 v{T+1}, 3, v{T+1}
    v_and_b32 v{T}, 3, v0
    v_lshl_add_u32 v{V_W2A}, v{T}, 3, v{V_W2A}
    v_add_u32 v{V_W2A}, s71, v{V_W2A}""")
    for c in (3,2,1,0):
        a.e(f'v_xor_b32 v{T}, {c}, v{T+1}')
        a.e(f'v_lshl_add_u32 v{V_W2A+c}, v{T}, 5, v{V_W2A}')
    stamp(a,cfg,9)
    a.e('s_waitcnt vmcnt(0)')
    a.e(f's_lshl_b32 s93, s72, 7'); a.e(f's_add_u32 s93, s93, {WS_CNT}')
    poll_w0(a,S_WS,'s93',1,0,16)
    a.e('s_barrier')
    stamp(a,cfg,10)
    m_gemm2(a,cfg,tok_y)
    stamp(a,cfg,13)
    stamps_flush(a,cfg)
    a.e(f's_branch {end}')
    p2_special(a,cfg)

def m_gemm2(a,cfg,tok_y):
    V_ACC=80; V_AF=144; D=8; V_G=72
    RB=lambda t: (8+16*(t%D)) if (t%D)<4 else (160+16*(t%D-4))
    toks={}; tokw={}
    def need(d,k):
        while k not in d: a.bg_pop()
    def a_read1(t,c,hh):
        a.e(f'ds_read_b64_tr_b16 {vr(V_AF+4*c+2*hh,2)}, v{V_W2A+c} offset:{(t%8)*4096+2048*hh}')
        return a.lgtok()
    def push_loads(t):
        b=RB(t)
        if t>=14:
            psi=t-14
            for u in range(4):
                a.bg_push([f's_add_u32 s79, s78, {(16*psi+u)*8192}',
                           f'buffer_load_dwordx4 {vr(b+4*u,4)}, v6, {srd(S_WS)}, s79 offen {cfg.f("ldY")}'],
                          (lambda t=t: toks.__setitem__(t,a.vmtok())) if u==3 else None)
            return
        sc=cfg.f('ldA')
        for q in range(4):
            if t in(3,10):
                l=[f'buffer_load_dwordx2 {vr(b+4*q,2)}, v4, {srd(S_WS)}, s69 offen offset:{1024*q} {sc}',
                   f'buffer_load_dwordx2 {vr(b+4*q+2,2)}, v4, {srd(S_WS)}, s69 offen offset:{1024*q+512} {sc}']
            else:
                l=[f'buffer_load_dwordx4 {vr(b+4*q,4)}, v{V_L16}, {srd(S_WS)}, s69 offen offset:{1024*q} {sc}']
            if q==3: l.append('s_add_u32 s69, s69, 4096')
            a.bg_push(l,(lambda t=t: toks.__setitem__(t,a.vmtok())) if q==3 else None)
    def push_w2(t):
        for v in range(4):
            a.bg_push(w2_group(t,v,V_W2D),(lambda t=t: tokw.__setitem__(t,a.vmtok())) if v==3 else None)
    a.e('v_lshlrev_b32 v4, 3, v0')
    npre=cfg.x.get('npre',4)
    for t in range(npre): push_loads(t)
    a.bg_flush()
    nxt=npre
    a.e(f"""v_lshlrev_b32 v5, 4, v1
    v_lshlrev_b32 v6, 15, v2
    v_add_u32 v6, v6, v5
    v_add_u32 v7, s71, v{V_L16}
    s_lshl_b32 s78, {wv}, 19
    s_add_u32 s78, s78, s74
    s_add_u32 s78, s78, {WS_Y}""")
    ta={}
    for c in range(4):
        for hh in range(2): ta[(0,c,hh)]=a_read1(0,c,hh)
    a.bg_set(cfg.x.get('g2r',2),mfma_weight=2)
    TS3=cfg.x.get('ts3',10)
    for t in range(18):
        if cfg.fine==1: stamp(a,cfg,32+t)
        need(toks,t); a.wait_vm(toks[t])
        if t+1 in range(8,14):
            need(tokw,t+1); a.wait_vm(tokw[t+1])
        k_=0
        while nxt<14 and nxt-D<t and k_<2 and t<14:
            if nxt-D==t-0 and False: break
            if nxt-D>=t: break
            push_loads(nxt); nxt+=1; k_+=1
        if 1<=t and t-1+8<14: push_w2(t-1+8)
        if t==TS3+1: push_loads(14); push_loads(15)
        if t==TS3+2: push_loads(16); push_loads(17)
        b=RB(t)
        if t==14:
            a.need_vm(tok_g)
            for q in range(4): a.e(f'v_sub_f32 v{V_G+q}, 1.0, v{V_G+q}')
            for q in range(4):
                for h in range(8):
                    a.e(f'v_pk_mul_f32 {vr(V_ACC+16*q+2*h,2)}, {vr(V_ACC+16*q+2*h,2)}, {vr(V_G+(q&~1),2)} op_sel:[0,{q&1}] op_sel_hi:[1,{q&1}]')
            stamp(a,cfg,11)
        if t>=14:
            tg=[]
            for c in range(4):
                a.e(f'ds_read_b128 {vr(V_AF+4*c,4)}, v7 offset:{GSLOT[t-14]*4096+c*1024}'); tg.append(a.lgtok())
            for (i,j) in[(0,1),(0,2),(0,3),(1,2),(1,3),(2,3)]:
                a.e(f'v_swap_b32 v{b+4*i+j}, v{b+4*j+i}')
        for c in range(4):
            if t<14:
                n=a.lg-ta[(t,c,1)]
                a.e(f's_waitcnt lgkmcnt({min(n,15)})')
            else:
                a.e(f's_waitcnt lgkmcnt({min(a.lg-tg[c],15)})')
            A=vr(V_AF+4*c,4)
            for q in range(4):
                d=vr(V_ACC+16*q+4*c,4)
                r=a.bg_rate
                if q<2 and t<14: a.bg_rate=0
                a.e(f'v_mfma_f32_16x16x32_bf16 {d}, {A}, {vr(b+4*q,4)}, {d if t else 0}')
                if q<2 and t<14:
                    if c>=1 and t<13: ta[(t+1,c-1,q)]=a_read1(t+1,c-1,q)
                    if c==0 and t>=1: ta[(t,3,q)]=a_read1(t,3,q)
                a.bg_rate=r
        if t==TS3:
            a.bg_flush()
            a.e(f's_mov_b32 s93, {WS_CNT+16*128}')
            poll_w0(a,S_WS,'s93',NS3,128,256//NS3)
            a.e('s_barrier')
            a.e(f's_add_u32 s75, s74, {WS_G}')
            a.e(f'buffer_load_dwordx4 {vr(V_G,4)}, v5, {srd(S_WS)}, s75 offen {cfg.f("ldW")}')
            tok_g=a.vmtok()
        if t==13: a.e('s_barrier')
    a.bg_flush(); a.bg_set(0)
    stamp(a,cfg,12)
    a.e(f'v_add_u32 v7, s71, v{V_L16}')
    for w in range(4):
        a.e(f's_cmp_lg_u32 {wv}, {w}')
        a.e(f's_cbranch_scc1 L_k3_w{w}')
        a.cond_begin()
        slot=0
        for q in range(4):
            if q==w: continue
            for c in range(4):
                a.e(f'ds_write_b128 v7, {vr(V_ACC+16*q+4*c,4)} offset:{slot*4096+c*1024}')
            slot+=1
        if w!=0:
            for h in range(8): a.e(f'v_pk_mov_b32 {vr(V_ACC+2*h,2)}, {vr(V_ACC+16*w+2*h,2)}, {vr(V_ACC+16*w+2*h,2)} op_sel:[0,1]')
        a.cond_end()
        a.e(f'L_k3_w{w}:')
    a.e('s_waitcnt lgkmcnt(0)'); a.e('s_barrier')
    V_RD=160
    for k in range(1,4):
        a.e(f"""s_add_u32 s76, {wv}, {k}
        s_and_b32 s76, s76, 3
        s_lshl_b32 s77, s76, 15
        s_cmp_lt_u32 {wv}, s76
        s_cselect_b32 s79, 0, 1
        s_sub_u32 s79, {wv}, s79
        s_lshl_b32 s79, s79, 12
        s_add_u32 s77, s77, s79
        v_add_u32 v7, s77, v{V_L16}""")
        for c in range(4): a.e(f'ds_read_b128 {vr(V_RD+16*(k-1)+4*c,4)}, v7 offset:{c*1024}')
    a.e(f"""v_lshlrev_b32 v5, 10, v1
    v_lshl_add_u32 v5, v2, 3, v5
    s_lshl_b32 s76, s72, 17
    s_lshl_b32 s77, {wv}, 15
    s_add_u32 s76, s76, s77
    s_lshl_b32 s77, s73, 14
    s_add_u32 s76, s76, s77
    s_lshl_b32 s77, s68, 7
    s_add_u32 s76, s76, s77""")
    for k in range(3):
        a.e(f's_waitcnt lgkmcnt({8-4*k})')
        for h in range(8): a.e(f'v_pk_add_f32 {vr(V_ACC+2*h,2)}, {vr(V_ACC+2*h,2)}, {vr(V_RD+16*k+2*h,2)}')
    V_O=8
    for c in range(4):
        a.e(f'v_cvt_pk_bf16_f32 v{V_O+2*c}, v{V_ACC+4*c}, v{V_ACC+4*c+1}')
        a.e(f'v_cvt_pk_bf16_f32 v{V_O+2*c+1}, v{V_ACC+4*c+2}, v{V_ACC+4*c+3}')
        a.e(f'buffer_store_dwordx2 {vr(V_O+2*c,2)}, v5, {srd(S_OUT)}, s76 offen offset:{32*c}')

P2=dict(V_U=8,V_W=40,V_GT=48,V_Q=56,T0=64,V_F64R=80,V_F64I=96,V_F32R=112,V_F32I=128,V_T1C=144,V_T1S=152,V_T3C=160,V_T3S=168,V_DR=176,V_DI=184,V_B=192)
V_FW2D=246
def f_stream(a,cfg,end):
    a.e('L_F:')
    a.e('s_mov_b32 s90, 1')
    if cfg.x.get('fprio'): a.e(f's_setprio {cfg.x["fprio"]}')
    a.e(f'''s_lshr_b32 s49, s2, 5
    s_and_b32 s50, s2, 31
    s_lshl_b32 s51, s6, 17
    s_lshl_b32 s56, {wv}, 13
    s_add_u32 s51, s51, s56
    s_mul_i32 s52, s7, 224
    s_mul_i32 s56, {wv}, 14336
    s_add_u32 s52, s52, s56
    s_lshl_b32 s53, {wv}, 10
    s_mul_i32 s54, {wv}, 960
    s_add_u32 s54, s54, 16384''')
    T=6; V_XD=4; V_WD=5
    a.e(f'''v_lshrrev_b32 v{T}, 3, v0
    v_lshlrev_b32 v{V_XD}, 10, v{T}
    v_lshrrev_b32 v{T}, 1, v{T}
    s_and_b32 s56, {wv}, 1
    s_lshl_b32 s56, s56, 2
    v_add_u32 v{T}, s56, v{T}
    v_and_b32 v{T+1}, 7, v0
    v_xor_b32 v{T}, v{T}, v{T+1}
    v_lshl_add_u32 v{V_XD}, v{T}, 4, v{V_XD}
    v_mul_u32_u24 v{T}, 4682, v0
    v_lshrrev_b32 v{T}, 16, v{T}
    v_mul_u32_u24 v{V_WD}, 3584, v{T}
    v_mul_u32_u24 v{T}, 14, v{T}
    v_sub_u32 v{T}, v0, v{T}
    v_lshl_add_u32 v{V_WD}, v{T}, 4, v{V_WD}
    v_mov_b32 v{V_LC}, {LC_BASE}''')
    a.e(f'''s_lshl_b32 s56, s49, 18
    s_lshl_b32 s57, s50, 10
    s_add_u32 s56, s56, s57
    s_lshl_b32 s57, {wv}, 16
    s_add_u32 s56, s56, s57
    s_add_u32 s58, s56, 32768
    s_mul_i32 s57, {wv}, {2*XA_PITCH}
    s_add_u32 s57, s57, {XA_BASE}''')
    a.e('s_waitcnt lgkmcnt(0)')
    stamp(a,cfg,26)
    a.e(f's_cmp_lg_u32 {wv}, 0'); a.e('s_cbranch_scc1 L_a_r0'); a.cond_begin()
    a.e(f's_mov_b32 m0, {GW_LDS}'); a.e('s_nop 0')
    a.e(f'buffer_load_dwordx4 v{V_L16}, {srd(S_GW)}, 0 offen lds')
    a.cond_end(); a.e('L_a_r0:')
    a.e(f's_cmp_lg_u32 {wv}, 1'); a.e('s_cbranch_scc1 L_a_r1'); a.cond_begin()
    a.e(f's_mul_i32 s64, s7, 224'); a.e(f's_mov_b32 m0, {B1_LDS}'); a.e('s_mov_b64 exec, 0x3fff')
    a.e(f'buffer_load_dwordx4 v{V_L16}, {srd(S_B1)}, s64 offen lds')
    a.e('s_mov_b64 exec, -1')
    a.cond_end(); a.e('L_a_r1:')
    tok_c={}
    def chunk_groups(c):
        gs=[]
        for u in range(4):
            gs.append(([f's_add_u32 m0, s53, {SB(c)+u*4096}', f's_add_u32 s55, s51, {u*32768+c*128}',
                        f'buffer_load_dwordx4 v{V_XD}, {srd(S_X)}, s55 offen lds'],None))
        for u in range(4):
            cb=(lambda c=c: tok_c.__setitem__(c,a.vmtok())) if u==3 else None
            gs.append(([f's_add_u32 m0, s54, {SB(c)+u*3840}', f's_add_u32 s55, s52, {u*57344+c*229376}',
                        's_mov_b32 exec_hi, 0x00ffffff',
                        f'buffer_load_dwordx4 v{V_WD}, {srd(S_W1)}, s55 offen lds',
                        's_mov_b32 exec_hi, -1'],cb))
        return gs
    def push_chunk(c):
        for g_ in chunk_groups(c): a.bg_push(*g_)
    def wait_role(tok,e3,e2):
        n=a.vm-tok; lab=f'L_wr{len(a.items)}'
        a.e(f's_cmp_eq_u32 {wv}, 3'); a.e(f's_cbranch_scc1 {lab}_3')
        a.e('s_cmp_eq_u32 s66, 0'); a.e(f's_cbranch_scc1 {lab}_2')
        a.e(f's_waitcnt vmcnt({n})'); a.e(f's_branch {lab}_e')
        a.e(f'{lab}_3:'); a.e(f's_waitcnt vmcnt({min(n+e3,62)})'); a.e(f's_branch {lab}_e')
        a.e(f'{lab}_2:'); a.e(f's_waitcnt vmcnt({min(n+e2,62)})')
        a.e(f'{lab}_e:')
    def chunk_now(c):
        if cfg.fine==3: stamp(a,cfg,48+2*c%16 if False else 40+c)
        push_chunk(c); a.bg_flush()
        if cfg.fine==3: stamp(a,cfg,50+c)
    a.e(f'''s_mov_b32 m0, s57
    s_add_u32 s57, s57, {XA_PITCH}
    buffer_load_dwordx4 v{V_L16}, {srd(S_X)}, s56 offen lds
    s_mov_b32 m0, s57
    s_nop 0
    buffer_load_dwordx4 v{V_L16}, {srd(S_X)}, s58 offen lds''')
    tok_xa=a.vmtok()
    chunk_now(0)
    if cfg.x.get('c1pre',1): chunk_now(1)
    if cfg.x.get('fprio'): a.e('s_setprio 0')
    stamp(a,cfg,0)
    a.wait_vm(tok_xa); a.e('s_barrier')
    stamp(a,cfg,1)
    if not cfg.x.get('c1pre',1): chunk_now(1)
    chunk_now(2)
    T0=92; V_B1S=68
    a.wait_vm(tok_c[0]); a.e('s_barrier')
    if cfg.fine==3: stamp(a,cfg,27)
    chunk_now(3)
    a.wait_vm(tok_c[1]); a.e('s_barrier')
    if cfg.fine==3: stamp(a,cfg,29)
    chunk_now(4)
    a.wait_vm(tok_c[2]); a.e('s_barrier')
    if cfg.fine==3: stamp(a,cfg,30)
    chunk_now(5)
    a.e('''s_lshr_b32 s59, s50, 3
    s_lshr_b32 s60, s50, 2
    s_and_b32 s60, s60, 1
    s_and_b32 s61, s50, 3
    s_lshl_b32 s62, s59, 4
    s_lshl_b32 s63, s60, 10
    s_add_u32 s62, s62, s63
    s_lshl_b32 s63, s61, 8
    s_add_u32 s62, s62, s63
    s_lshl_b32 s63, s59, 11
    s_lshl_b32 s64, s60, 10
    s_add_u32 s63, s63, s64
    s_lshl_b32 s64, s61, 8
    s_add_u32 s63, s63, s64''')
    V_WR=8; V_WI=24; V_WO=7
    a.e(f's_cmp_lg_u32 {wv}, {9 if cfg.x.get("x_norole") else 3}'); a.e('s_cbranch_scc1 L_a_r3'); a.cond_begin()
    a.e(f'''v_lshrrev_b32 v{V_WO}, 2, v0
    v_mul_u32_u24 v{V_WO}, 514, v{V_WO}
    v_and_b32 v{T}, 3, v0
    v_lshl_add_u32 v{V_WO}, v{T}, 4, v{V_WO}
    s_mul_i32 s64, s62, 514
    s_lshl_b32 s65, s49, 6
    s_add_u32 s64, s64, s65''')
    for r in range(4):
        a.e(f'buffer_load_dwordx4 {vr(V_WR+4*r,4)}, v{V_WO}, {srd(S_WR)}, s64 offen')
        a.e(f'buffer_load_dwordx4 {vr(V_WI+4*r,4)}, v{V_WO}, {srd(S_WI)}, s64 offen')
        if r<3: a.e(f's_add_u32 s64, s64, {64*514}')
    a.cond_end(); a.e('L_a_r3:')
    V_SP=40; V_J=48; V_JR=49
    a.e(f'''s_lshl_b32 s65, s49, 2
    s_xor_b32 s66, {wv}, 2
    s_or_b32 s66, s66, s65''')
    a.e('s_cmp_lg_u32 s66, 0'); a.e('s_cbranch_scc1 L_a_r2'); a.cond_begin()
    a.e(f'''v_lshlrev_b32 v{V_J}, 6, v2
    v_add_u32 v{V_J}, v{V_J}, v1
    v_add_u32 v{V_J}, s62, v{V_J}
    v_sub_u32 v{V_JR}, 2048, v{V_J}
    v_and_b32 v{V_JR}, 2047, v{V_JR}
    v_mul_u32_u24 v{V_J}, 514, v{V_J}
    v_mul_u32_u24 v{V_JR}, 514, v{V_JR}''')
    for n,(S,vv,off) in enumerate([(S_WR,V_J,0),(S_WR,V_J,512),(S_WR,V_JR,0),(S_WR,V_JR,512),(S_WI,V_J,0),(S_WI,V_J,512),(S_WI,V_JR,0),(S_WI,V_JR,512)]):
        a.e(f'buffer_load_ushort v{V_SP+n}, v{vv}, {srd(S)}, 0 offen offset:{off}')
    a.cond_end(); a.e('L_a_r2:')
    tok_role=a.vmtok()
    wait_role(tok_c[3],8,8); a.e('s_barrier')
    if cfg.fine==3: stamp(a,cfg,31)
    chunk_now(6)
    wait_role(tok_c[4],8,8); a.e('s_barrier')
    two=cfg.x.get('s1two',0)
    if two:
        a.e('s_and_b32 s92, s5, 3'); a.e('s_lshl_b32 s92, s92, 6')
        ssignal(a,S_DBG,'s92')
    if cfg.fine==3: stamp(a,cfg,32)
    chunk_now(7)
    a.e(f's_cmp_lg_u32 {wv}, {9 if cfg.x.get("x_norole") else 3}'); a.e('s_cbranch_scc1 L_a_w3')
    a.wait_vm(tok_role); a.cond_begin()
    V_WP=188
    a.e('s_mov_b32 s78, 0x05040100'); a.e('s_mov_b32 s79, 0x07060302')
    for kk in range(8):
        for r in range(4):
            a.e(f'v_perm_b32 v{V_WP+4*kk+r}, v{V_WI+4*r+(kk>>1)}, v{V_WR+4*r+(kk>>1)}, s{78+(kk&1)}')
    a.e(f'''v_and_b32 v{T0+4}, 3, v0
    v_lshlrev_b32 v{T0+5}, 16, v{T0+4}
    v_lshrrev_b32 v{T0+6}, 2, v0
    v_lshl_add_u32 v{T0+5}, v{T0+6}, 4, v{T0+5}
    s_lshl_b32 s76, s49, 2
    v_add_u32 v{T0+4}, s76, v{T0+4}
    v_cmp_eq_u32 vcc, 0, v{T0+4}
    v_mov_b32 v{T0+6}, {OOB}
    v_cndmask_b32 v{T0+6}, v{T0+5}, v{T0+6}, vcc
    s_lshl_b32 s76, s49, 18
    s_add_u32 s76, s76, s63
    s_add_u32 s76, s76, {WS_WT}''')
    for kk in range(8):
        a.e(f'buffer_store_dwordx4 {vr(V_WP+4*kk,4)}, v{T0+6 if kk==0 else T0+5}, {srd(S_WS)}, s76 offen {cfg.f("stW")}')
        if kk<7: a.e('s_add_u32 s76, s76, 8192')
    a.cond_end(); a.e('L_a_w3:')
    a.e('s_cmp_lg_u32 s66, 0'); a.e('s_cbranch_scc1 L_a_w2')
    a.wait_vm(tok_role); a.cond_begin()
    for n in range(8): a.e(f'v_lshlrev_b32 v{V_SP+n}, 16, v{V_SP+n}')
    s=V_SP; t=V_B1S
    a.e(f'''v_add_f32 v{t}, v{s}, v{s+2}
    v_add_f32 v{t+1}, v{s+1}, v{s+3}
    v_sub_f32 v{t+2}, v{s+4}, v{s+6}
    v_sub_f32 v{t+3}, v{s+5}, v{s+7}
    v_add_f32 v{t+4}, v{t}, v{t+1}
    v_add_f32 v{t+5}, v{t+2}, v{t+3}
    v_sub_f32 v{t+6}, v{t}, v{t+1}
    v_sub_f32 v{t+7}, v{t+2}, v{t+3}
    v_mul_f32 v{t+4}, {fl(0.25)}, v{t+4}
    v_mul_f32 v{t+5}, {fl(0.25)}, v{t+5}
    v_mul_f32 v{t+6}, {fl(0.25)}, v{t+6}
    v_mul_f32 v{t+7}, {fl(0.25)}, v{t+7}
    v_cvt_pk_bf16_f32 v{t}, v{t+4}, v{t+5}
    v_cvt_pk_bf16_f32 v{t+1}, v{t+6}, v{t+7}
    v_lshlrev_b32 v{t+2}, 4, v1
    v_lshl_add_u32 v{t+2}, v2, 2, v{t+2}
    s_add_u32 s77, s63, {WS_QT}
    s_add_u32 s76, s63, {WS_WT}
    buffer_store_dword v{t}, v{t+2}, {srd(S_WS)}, s76 offen {cfg.f("stW")}
    buffer_store_dword v{t+1}, v{t+2}, {srd(S_WS)}, s77 offen {cfg.f("stW")}''')
    a.cond_end(); a.e('L_a_w2:')
    a.wait_vm(tok_c[5]) if False else None
    a.e(f's_waitcnt vmcnt({cfg.x.get("b5n",18)})') if False else None
    wait_role(tok_c[5],16,10); a.e('s_barrier')
    if cfg.fine==3: stamp(a,cfg,33)
    m_g2_ids(a,cfg)
    w2_dma_addr(a,V_FW2D,244)
    wait_role(tok_c[6],8,2); a.e('s_barrier')
    if cfg.fine==3: stamp(a,cfg,34)
    if two:
        wait_role(tok_c[7],8,2); a.e('s_barrier')
    else:
        a.e('s_waitcnt vmcnt(0)'); a.e('s_barrier')
        a.e('s_and_b32 s92, s5, 3'); a.e('s_lshl_b32 s92, s92, 6')
        ssignal(a,S_DBG,'s92')
    if cfg.fine==3: stamp(a,cfg,35)
    a.e('s_barrier')
    if two:
        a.e(f's_cmp_eq_u32 {wv}, 3'); a.e('s_cbranch_scc1 L_f_s1b')
        a.e('s_cmp_lg_u32 s66, 0'); a.e('s_cbranch_scc1 L_f_nos1b')
        a.e('L_f_s1b:')
        a.cond_begin()
        a.e(f"""s_waitcnt vmcnt(0)
        s_and_b32 s92, s5, 3
        s_lshl_b32 s92, s92, 6
        s_add_u32 s92, s92, 4
        v_mov_b32 v{V_SIG}, 1
        v_mov_b32 v{V_SIG+1}, 0
        s_mov_b64 exec, 1
        buffer_atomic_add v{V_SIG}, v{V_SIG+1}, {srd(S_DBG)}, s92 offen sc1
        s_mov_b64 exec, -1""")
        a.cond_end(); a.e('L_f_nos1b:')
    stamp(a,cfg,4)
    def w2slots(lo,hi):
        for t in range(lo,hi):
            for v in range(4): a.bg_push(w2_group(t,v,V_FW2D))
        a.bg_flush()
    w2slots(0,cfg.x.get('w2pre',4))
    stamp(a,cfg,5)
    a.e(f's_cmp_lg_u32 {wv}, 0'); a.e('s_cbranch_scc1 L_f_s1'); a.cond_begin()
    if cfg.x.get('s1drain',1): a.e('s_waitcnt vmcnt(0)')
    a.e('s_mov_b32 s93, 0')
    spin_global(a,S_DBG,'s93',4,64,64)
    p2_t_loads(a,cfg)
    if two:
        a.e('s_mov_b32 s93, 4')
        spin_global(a,S_DBG,'s93',4,64,72)
    a.cond_end(); a.e('L_f_s1:')
    stamp(a,cfg,6)
    a.e('s_waitcnt vmcnt(0)'); a.e('s_barrier')
    a.e(f's_lshl_b32 s92, s6, 7'); a.e(f's_add_u32 s92, s92, {WS_CNT}')
    ssignal(a,S_WS,'s92')
    stamp(a,cfg,7)
    w2slots(cfg.x.get('w2pre',4),8)
    a.e('s_waitcnt vmcnt(0)'); a.e('s_barrier')
    a.e('s_lshl_b32 s56, s4, 5'); a.e('s_add_u32 s56, s56, s5')
    a.e('s_cmp_lg_u32 s56, 0'); a.e('s_cbranch_scc1 L_f_nospec'); a.cond_begin()
    a.e('s_barrier')
    a.cond_end(); a.e('L_f_nospec:')
    a.e('s_barrier')
    a.e(f's_and_b32 s92, s2, {NS3-1}'); a.e('s_lshl_b32 s92, s92, 7'); a.e(f's_add_u32 s92, s92, {WS_CNT+16*128}')
    ssignal(a,S_WS,'s92')
    T0=80; TA=92
    a.e(f"""s_lshl_b32 s75, s68, 6
    v_add_u32 v{T0}, s75, v1
    v_cvt_f32_u32 v{T0}, v{T0}
    s_lshl_b32 s75, {wv}, 6
    v_lshlrev_b32 v{T0+1}, 2, v2
    v_add_u32 v{T0+1}, s75, v{T0+1}
    v_cvt_f32_u32 v{T0+1}, v{T0+1}""")
    for c in range(4):
        a.e(f'v_add_f32 v{T0+2+c}, {fl(16*c)}, v{T0}' if c else f'v_mov_b32 v{T0+2}, v{T0}')
        a.e(f'v_mul_f32 v{T0+2+c}, {fl(1/512)}, v{T0+2+c}')
        a.e(f'v_mul_f32 v{T0+6+c}, v{T0+1}, v{T0+2+c}')
    def pk(d): return lambda c,s: a.e(f'v_cvt_pk_bf16_f32 v{d}, v{c}, v{s}')
    angles(a,[(T0+2+c,T0+6+c,16*psi+u,(None,None,pk(V_GF+16*psi+4*c+u)),False) for (psi,c,u) in G_ITEMS],TA)
    a.e(f"""s_cmp_eq_u32 {wv}, 0
    s_cselect_b32 s76, 0xffff, 0
    s_mov_b32 s77, 0
    v_mov_b32 v{T0}, {hex(0xBF003F00)}
    v_and_b32 v{T0+1}, 1, v1
    v_lshlrev_b32 v{T0+1}, 31, v{T0+1}
    v_xor_b32 v{T0}, v{T0}, v{T0+1}""")
    for c in range(4): a.e(f'v_cndmask_b32 v{V_GF+4*c}, v{V_GF+4*c}, v{T0}, s[76:77]')
    a.e(f'v_add_u32 v7, s71, v{V_L16}')
    a.e('s_barrier')
    for psi in range(4):
        for c in range(4):
            a.e(f'ds_write_b128 v7, {vr(V_GF+16*psi+4*c,4)} offset:{GSLOT[psi]*4096+c*1024}')
    a.e('s_waitcnt lgkmcnt(0)'); a.e('s_barrier')
    stamps_flush(a,cfg)
    a.e(f's_branch {end}')

def p2_t_loads(a,cfg):
    T0=64
    a.e(f'''s_lshl_b32 s56, s4, 5
    s_add_u32 s56, s56, s5
    v_lshrrev_b32 v{T0}, 5, v0
    v_lshlrev_b32 v{T0}, 18, v{T0}
    v_bfe_u32 v{T0+1}, v0, 1, 4
    v_lshl_add_u32 v{T0}, v{T0+1}, 13, v{T0}
    v_and_b32 v{T0+1}, 1, v0
    v_lshl_add_u32 v{T0}, v{T0+1}, 4, v{T0}
    s_lshl_b32 s57, s56, 5
    s_add_u32 s57, s57, {WS_T}''')
    for ks in range(4):
        for mb in range(2):
            a.e(f's_mov_b32 m0, {TB_BASE+2048*ks+1024*mb}')
            a.e(f's_add_u32 s58, s57, {ks*524288+mb*131072}')
            a.e(f'buffer_load_dwordx4 v{T0}, {srd(S_WS)}, s58 offen {cfg.f("ldT")} lds')

def p2_small_loads(a,cfg):
    V_W,V_GT,V_Q,T0=P2['V_W'],P2['V_GT'],P2['V_Q'],P2['T0']
    a.e(f'''s_lshl_b32 s56, s4, 5
    s_add_u32 s56, s56, s5
    s_lshl_b32 s60, s56, 13
    s_lshl_b32 s61, {wv}, 11
    s_add_u32 s60, s60, s61
    s_add_u32 s62, s60, {WS_WT}
    s_add_u32 s63, s61, {WS_G}
    s_add_u32 s64, s61, {WS_QT}''')
    for eh in range(2): a.e(f'buffer_load_dwordx4 {vr(V_W+4*eh,4)}, v{V_L16}, {srd(S_WS)}, s62 offen offset:{1024*eh} {cfg.f("ldW")}')
    for nb in range(2): a.e(f'buffer_load_dwordx4 {vr(V_GT+4*nb,4)}, v{V_L16}, {srd(S_WS)}, s63 offen offset:{1024*nb} {cfg.f("ldW")}')
    a.e(f'''s_cmp_eq_u32 s56, 0
    s_cselect_b32 s65, 0, {OOB}
    v_add_u32 v{T0+2}, s65, v{V_L16}''')
    for eh in range(2): a.e(f'buffer_load_dwordx4 {vr(V_Q+4*eh,4)}, v{T0+2}, {srd(S_WS)}, s64 offen offset:{1024*eh} {cfg.f("ldW")}')

def p2_table_parts(a,cfg):
    p=P2; T0=232; TA=200
    def pk(dr,di):
        def f(c,s):
            a.e(f'v_cvt_pk_bf16_f32 v{dr}, v{c}, v{s}')
            a.e(f'v_cvt_pk_bf16_f32 v{di}, -v{s}, v{c}')
        return f
    def part0():
        a.e(f'''s_lshl_b32 s83, {wv}, 4
        v_add_u32 v{T0}, s83, v1
        v_cvt_f32_u32 v{T0}, v{T0}
        v_lshlrev_b32 v{T0+2}, 2, v2
        v_cvt_f32_u32 v{T0+2}, v{T0+2}
        v_mul_f32 v{T0+1}, {fl(1/64)}, v{T0}
        v_mul_f32 v{T0+3}, v{T0+2}, v{T0+1}''')
        angles(a,[(T0+1,T0+3,16*ks+u,(None,None,pk(p['V_F64R']+4*ks+u,p['V_F64I']+4*ks+u)),False) for ks in range(3) for u in range(4)],TA)
    def part1():
        angles(a,[(T0+1,T0+3,16*ks+u,(None,None,pk(p['V_F64R']+4*ks+u,p['V_F64I']+4*ks+u)),False) for ks in range(3,4) for u in range(4)],TA)
        a.e(f'''v_mul_f32 v{T0+1}, {fl(1/2048)}, v{T0}
        v_mul_f32 v{T0+3}, v{T0+2}, v{T0+1}''')
        angles(a,[(T0+1,T0+3,16*mb+r,(p['V_T1C']+4*mb+r,p['V_T1S']+4*mb+r,None),True) for mb in range(2) for r in range(4)],TA)
    def part2():
        a.e(f'v_cvt_f32_u32 v{T0+7}, v1')
        for eh in range(2):
            a.e(f'''v_add_f32 v{T0+1}, {fl(16*eh)}, v{T0+7}
            v_mul_f32 v{T0+1}, {fl(1/32)}, v{T0+1}
            v_mul_f32 v{T0+3}, v{T0+2}, v{T0+1}''')
            angles(a,[(T0+1,T0+3,16*mb+u,(None,None,pk(p['V_F32R']+8*eh+4*mb+u,p['V_F32I']+8*eh+4*mb+u)),False) for mb in range(2) for u in range(4)],TA)
    def part3():
        a.e(f'''v_cvt_f32_u32 v{T0}, s83
        v_add_f32 v{T0+2}, v{T0}, v{T0+2}''')
        for nb in range(2):
            a.e(f'''v_add_f32 v{T0+1}, {fl(16*nb)}, v{T0+7}
            v_mul_f32 v{T0+1}, {fl(1/2048)}, v{T0+1}
            v_mul_f32 v{T0+3}, v{T0+2}, v{T0+1}''')
            angles(a,[(T0+1,T0+3,r,(p['V_T3C']+4*nb+r,p['V_T3S']+4*nb+r,None),True) for r in range(4)],TA)
    return [part0,part1,part2,part3]

def p2_compute(a,cfg,tok_w):
    p=P2
    V_U,V_W,V_GT,T0=p['V_U'],p['V_W'],p['V_GT'],p['T0']
    V_F64R,V_F64I,V_F32R,V_F32I=p['V_F64R'],p['V_F64I'],p['V_F32R'],p['V_F32I']
    V_T1C,V_T1S,V_T3C,V_T3S=p['V_T1C'],p['V_T1S'],p['V_T3C'],p['V_T3S']
    V_DR,V_DI,V_B=p['V_DR'],p['V_DI'],p['V_B']; TT=200
    a.e(f'''v_lshrrev_b32 v{T0+4}, 1, v2
    v_lshlrev_b32 v{T0+4}, 5, v{T0+4}
    v_lshl_add_u32 v{T0+4}, v1, 1, v{T0+4}
    v_and_b32 v{T0+5}, 1, v2
    v_add_u32 v{T0+4}, v{T0+4}, v{T0+5}
    v_lshlrev_b32 v{T0+4}, 4, v{T0+4}
    v_add_u32 v{T0+4}, {TB_BASE}, v{T0+4}''')
    for ks in range(4):
        for mb in range(2):
            a.e(f'ds_read_b128 {vr(V_U+16*mb+4*ks,4)}, v{T0+4} offset:{2048*ks+1024*mb}')
    V_WR=216; V_WI=224
    a.wait_vm(tok_w)
    for e in range(8):
        a.e(f'v_lshlrev_b32 v{V_WR+e}, 16, v{V_W+e}')
        a.e(f'v_and_b32 v{V_WI+e}, 0xffff0000, v{V_W+e}')
    for ks in range(4):
        a.e(f's_waitcnt lgkmcnt({6-2*ks})')
        for mb in range(2):
            A=vr(V_U+16*mb+4*ks,4)
            for (D,Fm) in((V_DR,V_F64R),(V_DI,V_F64I)):
                d=vr(D+4*mb,4)
                a.e(f'v_mfma_f32_16x16x32_bf16 {d}, {A}, {vr(Fm+4*ks,4)}, {d if ks else 0}')
    for e in range(8): a.e(f'v_mul_f32 v{V_GT+e}, {fl(2.0**-19)}, v{V_GT+e}')
    for mb in range(2): cmul_pack(a,V_DR+4*mb,V_DI+4*mb,V_T1C+4*mb,V_T1S+4*mb,V_B+4*mb,TT)
    for mb in range(2):
        for eh in range(2):
            for (D,Fm) in((V_DR,V_F32R),(V_DI,V_F32I)):
                d=vr(D+4*eh,4)
                a.e(f'v_mfma_f32_16x16x32_bf16 {d}, {vr(Fm+8*eh+4*mb,4)}, {vr(V_B+4*mb,4)}, {d if mb else 0}')
    a.e(f'''s_lshl_b32 s65, {wv}, 11
    s_add_u32 s65, s65, {XB_BASE}
    v_add_u32 v{T0+4}, s65, v{V_L16}
    v_add_u32 v{T0+5}, {XB_BASE}, v{V_L16}''')
    a.e('s_cmp_lg_u32 s56, 0')
    a.e('s_cbranch_scc0 L_p2_special')
    for eh in range(2): cmul_pack(a,V_DR+4*eh,V_DI+4*eh,V_WR+4*eh,V_WI+4*eh,V_B+4*eh,TT,negim=True)
    a.e('L_p2_join:')
    for ks in range(2):
        for nb in range(2):
            for (D,Fm) in((V_DR,V_F32R),(V_DI,V_F32I)):
                d=vr(D+4*nb,4)
                a.e(f'v_mfma_f32_16x16x32_bf16 {d}, {vr(V_B+4*ks,4)}, {vr(Fm+8*nb+4*ks,4)}, {d if ks else 0}')
    for nb in range(2):
        cmul_pack(a,V_DR+4*nb,V_DI+4*nb,V_T3C+4*nb,V_T3S+4*nb,V_B+4*nb,TT)
        a.e(f'ds_write_b128 v{T0+4}, {vr(V_B+4*nb,4)} offset:{1024*nb}')
    a.e('s_waitcnt lgkmcnt(0)')
    a.e('s_barrier')
    V_X=V_U
    for ks in range(4):
        for nb in range(2):
            a.e(f'ds_read_b128 {vr(V_X+8*ks+4*nb,4)}, v{T0+5} offset:{2048*ks+1024*nb}')
    for ks in range(4):
        a.e(f's_waitcnt lgkmcnt({6-2*ks})')
        for nb in range(2):
            for (D,Fm) in((V_DR,V_F64R),(V_DI,V_F64I)):
                d=vr(D+4*nb,4)
                a.e(f'v_mfma_f32_16x16x32_bf16 {d}, {vr(Fm+4*ks,4)}, {vr(V_X+8*ks+4*nb,4)}, {d if ks else 0}')
    a.e(f's_add_u32 s62, s60, {WS_Y}')
    for nb in range(2):
        for h in range(2):
            a.e(f'v_pk_mul_f32 {vr(V_DR+4*nb+2*h,2)}, {vr(V_DR+4*nb+2*h,2)}, {vr(V_GT+4*nb+2*h,2)}')
            a.e(f'v_pk_mul_f32 {vr(V_DI+4*nb+2*h,2)}, {vr(V_DI+4*nb+2*h,2)}, {vr(V_GT+4*nb+2*h,2)}')
        for r in range(4): a.e(f'v_cvt_pk_bf16_f32 v{V_B+4*nb+r}, v{V_DR+4*nb+r}, v{V_DI+4*nb+r}')
        a.e(f'buffer_store_dwordx4 {vr(V_B+4*nb,4)}, v{V_L16}, {srd(S_WS)}, s62 offen offset:{1024*nb} {cfg.f("stY")}')

def p2_special(a,cfg):
    p=P2
    V_U,V_Q,T0,V_DR,V_DI,V_B=p['V_U'],p['V_Q'],p['T0'],p['V_DR'],p['V_DI'],p['V_B']
    V_WR=216; V_WI=224
    a.e('L_p2_special:')
    a.cond_begin()
    V_J=T0+8; V_ZA=V_U+16
    a.e(f'''s_lshl_b32 s65, {wv}, 4
    v_lshlrev_b32 v{V_J}, 8, v2
    v_add3_u32 v{V_J}, v{V_J}, v1, s65''')
    for eh in range(2):
        for r in range(4):
            n=1024*eh+64*r
            a.e(f'v_add_u32 v{T0}, {n}, v{V_J}')
            a.e(f'v_lshlrev_b32 v{T0}, 2, v{T0}')
            a.e(f'v_cvt_pk_bf16_f32 v{T0+2}, v{V_DR+4*eh+r}, v{V_DI+4*eh+r}')
            a.e(f'v_add_u32 v{T0}, {ZR_BASE}, v{T0}')
            a.e(f'ds_write_b32 v{T0}, v{T0+2}')
    a.e('s_waitcnt lgkmcnt(0)')
    a.e('s_barrier')
    for eh in range(2):
        for r in range(4):
            n=1024*eh+64*r
            a.e(f'v_sub_u32 v{T0}, {2048-n}, v{V_J}')
            a.e(f'v_and_b32 v{T0}, 2047, v{T0}')
            a.e(f'v_lshlrev_b32 v{T0}, 2, v{T0}')
            a.e(f'v_add_u32 v{T0}, {ZR_BASE}, v{T0}')
            a.e(f'ds_read_b32 v{V_ZA+4*eh+r}, v{T0}')
    a.e('s_waitcnt lgkmcnt(0)')
    for e in range(8):
        zr=V_DR+e; zi=V_DI+e; pr=V_WR+e; pi=V_WI+e; ar_=T0+6; ai=T0+7
        qr=T0; qi=T0+1; yr=T0+2; yi=T0+3
        a.e(f'''v_lshlrev_b32 v{qr}, 16, v{V_Q+e}
        v_and_b32 v{qi}, 0xffff0000, v{V_Q+e}
        v_lshlrev_b32 v{ar_}, 16, v{V_ZA+e}
        v_and_b32 v{ai}, 0xffff0000, v{V_ZA+e}
        v_mul_f32 v{yr}, v{zr}, v{pr}
        v_fma_f32 v{yr}, -v{zi}, v{pi}, v{yr}
        v_fma_f32 v{yr}, v{ar_}, v{qr}, v{yr}
        v_fma_f32 v{yr}, v{ai}, v{qi}, v{yr}
        v_mul_f32 v{yi}, v{zr}, v{pi}
        v_fma_f32 v{yi}, v{zi}, v{pr}, v{yi}
        v_fma_f32 v{yi}, v{ar_}, v{qi}, v{yi}
        v_fma_f32 v{yi}, -v{ai}, v{qr}, v{yi}
        v_cvt_pk_bf16_f32 v{V_B+e}, v{yr}, -v{yi}''')
    a.cond_end()
    a.e('s_branch L_p2_join')

HEADER='''; Gated mix of a GFNet spectral filter and a dense->mish->dense block, one persistent launch.
; (text generated by the author's own generator script; 256 workgroups, one per CU, hand-offs through counters)
'''
def build(stamps=False,off=(),**kw):
    cfg=Cfg(); cfg.stamps=stamps; cfg.off=set(off); cfg.x=kw; cfg.fine=kw.get('fine',0)
    label=NAME+'_kernel'
    a=Asm(); end='L_end'
    prologue(a,cfg,end)
    sv=(a.vm,a.lg)
    m_stream(a,cfg,end)
    nbM=sum(1 for i in a.items if i.op=='s_barrier'); n0=len(a.items)
    a.vm,a.lg=sv; a.bg_rate=0; assert not a.bg
    f_stream(a,cfg,end)
    nbF=sum(1 for i in a.items[n0:] if i.op=='s_barrier')
    a.e(f'{end}:'); a.e('s_endpgm')
    txt=a.text()
    errs=[]
    for role in (False,True):
        for nm,pol in (('fall',lambda i,n:i.target.endswith('_done') or (role and i.target=='L_F')),
                       ('taken',lambda i,n:((not i.target.startswith('L_end')) and n==0 and (i.target!='L_F' or role)))):
            errs+=verify_waits(a.out,pol,('F' if role else 'M')+nm)
    for e in sorted(set(errs))[:30]: print('WAITERR',e,file=sys.stderr)
    print(dict(a.count()),'barriers M',nbM,'F',nbF,file=sys.stderr)
    out=HEADER+f'; @launch grid=(256,1,1) block=(512,1,1) lds={LDS_TOTAL}\n'
    out+='.amdgcn_target "amdgcn-amd-amdhsa--gfx950"\n.text\n'
    out+=f'.globl {label}\n.p2align 8\n.type {label},@function\n{label}:\n{txt}'
    out+=f'''.section .rodata,"a"
.p2align 6
.amdhsa_kernel {label}
  .amdhsa_next_free_vgpr 256
  .amdhsa_next_free_sgpr 102
  .amdhsa_accum_offset 256
  .amdhsa_group_segment_fixed_size 0
  .amdhsa_kernarg_size 88
  .amdhsa_user_sgpr_count 2
  .amdhsa_user_sgpr_kernarg_segment_ptr 1
  .amdhsa_system_sgpr_workgroup_id_x 1
.end_amdhsa_kernel
'''
    return out

if __name__=='__main__':
    mode=sys.argv[1] if len(sys.argv)>1 else 'persist'
    kw={}
    for x in sys.argv[3:]:
        k,v=x.split('='); kw[k]=int(v) if v.lstrip('-').isdigit() else v
    off=kw.pop('off','').split(',') if 'off' in kw else ()
    txt=build(stamps=(mode=='stamps'),off=off,**kw)
    open(sys.argv[2] if len(sys.argv)>2 else 'out.s','w').write(txt)
```

```python
import sys, os, struct
from dsl import Asm, verify_waits

NAME='gated_mix__spectral_gfnet__dense_activation_mish__prompt'
WS_T   =0x000000
WS_WT  =0x200000
WS_QT  =0x400000
WS_G   =0x402000
WS_CNT =0x404000
WS_Y   =0x600000
WS_ACT =0x800000
WS_STAMP=0x1000000
WS_SIZE=0x1080000
RT_STRIDE=56*4096
S_X,S_WR,S_WI,S_W1,S_B1,S_W2,S_GW,S_OUT,S_WS,S_DBG=8,12,16,20,24,28,32,36,40,44
def srd(n): return f's[{n}:{n+3}]'
SRDS=[(S_X,0,2048*1024),(S_WR,8,2048*514),(S_WI,16,2048*514),(S_W1,32,512*3584),(S_B1,40,3584),
      (S_W2,48,1792*1024),(S_GW,56,1024),(S_OUT,64,2048*1024),(S_WS,80,WS_SIZE),(S_DBG,72,256)]
def vr(b,n=1): return f'v{b}' if n==1 else f'v[{b}:{b+n-1}]'
def fl(x): return hex(struct.unpack('<I',struct.pack('<f',float(x)))[0])
S_WV=3; S_W8=49
wv=f's{S_WV}'
LOG2E=1.4426950408889634
OOB=0x40000000
SLEEP=int(os.environ.get('SLEEP','8'))
SPIN_MAX=50000
SLOT=31744
SB=lambda c:(c%5)*SLOT
XA_BASE=4*SLOT; XA_PITCH=1152
GW_LDS=5*SLOT; B1_LDS=GW_LDS+1024
LC_BASE=GW_LDS+2048
TB_BASE=131072; XB_BASE=139264; ZR_BASE=147456
LDS_TOTAL=163840
V_L16=3
V_PD,V_PA,V_SIG=250,251,252

class Cfg:
    stamps=False; dbgst=False; sc='sc1'
    off=set()
    def f(self,tag): return '' if (tag in self.off or 'all' in self.off) else self.sc

def stamp(a,cfg,idx):
    if not cfg.stamps: return
    r=a.bg_rate; a.bg_rate=0
    a.e('s_memrealtime s[96:97]'); a.e('s_waitcnt lgkmcnt(0)'); a.e(f'v_writelane_b32 v255, s96, {idx}')
    a.bg_rate=r
def stamps_flush(a,cfg):
    if not cfg.stamps: return
    a.e(f"""v_lshrrev_b32 v254, 6, v249
    s_nop 0
    v_readfirstlane_b32 s98, v254
    s_lshl_b32 s99, s2, 3
    s_add_u32 s98, s98, s99
    s_lshl_b32 s98, s98, 8
    s_add_u32 s98, s98, {WS_STAMP}
    v_lshlrev_b32 v254, 2, v0
    buffer_store_dword v255, v254, {srd(S_WS)}, s98 offen""")

def signal(a,S,soff):
    vt=V_SIG
    a.e(f"""s_cmp_eq_u32 {wv}, 0
    s_cselect_b32 s95, 0, {OOB}
    v_mov_b32 v{vt}, 1
    v_mov_b32 v{vt+1}, s95
    s_mov_b64 exec, 1
    buffer_atomic_add v{vt}, v{vt+1}, {srd(S)}, {soff} offen sc1
    s_mov_b64 exec, -1""")

def ssignal(a,S,soff):
    lab=f'L_ss{len(a.items)}'
    a.e(f's_cmp_lg_u32 {wv}, 0'); a.e(f's_cbranch_scc1 {lab}')
    a.e(f's_atomic_add s90, s[{S}:{S+1}], {soff}')
    a.e(f'{lab}:')

def spin_global(a,S,soff,nl,stride,target):
    lab=f'L_poll{len(a.items)}'
    a.e(f'v_mul_u32_u24 v{V_PA}, {stride}, v0')
    a.e(f's_mov_b64 exec, {hex((1<<nl)-1)}')
    a.e(f's_mov_b32 s94, 0')
    a.e(f'{lab}:')
    a.e(f'buffer_load_dword v{V_PD}, v{V_PA}, {srd(S)}, {soff} offen sc1')
    a.e(f's_add_u32 s94, s94, 1')
    a.e(f's_waitcnt vmcnt(0)')
    a.e(f'v_cmp_gt_u32 vcc, {target}, v{V_PD}')
    a.e(f's_cbranch_vccz {lab}_done')
    a.e(f's_cmp_gt_u32 s94, {SPIN_MAX}')
    a.e(f's_cbranch_scc1 {lab}_done')
    a.e(f's_sleep {SLEEP}')
    a.e(f's_branch {lab}')
    a.e(f'{lab}_done:')
    a.e('s_mov_b64 exec, -1')

def poll_w0(a,S,soff,nl,stride,target):
    lab=f'L_pw{len(a.items)}'
    a.e(f's_cmp_lg_u32 {wv}, 0'); a.e(f's_cbranch_scc1 {lab}')
    a.cond_begin(); spin_global(a,S,soff,nl,stride,target); a.cond_end()
    a.e(f'{lab}:')

V_LC=248
def lc_add(a,idx,rtn=None):
    a.e(f'v_mov_b32 v{V_LC-1}, 1')
    a.e('s_mov_b64 exec, 1')
    if rtn is None: a.e(f'ds_add_u32 v{V_LC}, v{V_LC-1} offset:{4*idx}')
    else: a.e(f'ds_add_rtn_u32 v{rtn}, v{V_LC}, v{V_LC-1} offset:{4*idx}')
    a.e('s_mov_b64 exec, -1')
def lc_wait(a,idx,target):
    lab=f'L_lc{len(a.items)}'
    a.e('s_mov_b32 s94, 0')
    a.e(f'{lab}:')
    a.e(f'ds_read_b32 v{V_LC-1}, v{V_LC} offset:{4*idx}')
    a.e('s_add_u32 s94, s94, 1')
    a.e('s_waitcnt lgkmcnt(0)')
    a.e(f'v_readfirstlane_b32 s93, v{V_LC-1}')
    a.e(f's_cmp_ge_u32 s93, {target}')
    a.e(f's_cbranch_scc1 {lab}_done')
    a.e('s_sleep 1')
    a.e(f's_cmp_lt_u32 s94, {20*SPIN_MAX}')
    a.e(f's_cbranch_scc1 {lab}')
    a.e(f'{lab}_done:')

def angles(a,items,T):
    for i0 in range(0,len(items),4):
        grp=items[i0:i0+4]; src=[]
        for j,(sl,base,n,fin,neg) in enumerate(grp):
            if n==0: src.append(f'v{base}')
            else:
                a.e(f'v_fmamk_f32 v{T+j}, v{sl}, {fl(n)}, v{base}'); src.append(f'v{T+j}')
        outs=[]
        for j,(sl,base,n,fin,neg) in enumerate(grp):
            c,s=fin[0] if fin[0] is not None else T+4+j, fin[1] if fin[1] is not None else T+8+j
            a.e(f'v_cos_f32 v{c}, {src[j]}')
            a.e(f'v_sin_f32_e64 v{s}, -{src[j]}' if neg else f'v_sin_f32 v{s}, {src[j]}')
            outs.append((c,s))
        for j,(sl,base,n,fin,neg) in enumerate(grp):
            if fin[2]: fin[2](*outs[j])

def cmul_pack(a,c,s,tc,ts,dst,TT,n=4,negim=False):
    H=n//2
    for h in range(H): a.e(f'v_pk_mul_f32 {vr(TT+4*h,2)}, {vr(s+2*h,2)}, {vr(ts+2*h,2)}')
    for h in range(H): a.e(f'v_pk_mul_f32 {vr(TT+4*h+2,2)}, {vr(s+2*h,2)}, {vr(tc+2*h,2)}')
    for h in range(H): a.e(f'v_pk_fma_f32 {vr(TT+4*h,2)}, {vr(c+2*h,2)}, {vr(tc+2*h,2)}, {vr(TT+4*h,2)} neg_lo:[0,0,1] neg_hi:[0,0,1]')
    for h in range(H): a.e(f'v_pk_fma_f32 {vr(TT+4*h+2,2)}, {vr(c+2*h,2)}, {vr(ts+2*h,2)}, {vr(TT+4*h+2,2)}')
    ng='-' if negim else ''
    for h in range(H):
        a.e(f'v_cvt_pk_bf16_f32 v{dst+2*h}, v{TT+4*h}, {ng}v{TT+4*h+2}')
        a.e(f'v_cvt_pk_bf16_f32 v{dst+2*h+1}, v{TT+4*h+1}, {ng}v{TT+4*h+3}')

def prologue(a,cfg,end):
    a.e('s_cmp_ge_u32 s2, 256'); a.e(f's_cbranch_scc1 {end}')
    for (n,off,sz) in SRDS: a.e(f's_load_dwordx2 s[{n}:{n+1}], s[0:1], {off}')
    if cfg.x.get('pf_code') and cfg.x.get('pf_top'):
        nw=cfg.x['pf_top']
        a.e('s_getpc_b64 s[64:65]')
        a.e('v_lshrrev_b32 v56, 6, v0'); a.e('v_and_b32 v57, 63, v0')
        a.e('v_readfirstlane_b32 s66, v56')
        a.e('v_lshlrev_b32 v57, 4, v57')
        a.e('s_lshr_b32 s67, s2, 3'); a.e(f's_mul_i32 s67, s67, {nw}'); a.e('s_add_u32 s67, s67, s66')
        a.e('s_lshl_b32 s68, s67, 10')
        a.e('s_add_u32 s64, s64, s68'); a.e('s_addc_u32 s65, s65, 0')
        a.e('v_mov_b32 v59, s65'); a.e('v_add_co_u32 v58, vcc, s64, v57'); a.e('s_nop 1'); a.e('v_addc_co_u32 v59, vcc, 0, v59, vcc')
        a.e(f's_cmp_lt_u32 s66, {nw}'); a.e('s_cbranch_scc0 L_nopf0'); a.cond_begin()
        a.e(f's_cmp_lt_u32 s67, {cfg.x["pf_code"]}'); a.e('s_cbranch_scc0 L_nopf0')
        a.e('global_load_dwordx4 v[52:55], v[58:59], off')
        a.cond_end(); a.e('L_nopf0:')
    if cfg.stamps: a.e('v_mov_b32 v249, v0')
    a.e('v_lshrrev_b32 v1, 6, v0')
    a.e('v_and_b32 v0, 63, v0')
    a.e('v_readfirstlane_b32 s48, v1')
    a.e('v_and_b32 v1, 15, v0')
    a.e('v_lshrrev_b32 v2, 4, v0')
    a.e(f'v_lshlrev_b32 v{V_L16}, 4, v0')
    for (n,off,sz) in SRDS:
        a.e(f's_mov_b32 s{n+2}, {hex(sz)}'); a.e(f's_mov_b32 s{n+3}, 0x20000')
    a.e(f'''s_mov_b32 s51, s48
    s_and_b32 {wv}, s48, 3
    s_lshr_b32 s50, s48, 2
    s_and_b32 s4, s2, 7
    s_lshr_b32 s5, s2, 3
    s_lshr_b32 s6, s4, 1
    s_lshl_b32 s6, s6, 2
    s_lshr_b32 s56, s5, 3
    s_add_u32 s6, s6, s56
    s_and_b32 s7, s4, 1
    s_lshl_b32 s7, s7, 3
    s_and_b32 s56, s5, 7
    s_add_u32 s7, s7, s56
    s_and_b32 s48, s7, 1''')
    a.e('s_waitcnt lgkmcnt(0)')
    if cfg.x.get('pf_code') and not cfg.x.get('pf_top'):
        a.e('s_getpc_b64 s[64:65]')
        a.e('s_lshl_b32 s66, s5, 10')
        a.e('s_add_u32 s64, s64, s66'); a.e('s_addc_u32 s65, s65, 0')
        a.e(f'v_mov_b32 v57, s65'); a.e(f'v_add_co_u32 v56, vcc, s64, v{V_L16}'); a.e('s_nop 1'); a.e(f'v_addc_co_u32 v57, vcc, 0, v57, vcc')
        a.e(f's_cmp_lt_u32 s5, {cfg.x["pf_code"]}'); a.e('s_cbranch_scc0 L_nopf'); a.cond_begin()
        a.e(f's_cmp_lg_u32 s51, 2'); a.e('s_cbranch_scc1 L_nopf')
        a.e('global_load_dwordx4 v[52:55], v[56:57], off')
        a.cond_end(); a.e('L_nopf:')
    mt=str(cfg.x.get('mt','xw'))
    if mt!='0':
        a.e(f'''v_lshlrev_b32 v5, 7, v0
        v_mov_b32 v6, {OOB}
        v_cmp_gt_u32 vcc, 56, v0
        v_cndmask_b32 v6, v6, v5, vcc
        s_cmp_eq_u32 s51, 0
        s_cselect_b32 s56, 0, {OOB}
        v_add_u32 v5, s56, v5
        s_cmp_eq_u32 s51, 1
        s_cselect_b32 s56, 0, {OOB}
        v_add_u32 v7, s56, v6
        s_lshl_b32 s56, s2, 13
        s_mul_i32 s57, s2, 7168''')
        if 'x' in mt: a.e(f'buffer_load_dword v245, v5, {srd(S_X)}, s56 offen')
        if 'w' in mt: a.e(f'buffer_load_dword v245, v7, {srd(S_W1)}, s57 offen')
    if cfg.x.get('tlb'):
        a.e(f'''v_lshlrev_b32 v5, 21, v0
        v_mov_b32 v6, {OOB}
        v_cmp_gt_u32 vcc, 9, v0
        v_cndmask_b32 v5, v6, v5, vcc
        s_cmp_eq_u32 s51, 2
        s_cselect_b32 s56, 0, {OOB}
        v_or_b32 v5, s56, v5
        s_cmp_eq_u32 s51, 3
        s_cselect_b32 s56, 0, {OOB}
        v_cmp_gt_u32 vcc, 1, v0
        v_cndmask_b32 v6, v6, v0, vcc
        v_or_b32 v6, s56, v6
        buffer_load_dword v245, v5, {srd(S_WS)}, 0 offen
        buffer_load_dword v245, v6, {srd(S_OUT)}, 0 offen''')
    a.e('s_cmp_lg_u32 s50, 0'); a.e('s_cbranch_scc1 L_F')

V_GF=8
V_W2A=240; V_W2D=244
NS3=int(os.environ.get('NS3','8'))
GSLOT=[6,7,0,1]
GT0=224; GTA=234
G_ITEMS=[(psi,c,u) for psi in range(4) for c in range(4) for u in range(4)]
def m_g2_ids(a,cfg):
    a.e(f"""s_lshl_b32 s67, s4, 2
    s_lshr_b32 s68, s5, 3
    s_add_u32 s67, s67, s68
    s_and_b32 s68, s5, 7
    s_mul_i32 s69, s67, {RT_STRIDE}
    s_mul_i32 s70, {wv}, {14*4096}
    s_add_u32 s69, s69, s70
    s_add_u32 s69, s69, {WS_ACT}
    s_mul_i32 s70, {wv}, {14*32*1024}
    s_lshl_b32 s71, s68, 7
    s_add_u32 s70, s70, s71
    s_lshl_b32 s71, {wv}, 15
    s_lshr_b32 s72, s67, 1
    s_and_b32 s73, s67, 1
    s_lshr_b32 s74, s72, 2
    s_lshl_b32 s74, s74, 11
    s_lshl_b32 s75, s73, 10
    s_add_u32 s74, s74, s75
    s_and_b32 s75, s72, 3
    s_lshl_b32 s75, s75, 8
    s_add_u32 s74, s74, s75""")
def w2_dma_addr(a,V,T):
    a.e(f"""v_lshrrev_b32 v{T}, 3, v0
    v_lshlrev_b32 v{V}, 10, v{T}
    v_lshrrev_b32 v{T}, 1, v{T}
    v_and_b32 v{T}, 3, v{T}
    v_bfe_u32 v{T+1}, v0, 1, 2
    v_xor_b32 v{T}, v{T}, v{T+1}
    v_lshlrev_b32 v{T}, 1, v{T}
    v_and_b32 v{T+1}, 1, v0
    v_add_u32 v{T}, v{T}, v{T+1}
    v_lshl_add_u32 v{V}, v{T}, 4, v{V}""")
def w2_group(t,v,V):
    return [f's_add_u32 m0, s71, {(t%8)*4096+v*1024}', f's_add_u32 s55, s70, {(32*t+8*v)*1024}',
            f'buffer_load_dwordx4 v{V}, {srd(S_W2)}, s55 offen lds']

def m_stream(a,cfg,end):
    a.e('s_waitcnt lgkmcnt(0)')
    if cfg.x.get('prio0'): a.e(f's_setprio {cfg.x["prio0"]}')
    stamp(a,cfg,26)
    a.e(f'''s_xor_b32 s56, {wv}, 3
    s_or_b32 s58, s56, s2
    s_cmp_eq_u32 s58, 0
    s_cselect_b32 s56, 0, {OOB}
    v_lshlrev_b32 v5, 7, v0
    v_add_u32 v5, s56, v5
    v_mov_b32 v6, 0
    s_mov_b32 s57, {WS_CNT}
    s_mov_b32 exec_hi, 0
    buffer_store_dword v6, v5, {srd(S_WS)}, s57 offen sc1
    s_mov_b32 exec_hi, -1''')
    mt=str(cfg.x.get('mt','xw'))
    a.e(f'''s_lshr_b32 s49, s2, 5
    s_and_b32 s50, s2, 31''')
    V_B1C=60; V_B1S=68; V_TC=76; V_TS=80; V_A2=84; V_A2N=88; T0=92; TA=100
    a.e(f'''s_lshl_b32 s67, {wv}, 4
    v_add_u32 v{T0}, s67, v1
    v_cvt_f32_u32 v{T0}, v{T0}
    v_mul_f32 v{T0+1}, {fl(1/64)}, v{T0}
    v_lshlrev_b32 v{T0+2}, 2, v2
    v_cvt_f32_u32 v{T0+2}, v{T0+2}
    v_mul_f32 v{T0+3}, v{T0+2}, v{T0+1}''')
    for ks in range(2):
        for hh in range(2):
            angles(a,[(T0+1,T0+3,32*ks+16*hh+u,(None,None,None),True) for u in range(4)],TA)
            for d in range(2):
                a.e(f'v_cvt_pk_bf16_f32 v{V_B1C+4*ks+2*hh+d}, v{TA+4+2*d}, v{TA+5+2*d}')
                a.e(f'v_cvt_pk_bf16_f32 v{V_B1S+4*ks+2*hh+d}, v{TA+8+2*d}, v{TA+9+2*d}')
    a.e(f'''v_and_b32 v{T0+4}, 1, v2
    v_lshlrev_b32 v{T0+4}, 2, v{T0+4}
    v_cvt_f32_u32 v{T0+4}, v{T0+4}
    v_mul_f32 v{T0+5}, {fl(1/512)}, v{T0}
    v_mul_f32 v{T0+6}, v{T0+4}, v{T0+5}''')
    angles(a,[(T0+5,T0+6,r,(V_TC+r,V_TS+r,None),True) for r in range(4)],TA)
    a.e(f'''v_lshrrev_b32 v{T0+5}, 2, v1
    v_cvt_f32_u32 v{T0+5}, v{T0+5}
    v_mul_f32 v{T0+5}, {fl(1/8)}, v{T0+5}
    v_and_b32 v{T0+6}, 1, v1
    v_cvt_f32_u32 v{T0+6}, v{T0+6}
    v_mul_f32 v{T0+6}, {fl(0.25)}, v{T0+6}
    v_fma_f32 v{T0+6}, v{T0+4}, v{T0+5}, v{T0+6}
    v_lshrrev_b32 v{T0+7}, 1, v1
    v_and_b32 v{T0+7}, 1, v{T0+7}
    v_lshrrev_b32 v{T0}, 1, v2
    v_cmp_eq_u32 s[68:69], v{T0+7}, v{T0}
    v_and_b32 v{T0+7}, 13, v1
    v_cmp_eq_u32 vcc, 1, v{T0+7}''')
    a.e('s_and_b64 s[70:71], vcc, s[68:69]')
    angles(a,[(T0+5,T0+6,dw,(None,None,None),False) for dw in range(4)],TA)
    for dw in range(4): a.e(f'v_cvt_pk_bf16_f32 v{TA+dw}, v{TA+4+dw}, v{TA+8+dw}')
    a.e(f'v_mov_b32 v{TA+4}, 0x3f80'); a.e(f'v_mov_b32 v{TA+5}, 0xbf80')
    for dw in range(4):
        a.e(f'v_cndmask_b32 v{V_A2+dw}, 0, v{TA+dw}, s[68:69]')
        a.e(f'v_cndmask_b32 v{V_A2N+dw}, 0, v{TA+4+(dw&1)}, s[70:71]')
    V_XA=108
    a.e(f'''v_and_b32 v{T0}, 3, v0
    v_lshrrev_b32 v{T0+1}, 1, v{T0}
    v_mul_u32_u24 v{V_XA}, {XA_PITCH}, v{T0+1}
    v_and_b32 v{T0}, 1, v{T0}
    v_lshlrev_b32 v{T0}, 3, v{T0}
    v_lshrrev_b32 v{T0+1}, 2, v1
    v_lshl_add_u32 v{T0+1}, v2, 2, v{T0+1}
    v_lshlrev_b32 v{T0+1}, 4, v{T0+1}
    v_add3_u32 v{V_XA}, v{V_XA}, v{T0}, v{T0+1}
    v_add_u32 v{V_XA}, {XA_BASE}, v{V_XA}
    s_mul_i32 s72, {wv}, {2*XA_PITCH}
    s_add_u32 s72, s72, {XA_BASE}
    v_add_u32 v{V_XA+1}, s72, v{V_L16}
    v_add_u32 v{V_XA+2}, {GW_LDS}, v{V_L16}''')
    a.e(f'''s_lshl_b32 s84, s49, 3
    s_lshl_b32 s85, {wv}, 1
    s_add_u32 s84, s84, s85
    s_lshr_b32 s85, s84, 4
    s_lshl_b32 s85, s85, 11
    s_lshr_b32 s86, s50, 4
    s_lshl_b32 s86, s86, 10
    s_add_u32 s85, s85, s86
    s_lshr_b32 s86, s84, 2
    s_and_b32 s86, s86, 3
    s_lshl_b32 s86, s86, 8
    s_add_u32 s85, s85, s86
    s_and_b32 s86, s50, 15
    s_lshl_b32 s86, s86, 4
    s_add_u32 s85, s85, s86
    s_and_b32 s86, s84, 3
    s_lshl_b32 s86, s86, 2
    s_add_u32 s85, s85, s86
    s_add_u32 s85, s85, {WS_G}
    ''')
    if mt!='0' and ('W' in mt or '2' in mt):
        a.e(f'''v_lshlrev_b32 v5, 7, v0
        v_mov_b32 v6, {OOB}
        v_cmp_gt_u32 vcc, 33, v0
        v_cndmask_b32 v7, v6, v5, vcc
        v_cmp_gt_u32 vcc, 56, v0
        v_cndmask_b32 v6, v6, v5, vcc
        s_cmp_eq_u32 {wv}, 2
        s_cselect_b32 s56, 0, {OOB}
        v_add_u32 v5, s56, v7
        s_cmp_eq_u32 {wv}, 3
        s_cselect_b32 s56, 0, {OOB}
        v_add_u32 v7, s56, v7
        s_cmp_eq_u32 {wv}, 0
        s_cselect_b32 s56, 0, {OOB}
        v_add_u32 v6, s56, v6
        s_mul_i32 s56, s2, {33*128}
        v_add_u32 v5, s56, v5
        v_add_u32 v7, s56, v7
        s_mul_i32 s57, s2, 7168''')
        if 'W' in mt:
            a.e(f'buffer_load_dword v245, v5, {srd(S_WR)}, 0 offen')
            a.e(f'buffer_load_dword v245, v7, {srd(S_WI)}, 0 offen')
        if '2' in mt: a.e(f'buffer_load_dword v245, v6, {srd(S_W2)}, s57 offen')
    a.e('s_cmp_lg_u32 s58, 0'); a.e('s_cbranch_scc1 L_m_nos0'); a.cond_begin()
    a.e(f'''s_waitcnt vmcnt(0)
    v_mov_b32 v5, 1
    v_mov_b32 v6, 32
    s_mov_b64 exec, 1
    buffer_store_dword v5, v6, {srd(S_DBG)}, 0 offen sc1
    s_mov_b64 exec, -1''')
    a.cond_end(); a.e('L_m_nos0:')
    stamp(a,cfg,0)
    a.e('s_barrier')
    stamp(a,cfg,1)
    V_AF=112; V_GX=144; V_GW=184; V_D1C=152; V_D1S=168
    for pi in range(4):
        for ks in range(2):
            for hh in range(2):
                a.e(f'ds_read_b64_tr_b16 {vr(V_AF+8*pi+4*ks+2*hh,2)}, v{V_XA} offset:{pi*2*XA_PITCH+ks*512+hh*256}')
        if pi==1: lg_01=a.lgtok()
    lg_af=a.lgtok()
    a.e(f'ds_read_b128 {vr(V_GX,4)}, v{V_XA+1}')
    a.e(f'ds_read_b128 {vr(V_GX+4,4)}, v{V_XA+1} offset:{XA_PITCH}')
    a.e(f'ds_read_b128 {vr(V_GW,4)}, v{V_XA+2}')
    lg_gx=a.lgtok()
    for pi in range(4):
        if pi==0: a.wait_lg(lg_01)
        if pi==2: a.wait_lg(lg_af)
        for ks in range(2):
            A=vr(V_AF+8*pi+4*ks,4); c=vr(V_D1C+4*pi,4); s=vr(V_D1S+4*pi,4)
            a.e(f'v_mfma_f32_16x16x32_bf16 {c}, {A}, {vr(V_B1C+4*ks,4)}, {c if ks else 0}')
            a.e(f'v_mfma_f32_16x16x32_bf16 {s}, {A}, {vr(V_B1S+4*ks,4)}, {s if ks else 0}')
    a.wait_lg(lg_gx)
    V_Z=T0+2; V_GOUT=T0+4
    for d in range(4):
        for rr in range(2):
            a.e(f'v_dot2_f32_bf16 v{V_Z+rr}, v{V_GX+4*rr+d}, v{V_GW+d}, {("v%d"%(V_Z+rr)) if d else 0}')
    TT=TA; V_B2=V_AF
    red=[('row_shr:1 row_mask:0xf bank_mask:0xf bound_ctrl:1'),('row_shr:2 row_mask:0xf bank_mask:0xf bound_ctrl:1'),
         ('row_shr:4 row_mask:0xf bank_mask:0xf bound_ctrl:1'),('row_shr:8 row_mask:0xf bank_mask:0xf bound_ctrl:1'),
         ('row_bcast:15 row_mask:0xa bank_mask:0xf'),('row_bcast:31 row_mask:0xc bank_mask:0xf')]
    ri=0
    for pi in range(4):
        cmul_pack(a,V_D1C+4*pi,V_D1S+4*pi,V_TC,V_TS,V_B2+4*pi,TT)
        for _ in range(2 if pi<2 else 1):
            for rr in range(2): a.e(f'v_add_f32_dpp v{V_Z+rr}, v{V_Z+rr}, v{V_Z+rr} {red[ri]}')
            ri+=1
    V_D2=V_D1C; V_D2N=V_D1S
    for pi in range(4):
        a.e(f'v_mfma_f32_16x16x32_bf16 {vr(V_D2+4*pi,4)}, {vr(V_A2,4)}, {vr(V_B2+4*pi,4)}, 0')
        a.e(f'v_mfma_f32_16x16x32_bf16 {vr(V_D2N+4*pi,4)}, {vr(V_A2N,4)}, {vr(V_B2+4*pi,4)}, 0')
    for rr in range(2): a.e(f'v_mul_f32 v{V_Z+rr}, {fl(-LOG2E)}, v{V_Z+rr}')
    for rr in range(2): a.e(f'v_exp_f32 v{V_Z+rr}, v{V_Z+rr}')
    for rr in range(2): a.e(f'v_add_f32 v{V_Z+rr}, 1.0, v{V_Z+rr}')
    for rr in range(2): a.e(f'v_rcp_f32 v{V_GOUT+rr}, v{V_Z+rr}')
    a.e(f'''s_cmp_eq_u32 {wv}, 0
    s_cselect_b32 s74, 1, 0
    s_mov_b32 s75, 0''')
    V_TO=8
    for pi in range(4):
        for rho in range(2):
            re=V_D2+4*pi+2*rho; im=re+1
            a.e(f'v_cndmask_b32 v{im}, v{im}, v{V_D2N+4*pi+2*rho+1}, s[74:75]')
            a.e(f'v_cvt_pk_bf16_f32 v{V_TO+2*pi+rho}, v{re}, v{im}')
    a.e(f'''v_lshrrev_b32 v18, 5, v0
    v_lshlrev_b32 v18, 11, v18
    v_and_b32 v19, 31, v0
    v_lshl_add_u32 v18, v19, 4, v18
    s_lshl_b32 s93, {wv}, 9
    v_add_u32 v18, s93, v18
    s_lshl_b32 s90, s2, 13
    s_add_u32 s90, s90, {WS_T}
    v_mov_b32 v16, v{V_GOUT}
    v_mov_b32 v17, v{V_GOUT+1}
    v_mov_b32 v19, 0
    s_mov_b32 s91, s85''')
    def row_stores():
        if cfg.x.get('x_nors'): return
        a.e(f'''s_add_u32 s93, s90, 4096
        buffer_store_dwordx4 v[8:11], v18, {srd(S_WS)}, s90 offen {cfg.f("stT")}
        buffer_store_dwordx4 v[12:15], v18, {srd(S_WS)}, s93 offen {cfg.f("stT")}
        s_mov_b32 exec_lo, 0
        s_mov_b32 exec_hi, 0x80000000
        buffer_store_dwordx2 v[16:17], v19, {srd(S_WS)}, s91 offen {cfg.f("stG")}
        s_mov_b64 exec, -1''')
    if cfg.x.get('rs_at',9)<0: row_stores()
    stamp(a,cfg,17)
    V_XF=80; V_XR=96; V_VA=102; V_BIAS=108; V_ACC=136; V_WF=192; V_BRAW=220; T0=234
    a.e(f'''s_lshl_b32 s76, {wv}, 12
    v_lshlrev_b32 v{T0}, 7, v1
    v_add_u32 v{T0}, s76, v{T0}
    v_lshrrev_b32 v{T0+1}, 1, v1
    v_xor_b32 v{T0+1}, v{T0+1}, v2
    v_lshl_add_u32 v{V_XR}, v{T0+1}, 4, v{T0}
    v_xor_b32 v{T0+1}, 4, v{T0+1}
    v_lshl_add_u32 v{V_XR+1}, v{T0+1}, 4, v{T0}
    v_mul_u32_u24 v{V_VA}, 1920, v2
    v_lshrrev_b32 v{T0}, 2, v1
    v_mul_u32_u24 v{T0}, 224, v{T0}
    v_and_b32 v{T0+1}, 3, v0
    v_lshlrev_b32 v{T0+1}, 3, v{T0+1}
    v_add3_u32 v{V_VA}, v{V_VA}, v{T0}, v{T0+1}
    v_add_u32 v{V_VA}, 16384, v{V_VA}
    s_cmp_eq_u32 s48, 0
    s_cselect_b32 s76, 192, 0
    v_add_u32 v{V_VA+1}, s76, v{V_VA}
    s_lshl_b32 s76, s48, 5
    v_add_u32 v{V_VA}, s76, v{V_VA}''')
    for st_ in (1,2):
        for j in range(2):
            a.e(f'v_add_u32 v{V_XR+2*st_+j}, {2*st_*SLOT}, v{V_XR+j}')
            a.e(f'v_add_u32 v{V_VA+2*st_+j}, {2*st_*SLOT}, v{V_VA+j}')
    a.e(f'''v_lshlrev_b32 v{T0}, 3, v2
    s_lshl_b32 s76, s48, 5
    s_add_u32 s77, s76, {B1_LDS}
    v_add_u32 v{T0+1}, s77, v{T0}
    s_cmp_eq_u32 s48, 0
    s_cselect_b32 s77, 192, 0
    s_add_u32 s77, s77, {B1_LDS}
    v_add_u32 v{T0}, s77, v{T0}''')
    if cfg.x.get('prio'): a.e(f's_setprio {cfg.x["prio"]}')
    a.e('s_barrier')
    stamp(a,cfg,3)
    a.e(f'''s_mul_i32 s93, {wv}, {2*XA_PITCH}
    s_add_u32 s93, s93, {XA_BASE}
    v_lshl_add_u32 v20, v0, 5, s93
    v_add_u32 v21, s93, v{V_L16}
    ds_write_b128 v20, v[8:11]
    ds_write_b128 v20, v[12:15] offset:16
    s_waitcnt lgkmcnt(0)
    ds_read_b128 v[8:11], v21
    ds_read_b128 v[12:15], v21 offset:1024''')
    def slot_set(c):
        j=c%5; return (j//2, (j%2)*SLOT)
    def w_read1(s,t,hh):
        c,kk=s//2,s%2; st_,off=slot_set(c)
        va=V_VA+2*st_+(1 if t==6 else 0)
        o=off+kk*7680+(32*t if t<6 else 0)
        a.e(f'ds_read_b64_tr_b16 {vr(V_WF+4*t+2*hh,2)}, v{va} offset:{o+960*hh}')
        return a.lgtok()
    def x_read1(s,nb):
        c,kk=s//2,s%2; st_,off=slot_set(c)
        a.e(f'ds_read_b128 {vr(V_XF+8*(s%2)+4*nb,4)}, v{V_XR+2*st_+kk} offset:{off+2048*nb}')
        return a.lgtok()
    for t in range(6): a.e(f'ds_read_b64 {vr(V_BRAW+2*t,2)}, v{T0+1} offset:{32*t}')
    a.e(f'ds_read_b64 {vr(V_BRAW+12,2)}, v{T0}')
    lg_b=a.lgtok()
    tw={}; tx={}
    for nb in range(2): tx[(0,nb)]=x_read1(0,nb)
    for t in range(3):
        for hh in range(2): tw[(0,t,hh)]=w_read1(0,t,hh)
    a.wait_lg(lg_b)
    for t in range(7):
        for d in range(2):
            raw=V_BRAW+2*t+d
            a.e(f'v_lshlrev_b32 v{V_BIAS+4*t+2*d}, 16, v{raw}')
            a.e(f'v_and_b32 v{V_BIAS+4*t+2*d+1}, 0xffff0000, v{raw}')
    for t in range(3,7):
        for hh in range(2): tw[(0,t,hh)]=w_read1(0,t,hh)
    for s in range(16):
        for t in range(7):
            need=max(tw[(s,t,1)],tx[(s,1)])
            n=a.lg-need
            if t%2==0 or t==1 or s==0 or True: a.e(f's_waitcnt lgkmcnt({min(n,15)})')
            for nb in range(2):
                acc=vr(V_ACC+28*nb+4*t,4)
                cc=acc if s>0 else vr(V_BIAS+4*t,4)
                a.e(f'v_mfma_f32_16x16x32_bf16 {acc}, {vr(V_WF+4*t,4)}, {vr(V_XF+8*(s%2)+4*nb,4)}, {cc}')
                if nb==0 and t==1 and s%2==1 and s<15:
                    if cfg.fine==2: stamp(a,cfg,32+2*(s//2))
                    if s==(7 if cfg.x.get('s1two',0) else 13): a.e('s_waitcnt vmcnt(0)')
                    a.e('s_barrier')
                    if cfg.fine==2: stamp(a,cfg,33+2*(s//2))
                ps,pt=(s+1,t-1) if t>=1 else (s,6)
                if (t>=1 and s<15) or (t==0 and 1<=s<=15 and (s,6,nb) not in tw):
                    tw[(ps,pt,nb)]=w_read1(ps,pt,nb)
                if t==2 and s<15: tx[(s+1,nb)]=x_read1(s+1,nb)
                if t==4 and nb==1 and s==cfg.x.get('rs_at',9): row_stores()
    a.e('s_barrier')
    stamp(a,cfg,4)
    V_E=V_WF; V_O=V_BIAS
    a.e(f's_mov_b32 s84, {fl(LOG2E)}'); a.e(f's_mov_b32 s85, {fl(LOG2E)}'); a.e(f's_mov_b32 s86, {fl(30.0)}')
    a.e(f'''s_mul_i32 s87, s7, 7
    s_add_u32 s87, s87, s48
    s_lshr_b32 s87, s87, 1
    s_lshl_b32 s87, s87, 12
    s_mul_i32 s88, s6, {2*RT_STRIDE}
    s_lshl_b32 s89, {wv}, 10
    s_add_u32 s88, s88, s89
    s_add_u32 s88, s88, {WS_ACT}
    s_add_u32 s88, s88, s87
    s_mov_b32 s89, {3*4096}
    s_cmp_eq_u32 s48, 0
    s_cselect_b32 s89, s89, {(-4096+512)&0xffffffff}
    s_add_u32 s89, s89, s88
    v_lshlrev_b32 v4, 3, v0''')
    G=4
    for nb in range(2):
        pairs=[(V_ACC+28*nb+4*t+2*d, V_O+14*nb+2*t+d) for t in range(7) for d in range(2)]
        for g0 in range(0,len(pairs),G):
            grp=pairs[g0:g0+G]
            Tq=lambda i: V_E+4*i
            for i,(h,o) in enumerate(grp): a.e(f'v_pk_mul_f32 {vr(Tq(i),2)}, {vr(h,2)}, s[84:85]')
            for i,(h,o) in enumerate(grp):
                a.e(f'v_min_f32 v{Tq(i)}, s86, v{Tq(i)}'); a.e(f'v_min_f32 v{Tq(i)+1}, s86, v{Tq(i)+1}')
            for i,(h,o) in enumerate(grp):
                a.e(f'v_exp_f32 v{Tq(i)}, v{Tq(i)}'); a.e(f'v_exp_f32 v{Tq(i)+1}, v{Tq(i)+1}')
            for i,(h,o) in enumerate(grp): a.e(f'v_pk_add_f32 {vr(Tq(i)+2,2)}, {vr(Tq(i),2)}, 2.0 op_sel_hi:[1,0]')
            for i,(h,o) in enumerate(grp): a.e(f'v_pk_mul_f32 {vr(Tq(i),2)}, {vr(Tq(i),2)}, {vr(Tq(i)+2,2)}')
            for i,(h,o) in enumerate(grp): a.e(f'v_pk_add_f32 {vr(Tq(i)+2,2)}, {vr(Tq(i),2)}, 2.0 op_sel_hi:[1,0]')
            for i,(h,o) in enumerate(grp):
                a.e(f'v_rcp_f32 v{Tq(i)+2}, v{Tq(i)+2}'); a.e(f'v_rcp_f32 v{Tq(i)+3}, v{Tq(i)+3}')
            for i,(h,o) in enumerate(grp): a.e(f'v_pk_mul_f32 {vr(Tq(i),2)}, {vr(Tq(i),2)}, {vr(Tq(i)+2,2)}')
            for i,(h,o) in enumerate(grp): a.e(f'v_pk_mul_f32 {vr(Tq(i),2)}, {vr(Tq(i),2)}, {vr(h,2)}')
            for i,(h,o) in enumerate(grp): a.e(f'v_cvt_pk_bf16_f32 v{o}, v{Tq(i)}, v{Tq(i)+1}')
            done=min(len(pairs),g0+G)
            if cfg.x.get('actil'):
                for pp in range(3):
                    if g0<4*(pp+1)<=done:
                        a.e(f'buffer_store_dwordx4 {vr(V_O+14*nb+4*pp,4)}, v{V_L16}, {srd(S_WS)}, s88 offen {cfg.f("stA")}')
                        a.e('s_add_u32 s88, s88, 4096')
                if done==14:
                    a.e(f'buffer_store_dwordx2 {vr(V_O+14*nb+12,2)}, v4, {srd(S_WS)}, s89 offen {cfg.f("stA")}')
        if nb==0 and cfg.x.get('actil'):
            a.e(f's_add_u32 s88, s88, {RT_STRIDE-3*4096}')
            a.e(f's_add_u32 s89, s89, {RT_STRIDE}')
    if not cfg.x.get('actil'):
        for nb in range(2):
            for pp in range(3):
                a.e(f'buffer_store_dwordx4 {vr(V_O+14*nb+4*pp,4)}, v{V_L16}, {srd(S_WS)}, s88 offen {cfg.f("stA")}')
                a.e('s_add_u32 s88, s88, 4096')
            a.e(f'buffer_store_dwordx2 {vr(V_O+14*nb+12,2)}, v4, {srd(S_WS)}, s89 offen {cfg.f("stA")}')
            if nb==0:
                a.e(f's_add_u32 s88, s88, {RT_STRIDE-3*4096}')
                a.e(f's_add_u32 s89, s89, {RT_STRIDE}')
    stamp(a,cfg,5)
    parts=p2_table_parts(a,cfg); npre=cfg.x.get('tabpre',4)
    for part in parts[:npre]: part()
    stamp(a,cfg,24)
    a.e('s_mov_b32 s93, 32'); poll_w0(a,S_DBG,'s93',1,0,1)
    a.e('s_waitcnt vmcnt(0)')
    a.e('s_barrier')
    stamp(a,cfg,7)
    p2_small_loads(a,cfg)
    tok_w=a.vmtok()
    for part in parts[npre:]: part()
    stamp(a,cfg,25)
    p2_compute(a,cfg,tok_w)
    tok_y=a.vmtok()
    stamp(a,cfg,8)
    m_g2_ids(a,cfg)
    T=5
    w2_dma_addr(a,V_W2D,T)
    a.e(f"""v_lshrrev_b32 v{T}, 2, v1
    v_lshl_add_u32 v{T+1}, v2, 2, v{T}
    v_lshlrev_b32 v{V_W2A}, 7, v{T+1}
    v_lshrrev_b32 v{T+1}, 1, v{T+1}
    v_and_b32 v{T+1}, 3, v{T+1}
    v_and_b32 v{T}, 3, v0
    v_lshl_add_u32 v{V_W2A}, v{T}, 3, v{V_W2A}
    v_add_u32 v{V_W2A}, s71, v{V_W2A}""")
    for c in (3,2,1,0):
        a.e(f'v_xor_b32 v{T}, {c}, v{T+1}')
        a.e(f'v_lshl_add_u32 v{V_W2A+c}, v{T}, 5, v{V_W2A}')
    stamp(a,cfg,9)
    a.e('s_waitcnt vmcnt(0)')
    a.e(f's_lshl_b32 s93, s72, 7'); a.e(f's_add_u32 s93, s93, {WS_CNT}')
    poll_w0(a,S_WS,'s93',1,0,16)
    a.e('s_barrier')
    stamp(a,cfg,10)
    m_gemm2(a,cfg,tok_y)
    stamp(a,cfg,13)
    stamps_flush(a,cfg)
    a.e(f's_branch {end}')
    p2_special(a,cfg)

def m_gemm2(a,cfg,tok_y):
    V_ACC=80; V_AF=144; D=8; V_G=72
    RB=lambda t: (8+16*(t%D)) if (t%D)<4 else (160+16*(t%D-4))
    toks={}; tokw={}
    def need(d,k):
        while k not in d: a.bg_pop()
    def a_read1(t,c,hh):
        a.e(f'ds_read_b64_tr_b16 {vr(V_AF+4*c+2*hh,2)}, v{V_W2A+c} offset:{(t%8)*4096+2048*hh}')
        return a.lgtok()
    def push_loads(t):
        b=RB(t)
        if t>=14:
            psi=t-14
            for u in range(4):
                a.bg_push([f's_add_u32 s79, s78, {(16*psi+u)*8192}',
                           f'buffer_load_dwordx4 {vr(b+4*u,4)}, v6, {srd(S_WS)}, s79 offen {cfg.f("ldY")}'],
                          (lambda t=t: toks.__setitem__(t,a.vmtok())) if u==3 else None)
            return
        sc=cfg.f('ldA')
        for q in range(4):
            if t in(3,10):
                l=[f'buffer_load_dwordx2 {vr(b+4*q,2)}, v4, {srd(S_WS)}, s69 offen offset:{1024*q} {sc}',
                   f'buffer_load_dwordx2 {vr(b+4*q+2,2)}, v4, {srd(S_WS)}, s69 offen offset:{1024*q+512} {sc}']
            else:
                l=[f'buffer_load_dwordx4 {vr(b+4*q,4)}, v{V_L16}, {srd(S_WS)}, s69 offen offset:{1024*q} {sc}']
            if q==3: l.append('s_add_u32 s69, s69, 4096')
            a.bg_push(l,(lambda t=t: toks.__setitem__(t,a.vmtok())) if q==3 else None)
    def push_w2(t):
        for v in range(4):
            a.bg_push(w2_group(t,v,V_W2D),(lambda t=t: tokw.__setitem__(t,a.vmtok())) if v==3 else None)
    a.e('v_lshlrev_b32 v4, 3, v0')
    npre=cfg.x.get('npre',4)
    for t in range(npre): push_loads(t)
    a.bg_flush()
    nxt=npre
    a.e(f"""v_lshlrev_b32 v5, 4, v1
    v_lshlrev_b32 v6, 15, v2
    v_add_u32 v6, v6, v5
    v_add_u32 v7, s71, v{V_L16}
    s_lshl_b32 s78, {wv}, 19
    s_add_u32 s78, s78, s74
    s_add_u32 s78, s78, {WS_Y}""")
    ta={}
    for c in range(4):
        for hh in range(2): ta[(0,c,hh)]=a_read1(0,c,hh)
    a.bg_set(cfg.x.get('g2r',2),mfma_weight=2)
    TS3=cfg.x.get('ts3',10)
    for t in range(18):
        if cfg.fine==1: stamp(a,cfg,32+t)
        need(toks,t); a.wait_vm(toks[t])
        if t+1 in range(8,14):
            need(tokw,t+1); a.wait_vm(tokw[t+1])
        k_=0
        while nxt<14 and nxt-D<t and k_<2 and t<14:
            if nxt-D==t-0 and False: break
            if nxt-D>=t: break
            push_loads(nxt); nxt+=1; k_+=1
        if 1<=t and t-1+8<14: push_w2(t-1+8)
        if t==TS3+1: push_loads(14); push_loads(15)
        if t==TS3+2: push_loads(16); push_loads(17)
        b=RB(t)
        if t==14:
            a.need_vm(tok_g)
            for q in range(4): a.e(f'v_sub_f32 v{V_G+q}, 1.0, v{V_G+q}')
            for q in range(4):
                for h in range(8):
                    a.e(f'v_pk_mul_f32 {vr(V_ACC+16*q+2*h,2)}, {vr(V_ACC+16*q+2*h,2)}, {vr(V_G+(q&~1),2)} op_sel:[0,{q&1}] op_sel_hi:[1,{q&1}]')
            stamp(a,cfg,11)
        if t>=14:
            tg=[]
            for c in range(4):
                a.e(f'ds_read_b128 {vr(V_AF+4*c,4)}, v7 offset:{GSLOT[t-14]*4096+c*1024}'); tg.append(a.lgtok())
            for (i,j) in[(0,1),(0,2),(0,3),(1,2),(1,3),(2,3)]:
                a.e(f'v_swap_b32 v{b+4*i+j}, v{b+4*j+i}')
        for c in range(4):
            if t<14:
                n=a.lg-ta[(t,c,1)]
                a.e(f's_waitcnt lgkmcnt({min(n,15)})')
            else:
                a.e(f's_waitcnt lgkmcnt({min(a.lg-tg[c],15)})')
            A=vr(V_AF+4*c,4)
            for q in range(4):
                d=vr(V_ACC+16*q+4*c,4)
                r=a.bg_rate
                if q<2 and t<14: a.bg_rate=0
                a.e(f'v_mfma_f32_16x16x32_bf16 {d}, {A}, {vr(b+4*q,4)}, {d if t else 0}')
                if q<2 and t<14:
                    if c>=1 and t<13: ta[(t+1,c-1,q)]=a_read1(t+1,c-1,q)
                    if c==0 and t>=1: ta[(t,3,q)]=a_read1(t,3,q)
                a.bg_rate=r
        if t==TS3:
            a.bg_flush()
            a.e(f's_mov_b32 s93, {WS_CNT+16*128}')
            poll_w0(a,S_WS,'s93',NS3,128,256//NS3)
            a.e('s_barrier')
            a.e(f's_add_u32 s75, s74, {WS_G}')
            a.e(f'buffer_load_dwordx4 {vr(V_G,4)}, v5, {srd(S_WS)}, s75 offen {cfg.f("ldW")}')
            tok_g=a.vmtok()
        if t==13: a.e('s_barrier')
    a.bg_flush(); a.bg_set(0)
    stamp(a,cfg,12)
    a.e(f'v_add_u32 v7, s71, v{V_L16}')
    for w in range(4):
        a.e(f's_cmp_lg_u32 {wv}, {w}')
        a.e(f's_cbranch_scc1 L_k3_w{w}')
        a.cond_begin()
        slot=0
        for q in range(4):
            if q==w: continue
            for c in range(4):
                a.e(f'ds_write_b128 v7, {vr(V_ACC+16*q+4*c,4)} offset:{slot*4096+c*1024}')
            slot+=1
        if w!=0:
            for h in range(8): a.e(f'v_pk_mov_b32 {vr(V_ACC+2*h,2)}, {vr(V_ACC+16*w+2*h,2)}, {vr(V_ACC+16*w+2*h,2)} op_sel:[0,1]')
        a.cond_end()
        a.e(f'L_k3_w{w}:')
    a.e('s_waitcnt lgkmcnt(0)'); a.e('s_barrier')
    V_RD=160
    for k in range(1,4):
        a.e(f"""s_add_u32 s76, {wv}, {k}
        s_and_b32 s76, s76, 3
        s_lshl_b32 s77, s76, 15
        s_cmp_lt_u32 {wv}, s76
        s_cselect_b32 s79, 0, 1
        s_sub_u32 s79, {wv}, s79
        s_lshl_b32 s79, s79, 12
        s_add_u32 s77, s77, s79
        v_add_u32 v7, s77, v{V_L16}""")
        for c in range(4): a.e(f'ds_read_b128 {vr(V_RD+16*(k-1)+4*c,4)}, v7 offset:{c*1024}')
    a.e(f"""v_lshlrev_b32 v5, 10, v1
    v_lshl_add_u32 v5, v2, 3, v5
    s_lshl_b32 s76, s72, 17
    s_lshl_b32 s77, {wv}, 15
    s_add_u32 s76, s76, s77
    s_lshl_b32 s77, s73, 14
    s_add_u32 s76, s76, s77
    s_lshl_b32 s77, s68, 7
    s_add_u32 s76, s76, s77""")
    for k in range(3):
        a.e(f's_waitcnt lgkmcnt({8-4*k})')
        for h in range(8): a.e(f'v_pk_add_f32 {vr(V_ACC+2*h,2)}, {vr(V_ACC+2*h,2)}, {vr(V_RD+16*k+2*h,2)}')
    V_O=8
    for c in range(4):
        a.e(f'v_cvt_pk_bf16_f32 v{V_O+2*c}, v{V_ACC+4*c}, v{V_ACC+4*c+1}')
        a.e(f'v_cvt_pk_bf16_f32 v{V_O+2*c+1}, v{V_ACC+4*c+2}, v{V_ACC+4*c+3}')
        a.e(f'buffer_store_dwordx2 {vr(V_O+2*c,2)}, v5, {srd(S_OUT)}, s76 offen offset:{32*c}')

P2=dict(V_U=8,V_W=40,V_GT=48,V_Q=56,T0=64,V_F64R=80,V_F64I=96,V_F32R=112,V_F32I=128,V_T1C=144,V_T1S=152,V_T3C=160,V_T3S=168,V_DR=176,V_DI=184,V_B=192)
V_FW2D=246
def f_stream(a,cfg,end):
    a.e('L_F:')
    a.e('s_mov_b32 s90, 1')
    if cfg.x.get('fprio'): a.e(f's_setprio {cfg.x["fprio"]}')
    a.e(f'''s_lshr_b32 s49, s2, 5
    s_and_b32 s50, s2, 31
    s_lshl_b32 s51, s6, 17
    s_lshl_b32 s56, {wv}, 13
    s_add_u32 s51, s51, s56
    s_mul_i32 s52, s7, 224
    s_mul_i32 s56, {wv}, 14336
    s_add_u32 s52, s52, s56
    s_lshl_b32 s53, {wv}, 10
    s_mul_i32 s54, {wv}, 960
    s_add_u32 s54, s54, 16384''')
    T=6; V_XD=4; V_WD=5
    a.e(f'''v_lshrrev_b32 v{T}, 3, v0
    v_lshlrev_b32 v{V_XD}, 10, v{T}
    v_lshrrev_b32 v{T}, 1, v{T}
    s_and_b32 s56, {wv}, 1
    s_lshl_b32 s56, s56, 2
    v_add_u32 v{T}, s56, v{T}
    v_and_b32 v{T+1}, 7, v0
    v_xor_b32 v{T}, v{T}, v{T+1}
    v_lshl_add_u32 v{V_XD}, v{T}, 4, v{V_XD}
    v_mul_u32_u24 v{T}, 4682, v0
    v_lshrrev_b32 v{T}, 16, v{T}
    v_mul_u32_u24 v{V_WD}, 3584, v{T}
    v_mul_u32_u24 v{T}, 14, v{T}
    v_sub_u32 v{T}, v0, v{T}
    v_lshl_add_u32 v{V_WD}, v{T}, 4, v{V_WD}
    v_mov_b32 v{V_LC}, {LC_BASE}''')
    a.e(f'''s_lshl_b32 s56, s49, 18
    s_lshl_b32 s57, s50, 10
    s_add_u32 s56, s56, s57
    s_lshl_b32 s57, {wv}, 16
    s_add_u32 s56, s56, s57
    s_add_u32 s58, s56, 32768
    s_mul_i32 s57, {wv}, {2*XA_PITCH}
    s_add_u32 s57, s57, {XA_BASE}''')
    a.e('s_waitcnt lgkmcnt(0)')
    stamp(a,cfg,26)
    a.e(f's_cmp_lg_u32 {wv}, 0'); a.e('s_cbranch_scc1 L_a_r0'); a.cond_begin()
    a.e(f's_mov_b32 m0, {GW_LDS}'); a.e('s_nop 0')
    a.e(f'buffer_load_dwordx4 v{V_L16}, {srd(S_GW)}, 0 offen lds')
    a.cond_end(); a.e('L_a_r0:')
    a.e(f's_cmp_lg_u32 {wv}, 1'); a.e('s_cbranch_scc1 L_a_r1'); a.cond_begin()
    a.e(f's_mul_i32 s64, s7, 224'); a.e(f's_mov_b32 m0, {B1_LDS}'); a.e('s_mov_b64 exec, 0x3fff')
    a.e(f'buffer_load_dwordx4 v{V_L16}, {srd(S_B1)}, s64 offen lds')
    a.e('s_mov_b64 exec, -1')
    a.cond_end(); a.e('L_a_r1:')
    tok_c={}
    def chunk_groups(c):
        gs=[]
        for u in range(4):
            gs.append(([f's_add_u32 m0, s53, {SB(c)+u*4096}', f's_add_u32 s55, s51, {u*32768+c*128}',
                        f'buffer_load_dwordx4 v{V_XD}, {srd(S_X)}, s55 offen lds'],None))
        for u in range(4):
            cb=(lambda c=c: tok_c.__setitem__(c,a.vmtok())) if u==3 else None
            gs.append(([f's_add_u32 m0, s54, {SB(c)+u*3840}', f's_add_u32 s55, s52, {u*57344+c*229376}',
                        's_mov_b32 exec_hi, 0x00ffffff',
                        f'buffer_load_dwordx4 v{V_WD}, {srd(S_W1)}, s55 offen lds',
                        's_mov_b32 exec_hi, -1'],cb))
        return gs
    def push_chunk(c):
        for g_ in chunk_groups(c): a.bg_push(*g_)
    def wait_role(tok,e3,e2):
        n=a.vm-tok; lab=f'L_wr{len(a.items)}'
        a.e(f's_cmp_eq_u32 {wv}, 3'); a.e(f's_cbranch_scc1 {lab}_3')
        a.e('s_cmp_eq_u32 s66, 0'); a.e(f's_cbranch_scc1 {lab}_2')
        a.e(f's_waitcnt vmcnt({n})'); a.e(f's_branch {lab}_e')
        a.e(f'{lab}_3:'); a.e(f's_waitcnt vmcnt({min(n+e3,62)})'); a.e(f's_branch {lab}_e')
        a.e(f'{lab}_2:'); a.e(f's_waitcnt vmcnt({min(n+e2,62)})')
        a.e(f'{lab}_e:')
    def chunk_now(c):
        if cfg.fine==3: stamp(a,cfg,48+2*c%16 if False else 40+c)
        push_chunk(c); a.bg_flush()
        if cfg.fine==3: stamp(a,cfg,50+c)
    a.e(f'''s_mov_b32 m0, s57
    s_add_u32 s57, s57, {XA_PITCH}
    buffer_load_dwordx4 v{V_L16}, {srd(S_X)}, s56 offen lds
    s_mov_b32 m0, s57
    s_nop 0
    buffer_load_dwordx4 v{V_L16}, {srd(S_X)}, s58 offen lds''')
    tok_xa=a.vmtok()
    chunk_now(0)
    if cfg.x.get('c1pre',1): chunk_now(1)
    if cfg.x.get('fprio'): a.e('s_setprio 0')
    stamp(a,cfg,0)
    a.wait_vm(tok_xa); a.e('s_barrier')
    stamp(a,cfg,1)
    if not cfg.x.get('c1pre',1): chunk_now(1)
    chunk_now(2)
    T0=92; V_B1S=68
    a.wait_vm(tok_c[0]); a.e('s_barrier')
    if cfg.fine==3: stamp(a,cfg,27)
    chunk_now(3)
    a.wait_vm(tok_c[1]); a.e('s_barrier')
    if cfg.fine==3: stamp(a,cfg,29)
    chunk_now(4)
    a.wait_vm(tok_c[2]); a.e('s_barrier')
    if cfg.fine==3: stamp(a,cfg,30)
    chunk_now(5)
    a.e('''s_lshr_b32 s59, s50, 3
    s_lshr_b32 s60, s50, 2
    s_and_b32 s60, s60, 1
    s_and_b32 s61, s50, 3
    s_lshl_b32 s62, s59, 4
    s_lshl_b32 s63, s60, 10
    s_add_u32 s62, s62, s63
    s_lshl_b32 s63, s61, 8
    s_add_u32 s62, s62, s63
    s_lshl_b32 s63, s59, 11
    s_lshl_b32 s64, s60, 10
    s_add_u32 s63, s63, s64
    s_lshl_b32 s64, s61, 8
    s_add_u32 s63, s63, s64''')
    V_WR=8; V_WI=24; V_WO=7
    a.e(f's_cmp_lg_u32 {wv}, {9 if cfg.x.get("x_norole") else 3}'); a.e('s_cbranch_scc1 L_a_r3'); a.cond_begin()
    a.e(f'''v_lshrrev_b32 v{V_WO}, 2, v0
    v_mul_u32_u24 v{V_WO}, 514, v{V_WO}
    v_and_b32 v{T}, 3, v0
    v_lshl_add_u32 v{V_WO}, v{T}, 4, v{V_WO}
    s_mul_i32 s64, s62, 514
    s_lshl_b32 s65, s49, 6
    s_add_u32 s64, s64, s65''')
    for r in range(4):
        a.e(f'buffer_load_dwordx4 {vr(V_WR+4*r,4)}, v{V_WO}, {srd(S_WR)}, s64 offen')
        a.e(f'buffer_load_dwordx4 {vr(V_WI+4*r,4)}, v{V_WO}, {srd(S_WI)}, s64 offen')
        if r<3: a.e(f's_add_u32 s64, s64, {64*514}')
    a.cond_end(); a.e('L_a_r3:')
    V_SP=40; V_J=48; V_JR=49
    a.e(f'''s_lshl_b32 s65, s49, 2
    s_xor_b32 s66, {wv}, 2
    s_or_b32 s66, s66, s65''')
    a.e('s_cmp_lg_u32 s66, 0'); a.e('s_cbranch_scc1 L_a_r2'); a.cond_begin()
    a.e(f'''v_lshlrev_b32 v{V_J}, 6, v2
    v_add_u32 v{V_J}, v{V_J}, v1
    v_add_u32 v{V_J}, s62, v{V_J}
    v_sub_u32 v{V_JR}, 2048, v{V_J}
    v_and_b32 v{V_JR}, 2047, v{V_JR}
    v_mul_u32_u24 v{V_J}, 514, v{V_J}
    v_mul_u32_u24 v{V_JR}, 514, v{V_JR}''')
    for n,(S,vv,off) in enumerate([(S_WR,V_J,0),(S_WR,V_J,512),(S_WR,V_JR,0),(S_WR,V_JR,512),(S_WI,V_J,0),(S_WI,V_J,512),(S_WI,V_JR,0),(S_WI,V_JR,512)]):
        a.e(f'buffer_load_ushort v{V_SP+n}, v{vv}, {srd(S)}, 0 offen offset:{off}')
    a.cond_end(); a.e('L_a_r2:')
    tok_role=a.vmtok()
    wait_role(tok_c[3],8,8); a.e('s_barrier')
    if cfg.fine==3: stamp(a,cfg,31)
    chunk_now(6)
    wait_role(tok_c[4],8,8); a.e('s_barrier')
    two=cfg.x.get('s1two',0)
    if two:
        a.e('s_and_b32 s92, s5, 3'); a.e('s_lshl_b32 s92, s92, 6')
        ssignal(a,S_DBG,'s92')
    if cfg.fine==3: stamp(a,cfg,32)
    chunk_now(7)
    a.e(f's_cmp_lg_u32 {wv}, {9 if cfg.x.get("x_norole") else 3}'); a.e('s_cbranch_scc1 L_a_w3')
    a.wait_vm(tok_role); a.cond_begin()
    V_WP=188
    a.e('s_mov_b32 s78, 0x05040100'); a.e('s_mov_b32 s79, 0x07060302')
    for kk in range(8):
        for r in range(4):
            a.e(f'v_perm_b32 v{V_WP+4*kk+r}, v{V_WI+4*r+(kk>>1)}, v{V_WR+4*r+(kk>>1)}, s{78+(kk&1)}')
    a.e(f'''v_and_b32 v{T0+4}, 3, v0
    v_lshlrev_b32 v{T0+5}, 16, v{T0+4}
    v_lshrrev_b32 v{T0+6}, 2, v0
    v_lshl_add_u32 v{T0+5}, v{T0+6}, 4, v{T0+5}
    s_lshl_b32 s76, s49, 2
    v_add_u32 v{T0+4}, s76, v{T0+4}
    v_cmp_eq_u32 vcc, 0, v{T0+4}
    v_mov_b32 v{T0+6}, {OOB}
    v_cndmask_b32 v{T0+6}, v{T0+5}, v{T0+6}, vcc
    s_lshl_b32 s76, s49, 18
    s_add_u32 s76, s76, s63
    s_add_u32 s76, s76, {WS_WT}''')
    for kk in range(8):
        a.e(f'buffer_store_dwordx4 {vr(V_WP+4*kk,4)}, v{T0+6 if kk==0 else T0+5}, {srd(S_WS)}, s76 offen {cfg.f("stW")}')
        if kk<7: a.e('s_add_u32 s76, s76, 8192')
    a.cond_end(); a.e('L_a_w3:')
    a.e('s_cmp_lg_u32 s66, 0'); a.e('s_cbranch_scc1 L_a_w2')
    a.wait_vm(tok_role); a.cond_begin()
    for n in range(8): a.e(f'v_lshlrev_b32 v{V_SP+n}, 16, v{V_SP+n}')
    s=V_SP; t=V_B1S
    a.e(f'''v_add_f32 v{t}, v{s}, v{s+2}
    v_add_f32 v{t+1}, v{s+1}, v{s+3}
    v_sub_f32 v{t+2}, v{s+4}, v{s+6}
    v_sub_f32 v{t+3}, v{s+5}, v{s+7}
    v_add_f32 v{t+4}, v{t}, v{t+1}
    v_add_f32 v{t+5}, v{t+2}, v{t+3}
    v_sub_f32 v{t+6}, v{t}, v{t+1}
    v_sub_f32 v{t+7}, v{t+2}, v{t+3}
    v_mul_f32 v{t+4}, {fl(0.25)}, v{t+4}
    v_mul_f32 v{t+5}, {fl(0.25)}, v{t+5}
    v_mul_f32 v{t+6}, {fl(0.25)}, v{t+6}
    v_mul_f32 v{t+7}, {fl(0.25)}, v{t+7}
    v_cvt_pk_bf16_f32 v{t}, v{t+4}, v{t+5}
    v_cvt_pk_bf16_f32 v{t+1}, v{t+6}, v{t+7}
    v_lshlrev_b32 v{t+2}, 4, v1
    v_lshl_add_u32 v{t+2}, v2, 2, v{t+2}
    s_add_u32 s77, s63, {WS_QT}
    s_add_u32 s76, s63, {WS_WT}
    buffer_store_dword v{t}, v{t+2}, {srd(S_WS)}, s76 offen {cfg.f("stW")}
    buffer_store_dword v{t+1}, v{t+2}, {srd(S_WS)}, s77 offen {cfg.f("stW")}''')
    a.cond_end(); a.e('L_a_w2:')
    a.wait_vm(tok_c[5]) if False else None
    a.e(f's_waitcnt vmcnt({cfg.x.get("b5n",18)})') if False else None
    wait_role(tok_c[5],16,10); a.e('s_barrier')
    if cfg.fine==3: stamp(a,cfg,33)
    m_g2_ids(a,cfg)
    w2_dma_addr(a,V_FW2D,244)
    wait_role(tok_c[6],8,2); a.e('s_barrier')
    if cfg.fine==3: stamp(a,cfg,34)
    if two:
        wait_role(tok_c[7],8,2); a.e('s_barrier')
    else:
        a.e('s_waitcnt vmcnt(0)'); a.e('s_barrier')
        a.e('s_and_b32 s92, s5, 3'); a.e('s_lshl_b32 s92, s92, 6')
        ssignal(a,S_DBG,'s92')
    if cfg.fine==3: stamp(a,cfg,35)
    a.e('s_barrier')
    if two:
        a.e(f's_cmp_eq_u32 {wv}, 3'); a.e('s_cbranch_scc1 L_f_s1b')
        a.e('s_cmp_lg_u32 s66, 0'); a.e('s_cbranch_scc1 L_f_nos1b')
        a.e('L_f_s1b:')
        a.cond_begin()
        a.e(f"""s_waitcnt vmcnt(0)
        s_and_b32 s92, s5, 3
        s_lshl_b32 s92, s92, 6
        s_add_u32 s92, s92, 4
        v_mov_b32 v{V_SIG}, 1
        v_mov_b32 v{V_SIG+1}, 0
        s_mov_b64 exec, 1
        buffer_atomic_add v{V_SIG}, v{V_SIG+1}, {srd(S_DBG)}, s92 offen sc1
        s_mov_b64 exec, -1""")
        a.cond_end(); a.e('L_f_nos1b:')
    stamp(a,cfg,4)
    def w2slots(lo,hi):
        for t in range(lo,hi):
            for v in range(4): a.bg_push(w2_group(t,v,V_FW2D))
        a.bg_flush()
    w2slots(0,cfg.x.get('w2pre',4))
    stamp(a,cfg,5)
    a.e(f's_cmp_lg_u32 {wv}, 0'); a.e('s_cbranch_scc1 L_f_s1'); a.cond_begin()
    if cfg.x.get('s1drain',1): a.e('s_waitcnt vmcnt(0)')
    a.e('s_mov_b32 s93, 0')
    spin_global(a,S_DBG,'s93',4,64,64)
    p2_t_loads(a,cfg)
    if two:
        a.e('s_mov_b32 s93, 4')
        spin_global(a,S_DBG,'s93',4,64,72)
    a.cond_end(); a.e('L_f_s1:')
    stamp(a,cfg,6)
    a.e('s_waitcnt vmcnt(0)'); a.e('s_barrier')
    a.e(f's_lshl_b32 s92, s6, 7'); a.e(f's_add_u32 s92, s92, {WS_CNT}')
    ssignal(a,S_WS,'s92')
    stamp(a,cfg,7)
    w2slots(cfg.x.get('w2pre',4),8)
    a.e('s_waitcnt vmcnt(0)'); a.e('s_barrier')
    a.e('s_lshl_b32 s56, s4, 5'); a.e('s_add_u32 s56, s56, s5')
    a.e('s_cmp_lg_u32 s56, 0'); a.e('s_cbranch_scc1 L_f_nospec'); a.cond_begin()
    a.e('s_barrier')
    a.cond_end(); a.e('L_f_nospec:')
    a.e('s_barrier')
    a.e(f's_and_b32 s92, s2, {NS3-1}'); a.e('s_lshl_b32 s92, s92, 7'); a.e(f's_add_u32 s92, s92, {WS_CNT+16*128}')
    ssignal(a,S_WS,'s92')
    T0=80; TA=92
    a.e(f"""s_lshl_b32 s75, s68, 6
    v_add_u32 v{T0}, s75, v1
    v_cvt_f32_u32 v{T0}, v{T0}
    s_lshl_b32 s75, {wv}, 6
    v_lshlrev_b32 v{T0+1}, 2, v2
    v_add_u32 v{T0+1}, s75, v{T0+1}
    v_cvt_f32_u32 v{T0+1}, v{T0+1}""")
    for c in range(4):
        a.e(f'v_add_f32 v{T0+2+c}, {fl(16*c)}, v{T0}' if c else f'v_mov_b32 v{T0+2}, v{T0}')
        a.e(f'v_mul_f32 v{T0+2+c}, {fl(1/512)}, v{T0+2+c}')
        a.e(f'v_mul_f32 v{T0+6+c}, v{T0+1}, v{T0+2+c}')
    def pk(d): return lambda c,s: a.e(f'v_cvt_pk_bf16_f32 v{d}, v{c}, v{s}')
    angles(a,[(T0+2+c,T0+6+c,16*psi+u,(None,None,pk(V_GF+16*psi+4*c+u)),False) for (psi,c,u) in G_ITEMS],TA)
    a.e(f"""s_cmp_eq_u32 {wv}, 0
    s_cselect_b32 s76, 0xffff, 0
    s_mov_b32 s77, 0
    v_mov_b32 v{T0}, {hex(0xBF003F00)}
    v_and_b32 v{T0+1}, 1, v1
    v_lshlrev_b32 v{T0+1}, 31, v{T0+1}
    v_xor_b32 v{T0}, v{T0}, v{T0+1}""")
    for c in range(4): a.e(f'v_cndmask_b32 v{V_GF+4*c}, v{V_GF+4*c}, v{T0}, s[76:77]')
    a.e(f'v_add_u32 v7, s71, v{V_L16}')
    a.e('s_barrier')
    for psi in range(4):
        for c in range(4):
            a.e(f'ds_write_b128 v7, {vr(V_GF+16*psi+4*c,4)} offset:{GSLOT[psi]*4096+c*1024}')
    a.e('s_waitcnt lgkmcnt(0)'); a.e('s_barrier')
    stamps_flush(a,cfg)
    a.e(f's_branch {end}')

def p2_t_loads(a,cfg):
    T0=64
    a.e(f'''s_lshl_b32 s56, s4, 5
    s_add_u32 s56, s56, s5
    v_lshrrev_b32 v{T0}, 5, v0
    v_lshlrev_b32 v{T0}, 18, v{T0}
    v_bfe_u32 v{T0+1}, v0, 1, 4
    v_lshl_add_u32 v{T0}, v{T0+1}, 13, v{T0}
    v_and_b32 v{T0+1}, 1, v0
    v_lshl_add_u32 v{T0}, v{T0+1}, 4, v{T0}
    s_lshl_b32 s57, s56, 5
    s_add_u32 s57, s57, {WS_T}''')
    for ks in range(4):
        for mb in range(2):
            a.e(f's_mov_b32 m0, {TB_BASE+2048*ks+1024*mb}')
            a.e(f's_add_u32 s58, s57, {ks*524288+mb*131072}')
            a.e(f'buffer_load_dwordx4 v{T0}, {srd(S_WS)}, s58 offen {cfg.f("ldT")} lds')

def p2_small_loads(a,cfg):
    V_W,V_GT,V_Q,T0=P2['V_W'],P2['V_GT'],P2['V_Q'],P2['T0']
    a.e(f'''s_lshl_b32 s56, s4, 5
    s_add_u32 s56, s56, s5
    s_lshl_b32 s60, s56, 13
    s_lshl_b32 s61, {wv}, 11
    s_add_u32 s60, s60, s61
    s_add_u32 s62, s60, {WS_WT}
    s_add_u32 s63, s61, {WS_G}
    s_add_u32 s64, s61, {WS_QT}''')
    for eh in range(2): a.e(f'buffer_load_dwordx4 {vr(V_W+4*eh,4)}, v{V_L16}, {srd(S_WS)}, s62 offen offset:{1024*eh} {cfg.f("ldW")}')
    for nb in range(2): a.e(f'buffer_load_dwordx4 {vr(V_GT+4*nb,4)}, v{V_L16}, {srd(S_WS)}, s63 offen offset:{1024*nb} {cfg.f("ldW")}')
    a.e(f'''s_cmp_eq_u32 s56, 0
    s_cselect_b32 s65, 0, {OOB}
    v_add_u32 v{T0+2}, s65, v{V_L16}''')
    for eh in range(2): a.e(f'buffer_load_dwordx4 {vr(V_Q+4*eh,4)}, v{T0+2}, {srd(S_WS)}, s64 offen offset:{1024*eh} {cfg.f("ldW")}')

def p2_table_parts(a,cfg):
    p=P2; T0=232; TA=200
    def pk(dr,di):
        def f(c,s):
            a.e(f'v_cvt_pk_bf16_f32 v{dr}, v{c}, v{s}')
            a.e(f'v_cvt_pk_bf16_f32 v{di}, -v{s}, v{c}')
        return f
    def part0():
        a.e(f'''s_lshl_b32 s83, {wv}, 4
        v_add_u32 v{T0}, s83, v1
        v_cvt_f32_u32 v{T0}, v{T0}
        v_lshlrev_b32 v{T0+2}, 2, v2
        v_cvt_f32_u32 v{T0+2}, v{T0+2}
        v_mul_f32 v{T0+1}, {fl(1/64)}, v{T0}
        v_mul_f32 v{T0+3}, v{T0+2}, v{T0+1}''')
        angles(a,[(T0+1,T0+3,16*ks+u,(None,None,pk(p['V_F64R']+4*ks+u,p['V_F64I']+4*ks+u)),False) for ks in range(3) for u in range(4)],TA)
    def part1():
        angles(a,[(T0+1,T0+3,16*ks+u,(None,None,pk(p['V_F64R']+4*ks+u,p['V_F64I']+4*ks+u)),False) for ks in range(3,4) for u in range(4)],TA)
        a.e(f'''v_mul_f32 v{T0+1}, {fl(1/2048)}, v{T0}
        v_mul_f32 v{T0+3}, v{T0+2}, v{T0+1}''')
        angles(a,[(T0+1,T0+3,16*mb+r,(p['V_T1C']+4*mb+r,p['V_T1S']+4*mb+r,None),True) for mb in range(2) for r in range(4)],TA)
    def part2():
        a.e(f'v_cvt_f32_u32 v{T0+7}, v1')
        for eh in range(2):
            a.e(f'''v_add_f32 v{T0+1}, {fl(16*eh)}, v{T0+7}
            v_mul_f32 v{T0+1}, {fl(1/32)}, v{T0+1}
            v_mul_f32 v{T0+3}, v{T0+2}, v{T0+1}''')
            angles(a,[(T0+1,T0+3,16*mb+u,(None,None,pk(p['V_F32R']+8*eh+4*mb+u,p['V_F32I']+8*eh+4*mb+u)),False) for mb in range(2) for u in range(4)],TA)
    def part3():
        a.e(f'''v_cvt_f32_u32 v{T0}, s83
        v_add_f32 v{T0+2}, v{T0}, v{T0+2}''')
        for nb in range(2):
            a.e(f'''v_add_f32 v{T0+1}, {fl(16*nb)}, v{T0+7}
            v_mul_f32 v{T0+1}, {fl(1/2048)}, v{T0+1}
            v_mul_f32 v{T0+3}, v{T0+2}, v{T0+1}''')
            angles(a,[(T0+1,T0+3,r,(p['V_T3C']+4*nb+r,p['V_T3S']+4*nb+r,None),True) for r in range(4)],TA)
    return [part0,part1,part2,part3]

def p2_compute(a,cfg,tok_w):
    p=P2
    V_U,V_W,V_GT,T0=p['V_U'],p['V_W'],p['V_GT'],p['T0']
    V_F64R,V_F64I,V_F32R,V_F32I=p['V_F64R'],p['V_F64I'],p['V_F32R'],p['V_F32I']
    V_T1C,V_T1S,V_T3C,V_T3S=p['V_T1C'],p['V_T1S'],p['V_T3C'],p['V_T3S']
    V_DR,V_DI,V_B=p['V_DR'],p['V_DI'],p['V_B']; TT=200
    a.e(f'''v_lshrrev_b32 v{T0+4}, 1, v2
    v_lshlrev_b32 v{T0+4}, 5, v{T0+4}
    v_lshl_add_u32 v{T0+4}, v1, 1, v{T0+4}
    v_and_b32 v{T0+5}, 1, v2
    v_add_u32 v{T0+4}, v{T0+4}, v{T0+5}
    v_lshlrev_b32 v{T0+4}, 4, v{T0+4}
    v_add_u32 v{T0+4}, {TB_BASE}, v{T0+4}''')
    for ks in range(4):
        for mb in range(2):
            a.e(f'ds_read_b128 {vr(V_U+16*mb+4*ks,4)}, v{T0+4} offset:{2048*ks+1024*mb}')
    V_WR=216; V_WI=224
    a.wait_vm(tok_w)
    for e in range(8):
        a.e(f'v_lshlrev_b32 v{V_WR+e}, 16, v{V_W+e}')
        a.e(f'v_and_b32 v{V_WI+e}, 0xffff0000, v{V_W+e}')
    for ks in range(4):
        a.e(f's_waitcnt lgkmcnt({6-2*ks})')
        for mb in range(2):
            A=vr(V_U+16*mb+4*ks,4)
            for (D,Fm) in((V_DR,V_F64R),(V_DI,V_F64I)):
                d=vr(D+4*mb,4)
                a.e(f'v_mfma_f32_16x16x32_bf16 {d}, {A}, {vr(Fm+4*ks,4)}, {d if ks else 0}')
    for e in range(8): a.e(f'v_mul_f32 v{V_GT+e}, {fl(2.0**-19)}, v{V_GT+e}')
    for mb in range(2): cmul_pack(a,V_DR+4*mb,V_DI+4*mb,V_T1C+4*mb,V_T1S+4*mb,V_B+4*mb,TT)
    for mb in range(2):
        for eh in range(2):
            for (D,Fm) in((V_DR,V_F32R),(V_DI,V_F32I)):
                d=vr(D+4*eh,4)
                a.e(f'v_mfma_f32_16x16x32_bf16 {d}, {vr(Fm+8*eh+4*mb,4)}, {vr(V_B+4*mb,4)}, {d if mb else 0}')
    a.e(f'''s_lshl_b32 s65, {wv}, 11
    s_add_u32 s65, s65, {XB_BASE}
    v_add_u32 v{T0+4}, s65, v{V_L16}
    v_add_u32 v{T0+5}, {XB_BASE}, v{V_L16}''')
    a.e('s_cmp_lg_u32 s56, 0')
    a.e('s_cbranch_scc0 L_p2_special')
    for eh in range(2): cmul_pack(a,V_DR+4*eh,V_DI+4*eh,V_WR+4*eh,V_WI+4*eh,V_B+4*eh,TT,negim=True)
    a.e('L_p2_join:')
    for ks in range(2):
        for nb in range(2):
            for (D,Fm) in((V_DR,V_F32R),(V_DI,V_F32I)):
                d=vr(D+4*nb,4)
                a.e(f'v_mfma_f32_16x16x32_bf16 {d}, {vr(V_B+4*ks,4)}, {vr(Fm+8*nb+4*ks,4)}, {d if ks else 0}')
    for nb in range(2):
        cmul_pack(a,V_DR+4*nb,V_DI+4*nb,V_T3C+4*nb,V_T3S+4*nb,V_B+4*nb,TT)
        a.e(f'ds_write_b128 v{T0+4}, {vr(V_B+4*nb,4)} offset:{1024*nb}')
    a.e('s_waitcnt lgkmcnt(0)')
    a.e('s_barrier')
    V_X=V_U
    for ks in range(4):
        for nb in range(2):
            a.e(f'ds_read_b128 {vr(V_X+8*ks+4*nb,4)}, v{T0+5} offset:{2048*ks+1024*nb}')
    for ks in range(4):
        a.e(f's_waitcnt lgkmcnt({6-2*ks})')
        for nb in range(2):
            for (D,Fm) in((V_DR,V_F64R),(V_DI,V_F64I)):
                d=vr(D+4*nb,4)
                a.e(f'v_mfma_f32_16x16x32_bf16 {d}, {vr(Fm+4*ks,4)}, {vr(V_X+8*ks+4*nb,4)}, {d if ks else 0}')
    a.e(f's_add_u32 s62, s60, {WS_Y}')
    for nb in range(2):
        for h in range(2):
            a.e(f'v_pk_mul_f32 {vr(V_DR+4*nb+2*h,2)}, {vr(V_DR+4*nb+2*h,2)}, {vr(V_GT+4*nb+2*h,2)}')
            a.e(f'v_pk_mul_f32 {vr(V_DI+4*nb+2*h,2)}, {vr(V_DI+4*nb+2*h,2)}, {vr(V_GT+4*nb+2*h,2)}')
        for r in range(4): a.e(f'v_cvt_pk_bf16_f32 v{V_B+4*nb+r}, v{V_DR+4*nb+r}, v{V_DI+4*nb+r}')
        a.e(f'buffer_store_dwordx4 {vr(V_B+4*nb,4)}, v{V_L16}, {srd(S_WS)}, s62 offen offset:{1024*nb} {cfg.f("stY")}')

def p2_special(a,cfg):
    p=P2
    V_U,V_Q,T0,V_DR,V_DI,V_B=p['V_U'],p['V_Q'],p['T0'],p['V_DR'],p['V_DI'],p['V_B']
    V_WR=216; V_WI=224
    a.e('L_p2_special:')
    a.cond_begin()
    V_J=T0+8; V_ZA=V_U+16
    a.e(f'''s_lshl_b32 s65, {wv}, 4
    v_lshlrev_b32 v{V_J}, 8, v2
    v_add3_u32 v{V_J}, v{V_J}, v1, s65''')
    for eh in range(2):
        for r in range(4):
            n=1024*eh+64*r
            a.e(f'v_add_u32 v{T0}, {n}, v{V_J}')
            a.e(f'v_lshlrev_b32 v{T0}, 2, v{T0}')
            a.e(f'v_cvt_pk_bf16_f32 v{T0+2}, v{V_DR+4*eh+r}, v{V_DI+4*eh+r}')
            a.e(f'v_add_u32 v{T0}, {ZR_BASE}, v{T0}')
            a.e(f'ds_write_b32 v{T0}, v{T0+2}')
    a.e('s_waitcnt lgkmcnt(0)')
    a.e('s_barrier')
    for eh in range(2):
        for r in range(4):
            n=1024*eh+64*r
            a.e(f'v_sub_u32 v{T0}, {2048-n}, v{V_J}')
            a.e(f'v_and_b32 v{T0}, 2047, v{T0}')
            a.e(f'v_lshlrev_b32 v{T0}, 2, v{T0}')
            a.e(f'v_add_u32 v{T0}, {ZR_BASE}, v{T0}')
            a.e(f'ds_read_b32 v{V_ZA+4*eh+r}, v{T0}')
    a.e('s_waitcnt lgkmcnt(0)')
    for e in range(8):
        zr=V_DR+e; zi=V_DI+e; pr=V_WR+e; pi=V_WI+e; ar_=T0+6; ai=T0+7
        qr=T0; qi=T0+1; yr=T0+2; yi=T0+3
        a.e(f'''v_lshlrev_b32 v{qr}, 16, v{V_Q+e}
        v_and_b32 v{qi}, 0xffff0000, v{V_Q+e}
        v_lshlrev_b32 v{ar_}, 16, v{V_ZA+e}
        v_and_b32 v{ai}, 0xffff0000, v{V_ZA+e}
        v_mul_f32 v{yr}, v{zr}, v{pr}
        v_fma_f32 v{yr}, -v{zi}, v{pi}, v{yr}
        v_fma_f32 v{yr}, v{ar_}, v{qr}, v{yr}
        v_fma_f32 v{yr}, v{ai}, v{qi}, v{yr}
        v_mul_f32 v{yi}, v{zr}, v{pi}
        v_fma_f32 v{yi}, v{zi}, v{pr}, v{yi}
        v_fma_f32 v{yi}, v{ar_}, v{qi}, v{yi}
        v_fma_f32 v{yi}, -v{ai}, v{qr}, v{yi}
        v_cvt_pk_bf16_f32 v{V_B+e}, v{yr}, -v{yi}''')
    a.cond_end()
    a.e('s_branch L_p2_join')

HEADER='''; Gated mix of a GFNet spectral filter and a dense->mish->dense block, one persistent launch.
; (text generated by the author's own generator script; 256 workgroups, one per CU, hand-offs through counters)
'''
def build(stamps=False,off=(),**kw):
    cfg=Cfg(); cfg.stamps=stamps; cfg.off=set(off); cfg.x=kw; cfg.fine=kw.get('fine',0)
    label=NAME+'_kernel'
    a=Asm(); end='L_end'
    prologue(a,cfg,end)
    sv=(a.vm,a.lg)
    m_stream(a,cfg,end)
    nbM=sum(1 for i in a.items if i.op=='s_barrier'); n0=len(a.items)
    a.vm,a.lg=sv; a.bg_rate=0; assert not a.bg
    f_stream(a,cfg,end)
    nbF=sum(1 for i in a.items[n0:] if i.op=='s_barrier')
    a.e(f'{end}:'); a.e('s_endpgm')
    txt=a.text()
    errs=[]
    for role in (False,True):
        for nm,pol in (('fall',lambda i,n:i.target.endswith('_done') or (role and i.target=='L_F')),
                       ('taken',lambda i,n:((not i.target.startswith('L_end')) and n==0 and (i.target!='L_F' or role)))):
            errs+=verify_waits(a.out,pol,('F' if role else 'M')+nm)
    for e in sorted(set(errs))[:30]: print('WAITERR',e,file=sys.stderr)
    print(dict(a.count()),'barriers M',nbM,'F',nbF,file=sys.stderr)
    out=HEADER+f'; @launch grid=(256,1,1) block=(512,1,1) lds={LDS_TOTAL}\n'
    out+='.amdgcn_target "amdgcn-amd-amdhsa--gfx950"\n.text\n'
    out+=f'.globl {label}\n.p2align 8\n.type {label},@function\n{label}:\n{txt}'
    out+=f'''.section .rodata,"a"
.p2align 6
.amdhsa_kernel {label}
  .amdhsa_next_free_vgpr 256
  .amdhsa_next_free_sgpr 102
  .amdhsa_accum_offset 256
  .amdhsa_group_segment_fixed_size 0
  .amdhsa_kernarg_size 88
  .amdhsa_user_sgpr_count 2
  .amdhsa_user_sgpr_kernarg_segment_ptr 1
  .amdhsa_system_sgpr_workgroup_id_x 1
.end_amdhsa_kernel
'''
    return out

if __name__=='__main__':
    mode=sys.argv[1] if len(sys.argv)>1 else 'persist'
    kw={}
    for x in sys.argv[3:]:
        k,v=x.split('='); kw[k]=int(v) if v.lstrip('-').isdigit() else v
    off=kw.pop('off','').split(',') if 'off' in kw else ()
    txt=build(stamps=(mode=='stamps'),off=off,**kw)
    open(sys.argv[2] if len(sys.argv)>2 else 'out.s','w').write(txt)
```

```python
import sys, os, struct
from dsl import Asm, verify_waits

NAME='gated_mix__spectral_gfnet__dense_activation_mish__prompt'
WS_T   =0x000000
WS_WT  =0x200000
WS_QT  =0x400000
WS_G   =0x402000
WS_CNT =0x404000
WS_Y   =0x600000
WS_ACT =0x800000
WS_STAMP=0x1000000
WS_SIZE=0x1080000
RT_STRIDE=56*4096
S_X,S_WR,S_WI,S_W1,S_B1,S_W2,S_GW,S_OUT,S_WS,S_DBG=8,12,16,20,24,28,32,36,40,44
def srd(n): return f's[{n}:{n+3}]'
SRDS=[(S_X,0,2048*1024),(S_WR,8,2048*514),(S_WI,16,2048*514),(S_W1,32,512*3584),(S_B1,40,3584),
      (S_W2,48,1792*1024),(S_GW,56,1024),(S_OUT,64,2048*1024),(S_WS,80,WS_SIZE),(S_DBG,72,256)]
def vr(b,n=1): return f'v{b}' if n==1 else f'v[{b}:{b+n-1}]'
def fl(x): return hex(struct.unpack('<I',struct.pack('<f',float(x)))[0])
S_WV=3; S_W8=49
wv=f's{S_WV}'
LOG2E=1.4426950408889634
OOB=0x40000000
SLEEP=int(os.environ.get('SLEEP','8'))
SPIN_MAX=50000
SLOT=31744
SB=lambda c:(c%5)*SLOT
XA_BASE=4*SLOT; XA_PITCH=1152
GW_LDS=5*SLOT; B1_LDS=GW_LDS+1024
LC_BASE=GW_LDS+2048
TB_BASE=131072; XB_BASE=139264; ZR_BASE=147456
LDS_TOTAL=163840
V_L16=3
V_PD,V_PA,V_SIG=250,251,252

class Cfg:
    stamps=False; dbgst=False; sc='sc1'
    off=set()
    def f(self,tag): return '' if (tag in self.off or 'all' in self.off) else self.sc

def stamp(a,cfg,idx):
    if not cfg.stamps: return
    r=a.bg_rate; a.bg_rate=0
    a.e('s_memrealtime s[96:97]'); a.e('s_waitcnt lgkmcnt(0)'); a.e(f'v_writelane_b32 v255, s96, {idx}')
    a.bg_rate=r
def stamps_flush(a,cfg):
    if not cfg.stamps: return
    a.e(f"""v_lshrrev_b32 v254, 6, v249
    s_nop 0
    v_readfirstlane_b32 s98, v254
    s_lshl_b32 s99, s2, 3
    s_add_u32 s98, s98, s99
    s_lshl_b32 s98, s98, 8
    s_add_u32 s98, s98, {WS_STAMP}
    v_lshlrev_b32 v254, 2, v0
    buffer_store_dword v255, v254, {srd(S_WS)}, s98 offen""")

def signal(a,S,soff):
    vt=V_SIG
    a.e(f"""s_cmp_eq_u32 {wv}, 0
    s_cselect_b32 s95, 0, {OOB}
    v_mov_b32 v{vt}, 1
    v_mov_b32 v{vt+1}, s95
    s_mov_b64 exec, 1
    buffer_atomic_add v{vt}, v{vt+1}, {srd(S)}, {soff} offen sc1
    s_mov_b64 exec, -1""")

def ssignal(a,S,soff):
    lab=f'L_ss{len(a.items)}'
    a.e(f's_cmp_lg_u32 {wv}, 0'); a.e(f's_cbranch_scc1 {lab}')
    a.e(f's_atomic_add s90, s[{S}:{S+1}], {soff}')
    a.e(f'{lab}:')

def spin_global(a,S,soff,nl,stride,target):
    lab=f'L_poll{len(a.items)}'
    a.e(f'v_mul_u32_u24 v{V_PA}, {stride}, v0')
    a.e(f's_mov_b64 exec, {hex((1<<nl)-1)}')
    a.e(f's_mov_b32 s94, 0')
    a.e(f'{lab}:')
    a.e(f'buffer_load_dword v{V_PD}, v{V_PA}, {srd(S)}, {soff} offen sc1')
    a.e(f's_add_u32 s94, s94, 1')
    a.e(f's_waitcnt vmcnt(0)')
    a.e(f'v_cmp_gt_u32 vcc, {target}, v{V_PD}')
    a.e(f's_cbranch_vccz {lab}_done')
    a.e(f's_cmp_gt_u32 s94, {SPIN_MAX}')
    a.e(f's_cbranch_scc1 {lab}_done')
    a.e(f's_sleep {SLEEP}')
    a.e(f's_branch {lab}')
    a.e(f'{lab}_done:')
    a.e('s_mov_b64 exec, -1')

def poll_w0(a,S,soff,nl,stride,target):
    lab=f'L_pw{len(a.items)}'
    a.e(f's_cmp_lg_u32 {wv}, 0'); a.e(f's_cbranch_scc1 {lab}')
    a.cond_begin(); spin_global(a,S,soff,nl,stride,target); a.cond_end()
    a.e(f'{lab}:')

V_LC=248
def lc_add(a,idx,rtn=None):
    a.e(f'v_mov_b32 v{V_LC-1}, 1')
    a.e('s_mov_b64 exec, 1')
    if rtn is None: a.e(f'ds_add_u32 v{V_LC}, v{V_LC-1} offset:{4*idx}')
    else: a.e(f'ds_add_rtn_u32 v{rtn}, v{V_LC}, v{V_LC-1} offset:{4*idx}')
    a.e('s_mov_b64 exec, -1')
def lc_wait(a,idx,target):
    lab=f'L_lc{len(a.items)}'
    a.e('s_mov_b32 s94, 0')
    a.e(f'{lab}:')
    a.e(f'ds_read_b32 v{V_LC-1}, v{V_LC} offset:{4*idx}')
    a.e('s_add_u32 s94, s94, 1')
    a.e('s_waitcnt lgkmcnt(0)')
    a.e(f'v_readfirstlane_b32 s93, v{V_LC-1}')
    a.e(f's_cmp_ge_u32 s93, {target}')
    a.e(f's_cbranch_scc1 {lab}_done')
    a.e('s_sleep 1')
    a.e(f's_cmp_lt_u32 s94, {20*SPIN_MAX}')
    a.e(f's_cbranch_scc1 {lab}')
    a.e(f'{lab}_done:')

def angles(a,items,T):
    for i0 in range(0,len(items),4):
        grp=items[i0:i0+4]; src=[]
        for j,(sl,base,n,fin,neg) in enumerate(grp):
            if n==0: src.append(f'v{base}')
            else:
                a.e(f'v_fmamk_f32 v{T+j}, v{sl}, {fl(n)}, v{base}'); src.append(f'v{T+j}')
        outs=[]
        for j,(sl,base,n,fin,neg) in enumerate(grp):
            c,s=fin[0] if fin[0] is not None else T+4+j, fin[1] if fin[1] is not None else T+8+j
            a.e(f'v_cos_f32 v{c}, {src[j]}')
            a.e(f'v_sin_f32_e64 v{s}, -{src[j]}' if neg else f'v_sin_f32 v{s}, {src[j]}')
            outs.append((c,s))
        for j,(sl,base,n,fin,neg) in enumerate(grp):
            if fin[2]: fin[2](*outs[j])

def cmul_pack(a,c,s,tc,ts,dst,TT,n=4,negim=False):
    H=n//2
    for h in range(H): a.e(f'v_pk_mul_f32 {vr(TT+4*h,2)}, {vr(s+2*h,2)}, {vr(ts+2*h,2)}')
    for h in range(H): a.e(f'v_pk_mul_f32 {vr(TT+4*h+2,2)}, {vr(s+2*h,2)}, {vr(tc+2*h,2)}')
    for h in range(H): a.e(f'v_pk_fma_f32 {vr(TT+4*h,2)}, {vr(c+2*h,2)}, {vr(tc+2*h,2)}, {vr(TT+4*h,2)} neg_lo:[0,0,1] neg_hi:[0,0,1]')
    for h in range(H): a.e(f'v_pk_fma_f32 {vr(TT+4*h+2,2)}, {vr(c+2*h,2)}, {vr(ts+2*h,2)}, {vr(TT+4*h+2,2)}')
    ng='-' if negim else ''
    for h in range(H):
        a.e(f'v_cvt_pk_bf16_f32 v{dst+2*h}, v{TT+4*h}, {ng}v{TT+4*h+2}')
        a.e(f'v_cvt_pk_bf16_f32 v{dst+2*h+1}, v{TT+4*h+1}, {ng}v{TT+4*h+3}')

def prologue(a,cfg,end):
    a.e('s_cmp_ge_u32 s2, 256'); a.e(f's_cbranch_scc1 {end}')
    for (n,off,sz) in SRDS: a.e(f's_load_dwordx2 s[{n}:{n+1}], s[0:1], {off}')
    if cfg.x.get('pf_code') and cfg.x.get('pf_top'):
        nw=cfg.x['pf_top']
        a.e('s_getpc_b64 s[64:65]')
        a.e('v_lshrrev_b32 v56, 6, v0'); a.e('v_and_b32 v57, 63, v0')
        a.e('v_readfirstlane_b32 s66, v56')
        a.e('v_lshlrev_b32 v57, 4, v57')
        a.e('s_lshr_b32 s67, s2, 3'); a.e(f's_mul_i32 s67, s67, {nw}'); a.e('s_add_u32 s67, s67, s66')
        a.e('s_lshl_b32 s68, s67, 10')
        a.e('s_add_u32 s64, s64, s68'); a.e('s_addc_u32 s65, s65, 0')
        a.e('v_mov_b32 v59, s65'); a.e('v_add_co_u32 v58, vcc, s64, v57'); a.e('s_nop 1'); a.e('v_addc_co_u32 v59, vcc, 0, v59, vcc')
        a.e(f's_cmp_lt_u32 s66, {nw}'); a.e('s_cbranch_scc0 L_nopf0'); a.cond_begin()
        a.e(f's_cmp_lt_u32 s67, {cfg.x["pf_code"]}'); a.e('s_cbranch_scc0 L_nopf0')
        a.e('global_load_dwordx4 v[52:55], v[58:59], off')
        a.cond_end(); a.e('L_nopf0:')
    if cfg.stamps: a.e('v_mov_b32 v249, v0')
    a.e('v_lshrrev_b32 v1, 6, v0')
    a.e('v_and_b32 v0, 63, v0')
    a.e('v_readfirstlane_b32 s48, v1')
    a.e('v_and_b32 v1, 15, v0')
    a.e('v_lshrrev_b32 v2, 4, v0')
    a.e(f'v_lshlrev_b32 v{V_L16}, 4, v0')
    for (n,off,sz) in SRDS:
        a.e(f's_mov_b32 s{n+2}, {hex(sz)}'); a.e(f's_mov_b32 s{n+3}, 0x20000')
    a.e(f'''s_mov_b32 s51, s48
    s_and_b32 {wv}, s48, 3
    s_lshr_b32 s50, s48, 2
    s_and_b32 s4, s2, 7
    s_lshr_b32 s5, s2, 3
    s_lshr_b32 s6, s4, 1
    s_lshl_b32 s6, s6, 2
    s_lshr_b32 s56, s5, 3
    s_add_u32 s6, s6, s56
    s_and_b32 s7, s4, 1
    s_lshl_b32 s7, s7, 3
    s_and_b32 s56, s5, 7
    s_add_u32 s7, s7, s56
    s_and_b32 s48, s7, 1''')
    a.e('s_waitcnt lgkmcnt(0)')
    if cfg.x.get('pf_code') and not cfg.x.get('pf_top'):
        a.e('s_getpc_b64 s[64:65]')
        a.e('s_lshl_b32 s66, s5, 10')
        a.e('s_add_u32 s64, s64, s66'); a.e('s_addc_u32 s65, s65, 0')
        a.e(f'v_mov_b32 v57, s65'); a.e(f'v_add_co_u32 v56, vcc, s64, v{V_L16}'); a.e('s_nop 1'); a.e(f'v_addc_co_u32 v57, vcc, 0, v57, vcc')
        a.e(f's_cmp_lt_u32 s5, {cfg.x["pf_code"]}'); a.e('s_cbranch_scc0 L_nopf'); a.cond_begin()
        a.e(f's_cmp_lg_u32 s51, 2'); a.e('s_cbranch_scc1 L_nopf')
        a.e('global_load_dwordx4 v[52:55], v[56:57], off')
        a.cond_end(); a.e('L_nopf:')
    mt=str(cfg.x.get('mt','xw'))
    if mt!='0':
        a.e(f'''v_lshlrev_b32 v5, 7, v0
        v_mov_b32 v6, {OOB}
        v_cmp_gt_u32 vcc, 56, v0
        v_cndmask_b32 v6, v6, v5, vcc
        s_cmp_eq_u32 s51, 0
        s_cselect_b32 s56, 0, {OOB}
        v_add_u32 v5, s56, v5
        s_cmp_eq_u32 s51, 1
        s_cselect_b32 s56, 0, {OOB}
        v_add_u32 v7, s56, v6
        s_lshl_b32 s56, s2, 13
        s_mul_i32 s57, s2, 7168''')
        if 'x' in mt: a.e(f'buffer_load_dword v245, v5, {srd(S_X)}, s56 offen')
        if 'w' in mt: a.e(f'buffer_load_dword v245, v7, {srd(S_W1)}, s57 offen')
    if cfg.x.get('tlb'):
        a.e(f'''v_lshlrev_b32 v5, 21, v0
        v_mov_b32 v6, {OOB}
        v_cmp_gt_u32 vcc, 9, v0
        v_cndmask_b32 v5, v6, v5, vcc
        s_cmp_eq_u32 s51, 2
        s_cselect_b32 s56, 0, {OOB}
        v_or_b32 v5, s56, v5
        s_cmp_eq_u32 s51, 3
        s_cselect_b32 s56, 0, {OOB}
        v_cmp_gt_u32 vcc, 1, v0
        v_cndmask_b32 v6, v6, v0, vcc
        v_or_b32 v6, s56, v6
        buffer_load_dword v245, v5, {srd(S_WS)}, 0 offen
        buffer_load_dword v245, v6, {srd(S_OUT)}, 0 offen''')
    if cfg.x.get('ffirst'):
        a.e('s_cmp_eq_u32 s50, 0'); a.e('s_cbranch_scc1 L_M')
    else:
        a.e('s_cmp_lg_u32 s50, 0'); a.e('s_cbranch_scc1 L_F')

V_GF=8
V_W2A=240; V_W2D=244
NS3=int(os.environ.get('NS3','8'))
GSLOT=[6,7,0,1]
GT0=224; GTA=234
G_ITEMS=[(psi,c,u) for psi in range(4) for c in range(4) for u in range(4)]
def m_g2_ids(a,cfg):
    a.e(f"""s_lshl_b32 s67, s4, 2
    s_lshr_b32 s68, s5, 3
    s_add_u32 s67, s67, s68
    s_and_b32 s68, s5, 7
    s_mul_i32 s69, s67, {RT_STRIDE}
    s_mul_i32 s70, {wv}, {14*4096}
    s_add_u32 s69, s69, s70
    s_add_u32 s69, s69, {WS_ACT}
    s_mul_i32 s70, {wv}, {14*32*1024}
    s_lshl_b32 s71, s68, 7
    s_add_u32 s70, s70, s71
    s_lshl_b32 s71, {wv}, 15
    s_lshr_b32 s72, s67, 1
    s_and_b32 s73, s67, 1
    s_lshr_b32 s74, s72, 2
    s_lshl_b32 s74, s74, 11
    s_lshl_b32 s75, s73, 10
    s_add_u32 s74, s74, s75
    s_and_b32 s75, s72, 3
    s_lshl_b32 s75, s75, 8
    s_add_u32 s74, s74, s75""")
def w2_dma_addr(a,V,T):
    a.e(f"""v_lshrrev_b32 v{T}, 3, v0
    v_lshlrev_b32 v{V}, 10, v{T}
    v_lshrrev_b32 v{T}, 1, v{T}
    v_and_b32 v{T}, 3, v{T}
    v_bfe_u32 v{T+1}, v0, 1, 2
    v_xor_b32 v{T}, v{T}, v{T+1}
    v_lshlrev_b32 v{T}, 1, v{T}
    v_and_b32 v{T+1}, 1, v0
    v_add_u32 v{T}, v{T}, v{T+1}
    v_lshl_add_u32 v{V}, v{T}, 4, v{V}""")
def w2_group(t,v,V):
    return [f's_add_u32 m0, s71, {(t%8)*4096+v*1024}', f's_add_u32 s55, s70, {(32*t+8*v)*1024}',
            f'buffer_load_dwordx4 v{V}, {srd(S_W2)}, s55 offen lds']

def m_stream(a,cfg,end):
    a.e('s_waitcnt lgkmcnt(0)')
    if cfg.x.get('prio0'): a.e(f's_setprio {cfg.x["prio0"]}')
    stamp(a,cfg,26)
    a.e(f'''s_xor_b32 s56, {wv}, 3
    s_or_b32 s58, s56, s2
    s_cmp_eq_u32 s58, 0
    s_cselect_b32 s56, 0, {OOB}
    v_lshlrev_b32 v5, 7, v0
    v_add_u32 v5, s56, v5
    v_mov_b32 v6, 0
    s_mov_b32 s57, {WS_CNT}
    s_mov_b32 exec_hi, 0
    buffer_store_dword v6, v5, {srd(S_WS)}, s57 offen sc1
    s_mov_b32 exec_hi, -1''')
    mt=str(cfg.x.get('mt','xw'))
    a.e(f'''s_lshr_b32 s49, s2, 5
    s_and_b32 s50, s2, 31''')
    V_B1C=60; V_B1S=68; V_TC=76; V_TS=80; V_A2=84; V_A2N=88; T0=92; TA=100
    a.e(f'''s_lshl_b32 s67, {wv}, 4
    v_add_u32 v{T0}, s67, v1
    v_cvt_f32_u32 v{T0}, v{T0}
    v_mul_f32 v{T0+1}, {fl(1/64)}, v{T0}
    v_lshlrev_b32 v{T0+2}, 2, v2
    v_cvt_f32_u32 v{T0+2}, v{T0+2}
    v_mul_f32 v{T0+3}, v{T0+2}, v{T0+1}''')
    for ks in range(2):
        for hh in range(2):
            angles(a,[(T0+1,T0+3,32*ks+16*hh+u,(None,None,None),True) for u in range(4)],TA)
            for d in range(2):
                a.e(f'v_cvt_pk_bf16_f32 v{V_B1C+4*ks+2*hh+d}, v{TA+4+2*d}, v{TA+5+2*d}')
                a.e(f'v_cvt_pk_bf16_f32 v{V_B1S+4*ks+2*hh+d}, v{TA+8+2*d}, v{TA+9+2*d}')
    a.e(f'''v_and_b32 v{T0+4}, 1, v2
    v_lshlrev_b32 v{T0+4}, 2, v{T0+4}
    v_cvt_f32_u32 v{T0+4}, v{T0+4}
    v_mul_f32 v{T0+5}, {fl(1/512)}, v{T0}
    v_mul_f32 v{T0+6}, v{T0+4}, v{T0+5}''')
    angles(a,[(T0+5,T0+6,r,(V_TC+r,V_TS+r,None),True) for r in range(4)],TA)
    a.e(f'''v_lshrrev_b32 v{T0+5}, 2, v1
    v_cvt_f32_u32 v{T0+5}, v{T0+5}
    v_mul_f32 v{T0+5}, {fl(1/8)}, v{T0+5}
    v_and_b32 v{T0+6}, 1, v1
    v_cvt_f32_u32 v{T0+6}, v{T0+6}
    v_mul_f32 v{T0+6}, {fl(0.25)}, v{T0+6}
    v_fma_f32 v{T0+6}, v{T0+4}, v{T0+5}, v{T0+6}
    v_lshrrev_b32 v{T0+7}, 1, v1
    v_and_b32 v{T0+7}, 1, v{T0+7}
    v_lshrrev_b32 v{T0}, 1, v2
    v_cmp_eq_u32 s[68:69], v{T0+7}, v{T0}
    v_and_b32 v{T0+7}, 13, v1
    v_cmp_eq_u32 vcc, 1, v{T0+7}''')
    a.e('s_and_b64 s[70:71], vcc, s[68:69]')
    angles(a,[(T0+5,T0+6,dw,(None,None,None),False) for dw in range(4)],TA)
    for dw in range(4): a.e(f'v_cvt_pk_bf16_f32 v{TA+dw}, v{TA+4+dw}, v{TA+8+dw}')
    a.e(f'v_mov_b32 v{TA+4}, 0x3f80'); a.e(f'v_mov_b32 v{TA+5}, 0xbf80')
    for dw in range(4):
        a.e(f'v_cndmask_b32 v{V_A2+dw}, 0, v{TA+dw}, s[68:69]')
        a.e(f'v_cndmask_b32 v{V_A2N+dw}, 0, v{TA+4+(dw&1)}, s[70:71]')
    V_XA=108
    a.e(f'''v_and_b32 v{T0}, 3, v0
    v_lshrrev_b32 v{T0+1}, 1, v{T0}
    v_mul_u32_u24 v{V_XA}, {XA_PITCH}, v{T0+1}
    v_and_b32 v{T0}, 1, v{T0}
    v_lshlrev_b32 v{T0}, 3, v{T0}
    v_lshrrev_b32 v{T0+1}, 2, v1
    v_lshl_add_u32 v{T0+1}, v2, 2, v{T0+1}
    v_lshlrev_b32 v{T0+1}, 4, v{T0+1}
    v_add3_u32 v{V_XA}, v{V_XA}, v{T0}, v{T0+1}
    v_add_u32 v{V_XA}, {XA_BASE}, v{V_XA}
    s_mul_i32 s72, {wv}, {2*XA_PITCH}
    s_add_u32 s72, s72, {XA_BASE}
    v_add_u32 v{V_XA+1}, s72, v{V_L16}
    v_add_u32 v{V_XA+2}, {GW_LDS}, v{V_L16}''')
    a.e(f'''s_lshl_b32 s84, s49, 3
    s_lshl_b32 s85, {wv}, 1
    s_add_u32 s84, s84, s85
    s_lshr_b32 s85, s84, 4
    s_lshl_b32 s85, s85, 11
    s_lshr_b32 s86, s50, 4
    s_lshl_b32 s86, s86, 10
    s_add_u32 s85, s85, s86
    s_lshr_b32 s86, s84, 2
    s_and_b32 s86, s86, 3
    s_lshl_b32 s86, s86, 8
    s_add_u32 s85, s85, s86
    s_and_b32 s86, s50, 15
    s_lshl_b32 s86, s86, 4
    s_add_u32 s85, s85, s86
    s_and_b32 s86, s84, 3
    s_lshl_b32 s86, s86, 2
    s_add_u32 s85, s85, s86
    s_add_u32 s85, s85, {WS_G}
    ''')
    if mt!='0' and ('W' in mt or '2' in mt):
        a.e(f'''v_lshlrev_b32 v5, 7, v0
        v_mov_b32 v6, {OOB}
        v_cmp_gt_u32 vcc, 33, v0
        v_cndmask_b32 v7, v6, v5, vcc
        v_cmp_gt_u32 vcc, 56, v0
        v_cndmask_b32 v6, v6, v5, vcc
        s_cmp_eq_u32 {wv}, 2
        s_cselect_b32 s56, 0, {OOB}
        v_add_u32 v5, s56, v7
        s_cmp_eq_u32 {wv}, 3
        s_cselect_b32 s56, 0, {OOB}
        v_add_u32 v7, s56, v7
        s_cmp_eq_u32 {wv}, 0
        s_cselect_b32 s56, 0, {OOB}
        v_add_u32 v6, s56, v6
        s_mul_i32 s56, s2, {33*128}
        v_add_u32 v5, s56, v5
        v_add_u32 v7, s56, v7
        s_mul_i32 s57, s2, 7168''')
        if 'W' in mt:
            a.e(f'buffer_load_dword v245, v5, {srd(S_WR)}, 0 offen')
            a.e(f'buffer_load_dword v245, v7, {srd(S_WI)}, 0 offen')
        if '2' in mt: a.e(f'buffer_load_dword v245, v6, {srd(S_W2)}, s57 offen')
    a.e('s_cmp_lg_u32 s58, 0'); a.e('s_cbranch_scc1 L_m_nos0'); a.cond_begin()
    a.e(f'''s_waitcnt vmcnt(0)
    v_mov_b32 v5, 1
    v_mov_b32 v6, 32
    s_mov_b64 exec, 1
    buffer_store_dword v5, v6, {srd(S_DBG)}, 0 offen sc1
    s_mov_b64 exec, -1''')
    a.cond_end(); a.e('L_m_nos0:')
    stamp(a,cfg,0)
    a.e('s_barrier')
    stamp(a,cfg,1)
    V_AF=112; V_GX=144; V_GW=184; V_D1C=152; V_D1S=168
    for pi in range(4):
        for ks in range(2):
            for hh in range(2):
                a.e(f'ds_read_b64_tr_b16 {vr(V_AF+8*pi+4*ks+2*hh,2)}, v{V_XA} offset:{pi*2*XA_PITCH+ks*512+hh*256}')
        if pi==1: lg_01=a.lgtok()
    lg_af=a.lgtok()
    a.e(f'ds_read_b128 {vr(V_GX,4)}, v{V_XA+1}')
    a.e(f'ds_read_b128 {vr(V_GX+4,4)}, v{V_XA+1} offset:{XA_PITCH}')
    a.e(f'ds_read_b128 {vr(V_GW,4)}, v{V_XA+2}')
    lg_gx=a.lgtok()
    for pi in range(4):
        if pi==0: a.wait_lg(lg_01)
        if pi==2: a.wait_lg(lg_af)
        for ks in range(2):
            A=vr(V_AF+8*pi+4*ks,4); c=vr(V_D1C+4*pi,4); s=vr(V_D1S+4*pi,4)
            a.e(f'v_mfma_f32_16x16x32_bf16 {c}, {A}, {vr(V_B1C+4*ks,4)}, {c if ks else 0}')
            a.e(f'v_mfma_f32_16x16x32_bf16 {s}, {A}, {vr(V_B1S+4*ks,4)}, {s if ks else 0}')
    a.wait_lg(lg_gx)
    V_Z=T0+2; V_GOUT=T0+4
    for d in range(4):
        for rr in range(2):
            a.e(f'v_dot2_f32_bf16 v{V_Z+rr}, v{V_GX+4*rr+d}, v{V_GW+d}, {("v%d"%(V_Z+rr)) if d else 0}')
    TT=TA; V_B2=V_AF
    red=[('row_shr:1 row_mask:0xf bank_mask:0xf bound_ctrl:1'),('row_shr:2 row_mask:0xf bank_mask:0xf bound_ctrl:1'),
         ('row_shr:4 row_mask:0xf bank_mask:0xf bound_ctrl:1'),('row_shr:8 row_mask:0xf bank_mask:0xf bound_ctrl:1'),
         ('row_bcast:15 row_mask:0xa bank_mask:0xf'),('row_bcast:31 row_mask:0xc bank_mask:0xf')]
    ri=0
    for pi in range(4):
        cmul_pack(a,V_D1C+4*pi,V_D1S+4*pi,V_TC,V_TS,V_B2+4*pi,TT)
        for _ in range(2 if pi<2 else 1):
            for rr in range(2): a.e(f'v_add_f32_dpp v{V_Z+rr}, v{V_Z+rr}, v{V_Z+rr} {red[ri]}')
            ri+=1
    V_D2=V_D1C; V_D2N=V_D1S
    for pi in range(4):
        a.e(f'v_mfma_f32_16x16x32_bf16 {vr(V_D2+4*pi,4)}, {vr(V_A2,4)}, {vr(V_B2+4*pi,4)}, 0')
        a.e(f'v_mfma_f32_16x16x32_bf16 {vr(V_D2N+4*pi,4)}, {vr(V_A2N,4)}, {vr(V_B2+4*pi,4)}, 0')
    for rr in range(2): a.e(f'v_mul_f32 v{V_Z+rr}, {fl(-LOG2E)}, v{V_Z+rr}')
    for rr in range(2): a.e(f'v_exp_f32 v{V_Z+rr}, v{V_Z+rr}')
    for rr in range(2): a.e(f'v_add_f32 v{V_Z+rr}, 1.0, v{V_Z+rr}')
    for rr in range(2): a.e(f'v_rcp_f32 v{V_GOUT+rr}, v{V_Z+rr}')
    a.e(f'''s_cmp_eq_u32 {wv}, 0
    s_cselect_b32 s74, 1, 0
    s_mov_b32 s75, 0''')
    V_TO=8
    for pi in range(4):
        for rho in range(2):
            re=V_D2+4*pi+2*rho; im=re+1
            a.e(f'v_cndmask_b32 v{im}, v{im}, v{V_D2N+4*pi+2*rho+1}, s[74:75]')
            a.e(f'v_cvt_pk_bf16_f32 v{V_TO+2*pi+rho}, v{re}, v{im}')
    a.e(f'''v_lshrrev_b32 v18, 5, v0
    v_lshlrev_b32 v18, 11, v18
    v_and_b32 v19, 31, v0
    v_lshl_add_u32 v18, v19, 4, v18
    s_lshl_b32 s93, {wv}, 9
    v_add_u32 v18, s93, v18
    s_lshl_b32 s90, s2, 13
    s_add_u32 s90, s90, {WS_T}
    v_mov_b32 v16, v{V_GOUT}
    v_mov_b32 v17, v{V_GOUT+1}
    v_mov_b32 v19, 0
    s_mov_b32 s91, s85''')
    def row_stores():
        if cfg.x.get('x_nors'): return
        a.e(f'''s_add_u32 s93, s90, 4096
        buffer_store_dwordx4 v[8:11], v18, {srd(S_WS)}, s90 offen {cfg.f("stT")}
        buffer_store_dwordx4 v[12:15], v18, {srd(S_WS)}, s93 offen {cfg.f("stT")}
        s_mov_b32 exec_lo, 0
        s_mov_b32 exec_hi, 0x80000000
        buffer_store_dwordx2 v[16:17], v19, {srd(S_WS)}, s91 offen {cfg.f("stG")}
        s_mov_b64 exec, -1''')
    if cfg.x.get('rs_at',9)<0: row_stores()
    stamp(a,cfg,17)
    V_XF=80; V_XR=96; V_VA=102; V_BIAS=108; V_ACC=136; V_WF=192; V_BRAW=220; T0=234
    a.e(f'''s_lshl_b32 s76, {wv}, 12
    v_lshlrev_b32 v{T0}, 7, v1
    v_add_u32 v{T0}, s76, v{T0}
    v_lshrrev_b32 v{T0+1}, 1, v1
    v_xor_b32 v{T0+1}, v{T0+1}, v2
    v_lshl_add_u32 v{V_XR}, v{T0+1}, 4, v{T0}
    v_xor_b32 v{T0+1}, 4, v{T0+1}
    v_lshl_add_u32 v{V_XR+1}, v{T0+1}, 4, v{T0}
    v_mul_u32_u24 v{V_VA}, 1920, v2
    v_lshrrev_b32 v{T0}, 2, v1
    v_mul_u32_u24 v{T0}, 224, v{T0}
    v_and_b32 v{T0+1}, 3, v0
    v_lshlrev_b32 v{T0+1}, 3, v{T0+1}
    v_add3_u32 v{V_VA}, v{V_VA}, v{T0}, v{T0+1}
    v_add_u32 v{V_VA}, 16384, v{V_VA}
    s_cmp_eq_u32 s48, 0
    s_cselect_b32 s76, 192, 0
    v_add_u32 v{V_VA+1}, s76, v{V_VA}
    s_lshl_b32 s76, s48, 5
    v_add_u32 v{V_VA}, s76, v{V_VA}''')
    for st_ in (1,2):
        for j in range(2):
            a.e(f'v_add_u32 v{V_XR+2*st_+j}, {2*st_*SLOT}, v{V_XR+j}')
            a.e(f'v_add_u32 v{V_VA+2*st_+j}, {2*st_*SLOT}, v{V_VA+j}')
    a.e(f'''v_lshlrev_b32 v{T0}, 3, v2
    s_lshl_b32 s76, s48, 5
    s_add_u32 s77, s76, {B1_LDS}
    v_add_u32 v{T0+1}, s77, v{T0}
    s_cmp_eq_u32 s48, 0
    s_cselect_b32 s77, 192, 0
    s_add_u32 s77, s77, {B1_LDS}
    v_add_u32 v{T0}, s77, v{T0}''')
    if cfg.x.get('prio'): a.e(f's_setprio {cfg.x["prio"]}')
    a.e('s_barrier')
    stamp(a,cfg,3)
    a.e(f'''s_mul_i32 s93, {wv}, {2*XA_PITCH}
    s_add_u32 s93, s93, {XA_BASE}
    v_lshl_add_u32 v20, v0, 5, s93
    v_add_u32 v21, s93, v{V_L16}
    ds_write_b128 v20, v[8:11]
    ds_write_b128 v20, v[12:15] offset:16
    s_waitcnt lgkmcnt(0)
    ds_read_b128 v[8:11], v21
    ds_read_b128 v[12:15], v21 offset:1024''')
    def slot_set(c):
        j=c%5; return (j//2, (j%2)*SLOT)
    def w_read1(s,t,hh):
        c,kk=s//2,s%2; st_,off=slot_set(c)
        va=V_VA+2*st_+(1 if t==6 else 0)
        o=off+kk*7680+(32*t if t<6 else 0)
        a.e(f'ds_read_b64_tr_b16 {vr(V_WF+4*t+2*hh,2)}, v{va} offset:{o+960*hh}')
        return a.lgtok()
    def x_read1(s,nb):
        c,kk=s//2,s%2; st_,off=slot_set(c)
        a.e(f'ds_read_b128 {vr(V_XF+8*(s%2)+4*nb,4)}, v{V_XR+2*st_+kk} offset:{off+2048*nb}')
        return a.lgtok()
    for t in range(6): a.e(f'ds_read_b64 {vr(V_BRAW+2*t,2)}, v{T0+1} offset:{32*t}')
    a.e(f'ds_read_b64 {vr(V_BRAW+12,2)}, v{T0}')
    lg_b=a.lgtok()
    tw={}; tx={}
    for nb in range(2): tx[(0,nb)]=x_read1(0,nb)
    for t in range(3):
        for hh in range(2): tw[(0,t,hh)]=w_read1(0,t,hh)
    a.wait_lg(lg_b)
    for t in range(7):
        for d in range(2):
            raw=V_BRAW+2*t+d
            a.e(f'v_lshlrev_b32 v{V_BIAS+4*t+2*d}, 16, v{raw}')
            a.e(f'v_and_b32 v{V_BIAS+4*t+2*d+1}, 0xffff0000, v{raw}')
    for t in range(3,7):
        for hh in range(2): tw[(0,t,hh)]=w_read1(0,t,hh)
    for s in range(16):
        for t in range(7):
            need=max(tw[(s,t,1)],tx[(s,1)])
            n=a.lg-need
            if t%2==0 or t==1 or s==0 or True: a.e(f's_waitcnt lgkmcnt({min(n,15)})')
            for nb in range(2):
                acc=vr(V_ACC+28*nb+4*t,4)
                cc=acc if s>0 else vr(V_BIAS+4*t,4)
                a.e(f'v_mfma_f32_16x16x32_bf16 {acc}, {vr(V_WF+4*t,4)}, {vr(V_XF+8*(s%2)+4*nb,4)}, {cc}')
                if nb==0 and t==1 and s%2==1 and s<15:
                    if cfg.fine==2: stamp(a,cfg,32+2*(s//2))
                    if s==(7 if cfg.x.get('s1two',0) else 13): a.e('s_waitcnt vmcnt(0)')
                    a.e('s_barrier')
                    if cfg.fine==2: stamp(a,cfg,33+2*(s//2))
                ps,pt=(s+1,t-1) if t>=1 else (s,6)
                if (t>=1 and s<15) or (t==0 and 1<=s<=15 and (s,6,nb) not in tw):
                    tw[(ps,pt,nb)]=w_read1(ps,pt,nb)
                if t==2 and s<15: tx[(s+1,nb)]=x_read1(s+1,nb)
                if t==4 and nb==1 and s==cfg.x.get('rs_at',9): row_stores()
    a.e('s_barrier')
    stamp(a,cfg,4)
    V_E=V_WF; V_O=V_BIAS
    a.e(f's_mov_b32 s84, {fl(LOG2E)}'); a.e(f's_mov_b32 s85, {fl(LOG2E)}'); a.e(f's_mov_b32 s86, {fl(30.0)}')
    a.e(f'''s_mul_i32 s87, s7, 7
    s_add_u32 s87, s87, s48
    s_lshr_b32 s87, s87, 1
    s_lshl_b32 s87, s87, 12
    s_mul_i32 s88, s6, {2*RT_STRIDE}
    s_lshl_b32 s89, {wv}, 10
    s_add_u32 s88, s88, s89
    s_add_u32 s88, s88, {WS_ACT}
    s_add_u32 s88, s88, s87
    s_mov_b32 s89, {3*4096}
    s_cmp_eq_u32 s48, 0
    s_cselect_b32 s89, s89, {(-4096+512)&0xffffffff}
    s_add_u32 s89, s89, s88
    v_lshlrev_b32 v4, 3, v0''')
    G=4
    for nb in range(2):
        pairs=[(V_ACC+28*nb+4*t+2*d, V_O+14*nb+2*t+d) for t in range(7) for d in range(2)]
        for g0 in range(0,len(pairs),G):
            grp=pairs[g0:g0+G]
            Tq=lambda i: V_E+4*i
            for i,(h,o) in enumerate(grp): a.e(f'v_pk_mul_f32 {vr(Tq(i),2)}, {vr(h,2)}, s[84:85]')
            for i,(h,o) in enumerate(grp):
                a.e(f'v_min_f32 v{Tq(i)}, s86, v{Tq(i)}'); a.e(f'v_min_f32 v{Tq(i)+1}, s86, v{Tq(i)+1}')
            for i,(h,o) in enumerate(grp):
                a.e(f'v_exp_f32 v{Tq(i)}, v{Tq(i)}'); a.e(f'v_exp_f32 v{Tq(i)+1}, v{Tq(i)+1}')
            for i,(h,o) in enumerate(grp): a.e(f'v_pk_add_f32 {vr(Tq(i)+2,2)}, {vr(Tq(i),2)}, 2.0 op_sel_hi:[1,0]')
            for i,(h,o) in enumerate(grp): a.e(f'v_pk_mul_f32 {vr(Tq(i),2)}, {vr(Tq(i),2)}, {vr(Tq(i)+2,2)}')
            for i,(h,o) in enumerate(grp): a.e(f'v_pk_add_f32 {vr(Tq(i)+2,2)}, {vr(Tq(i),2)}, 2.0 op_sel_hi:[1,0]')
            for i,(h,o) in enumerate(grp):
                a.e(f'v_rcp_f32 v{Tq(i)+2}, v{Tq(i)+2}'); a.e(f'v_rcp_f32 v{Tq(i)+3}, v{Tq(i)+3}')
            for i,(h,o) in enumerate(grp): a.e(f'v_pk_mul_f32 {vr(Tq(i),2)}, {vr(Tq(i),2)}, {vr(Tq(i)+2,2)}')
            for i,(h,o) in enumerate(grp): a.e(f'v_pk_mul_f32 {vr(Tq(i),2)}, {vr(Tq(i),2)}, {vr(h,2)}')
            for i,(h,o) in enumerate(grp): a.e(f'v_cvt_pk_bf16_f32 v{o}, v{Tq(i)}, v{Tq(i)+1}')
            done=min(len(pairs),g0+G)
            if cfg.x.get('actil'):
                for pp in range(3):
                    if g0<4*(pp+1)<=done:
                        a.e(f'buffer_store_dwordx4 {vr(V_O+14*nb+4*pp,4)}, v{V_L16}, {srd(S_WS)}, s88 offen {cfg.f("stA")}')
                        a.e('s_add_u32 s88, s88, 4096')
                if done==14:
                    a.e(f'buffer_store_dwordx2 {vr(V_O+14*nb+12,2)}, v4, {srd(S_WS)}, s89 offen {cfg.f("stA")}')
        if nb==0 and cfg.x.get('actil'):
            a.e(f's_add_u32 s88, s88, {RT_STRIDE-3*4096}')
            a.e(f's_add_u32 s89, s89, {RT_STRIDE}')
    if not cfg.x.get('actil'):
        for nb in range(2):
            for pp in range(3):
                a.e(f'buffer_store_dwordx4 {vr(V_O+14*nb+4*pp,4)}, v{V_L16}, {srd(S_WS)}, s88 offen {cfg.f("stA")}')
                a.e('s_add_u32 s88, s88, 4096')
            a.e(f'buffer_store_dwordx2 {vr(V_O+14*nb+12,2)}, v4, {srd(S_WS)}, s89 offen {cfg.f("stA")}')
            if nb==0:
                a.e(f's_add_u32 s88, s88, {RT_STRIDE-3*4096}')
                a.e(f's_add_u32 s89, s89, {RT_STRIDE}')
    stamp(a,cfg,5)
    parts=p2_table_parts(a,cfg); npre=cfg.x.get('tabpre',4)
    for part in parts[:npre]: part()
    stamp(a,cfg,24)
    a.e('s_mov_b32 s93, 32'); poll_w0(a,S_DBG,'s93',1,0,1)
    a.e('s_waitcnt vmcnt(0)')
    a.e('s_barrier')
    stamp(a,cfg,7)
    p2_small_loads(a,cfg)
    tok_w=a.vmtok()
    for part in parts[npre:]: part()
    stamp(a,cfg,25)
    p2_compute(a,cfg,tok_w)
    tok_y=a.vmtok()
    stamp(a,cfg,8)
    m_g2_ids(a,cfg)
    T=5
    w2_dma_addr(a,V_W2D,T)
    a.e(f"""v_lshrrev_b32 v{T}, 2, v1
    v_lshl_add_u32 v{T+1}, v2, 2, v{T}
    v_lshlrev_b32 v{V_W2A}, 7, v{T+1}
    v_lshrrev_b32 v{T+1}, 1, v{T+1}
    v_and_b32 v{T+1}, 3, v{T+1}
    v_and_b32 v{T}, 3, v0
    v_lshl_add_u32 v{V_W2A}, v{T}, 3, v{V_W2A}
    v_add_u32 v{V_W2A}, s71, v{V_W2A}""")
    for c in (3,2,1,0):
        a.e(f'v_xor_b32 v{T}, {c}, v{T+1}')
        a.e(f'v_lshl_add_u32 v{V_W2A+c}, v{T}, 5, v{V_W2A}')
    stamp(a,cfg,9)
    a.e('s_waitcnt vmcnt(0)')
    a.e(f's_lshl_b32 s93, s72, 7'); a.e(f's_add_u32 s93, s93, {WS_CNT}')
    poll_w0(a,S_WS,'s93',1,0,16)
    a.e('s_barrier')
    stamp(a,cfg,10)
    m_gemm2(a,cfg,tok_y)
    stamp(a,cfg,13)
    stamps_flush(a,cfg)
    a.e(f's_branch {end}')
    p2_special(a,cfg)

def m_gemm2(a,cfg,tok_y):
    V_ACC=80; V_AF=144; D=8; V_G=72
    RB=lambda t: (8+16*(t%D)) if (t%D)<4 else (160+16*(t%D-4))
    toks={}; tokw={}
    def need(d,k):
        while k not in d: a.bg_pop()
    def a_read1(t,c,hh):
        a.e(f'ds_read_b64_tr_b16 {vr(V_AF+4*c+2*hh,2)}, v{V_W2A+c} offset:{(t%8)*4096+2048*hh}')
        return a.lgtok()
    def push_loads(t):
        b=RB(t)
        if t>=14:
            psi=t-14
            for u in range(4):
                a.bg_push([f's_add_u32 s79, s78, {(16*psi+u)*8192}',
                           f'buffer_load_dwordx4 {vr(b+4*u,4)}, v6, {srd(S_WS)}, s79 offen {cfg.f("ldY")}'],
                          (lambda t=t: toks.__setitem__(t,a.vmtok())) if u==3 else None)
            return
        sc=cfg.f('ldA')
        for q in range(4):
            if t in(3,10):
                l=[f'buffer_load_dwordx2 {vr(b+4*q,2)}, v4, {srd(S_WS)}, s69 offen offset:{1024*q} {sc}',
                   f'buffer_load_dwordx2 {vr(b+4*q+2,2)}, v4, {srd(S_WS)}, s69 offen offset:{1024*q+512} {sc}']
            else:
                l=[f'buffer_load_dwordx4 {vr(b+4*q,4)}, v{V_L16}, {srd(S_WS)}, s69 offen offset:{1024*q} {sc}']
            if q==3: l.append('s_add_u32 s69, s69, 4096')
            a.bg_push(l,(lambda t=t: toks.__setitem__(t,a.vmtok())) if q==3 else None)
    def push_w2(t):
        for v in range(4):
            a.bg_push(w2_group(t,v,V_W2D),(lambda t=t: tokw.__setitem__(t,a.vmtok())) if v==3 else None)
    a.e('v_lshlrev_b32 v4, 3, v0')
    npre=cfg.x.get('npre',4)
    for t in range(npre): push_loads(t)
    a.bg_flush()
    nxt=npre
    a.e(f"""v_lshlrev_b32 v5, 4, v1
    v_lshlrev_b32 v6, 15, v2
    v_add_u32 v6, v6, v5
    v_add_u32 v7, s71, v{V_L16}
    s_lshl_b32 s78, {wv}, 19
    s_add_u32 s78, s78, s74
    s_add_u32 s78, s78, {WS_Y}""")
    ta={}
    for c in range(4):
        for hh in range(2): ta[(0,c,hh)]=a_read1(0,c,hh)
    a.bg_set(cfg.x.get('g2r',2),mfma_weight=2)
    TS3=cfg.x.get('ts3',10)
    for t in range(18):
        if cfg.fine==1: stamp(a,cfg,32+t)
        need(toks,t); a.wait_vm(toks[t])
        if t+1 in range(8,14):
            need(tokw,t+1); a.wait_vm(tokw[t+1])
        k_=0
        while nxt<14 and nxt-D<t and k_<2 and t<14:
            if nxt-D==t-0 and False: break
            if nxt-D>=t: break
            push_loads(nxt); nxt+=1; k_+=1
        if 1<=t and t-1+8<14: push_w2(t-1+8)
        if t==TS3+1: push_loads(14); push_loads(15)
        if t==TS3+2: push_loads(16); push_loads(17)
        b=RB(t)
        if t==14:
            a.need_vm(tok_g)
            for q in range(4): a.e(f'v_sub_f32 v{V_G+q}, 1.0, v{V_G+q}')
            for q in range(4):
                for h in range(8):
                    a.e(f'v_pk_mul_f32 {vr(V_ACC+16*q+2*h,2)}, {vr(V_ACC+16*q+2*h,2)}, {vr(V_G+(q&~1),2)} op_sel:[0,{q&1}] op_sel_hi:[1,{q&1}]')
            stamp(a,cfg,11)
        if t>=14:
            tg=[]
            for c in range(4):
                a.e(f'ds_read_b128 {vr(V_AF+4*c,4)}, v7 offset:{GSLOT[t-14]*4096+c*1024}'); tg.append(a.lgtok())
            for (i,j) in[(0,1),(0,2),(0,3),(1,2),(1,3),(2,3)]:
                a.e(f'v_swap_b32 v{b+4*i+j}, v{b+4*j+i}')
        for c in range(4):
            if t<14:
                n=a.lg-ta[(t,c,1)]
                a.e(f's_waitcnt lgkmcnt({min(n,15)})')
            else:
                a.e(f's_waitcnt lgkmcnt({min(a.lg-tg[c],15)})')
            A=vr(V_AF+4*c,4)
            for q in range(4):
                d=vr(V_ACC+16*q+4*c,4)
                r=a.bg_rate
                if q<2 and t<14: a.bg_rate=0
                a.e(f'v_mfma_f32_16x16x32_bf16 {d}, {A}, {vr(b+4*q,4)}, {d if t else 0}')
                if q<2 and t<14:
                    if c>=1 and t<13: ta[(t+1,c-1,q)]=a_read1(t+1,c-1,q)
                    if c==0 and t>=1: ta[(t,3,q)]=a_read1(t,3,q)
                a.bg_rate=r
        if t==TS3:
            a.bg_flush()
            a.e(f's_mov_b32 s93, {WS_CNT+16*128}')
            poll_w0(a,S_WS,'s93',NS3,128,256//NS3)
            a.e('s_barrier')
            a.e(f's_add_u32 s75, s74, {WS_G}')
            a.e(f'buffer_load_dwordx4 {vr(V_G,4)}, v5, {srd(S_WS)}, s75 offen {cfg.f("ldW")}')
            tok_g=a.vmtok()
        if t==13: a.e('s_barrier')
    a.bg_flush(); a.bg_set(0)
    stamp(a,cfg,12)
    a.e(f'v_add_u32 v7, s71, v{V_L16}')
    for w in range(4):
        a.e(f's_cmp_lg_u32 {wv}, {w}')
        a.e(f's_cbranch_scc1 L_k3_w{w}')
        a.cond_begin()
        slot=0
        for q in range(4):
            if q==w: continue
            for c in range(4):
                a.e(f'ds_write_b128 v7, {vr(V_ACC+16*q+4*c,4)} offset:{slot*4096+c*1024}')
            slot+=1
        if w!=0:
            for h in range(8): a.e(f'v_pk_mov_b32 {vr(V_ACC+2*h,2)}, {vr(V_ACC+16*w+2*h,2)}, {vr(V_ACC+16*w+2*h,2)} op_sel:[0,1]')
        a.cond_end()
        a.e(f'L_k3_w{w}:')
    a.e('s_waitcnt lgkmcnt(0)'); a.e('s_barrier')
    V_RD=160
    for k in range(1,4):
        a.e(f"""s_add_u32 s76, {wv}, {k}
        s_and_b32 s76, s76, 3
        s_lshl_b32 s77, s76, 15
        s_cmp_lt_u32 {wv}, s76
        s_cselect_b32 s79, 0, 1
        s_sub_u32 s79, {wv}, s79
        s_lshl_b32 s79, s79, 12
        s_add_u32 s77, s77, s79
        v_add_u32 v7, s77, v{V_L16}""")
        for c in range(4): a.e(f'ds_read_b128 {vr(V_RD+16*(k-1)+4*c,4)}, v7 offset:{c*1024}')
    a.e(f"""v_lshlrev_b32 v5, 10, v1
    v_lshl_add_u32 v5, v2, 3, v5
    s_lshl_b32 s76, s72, 17
    s_lshl_b32 s77, {wv}, 15
    s_add_u32 s76, s76, s77
    s_lshl_b32 s77, s73, 14
    s_add_u32 s76, s76, s77
    s_lshl_b32 s77, s68, 7
    s_add_u32 s76, s76, s77""")
    for k in range(3):
        a.e(f's_waitcnt lgkmcnt({8-4*k})')
        for h in range(8): a.e(f'v_pk_add_f32 {vr(V_ACC+2*h,2)}, {vr(V_ACC+2*h,2)}, {vr(V_RD+16*k+2*h,2)}')
    V_O=8
    for c in range(4):
        a.e(f'v_cvt_pk_bf16_f32 v{V_O+2*c}, v{V_ACC+4*c}, v{V_ACC+4*c+1}')
        a.e(f'v_cvt_pk_bf16_f32 v{V_O+2*c+1}, v{V_ACC+4*c+2}, v{V_ACC+4*c+3}')
        a.e(f'buffer_store_dwordx2 {vr(V_O+2*c,2)}, v5, {srd(S_OUT)}, s76 offen offset:{32*c}')

P2=dict(V_U=8,V_W=40,V_GT=48,V_Q=56,T0=64,V_F64R=80,V_F64I=96,V_F32R=112,V_F32I=128,V_T1C=144,V_T1S=152,V_T3C=160,V_T3S=168,V_DR=176,V_DI=184,V_B=192)
V_FW2D=246
def f_stream(a,cfg,end):
    a.e('L_F:')
    a.e('s_mov_b32 s90, 1')
    if cfg.x.get('fprio'): a.e(f's_setprio {cfg.x["fprio"]}')
    a.e(f'''s_lshr_b32 s49, s2, 5
    s_and_b32 s50, s2, 31
    s_lshl_b32 s51, s6, 17
    s_lshl_b32 s56, {wv}, 13
    s_add_u32 s51, s51, s56
    s_mul_i32 s52, s7, 224
    s_mul_i32 s56, {wv}, 14336
    s_add_u32 s52, s52, s56
    s_lshl_b32 s53, {wv}, 10
    s_mul_i32 s54, {wv}, 960
    s_add_u32 s54, s54, 16384''')
    T=6; V_XD=4; V_WD=5
    a.e(f'''v_lshrrev_b32 v{T}, 3, v0
    v_lshlrev_b32 v{V_XD}, 10, v{T}
    v_lshrrev_b32 v{T}, 1, v{T}
    s_and_b32 s56, {wv}, 1
    s_lshl_b32 s56, s56, 2
    v_add_u32 v{T}, s56, v{T}
    v_and_b32 v{T+1}, 7, v0
    v_xor_b32 v{T}, v{T}, v{T+1}
    v_lshl_add_u32 v{V_XD}, v{T}, 4, v{V_XD}
    v_mul_u32_u24 v{T}, 4682, v0
    v_lshrrev_b32 v{T}, 16, v{T}
    v_mul_u32_u24 v{V_WD}, 3584, v{T}
    v_mul_u32_u24 v{T}, 14, v{T}
    v_sub_u32 v{T}, v0, v{T}
    v_lshl_add_u32 v{V_WD}, v{T}, 4, v{V_WD}
    v_mov_b32 v{V_LC}, {LC_BASE}''')
    a.e(f'''s_lshl_b32 s56, s49, 18
    s_lshl_b32 s57, s50, 10
    s_add_u32 s56, s56, s57
    s_lshl_b32 s57, {wv}, 16
    s_add_u32 s56, s56, s57
    s_add_u32 s58, s56, 32768
    s_mul_i32 s57, {wv}, {2*XA_PITCH}
    s_add_u32 s57, s57, {XA_BASE}''')
    a.e('s_waitcnt lgkmcnt(0)')
    stamp(a,cfg,26)
    a.e(f's_cmp_lg_u32 {wv}, 0'); a.e('s_cbranch_scc1 L_a_r0'); a.cond_begin()
    a.e(f's_mov_b32 m0, {GW_LDS}'); a.e('s_nop 0')
    a.e(f'buffer_load_dwordx4 v{V_L16}, {srd(S_GW)}, 0 offen lds')
    a.cond_end(); a.e('L_a_r0:')
    a.e(f's_cmp_lg_u32 {wv}, 1'); a.e('s_cbranch_scc1 L_a_r1'); a.cond_begin()
    a.e(f's_mul_i32 s64, s7, 224'); a.e(f's_mov_b32 m0, {B1_LDS}'); a.e('s_mov_b64 exec, 0x3fff')
    a.e(f'buffer_load_dwordx4 v{V_L16}, {srd(S_B1)}, s64 offen lds')
    a.e('s_mov_b64 exec, -1')
    a.cond_end(); a.e('L_a_r1:')
    tok_c={}
    def chunk_groups(c):
        gs=[]
        for u in range(4):
            gs.append(([f's_add_u32 m0, s53, {SB(c)+u*4096}', f's_add_u32 s55, s51, {u*32768+c*128}',
                        f'buffer_load_dwordx4 v{V_XD}, {srd(S_X)}, s55 offen lds'],None))
        for u in range(4):
            cb=(lambda c=c: tok_c.__setitem__(c,a.vmtok())) if u==3 else None
            gs.append(([f's_add_u32 m0, s54, {SB(c)+u*3840}', f's_add_u32 s55, s52, {u*57344+c*229376}',
                        's_mov_b32 exec_hi, 0x00ffffff',
                        f'buffer_load_dwordx4 v{V_WD}, {srd(S_W1)}, s55 offen lds',
                        's_mov_b32 exec_hi, -1'],cb))
        return gs
    def push_chunk(c):
        for g_ in chunk_groups(c): a.bg_push(*g_)
    def wait_role(tok,e3,e2):
        n=a.vm-tok; lab=f'L_wr{len(a.items)}'
        a.e(f's_cmp_eq_u32 {wv}, 3'); a.e(f's_cbranch_scc1 {lab}_3')
        a.e('s_cmp_eq_u32 s66, 0'); a.e(f's_cbranch_scc1 {lab}_2')
        a.e(f's_waitcnt vmcnt({n})'); a.e(f's_branch {lab}_e')
        a.e(f'{lab}_3:'); a.e(f's_waitcnt vmcnt({min(n+e3,62)})'); a.e(f's_branch {lab}_e')
        a.e(f'{lab}_2:'); a.e(f's_waitcnt vmcnt({min(n+e2,62)})')
        a.e(f'{lab}_e:')
    def chunk_now(c):
        if cfg.fine==3: stamp(a,cfg,48+2*c%16 if False else 40+c)
        push_chunk(c); a.bg_flush()
        if cfg.fine==3: stamp(a,cfg,50+c)
    a.e(f'''s_mov_b32 m0, s57
    s_add_u32 s57, s57, {XA_PITCH}
    buffer_load_dwordx4 v{V_L16}, {srd(S_X)}, s56 offen lds
    s_mov_b32 m0, s57
    s_nop 0
    buffer_load_dwordx4 v{V_L16}, {srd(S_X)}, s58 offen lds''')
    tok_xa=a.vmtok()
    chunk_now(0)
    if cfg.x.get('c1pre',1): chunk_now(1)
    if cfg.x.get('fprio'): a.e('s_setprio 0')
    stamp(a,cfg,0)
    a.wait_vm(tok_xa); a.e('s_barrier')
    stamp(a,cfg,1)
    if not cfg.x.get('c1pre',1): chunk_now(1)
    chunk_now(2)
    T0=92; V_B1S=68
    a.wait_vm(tok_c[0]); a.e('s_barrier')
    if cfg.fine==3: stamp(a,cfg,27)
    chunk_now(3)
    a.wait_vm(tok_c[1]); a.e('s_barrier')
    if cfg.fine==3: stamp(a,cfg,29)
    chunk_now(4)
    a.wait_vm(tok_c[2]); a.e('s_barrier')
    if cfg.fine==3: stamp(a,cfg,30)
    chunk_now(5)
    a.e('''s_lshr_b32 s59, s50, 3
    s_lshr_b32 s60, s50, 2
    s_and_b32 s60, s60, 1
    s_and_b32 s61, s50, 3
    s_lshl_b32 s62, s59, 4
    s_lshl_b32 s63, s60, 10
    s_add_u32 s62, s62, s63
    s_lshl_b32 s63, s61, 8
    s_add_u32 s62, s62, s63
    s_lshl_b32 s63, s59, 11
    s_lshl_b32 s64, s60, 10
    s_add_u32 s63, s63, s64
    s_lshl_b32 s64, s61, 8
    s_add_u32 s63, s63, s64''')
    V_WR=8; V_WI=24; V_WO=7
    a.e(f's_cmp_lg_u32 {wv}, {9 if cfg.x.get("x_norole") else 3}'); a.e('s_cbranch_scc1 L_a_r3'); a.cond_begin()
    a.e(f'''v_lshrrev_b32 v{V_WO}, 2, v0
    v_mul_u32_u24 v{V_WO}, 514, v{V_WO}
    v_and_b32 v{T}, 3, v0
    v_lshl_add_u32 v{V_WO}, v{T}, 4, v{V_WO}
    s_mul_i32 s64, s62, 514
    s_lshl_b32 s65, s49, 6
    s_add_u32 s64, s64, s65''')
    for r in range(4):
        a.e(f'buffer_load_dwordx4 {vr(V_WR+4*r,4)}, v{V_WO}, {srd(S_WR)}, s64 offen')
        a.e(f'buffer_load_dwordx4 {vr(V_WI+4*r,4)}, v{V_WO}, {srd(S_WI)}, s64 offen')
        if r<3: a.e(f's_add_u32 s64, s64, {64*514}')
    a.cond_end(); a.e('L_a_r3:')
    V_SP=40; V_J=48; V_JR=49
    a.e(f'''s_lshl_b32 s65, s49, 2
    s_xor_b32 s66, {wv}, 2
    s_or_b32 s66, s66, s65''')
    a.e('s_cmp_lg_u32 s66, 0'); a.e('s_cbranch_scc1 L_a_r2'); a.cond_begin()
    a.e(f'''v_lshlrev_b32 v{V_J}, 6, v2
    v_add_u32 v{V_J}, v{V_J}, v1
    v_add_u32 v{V_J}, s62, v{V_J}
    v_sub_u32 v{V_JR}, 2048, v{V_J}
    v_and_b32 v{V_JR}, 2047, v{V_JR}
    v_mul_u32_u24 v{V_J}, 514, v{V_J}
    v_mul_u32_u24 v{V_JR}, 514, v{V_JR}''')
    for n,(S,vv,off) in enumerate([(S_WR,V_J,0),(S_WR,V_J,512),(S_WR,V_JR,0),(S_WR,V_JR,512),(S_WI,V_J,0),(S_WI,V_J,512),(S_WI,V_JR,0),(S_WI,V_JR,512)]):
        a.e(f'buffer_load_ushort v{V_SP+n}, v{vv}, {srd(S)}, 0 offen offset:{off}')
    a.cond_end(); a.e('L_a_r2:')
    tok_role=a.vmtok()
    wait_role(tok_c[3],8,8); a.e('s_barrier')
    if cfg.fine==3: stamp(a,cfg,31)
    chunk_now(6)
    wait_role(tok_c[4],8,8); a.e('s_barrier')
    two=cfg.x.get('s1two',0)
    if two:
        a.e('s_and_b32 s92, s5, 3'); a.e('s_lshl_b32 s92, s92, 6')
        ssignal(a,S_DBG,'s92')
    if cfg.fine==3: stamp(a,cfg,32)
    chunk_now(7)
    a.e(f's_cmp_lg_u32 {wv}, {9 if cfg.x.get("x_norole") else 3}'); a.e('s_cbranch_scc1 L_a_w3')
    a.wait_vm(tok_role); a.cond_begin()
    V_WP=188
    a.e('s_mov_b32 s78, 0x05040100'); a.e('s_mov_b32 s79, 0x07060302')
    for kk in range(8):
        for r in range(4):
            a.e(f'v_perm_b32 v{V_WP+4*kk+r}, v{V_WI+4*r+(kk>>1)}, v{V_WR+4*r+(kk>>1)}, s{78+(kk&1)}')
    a.e(f'''v_and_b32 v{T0+4}, 3, v0
    v_lshlrev_b32 v{T0+5}, 16, v{T0+4}
    v_lshrrev_b32 v{T0+6}, 2, v0
    v_lshl_add_u32 v{T0+5}, v{T0+6}, 4, v{T0+5}
    s_lshl_b32 s76, s49, 2
    v_add_u32 v{T0+4}, s76, v{T0+4}
    v_cmp_eq_u32 vcc, 0, v{T0+4}
    v_mov_b32 v{T0+6}, {OOB}
    v_cndmask_b32 v{T0+6}, v{T0+5}, v{T0+6}, vcc
    s_lshl_b32 s76, s49, 18
    s_add_u32 s76, s76, s63
    s_add_u32 s76, s76, {WS_WT}''')
    for kk in range(8):
        a.e(f'buffer_store_dwordx4 {vr(V_WP+4*kk,4)}, v{T0+6 if kk==0 else T0+5}, {srd(S_WS)}, s76 offen {cfg.f("stW")}')
        if kk<7: a.e('s_add_u32 s76, s76, 8192')
    a.cond_end(); a.e('L_a_w3:')
    a.e('s_cmp_lg_u32 s66, 0'); a.e('s_cbranch_scc1 L_a_w2')
    a.wait_vm(tok_role); a.cond_begin()
    for n in range(8): a.e(f'v_lshlrev_b32 v{V_SP+n}, 16, v{V_SP+n}')
    s=V_SP; t=V_B1S
    a.e(f'''v_add_f32 v{t}, v{s}, v{s+2}
    v_add_f32 v{t+1}, v{s+1}, v{s+3}
    v_sub_f32 v{t+2}, v{s+4}, v{s+6}
    v_sub_f32 v{t+3}, v{s+5}, v{s+7}
    v_add_f32 v{t+4}, v{t}, v{t+1}
    v_add_f32 v{t+5}, v{t+2}, v{t+3}
    v_sub_f32 v{t+6}, v{t}, v{t+1}
    v_sub_f32 v{t+7}, v{t+2}, v{t+3}
    v_mul_f32 v{t+4}, {fl(0.25)}, v{t+4}
    v_mul_f32 v{t+5}, {fl(0.25)}, v{t+5}
    v_mul_f32 v{t+6}, {fl(0.25)}, v{t+6}
    v_mul_f32 v{t+7}, {fl(0.25)}, v{t+7}
    v_cvt_pk_bf16_f32 v{t}, v{t+4}, v{t+5}
    v_cvt_pk_bf16_f32 v{t+1}, v{t+6}, v{t+7}
    v_lshlrev_b32 v{t+2}, 4, v1
    v_lshl_add_u32 v{t+2}, v2, 2, v{t+2}
    s_add_u32 s77, s63, {WS_QT}
    s_add_u32 s76, s63, {WS_WT}
    buffer_store_dword v{t}, v{t+2}, {srd(S_WS)}, s76 offen {cfg.f("stW")}
    buffer_store_dword v{t+1}, v{t+2}, {srd(S_WS)}, s77 offen {cfg.f("stW")}''')
    a.cond_end(); a.e('L_a_w2:')
    a.wait_vm(tok_c[5]) if False else None
    a.e(f's_waitcnt vmcnt({cfg.x.get("b5n",18)})') if False else None
    wait_role(tok_c[5],16,10); a.e('s_barrier')
    if cfg.fine==3: stamp(a,cfg,33)
    m_g2_ids(a,cfg)
    w2_dma_addr(a,V_FW2D,244)
    wait_role(tok_c[6],8,2); a.e('s_barrier')
    if cfg.fine==3: stamp(a,cfg,34)
    if two:
        wait_role(tok_c[7],8,2); a.e('s_barrier')
    else:
        a.e('s_waitcnt vmcnt(0)'); a.e('s_barrier')
        a.e('s_and_b32 s92, s5, 3'); a.e('s_lshl_b32 s92, s92, 6')
        ssignal(a,S_DBG,'s92')
    if cfg.fine==3: stamp(a,cfg,35)
    a.e('s_barrier')
    if two:
        a.e(f's_cmp_eq_u32 {wv}, 3'); a.e('s_cbranch_scc1 L_f_s1b')
        a.e('s_cmp_lg_u32 s66, 0'); a.e('s_cbranch_scc1 L_f_nos1b')
        a.e('L_f_s1b:')
        a.cond_begin()
        a.e(f"""s_waitcnt vmcnt(0)
        s_and_b32 s92, s5, 3
        s_lshl_b32 s92, s92, 6
        s_add_u32 s92, s92, 4
        v_mov_b32 v{V_SIG}, 1
        v_mov_b32 v{V_SIG+1}, 0
        s_mov_b64 exec, 1
        buffer_atomic_add v{V_SIG}, v{V_SIG+1}, {srd(S_DBG)}, s92 offen sc1
        s_mov_b64 exec, -1""")
        a.cond_end(); a.e('L_f_nos1b:')
    stamp(a,cfg,4)
    def w2slots(lo,hi):
        for t in range(lo,hi):
            for v in range(4): a.bg_push(w2_group(t,v,V_FW2D))
        a.bg_flush()
    w2slots(0,cfg.x.get('w2pre',4))
    stamp(a,cfg,5)
    a.e(f's_cmp_lg_u32 {wv}, 0'); a.e('s_cbranch_scc1 L_f_s1'); a.cond_begin()
    if cfg.x.get('s1drain',1): a.e('s_waitcnt vmcnt(0)')
    a.e('s_mov_b32 s93, 0')
    spin_global(a,S_DBG,'s93',4,64,64)
    p2_t_loads(a,cfg)
    if two:
        a.e('s_mov_b32 s93, 4')
        spin_global(a,S_DBG,'s93',4,64,72)
    a.cond_end(); a.e('L_f_s1:')
    stamp(a,cfg,6)
    a.e('s_waitcnt vmcnt(0)'); a.e('s_barrier')
    a.e(f's_lshl_b32 s92, s6, 7'); a.e(f's_add_u32 s92, s92, {WS_CNT}')
    ssignal(a,S_WS,'s92')
    stamp(a,cfg,7)
    w2slots(cfg.x.get('w2pre',4),8)
    a.e('s_waitcnt vmcnt(0)'); a.e('s_barrier')
    a.e('s_lshl_b32 s56, s4, 5'); a.e('s_add_u32 s56, s56, s5')
    a.e('s_cmp_lg_u32 s56, 0'); a.e('s_cbranch_scc1 L_f_nospec'); a.cond_begin()
    a.e('s_barrier')
    a.cond_end(); a.e('L_f_nospec:')
    a.e('s_barrier')
    a.e(f's_and_b32 s92, s2, {NS3-1}'); a.e('s_lshl_b32 s92, s92, 7'); a.e(f's_add_u32 s92, s92, {WS_CNT+16*128}')
    ssignal(a,S_WS,'s92')
    T0=80; TA=92
    a.e(f"""s_lshl_b32 s75, s68, 6
    v_add_u32 v{T0}, s75, v1
    v_cvt_f32_u32 v{T0}, v{T0}
    s_lshl_b32 s75, {wv}, 6
    v_lshlrev_b32 v{T0+1}, 2, v2
    v_add_u32 v{T0+1}, s75, v{T0+1}
    v_cvt_f32_u32 v{T0+1}, v{T0+1}""")
    for c in range(4):
        a.e(f'v_add_f32 v{T0+2+c}, {fl(16*c)}, v{T0}' if c else f'v_mov_b32 v{T0+2}, v{T0}')
        a.e(f'v_mul_f32 v{T0+2+c}, {fl(1/512)}, v{T0+2+c}')
        a.e(f'v_mul_f32 v{T0+6+c}, v{T0+1}, v{T0+2+c}')
    def pk(d): return lambda c,s: a.e(f'v_cvt_pk_bf16_f32 v{d}, v{c}, v{s}')
    angles(a,[(T0+2+c,T0+6+c,16*psi+u,(None,None,pk(V_GF+16*psi+4*c+u)),False) for (psi,c,u) in G_ITEMS],TA)
    a.e(f"""s_cmp_eq_u32 {wv}, 0
    s_cselect_b32 s76, 0xffff, 0
    s_mov_b32 s77, 0
    v_mov_b32 v{T0}, {hex(0xBF003F00)}
    v_and_b32 v{T0+1}, 1, v1
    v_lshlrev_b32 v{T0+1}, 31, v{T0+1}
    v_xor_b32 v{T0}, v{T0}, v{T0+1}""")
    for c in range(4): a.e(f'v_cndmask_b32 v{V_GF+4*c}, v{V_GF+4*c}, v{T0}, s[76:77]')
    a.e(f'v_add_u32 v7, s71, v{V_L16}')
    a.e('s_barrier')
    for psi in range(4):
        for c in range(4):
            a.e(f'ds_write_b128 v7, {vr(V_GF+16*psi+4*c,4)} offset:{GSLOT[psi]*4096+c*1024}')
    a.e('s_waitcnt lgkmcnt(0)'); a.e('s_barrier')
    stamps_flush(a,cfg)
    a.e(f's_branch {end}')

def p2_t_loads(a,cfg):
    T0=64
    a.e(f'''s_lshl_b32 s56, s4, 5
    s_add_u32 s56, s56, s5
    v_lshrrev_b32 v{T0}, 5, v0
    v_lshlrev_b32 v{T0}, 18, v{T0}
    v_bfe_u32 v{T0+1}, v0, 1, 4
    v_lshl_add_u32 v{T0}, v{T0+1}, 13, v{T0}
    v_and_b32 v{T0+1}, 1, v0
    v_lshl_add_u32 v{T0}, v{T0+1}, 4, v{T0}
    s_lshl_b32 s57, s56, 5
    s_add_u32 s57, s57, {WS_T}''')
    for ks in range(4):
        for mb in range(2):
            a.e(f's_mov_b32 m0, {TB_BASE+2048*ks+1024*mb}')
            a.e(f's_add_u32 s58, s57, {ks*524288+mb*131072}')
            a.e(f'buffer_load_dwordx4 v{T0}, {srd(S_WS)}, s58 offen {cfg.f("ldT")} lds')

def p2_small_loads(a,cfg):
    V_W,V_GT,V_Q,T0=P2['V_W'],P2['V_GT'],P2['V_Q'],P2['T0']
    a.e(f'''s_lshl_b32 s56, s4, 5
    s_add_u32 s56, s56, s5
    s_lshl_b32 s60, s56, 13
    s_lshl_b32 s61, {wv}, 11
    s_add_u32 s60, s60, s61
    s_add_u32 s62, s60, {WS_WT}
    s_add_u32 s63, s61, {WS_G}
    s_add_u32 s64, s61, {WS_QT}''')
    for eh in range(2): a.e(f'buffer_load_dwordx4 {vr(V_W+4*eh,4)}, v{V_L16}, {srd(S_WS)}, s62 offen offset:{1024*eh} {cfg.f("ldW")}')
    for nb in range(2): a.e(f'buffer_load_dwordx4 {vr(V_GT+4*nb,4)}, v{V_L16}, {srd(S_WS)}, s63 offen offset:{1024*nb} {cfg.f("ldW")}')
    a.e(f'''s_cmp_eq_u32 s56, 0
    s_cselect_b32 s65, 0, {OOB}
    v_add_u32 v{T0+2}, s65, v{V_L16}''')
    for eh in range(2): a.e(f'buffer_load_dwordx4 {vr(V_Q+4*eh,4)}, v{T0+2}, {srd(S_WS)}, s64 offen offset:{1024*eh} {cfg.f("ldW")}')

def p2_table_parts(a,cfg):
    p=P2; T0=232; TA=200
    def pk(dr,di):
        def f(c,s):
            a.e(f'v_cvt_pk_bf16_f32 v{dr}, v{c}, v{s}')
            a.e(f'v_cvt_pk_bf16_f32 v{di}, -v{s}, v{c}')
        return f
    def part0():
        a.e(f'''s_lshl_b32 s83, {wv}, 4
        v_add_u32 v{T0}, s83, v1
        v_cvt_f32_u32 v{T0}, v{T0}
        v_lshlrev_b32 v{T0+2}, 2, v2
        v_cvt_f32_u32 v{T0+2}, v{T0+2}
        v_mul_f32 v{T0+1}, {fl(1/64)}, v{T0}
        v_mul_f32 v{T0+3}, v{T0+2}, v{T0+1}''')
        angles(a,[(T0+1,T0+3,16*ks+u,(None,None,pk(p['V_F64R']+4*ks+u,p['V_F64I']+4*ks+u)),False) for ks in range(3) for u in range(4)],TA)
    def part1():
        angles(a,[(T0+1,T0+3,16*ks+u,(None,None,pk(p['V_F64R']+4*ks+u,p['V_F64I']+4*ks+u)),False) for ks in range(3,4) for u in range(4)],TA)
        a.e(f'''v_mul_f32 v{T0+1}, {fl(1/2048)}, v{T0}
        v_mul_f32 v{T0+3}, v{T0+2}, v{T0+1}''')
        angles(a,[(T0+1,T0+3,16*mb+r,(p['V_T1C']+4*mb+r,p['V_T1S']+4*mb+r,None),True) for mb in range(2) for r in range(4)],TA)
    def part2():
        a.e(f'v_cvt_f32_u32 v{T0+7}, v1')
        for eh in range(2):
            a.e(f'''v_add_f32 v{T0+1}, {fl(16*eh)}, v{T0+7}
            v_mul_f32 v{T0+1}, {fl(1/32)}, v{T0+1}
            v_mul_f32 v{T0+3}, v{T0+2}, v{T0+1}''')
            angles(a,[(T0+1,T0+3,16*mb+u,(None,None,pk(p['V_F32R']+8*eh+4*mb+u,p['V_F32I']+8*eh+4*mb+u)),False) for mb in range(2) for u in range(4)],TA)
    def part3():
        a.e(f'''v_cvt_f32_u32 v{T0}, s83
        v_add_f32 v{T0+2}, v{T0}, v{T0+2}''')
        for nb in range(2):
            a.e(f'''v_add_f32 v{T0+1}, {fl(16*nb)}, v{T0+7}
            v_mul_f32 v{T0+1}, {fl(1/2048)}, v{T0+1}
            v_mul_f32 v{T0+3}, v{T0+2}, v{T0+1}''')
            angles(a,[(T0+1,T0+3,r,(p['V_T3C']+4*nb+r,p['V_T3S']+4*nb+r,None),True) for r in range(4)],TA)
    return [part0,part1,part2,part3]

def p2_compute(a,cfg,tok_w):
    p=P2
    V_U,V_W,V_GT,T0=p['V_U'],p['V_W'],p['V_GT'],p['T0']
    V_F64R,V_F64I,V_F32R,V_F32I=p['V_F64R'],p['V_F64I'],p['V_F32R'],p['V_F32I']
    V_T1C,V_T1S,V_T3C,V_T3S=p['V_T1C'],p['V_T1S'],p['V_T3C'],p['V_T3S']
    V_DR,V_DI,V_B=p['V_DR'],p['V_DI'],p['V_B']; TT=200
    a.e(f'''v_lshrrev_b32 v{T0+4}, 1, v2
    v_lshlrev_b32 v{T0+4}, 5, v{T0+4}
    v_lshl_add_u32 v{T0+4}, v1, 1, v{T0+4}
    v_and_b32 v{T0+5}, 1, v2
    v_add_u32 v{T0+4}, v{T0+4}, v{T0+5}
    v_lshlrev_b32 v{T0+4}, 4, v{T0+4}
    v_add_u32 v{T0+4}, {TB_BASE}, v{T0+4}''')
    for ks in range(4):
        for mb in range(2):
            a.e(f'ds_read_b128 {vr(V_U+16*mb+4*ks,4)}, v{T0+4} offset:{2048*ks+1024*mb}')
    V_WR=216; V_WI=224
    a.wait_vm(tok_w)
    for e in range(8):
        a.e(f'v_lshlrev_b32 v{V_WR+e}, 16, v{V_W+e}')
        a.e(f'v_and_b32 v{V_WI+e}, 0xffff0000, v{V_W+e}')
    for ks in range(4):
        a.e(f's_waitcnt lgkmcnt({6-2*ks})')
        for mb in range(2):
            A=vr(V_U+16*mb+4*ks,4)
            for (D,Fm) in((V_DR,V_F64R),(V_DI,V_F64I)):
                d=vr(D+4*mb,4)
                a.e(f'v_mfma_f32_16x16x32_bf16 {d}, {A}, {vr(Fm+4*ks,4)}, {d if ks else 0}')
    for e in range(8): a.e(f'v_mul_f32 v{V_GT+e}, {fl(2.0**-19)}, v{V_GT+e}')
    for mb in range(2): cmul_pack(a,V_DR+4*mb,V_DI+4*mb,V_T1C+4*mb,V_T1S+4*mb,V_B+4*mb,TT)
    for mb in range(2):
        for eh in range(2):
            for (D,Fm) in((V_DR,V_F32R),(V_DI,V_F32I)):
                d=vr(D+4*eh,4)
                a.e(f'v_mfma_f32_16x16x32_bf16 {d}, {vr(Fm+8*eh+4*mb,4)}, {vr(V_B+4*mb,4)}, {d if mb else 0}')
    a.e(f'''s_lshl_b32 s65, {wv}, 11
    s_add_u32 s65, s65, {XB_BASE}
    v_add_u32 v{T0+4}, s65, v{V_L16}
    v_add_u32 v{T0+5}, {XB_BASE}, v{V_L16}''')
    a.e('s_cmp_lg_u32 s56, 0')
    a.e('s_cbranch_scc0 L_p2_special')
    for eh in range(2): cmul_pack(a,V_DR+4*eh,V_DI+4*eh,V_WR+4*eh,V_WI+4*eh,V_B+4*eh,TT,negim=True)
    a.e('L_p2_join:')
    for ks in range(2):
        for nb in range(2):
            for (D,Fm) in((V_DR,V_F32R),(V_DI,V_F32I)):
                d=vr(D+4*nb,4)
                a.e(f'v_mfma_f32_16x16x32_bf16 {d}, {vr(V_B+4*ks,4)}, {vr(Fm+8*nb+4*ks,4)}, {d if ks else 0}')
    for nb in range(2):
        cmul_pack(a,V_DR+4*nb,V_DI+4*nb,V_T3C+4*nb,V_T3S+4*nb,V_B+4*nb,TT)
        a.e(f'ds_write_b128 v{T0+4}, {vr(V_B+4*nb,4)} offset:{1024*nb}')
    a.e('s_waitcnt lgkmcnt(0)')
    a.e('s_barrier')
    V_X=V_U
    for ks in range(4):
        for nb in range(2):
            a.e(f'ds_read_b128 {vr(V_X+8*ks+4*nb,4)}, v{T0+5} offset:{2048*ks+1024*nb}')
    for ks in range(4):
        a.e(f's_waitcnt lgkmcnt({6-2*ks})')
        for nb in range(2):
            for (D,Fm) in((V_DR,V_F64R),(V_DI,V_F64I)):
                d=vr(D+4*nb,4)
                a.e(f'v_mfma_f32_16x16x32_bf16 {d}, {vr(Fm+4*ks,4)}, {vr(V_X+8*ks+4*nb,4)}, {d if ks else 0}')
    a.e(f's_add_u32 s62, s60, {WS_Y}')
    for nb in range(2):
        for h in range(2):
            a.e(f'v_pk_mul_f32 {vr(V_DR+4*nb+2*h,2)}, {vr(V_DR+4*nb+2*h,2)}, {vr(V_GT+4*nb+2*h,2)}')
            a.e(f'v_pk_mul_f32 {vr(V_DI+4*nb+2*h,2)}, {vr(V_DI+4*nb+2*h,2)}, {vr(V_GT+4*nb+2*h,2)}')
        for r in range(4): a.e(f'v_cvt_pk_bf16_f32 v{V_B+4*nb+r}, v{V_DR+4*nb+r}, v{V_DI+4*nb+r}')
        a.e(f'buffer_store_dwordx4 {vr(V_B+4*nb,4)}, v{V_L16}, {srd(S_WS)}, s62 offen offset:{1024*nb} {cfg.f("stY")}')

def p2_special(a,cfg):
    p=P2
    V_U,V_Q,T0,V_DR,V_DI,V_B=p['V_U'],p['V_Q'],p['T0'],p['V_DR'],p['V_DI'],p['V_B']
    V_WR=216; V_WI=224
    a.e('L_p2_special:')
    a.cond_begin()
    V_J=T0+8; V_ZA=V_U+16
    a.e(f'''s_lshl_b32 s65, {wv}, 4
    v_lshlrev_b32 v{V_J}, 8, v2
    v_add3_u32 v{V_J}, v{V_J}, v1, s65''')
    for eh in range(2):
        for r in range(4):
            n=1024*eh+64*r
            a.e(f'v_add_u32 v{T0}, {n}, v{V_J}')
            a.e(f'v_lshlrev_b32 v{T0}, 2, v{T0}')
            a.e(f'v_cvt_pk_bf16_f32 v{T0+2}, v{V_DR+4*eh+r}, v{V_DI+4*eh+r}')
            a.e(f'v_add_u32 v{T0}, {ZR_BASE}, v{T0}')
            a.e(f'ds_write_b32 v{T0}, v{T0+2}')
    a.e('s_waitcnt lgkmcnt(0)')
    a.e('s_barrier')
    for eh in range(2):
        for r in range(4):
            n=1024*eh+64*r
            a.e(f'v_sub_u32 v{T0}, {2048-n}, v{V_J}')
            a.e(f'v_and_b32 v{T0}, 2047, v{T0}')
            a.e(f'v_lshlrev_b32 v{T0}, 2, v{T0}')
            a.e(f'v_add_u32 v{T0}, {ZR_BASE}, v{T0}')
            a.e(f'ds_read_b32 v{V_ZA+4*eh+r}, v{T0}')
    a.e('s_waitcnt lgkmcnt(0)')
    for e in range(8):
        zr=V_DR+e; zi=V_DI+e; pr=V_WR+e; pi=V_WI+e; ar_=T0+6; ai=T0+7
        qr=T0; qi=T0+1; yr=T0+2; yi=T0+3
        a.e(f'''v_lshlrev_b32 v{qr}, 16, v{V_Q+e}
        v_and_b32 v{qi}, 0xffff0000, v{V_Q+e}
        v_lshlrev_b32 v{ar_}, 16, v{V_ZA+e}
        v_and_b32 v{ai}, 0xffff0000, v{V_ZA+e}
        v_mul_f32 v{yr}, v{zr}, v{pr}
        v_fma_f32 v{yr}, -v{zi}, v{pi}, v{yr}
        v_fma_f32 v{yr}, v{ar_}, v{qr}, v{yr}
        v_fma_f32 v{yr}, v{ai}, v{qi}, v{yr}
        v_mul_f32 v{yi}, v{zr}, v{pi}
        v_fma_f32 v{yi}, v{zi}, v{pr}, v{yi}
        v_fma_f32 v{yi}, v{ar_}, v{qi}, v{yi}
        v_fma_f32 v{yi}, -v{ai}, v{qr}, v{yi}
        v_cvt_pk_bf16_f32 v{V_B+e}, v{yr}, -v{yi}''')
    a.cond_end()
    a.e('s_branch L_p2_join')

HEADER='''; Gated mix of a GFNet spectral filter and a dense->mish->dense block, one persistent launch.
; (text generated by the author's own generator script; 256 workgroups, one per CU, hand-offs through counters)
'''
def build(stamps=False,off=(),**kw):
    cfg=Cfg(); cfg.stamps=stamps; cfg.off=set(off); cfg.x=kw; cfg.fine=kw.get('fine',0)
    label=NAME+'_kernel'
    a=Asm(); end='L_end'
    prologue(a,cfg,end)
    sv=(a.vm,a.lg)
    if kw.get('ffirst'):
        f_stream(a,cfg,end)
        nbF=sum(1 for i in a.items if i.op=='s_barrier'); n0=len(a.items)
        a.vm,a.lg=sv; a.bg_rate=0; assert not a.bg
        a.e('L_M:')
        m_stream(a,cfg,end)
        nbM=sum(1 for i in a.items[n0:] if i.op=='s_barrier')
    else:
        m_stream(a,cfg,end)
        nbM=sum(1 for i in a.items if i.op=='s_barrier'); n0=len(a.items)
        a.vm,a.lg=sv; a.bg_rate=0; assert not a.bg
        f_stream(a,cfg,end)
        nbF=sum(1 for i in a.items[n0:] if i.op=='s_barrier')
    a.e(f'{end}:'); a.e('s_endpgm')
    txt=a.text()
    errs=[]
    for role in (False,True):
        jump=lambda t: (role and t=='L_F') or ((not role) and t=='L_M')
        for nm,pol in (('fall',lambda i,n:i.target.endswith('_done') or jump(i.target)),
                       ('taken',lambda i,n:((not i.target.startswith('L_end')) and n==0 and (i.target not in('L_F','L_M') or jump(i.target))))):
            errs+=verify_waits(a.out,pol,('F' if role else 'M')+nm)
    for e in sorted(set(errs))[:30]: print('WAITERR',e,file=sys.stderr)
    print(dict(a.count()),'barriers M',nbM,'F',nbF,file=sys.stderr)
    out=HEADER+f'; @launch grid=(256,1,1) block=(512,1,1) lds={LDS_TOTAL}\n'
    out+='.amdgcn_target "amdgcn-amd-amdhsa--gfx950"\n.text\n'
    out+=f'.globl {label}\n.p2align 8\n.type {label},@function\n{label}:\n{txt}'
    out+=f'''.section .rodata,"a"
.p2align 6
.amdhsa_kernel {label}
  .amdhsa_next_free_vgpr 256
  .amdhsa_next_free_sgpr 102
  .amdhsa_accum_offset 256
  .amdhsa_group_segment_fixed_size 0
  .amdhsa_kernarg_size 88
  .amdhsa_user_sgpr_count 2
  .amdhsa_user_sgpr_kernarg_segment_ptr 1
  .amdhsa_system_sgpr_workgroup_id_x 1
.end_amdhsa_kernel
'''
    return out

if __name__=='__main__':
    mode=sys.argv[1] if len(sys.argv)>1 else 'persist'
    kw={}
    for x in sys.argv[3:]:
        k,v=x.split('='); kw[k]=int(v) if v.lstrip('-').isdigit() else v
    off=kw.pop('off','').split(',') if 'off' in kw else ()
    txt=build(stamps=(mode=='stamps'),off=off,**kw)
    open(sys.argv[2] if len(sys.argv)>2 else 'out.s','w').write(txt)
```

```python
import sys, os, struct
from dsl import Asm, verify_waits

NAME='gated_mix__spectral_gfnet__dense_activation_mish__prompt'
WS_T   =0x000000
WS_WT  =0x200000
WS_QT  =0x400000
WS_G   =0x402000
WS_CNT =0x404000
WS_Y   =0x600000
WS_ACT =0x800000
WS_STAMP=0x1000000
WS_SIZE=0x1080000
RT_STRIDE=56*4096
S_X,S_WR,S_WI,S_W1,S_B1,S_W2,S_GW,S_OUT,S_WS,S_DBG=8,12,16,20,24,28,32,36,40,44
def srd(n): return f's[{n}:{n+3}]'
SRDS=[(S_X,0,2048*1024),(S_WR,8,2048*514),(S_WI,16,2048*514),(S_W1,32,512*3584),(S_B1,40,3584),
      (S_W2,48,1792*1024),(S_GW,56,1024),(S_OUT,64,2048*1024),(S_WS,80,WS_SIZE),(S_DBG,72,256)]
def vr(b,n=1): return f'v{b}' if n==1 else f'v[{b}:{b+n-1}]'
def fl(x): return hex(struct.unpack('<I',struct.pack('<f',float(x)))[0])
S_WV=3; S_W8=49
wv=f's{S_WV}'
LOG2E=1.4426950408889634
OOB=0x40000000
SLEEP=int(os.environ.get('SLEEP','8'))
SPIN_MAX=50000
SLOT=31744
SB=lambda c:(c%5)*SLOT
XA_BASE=4*SLOT; XA_PITCH=1152
GW_LDS=5*SLOT; B1_LDS=GW_LDS+1024
LC_BASE=GW_LDS+2048
TB_BASE=131072; XB_BASE=139264; ZR_BASE=147456; WB_BASE=155648
LDS_TOTAL=163840
V_L16=3
V_PD,V_PA,V_SIG=250,251,252

class Cfg:
    stamps=False; dbgst=False; sc='sc1'
    off=set()
    def f(self,tag): return '' if (tag in self.off or 'all' in self.off) else self.sc

def stamp(a,cfg,idx):
    if not cfg.stamps: return
    r=a.bg_rate; a.bg_rate=0
    a.e('s_memrealtime s[96:97]'); a.e('s_waitcnt lgkmcnt(0)'); a.e(f'v_writelane_b32 v255, s96, {idx}')
    a.bg_rate=r
def stamps_flush(a,cfg):
    if not cfg.stamps: return
    a.e(f"""v_lshrrev_b32 v254, 6, v249
    s_nop 0
    v_readfirstlane_b32 s98, v254
    s_lshl_b32 s99, s2, 3
    s_add_u32 s98, s98, s99
    s_lshl_b32 s98, s98, 8
    s_add_u32 s98, s98, {WS_STAMP}
    v_lshlrev_b32 v254, 2, v0
    buffer_store_dword v255, v254, {srd(S_WS)}, s98 offen""")

def signal(a,S,soff):
    vt=V_SIG
    a.e(f"""s_cmp_eq_u32 {wv}, 0
    s_cselect_b32 s95, 0, {OOB}
    v_mov_b32 v{vt}, 1
    v_mov_b32 v{vt+1}, s95
    s_mov_b64 exec, 1
    buffer_atomic_add v{vt}, v{vt+1}, {srd(S)}, {soff} offen sc1
    s_mov_b64 exec, -1""")

def ssignal(a,S,soff):
    lab=f'L_ss{len(a.items)}'
    a.e(f's_cmp_lg_u32 {wv}, 0'); a.e(f's_cbranch_scc1 {lab}')
    a.e(f's_atomic_add s90, s[{S}:{S+1}], {soff}')
    a.e(f'{lab}:')

def spin_global(a,S,soff,nl,stride,target):
    lab=f'L_poll{len(a.items)}'
    a.e(f'v_mul_u32_u24 v{V_PA}, {stride}, v0')
    a.e(f's_mov_b64 exec, {hex((1<<nl)-1)}')
    a.e(f's_mov_b32 s94, 0')
    a.e(f'{lab}:')
    a.e(f'buffer_load_dword v{V_PD}, v{V_PA}, {srd(S)}, {soff} offen sc1')
    a.e(f's_add_u32 s94, s94, 1')
    a.e(f's_waitcnt vmcnt(0)')
    a.e(f'v_cmp_gt_u32 vcc, {target}, v{V_PD}')
    a.e(f's_cbranch_vccz {lab}_done')
    a.e(f's_cmp_gt_u32 s94, {SPIN_MAX}')
    a.e(f's_cbranch_scc1 {lab}_done')
    a.e(f's_sleep {SLEEP}')
    a.e(f's_branch {lab}')
    a.e(f'{lab}_done:')
    a.e('s_mov_b64 exec, -1')

def poll_w0(a,S,soff,nl,stride,target):
    lab=f'L_pw{len(a.items)}'
    a.e(f's_cmp_lg_u32 {wv}, 0'); a.e(f's_cbranch_scc1 {lab}')
    a.cond_begin(); spin_global(a,S,soff,nl,stride,target); a.cond_end()
    a.e(f'{lab}:')

V_LC=248
def lc_add(a,idx,rtn=None):
    a.e(f'v_mov_b32 v{V_LC-1}, 1')
    a.e('s_mov_b64 exec, 1')
    if rtn is None: a.e(f'ds_add_u32 v{V_LC}, v{V_LC-1} offset:{4*idx}')
    else: a.e(f'ds_add_rtn_u32 v{rtn}, v{V_LC}, v{V_LC-1} offset:{4*idx}')
    a.e('s_mov_b64 exec, -1')
def lc_wait(a,idx,target):
    lab=f'L_lc{len(a.items)}'
    a.e('s_mov_b32 s94, 0')
    a.e(f'{lab}:')
    a.e(f'ds_read_b32 v{V_LC-1}, v{V_LC} offset:{4*idx}')
    a.e('s_add_u32 s94, s94, 1')
    a.e('s_waitcnt lgkmcnt(0)')
    a.e(f'v_readfirstlane_b32 s93, v{V_LC-1}')
    a.e(f's_cmp_ge_u32 s93, {target}')
    a.e(f's_cbranch_scc1 {lab}_done')
    a.e('s_sleep 1')
    a.e(f's_cmp_lt_u32 s94, {20*SPIN_MAX}')
    a.e(f's_cbranch_scc1 {lab}')
    a.e(f'{lab}_done:')

def angles(a,items,T):
    for i0 in range(0,len(items),4):
        grp=items[i0:i0+4]; src=[]
        for j,(sl,base,n,fin,neg) in enumerate(grp):
            if n==0: src.append(f'v{base}')
            else:
                a.e(f'v_fmamk_f32 v{T+j}, v{sl}, {fl(n)}, v{base}'); src.append(f'v{T+j}')
        outs=[]
        for j,(sl,base,n,fin,neg) in enumerate(grp):
            c,s=fin[0] if fin[0] is not None else T+4+j, fin[1] if fin[1] is not None else T+8+j
            a.e(f'v_cos_f32 v{c}, {src[j]}')
            a.e(f'v_sin_f32_e64 v{s}, -{src[j]}' if neg else f'v_sin_f32 v{s}, {src[j]}')
            outs.append((c,s))
        for j,(sl,base,n,fin,neg) in enumerate(grp):
            if fin[2]: fin[2](*outs[j])

def cmul_pack(a,c,s,tc,ts,dst,TT,n=4,negim=False):
    H=n//2
    for h in range(H): a.e(f'v_pk_mul_f32 {vr(TT+4*h,2)}, {vr(s+2*h,2)}, {vr(ts+2*h,2)}')
    for h in range(H): a.e(f'v_pk_mul_f32 {vr(TT+4*h+2,2)}, {vr(s+2*h,2)}, {vr(tc+2*h,2)}')
    for h in range(H): a.e(f'v_pk_fma_f32 {vr(TT+4*h,2)}, {vr(c+2*h,2)}, {vr(tc+2*h,2)}, {vr(TT+4*h,2)} neg_lo:[0,0,1] neg_hi:[0,0,1]')
    for h in range(H): a.e(f'v_pk_fma_f32 {vr(TT+4*h+2,2)}, {vr(c+2*h,2)}, {vr(ts+2*h,2)}, {vr(TT+4*h+2,2)}')
    ng='-' if negim else ''
    for h in range(H):
        a.e(f'v_cvt_pk_bf16_f32 v{dst+2*h}, v{TT+4*h}, {ng}v{TT+4*h+2}')
        a.e(f'v_cvt_pk_bf16_f32 v{dst+2*h+1}, v{TT+4*h+1}, {ng}v{TT+4*h+3}')

def prologue(a,cfg,end):
    a.e('s_cmp_ge_u32 s2, 256'); a.e(f's_cbranch_scc1 {end}')
    for (n,off,sz) in SRDS: a.e(f's_load_dwordx2 s[{n}:{n+1}], s[0:1], {off}')
    if cfg.x.get('pf_code') and cfg.x.get('pf_top'):
        nw=cfg.x['pf_top']
        a.e('s_getpc_b64 s[64:65]')
        a.e('v_lshrrev_b32 v56, 6, v0'); a.e('v_and_b32 v57, 63, v0')
        a.e('v_readfirstlane_b32 s66, v56')
        a.e('v_lshlrev_b32 v57, 4, v57')
        a.e('s_lshr_b32 s67, s2, 3'); a.e(f's_mul_i32 s67, s67, {nw}'); a.e('s_add_u32 s67, s67, s66')
        a.e('s_lshl_b32 s68, s67, 10')
        a.e('s_add_u32 s64, s64, s68'); a.e('s_addc_u32 s65, s65, 0')
        a.e('v_mov_b32 v59, s65'); a.e('v_add_co_u32 v58, vcc, s64, v57'); a.e('s_nop 1'); a.e('v_addc_co_u32 v59, vcc, 0, v59, vcc')
        a.e(f's_cmp_lt_u32 s66, {nw}'); a.e('s_cbranch_scc0 L_nopf0'); a.cond_begin()
        a.e(f's_cmp_lt_u32 s67, {cfg.x["pf_code"]}'); a.e('s_cbranch_scc0 L_nopf0')
        a.e('global_load_dwordx4 v[52:55], v[58:59], off')
        a.cond_end(); a.e('L_nopf0:')
    if cfg.stamps: a.e('v_mov_b32 v249, v0')
    a.e('v_lshrrev_b32 v1, 6, v0')
    a.e('v_and_b32 v0, 63, v0')
    a.e('v_readfirstlane_b32 s48, v1')
    a.e('v_and_b32 v1, 15, v0')
    a.e('v_lshrrev_b32 v2, 4, v0')
    a.e(f'v_lshlrev_b32 v{V_L16}, 4, v0')
    for (n,off,sz) in SRDS:
        a.e(f's_mov_b32 s{n+2}, {hex(sz)}'); a.e(f's_mov_b32 s{n+3}, 0x20000')
    a.e(f'''s_mov_b32 s51, s48
    s_and_b32 {wv}, s48, 3
    s_lshr_b32 s50, s48, 2
    s_and_b32 s4, s2, 7
    s_lshr_b32 s5, s2, 3
    s_lshr_b32 s6, s4, 1
    s_lshl_b32 s6, s6, 2
    s_lshr_b32 s56, s5, 3
    s_add_u32 s6, s6, s56
    s_and_b32 s7, s4, 1
    s_lshl_b32 s7, s7, 3
    s_and_b32 s56, s5, 7
    s_add_u32 s7, s7, s56
    s_and_b32 s48, s7, 1''')
    a.e('s_waitcnt lgkmcnt(0)')
    if cfg.x.get('pf_code') and not cfg.x.get('pf_top'):
        a.e('s_getpc_b64 s[64:65]')
        a.e('s_lshl_b32 s66, s5, 10')
        a.e('s_add_u32 s64, s64, s66'); a.e('s_addc_u32 s65, s65, 0')
        a.e(f'v_mov_b32 v57, s65'); a.e(f'v_add_co_u32 v56, vcc, s64, v{V_L16}'); a.e('s_nop 1'); a.e(f'v_addc_co_u32 v57, vcc, 0, v57, vcc')
        a.e(f's_cmp_lt_u32 s5, {cfg.x["pf_code"]}'); a.e('s_cbranch_scc0 L_nopf'); a.cond_begin()
        a.e(f's_cmp_lg_u32 s51, 2'); a.e('s_cbranch_scc1 L_nopf')
        a.e('global_load_dwordx4 v[52:55], v[56:57], off')
        a.cond_end(); a.e('L_nopf:')
    mt=str(cfg.x.get('mt','xw'))
    if mt!='0':
        a.e(f'''v_lshlrev_b32 v5, 7, v0
        v_mov_b32 v6, {OOB}
        v_cmp_gt_u32 vcc, 56, v0
        v_cndmask_b32 v6, v6, v5, vcc
        s_cmp_eq_u32 s51, 0
        s_cselect_b32 s56, 0, {OOB}
        v_add_u32 v5, s56, v5
        s_cmp_eq_u32 s51, 1
        s_cselect_b32 s56, 0, {OOB}
        v_add_u32 v7, s56, v6
        s_lshl_b32 s56, s2, 13
        s_mul_i32 s57, s2, 7168''')
        if 'x' in mt: a.e(f'buffer_load_dword v245, v5, {srd(S_X)}, s56 offen')
        if 'w' in mt: a.e(f'buffer_load_dword v245, v7, {srd(S_W1)}, s57 offen')
    if cfg.x.get('tlb'):
        a.e(f'''v_lshlrev_b32 v5, 21, v0
        v_mov_b32 v6, {OOB}
        v_cmp_gt_u32 vcc, 9, v0
        v_cndmask_b32 v5, v6, v5, vcc
        s_cmp_eq_u32 s51, 2
        s_cselect_b32 s56, 0, {OOB}
        v_or_b32 v5, s56, v5
        s_cmp_eq_u32 s51, 3
        s_cselect_b32 s56, 0, {OOB}
        v_cmp_gt_u32 vcc, 1, v0
        v_cndmask_b32 v6, v6, v0, vcc
        v_or_b32 v6, s56, v6
        buffer_load_dword v245, v5, {srd(S_WS)}, 0 offen
        buffer_load_dword v245, v6, {srd(S_OUT)}, 0 offen''')
    if cfg.x.get('ffirst'):
        a.e('s_cmp_eq_u32 s50, 0'); a.e('s_cbranch_scc1 L_M')
    else:
        a.e('s_cmp_lg_u32 s50, 0'); a.e('s_cbranch_scc1 L_F')

V_GF=8
V_W2A=240; V_W2D=244
NS3=int(os.environ.get('NS3','8'))
GSLOT=[6,7,0,1]
GT0=224; GTA=234
G_ITEMS=[(psi,c,u) for psi in range(4) for c in range(4) for u in range(4)]
def m_g2_ids(a,cfg):
    a.e(f"""s_lshl_b32 s67, s4, 2
    s_lshr_b32 s68, s5, 3
    s_add_u32 s67, s67, s68
    s_and_b32 s68, s5, 7
    s_mul_i32 s69, s67, {RT_STRIDE}
    s_mul_i32 s70, {wv}, {14*4096}
    s_add_u32 s69, s69, s70
    s_add_u32 s69, s69, {WS_ACT}
    s_mul_i32 s70, {wv}, {14*32*1024}
    s_lshl_b32 s71, s68, 7
    s_add_u32 s70, s70, s71
    s_lshl_b32 s71, {wv}, 15
    s_lshr_b32 s72, s67, 1
    s_and_b32 s73, s67, 1
    s_lshr_b32 s74, s72, 2
    s_lshl_b32 s74, s74, 11
    s_lshl_b32 s75, s73, 10
    s_add_u32 s74, s74, s75
    s_and_b32 s75, s72, 3
    s_lshl_b32 s75, s75, 8
    s_add_u32 s74, s74, s75""")
def w2_dma_addr(a,V,T):
    a.e(f"""v_lshrrev_b32 v{T}, 3, v0
    v_lshlrev_b32 v{V}, 10, v{T}
    v_lshrrev_b32 v{T}, 1, v{T}
    v_and_b32 v{T}, 3, v{T}
    v_bfe_u32 v{T+1}, v0, 1, 2
    v_xor_b32 v{T}, v{T}, v{T+1}
    v_lshlrev_b32 v{T}, 1, v{T}
    v_and_b32 v{T+1}, 1, v0
    v_add_u32 v{T}, v{T}, v{T+1}
    v_lshl_add_u32 v{V}, v{T}, 4, v{V}""")
def w2_group(t,v,V):
    return [f's_add_u32 m0, s71, {(t%8)*4096+v*1024}', f's_add_u32 s55, s70, {(32*t+8*v)*1024}',
            f'buffer_load_dwordx4 v{V}, {srd(S_W2)}, s55 offen lds']

def m_stream(a,cfg,end):
    a.e('s_waitcnt lgkmcnt(0)')
    if cfg.x.get('prio0'): a.e(f's_setprio {cfg.x["prio0"]}')
    stamp(a,cfg,26)
    a.e(f'''s_xor_b32 s56, {wv}, 3
    s_or_b32 s58, s56, s2
    s_cmp_eq_u32 s58, 0
    s_cselect_b32 s56, 0, {OOB}
    v_lshlrev_b32 v5, 7, v0
    v_add_u32 v5, s56, v5
    v_mov_b32 v6, 0
    s_mov_b32 s57, {WS_CNT}
    s_mov_b32 exec_hi, 0
    buffer_store_dword v6, v5, {srd(S_WS)}, s57 offen sc1
    s_mov_b32 exec_hi, -1''')
    mt=str(cfg.x.get('mt','xw'))
    a.e(f'''s_lshr_b32 s49, s2, 5
    s_and_b32 s50, s2, 31''')
    V_B1C=60; V_B1S=68; V_TC=76; V_TS=80; V_A2=84; V_A2N=88; T0=92; TA=100
    a.e(f'''s_lshl_b32 s67, {wv}, 4
    v_add_u32 v{T0}, s67, v1
    v_cvt_f32_u32 v{T0}, v{T0}
    v_mul_f32 v{T0+1}, {fl(1/64)}, v{T0}
    v_lshlrev_b32 v{T0+2}, 2, v2
    v_cvt_f32_u32 v{T0+2}, v{T0+2}
    v_mul_f32 v{T0+3}, v{T0+2}, v{T0+1}''')
    for ks in range(2):
        for hh in range(2):
            angles(a,[(T0+1,T0+3,32*ks+16*hh+u,(None,None,None),True) for u in range(4)],TA)
            for d in range(2):
                a.e(f'v_cvt_pk_bf16_f32 v{V_B1C+4*ks+2*hh+d}, v{TA+4+2*d}, v{TA+5+2*d}')
                a.e(f'v_cvt_pk_bf16_f32 v{V_B1S+4*ks+2*hh+d}, v{TA+8+2*d}, v{TA+9+2*d}')
    a.e(f'''v_and_b32 v{T0+4}, 1, v2
    v_lshlrev_b32 v{T0+4}, 2, v{T0+4}
    v_cvt_f32_u32 v{T0+4}, v{T0+4}
    v_mul_f32 v{T0+5}, {fl(1/512)}, v{T0}
    v_mul_f32 v{T0+6}, v{T0+4}, v{T0+5}''')
    angles(a,[(T0+5,T0+6,r,(V_TC+r,V_TS+r,None),True) for r in range(4)],TA)
    a.e(f'''v_lshrrev_b32 v{T0+5}, 2, v1
    v_cvt_f32_u32 v{T0+5}, v{T0+5}
    v_mul_f32 v{T0+5}, {fl(1/8)}, v{T0+5}
    v_and_b32 v{T0+6}, 1, v1
    v_cvt_f32_u32 v{T0+6}, v{T0+6}
    v_mul_f32 v{T0+6}, {fl(0.25)}, v{T0+6}
    v_fma_f32 v{T0+6}, v{T0+4}, v{T0+5}, v{T0+6}
    v_lshrrev_b32 v{T0+7}, 1, v1
    v_and_b32 v{T0+7}, 1, v{T0+7}
    v_lshrrev_b32 v{T0}, 1, v2
    v_cmp_eq_u32 s[68:69], v{T0+7}, v{T0}
    v_and_b32 v{T0+7}, 13, v1
    v_cmp_eq_u32 vcc, 1, v{T0+7}''')
    a.e('s_and_b64 s[70:71], vcc, s[68:69]')
    angles(a,[(T0+5,T0+6,dw,(None,None,None),False) for dw in range(4)],TA)
    for dw in range(4): a.e(f'v_cvt_pk_bf16_f32 v{TA+dw}, v{TA+4+dw}, v{TA+8+dw}')
    a.e(f'v_mov_b32 v{TA+4}, 0x3f80'); a.e(f'v_mov_b32 v{TA+5}, 0xbf80')
    for dw in range(4):
        a.e(f'v_cndmask_b32 v{V_A2+dw}, 0, v{TA+dw}, s[68:69]')
        a.e(f'v_cndmask_b32 v{V_A2N+dw}, 0, v{TA+4+(dw&1)}, s[70:71]')
    V_XA=108
    a.e(f'''v_and_b32 v{T0}, 3, v0
    v_lshrrev_b32 v{T0+1}, 1, v{T0}
    v_mul_u32_u24 v{V_XA}, {XA_PITCH}, v{T0+1}
    v_and_b32 v{T0}, 1, v{T0}
    v_lshlrev_b32 v{T0}, 3, v{T0}
    v_lshrrev_b32 v{T0+1}, 2, v1
    v_lshl_add_u32 v{T0+1}, v2, 2, v{T0+1}
    v_lshlrev_b32 v{T0+1}, 4, v{T0+1}
    v_add3_u32 v{V_XA}, v{V_XA}, v{T0}, v{T0+1}
    v_add_u32 v{V_XA}, {XA_BASE}, v{V_XA}
    s_mul_i32 s72, {wv}, {2*XA_PITCH}
    s_add_u32 s72, s72, {XA_BASE}
    v_add_u32 v{V_XA+1}, s72, v{V_L16}
    v_add_u32 v{V_XA+2}, {GW_LDS}, v{V_L16}''')
    a.e(f'''s_lshl_b32 s84, s49, 3
    s_lshl_b32 s85, {wv}, 1
    s_add_u32 s84, s84, s85
    s_lshr_b32 s85, s84, 4
    s_lshl_b32 s85, s85, 11
    s_lshr_b32 s86, s50, 4
    s_lshl_b32 s86, s86, 10
    s_add_u32 s85, s85, s86
    s_lshr_b32 s86, s84, 2
    s_and_b32 s86, s86, 3
    s_lshl_b32 s86, s86, 8
    s_add_u32 s85, s85, s86
    s_and_b32 s86, s50, 15
    s_lshl_b32 s86, s86, 4
    s_add_u32 s85, s85, s86
    s_and_b32 s86, s84, 3
    s_lshl_b32 s86, s86, 2
    s_add_u32 s85, s85, s86
    s_add_u32 s85, s85, {WS_G}
    ''')
    if mt!='0' and ('W' in mt or '2' in mt):
        a.e(f'''v_lshlrev_b32 v5, 7, v0
        v_mov_b32 v6, {OOB}
        v_cmp_gt_u32 vcc, 33, v0
        v_cndmask_b32 v7, v6, v5, vcc
        v_cmp_gt_u32 vcc, 56, v0
        v_cndmask_b32 v6, v6, v5, vcc
        s_cmp_eq_u32 {wv}, 2
        s_cselect_b32 s56, 0, {OOB}
        v_add_u32 v5, s56, v7
        s_cmp_eq_u32 {wv}, 3
        s_cselect_b32 s56, 0, {OOB}
        v_add_u32 v7, s56, v7
        s_cmp_eq_u32 {wv}, 0
        s_cselect_b32 s56, 0, {OOB}
        v_add_u32 v6, s56, v6
        s_mul_i32 s56, s2, {33*128}
        v_add_u32 v5, s56, v5
        v_add_u32 v7, s56, v7
        s_mul_i32 s57, s2, 7168''')
        if 'W' in mt:
            a.e(f'buffer_load_dword v245, v5, {srd(S_WR)}, 0 offen')
            a.e(f'buffer_load_dword v245, v7, {srd(S_WI)}, 0 offen')
        if '2' in mt: a.e(f'buffer_load_dword v245, v6, {srd(S_W2)}, s57 offen')
    a.e('s_cmp_lg_u32 s58, 0'); a.e('s_cbranch_scc1 L_m_nos0'); a.cond_begin()
    a.e(f'''s_waitcnt vmcnt(0)
    v_mov_b32 v5, 1
    v_mov_b32 v6, 32
    s_mov_b64 exec, 1
    buffer_store_dword v5, v6, {srd(S_DBG)}, 0 offen sc1
    s_mov_b64 exec, -1''')
    a.cond_end(); a.e('L_m_nos0:')
    stamp(a,cfg,0)
    a.e('s_barrier')
    stamp(a,cfg,1)
    V_AF=112; V_GX=144; V_GW=184; V_D1C=152; V_D1S=168
    for pi in range(4):
        for ks in range(2):
            for hh in range(2):
                a.e(f'ds_read_b64_tr_b16 {vr(V_AF+8*pi+4*ks+2*hh,2)}, v{V_XA} offset:{pi*2*XA_PITCH+ks*512+hh*256}')
        if pi==1: lg_01=a.lgtok()
    lg_af=a.lgtok()
    a.e(f'ds_read_b128 {vr(V_GX,4)}, v{V_XA+1}')
    a.e(f'ds_read_b128 {vr(V_GX+4,4)}, v{V_XA+1} offset:{XA_PITCH}')
    a.e(f'ds_read_b128 {vr(V_GW,4)}, v{V_XA+2}')
    lg_gx=a.lgtok()
    for pi in range(4):
        if pi==0: a.wait_lg(lg_01)
        if pi==2: a.wait_lg(lg_af)
        for ks in range(2):
            A=vr(V_AF+8*pi+4*ks,4); c=vr(V_D1C+4*pi,4); s=vr(V_D1S+4*pi,4)
            a.e(f'v_mfma_f32_16x16x32_bf16 {c}, {A}, {vr(V_B1C+4*ks,4)}, {c if ks else 0}')
            a.e(f'v_mfma_f32_16x16x32_bf16 {s}, {A}, {vr(V_B1S+4*ks,4)}, {s if ks else 0}')
    a.wait_lg(lg_gx)
    V_Z=T0+2; V_GOUT=T0+4
    for d in range(4):
        for rr in range(2):
            a.e(f'v_dot2_f32_bf16 v{V_Z+rr}, v{V_GX+4*rr+d}, v{V_GW+d}, {("v%d"%(V_Z+rr)) if d else 0}')
    TT=TA; V_B2=V_AF
    red=[('row_shr:1 row_mask:0xf bank_mask:0xf bound_ctrl:1'),('row_shr:2 row_mask:0xf bank_mask:0xf bound_ctrl:1'),
         ('row_shr:4 row_mask:0xf bank_mask:0xf bound_ctrl:1'),('row_shr:8 row_mask:0xf bank_mask:0xf bound_ctrl:1'),
         ('row_bcast:15 row_mask:0xa bank_mask:0xf'),('row_bcast:31 row_mask:0xc bank_mask:0xf')]
    ri=0
    for pi in range(4):
        cmul_pack(a,V_D1C+4*pi,V_D1S+4*pi,V_TC,V_TS,V_B2+4*pi,TT)
        for _ in range(2 if pi<2 else 1):
            for rr in range(2): a.e(f'v_add_f32_dpp v{V_Z+rr}, v{V_Z+rr}, v{V_Z+rr} {red[ri]}')
            ri+=1
    V_D2=V_D1C; V_D2N=V_D1S
    for pi in range(4):
        a.e(f'v_mfma_f32_16x16x32_bf16 {vr(V_D2+4*pi,4)}, {vr(V_A2,4)}, {vr(V_B2+4*pi,4)}, 0')
        a.e(f'v_mfma_f32_16x16x32_bf16 {vr(V_D2N+4*pi,4)}, {vr(V_A2N,4)}, {vr(V_B2+4*pi,4)}, 0')
    for rr in range(2): a.e(f'v_mul_f32 v{V_Z+rr}, {fl(-LOG2E)}, v{V_Z+rr}')
    for rr in range(2): a.e(f'v_exp_f32 v{V_Z+rr}, v{V_Z+rr}')
    for rr in range(2): a.e(f'v_add_f32 v{V_Z+rr}, 1.0, v{V_Z+rr}')
    for rr in range(2): a.e(f'v_rcp_f32 v{V_GOUT+rr}, v{V_Z+rr}')
    a.e(f'''s_cmp_eq_u32 {wv}, 0
    s_cselect_b32 s74, 1, 0
    s_mov_b32 s75, 0''')
    V_TO=8
    for pi in range(4):
        for rho in range(2):
            re=V_D2+4*pi+2*rho; im=re+1
            a.e(f'v_cndmask_b32 v{im}, v{im}, v{V_D2N+4*pi+2*rho+1}, s[74:75]')
            a.e(f'v_cvt_pk_bf16_f32 v{V_TO+2*pi+rho}, v{re}, v{im}')
    a.e(f'''v_lshrrev_b32 v18, 5, v0
    v_lshlrev_b32 v18, 11, v18
    v_and_b32 v19, 31, v0
    v_lshl_add_u32 v18, v19, 4, v18
    s_lshl_b32 s93, {wv}, 9
    v_add_u32 v18, s93, v18
    s_lshl_b32 s90, s2, 13
    s_add_u32 s90, s90, {WS_T}
    v_mov_b32 v16, v{V_GOUT}
    v_mov_b32 v17, v{V_GOUT+1}
    v_mov_b32 v19, 0
    s_mov_b32 s91, s85''')
    def row_stores():
        if cfg.x.get('x_nors'): return
        a.e(f'''s_add_u32 s93, s90, 4096
        buffer_store_dwordx4 v[8:11], v18, {srd(S_WS)}, s90 offen {cfg.f("stT")}
        buffer_store_dwordx4 v[12:15], v18, {srd(S_WS)}, s93 offen {cfg.f("stT")}
        s_mov_b32 exec_lo, 0
        s_mov_b32 exec_hi, 0x80000000
        buffer_store_dwordx2 v[16:17], v19, {srd(S_WS)}, s91 offen {cfg.f("stG")}
        s_mov_b64 exec, -1''')
    if cfg.x.get('rs_at',9)<0: row_stores()
    stamp(a,cfg,17)
    V_XF=80; V_XR=96; V_VA=102; V_BIAS=108; V_ACC=136; V_WF=192; V_BRAW=220; T0=234
    a.e(f'''s_lshl_b32 s76, {wv}, 12
    v_lshlrev_b32 v{T0}, 7, v1
    v_add_u32 v{T0}, s76, v{T0}
    v_lshrrev_b32 v{T0+1}, 1, v1
    v_xor_b32 v{T0+1}, v{T0+1}, v2
    v_lshl_add_u32 v{V_XR}, v{T0+1}, 4, v{T0}
    v_xor_b32 v{T0+1}, 4, v{T0+1}
    v_lshl_add_u32 v{V_XR+1}, v{T0+1}, 4, v{T0}
    v_mul_u32_u24 v{V_VA}, 1920, v2
    v_lshrrev_b32 v{T0}, 2, v1
    v_mul_u32_u24 v{T0}, 224, v{T0}
    v_and_b32 v{T0+1}, 3, v0
    v_lshlrev_b32 v{T0+1}, 3, v{T0+1}
    v_add3_u32 v{V_VA}, v{V_VA}, v{T0}, v{T0+1}
    v_add_u32 v{V_VA}, 16384, v{V_VA}
    s_cmp_eq_u32 s48, 0
    s_cselect_b32 s76, 192, 0
    v_add_u32 v{V_VA+1}, s76, v{V_VA}
    s_lshl_b32 s76, s48, 5
    v_add_u32 v{V_VA}, s76, v{V_VA}''')
    for st_ in (1,2):
        for j in range(2):
            a.e(f'v_add_u32 v{V_XR+2*st_+j}, {2*st_*SLOT}, v{V_XR+j}')
            a.e(f'v_add_u32 v{V_VA+2*st_+j}, {2*st_*SLOT}, v{V_VA+j}')
    a.e(f'''v_lshlrev_b32 v{T0}, 3, v2
    s_lshl_b32 s76, s48, 5
    s_add_u32 s77, s76, {B1_LDS}
    v_add_u32 v{T0+1}, s77, v{T0}
    s_cmp_eq_u32 s48, 0
    s_cselect_b32 s77, 192, 0
    s_add_u32 s77, s77, {B1_LDS}
    v_add_u32 v{T0}, s77, v{T0}''')
    if cfg.x.get('prio'): a.e(f's_setprio {cfg.x["prio"]}')
    a.e('s_barrier')
    stamp(a,cfg,3)
    a.e(f'''s_mul_i32 s93, {wv}, {2*XA_PITCH}
    s_add_u32 s93, s93, {XA_BASE}
    v_lshl_add_u32 v20, v0, 5, s93
    v_add_u32 v21, s93, v{V_L16}
    ds_write_b128 v20, v[8:11]
    ds_write_b128 v20, v[12:15] offset:16
    s_waitcnt lgkmcnt(0)
    ds_read_b128 v[8:11], v21
    ds_read_b128 v[12:15], v21 offset:1024''')
    def slot_set(c):
        j=c%5; return (j//2, (j%2)*SLOT)
    def w_read1(s,t,hh):
        c,kk=s//2,s%2; st_,off=slot_set(c)
        va=V_VA+2*st_+(1 if t==6 else 0)
        o=off+kk*7680+(32*t if t<6 else 0)
        a.e(f'ds_read_b64_tr_b16 {vr(V_WF+4*t+2*hh,2)}, v{va} offset:{o+960*hh}')
        return a.lgtok()
    def x_read1(s,nb):
        c,kk=s//2,s%2; st_,off=slot_set(c)
        a.e(f'ds_read_b128 {vr(V_XF+8*(s%2)+4*nb,4)}, v{V_XR+2*st_+kk} offset:{off+2048*nb}')
        return a.lgtok()
    for t in range(6): a.e(f'ds_read_b64 {vr(V_BRAW+2*t,2)}, v{T0+1} offset:{32*t}')
    a.e(f'ds_read_b64 {vr(V_BRAW+12,2)}, v{T0}')
    lg_b=a.lgtok()
    tw={}; tx={}
    for nb in range(2): tx[(0,nb)]=x_read1(0,nb)
    for t in range(3):
        for hh in range(2): tw[(0,t,hh)]=w_read1(0,t,hh)
    a.wait_lg(lg_b)
    for t in range(7):
        for d in range(2):
            raw=V_BRAW+2*t+d
            a.e(f'v_lshlrev_b32 v{V_BIAS+4*t+2*d}, 16, v{raw}')
            a.e(f'v_and_b32 v{V_BIAS+4*t+2*d+1}, 0xffff0000, v{raw}')
    for t in range(3,7):
        for hh in range(2): tw[(0,t,hh)]=w_read1(0,t,hh)
    for s in range(16):
        for t in range(7):
            need=max(tw[(s,t,1)],tx[(s,1)])
            n=a.lg-need
            if t%2==0 or t==1 or s==0 or True: a.e(f's_waitcnt lgkmcnt({min(n,15)})')
            for nb in range(2):
                acc=vr(V_ACC+28*nb+4*t,4)
                cc=acc if s>0 else vr(V_BIAS+4*t,4)
                a.e(f'v_mfma_f32_16x16x32_bf16 {acc}, {vr(V_WF+4*t,4)}, {vr(V_XF+8*(s%2)+4*nb,4)}, {cc}')
                if nb==0 and t==1 and s%2==1 and s<15:
                    if cfg.fine==2: stamp(a,cfg,32+2*(s//2))
                    if s==(7 if cfg.x.get('s1two',0) else 13): a.e('s_waitcnt vmcnt(0)')
                    a.e('s_barrier')
                    if cfg.fine==2: stamp(a,cfg,33+2*(s//2))
                ps,pt=(s+1,t-1) if t>=1 else (s,6)
                if (t>=1 and s<15) or (t==0 and 1<=s<=15 and (s,6,nb) not in tw):
                    tw[(ps,pt,nb)]=w_read1(ps,pt,nb)
                if t==2 and s<15: tx[(s+1,nb)]=x_read1(s+1,nb)
                if t==4 and nb==1 and s==cfg.x.get('rs_at',9): row_stores()
    a.e('s_barrier')
    stamp(a,cfg,4)
    V_E=V_WF; V_O=V_BIAS
    a.e(f's_mov_b32 s84, {fl(LOG2E)}'); a.e(f's_mov_b32 s85, {fl(LOG2E)}'); a.e(f's_mov_b32 s86, {fl(30.0)}')
    a.e(f'''s_mul_i32 s87, s7, 7
    s_add_u32 s87, s87, s48
    s_lshr_b32 s87, s87, 1
    s_lshl_b32 s87, s87, 12
    s_mul_i32 s88, s6, {2*RT_STRIDE}
    s_lshl_b32 s89, {wv}, 10
    s_add_u32 s88, s88, s89
    s_add_u32 s88, s88, {WS_ACT}
    s_add_u32 s88, s88, s87
    s_mov_b32 s89, {3*4096}
    s_cmp_eq_u32 s48, 0
    s_cselect_b32 s89, s89, {(-4096+512)&0xffffffff}
    s_add_u32 s89, s89, s88
    v_lshlrev_b32 v4, 3, v0''')
    G=4
    for nb in range(2):
        pairs=[(V_ACC+28*nb+4*t+2*d, V_O+14*nb+2*t+d) for t in range(7) for d in range(2)]
        for g0 in range(0,len(pairs),G):
            grp=pairs[g0:g0+G]
            Tq=lambda i: V_E+4*i
            for i,(h,o) in enumerate(grp): a.e(f'v_pk_mul_f32 {vr(Tq(i),2)}, {vr(h,2)}, s[84:85]')
            for i,(h,o) in enumerate(grp):
                a.e(f'v_min_f32 v{Tq(i)}, s86, v{Tq(i)}'); a.e(f'v_min_f32 v{Tq(i)+1}, s86, v{Tq(i)+1}')
            for i,(h,o) in enumerate(grp):
                a.e(f'v_exp_f32 v{Tq(i)}, v{Tq(i)}'); a.e(f'v_exp_f32 v{Tq(i)+1}, v{Tq(i)+1}')
            for i,(h,o) in enumerate(grp): a.e(f'v_pk_add_f32 {vr(Tq(i)+2,2)}, {vr(Tq(i),2)}, 2.0 op_sel_hi:[1,0]')
            for i,(h,o) in enumerate(grp): a.e(f'v_pk_mul_f32 {vr(Tq(i),2)}, {vr(Tq(i),2)}, {vr(Tq(i)+2,2)}')
            for i,(h,o) in enumerate(grp): a.e(f'v_pk_add_f32 {vr(Tq(i)+2,2)}, {vr(Tq(i),2)}, 2.0 op_sel_hi:[1,0]')
            for i,(h,o) in enumerate(grp):
                a.e(f'v_rcp_f32 v{Tq(i)+2}, v{Tq(i)+2}'); a.e(f'v_rcp_f32 v{Tq(i)+3}, v{Tq(i)+3}')
            for i,(h,o) in enumerate(grp): a.e(f'v_pk_mul_f32 {vr(Tq(i),2)}, {vr(Tq(i),2)}, {vr(Tq(i)+2,2)}')
            for i,(h,o) in enumerate(grp): a.e(f'v_pk_mul_f32 {vr(Tq(i),2)}, {vr(Tq(i),2)}, {vr(h,2)}')
            for i,(h,o) in enumerate(grp): a.e(f'v_cvt_pk_bf16_f32 v{o}, v{Tq(i)}, v{Tq(i)+1}')
            done=min(len(pairs),g0+G)
            if cfg.x.get('actil'):
                for pp in range(3):
                    if g0<4*(pp+1)<=done:
                        a.e(f'buffer_store_dwordx4 {vr(V_O+14*nb+4*pp,4)}, v{V_L16}, {srd(S_WS)}, s88 offen {cfg.f("stA")}')
                        a.e('s_add_u32 s88, s88, 4096')
                if done==14:
                    a.e(f'buffer_store_dwordx2 {vr(V_O+14*nb+12,2)}, v4, {srd(S_WS)}, s89 offen {cfg.f("stA")}')
        if nb==0 and cfg.x.get('actil'):
            a.e(f's_add_u32 s88, s88, {RT_STRIDE-3*4096}')
            a.e(f's_add_u32 s89, s89, {RT_STRIDE}')
    if not cfg.x.get('actil'):
        for nb in range(2):
            for pp in range(3):
                a.e(f'buffer_store_dwordx4 {vr(V_O+14*nb+4*pp,4)}, v{V_L16}, {srd(S_WS)}, s88 offen {cfg.f("stA")}')
                a.e('s_add_u32 s88, s88, 4096')
            a.e(f'buffer_store_dwordx2 {vr(V_O+14*nb+12,2)}, v4, {srd(S_WS)}, s89 offen {cfg.f("stA")}')
            if nb==0:
                a.e(f's_add_u32 s88, s88, {RT_STRIDE-3*4096}')
                a.e(f's_add_u32 s89, s89, {RT_STRIDE}')
    stamp(a,cfg,5)
    parts=p2_table_parts(a,cfg); npre=cfg.x.get('tabpre',4)
    for part in parts[:npre]: part()
    stamp(a,cfg,24)
    a.e('s_mov_b32 s93, 32'); poll_w0(a,S_DBG,'s93',1,0,1)
    a.e('s_waitcnt vmcnt(0)')
    a.e('s_barrier')
    stamp(a,cfg,7)
    p2_small_loads(a,cfg)
    tok_w=a.vmtok()
    for part in parts[npre:]: part()
    stamp(a,cfg,25)
    p2_compute(a,cfg,tok_w)
    tok_y=a.vmtok()
    stamp(a,cfg,8)
    m_g2_ids(a,cfg)
    T=5
    w2_dma_addr(a,V_W2D,T)
    a.e(f"""v_lshrrev_b32 v{T}, 2, v1
    v_lshl_add_u32 v{T+1}, v2, 2, v{T}
    v_lshlrev_b32 v{V_W2A}, 7, v{T+1}
    v_lshrrev_b32 v{T+1}, 1, v{T+1}
    v_and_b32 v{T+1}, 3, v{T+1}
    v_and_b32 v{T}, 3, v0
    v_lshl_add_u32 v{V_W2A}, v{T}, 3, v{V_W2A}
    v_add_u32 v{V_W2A}, s71, v{V_W2A}""")
    for c in (3,2,1,0):
        a.e(f'v_xor_b32 v{T}, {c}, v{T+1}')
        a.e(f'v_lshl_add_u32 v{V_W2A+c}, v{T}, 5, v{V_W2A}')
    stamp(a,cfg,9)
    a.e('s_waitcnt vmcnt(0)')
    a.e('s_barrier')
    stamp(a,cfg,10)
    m_gemm2(a,cfg,tok_y)
    stamp(a,cfg,13)
    stamps_flush(a,cfg)
    a.e(f's_branch {end}')
    p2_special(a,cfg)

def m_gemm2(a,cfg,tok_y):
    V_ACC=80; V_AF=144; D=8; V_G=72
    RB=lambda t: (8+16*(t%D)) if (t%D)<4 else (160+16*(t%D-4))
    toks={}; tokw={}
    def need(d,k):
        while k not in d: a.bg_pop()
    def a_read1(t,c,hh):
        a.e(f'ds_read_b64_tr_b16 {vr(V_AF+4*c+2*hh,2)}, v{V_W2A+c} offset:{(t%8)*4096+2048*hh}')
        return a.lgtok()
    def push_loads(t):
        b=RB(t)
        if t>=14:
            psi=t-14
            for u in range(4):
                a.bg_push([f's_add_u32 s79, s78, {(16*psi+u)*8192}',
                           f'buffer_load_dwordx4 {vr(b+4*u,4)}, v6, {srd(S_WS)}, s79 offen {cfg.f("ldY")}'],
                          (lambda t=t: toks.__setitem__(t,a.vmtok())) if u==3 else None)
            return
        sc=cfg.f('ldA')
        for q in range(4):
            if t in(3,10):
                l=[f'buffer_load_dwordx2 {vr(b+4*q,2)}, v4, {srd(S_WS)}, s69 offen offset:{1024*q} {sc}',
                   f'buffer_load_dwordx2 {vr(b+4*q+2,2)}, v4, {srd(S_WS)}, s69 offen offset:{1024*q+512} {sc}']
            else:
                l=[f'buffer_load_dwordx4 {vr(b+4*q,4)}, v{V_L16}, {srd(S_WS)}, s69 offen offset:{1024*q} {sc}']
            if q==3: l.append('s_add_u32 s69, s69, 4096')
            a.bg_push(l,(lambda t=t: toks.__setitem__(t,a.vmtok())) if q==3 else None)
    def push_w2(t):
        for v in range(4):
            a.bg_push(w2_group(t,v,V_W2D),(lambda t=t: tokw.__setitem__(t,a.vmtok())) if v==3 else None)
    a.e('v_lshlrev_b32 v4, 3, v0')
    npre=cfg.x.get('npre',4)
    for t in range(npre): push_loads(t)
    a.bg_flush()
    nxt=npre
    a.e(f"""v_lshlrev_b32 v5, 4, v1
    v_lshlrev_b32 v6, 15, v2
    v_add_u32 v6, v6, v5
    v_add_u32 v7, s71, v{V_L16}
    s_lshl_b32 s78, {wv}, 19
    s_add_u32 s78, s78, s74
    s_add_u32 s78, s78, {WS_Y}""")
    V_AF2=224; ACC2=[40,56,160,176]; tg={}
    def g_read(psi,c):
        AFp=(V_AF2 if psi%2==0 else V_AF)
        a.e(f'ds_read_b128 {vr(AFp+4*c,4)}, v7 offset:{GSLOT[psi]*4096+c*1024}'); tg[(psi,c)]=a.lgtok()
    def swaps(t):
        b=RB(t)
        for (i,j) in[(0,1),(0,2),(0,3),(1,2),(1,3),(2,3)]:
            a.e(f'v_swap_b32 v{b+4*i+j}, v{b+4*j+i}')
    ta={}
    for c in range(4):
        for hh in range(2): ta[(0,c,hh)]=a_read1(0,c,hh)
    a.bg_set(cfg.x.get('g2r',2),mfma_weight=2)
    TS3=cfg.x.get('ts3',10)
    for t in range(18):
        if cfg.fine==1: stamp(a,cfg,32+t)
        if t<=14:
            need(toks,t); a.wait_vm(toks[t])
        if t+1 in range(8,14):
            need(tokw,t+1); a.wait_vm(tokw[t+1])
        k_=0
        while nxt<14 and nxt-D<t and k_<2 and t<14:
            if nxt-D==t-0 and False: break
            if nxt-D>=t: break
            push_loads(nxt); nxt+=1; k_+=1
        if 1<=t and t-1+8<14: push_w2(t-1+8)
        if t==TS3+1: push_loads(14); push_loads(15)
        if t==TS3+2: push_loads(16); push_loads(17)
        b=RB(t)
        if t<14:
            for c in range(4):
                n=a.lg-ta[(t,c,1)]
                a.e(f's_waitcnt lgkmcnt({min(n,15)})')
                A=vr(V_AF+4*c,4)
                for q in range(4):
                    d=vr(V_ACC+16*q+4*c,4)
                    r=a.bg_rate
                    if q<2: a.bg_rate=0
                    a.e(f'v_mfma_f32_16x16x32_bf16 {d}, {A}, {vr(b+4*q,4)}, {d if t else 0}')
                    if q<2:
                        if c>=1 and t<13: ta[(t+1,c-1,q)]=a_read1(t+1,c-1,q)
                        if c==0 and t>=1: ta[(t,3,q)]=a_read1(t,3,q)
                    a.bg_rate=r
        else:
            psi=t-14; AFp=(V_AF2 if psi%2==0 else V_AF)
            if psi==0: swaps(14)
            for c in range(4):
                a.e(f's_waitcnt lgkmcnt({min(a.lg-tg[(psi,c)],15)})')
                for q in range(4):
                    d=vr(ACC2[q]+4*c,4)
                    a.e(f'v_mfma_f32_16x16x32_bf16 {d}, {vr(AFp+4*c,4)}, {vr(b+4*q,4)}, {d if psi else 0}')
                    if psi<3 and c==0 and q==0:
                        for c2 in range(4): g_read(psi+1,c2)
                    if psi<3 and c==1 and q==0:
                        need(toks,t+1); a.wait_vm(toks[t+1]); swaps(t+1)
        if t==TS3:
            a.bg_flush()
            a.e(f's_mov_b32 s93, {WS_CNT+16*128}')
            poll_w0(a,S_WS,'s93',NS3,128,256//NS3)
            a.e('s_barrier')
            a.e(f's_add_u32 s75, s74, {WS_G}')
            a.e(f'buffer_load_dwordx4 {vr(V_G,4)}, v5, {srd(S_WS)}, s75 offen {cfg.f("ldW")}')
            tok_g=a.vmtok()
        if t==13:
            a.e('s_barrier')
            for c in range(4): g_read(0,c)
            stamp(a,cfg,11)
    a.bg_flush(); a.bg_set(0)
    a.need_vm(tok_g)
    for q in range(4): a.e(f'v_sub_f32 v{V_G+q}, 1.0, v{V_G+q}')
    for q in range(4):
        for h in range(8):
            a.e(f'v_pk_fma_f32 {vr(V_ACC+16*q+2*h,2)}, {vr(V_ACC+16*q+2*h,2)}, {vr(V_G+(q&~1),2)}, {vr(ACC2[q]+2*h,2)} op_sel:[0,{q&1},0] op_sel_hi:[1,{q&1},1]')
    stamp(a,cfg,12)
    a.e(f'v_add_u32 v7, s71, v{V_L16}')
    for w in range(4):
        a.e(f's_cmp_lg_u32 {wv}, {w}')
        a.e(f's_cbranch_scc1 L_k3_w{w}')
        a.cond_begin()
        slot=0
        for q in range(4):
            if q==w: continue
            for c in range(4):
                a.e(f'ds_write_b128 v7, {vr(V_ACC+16*q+4*c,4)} offset:{slot*4096+c*1024}')
            slot+=1
        if w!=0:
            for h in range(8): a.e(f'v_pk_mov_b32 {vr(V_ACC+2*h,2)}, {vr(V_ACC+16*w+2*h,2)}, {vr(V_ACC+16*w+2*h,2)} op_sel:[0,1]')
        a.cond_end()
        a.e(f'L_k3_w{w}:')
    a.e('s_waitcnt lgkmcnt(0)'); a.e('s_barrier')
    V_RD=160
    for k in range(1,4):
        a.e(f"""s_add_u32 s76, {wv}, {k}
        s_and_b32 s76, s76, 3
        s_lshl_b32 s77, s76, 15
        s_cmp_lt_u32 {wv}, s76
        s_cselect_b32 s79, 0, 1
        s_sub_u32 s79, {wv}, s79
        s_lshl_b32 s79, s79, 12
        s_add_u32 s77, s77, s79
        v_add_u32 v7, s77, v{V_L16}""")
        for c in range(4): a.e(f'ds_read_b128 {vr(V_RD+16*(k-1)+4*c,4)}, v7 offset:{c*1024}')
    a.e(f"""v_lshlrev_b32 v5, 10, v1
    v_lshl_add_u32 v5, v2, 3, v5
    s_lshl_b32 s76, s72, 17
    s_lshl_b32 s77, {wv}, 15
    s_add_u32 s76, s76, s77
    s_lshl_b32 s77, s73, 14
    s_add_u32 s76, s76, s77
    s_lshl_b32 s77, s68, 7
    s_add_u32 s76, s76, s77""")
    for k in range(3):
        a.e(f's_waitcnt lgkmcnt({8-4*k})')
        for h in range(8): a.e(f'v_pk_add_f32 {vr(V_ACC+2*h,2)}, {vr(V_ACC+2*h,2)}, {vr(V_RD+16*k+2*h,2)}')
    V_O=8
    for c in range(4):
        a.e(f'v_cvt_pk_bf16_f32 v{V_O+2*c}, v{V_ACC+4*c}, v{V_ACC+4*c+1}')
        a.e(f'v_cvt_pk_bf16_f32 v{V_O+2*c+1}, v{V_ACC+4*c+2}, v{V_ACC+4*c+3}')
        a.e(f'buffer_store_dwordx2 {vr(V_O+2*c,2)}, v5, {srd(S_OUT)}, s76 offen offset:{32*c} {str(cfg.x.get("outf","")).replace("_"," ")}')

P2=dict(V_U=8,V_W=40,V_GT=48,V_Q=56,T0=64,V_F64R=80,V_F64I=96,V_F32R=112,V_F32I=128,V_T1C=144,V_T1S=152,V_T3C=160,V_T3S=168,V_DR=176,V_DI=184,V_B=192)
V_FW2D=246
def f_stream(a,cfg,end):
    a.e('L_F:')
    a.e('s_mov_b32 s90, 1')
    if cfg.x.get('fprio'): a.e(f's_setprio {cfg.x["fprio"]}')
    a.e(f'''s_lshr_b32 s49, s2, 5
    s_and_b32 s50, s2, 31
    s_lshl_b32 s51, s6, 17
    s_lshl_b32 s56, {wv}, 13
    s_add_u32 s51, s51, s56
    s_mul_i32 s52, s7, 224
    s_mul_i32 s56, {wv}, 14336
    s_add_u32 s52, s52, s56
    s_lshl_b32 s53, {wv}, 10
    s_mul_i32 s54, {wv}, 960
    s_add_u32 s54, s54, 16384''')
    T=6; V_XD=4; V_WD=5
    a.e(f'''v_lshrrev_b32 v{T}, 3, v0
    v_lshlrev_b32 v{V_XD}, 10, v{T}
    v_lshrrev_b32 v{T}, 1, v{T}
    s_and_b32 s56, {wv}, 1
    s_lshl_b32 s56, s56, 2
    v_add_u32 v{T}, s56, v{T}
    v_and_b32 v{T+1}, 7, v0
    v_xor_b32 v{T}, v{T}, v{T+1}
    v_lshl_add_u32 v{V_XD}, v{T}, 4, v{V_XD}
    v_mul_u32_u24 v{T}, 4682, v0
    v_lshrrev_b32 v{T}, 16, v{T}
    v_mul_u32_u24 v{V_WD}, 3584, v{T}
    v_mul_u32_u24 v{T}, 14, v{T}
    v_sub_u32 v{T}, v0, v{T}
    v_lshl_add_u32 v{V_WD}, v{T}, 4, v{V_WD}
    v_mov_b32 v{V_LC}, {LC_BASE}''')
    a.e(f'''s_lshl_b32 s56, s49, 18
    s_lshl_b32 s57, s50, 10
    s_add_u32 s56, s56, s57
    s_lshl_b32 s57, {wv}, 16
    s_add_u32 s56, s56, s57
    s_add_u32 s58, s56, 32768
    s_mul_i32 s57, {wv}, {2*XA_PITCH}
    s_add_u32 s57, s57, {XA_BASE}''')
    a.e('s_waitcnt lgkmcnt(0)')
    stamp(a,cfg,26)
    a.e(f's_cmp_lg_u32 {wv}, 0'); a.e('s_cbranch_scc1 L_a_r0'); a.cond_begin()
    a.e(f's_mov_b32 m0, {GW_LDS}'); a.e('s_nop 0')
    a.e(f'buffer_load_dwordx4 v{V_L16}, {srd(S_GW)}, 0 offen lds')
    a.cond_end(); a.e('L_a_r0:')
    a.e(f's_cmp_lg_u32 {wv}, 1'); a.e('s_cbranch_scc1 L_a_r1'); a.cond_begin()
    a.e(f's_mul_i32 s64, s7, 224'); a.e(f's_mov_b32 m0, {B1_LDS}'); a.e('s_mov_b64 exec, 0x3fff')
    a.e(f'buffer_load_dwordx4 v{V_L16}, {srd(S_B1)}, s64 offen lds')
    a.e('s_mov_b64 exec, -1')
    a.cond_end(); a.e('L_a_r1:')
    tok_c={}
    def chunk_groups(c):
        gs=[]
        for u in range(4):
            gs.append(([f's_add_u32 m0, s53, {SB(c)+u*4096}', f's_add_u32 s55, s51, {u*32768+c*128}',
                        f'buffer_load_dwordx4 v{V_XD}, {srd(S_X)}, s55 offen lds'],None))
        for u in range(4):
            cb=(lambda c=c: tok_c.__setitem__(c,a.vmtok())) if u==3 else None
            gs.append(([f's_add_u32 m0, s54, {SB(c)+u*3840}', f's_add_u32 s55, s52, {u*57344+c*229376}',
                        's_mov_b32 exec_hi, 0x00ffffff',
                        f'buffer_load_dwordx4 v{V_WD}, {srd(S_W1)}, s55 offen lds',
                        's_mov_b32 exec_hi, -1'],cb))
        return gs
    def push_chunk(c):
        for g_ in chunk_groups(c): a.bg_push(*g_)
    def wait_role(tok,e3,e2):
        n=a.vm-tok; lab=f'L_wr{len(a.items)}'
        a.e(f's_cmp_eq_u32 {wv}, 3'); a.e(f's_cbranch_scc1 {lab}_3')
        a.e('s_cmp_eq_u32 s66, 0'); a.e(f's_cbranch_scc1 {lab}_2')
        a.e(f's_waitcnt vmcnt({n})'); a.e(f's_branch {lab}_e')
        a.e(f'{lab}_3:'); a.e(f's_waitcnt vmcnt({min(n+e3,62)})'); a.e(f's_branch {lab}_e')
        a.e(f'{lab}_2:'); a.e(f's_waitcnt vmcnt({min(n+e2,62)})')
        a.e(f'{lab}_e:')
    def chunk_now(c):
        if cfg.fine==3: stamp(a,cfg,48+2*c%16 if False else 40+c)
        push_chunk(c); a.bg_flush()
        if cfg.fine==3: stamp(a,cfg,50+c)
    a.e(f'''s_mov_b32 m0, s57
    s_add_u32 s57, s57, {XA_PITCH}
    buffer_load_dwordx4 v{V_L16}, {srd(S_X)}, s56 offen lds
    s_mov_b32 m0, s57
    s_nop 0
    buffer_load_dwordx4 v{V_L16}, {srd(S_X)}, s58 offen lds''')
    tok_xa=a.vmtok()
    chunk_now(0)
    if cfg.x.get('c1pre',1): chunk_now(1)
    if cfg.x.get('fprio'): a.e('s_setprio 0')
    stamp(a,cfg,0)
    a.wait_vm(tok_xa); a.e('s_barrier')
    stamp(a,cfg,1)
    if not cfg.x.get('c1pre',1): chunk_now(1)
    chunk_now(2)
    T0=92; V_B1S=68
    a.wait_vm(tok_c[0]); a.e('s_barrier')
    if cfg.fine==3: stamp(a,cfg,27)
    chunk_now(3)
    a.wait_vm(tok_c[1]); a.e('s_barrier')
    if cfg.fine==3: stamp(a,cfg,29)
    chunk_now(4)
    a.wait_vm(tok_c[2]); a.e('s_barrier')
    if cfg.fine==3: stamp(a,cfg,30)
    chunk_now(5)
    a.e('''s_lshr_b32 s59, s50, 3
    s_lshr_b32 s60, s50, 2
    s_and_b32 s60, s60, 1
    s_and_b32 s61, s50, 3
    s_lshl_b32 s62, s59, 4
    s_lshl_b32 s63, s60, 10
    s_add_u32 s62, s62, s63
    s_lshl_b32 s63, s61, 8
    s_add_u32 s62, s62, s63
    s_lshl_b32 s63, s59, 11
    s_lshl_b32 s64, s60, 10
    s_add_u32 s63, s63, s64
    s_lshl_b32 s64, s61, 8
    s_add_u32 s63, s63, s64''')
    V_WR=8; V_WI=24; V_WO=7
    a.e(f's_cmp_lg_u32 {wv}, {9 if cfg.x.get("x_norole") else 3}'); a.e('s_cbranch_scc1 L_a_r3'); a.cond_begin()
    a.e(f'''v_lshrrev_b32 v{V_WO}, 2, v0
    v_mul_u32_u24 v{V_WO}, 514, v{V_WO}
    v_and_b32 v{T}, 3, v0
    v_lshl_add_u32 v{V_WO}, v{T}, 4, v{V_WO}
    s_mul_i32 s64, s62, 514
    s_lshl_b32 s65, s49, 6
    s_add_u32 s64, s64, s65''')
    for r in range(4):
        a.e(f'buffer_load_dwordx4 {vr(V_WR+4*r,4)}, v{V_WO}, {srd(S_WR)}, s64 offen')
        a.e(f'buffer_load_dwordx4 {vr(V_WI+4*r,4)}, v{V_WO}, {srd(S_WI)}, s64 offen')
        if r<3: a.e(f's_add_u32 s64, s64, {64*514}')
    a.cond_end(); a.e('L_a_r3:')
    V_SP=40; V_J=48; V_JR=49
    a.e(f'''s_lshl_b32 s65, s49, 2
    s_xor_b32 s66, {wv}, 2
    s_or_b32 s66, s66, s65''')
    a.e('s_cmp_lg_u32 s66, 0'); a.e('s_cbranch_scc1 L_a_r2'); a.cond_begin()
    a.e(f'''v_lshlrev_b32 v{V_J}, 6, v2
    v_add_u32 v{V_J}, v{V_J}, v1
    v_add_u32 v{V_J}, s62, v{V_J}
    v_sub_u32 v{V_JR}, 2048, v{V_J}
    v_and_b32 v{V_JR}, 2047, v{V_JR}
    v_mul_u32_u24 v{V_J}, 514, v{V_J}
    v_mul_u32_u24 v{V_JR}, 514, v{V_JR}''')
    for n,(S,vv,off) in enumerate([(S_WR,V_J,0),(S_WR,V_J,512),(S_WR,V_JR,0),(S_WR,V_JR,512),(S_WI,V_J,0),(S_WI,V_J,512),(S_WI,V_JR,0),(S_WI,V_JR,512)]):
        a.e(f'buffer_load_ushort v{V_SP+n}, v{vv}, {srd(S)}, 0 offen offset:{off}')
    a.cond_end(); a.e('L_a_r2:')
    tok_role=a.vmtok()
    wait_role(tok_c[3],8,8); a.e('s_barrier')
    if cfg.fine==3: stamp(a,cfg,31)
    chunk_now(6)
    wait_role(tok_c[4],8,8); a.e('s_barrier')
    two=cfg.x.get('s1two',0)
    if two:
        a.e('s_and_b32 s92, s5, 3'); a.e('s_lshl_b32 s92, s92, 6')
        ssignal(a,S_DBG,'s92')
    if cfg.fine==3: stamp(a,cfg,32)
    chunk_now(7)
    a.e(f's_cmp_lg_u32 {wv}, {9 if cfg.x.get("x_norole") else 3}'); a.e('s_cbranch_scc1 L_a_w3')
    a.wait_vm(tok_role); a.cond_begin()
    V_WP=188
    a.e('s_mov_b32 s78, 0x05040100'); a.e('s_mov_b32 s79, 0x07060302')
    for kk in range(8):
        for r in range(4):
            a.e(f'v_perm_b32 v{V_WP+4*kk+r}, v{V_WI+4*r+(kk>>1)}, v{V_WR+4*r+(kk>>1)}, s{78+(kk&1)}')
    a.e(f'''v_and_b32 v{T0+4}, 3, v0
    v_lshlrev_b32 v{T0+5}, 16, v{T0+4}
    v_lshrrev_b32 v{T0+6}, 2, v0
    v_lshl_add_u32 v{T0+5}, v{T0+6}, 4, v{T0+5}
    s_lshl_b32 s76, s49, 2
    v_add_u32 v{T0+4}, s76, v{T0+4}
    v_cmp_eq_u32 vcc, 0, v{T0+4}
    v_mov_b32 v{T0+6}, {OOB}
    v_cndmask_b32 v{T0+6}, v{T0+5}, v{T0+6}, vcc
    s_lshl_b32 s76, s49, 18
    s_add_u32 s76, s76, s63
    s_add_u32 s76, s76, {WS_WT}''')
    for kk in range(8):
        a.e(f'buffer_store_dwordx4 {vr(V_WP+4*kk,4)}, v{T0+6 if kk==0 else T0+5}, {srd(S_WS)}, s76 offen {cfg.f("stW")}')
        if kk<7: a.e('s_add_u32 s76, s76, 8192')
    a.cond_end(); a.e('L_a_w3:')
    a.e('s_cmp_lg_u32 s66, 0'); a.e('s_cbranch_scc1 L_a_w2')
    a.wait_vm(tok_role); a.cond_begin()
    for n in range(8): a.e(f'v_lshlrev_b32 v{V_SP+n}, 16, v{V_SP+n}')
    s=V_SP; t=V_B1S
    a.e(f'''v_add_f32 v{t}, v{s}, v{s+2}
    v_add_f32 v{t+1}, v{s+1}, v{s+3}
    v_sub_f32 v{t+2}, v{s+4}, v{s+6}
    v_sub_f32 v{t+3}, v{s+5}, v{s+7}
    v_add_f32 v{t+4}, v{t}, v{t+1}
    v_add_f32 v{t+5}, v{t+2}, v{t+3}
    v_sub_f32 v{t+6}, v{t}, v{t+1}
    v_sub_f32 v{t+7}, v{t+2}, v{t+3}
    v_mul_f32 v{t+4}, {fl(0.25)}, v{t+4}
    v_mul_f32 v{t+5}, {fl(0.25)}, v{t+5}
    v_mul_f32 v{t+6}, {fl(0.25)}, v{t+6}
    v_mul_f32 v{t+7}, {fl(0.25)}, v{t+7}
    v_cvt_pk_bf16_f32 v{t}, v{t+4}, v{t+5}
    v_cvt_pk_bf16_f32 v{t+1}, v{t+6}, v{t+7}
    v_lshlrev_b32 v{t+2}, 4, v1
    v_lshl_add_u32 v{t+2}, v2, 2, v{t+2}
    s_add_u32 s77, s63, {WS_QT}
    s_add_u32 s76, s63, {WS_WT}
    buffer_store_dword v{t}, v{t+2}, {srd(S_WS)}, s76 offen {cfg.f("stW")}
    buffer_store_dword v{t+1}, v{t+2}, {srd(S_WS)}, s77 offen {cfg.f("stW")}''')
    a.cond_end(); a.e('L_a_w2:')
    a.wait_vm(tok_c[5]) if False else None
    a.e(f's_waitcnt vmcnt({cfg.x.get("b5n",18)})') if False else None
    wait_role(tok_c[5],16,10); a.e('s_barrier')
    if cfg.fine==3: stamp(a,cfg,33)
    m_g2_ids(a,cfg)
    w2_dma_addr(a,V_FW2D,244)
    wait_role(tok_c[6],8,2); a.e('s_barrier')
    if cfg.fine==3: stamp(a,cfg,34)
    if two:
        wait_role(tok_c[7],8,2); a.e('s_barrier')
    else:
        a.e('s_waitcnt vmcnt(0)'); a.e('s_barrier')
        a.e('s_and_b32 s92, s5, 3'); a.e('s_lshl_b32 s92, s92, 6')
        ssignal(a,S_DBG,'s92')
    if cfg.fine==3: stamp(a,cfg,35)
    a.e('s_barrier')
    if two:
        a.e(f's_cmp_eq_u32 {wv}, 3'); a.e('s_cbranch_scc1 L_f_s1b')
        a.e('s_cmp_lg_u32 s66, 0'); a.e('s_cbranch_scc1 L_f_nos1b')
        a.e('L_f_s1b:')
        a.cond_begin()
        a.e(f"""s_waitcnt vmcnt(0)
        s_and_b32 s92, s5, 3
        s_lshl_b32 s92, s92, 6
        s_add_u32 s92, s92, 4
        v_mov_b32 v{V_SIG}, 1
        v_mov_b32 v{V_SIG+1}, 0
        s_mov_b64 exec, 1
        buffer_atomic_add v{V_SIG}, v{V_SIG+1}, {srd(S_DBG)}, s92 offen sc1
        s_mov_b64 exec, -1""")
        a.cond_end(); a.e('L_f_nos1b:')
    stamp(a,cfg,4)
    def w2slots(lo,hi):
        for t in range(lo,hi):
            for v in range(4): a.bg_push(w2_group(t,v,V_FW2D))
        a.bg_flush()
    w2slots(0,cfg.x.get('w2pre',4))
    stamp(a,cfg,5)
    a.e(f's_cmp_lg_u32 {wv}, 0'); a.e('s_cbranch_scc1 L_f_s1'); a.cond_begin()
    if cfg.x.get('s1drain',1): a.e('s_waitcnt vmcnt(0)')
    a.e('s_mov_b32 s93, 0')
    spin_global(a,S_DBG,'s93',4,64,64)
    p2_t_loads(a,cfg)
    if two:
        a.e('s_mov_b32 s93, 4')
        spin_global(a,S_DBG,'s93',4,64,72)
    a.cond_end(); a.e('L_f_s1:')
    stamp(a,cfg,6)
    a.e('s_waitcnt vmcnt(0)'); a.e('s_barrier')
    a.e(f's_lshl_b32 s92, s6, 7'); a.e(f's_add_u32 s92, s92, {WS_CNT}')
    ssignal(a,S_WS,'s92')
    stamp(a,cfg,7)
    w2slots(cfg.x.get('w2pre',4),8)
    a.e('s_waitcnt vmcnt(0)'); a.e('s_barrier')
    a.e('s_lshl_b32 s56, s4, 5'); a.e('s_add_u32 s56, s56, s5')
    a.e('s_cmp_lg_u32 s56, 0'); a.e('s_cbranch_scc1 L_f_nospec'); a.cond_begin()
    a.e('s_barrier')
    a.cond_end(); a.e('L_f_nospec:')
    a.e(f's_lshl_b32 s93, s72, 7'); a.e(f's_add_u32 s93, s93, {WS_CNT}')
    poll_w0(a,S_WS,'s93',1,0,16)
    a.e('s_barrier')
    a.e(f's_and_b32 s92, s2, {NS3-1}'); a.e('s_lshl_b32 s92, s92, 7'); a.e(f's_add_u32 s92, s92, {WS_CNT+16*128}')
    ssignal(a,S_WS,'s92')
    T0=80; TA=92
    a.e(f"""s_lshl_b32 s75, s68, 6
    v_add_u32 v{T0}, s75, v1
    v_cvt_f32_u32 v{T0}, v{T0}
    s_lshl_b32 s75, {wv}, 6
    v_lshlrev_b32 v{T0+1}, 2, v2
    v_add_u32 v{T0+1}, s75, v{T0+1}
    v_cvt_f32_u32 v{T0+1}, v{T0+1}""")
    for c in range(4):
        a.e(f'v_add_f32 v{T0+2+c}, {fl(16*c)}, v{T0}' if c else f'v_mov_b32 v{T0+2}, v{T0}')
        a.e(f'v_mul_f32 v{T0+2+c}, {fl(1/512)}, v{T0+2+c}')
        a.e(f'v_mul_f32 v{T0+6+c}, v{T0+1}, v{T0+2+c}')
    def pk(d): return lambda c,s: a.e(f'v_cvt_pk_bf16_f32 v{d}, v{c}, v{s}')
    angles(a,[(T0+2+c,T0+6+c,16*psi+u,(None,None,pk(V_GF+16*psi+4*c+u)),False) for (psi,c,u) in G_ITEMS],TA)
    a.e(f"""s_cmp_eq_u32 {wv}, 0
    s_cselect_b32 s76, 0xffff, 0
    s_mov_b32 s77, 0
    v_mov_b32 v{T0}, {hex(0xBF003F00)}
    v_and_b32 v{T0+1}, 1, v1
    v_lshlrev_b32 v{T0+1}, 31, v{T0+1}
    v_xor_b32 v{T0}, v{T0}, v{T0+1}""")
    for c in range(4): a.e(f'v_cndmask_b32 v{V_GF+4*c}, v{V_GF+4*c}, v{T0}, s[76:77]')
    a.e(f'v_add_u32 v7, s71, v{V_L16}')
    a.e('s_barrier')
    for psi in range(4):
        for c in range(4):
            a.e(f'ds_write_b128 v7, {vr(V_GF+16*psi+4*c,4)} offset:{GSLOT[psi]*4096+c*1024}')
    a.e('s_waitcnt lgkmcnt(0)'); a.e('s_barrier')
    stamps_flush(a,cfg)
    a.e(f's_branch {end}')

def p2_t_loads(a,cfg):
    T0=64
    a.e(f'''s_lshl_b32 s56, s4, 5
    s_add_u32 s56, s56, s5
    v_lshrrev_b32 v{T0}, 5, v0
    v_lshlrev_b32 v{T0}, 18, v{T0}
    v_bfe_u32 v{T0+1}, v0, 1, 4
    v_lshl_add_u32 v{T0}, v{T0+1}, 13, v{T0}
    v_and_b32 v{T0+1}, 1, v0
    v_lshl_add_u32 v{T0}, v{T0+1}, 4, v{T0}
    s_lshl_b32 s57, s56, 5
    s_add_u32 s57, s57, {WS_T}''')
    for ks in range(4):
        for mb in range(2):
            a.e(f's_mov_b32 m0, {TB_BASE+2048*ks+1024*mb}')
            a.e(f's_add_u32 s58, s57, {ks*524288+mb*131072}')
            a.e(f'buffer_load_dwordx4 v{T0}, {srd(S_WS)}, s58 offen {cfg.f("ldT")} lds')
    a.e(f's_lshl_b32 s57, s56, 13'); a.e(f's_add_u32 s57, s57, {WS_WT}')
    for j in range(8):
        a.e(f's_mov_b32 m0, {WB_BASE+1024*j}')
        a.e(f's_add_u32 s58, s57, {1024*j}')
        a.e(f'buffer_load_dwordx4 v{V_L16}, {srd(S_WS)}, s58 offen {cfg.f("ldW")} lds')

def p2_small_loads(a,cfg):
    V_W,V_GT,V_Q,T0=P2['V_W'],P2['V_GT'],P2['V_Q'],P2['T0']
    a.e(f'''s_lshl_b32 s56, s4, 5
    s_add_u32 s56, s56, s5
    s_lshl_b32 s60, s56, 13
    s_lshl_b32 s61, {wv}, 11
    s_add_u32 s60, s60, s61
    s_add_u32 s62, s60, {WS_WT}
    s_add_u32 s63, s61, {WS_G}
    s_add_u32 s64, s61, {WS_QT}''')
    for nb in range(2): a.e(f'buffer_load_dwordx4 {vr(V_GT+4*nb,4)}, v{V_L16}, {srd(S_WS)}, s63 offen offset:{1024*nb} {cfg.f("ldW")}')
    a.e(f'''s_cmp_eq_u32 s56, 0
    s_cselect_b32 s65, 0, {OOB}
    v_add_u32 v{T0+2}, s65, v{V_L16}''')
    for eh in range(2): a.e(f'buffer_load_dwordx4 {vr(V_Q+4*eh,4)}, v{T0+2}, {srd(S_WS)}, s64 offen offset:{1024*eh} {cfg.f("ldW")}')

def p2_table_parts(a,cfg):
    p=P2; T0=232; TA=200
    def pk(dr,di):
        def f(c,s):
            a.e(f'v_cvt_pk_bf16_f32 v{dr}, v{c}, v{s}')
            a.e(f'v_cvt_pk_bf16_f32 v{di}, -v{s}, v{c}')
        return f
    def part0():
        a.e(f'''s_lshl_b32 s83, {wv}, 4
        v_add_u32 v{T0}, s83, v1
        v_cvt_f32_u32 v{T0}, v{T0}
        v_lshlrev_b32 v{T0+2}, 2, v2
        v_cvt_f32_u32 v{T0+2}, v{T0+2}
        v_mul_f32 v{T0+1}, {fl(1/64)}, v{T0}
        v_mul_f32 v{T0+3}, v{T0+2}, v{T0+1}''')
        angles(a,[(T0+1,T0+3,16*ks+u,(None,None,pk(p['V_F64R']+4*ks+u,p['V_F64I']+4*ks+u)),False) for ks in range(3) for u in range(4)],TA)
    def part1():
        angles(a,[(T0+1,T0+3,16*ks+u,(None,None,pk(p['V_F64R']+4*ks+u,p['V_F64I']+4*ks+u)),False) for ks in range(3,4) for u in range(4)],TA)
        a.e(f'''v_mul_f32 v{T0+1}, {fl(1/2048)}, v{T0}
        v_mul_f32 v{T0+3}, v{T0+2}, v{T0+1}''')
        angles(a,[(T0+1,T0+3,16*mb+r,(p['V_T1C']+4*mb+r,p['V_T1S']+4*mb+r,None),True) for mb in range(2) for r in range(4)],TA)
    def part2():
        a.e(f'v_cvt_f32_u32 v{T0+7}, v1')
        for eh in range(2):
            a.e(f'''v_add_f32 v{T0+1}, {fl(16*eh)}, v{T0+7}
            v_mul_f32 v{T0+1}, {fl(1/32)}, v{T0+1}
            v_mul_f32 v{T0+3}, v{T0+2}, v{T0+1}''')
            angles(a,[(T0+1,T0+3,16*mb+u,(None,None,pk(p['V_F32R']+8*eh+4*mb+u,p['V_F32I']+8*eh+4*mb+u)),False) for mb in range(2) for u in range(4)],TA)
    def part3():
        a.e(f'''v_cvt_f32_u32 v{T0}, s83
        v_add_f32 v{T0+2}, v{T0}, v{T0+2}''')
        for nb in range(2):
            a.e(f'''v_add_f32 v{T0+1}, {fl(16*nb)}, v{T0+7}
            v_mul_f32 v{T0+1}, {fl(1/2048)}, v{T0+1}
            v_mul_f32 v{T0+3}, v{T0+2}, v{T0+1}''')
            angles(a,[(T0+1,T0+3,r,(p['V_T3C']+4*nb+r,p['V_T3S']+4*nb+r,None),True) for r in range(4)],TA)
    return [part0,part1,part2,part3]

def p2_compute(a,cfg,tok_w):
    p=P2
    V_U,V_W,V_GT,T0=p['V_U'],p['V_W'],p['V_GT'],p['T0']
    V_F64R,V_F64I,V_F32R,V_F32I=p['V_F64R'],p['V_F64I'],p['V_F32R'],p['V_F32I']
    V_T1C,V_T1S,V_T3C,V_T3S=p['V_T1C'],p['V_T1S'],p['V_T3C'],p['V_T3S']
    V_DR,V_DI,V_B=p['V_DR'],p['V_DI'],p['V_B']; TT=200
    a.e(f'''v_lshrrev_b32 v{T0+4}, 1, v2
    v_lshlrev_b32 v{T0+4}, 5, v{T0+4}
    v_lshl_add_u32 v{T0+4}, v1, 1, v{T0+4}
    v_and_b32 v{T0+5}, 1, v2
    v_add_u32 v{T0+4}, v{T0+4}, v{T0+5}
    v_lshlrev_b32 v{T0+4}, 4, v{T0+4}
    v_add_u32 v{T0+4}, {TB_BASE}, v{T0+4}''')
    for ks in range(4):
        for mb in range(2):
            a.e(f'ds_read_b128 {vr(V_U+16*mb+4*ks,4)}, v{T0+4} offset:{2048*ks+1024*mb}')
    V_WR=216; V_WI=224
    a.e(f's_lshl_b32 s65, {wv}, 11'); a.e(f's_add_u32 s65, s65, {WB_BASE}'); a.e(f'v_add_u32 v{T0+6}, s65, v{V_L16}')
    for eh in range(2): a.e(f'ds_read_b128 {vr(V_W+4*eh,4)}, v{T0+6} offset:{1024*eh}')
    for ks in range(4):
        a.e(f's_waitcnt lgkmcnt({8-2*ks})')
        for mb in range(2):
            A=vr(V_U+16*mb+4*ks,4)
            for (D,Fm) in((V_DR,V_F64R),(V_DI,V_F64I)):
                d=vr(D+4*mb,4)
                a.e(f'v_mfma_f32_16x16x32_bf16 {d}, {A}, {vr(Fm+4*ks,4)}, {d if ks else 0}')
    a.e('s_waitcnt lgkmcnt(0)')
    for e in range(8):
        a.e(f'v_lshlrev_b32 v{V_WR+e}, 16, v{V_W+e}')
        a.e(f'v_and_b32 v{V_WI+e}, 0xffff0000, v{V_W+e}')
    for mb in range(2): cmul_pack(a,V_DR+4*mb,V_DI+4*mb,V_T1C+4*mb,V_T1S+4*mb,V_B+4*mb,TT)
    for mb in range(2):
        for eh in range(2):
            for (D,Fm) in((V_DR,V_F32R),(V_DI,V_F32I)):
                d=vr(D+4*eh,4)
                a.e(f'v_mfma_f32_16x16x32_bf16 {d}, {vr(Fm+8*eh+4*mb,4)}, {vr(V_B+4*mb,4)}, {d if mb else 0}')
    a.e(f'''s_lshl_b32 s65, {wv}, 11
    s_add_u32 s65, s65, {XB_BASE}
    v_add_u32 v{T0+4}, s65, v{V_L16}
    v_add_u32 v{T0+5}, {XB_BASE}, v{V_L16}''')
    a.e('s_cmp_lg_u32 s56, 0')
    a.e('s_cbranch_scc0 L_p2_special')
    for eh in range(2): cmul_pack(a,V_DR+4*eh,V_DI+4*eh,V_WR+4*eh,V_WI+4*eh,V_B+4*eh,TT,negim=True)
    a.e('L_p2_join:')
    for ks in range(2):
        for nb in range(2):
            for (D,Fm) in((V_DR,V_F32R),(V_DI,V_F32I)):
                d=vr(D+4*nb,4)
                a.e(f'v_mfma_f32_16x16x32_bf16 {d}, {vr(V_B+4*ks,4)}, {vr(Fm+8*nb+4*ks,4)}, {d if ks else 0}')
    for nb in range(2):
        cmul_pack(a,V_DR+4*nb,V_DI+4*nb,V_T3C+4*nb,V_T3S+4*nb,V_B+4*nb,TT)
        a.e(f'ds_write_b128 v{T0+4}, {vr(V_B+4*nb,4)} offset:{1024*nb}')
    a.e('s_waitcnt lgkmcnt(0)')
    a.e('s_barrier')
    V_X=V_U
    for ks in range(4):
        for nb in range(2):
            a.e(f'ds_read_b128 {vr(V_X+8*ks+4*nb,4)}, v{T0+5} offset:{2048*ks+1024*nb}')
    for ks in range(4):
        a.e(f's_waitcnt lgkmcnt({6-2*ks})')
        for nb in range(2):
            for (D,Fm) in((V_DR,V_F64R),(V_DI,V_F64I)):
                d=vr(D+4*nb,4)
                a.e(f'v_mfma_f32_16x16x32_bf16 {d}, {vr(Fm+4*ks,4)}, {vr(V_X+8*ks+4*nb,4)}, {d if ks else 0}')
    a.wait_vm(tok_w)
    for e in range(8): a.e(f'v_mul_f32 v{V_GT+e}, {fl(2.0**-19)}, v{V_GT+e}')
    a.e(f's_add_u32 s62, s60, {WS_Y}')
    for nb in range(2):
        for h in range(2):
            a.e(f'v_pk_mul_f32 {vr(V_DR+4*nb+2*h,2)}, {vr(V_DR+4*nb+2*h,2)}, {vr(V_GT+4*nb+2*h,2)}')
            a.e(f'v_pk_mul_f32 {vr(V_DI+4*nb+2*h,2)}, {vr(V_DI+4*nb+2*h,2)}, {vr(V_GT+4*nb+2*h,2)}')
        for r in range(4): a.e(f'v_cvt_pk_bf16_f32 v{V_B+4*nb+r}, v{V_DR+4*nb+r}, v{V_DI+4*nb+r}')
        a.e(f'buffer_store_dwordx4 {vr(V_B+4*nb,4)}, v{V_L16}, {srd(S_WS)}, s62 offen offset:{1024*nb} {cfg.f("stY")}')

def p2_special(a,cfg):
    p=P2
    V_U,V_Q,T0,V_DR,V_DI,V_B=p['V_U'],p['V_Q'],p['T0'],p['V_DR'],p['V_DI'],p['V_B']
    V_WR=216; V_WI=224
    a.e('L_p2_special:')
    a.cond_begin()
    a.e('s_waitcnt vmcnt(0)')
    V_J=T0+8; V_ZA=V_U+16
    a.e(f'''s_lshl_b32 s65, {wv}, 4
    v_lshlrev_b32 v{V_J}, 8, v2
    v_add3_u32 v{V_J}, v{V_J}, v1, s65''')
    for eh in range(2):
        for r in range(4):
            n=1024*eh+64*r
            a.e(f'v_add_u32 v{T0}, {n}, v{V_J}')
            a.e(f'v_lshlrev_b32 v{T0}, 2, v{T0}')
            a.e(f'v_cvt_pk_bf16_f32 v{T0+2}, v{V_DR+4*eh+r}, v{V_DI+4*eh+r}')
            a.e(f'v_add_u32 v{T0}, {ZR_BASE}, v{T0}')
            a.e(f'ds_write_b32 v{T0}, v{T0+2}')
    a.e('s_waitcnt lgkmcnt(0)')
    a.e('s_barrier')
    for eh in range(2):
        for r in range(4):
            n=1024*eh+64*r
            a.e(f'v_sub_u32 v{T0}, {2048-n}, v{V_J}')
            a.e(f'v_and_b32 v{T0}, 2047, v{T0}')
            a.e(f'v_lshlrev_b32 v{T0}, 2, v{T0}')
            a.e(f'v_add_u32 v{T0}, {ZR_BASE}, v{T0}')
            a.e(f'ds_read_b32 v{V_ZA+4*eh+r}, v{T0}')
    a.e('s_waitcnt lgkmcnt(0)')
    for e in range(8):
        zr=V_DR+e; zi=V_DI+e; pr=V_WR+e; pi=V_WI+e; ar_=T0+6; ai=T0+7
        qr=T0; qi=T0+1; yr=T0+2; yi=T0+3
        a.e(f'''v_lshlrev_b32 v{qr}, 16, v{V_Q+e}
        v_and_b32 v{qi}, 0xffff0000, v{V_Q+e}
        v_lshlrev_b32 v{ar_}, 16, v{V_ZA+e}
        v_and_b32 v{ai}, 0xffff0000, v{V_ZA+e}
        v_mul_f32 v{yr}, v{zr}, v{pr}
        v_fma_f32 v{yr}, -v{zi}, v{pi}, v{yr}
        v_fma_f32 v{yr}, v{ar_}, v{qr}, v{yr}
        v_fma_f32 v{yr}, v{ai}, v{qi}, v{yr}
        v_mul_f32 v{yi}, v{zr}, v{pi}
        v_fma_f32 v{yi}, v{zi}, v{pr}, v{yi}
        v_fma_f32 v{yi}, v{ar_}, v{qi}, v{yi}
        v_fma_f32 v{yi}, -v{ai}, v{qr}, v{yi}
        v_cvt_pk_bf16_f32 v{V_B+e}, v{yr}, -v{yi}''')
    a.cond_end()
    a.e('s_branch L_p2_join')

HEADER='''; Gated mix of a GFNet spectral filter and a dense->mish->dense block, one persistent launch.
; (text generated by the author's own generator script; 256 workgroups, one per CU, hand-offs through counters)
'''
def build(stamps=False,off=(),**kw):
    cfg=Cfg(); cfg.stamps=stamps; cfg.off=set(off); cfg.x=kw; cfg.fine=kw.get('fine',0)
    label=NAME+'_kernel'
    a=Asm(); end='L_end'
    prologue(a,cfg,end)
    sv=(a.vm,a.lg)
    if kw.get('ffirst'):
        f_stream(a,cfg,end)
        nbF=sum(1 for i in a.items if i.op=='s_barrier'); n0=len(a.items)
        a.vm,a.lg=sv; a.bg_rate=0; assert not a.bg
        a.e('L_M:')
        m_stream(a,cfg,end)
        nbM=sum(1 for i in a.items[n0:] if i.op=='s_barrier')
    else:
        m_stream(a,cfg,end)
        nbM=sum(1 for i in a.items if i.op=='s_barrier'); n0=len(a.items)
        a.vm,a.lg=sv; a.bg_rate=0; assert not a.bg
        f_stream(a,cfg,end)
        nbF=sum(1 for i in a.items[n0:] if i.op=='s_barrier')
    a.e(f'{end}:'); a.e('s_endpgm')
    txt=a.text()
    errs=[]
    for role in (False,True):
        jump=lambda t: (role and t=='L_F') or ((not role) and t=='L_M')
        for nm,pol in (('fall',lambda i,n:i.target.endswith('_done') or jump(i.target)),
                       ('taken',lambda i,n:((not i.target.startswith('L_end')) and n==0 and (i.target not in('L_F','L_M') or jump(i.target))))):
            errs+=verify_waits(a.out,pol,('F' if role else 'M')+nm)
    for e in sorted(set(errs))[:30]: print('WAITERR',e,file=sys.stderr)
    print(dict(a.count()),'barriers M',nbM,'F',nbF,file=sys.stderr)
    out=HEADER+f'; @launch grid=(256,1,1) block=(512,1,1) lds={LDS_TOTAL}\n'
    out+='.amdgcn_target "amdgcn-amd-amdhsa--gfx950"\n.text\n'
    out+=f'.globl {label}\n.p2align 8\n.type {label},@function\n{label}:\n{txt}'
    out+=f'''.section .rodata,"a"
.p2align 6
.amdhsa_kernel {label}
  .amdhsa_next_free_vgpr 256
  .amdhsa_next_free_sgpr 102
  .amdhsa_accum_offset 256
  .amdhsa_group_segment_fixed_size 0
  .amdhsa_kernarg_size 88
  .amdhsa_user_sgpr_count 2
  .amdhsa_user_sgpr_kernarg_segment_ptr 1
  .amdhsa_system_sgpr_workgroup_id_x 1
.end_amdhsa_kernel
'''
    return out

if __name__=='__main__':
    mode=sys.argv[1] if len(sys.argv)>1 else 'persist'
    kw={}
    for x in sys.argv[3:]:
        k,v=x.split('='); kw[k]=int(v) if v.lstrip('-').isdigit() else v
    off=kw.pop('off','').split(',') if 'off' in kw else ()
    txt=build(stamps=(mode=='stamps'),off=off,**kw)
    open(sys.argv[2] if len(sys.argv)>2 else 'out.s','w').write(txt)
```

```python
import sys, os, struct
from dsl import Asm, verify_waits

NAME='gated_mix__spectral_gfnet__dense_activation_mish__prompt'
WS_T   =0x000000
WS_WT  =0x200000
WS_QT  =0x400000
WS_G   =0x402000
WS_CNT =0x404000
WS_Y   =0x600000
WS_ACT =0x800000
WS_STAMP=0x1000000
WS_SIZE=0x1080000
RT_STRIDE=56*4096
S_X,S_WR,S_WI,S_W1,S_B1,S_W2,S_GW,S_OUT,S_WS,S_DBG=8,12,16,20,24,28,32,36,40,44
def srd(n): return f's[{n}:{n+3}]'
SRDS=[(S_X,0,2048*1024),(S_WR,8,2048*514),(S_WI,16,2048*514),(S_W1,32,512*3584),(S_B1,40,3584),
      (S_W2,48,1792*1024),(S_GW,56,1024),(S_OUT,64,2048*1024),(S_WS,80,WS_SIZE),(S_DBG,72,256)]
def vr(b,n=1): return f'v{b}' if n==1 else f'v[{b}:{b+n-1}]'
def fl(x): return hex(struct.unpack('<I',struct.pack('<f',float(x)))[0])
S_WV=3; S_W8=49
wv=f's{S_WV}'
LOG2E=1.4426950408889634
OOB=0x40000000
SLEEP=int(os.environ.get('SLEEP','8'))
SPIN_MAX=50000
SLOT=31744
SB=lambda c:(c%5)*SLOT
XA_BASE=4*SLOT; XA_PITCH=1152
GW_LDS=5*SLOT; B1_LDS=GW_LDS+1024
LC_BASE=GW_LDS+2048
TB_BASE=131072; XB_BASE=139264; ZR_BASE=147456; WB_BASE=155648
LDS_TOTAL=163840
V_L16=3
V_PD,V_PA,V_SIG=250,251,252

class Cfg:
    stamps=False; dbgst=False; sc='sc1'
    off=set()
    def f(self,tag): return '' if (tag in self.off or 'all' in self.off) else self.sc

def stamp(a,cfg,idx):
    if not cfg.stamps: return
    r=a.bg_rate; a.bg_rate=0
    a.e('s_memrealtime s[96:97]'); a.e('s_waitcnt lgkmcnt(0)'); a.e(f'v_writelane_b32 v255, s96, {idx}')
    a.bg_rate=r
def stamps_flush(a,cfg):
    if not cfg.stamps: return
    a.e(f"""v_lshrrev_b32 v254, 6, v249
    s_nop 0
    v_readfirstlane_b32 s98, v254
    s_lshl_b32 s99, s2, 3
    s_add_u32 s98, s98, s99
    s_lshl_b32 s98, s98, 8
    s_add_u32 s98, s98, {WS_STAMP}
    v_lshlrev_b32 v254, 2, v0
    buffer_store_dword v255, v254, {srd(S_WS)}, s98 offen""")

def signal(a,S,soff):
    vt=V_SIG
    a.e(f"""s_cmp_eq_u32 {wv}, 0
    s_cselect_b32 s95, 0, {OOB}
    v_mov_b32 v{vt}, 1
    v_mov_b32 v{vt+1}, s95
    s_mov_b64 exec, 1
    buffer_atomic_add v{vt}, v{vt+1}, {srd(S)}, {soff} offen sc1
    s_mov_b64 exec, -1""")

def ssignal(a,S,soff):
    lab=f'L_ss{len(a.items)}'
    a.e(f's_cmp_lg_u32 {wv}, 0'); a.e(f's_cbranch_scc1 {lab}')
    a.e(f's_atomic_add s90, s[{S}:{S+1}], {soff}')
    a.e(f'{lab}:')

def spin_global(a,S,soff,nl,stride,target):
    lab=f'L_poll{len(a.items)}'
    a.e(f'v_mul_u32_u24 v{V_PA}, {stride}, v0')
    a.e(f's_mov_b64 exec, {hex((1<<nl)-1)}')
    a.e(f's_mov_b32 s94, 0')
    a.e(f'{lab}:')
    a.e(f'buffer_load_dword v{V_PD}, v{V_PA}, {srd(S)}, {soff} offen sc1')
    a.e(f's_add_u32 s94, s94, 1')
    a.e(f's_waitcnt vmcnt(0)')
    a.e(f'v_cmp_gt_u32 vcc, {target}, v{V_PD}')
    a.e(f's_cbranch_vccz {lab}_done')
    a.e(f's_cmp_gt_u32 s94, {SPIN_MAX}')
    a.e(f's_cbranch_scc1 {lab}_done')
    a.e(f's_sleep {SLEEP}')
    a.e(f's_branch {lab}')
    a.e(f'{lab}_done:')
    a.e('s_mov_b64 exec, -1')

def poll_w0(a,S,soff,nl,stride,target):
    lab=f'L_pw{len(a.items)}'
    a.e(f's_cmp_lg_u32 {wv}, 0'); a.e(f's_cbranch_scc1 {lab}')
    a.cond_begin(); spin_global(a,S,soff,nl,stride,target); a.cond_end()
    a.e(f'{lab}:')

V_LC=248
def lc_add(a,idx,rtn=None):
    a.e(f'v_mov_b32 v{V_LC-1}, 1')
    a.e('s_mov_b64 exec, 1')
    if rtn is None: a.e(f'ds_add_u32 v{V_LC}, v{V_LC-1} offset:{4*idx}')
    else: a.e(f'ds_add_rtn_u32 v{rtn}, v{V_LC}, v{V_LC-1} offset:{4*idx}')
    a.e('s_mov_b64 exec, -1')
def lc_wait(a,idx,target):
    lab=f'L_lc{len(a.items)}'
    a.e('s_mov_b32 s94, 0')
    a.e(f'{lab}:')
    a.e(f'ds_read_b32 v{V_LC-1}, v{V_LC} offset:{4*idx}')
    a.e('s_add_u32 s94, s94, 1')
    a.e('s_waitcnt lgkmcnt(0)')
    a.e(f'v_readfirstlane_b32 s93, v{V_LC-1}')
    a.e(f's_cmp_ge_u32 s93, {target}')
    a.e(f's_cbranch_scc1 {lab}_done')
    a.e('s_sleep 1')
    a.e(f's_cmp_lt_u32 s94, {20*SPIN_MAX}')
    a.e(f's_cbranch_scc1 {lab}')
    a.e(f'{lab}_done:')

def angles(a,items,T):
    for i0 in range(0,len(items),4):
        grp=items[i0:i0+4]; src=[]
        for j,(sl,base,n,fin,neg) in enumerate(grp):
            if n==0: src.append(f'v{base}')
            else:
                a.e(f'v_fmamk_f32 v{T+j}, v{sl}, {fl(n)}, v{base}'); src.append(f'v{T+j}')
        outs=[]
        for j,(sl,base,n,fin,neg) in enumerate(grp):
            c,s=fin[0] if fin[0] is not None else T+4+j, fin[1] if fin[1] is not None else T+8+j
            a.e(f'v_cos_f32 v{c}, {src[j]}')
            a.e(f'v_sin_f32_e64 v{s}, -{src[j]}' if neg else f'v_sin_f32 v{s}, {src[j]}')
            outs.append((c,s))
        for j,(sl,base,n,fin,neg) in enumerate(grp):
            if fin[2]: fin[2](*outs[j])

def cmul_pack(a,c,s,tc,ts,dst,TT,n=4,negim=False):
    H=n//2
    for h in range(H): a.e(f'v_pk_mul_f32 {vr(TT+4*h,2)}, {vr(s+2*h,2)}, {vr(ts+2*h,2)}')
    for h in range(H): a.e(f'v_pk_mul_f32 {vr(TT+4*h+2,2)}, {vr(s+2*h,2)}, {vr(tc+2*h,2)}')
    for h in range(H): a.e(f'v_pk_fma_f32 {vr(TT+4*h,2)}, {vr(c+2*h,2)}, {vr(tc+2*h,2)}, {vr(TT+4*h,2)} neg_lo:[0,0,1] neg_hi:[0,0,1]')
    for h in range(H): a.e(f'v_pk_fma_f32 {vr(TT+4*h+2,2)}, {vr(c+2*h,2)}, {vr(ts+2*h,2)}, {vr(TT+4*h+2,2)}')
    ng='-' if negim else ''
    for h in range(H):
        a.e(f'v_cvt_pk_bf16_f32 v{dst+2*h}, v{TT+4*h}, {ng}v{TT+4*h+2}')
        a.e(f'v_cvt_pk_bf16_f32 v{dst+2*h+1}, v{TT+4*h+1}, {ng}v{TT+4*h+3}')

def prologue(a,cfg,end):
    a.e('s_cmp_ge_u32 s2, 256'); a.e(f's_cbranch_scc1 {end}')
    for (n,off,sz) in SRDS: a.e(f's_load_dwordx2 s[{n}:{n+1}], s[0:1], {off}')
    if cfg.x.get('pf_code') and cfg.x.get('pf_top'):
        nw=cfg.x['pf_top']
        a.e('s_getpc_b64 s[64:65]')
        a.e('v_lshrrev_b32 v56, 6, v0'); a.e('v_and_b32 v57, 63, v0')
        a.e('v_readfirstlane_b32 s66, v56')
        a.e('v_lshlrev_b32 v57, 4, v57')
        a.e('s_lshr_b32 s67, s2, 3'); a.e(f's_mul_i32 s67, s67, {nw}'); a.e('s_add_u32 s67, s67, s66')
        a.e('s_lshl_b32 s68, s67, 10')
        a.e('s_add_u32 s64, s64, s68'); a.e('s_addc_u32 s65, s65, 0')
        a.e('v_mov_b32 v59, s65'); a.e('v_add_co_u32 v58, vcc, s64, v57'); a.e('s_nop 1'); a.e('v_addc_co_u32 v59, vcc, 0, v59, vcc')
        a.e(f's_cmp_lt_u32 s66, {nw}'); a.e('s_cbranch_scc0 L_nopf0'); a.cond_begin()
        a.e(f's_cmp_lt_u32 s67, {cfg.x["pf_code"]}'); a.e('s_cbranch_scc0 L_nopf0')
        a.e('global_load_dwordx4 v[52:55], v[58:59], off')
        a.cond_end(); a.e('L_nopf0:')
    if cfg.stamps: a.e('v_mov_b32 v249, v0')
    a.e('v_lshrrev_b32 v1, 6, v0')
    a.e('v_and_b32 v0, 63, v0')
    a.e('v_readfirstlane_b32 s48, v1')
    a.e('v_and_b32 v1, 15, v0')
    a.e('v_lshrrev_b32 v2, 4, v0')
    a.e(f'v_lshlrev_b32 v{V_L16}, 4, v0')
    for (n,off,sz) in SRDS:
        a.e(f's_mov_b32 s{n+2}, {hex(sz)}'); a.e(f's_mov_b32 s{n+3}, 0x20000')
    a.e(f'''s_mov_b32 s51, s48
    s_and_b32 {wv}, s48, 3
    s_lshr_b32 s50, s48, 2
    s_and_b32 s4, s2, 7
    s_lshr_b32 s5, s2, 3
    s_lshr_b32 s6, s4, 1
    s_lshl_b32 s6, s6, 2
    s_lshr_b32 s56, s5, 3
    s_add_u32 s6, s6, s56
    s_and_b32 s7, s4, 1
    s_lshl_b32 s7, s7, 3
    s_and_b32 s56, s5, 7
    s_add_u32 s7, s7, s56
    s_and_b32 s48, s7, 1''')
    a.e('s_waitcnt lgkmcnt(0)')
    if cfg.x.get('pf_code') and not cfg.x.get('pf_top'):
        a.e('s_getpc_b64 s[64:65]')
        a.e('s_lshl_b32 s66, s5, 10')
        a.e('s_add_u32 s64, s64, s66'); a.e('s_addc_u32 s65, s65, 0')
        a.e(f'v_mov_b32 v57, s65'); a.e(f'v_add_co_u32 v56, vcc, s64, v{V_L16}'); a.e('s_nop 1'); a.e(f'v_addc_co_u32 v57, vcc, 0, v57, vcc')
        a.e(f's_cmp_lt_u32 s5, {cfg.x["pf_code"]}'); a.e('s_cbranch_scc0 L_nopf'); a.cond_begin()
        a.e(f's_cmp_lg_u32 s51, 2'); a.e('s_cbranch_scc1 L_nopf')
        a.e('global_load_dwordx4 v[52:55], v[56:57], off')
        a.cond_end(); a.e('L_nopf:')
    mt=str(cfg.x.get('mt','xw'))
    if mt!='0':
        a.e(f'''v_lshlrev_b32 v5, 7, v0
        v_mov_b32 v6, {OOB}
        v_cmp_gt_u32 vcc, 56, v0
        v_cndmask_b32 v6, v6, v5, vcc
        s_cmp_eq_u32 s51, 0
        s_cselect_b32 s56, 0, {OOB}
        v_add_u32 v5, s56, v5
        s_cmp_eq_u32 s51, 1
        s_cselect_b32 s56, 0, {OOB}
        v_add_u32 v7, s56, v6
        s_lshl_b32 s56, s2, 13
        s_mul_i32 s57, s2, 7168''')
        if 'x' in mt: a.e(f'buffer_load_dword v245, v5, {srd(S_X)}, s56 offen')
        if 'w' in mt: a.e(f'buffer_load_dword v245, v7, {srd(S_W1)}, s57 offen')
    if cfg.x.get('tlb'):
        a.e(f'''v_lshlrev_b32 v5, 21, v0
        v_mov_b32 v6, {OOB}
        v_cmp_gt_u32 vcc, 9, v0
        v_cndmask_b32 v5, v6, v5, vcc
        s_cmp_eq_u32 s51, 2
        s_cselect_b32 s56, 0, {OOB}
        v_or_b32 v5, s56, v5
        s_cmp_eq_u32 s51, 3
        s_cselect_b32 s56, 0, {OOB}
        v_cmp_gt_u32 vcc, 1, v0
        v_cndmask_b32 v6, v6, v0, vcc
        v_or_b32 v6, s56, v6
        buffer_load_dword v245, v5, {srd(S_WS)}, 0 offen
        buffer_load_dword v245, v6, {srd(S_OUT)}, 0 offen''')
    if cfg.x.get('ffirst'):
        a.e('s_cmp_eq_u32 s50, 0'); a.e('s_cbranch_scc1 L_M')
    else:
        a.e('s_cmp_lg_u32 s50, 0'); a.e('s_cbranch_scc1 L_F')

V_GF=8
V_W2A=240; V_W2D=244
NS3=int(os.environ.get('NS3','8'))
GSLOT=[6,7,0,1]
GT0=224; GTA=234
G_ITEMS=[(psi,c,u) for psi in range(4) for c in range(4) for u in range(4)]
def m_g2_ids(a,cfg):
    a.e(f"""s_lshl_b32 s67, s4, 2
    s_lshr_b32 s68, s5, 3
    s_add_u32 s67, s67, s68
    s_and_b32 s68, s5, 7
    s_mul_i32 s69, s67, {RT_STRIDE}
    s_mul_i32 s70, {wv}, {14*4096}
    s_add_u32 s69, s69, s70
    s_add_u32 s69, s69, {WS_ACT}
    s_mul_i32 s70, {wv}, {14*32*1024}
    s_lshl_b32 s71, s68, 7
    s_add_u32 s70, s70, s71
    s_lshl_b32 s71, {wv}, 15
    s_lshr_b32 s72, s67, 1
    s_and_b32 s73, s67, 1
    s_lshr_b32 s74, s72, 2
    s_lshl_b32 s74, s74, 11
    s_lshl_b32 s75, s73, 10
    s_add_u32 s74, s74, s75
    s_and_b32 s75, s72, 3
    s_lshl_b32 s75, s75, 8
    s_add_u32 s74, s74, s75""")
def w2_dma_addr(a,V,T):
    a.e(f"""v_lshrrev_b32 v{T}, 3, v0
    v_lshlrev_b32 v{V}, 10, v{T}
    v_lshrrev_b32 v{T}, 1, v{T}
    v_and_b32 v{T}, 3, v{T}
    v_bfe_u32 v{T+1}, v0, 1, 2
    v_xor_b32 v{T}, v{T}, v{T+1}
    v_lshlrev_b32 v{T}, 1, v{T}
    v_and_b32 v{T+1}, 1, v0
    v_add_u32 v{T}, v{T}, v{T+1}
    v_lshl_add_u32 v{V}, v{T}, 4, v{V}""")
def w2_group(t,v,V):
    return [f's_add_u32 m0, s71, {(t%8)*4096+v*1024}', f's_add_u32 s55, s70, {(32*t+8*v)*1024}',
            f'buffer_load_dwordx4 v{V}, {srd(S_W2)}, s55 offen lds']

def m_stream(a,cfg,end):
    a.e('s_waitcnt lgkmcnt(0)')
    if cfg.x.get('prio0'): a.e(f's_setprio {cfg.x["prio0"]}')
    stamp(a,cfg,26)
    a.e(f'''s_xor_b32 s56, {wv}, 3
    s_or_b32 s58, s56, s2
    s_cmp_eq_u32 s58, 0
    s_cselect_b32 s56, 0, {OOB}
    v_lshlrev_b32 v5, 7, v0
    v_add_u32 v5, s56, v5
    v_mov_b32 v6, 0
    s_mov_b32 s57, {WS_CNT}
    s_mov_b32 exec_hi, 0
    buffer_store_dword v6, v5, {srd(S_WS)}, s57 offen sc1
    s_mov_b32 exec_hi, -1''')
    mt=str(cfg.x.get('mt','xw'))
    a.e(f'''s_lshr_b32 s49, s2, 5
    s_and_b32 s50, s2, 31''')
    V_B1C=60; V_B1S=68; V_TC=76; V_TS=80; V_A2=84; V_A2N=88; T0=92; TA=100
    a.e(f'''s_lshl_b32 s67, {wv}, 4
    v_add_u32 v{T0}, s67, v1
    v_cvt_f32_u32 v{T0}, v{T0}
    v_mul_f32 v{T0+1}, {fl(1/64)}, v{T0}
    v_lshlrev_b32 v{T0+2}, 2, v2
    v_cvt_f32_u32 v{T0+2}, v{T0+2}
    v_mul_f32 v{T0+3}, v{T0+2}, v{T0+1}''')
    for ks in range(2):
        for hh in range(2):
            angles(a,[(T0+1,T0+3,32*ks+16*hh+u,(None,None,None),True) for u in range(4)],TA)
            for d in range(2):
                a.e(f'v_cvt_pk_bf16_f32 v{V_B1C+4*ks+2*hh+d}, v{TA+4+2*d}, v{TA+5+2*d}')
                a.e(f'v_cvt_pk_bf16_f32 v{V_B1S+4*ks+2*hh+d}, v{TA+8+2*d}, v{TA+9+2*d}')
    a.e(f'''v_and_b32 v{T0+4}, 1, v2
    v_lshlrev_b32 v{T0+4}, 2, v{T0+4}
    v_cvt_f32_u32 v{T0+4}, v{T0+4}
    v_mul_f32 v{T0+5}, {fl(1/512)}, v{T0}
    v_mul_f32 v{T0+6}, v{T0+4}, v{T0+5}''')
    angles(a,[(T0+5,T0+6,r,(V_TC+r,V_TS+r,None),True) for r in range(4)],TA)
    a.e(f'''v_lshrrev_b32 v{T0+5}, 2, v1
    v_cvt_f32_u32 v{T0+5}, v{T0+5}
    v_mul_f32 v{T0+5}, {fl(1/8)}, v{T0+5}
    v_and_b32 v{T0+6}, 1, v1
    v_cvt_f32_u32 v{T0+6}, v{T0+6}
    v_mul_f32 v{T0+6}, {fl(0.25)}, v{T0+6}
    v_fma_f32 v{T0+6}, v{T0+4}, v{T0+5}, v{T0+6}
    v_lshrrev_b32 v{T0+7}, 1, v1
    v_and_b32 v{T0+7}, 1, v{T0+7}
    v_lshrrev_b32 v{T0}, 1, v2
    v_cmp_eq_u32 s[68:69], v{T0+7}, v{T0}
    v_and_b32 v{T0+7}, 13, v1
    v_cmp_eq_u32 vcc, 1, v{T0+7}''')
    a.e('s_and_b64 s[70:71], vcc, s[68:69]')
    angles(a,[(T0+5,T0+6,dw,(None,None,None),False) for dw in range(4)],TA)
    for dw in range(4): a.e(f'v_cvt_pk_bf16_f32 v{TA+dw}, v{TA+4+dw}, v{TA+8+dw}')
    a.e(f'v_mov_b32 v{TA+4}, 0x3f80'); a.e(f'v_mov_b32 v{TA+5}, 0xbf80')
    for dw in range(4):
        a.e(f'v_cndmask_b32 v{V_A2+dw}, 0, v{TA+dw}, s[68:69]')
        a.e(f'v_cndmask_b32 v{V_A2N+dw}, 0, v{TA+4+(dw&1)}, s[70:71]')
    V_XA=108
    a.e(f'''v_and_b32 v{T0}, 3, v0
    v_lshrrev_b32 v{T0+1}, 1, v{T0}
    v_mul_u32_u24 v{V_XA}, {XA_PITCH}, v{T0+1}
    v_and_b32 v{T0}, 1, v{T0}
    v_lshlrev_b32 v{T0}, 3, v{T0}
    v_lshrrev_b32 v{T0+1}, 2, v1
    v_lshl_add_u32 v{T0+1}, v2, 2, v{T0+1}
    v_lshlrev_b32 v{T0+1}, 4, v{T0+1}
    v_add3_u32 v{V_XA}, v{V_XA}, v{T0}, v{T0+1}
    v_add_u32 v{V_XA}, {XA_BASE}, v{V_XA}
    s_mul_i32 s72, {wv}, {2*XA_PITCH}
    s_add_u32 s72, s72, {XA_BASE}
    v_add_u32 v{V_XA+1}, s72, v{V_L16}
    v_add_u32 v{V_XA+2}, {GW_LDS}, v{V_L16}''')
    a.e(f'''s_lshl_b32 s84, s49, 3
    s_lshl_b32 s85, {wv}, 1
    s_add_u32 s84, s84, s85
    s_lshr_b32 s85, s84, 4
    s_lshl_b32 s85, s85, 11
    s_lshr_b32 s86, s50, 4
    s_lshl_b32 s86, s86, 10
    s_add_u32 s85, s85, s86
    s_lshr_b32 s86, s84, 2
    s_and_b32 s86, s86, 3
    s_lshl_b32 s86, s86, 8
    s_add_u32 s85, s85, s86
    s_and_b32 s86, s50, 15
    s_lshl_b32 s86, s86, 4
    s_add_u32 s85, s85, s86
    s_and_b32 s86, s84, 3
    s_lshl_b32 s86, s86, 2
    s_add_u32 s85, s85, s86
    s_add_u32 s85, s85, {WS_G}
    ''')
    if mt!='0' and ('W' in mt or '2' in mt):
        a.e(f'''v_lshlrev_b32 v5, 7, v0
        v_mov_b32 v6, {OOB}
        v_cmp_gt_u32 vcc, 33, v0
        v_cndmask_b32 v7, v6, v5, vcc
        v_cmp_gt_u32 vcc, 56, v0
        v_cndmask_b32 v6, v6, v5, vcc
        s_cmp_eq_u32 {wv}, 2
        s_cselect_b32 s56, 0, {OOB}
        v_add_u32 v5, s56, v7
        s_cmp_eq_u32 {wv}, 3
        s_cselect_b32 s56, 0, {OOB}
        v_add_u32 v7, s56, v7
        s_cmp_eq_u32 {wv}, 0
        s_cselect_b32 s56, 0, {OOB}
        v_add_u32 v6, s56, v6
        s_mul_i32 s56, s2, {33*128}
        v_add_u32 v5, s56, v5
        v_add_u32 v7, s56, v7
        s_mul_i32 s57, s2, 7168''')
        if 'W' in mt:
            a.e(f'buffer_load_dword v245, v5, {srd(S_WR)}, 0 offen')
            a.e(f'buffer_load_dword v245, v7, {srd(S_WI)}, 0 offen')
        if '2' in mt: a.e(f'buffer_load_dword v245, v6, {srd(S_W2)}, s57 offen')
    a.e('s_cmp_lg_u32 s58, 0'); a.e('s_cbranch_scc1 L_m_nos0'); a.cond_begin()
    a.e(f'''s_waitcnt vmcnt(0)
    v_mov_b32 v5, 1
    v_mov_b32 v6, 32
    s_mov_b64 exec, 1
    buffer_store_dword v5, v6, {srd(S_DBG)}, 0 offen sc1
    s_mov_b64 exec, -1''')
    a.cond_end(); a.e('L_m_nos0:')
    stamp(a,cfg,0)
    a.e('s_barrier')
    stamp(a,cfg,1)
    V_AF=112; V_GX=144; V_GW=184; V_D1C=152; V_D1S=168
    for pi in range(4):
        for ks in range(2):
            for hh in range(2):
                a.e(f'ds_read_b64_tr_b16 {vr(V_AF+8*pi+4*ks+2*hh,2)}, v{V_XA} offset:{pi*2*XA_PITCH+ks*512+hh*256}')
        if pi==1: lg_01=a.lgtok()
    lg_af=a.lgtok()
    a.e(f'ds_read_b128 {vr(V_GX,4)}, v{V_XA+1}')
    a.e(f'ds_read_b128 {vr(V_GX+4,4)}, v{V_XA+1} offset:{XA_PITCH}')
    a.e(f'ds_read_b128 {vr(V_GW,4)}, v{V_XA+2}')
    lg_gx=a.lgtok()
    for pi in range(4):
        if pi==0: a.wait_lg(lg_01)
        if pi==2: a.wait_lg(lg_af)
        for ks in range(2):
            A=vr(V_AF+8*pi+4*ks,4); c=vr(V_D1C+4*pi,4); s=vr(V_D1S+4*pi,4)
            a.e(f'v_mfma_f32_16x16x32_bf16 {c}, {A}, {vr(V_B1C+4*ks,4)}, {c if ks else 0}')
            a.e(f'v_mfma_f32_16x16x32_bf16 {s}, {A}, {vr(V_B1S+4*ks,4)}, {s if ks else 0}')
    a.wait_lg(lg_gx)
    V_Z=T0+2; V_GOUT=T0+4
    for d in range(4):
        for rr in range(2):
            a.e(f'v_dot2_f32_bf16 v{V_Z+rr}, v{V_GX+4*rr+d}, v{V_GW+d}, {("v%d"%(V_Z+rr)) if d else 0}')
    TT=TA; V_B2=V_AF
    red=[('row_shr:1 row_mask:0xf bank_mask:0xf bound_ctrl:1'),('row_shr:2 row_mask:0xf bank_mask:0xf bound_ctrl:1'),
         ('row_shr:4 row_mask:0xf bank_mask:0xf bound_ctrl:1'),('row_shr:8 row_mask:0xf bank_mask:0xf bound_ctrl:1'),
         ('row_bcast:15 row_mask:0xa bank_mask:0xf'),('row_bcast:31 row_mask:0xc bank_mask:0xf')]
    ri=0
    for pi in range(4):
        cmul_pack(a,V_D1C+4*pi,V_D1S+4*pi,V_TC,V_TS,V_B2+4*pi,TT)
        for _ in range(2 if pi<2 else 1):
            for rr in range(2): a.e(f'v_add_f32_dpp v{V_Z+rr}, v{V_Z+rr}, v{V_Z+rr} {red[ri]}')
            ri+=1
    V_D2=V_D1C; V_D2N=V_D1S
    for pi in range(4):
        a.e(f'v_mfma_f32_16x16x32_bf16 {vr(V_D2+4*pi,4)}, {vr(V_A2,4)}, {vr(V_B2+4*pi,4)}, 0')
        a.e(f'v_mfma_f32_16x16x32_bf16 {vr(V_D2N+4*pi,4)}, {vr(V_A2N,4)}, {vr(V_B2+4*pi,4)}, 0')
    for rr in range(2): a.e(f'v_mul_f32 v{V_Z+rr}, {fl(-LOG2E)}, v{V_Z+rr}')
    for rr in range(2): a.e(f'v_exp_f32 v{V_Z+rr}, v{V_Z+rr}')
    for rr in range(2): a.e(f'v_add_f32 v{V_Z+rr}, 1.0, v{V_Z+rr}')
    for rr in range(2): a.e(f'v_rcp_f32 v{V_GOUT+rr}, v{V_Z+rr}')
    a.e(f'''s_cmp_eq_u32 {wv}, 0
    s_cselect_b32 s74, 1, 0
    s_mov_b32 s75, 0''')
    V_TO=8
    for pi in range(4):
        for rho in range(2):
            re=V_D2+4*pi+2*rho; im=re+1
            a.e(f'v_cndmask_b32 v{im}, v{im}, v{V_D2N+4*pi+2*rho+1}, s[74:75]')
            a.e(f'v_cvt_pk_bf16_f32 v{V_TO+2*pi+rho}, v{re}, v{im}')
    a.e(f'''v_lshrrev_b32 v18, 5, v0
    v_lshlrev_b32 v18, 11, v18
    v_and_b32 v19, 31, v0
    v_lshl_add_u32 v18, v19, 4, v18
    s_lshl_b32 s93, {wv}, 9
    v_add_u32 v18, s93, v18
    s_lshl_b32 s90, s2, 13
    s_add_u32 s90, s90, {WS_T}
    v_mov_b32 v16, v{V_GOUT}
    v_mov_b32 v17, v{V_GOUT+1}
    v_mov_b32 v19, 0
    s_mov_b32 s91, s85''')
    def row_stores():
        if cfg.x.get('x_nors'): return
        a.e(f'''s_add_u32 s93, s90, 4096
        buffer_store_dwordx4 v[8:11], v18, {srd(S_WS)}, s90 offen {cfg.f("stT")}
        buffer_store_dwordx4 v[12:15], v18, {srd(S_WS)}, s93 offen {cfg.f("stT")}
        s_mov_b32 exec_lo, 0
        s_mov_b32 exec_hi, 0x80000000
        buffer_store_dwordx2 v[16:17], v19, {srd(S_WS)}, s91 offen {cfg.f("stG")}
        s_mov_b64 exec, -1''')
    if cfg.x.get('rs_at',9)<0: row_stores()
    stamp(a,cfg,17)
    V_XF=80; V_XR=96; V_VA=102; V_BIAS=108; V_ACC=136; V_WF=192; V_BRAW=220; T0=234
    a.e(f'''s_lshl_b32 s76, {wv}, 12
    v_lshlrev_b32 v{T0}, 7, v1
    v_add_u32 v{T0}, s76, v{T0}
    v_lshrrev_b32 v{T0+1}, 1, v1
    v_xor_b32 v{T0+1}, v{T0+1}, v2
    v_lshl_add_u32 v{V_XR}, v{T0+1}, 4, v{T0}
    v_xor_b32 v{T0+1}, 4, v{T0+1}
    v_lshl_add_u32 v{V_XR+1}, v{T0+1}, 4, v{T0}
    v_mul_u32_u24 v{V_VA}, 1920, v2
    v_lshrrev_b32 v{T0}, 2, v1
    v_mul_u32_u24 v{T0}, 224, v{T0}
    v_and_b32 v{T0+1}, 3, v0
    v_lshlrev_b32 v{T0+1}, 3, v{T0+1}
    v_add3_u32 v{V_VA}, v{V_VA}, v{T0}, v{T0+1}
    v_add_u32 v{V_VA}, 16384, v{V_VA}
    s_cmp_eq_u32 s48, 0
    s_cselect_b32 s76, 192, 0
    v_add_u32 v{V_VA+1}, s76, v{V_VA}
    s_lshl_b32 s76, s48, 5
    v_add_u32 v{V_VA}, s76, v{V_VA}''')
    for st_ in (1,2):
        for j in range(2):
            a.e(f'v_add_u32 v{V_XR+2*st_+j}, {2*st_*SLOT}, v{V_XR+j}')
            a.e(f'v_add_u32 v{V_VA+2*st_+j}, {2*st_*SLOT}, v{V_VA+j}')
    a.e(f'''v_lshlrev_b32 v{T0}, 3, v2
    s_lshl_b32 s76, s48, 5
    s_add_u32 s77, s76, {B1_LDS}
    v_add_u32 v{T0+1}, s77, v{T0}
    s_cmp_eq_u32 s48, 0
    s_cselect_b32 s77, 192, 0
    s_add_u32 s77, s77, {B1_LDS}
    v_add_u32 v{T0}, s77, v{T0}''')
    if cfg.x.get('prio'): a.e(f's_setprio {cfg.x["prio"]}')
    a.e('s_barrier')
    stamp(a,cfg,3)
    a.e(f'''s_mul_i32 s93, {wv}, {2*XA_PITCH}
    s_add_u32 s93, s93, {XA_BASE}
    v_lshl_add_u32 v20, v0, 5, s93
    v_add_u32 v21, s93, v{V_L16}
    ds_write_b128 v20, v[8:11]
    ds_write_b128 v20, v[12:15] offset:16
    s_waitcnt lgkmcnt(0)
    ds_read_b128 v[8:11], v21
    ds_read_b128 v[12:15], v21 offset:1024''')
    def slot_set(c):
        j=c%5; return (j//2, (j%2)*SLOT)
    def w_read1(s,t,hh):
        c,kk=s//2,s%2; st_,off=slot_set(c)
        va=V_VA+2*st_+(1 if t==6 else 0)
        o=off+kk*7680+(32*t if t<6 else 0)
        a.e(f'ds_read_b64_tr_b16 {vr(V_WF+4*t+2*hh,2)}, v{va} offset:{o+960*hh}')
        return a.lgtok()
    def x_read1(s,nb):
        c,kk=s//2,s%2; st_,off=slot_set(c)
        a.e(f'ds_read_b128 {vr(V_XF+8*(s%2)+4*nb,4)}, v{V_XR+2*st_+kk} offset:{off+2048*nb}')
        return a.lgtok()
    for t in range(6): a.e(f'ds_read_b64 {vr(V_BRAW+2*t,2)}, v{T0+1} offset:{32*t}')
    a.e(f'ds_read_b64 {vr(V_BRAW+12,2)}, v{T0}')
    lg_b=a.lgtok()
    tw={}; tx={}
    for nb in range(2): tx[(0,nb)]=x_read1(0,nb)
    for t in range(3):
        for hh in range(2): tw[(0,t,hh)]=w_read1(0,t,hh)
    a.wait_lg(lg_b)
    for t in range(7):
        for d in range(2):
            raw=V_BRAW+2*t+d
            a.e(f'v_lshlrev_b32 v{V_BIAS+4*t+2*d}, 16, v{raw}')
            a.e(f'v_and_b32 v{V_BIAS+4*t+2*d+1}, 0xffff0000, v{raw}')
    for t in range(3,7):
        for hh in range(2): tw[(0,t,hh)]=w_read1(0,t,hh)
    for s in range(16):
        for t in range(7):
            need=max(tw[(s,t,1)],tx[(s,1)])
            n=a.lg-need
            if t%2==0 or t==1 or s==0 or True: a.e(f's_waitcnt lgkmcnt({min(n,15)})')
            for nb in range(2):
                acc=vr(V_ACC+28*nb+4*t,4)
                cc=acc if s>0 else vr(V_BIAS+4*t,4)
                a.e(f'v_mfma_f32_16x16x32_bf16 {acc}, {vr(V_WF+4*t,4)}, {vr(V_XF+8*(s%2)+4*nb,4)}, {cc}')
                if nb==0 and t==1 and s%2==1 and s<15:
                    if cfg.fine==2: stamp(a,cfg,32+2*(s//2))
                    if s==(7 if cfg.x.get('s1two',0) else 13): a.e('s_waitcnt vmcnt(0)')
                    a.e('s_barrier')
                    if cfg.fine==2: stamp(a,cfg,33+2*(s//2))
                ps,pt=(s+1,t-1) if t>=1 else (s,6)
                if (t>=1 and s<15) or (t==0 and 1<=s<=15 and (s,6,nb) not in tw):
                    tw[(ps,pt,nb)]=w_read1(ps,pt,nb)
                if t==2 and s<15: tx[(s+1,nb)]=x_read1(s+1,nb)
                if t==4 and nb==1 and s==cfg.x.get('rs_at',9): row_stores()
    a.e('s_barrier')
    stamp(a,cfg,4)
    V_E=V_WF; V_O=V_BIAS
    a.e(f's_mov_b32 s84, {fl(LOG2E)}'); a.e(f's_mov_b32 s85, {fl(LOG2E)}'); a.e(f's_mov_b32 s86, {fl(30.0)}')
    a.e(f'''s_mul_i32 s87, s7, 7
    s_add_u32 s87, s87, s48
    s_lshr_b32 s87, s87, 1
    s_lshl_b32 s87, s87, 12
    s_mul_i32 s88, s6, {2*RT_STRIDE}
    s_lshl_b32 s89, {wv}, 10
    s_add_u32 s88, s88, s89
    s_add_u32 s88, s88, {WS_ACT}
    s_add_u32 s88, s88, s87
    s_mov_b32 s89, {3*4096}
    s_cmp_eq_u32 s48, 0
    s_cselect_b32 s89, s89, {(-4096+512)&0xffffffff}
    s_add_u32 s89, s89, s88
    v_lshlrev_b32 v4, 3, v0''')
    G=4
    for nb in range(2):
        pairs=[(V_ACC+28*nb+4*t+2*d, V_O+14*nb+2*t+d) for t in range(7) for d in range(2)]
        for g0 in range(0,len(pairs),G):
            grp=pairs[g0:g0+G]
            Tq=lambda i: V_E+4*i
            for i,(h,o) in enumerate(grp): a.e(f'v_pk_mul_f32 {vr(Tq(i),2)}, {vr(h,2)}, s[84:85]')
            for i,(h,o) in enumerate(grp):
                a.e(f'v_min_f32 v{Tq(i)}, s86, v{Tq(i)}'); a.e(f'v_min_f32 v{Tq(i)+1}, s86, v{Tq(i)+1}')
            for i,(h,o) in enumerate(grp):
                a.e(f'v_exp_f32 v{Tq(i)}, v{Tq(i)}'); a.e(f'v_exp_f32 v{Tq(i)+1}, v{Tq(i)+1}')
            for i,(h,o) in enumerate(grp): a.e(f'v_pk_add_f32 {vr(Tq(i)+2,2)}, {vr(Tq(i),2)}, 2.0 op_sel_hi:[1,0]')
            for i,(h,o) in enumerate(grp): a.e(f'v_pk_mul_f32 {vr(Tq(i),2)}, {vr(Tq(i),2)}, {vr(Tq(i)+2,2)}')
            for i,(h,o) in enumerate(grp): a.e(f'v_pk_add_f32 {vr(Tq(i)+2,2)}, {vr(Tq(i),2)}, 2.0 op_sel_hi:[1,0]')
            for i,(h,o) in enumerate(grp):
                a.e(f'v_rcp_f32 v{Tq(i)+2}, v{Tq(i)+2}'); a.e(f'v_rcp_f32 v{Tq(i)+3}, v{Tq(i)+3}')
            for i,(h,o) in enumerate(grp): a.e(f'v_pk_mul_f32 {vr(Tq(i),2)}, {vr(Tq(i),2)}, {vr(Tq(i)+2,2)}')
            for i,(h,o) in enumerate(grp): a.e(f'v_pk_mul_f32 {vr(Tq(i),2)}, {vr(Tq(i),2)}, {vr(h,2)}')
            for i,(h,o) in enumerate(grp): a.e(f'v_cvt_pk_bf16_f32 v{o}, v{Tq(i)}, v{Tq(i)+1}')
            done=min(len(pairs),g0+G)
            if cfg.x.get('actil'):
                for pp in range(3):
                    if g0<4*(pp+1)<=done:
                        a.e(f'buffer_store_dwordx4 {vr(V_O+14*nb+4*pp,4)}, v{V_L16}, {srd(S_WS)}, s88 offen {cfg.f("stA")}')
                        a.e('s_add_u32 s88, s88, 4096')
                if done==14:
                    a.e(f'buffer_store_dwordx2 {vr(V_O+14*nb+12,2)}, v4, {srd(S_WS)}, s89 offen {cfg.f("stA")}')
        if nb==0 and cfg.x.get('actil'):
            a.e(f's_add_u32 s88, s88, {RT_STRIDE-3*4096}')
            a.e(f's_add_u32 s89, s89, {RT_STRIDE}')
    if not cfg.x.get('actil'):
        for nb in range(2):
            for pp in range(3):
                a.e(f'buffer_store_dwordx4 {vr(V_O+14*nb+4*pp,4)}, v{V_L16}, {srd(S_WS)}, s88 offen {cfg.f("stA")}')
                a.e('s_add_u32 s88, s88, 4096')
            a.e(f'buffer_store_dwordx2 {vr(V_O+14*nb+12,2)}, v4, {srd(S_WS)}, s89 offen {cfg.f("stA")}')
            if nb==0:
                a.e(f's_add_u32 s88, s88, {RT_STRIDE-3*4096}')
                a.e(f's_add_u32 s89, s89, {RT_STRIDE}')
    stamp(a,cfg,5)
    parts=p2_table_parts(a,cfg); npre=cfg.x.get('tabpre',4)
    for part in parts[:npre]: part()
    stamp(a,cfg,24)
    a.e('s_mov_b32 s93, 32'); poll_w0(a,S_DBG,'s93',1,0,1)
    a.e('s_waitcnt vmcnt(0)')
    a.e('s_barrier')
    stamp(a,cfg,7)
    p2_small_loads(a,cfg)
    tok_w=a.vmtok()
    for part in parts[npre:]: part()
    stamp(a,cfg,25)
    p2_compute(a,cfg,tok_w)
    tok_y=a.vmtok()
    stamp(a,cfg,8)
    m_g2_ids(a,cfg)
    T=5
    w2_dma_addr(a,V_W2D,T)
    a.e(f"""v_lshrrev_b32 v{T}, 2, v1
    v_lshl_add_u32 v{T+1}, v2, 2, v{T}
    v_lshlrev_b32 v{V_W2A}, 7, v{T+1}
    v_lshrrev_b32 v{T+1}, 1, v{T+1}
    v_and_b32 v{T+1}, 3, v{T+1}
    v_and_b32 v{T}, 3, v0
    v_lshl_add_u32 v{V_W2A}, v{T}, 3, v{V_W2A}
    v_add_u32 v{V_W2A}, s71, v{V_W2A}""")
    for c in (3,2,1,0):
        a.e(f'v_xor_b32 v{T}, {c}, v{T+1}')
        a.e(f'v_lshl_add_u32 v{V_W2A+c}, v{T}, 5, v{V_W2A}')
    stamp(a,cfg,9)
    if not cfg.x.get('ydefer'): a.e('s_waitcnt vmcnt(0)')
    a.e('s_barrier')
    stamp(a,cfg,10)
    m_gemm2(a,cfg,tok_y)
    stamp(a,cfg,13)
    stamps_flush(a,cfg)
    a.e(f's_branch {end}')
    p2_special(a,cfg)

def m_gemm2(a,cfg,tok_y):
    V_ACC=80; V_AF=144; D=8; V_G=72
    RB=lambda t: (8+16*(t%D)) if (t%D)<4 else (160+16*(t%D-4))
    toks={}; tokw={}
    def need(d,k):
        while k not in d: a.bg_pop()
    def a_read1(t,c,hh):
        a.e(f'ds_read_b64_tr_b16 {vr(V_AF+4*c+2*hh,2)}, v{V_W2A+c} offset:{(t%8)*4096+2048*hh}')
        return a.lgtok()
    def push_loads(t):
        b=RB(t)
        if t>=14:
            psi=t-14
            for u in range(4):
                a.bg_push([f's_add_u32 s79, s78, {(16*psi+u)*8192}',
                           f'buffer_load_dwordx4 {vr(b+4*u,4)}, v6, {srd(S_WS)}, s79 offen {cfg.f("ldY")}'],
                          (lambda t=t: toks.__setitem__(t,a.vmtok())) if u==3 else None)
            return
        sc=cfg.f('ldA')
        for q in range(4):
            if t in(3,10):
                l=[f'buffer_load_dwordx2 {vr(b+4*q,2)}, v4, {srd(S_WS)}, s69 offen offset:{1024*q} {sc}',
                   f'buffer_load_dwordx2 {vr(b+4*q+2,2)}, v4, {srd(S_WS)}, s69 offen offset:{1024*q+512} {sc}']
            else:
                l=[f'buffer_load_dwordx4 {vr(b+4*q,4)}, v{V_L16}, {srd(S_WS)}, s69 offen offset:{1024*q} {sc}']
            if q==3: l.append('s_add_u32 s69, s69, 4096')
            a.bg_push(l,(lambda t=t: toks.__setitem__(t,a.vmtok())) if q==3 else None)
    def push_w2(t):
        for v in range(4):
            a.bg_push(w2_group(t,v,V_W2D),(lambda t=t: tokw.__setitem__(t,a.vmtok())) if v==3 else None)
    a.e('v_lshlrev_b32 v4, 3, v0')
    npre=cfg.x.get('npre',4)
    for t in range(npre): push_loads(t)
    a.bg_flush()
    if cfg.x.get('ydefer'):
        for nb in range(2):
            a.e(f'buffer_store_dwordx4 {vr(P2["V_B"]+4*nb,4)}, v{V_L16}, {srd(S_WS)}, s62 offen offset:{1024*nb} {cfg.f("stY")}')
        tok_y=a.vmtok()
    nxt=npre
    a.e(f"""v_lshlrev_b32 v5, 4, v1
    v_lshlrev_b32 v6, 15, v2
    v_add_u32 v6, v6, v5
    v_add_u32 v7, s71, v{V_L16}
    s_lshl_b32 s78, {wv}, 19
    s_add_u32 s78, s78, s74
    s_add_u32 s78, s78, {WS_Y}""")
    V_AF2=224; ACC2=[40,56,160,176]; tg={}
    def g_read(psi,c):
        AFp=(V_AF2 if psi%2==0 else V_AF)
        a.e(f'ds_read_b128 {vr(AFp+4*c,4)}, v7 offset:{GSLOT[psi]*4096+c*1024}'); tg[(psi,c)]=a.lgtok()
    def swaps(t):
        b=RB(t)
        for (i,j) in[(0,1),(0,2),(0,3),(1,2),(1,3),(2,3)]:
            a.e(f'v_swap_b32 v{b+4*i+j}, v{b+4*j+i}')
    ta={}
    for c in range(4):
        for hh in range(2): ta[(0,c,hh)]=a_read1(0,c,hh)
    a.bg_set(cfg.x.get('g2r',2),mfma_weight=2)
    TS3=cfg.x.get('ts3',10)
    for t in range(18):
        if cfg.fine==1: stamp(a,cfg,32+t)
        if t<=14:
            need(toks,t); a.wait_vm(toks[t])
        if t+1 in range(8,14):
            need(tokw,t+1); a.wait_vm(tokw[t+1])
        k_=0
        while nxt<14 and nxt-D<t and k_<2 and t<14:
            if nxt-D==t-0 and False: break
            if nxt-D>=t: break
            push_loads(nxt); nxt+=1; k_+=1
        if 1<=t and t-1+8<14: push_w2(t-1+8)
        if t==TS3+1: push_loads(14); push_loads(15)
        if t==TS3+2: push_loads(16); push_loads(17)
        b=RB(t)
        if t<14:
            for c in range(4):
                n=a.lg-ta[(t,c,1)]
                a.e(f's_waitcnt lgkmcnt({min(n,15)})')
                A=vr(V_AF+4*c,4)
                for q in range(4):
                    d=vr(V_ACC+16*q+4*c,4)
                    r=a.bg_rate
                    if q<2: a.bg_rate=0
                    a.e(f'v_mfma_f32_16x16x32_bf16 {d}, {A}, {vr(b+4*q,4)}, {d if t else 0}')
                    if q<2:
                        if c>=1 and t<13: ta[(t+1,c-1,q)]=a_read1(t+1,c-1,q)
                        if c==0 and t>=1: ta[(t,3,q)]=a_read1(t,3,q)
                    a.bg_rate=r
        else:
            psi=t-14; AFp=(V_AF2 if psi%2==0 else V_AF)
            if psi==0: swaps(14)
            for c in range(4):
                a.e(f's_waitcnt lgkmcnt({min(a.lg-tg[(psi,c)],15)})')
                for q in range(4):
                    d=vr(ACC2[q]+4*c,4)
                    a.e(f'v_mfma_f32_16x16x32_bf16 {d}, {vr(AFp+4*c,4)}, {vr(b+4*q,4)}, {d if psi else 0}')
                    if psi<3 and c==0 and q==0:
                        for c2 in range(4): g_read(psi+1,c2)
                    if psi<3 and c==1 and q==0:
                        need(toks,t+1); a.wait_vm(toks[t+1]); swaps(t+1)
        if cfg.x.get('ydefer') and t==cfg.x['ydefer']:
            a.wait_vm(tok_y); a.e('s_barrier')
        if t==TS3:
            a.bg_flush()
            a.e(f's_mov_b32 s93, {WS_CNT+16*128}')
            poll_w0(a,S_WS,'s93',NS3,128,256//NS3)
            a.e('s_barrier')
            a.e(f's_add_u32 s75, s74, {WS_G}')
            a.e(f'buffer_load_dwordx4 {vr(V_G,4)}, v5, {srd(S_WS)}, s75 offen {cfg.f("ldW")}')
            tok_g=a.vmtok()
        if t==13:
            a.e('s_barrier')
            for c in range(4): g_read(0,c)
            stamp(a,cfg,11)
    a.bg_flush(); a.bg_set(0)
    a.need_vm(tok_g)
    for q in range(4): a.e(f'v_sub_f32 v{V_G+q}, 1.0, v{V_G+q}')
    for q in range(4):
        for h in range(8):
            a.e(f'v_pk_fma_f32 {vr(V_ACC+16*q+2*h,2)}, {vr(V_ACC+16*q+2*h,2)}, {vr(V_G+(q&~1),2)}, {vr(ACC2[q]+2*h,2)} op_sel:[0,{q&1},0] op_sel_hi:[1,{q&1},1]')
    stamp(a,cfg,12)
    a.e(f'v_add_u32 v7, s71, v{V_L16}')
    for w in range(4):
        a.e(f's_cmp_lg_u32 {wv}, {w}')
        a.e(f's_cbranch_scc1 L_k3_w{w}')
        a.cond_begin()
        slot=0
        for q in range(4):
            if q==w: continue
            for c in range(4):
                a.e(f'ds_write_b128 v7, {vr(V_ACC+16*q+4*c,4)} offset:{slot*4096+c*1024}')
            slot+=1
        if w!=0:
            for h in range(8): a.e(f'v_pk_mov_b32 {vr(V_ACC+2*h,2)}, {vr(V_ACC+16*w+2*h,2)}, {vr(V_ACC+16*w+2*h,2)} op_sel:[0,1]')
        a.cond_end()
        a.e(f'L_k3_w{w}:')
    a.e('s_waitcnt lgkmcnt(0)'); a.e('s_barrier')
    V_RD=160
    for k in range(1,4):
        a.e(f"""s_add_u32 s76, {wv}, {k}
        s_and_b32 s76, s76, 3
        s_lshl_b32 s77, s76, 15
        s_cmp_lt_u32 {wv}, s76
        s_cselect_b32 s79, 0, 1
        s_sub_u32 s79, {wv}, s79
        s_lshl_b32 s79, s79, 12
        s_add_u32 s77, s77, s79
        v_add_u32 v7, s77, v{V_L16}""")
        for c in range(4): a.e(f'ds_read_b128 {vr(V_RD+16*(k-1)+4*c,4)}, v7 offset:{c*1024}')
    a.e(f"""v_lshlrev_b32 v5, 10, v1
    v_lshl_add_u32 v5, v2, 3, v5
    s_lshl_b32 s76, s72, 17
    s_lshl_b32 s77, {wv}, 15
    s_add_u32 s76, s76, s77
    s_lshl_b32 s77, s73, 14
    s_add_u32 s76, s76, s77
    s_lshl_b32 s77, s68, 7
    s_add_u32 s76, s76, s77""")
    for k in range(3):
        a.e(f's_waitcnt lgkmcnt({8-4*k})')
        for h in range(8): a.e(f'v_pk_add_f32 {vr(V_ACC+2*h,2)}, {vr(V_ACC+2*h,2)}, {vr(V_RD+16*k+2*h,2)}')
    V_O=8
    for c in range(4):
        a.e(f'v_cvt_pk_bf16_f32 v{V_O+2*c}, v{V_ACC+4*c}, v{V_ACC+4*c+1}')
        a.e(f'v_cvt_pk_bf16_f32 v{V_O+2*c+1}, v{V_ACC+4*c+2}, v{V_ACC+4*c+3}')
        a.e(f'buffer_store_dwordx2 {vr(V_O+2*c,2)}, v5, {srd(S_OUT)}, s76 offen offset:{32*c} {str(cfg.x.get("outf","")).replace("_"," ")}')

P2=dict(V_U=8,V_W=40,V_GT=48,V_Q=56,T0=64,V_F64R=80,V_F64I=96,V_F32R=112,V_F32I=128,V_T1C=144,V_T1S=152,V_T3C=160,V_T3S=168,V_DR=176,V_DI=184,V_B=192)
V_FW2D=246
def f_stream(a,cfg,end):
    a.e('L_F:')
    a.e('s_mov_b32 s90, 1')
    if cfg.x.get('fprio'): a.e(f's_setprio {cfg.x["fprio"]}')
    a.e(f'''s_lshr_b32 s49, s2, 5
    s_and_b32 s50, s2, 31
    s_lshl_b32 s51, s6, 17
    s_lshl_b32 s56, {wv}, 13
    s_add_u32 s51, s51, s56
    s_mul_i32 s52, s7, 224
    s_mul_i32 s56, {wv}, 14336
    s_add_u32 s52, s52, s56
    s_lshl_b32 s53, {wv}, 10
    s_mul_i32 s54, {wv}, 960
    s_add_u32 s54, s54, 16384''')
    T=6; V_XD=4; V_WD=5
    a.e(f'''v_lshrrev_b32 v{T}, 3, v0
    v_lshlrev_b32 v{V_XD}, 10, v{T}
    v_lshrrev_b32 v{T}, 1, v{T}
    s_and_b32 s56, {wv}, 1
    s_lshl_b32 s56, s56, 2
    v_add_u32 v{T}, s56, v{T}
    v_and_b32 v{T+1}, 7, v0
    v_xor_b32 v{T}, v{T}, v{T+1}
    v_lshl_add_u32 v{V_XD}, v{T}, 4, v{V_XD}
    v_mul_u32_u24 v{T}, 4682, v0
    v_lshrrev_b32 v{T}, 16, v{T}
    v_mul_u32_u24 v{V_WD}, 3584, v{T}
    v_mul_u32_u24 v{T}, 14, v{T}
    v_sub_u32 v{T}, v0, v{T}
    v_lshl_add_u32 v{V_WD}, v{T}, 4, v{V_WD}
    v_mov_b32 v{V_LC}, {LC_BASE}''')
    a.e(f'''s_lshl_b32 s56, s49, 18
    s_lshl_b32 s57, s50, 10
    s_add_u32 s56, s56, s57
    s_lshl_b32 s57, {wv}, 16
    s_add_u32 s56, s56, s57
    s_add_u32 s58, s56, 32768
    s_mul_i32 s57, {wv}, {2*XA_PITCH}
    s_add_u32 s57, s57, {XA_BASE}''')
    a.e('s_waitcnt lgkmcnt(0)')
    stamp(a,cfg,26)
    a.e(f's_cmp_lg_u32 {wv}, 0'); a.e('s_cbranch_scc1 L_a_r0'); a.cond_begin()
    a.e(f's_mov_b32 m0, {GW_LDS}'); a.e('s_nop 0')
    a.e(f'buffer_load_dwordx4 v{V_L16}, {srd(S_GW)}, 0 offen lds')
    a.cond_end(); a.e('L_a_r0:')
    a.e(f's_cmp_lg_u32 {wv}, 1'); a.e('s_cbranch_scc1 L_a_r1'); a.cond_begin()
    a.e(f's_mul_i32 s64, s7, 224'); a.e(f's_mov_b32 m0, {B1_LDS}'); a.e('s_mov_b64 exec, 0x3fff')
    a.e(f'buffer_load_dwordx4 v{V_L16}, {srd(S_B1)}, s64 offen lds')
    a.e('s_mov_b64 exec, -1')
    a.cond_end(); a.e('L_a_r1:')
    tok_c={}
    def chunk_groups(c):
        gs=[]
        for u in range(4):
            gs.append(([f's_add_u32 m0, s53, {SB(c)+u*4096}', f's_add_u32 s55, s51, {u*32768+c*128}',
                        f'buffer_load_dwordx4 v{V_XD}, {srd(S_X)}, s55 offen lds'],None))
        for u in range(4):
            cb=(lambda c=c: tok_c.__setitem__(c,a.vmtok())) if u==3 else None
            gs.append(([f's_add_u32 m0, s54, {SB(c)+u*3840}', f's_add_u32 s55, s52, {u*57344+c*229376}',
                        's_mov_b32 exec_hi, 0x00ffffff',
                        f'buffer_load_dwordx4 v{V_WD}, {srd(S_W1)}, s55 offen lds',
                        's_mov_b32 exec_hi, -1'],cb))
        return gs
    def push_chunk(c):
        for g_ in chunk_groups(c): a.bg_push(*g_)
    def wait_role(tok,e3,e2):
        n=a.vm-tok; lab=f'L_wr{len(a.items)}'
        a.e(f's_cmp_eq_u32 {wv}, 3'); a.e(f's_cbranch_scc1 {lab}_3')
        a.e('s_cmp_eq_u32 s66, 0'); a.e(f's_cbranch_scc1 {lab}_2')
        a.e(f's_waitcnt vmcnt({n})'); a.e(f's_branch {lab}_e')
        a.e(f'{lab}_3:'); a.e(f's_waitcnt vmcnt({min(n+e3,62)})'); a.e(f's_branch {lab}_e')
        a.e(f'{lab}_2:'); a.e(f's_waitcnt vmcnt({min(n+e2,62)})')
        a.e(f'{lab}_e:')
    def chunk_now(c):
        if cfg.fine==3: stamp(a,cfg,48+2*c%16 if False else 40+c)
        push_chunk(c); a.bg_flush()
        if cfg.fine==3: stamp(a,cfg,50+c)
    a.e(f'''s_mov_b32 m0, s57
    s_add_u32 s57, s57, {XA_PITCH}
    buffer_load_dwordx4 v{V_L16}, {srd(S_X)}, s56 offen lds
    s_mov_b32 m0, s57
    s_nop 0
    buffer_load_dwordx4 v{V_L16}, {srd(S_X)}, s58 offen lds''')
    tok_xa=a.vmtok()
    chunk_now(0)
    if cfg.x.get('c1pre',1): chunk_now(1)
    if cfg.x.get('fprio'): a.e('s_setprio 0')
    stamp(a,cfg,0)
    a.wait_vm(tok_xa); a.e('s_barrier')
    stamp(a,cfg,1)
    if not cfg.x.get('c1pre',1): chunk_now(1)
    chunk_now(2)
    T0=92; V_B1S=68
    a.wait_vm(tok_c[0]); a.e('s_barrier')
    if cfg.fine==3: stamp(a,cfg,27)
    chunk_now(3)
    a.wait_vm(tok_c[1]); a.e('s_barrier')
    if cfg.fine==3: stamp(a,cfg,29)
    chunk_now(4)
    a.wait_vm(tok_c[2]); a.e('s_barrier')
    if cfg.fine==3: stamp(a,cfg,30)
    chunk_now(5)
    a.e('''s_lshr_b32 s59, s50, 3
    s_lshr_b32 s60, s50, 2
    s_and_b32 s60, s60, 1
    s_and_b32 s61, s50, 3
    s_lshl_b32 s62, s59, 4
    s_lshl_b32 s63, s60, 10
    s_add_u32 s62, s62, s63
    s_lshl_b32 s63, s61, 8
    s_add_u32 s62, s62, s63
    s_lshl_b32 s63, s59, 11
    s_lshl_b32 s64, s60, 10
    s_add_u32 s63, s63, s64
    s_lshl_b32 s64, s61, 8
    s_add_u32 s63, s63, s64''')
    V_WR=8; V_WI=24; V_WO=7
    a.e(f's_cmp_lg_u32 {wv}, {9 if cfg.x.get("x_norole") else 3}'); a.e('s_cbranch_scc1 L_a_r3'); a.cond_begin()
    a.e(f'''v_lshrrev_b32 v{V_WO}, 2, v0
    v_mul_u32_u24 v{V_WO}, 514, v{V_WO}
    v_and_b32 v{T}, 3, v0
    v_lshl_add_u32 v{V_WO}, v{T}, 4, v{V_WO}
    s_mul_i32 s64, s62, 514
    s_lshl_b32 s65, s49, 6
    s_add_u32 s64, s64, s65''')
    for r in range(4):
        a.e(f'buffer_load_dwordx4 {vr(V_WR+4*r,4)}, v{V_WO}, {srd(S_WR)}, s64 offen')
        a.e(f'buffer_load_dwordx4 {vr(V_WI+4*r,4)}, v{V_WO}, {srd(S_WI)}, s64 offen')
        if r<3: a.e(f's_add_u32 s64, s64, {64*514}')
    a.cond_end(); a.e('L_a_r3:')
    V_SP=40; V_J=48; V_JR=49
    a.e(f'''s_lshl_b32 s65, s49, 2
    s_xor_b32 s66, {wv}, 2
    s_or_b32 s66, s66, s65''')
    a.e('s_cmp_lg_u32 s66, 0'); a.e('s_cbranch_scc1 L_a_r2'); a.cond_begin()
    a.e(f'''v_lshlrev_b32 v{V_J}, 6, v2
    v_add_u32 v{V_J}, v{V_J}, v1
    v_add_u32 v{V_J}, s62, v{V_J}
    v_sub_u32 v{V_JR}, 2048, v{V_J}
    v_and_b32 v{V_JR}, 2047, v{V_JR}
    v_mul_u32_u24 v{V_J}, 514, v{V_J}
    v_mul_u32_u24 v{V_JR}, 514, v{V_JR}''')
    for n,(S,vv,off) in enumerate([(S_WR,V_J,0),(S_WR,V_J,512),(S_WR,V_JR,0),(S_WR,V_JR,512),(S_WI,V_J,0),(S_WI,V_J,512),(S_WI,V_JR,0),(S_WI,V_JR,512)]):
        a.e(f'buffer_load_ushort v{V_SP+n}, v{vv}, {srd(S)}, 0 offen offset:{off}')
    a.cond_end(); a.e('L_a_r2:')
    tok_role=a.vmtok()
    wait_role(tok_c[3],8,8); a.e('s_barrier')
    if cfg.fine==3: stamp(a,cfg,31)
    chunk_now(6)
    wait_role(tok_c[4],8,8); a.e('s_barrier')
    two=cfg.x.get('s1two',0)
    if two:
        a.e('s_and_b32 s92, s5, 3'); a.e('s_lshl_b32 s92, s92, 6')
        ssignal(a,S_DBG,'s92')
    if cfg.fine==3: stamp(a,cfg,32)
    chunk_now(7)
    a.e(f's_cmp_lg_u32 {wv}, {9 if cfg.x.get("x_norole") else 3}'); a.e('s_cbranch_scc1 L_a_w3')
    a.wait_vm(tok_role); a.cond_begin()
    V_WP=188
    a.e('s_mov_b32 s78, 0x05040100'); a.e('s_mov_b32 s79, 0x07060302')
    for kk in range(8):
        for r in range(4):
            a.e(f'v_perm_b32 v{V_WP+4*kk+r}, v{V_WI+4*r+(kk>>1)}, v{V_WR+4*r+(kk>>1)}, s{78+(kk&1)}')
    a.e(f'''v_and_b32 v{T0+4}, 3, v0
    v_lshlrev_b32 v{T0+5}, 16, v{T0+4}
    v_lshrrev_b32 v{T0+6}, 2, v0
    v_lshl_add_u32 v{T0+5}, v{T0+6}, 4, v{T0+5}
    s_lshl_b32 s76, s49, 2
    v_add_u32 v{T0+4}, s76, v{T0+4}
    v_cmp_eq_u32 vcc, 0, v{T0+4}
    v_mov_b32 v{T0+6}, {OOB}
    v_cndmask_b32 v{T0+6}, v{T0+5}, v{T0+6}, vcc
    s_lshl_b32 s76, s49, 18
    s_add_u32 s76, s76, s63
    s_add_u32 s76, s76, {WS_WT}''')
    for kk in range(8):
        a.e(f'buffer_store_dwordx4 {vr(V_WP+4*kk,4)}, v{T0+6 if kk==0 else T0+5}, {srd(S_WS)}, s76 offen {cfg.f("stW")}')
        if kk<7: a.e('s_add_u32 s76, s76, 8192')
    a.cond_end(); a.e('L_a_w3:')
    a.e('s_cmp_lg_u32 s66, 0'); a.e('s_cbranch_scc1 L_a_w2')
    a.wait_vm(tok_role); a.cond_begin()
    for n in range(8): a.e(f'v_lshlrev_b32 v{V_SP+n}, 16, v{V_SP+n}')
    s=V_SP; t=V_B1S
    a.e(f'''v_add_f32 v{t}, v{s}, v{s+2}
    v_add_f32 v{t+1}, v{s+1}, v{s+3}
    v_sub_f32 v{t+2}, v{s+4}, v{s+6}
    v_sub_f32 v{t+3}, v{s+5}, v{s+7}
    v_add_f32 v{t+4}, v{t}, v{t+1}
    v_add_f32 v{t+5}, v{t+2}, v{t+3}
    v_sub_f32 v{t+6}, v{t}, v{t+1}
    v_sub_f32 v{t+7}, v{t+2}, v{t+3}
    v_mul_f32 v{t+4}, {fl(0.25)}, v{t+4}
    v_mul_f32 v{t+5}, {fl(0.25)}, v{t+5}
    v_mul_f32 v{t+6}, {fl(0.25)}, v{t+6}
    v_mul_f32 v{t+7}, {fl(0.25)}, v{t+7}
    v_cvt_pk_bf16_f32 v{t}, v{t+4}, v{t+5}
    v_cvt_pk_bf16_f32 v{t+1}, v{t+6}, v{t+7}
    v_lshlrev_b32 v{t+2}, 4, v1
    v_lshl_add_u32 v{t+2}, v2, 2, v{t+2}
    s_add_u32 s77, s63, {WS_QT}
    s_add_u32 s76, s63, {WS_WT}
    buffer_store_dword v{t}, v{t+2}, {srd(S_WS)}, s76 offen {cfg.f("stW")}
    buffer_store_dword v{t+1}, v{t+2}, {srd(S_WS)}, s77 offen {cfg.f("stW")}''')
    a.cond_end(); a.e('L_a_w2:')
    a.wait_vm(tok_c[5]) if False else None
    a.e(f's_waitcnt vmcnt({cfg.x.get("b5n",18)})') if False else None
    wait_role(tok_c[5],16,10); a.e('s_barrier')
    if cfg.fine==3: stamp(a,cfg,33)
    m_g2_ids(a,cfg)
    w2_dma_addr(a,V_FW2D,244)
    wait_role(tok_c[6],8,2); a.e('s_barrier')
    if cfg.fine==3: stamp(a,cfg,34)
    if two:
        wait_role(tok_c[7],8,2); a.e('s_barrier')
    else:
        a.e('s_waitcnt vmcnt(0)'); a.e('s_barrier')
        a.e('s_and_b32 s92, s5, 3'); a.e('s_lshl_b32 s92, s92, 6')
        ssignal(a,S_DBG,'s92')
    if cfg.fine==3: stamp(a,cfg,35)
    a.e('s_barrier')
    if two:
        a.e(f's_cmp_eq_u32 {wv}, 3'); a.e('s_cbranch_scc1 L_f_s1b')
        a.e('s_cmp_lg_u32 s66, 0'); a.e('s_cbranch_scc1 L_f_nos1b')
        a.e('L_f_s1b:')
        a.cond_begin()
        a.e(f"""s_waitcnt vmcnt(0)
        s_and_b32 s92, s5, 3
        s_lshl_b32 s92, s92, 6
        s_add_u32 s92, s92, 4
        v_mov_b32 v{V_SIG}, 1
        v_mov_b32 v{V_SIG+1}, 0
        s_mov_b64 exec, 1
        buffer_atomic_add v{V_SIG}, v{V_SIG+1}, {srd(S_DBG)}, s92 offen sc1
        s_mov_b64 exec, -1""")
        a.cond_end(); a.e('L_f_nos1b:')
    stamp(a,cfg,4)
    def w2slots(lo,hi):
        for t in range(lo,hi):
            for v in range(4): a.bg_push(w2_group(t,v,V_FW2D))
        a.bg_flush()
    w2slots(0,cfg.x.get('w2pre',4))
    stamp(a,cfg,5)
    a.e(f's_cmp_lg_u32 {wv}, 0'); a.e('s_cbranch_scc1 L_f_s1'); a.cond_begin()
    if cfg.x.get('s1drain',1): a.e('s_waitcnt vmcnt(0)')
    a.e('s_mov_b32 s93, 0')
    spin_global(a,S_DBG,'s93',4,64,64)
    p2_t_loads(a,cfg)
    if two:
        a.e('s_mov_b32 s93, 4')
        spin_global(a,S_DBG,'s93',4,64,72)
    a.cond_end(); a.e('L_f_s1:')
    stamp(a,cfg,6)
    a.e('s_waitcnt vmcnt(0)'); a.e('s_barrier')
    a.e(f's_lshl_b32 s92, s6, 7'); a.e(f's_add_u32 s92, s92, {WS_CNT}')
    ssignal(a,S_WS,'s92')
    stamp(a,cfg,7)
    w2slots(cfg.x.get('w2pre',4),8)
    a.e('s_waitcnt vmcnt(0)'); a.e('s_barrier')
    a.e('s_lshl_b32 s56, s4, 5'); a.e('s_add_u32 s56, s56, s5')
    a.e('s_cmp_lg_u32 s56, 0'); a.e('s_cbranch_scc1 L_f_nospec'); a.cond_begin()
    a.e('s_barrier')
    a.cond_end(); a.e('L_f_nospec:')
    a.e(f's_lshl_b32 s93, s72, 7'); a.e(f's_add_u32 s93, s93, {WS_CNT}')
    poll_w0(a,S_WS,'s93',1,0,16)
    a.e('s_barrier')
    if cfg.x.get('ydefer'): a.e('s_barrier')
    a.e(f's_and_b32 s92, s2, {NS3-1}'); a.e('s_lshl_b32 s92, s92, 7'); a.e(f's_add_u32 s92, s92, {WS_CNT+16*128}')
    ssignal(a,S_WS,'s92')
    T0=80; TA=92
    a.e(f"""s_lshl_b32 s75, s68, 6
    v_add_u32 v{T0}, s75, v1
    v_cvt_f32_u32 v{T0}, v{T0}
    s_lshl_b32 s75, {wv}, 6
    v_lshlrev_b32 v{T0+1}, 2, v2
    v_add_u32 v{T0+1}, s75, v{T0+1}
    v_cvt_f32_u32 v{T0+1}, v{T0+1}""")
    for c in range(4):
        a.e(f'v_add_f32 v{T0+2+c}, {fl(16*c)}, v{T0}' if c else f'v_mov_b32 v{T0+2}, v{T0}')
        a.e(f'v_mul_f32 v{T0+2+c}, {fl(1/512)}, v{T0+2+c}')
        a.e(f'v_mul_f32 v{T0+6+c}, v{T0+1}, v{T0+2+c}')
    def pk(d): return lambda c,s: a.e(f'v_cvt_pk_bf16_f32 v{d}, v{c}, v{s}')
    angles(a,[(T0+2+c,T0+6+c,16*psi+u,(None,None,pk(V_GF+16*psi+4*c+u)),False) for (psi,c,u) in G_ITEMS],TA)
    a.e(f"""s_cmp_eq_u32 {wv}, 0
    s_cselect_b32 s76, 0xffff, 0
    s_mov_b32 s77, 0
    v_mov_b32 v{T0}, {hex(0xBF003F00)}
    v_and_b32 v{T0+1}, 1, v1
    v_lshlrev_b32 v{T0+1}, 31, v{T0+1}
    v_xor_b32 v{T0}, v{T0}, v{T0+1}""")
    for c in range(4): a.e(f'v_cndmask_b32 v{V_GF+4*c}, v{V_GF+4*c}, v{T0}, s[76:77]')
    a.e(f'v_add_u32 v7, s71, v{V_L16}')
    a.e('s_barrier')
    for psi in range(4):
        for c in range(4):
            a.e(f'ds_write_b128 v7, {vr(V_GF+16*psi+4*c,4)} offset:{GSLOT[psi]*4096+c*1024}')
    a.e('s_waitcnt lgkmcnt(0)'); a.e('s_barrier')
    stamps_flush(a,cfg)
    a.e(f's_branch {end}')

def p2_t_loads(a,cfg):
    T0=64
    a.e(f'''s_lshl_b32 s56, s4, 5
    s_add_u32 s56, s56, s5
    v_lshrrev_b32 v{T0}, 5, v0
    v_lshlrev_b32 v{T0}, 18, v{T0}
    v_bfe_u32 v{T0+1}, v0, 1, 4
    v_lshl_add_u32 v{T0}, v{T0+1}, 13, v{T0}
    v_and_b32 v{T0+1}, 1, v0
    v_lshl_add_u32 v{T0}, v{T0+1}, 4, v{T0}
    s_lshl_b32 s57, s56, 5
    s_add_u32 s57, s57, {WS_T}''')
    for ks in range(4):
        for mb in range(2):
            a.e(f's_mov_b32 m0, {TB_BASE+2048*ks+1024*mb}')
            a.e(f's_add_u32 s58, s57, {ks*524288+mb*131072}')
            a.e(f'buffer_load_dwordx4 v{T0}, {srd(S_WS)}, s58 offen {cfg.f("ldT")} lds')
    a.e(f's_lshl_b32 s57, s56, 13'); a.e(f's_add_u32 s57, s57, {WS_WT}')
    for j in range(8):
        a.e(f's_mov_b32 m0, {WB_BASE+1024*j}')
        a.e(f's_add_u32 s58, s57, {1024*j}')
        a.e(f'buffer_load_dwordx4 v{V_L16}, {srd(S_WS)}, s58 offen {cfg.f("ldW")} lds')

def p2_small_loads(a,cfg):
    V_W,V_GT,V_Q,T0=P2['V_W'],P2['V_GT'],P2['V_Q'],P2['T0']
    a.e(f'''s_lshl_b32 s56, s4, 5
    s_add_u32 s56, s56, s5
    s_lshl_b32 s60, s56, 13
    s_lshl_b32 s61, {wv}, 11
    s_add_u32 s60, s60, s61
    s_add_u32 s62, s60, {WS_WT}
    s_add_u32 s63, s61, {WS_G}
    s_add_u32 s64, s61, {WS_QT}''')
    for nb in range(2): a.e(f'buffer_load_dwordx4 {vr(V_GT+4*nb,4)}, v{V_L16}, {srd(S_WS)}, s63 offen offset:{1024*nb} {cfg.f("ldW")}')
    a.e(f'''s_cmp_eq_u32 s56, 0
    s_cselect_b32 s65, 0, {OOB}
    v_add_u32 v{T0+2}, s65, v{V_L16}''')
    for eh in range(2): a.e(f'buffer_load_dwordx4 {vr(V_Q+4*eh,4)}, v{T0+2}, {srd(S_WS)}, s64 offen offset:{1024*eh} {cfg.f("ldW")}')

def p2_table_parts(a,cfg):
    p=P2; T0=232; TA=200
    def pk(dr,di):
        def f(c,s):
            a.e(f'v_cvt_pk_bf16_f32 v{dr}, v{c}, v{s}')
            a.e(f'v_cvt_pk_bf16_f32 v{di}, -v{s}, v{c}')
        return f
    def part0():
        a.e(f'''s_lshl_b32 s83, {wv}, 4
        v_add_u32 v{T0}, s83, v1
        v_cvt_f32_u32 v{T0}, v{T0}
        v_lshlrev_b32 v{T0+2}, 2, v2
        v_cvt_f32_u32 v{T0+2}, v{T0+2}
        v_mul_f32 v{T0+1}, {fl(1/64)}, v{T0}
        v_mul_f32 v{T0+3}, v{T0+2}, v{T0+1}''')
        angles(a,[(T0+1,T0+3,16*ks+u,(None,None,pk(p['V_F64R']+4*ks+u,p['V_F64I']+4*ks+u)),False) for ks in range(3) for u in range(4)],TA)
    def part1():
        angles(a,[(T0+1,T0+3,16*ks+u,(None,None,pk(p['V_F64R']+4*ks+u,p['V_F64I']+4*ks+u)),False) for ks in range(3,4) for u in range(4)],TA)
        a.e(f'''v_mul_f32 v{T0+1}, {fl(1/2048)}, v{T0}
        v_mul_f32 v{T0+3}, v{T0+2}, v{T0+1}''')
        angles(a,[(T0+1,T0+3,16*mb+r,(p['V_T1C']+4*mb+r,p['V_T1S']+4*mb+r,None),True) for mb in range(2) for r in range(4)],TA)
    def part2():
        a.e(f'v_cvt_f32_u32 v{T0+7}, v1')
        for eh in range(2):
            a.e(f'''v_add_f32 v{T0+1}, {fl(16*eh)}, v{T0+7}
            v_mul_f32 v{T0+1}, {fl(1/32)}, v{T0+1}
            v_mul_f32 v{T0+3}, v{T0+2}, v{T0+1}''')
            angles(a,[(T0+1,T0+3,16*mb+u,(None,None,pk(p['V_F32R']+8*eh+4*mb+u,p['V_F32I']+8*eh+4*mb+u)),False) for mb in range(2) for u in range(4)],TA)
    def part3():
        a.e(f'''v_cvt_f32_u32 v{T0}, s83
        v_add_f32 v{T0+2}, v{T0}, v{T0+2}''')
        for nb in range(2):
            a.e(f'''v_add_f32 v{T0+1}, {fl(16*nb)}, v{T0+7}
            v_mul_f32 v{T0+1}, {fl(1/2048)}, v{T0+1}
            v_mul_f32 v{T0+3}, v{T0+2}, v{T0+1}''')
            angles(a,[(T0+1,T0+3,r,(p['V_T3C']+4*nb+r,p['V_T3S']+4*nb+r,None),True) for r in range(4)],TA)
    return [part0,part1,part2,part3]

def p2_compute(a,cfg,tok_w):
    p=P2
    V_U,V_W,V_GT,T0=p['V_U'],p['V_W'],p['V_GT'],p['T0']
    V_F64R,V_F64I,V_F32R,V_F32I=p['V_F64R'],p['V_F64I'],p['V_F32R'],p['V_F32I']
    V_T1C,V_T1S,V_T3C,V_T3S=p['V_T1C'],p['V_T1S'],p['V_T3C'],p['V_T3S']
    V_DR,V_DI,V_B=p['V_DR'],p['V_DI'],p['V_B']; TT=200
    a.e(f'''v_lshrrev_b32 v{T0+4}, 1, v2
    v_lshlrev_b32 v{T0+4}, 5, v{T0+4}
    v_lshl_add_u32 v{T0+4}, v1, 1, v{T0+4}
    v_and_b32 v{T0+5}, 1, v2
    v_add_u32 v{T0+4}, v{T0+4}, v{T0+5}
    v_lshlrev_b32 v{T0+4}, 4, v{T0+4}
    v_add_u32 v{T0+4}, {TB_BASE}, v{T0+4}''')
    for ks in range(4):
        for mb in range(2):
            a.e(f'ds_read_b128 {vr(V_U+16*mb+4*ks,4)}, v{T0+4} offset:{2048*ks+1024*mb}')
    V_WR=216; V_WI=224
    a.e(f's_lshl_b32 s65, {wv}, 11'); a.e(f's_add_u32 s65, s65, {WB_BASE}'); a.e(f'v_add_u32 v{T0+6}, s65, v{V_L16}')
    for eh in range(2): a.e(f'ds_read_b128 {vr(V_W+4*eh,4)}, v{T0+6} offset:{1024*eh}')
    for ks in range(4):
        a.e(f's_waitcnt lgkmcnt({8-2*ks})')
        for mb in range(2):
            A=vr(V_U+16*mb+4*ks,4)
            for (D,Fm) in((V_DR,V_F64R),(V_DI,V_F64I)):
                d=vr(D+4*mb,4)
                a.e(f'v_mfma_f32_16x16x32_bf16 {d}, {A}, {vr(Fm+4*ks,4)}, {d if ks else 0}')
    a.e('s_waitcnt lgkmcnt(0)')
    for e in range(8):
        a.e(f'v_lshlrev_b32 v{V_WR+e}, 16, v{V_W+e}')
        a.e(f'v_and_b32 v{V_WI+e}, 0xffff0000, v{V_W+e}')
    for mb in range(2): cmul_pack(a,V_DR+4*mb,V_DI+4*mb,V_T1C+4*mb,V_T1S+4*mb,V_B+4*mb,TT)
    for mb in range(2):
        for eh in range(2):
            for (D,Fm) in((V_DR,V_F32R),(V_DI,V_F32I)):
                d=vr(D+4*eh,4)
                a.e(f'v_mfma_f32_16x16x32_bf16 {d}, {vr(Fm+8*eh+4*mb,4)}, {vr(V_B+4*mb,4)}, {d if mb else 0}')
    a.e(f'''s_lshl_b32 s65, {wv}, 11
    s_add_u32 s65, s65, {XB_BASE}
    v_add_u32 v{T0+4}, s65, v{V_L16}
    v_add_u32 v{T0+5}, {XB_BASE}, v{V_L16}''')
    a.e('s_cmp_lg_u32 s56, 0')
    a.e('s_cbranch_scc0 L_p2_special')
    for eh in range(2): cmul_pack(a,V_DR+4*eh,V_DI+4*eh,V_WR+4*eh,V_WI+4*eh,V_B+4*eh,TT,negim=True)
    a.e('L_p2_join:')
    for ks in range(2):
        for nb in range(2):
            for (D,Fm) in((V_DR,V_F32R),(V_DI,V_F32I)):
                d=vr(D+4*nb,4)
                a.e(f'v_mfma_f32_16x16x32_bf16 {d}, {vr(V_B+4*ks,4)}, {vr(Fm+8*nb+4*ks,4)}, {d if ks else 0}')
    for nb in range(2):
        cmul_pack(a,V_DR+4*nb,V_DI+4*nb,V_T3C+4*nb,V_T3S+4*nb,V_B+4*nb,TT)
        a.e(f'ds_write_b128 v{T0+4}, {vr(V_B+4*nb,4)} offset:{1024*nb}')
    a.e('s_waitcnt lgkmcnt(0)')
    a.e('s_barrier')
    V_X=V_U
    for ks in range(4):
        for nb in range(2):
            a.e(f'ds_read_b128 {vr(V_X+8*ks+4*nb,4)}, v{T0+5} offset:{2048*ks+1024*nb}')
    for ks in range(4):
        a.e(f's_waitcnt lgkmcnt({6-2*ks})')
        for nb in range(2):
            for (D,Fm) in((V_DR,V_F64R),(V_DI,V_F64I)):
                d=vr(D+4*nb,4)
                a.e(f'v_mfma_f32_16x16x32_bf16 {d}, {vr(Fm+4*ks,4)}, {vr(V_X+8*ks+4*nb,4)}, {d if ks else 0}')
    a.wait_vm(tok_w)
    for e in range(8): a.e(f'v_mul_f32 v{V_GT+e}, {fl(2.0**-19)}, v{V_GT+e}')
    a.e(f's_add_u32 s62, s60, {WS_Y}')
    for nb in range(2):
        for h in range(2):
            a.e(f'v_pk_mul_f32 {vr(V_DR+4*nb+2*h,2)}, {vr(V_DR+4*nb+2*h,2)}, {vr(V_GT+4*nb+2*h,2)}')
            a.e(f'v_pk_mul_f32 {vr(V_DI+4*nb+2*h,2)}, {vr(V_DI+4*nb+2*h,2)}, {vr(V_GT+4*nb+2*h,2)}')
        for r in range(4): a.e(f'v_cvt_pk_bf16_f32 v{V_B+4*nb+r}, v{V_DR+4*nb+r}, v{V_DI+4*nb+r}')
        if not cfg.x.get('ydefer'): a.e(f'buffer_store_dwordx4 {vr(V_B+4*nb,4)}, v{V_L16}, {srd(S_WS)}, s62 offen offset:{1024*nb} {cfg.f("stY")}')

def p2_special(a,cfg):
    p=P2
    V_U,V_Q,T0,V_DR,V_DI,V_B=p['V_U'],p['V_Q'],p['T0'],p['V_DR'],p['V_DI'],p['V_B']
    V_WR=216; V_WI=224
    a.e('L_p2_special:')
    a.cond_begin()
    a.e('s_waitcnt vmcnt(0)')
    V_J=T0+8; V_ZA=V_U+16
    a.e(f'''s_lshl_b32 s65, {wv}, 4
    v_lshlrev_b32 v{V_J}, 8, v2
    v_add3_u32 v{V_J}, v{V_J}, v1, s65''')
    for eh in range(2):
        for r in range(4):
            n=1024*eh+64*r
            a.e(f'v_add_u32 v{T0}, {n}, v{V_J}')
            a.e(f'v_lshlrev_b32 v{T0}, 2, v{T0}')
            a.e(f'v_cvt_pk_bf16_f32 v{T0+2}, v{V_DR+4*eh+r}, v{V_DI+4*eh+r}')
            a.e(f'v_add_u32 v{T0}, {ZR_BASE}, v{T0}')
            a.e(f'ds_write_b32 v{T0}, v{T0+2}')
    a.e('s_waitcnt lgkmcnt(0)')
    a.e('s_barrier')
    for eh in range(2):
        for r in range(4):
            n=1024*eh+64*r
            a.e(f'v_sub_u32 v{T0}, {2048-n}, v{V_J}')
            a.e(f'v_and_b32 v{T0}, 2047, v{T0}')
            a.e(f'v_lshlrev_b32 v{T0}, 2, v{T0}')
            a.e(f'v_add_u32 v{T0}, {ZR_BASE}, v{T0}')
            a.e(f'ds_read_b32 v{V_ZA+4*eh+r}, v{T0}')
    a.e('s_waitcnt lgkmcnt(0)')
    for e in range(8):
        zr=V_DR+e; zi=V_DI+e; pr=V_WR+e; pi=V_WI+e; ar_=T0+6; ai=T0+7
        qr=T0; qi=T0+1; yr=T0+2; yi=T0+3
        a.e(f'''v_lshlrev_b32 v{qr}, 16, v{V_Q+e}
        v_and_b32 v{qi}, 0xffff0000, v{V_Q+e}
        v_lshlrev_b32 v{ar_}, 16, v{V_ZA+e}
        v_and_b32 v{ai}, 0xffff0000, v{V_ZA+e}
        v_mul_f32 v{yr}, v{zr}, v{pr}
        v_fma_f32 v{yr}, -v{zi}, v{pi}, v{yr}
        v_fma_f32 v{yr}, v{ar_}, v{qr}, v{yr}
        v_fma_f32 v{yr}, v{ai}, v{qi}, v{yr}
        v_mul_f32 v{yi}, v{zr}, v{pi}
        v_fma_f32 v{yi}, v{zi}, v{pr}, v{yi}
        v_fma_f32 v{yi}, v{ar_}, v{qi}, v{yi}
        v_fma_f32 v{yi}, -v{ai}, v{qr}, v{yi}
        v_cvt_pk_bf16_f32 v{V_B+e}, v{yr}, -v{yi}''')
    a.cond_end()
    a.e('s_branch L_p2_join')

HEADER='''; Gated mix of a GFNet spectral filter and a dense->mish->dense block, one persistent launch.
; (text generated by the author's own generator script; 256 workgroups, one per CU, hand-offs through counters)
'''
def build(stamps=False,off=(),**kw):
    cfg=Cfg(); cfg.stamps=stamps; cfg.off=set(off); cfg.x=kw; cfg.fine=kw.get('fine',0)
    label=NAME+'_kernel'
    a=Asm(); end='L_end'
    prologue(a,cfg,end)
    sv=(a.vm,a.lg)
    if kw.get('ffirst'):
        f_stream(a,cfg,end)
        nbF=sum(1 for i in a.items if i.op=='s_barrier'); n0=len(a.items)
        a.vm,a.lg=sv; a.bg_rate=0; assert not a.bg
        a.e('L_M:')
        m_stream(a,cfg,end)
        nbM=sum(1 for i in a.items[n0:] if i.op=='s_barrier')
    else:
        m_stream(a,cfg,end)
        nbM=sum(1 for i in a.items if i.op=='s_barrier'); n0=len(a.items)
        a.vm,a.lg=sv; a.bg_rate=0; assert not a.bg
        f_stream(a,cfg,end)
        nbF=sum(1 for i in a.items[n0:] if i.op=='s_barrier')
    a.e(f'{end}:'); a.e('s_endpgm')
    txt=a.text()
    errs=[]
    for role in (False,True):
        jump=lambda t: (role and t=='L_F') or ((not role) and t=='L_M')
        for nm,pol in (('fall',lambda i,n:i.target.endswith('_done') or jump(i.target)),
                       ('taken',lambda i,n:((not i.target.startswith('L_end')) and n==0 and (i.target not in('L_F','L_M') or jump(i.target))))):
            errs+=verify_waits(a.out,pol,('F' if role else 'M')+nm)
    for e in sorted(set(errs))[:30]: print('WAITERR',e,file=sys.stderr)
    print(dict(a.count()),'barriers M',nbM,'F',nbF,file=sys.stderr)
    out=HEADER+f'; @launch grid=(256,1,1) block=(512,1,1) lds={LDS_TOTAL}\n'
    out+='.amdgcn_target "amdgcn-amd-amdhsa--gfx950"\n.text\n'
    out+=f'.globl {label}\n.p2align 8\n.type {label},@function\n{label}:\n{txt}'
    out+=f'''.section .rodata,"a"
.p2align 6
.amdhsa_kernel {label}
  .amdhsa_next_free_vgpr 256
  .amdhsa_next_free_sgpr 102
  .amdhsa_accum_offset 256
  .amdhsa_group_segment_fixed_size 0
  .amdhsa_kernarg_size 88
  .amdhsa_user_sgpr_count 2
  .amdhsa_user_sgpr_kernarg_segment_ptr 1
  .amdhsa_system_sgpr_workgroup_id_x 1
.end_amdhsa_kernel
'''
    return out

if __name__=='__main__':
    mode=sys.argv[1] if len(sys.argv)>1 else 'persist'
    kw={}
    for x in sys.argv[3:]:
        k,v=x.split('='); kw[k]=int(v) if v.lstrip('-').isdigit() else v
    off=kw.pop('off','').split(',') if 'off' in kw else ()
    txt=build(stamps=(mode=='stamps'),off=off,**kw)
    open(sys.argv[2] if len(sys.argv)>2 else 'out.s','w').write(txt)
```

```python
import sys, os, struct
from dsl import Asm, verify_waits

NAME='gated_mix__spectral_gfnet__dense_activation_mish__prompt'
WS_T   =0x000000
WS_WT  =0x200000
WS_QT  =0x400000
WS_G   =0x402000
WS_CNT =0x404000
WS_Y   =0x600000
WS_ACT =0x800000
WS_STAMP=0x1000000
WS_SIZE=0x1080000
RT_STRIDE=56*4096
S_X,S_WR,S_WI,S_W1,S_B1,S_W2,S_GW,S_OUT,S_WS,S_DBG=8,12,16,20,24,28,32,36,40,44
def srd(n): return f's[{n}:{n+3}]'
SRDS=[(S_X,0,2048*1024),(S_WR,8,2048*514),(S_WI,16,2048*514),(S_W1,32,512*3584),(S_B1,40,3584),
      (S_W2,48,1792*1024),(S_GW,56,1024),(S_OUT,64,2048*1024),(S_WS,80,WS_SIZE),(S_DBG,72,256)]
def vr(b,n=1): return f'v{b}' if n==1 else f'v[{b}:{b+n-1}]'
def fl(x): return hex(struct.unpack('<I',struct.pack('<f',float(x)))[0])
S_WV=3; S_W8=49
wv=f's{S_WV}'
LOG2E=1.4426950408889634
OOB=0x40000000
SLEEP=int(os.environ.get('SLEEP','8'))
SPIN_MAX=50000
SLOT=31744
SB=lambda c:(c%5)*SLOT
XA_BASE=4*SLOT; XA_PITCH=1152
GW_LDS=5*SLOT; B1_LDS=GW_LDS+1024
LC_BASE=GW_LDS+2048
TB_BASE=131072; XB_BASE=139264; ZR_BASE=147456; WB_BASE=155648
LDS_TOTAL=163840
V_L16=3
V_PD,V_PA,V_SIG=250,251,252

class Cfg:
    stamps=False; dbgst=False; sc='sc1'
    off=set()
    def f(self,tag): return '' if (tag in self.off or 'all' in self.off) else self.sc

def stamp(a,cfg,idx):
    if not cfg.stamps: return
    r=a.bg_rate; a.bg_rate=0
    a.e('s_memrealtime s[96:97]'); a.e('s_waitcnt lgkmcnt(0)'); a.e(f'v_writelane_b32 v255, s96, {idx}')
    a.bg_rate=r
def stamps_flush(a,cfg):
    if not cfg.stamps: return
    a.e(f"""v_lshrrev_b32 v254, 6, v249
    s_nop 0
    v_readfirstlane_b32 s98, v254
    s_lshl_b32 s99, s2, 3
    s_add_u32 s98, s98, s99
    s_lshl_b32 s98, s98, 8
    s_add_u32 s98, s98, {WS_STAMP}
    v_lshlrev_b32 v254, 2, v0
    buffer_store_dword v255, v254, {srd(S_WS)}, s98 offen""")

def signal(a,S,soff):
    vt=V_SIG
    a.e(f"""s_cmp_eq_u32 {wv}, 0
    s_cselect_b32 s95, 0, {OOB}
    v_mov_b32 v{vt}, 1
    v_mov_b32 v{vt+1}, s95
    s_mov_b64 exec, 1
    buffer_atomic_add v{vt}, v{vt+1}, {srd(S)}, {soff} offen sc1
    s_mov_b64 exec, -1""")

def ssignal(a,S,soff):
    lab=f'L_ss{len(a.items)}'
    a.e(f's_cmp_lg_u32 {wv}, 0'); a.e(f's_cbranch_scc1 {lab}')
    a.e(f's_atomic_add s90, s[{S}:{S+1}], {soff}')
    a.e(f'{lab}:')

def spin_global(a,S,soff,nl,stride,target):
    lab=f'L_poll{len(a.items)}'
    a.e(f'v_mul_u32_u24 v{V_PA}, {stride}, v0')
    a.e(f's_mov_b64 exec, {hex((1<<nl)-1)}')
    a.e(f's_mov_b32 s94, 0')
    a.e(f'{lab}:')
    a.e(f'buffer_load_dword v{V_PD}, v{V_PA}, {srd(S)}, {soff} offen sc1')
    a.e(f's_add_u32 s94, s94, 1')
    a.e(f's_waitcnt vmcnt(0)')
    a.e(f'v_cmp_gt_u32 vcc, {target}, v{V_PD}')
    a.e(f's_cbranch_vccz {lab}_done')
    a.e(f's_cmp_gt_u32 s94, {SPIN_MAX}')
    a.e(f's_cbranch_scc1 {lab}_done')
    a.e(f's_sleep {SLEEP}')
    a.e(f's_branch {lab}')
    a.e(f'{lab}_done:')
    a.e('s_mov_b64 exec, -1')

def poll_w0(a,S,soff,nl,stride,target):
    lab=f'L_pw{len(a.items)}'
    a.e(f's_cmp_lg_u32 {wv}, 0'); a.e(f's_cbranch_scc1 {lab}')
    a.cond_begin(); spin_global(a,S,soff,nl,stride,target); a.cond_end()
    a.e(f'{lab}:')

V_LC=248
def lc_add(a,idx,rtn=None):
    a.e(f'v_mov_b32 v{V_LC-1}, 1')
    a.e('s_mov_b64 exec, 1')
    if rtn is None: a.e(f'ds_add_u32 v{V_LC}, v{V_LC-1} offset:{4*idx}')
    else: a.e(f'ds_add_rtn_u32 v{rtn}, v{V_LC}, v{V_LC-1} offset:{4*idx}')
    a.e('s_mov_b64 exec, -1')
def lc_wait(a,idx,target):
    lab=f'L_lc{len(a.items)}'
    a.e('s_mov_b32 s94, 0')
    a.e(f'{lab}:')
    a.e(f'ds_read_b32 v{V_LC-1}, v{V_LC} offset:{4*idx}')
    a.e('s_add_u32 s94, s94, 1')
    a.e('s_waitcnt lgkmcnt(0)')
    a.e(f'v_readfirstlane_b32 s93, v{V_LC-1}')
    a.e(f's_cmp_ge_u32 s93, {target}')
    a.e(f's_cbranch_scc1 {lab}_done')
    a.e('s_sleep 1')
    a.e(f's_cmp_lt_u32 s94, {20*SPIN_MAX}')
    a.e(f's_cbranch_scc1 {lab}')
    a.e(f'{lab}_done:')

def angles(a,items,T):
    for i0 in range(0,len(items),4):
        grp=items[i0:i0+4]; src=[]
        for j,(sl,base,n,fin,neg) in enumerate(grp):
            if n==0: src.append(f'v{base}')
            else:
                a.e(f'v_fmamk_f32 v{T+j}, v{sl}, {fl(n)}, v{base}'); src.append(f'v{T+j}')
        outs=[]
        for j,(sl,base,n,fin,neg) in enumerate(grp):
            c,s=fin[0] if fin[0] is not None else T+4+j, fin[1] if fin[1] is not None else T+8+j
            a.e(f'v_cos_f32 v{c}, {src[j]}')
            a.e(f'v_sin_f32_e64 v{s}, -{src[j]}' if neg else f'v_sin_f32 v{s}, {src[j]}')
            outs.append((c,s))
        for j,(sl,base,n,fin,neg) in enumerate(grp):
            if fin[2]: fin[2](*outs[j])

def cmul_pack(a,c,s,tc,ts,dst,TT,n=4,negim=False):
    H=n//2
    for h in range(H): a.e(f'v_pk_mul_f32 {vr(TT+4*h,2)}, {vr(s+2*h,2)}, {vr(ts+2*h,2)}')
    for h in range(H): a.e(f'v_pk_mul_f32 {vr(TT+4*h+2,2)}, {vr(s+2*h,2)}, {vr(tc+2*h,2)}')
    for h in range(H): a.e(f'v_pk_fma_f32 {vr(TT+4*h,2)}, {vr(c+2*h,2)}, {vr(tc+2*h,2)}, {vr(TT+4*h,2)} neg_lo:[0,0,1] neg_hi:[0,0,1]')
    for h in range(H): a.e(f'v_pk_fma_f32 {vr(TT+4*h+2,2)}, {vr(c+2*h,2)}, {vr(ts+2*h,2)}, {vr(TT+4*h+2,2)}')
    ng='-' if negim else ''
    for h in range(H):
        a.e(f'v_cvt_pk_bf16_f32 v{dst+2*h}, v{TT+4*h}, {ng}v{TT+4*h+2}')
        a.e(f'v_cvt_pk_bf16_f32 v{dst+2*h+1}, v{TT+4*h+1}, {ng}v{TT+4*h+3}')

def prologue(a,cfg,end):
    a.e('s_cmp_ge_u32 s2, 256'); a.e(f's_cbranch_scc1 {end}')
    for (n,off,sz) in SRDS: a.e(f's_load_dwordx2 s[{n}:{n+1}], s[0:1], {off}')
    if cfg.x.get('pf_code') and cfg.x.get('pf_top'):
        nw=cfg.x['pf_top']
        a.e('s_getpc_b64 s[64:65]')
        a.e('v_lshrrev_b32 v56, 6, v0'); a.e('v_and_b32 v57, 63, v0')
        a.e('v_readfirstlane_b32 s66, v56')
        a.e('v_lshlrev_b32 v57, 4, v57')
        a.e('s_lshr_b32 s67, s2, 3'); a.e(f's_mul_i32 s67, s67, {nw}'); a.e('s_add_u32 s67, s67, s66')
        a.e('s_lshl_b32 s68, s67, 10')
        a.e('s_add_u32 s64, s64, s68'); a.e('s_addc_u32 s65, s65, 0')
        a.e('v_mov_b32 v59, s65'); a.e('v_add_co_u32 v58, vcc, s64, v57'); a.e('s_nop 1'); a.e('v_addc_co_u32 v59, vcc, 0, v59, vcc')
        a.e(f's_cmp_lt_u32 s66, {nw}'); a.e('s_cbranch_scc0 L_nopf0'); a.cond_begin()
        a.e(f's_cmp_lt_u32 s67, {cfg.x["pf_code"]}'); a.e('s_cbranch_scc0 L_nopf0')
        a.e('global_load_dwordx4 v[52:55], v[58:59], off')
        a.cond_end(); a.e('L_nopf0:')
    if cfg.stamps: a.e('v_mov_b32 v249, v0')
    a.e('v_lshrrev_b32 v1, 6, v0')
    a.e('v_and_b32 v0, 63, v0')
    a.e('v_readfirstlane_b32 s48, v1')
    a.e('v_and_b32 v1, 15, v0')
    a.e('v_lshrrev_b32 v2, 4, v0')
    a.e(f'v_lshlrev_b32 v{V_L16}, 4, v0')
    for (n,off,sz) in SRDS:
        a.e(f's_mov_b32 s{n+2}, {hex(sz)}'); a.e(f's_mov_b32 s{n+3}, 0x20000')
    a.e(f'''s_mov_b32 s51, s48
    s_and_b32 {wv}, s48, 3
    s_lshr_b32 s50, s48, 2
    s_and_b32 s4, s2, 7
    s_lshr_b32 s5, s2, 3
    s_lshr_b32 s6, s4, 1
    s_lshl_b32 s6, s6, 2
    s_lshr_b32 s56, s5, 3
    s_add_u32 s6, s6, s56
    s_and_b32 s7, s4, 1
    s_lshl_b32 s7, s7, 3
    s_and_b32 s56, s5, 7
    s_add_u32 s7, s7, s56
    s_and_b32 s48, s7, 1''')
    a.e('s_waitcnt lgkmcnt(0)')
    if cfg.x.get('pf_code') and not cfg.x.get('pf_top'):
        a.e('s_getpc_b64 s[64:65]')
        a.e('s_lshl_b32 s66, s5, 10')
        a.e('s_add_u32 s64, s64, s66'); a.e('s_addc_u32 s65, s65, 0')
        a.e(f'v_mov_b32 v57, s65'); a.e(f'v_add_co_u32 v56, vcc, s64, v{V_L16}'); a.e('s_nop 1'); a.e(f'v_addc_co_u32 v57, vcc, 0, v57, vcc')
        a.e(f's_cmp_lt_u32 s5, {cfg.x["pf_code"]}'); a.e('s_cbranch_scc0 L_nopf'); a.cond_begin()
        a.e(f's_cmp_lg_u32 s51, 2'); a.e('s_cbranch_scc1 L_nopf')
        a.e('global_load_dwordx4 v[52:55], v[56:57], off')
        a.cond_end(); a.e('L_nopf:')
    mt=str(cfg.x.get('mt','xw'))
    if mt!='0':
        a.e(f'''v_lshlrev_b32 v5, 7, v0
        v_mov_b32 v6, {OOB}
        v_cmp_gt_u32 vcc, 56, v0
        v_cndmask_b32 v6, v6, v5, vcc
        s_cmp_eq_u32 s51, 0
        s_cselect_b32 s56, 0, {OOB}
        v_add_u32 v5, s56, v5
        s_cmp_eq_u32 s51, 1
        s_cselect_b32 s56, 0, {OOB}
        v_add_u32 v7, s56, v6
        s_lshl_b32 s56, s2, 13
        s_mul_i32 s57, s2, 7168''')
        if 'x' in mt: a.e(f'buffer_load_dword v245, v5, {srd(S_X)}, s56 offen')
        if 'w' in mt: a.e(f'buffer_load_dword v245, v7, {srd(S_W1)}, s57 offen')
    if cfg.x.get('tlb'):
        a.e(f'''v_lshlrev_b32 v5, 21, v0
        v_mov_b32 v6, {OOB}
        v_cmp_gt_u32 vcc, 9, v0
        v_cndmask_b32 v5, v6, v5, vcc
        s_cmp_eq_u32 s51, 2
        s_cselect_b32 s56, 0, {OOB}
        v_or_b32 v5, s56, v5
        s_cmp_eq_u32 s51, 3
        s_cselect_b32 s56, 0, {OOB}
        v_cmp_gt_u32 vcc, 1, v0
        v_cndmask_b32 v6, v6, v0, vcc
        v_or_b32 v6, s56, v6
        buffer_load_dword v245, v5, {srd(S_WS)}, 0 offen
        buffer_load_dword v245, v6, {srd(S_OUT)}, 0 offen''')
    if cfg.x.get('ffirst'):
        a.e('s_cmp_eq_u32 s50, 0'); a.e('s_cbranch_scc1 L_M')
    else:
        a.e('s_cmp_lg_u32 s50, 0'); a.e('s_cbranch_scc1 L_F')

V_GF=8
V_W2A=240; V_W2D=244
NS3=int(os.environ.get('NS3','8'))
GSLOT=[6,7,0,1]
GT0=224; GTA=234
G_ITEMS=[(psi,c,u) for psi in range(4) for c in range(4) for u in range(4)]
def m_g2_ids(a,cfg):
    a.e(f"""s_lshl_b32 s67, s4, 2
    s_lshr_b32 s68, s5, 3
    s_add_u32 s67, s67, s68
    s_and_b32 s68, s5, 7
    s_mul_i32 s69, s67, {RT_STRIDE}
    s_mul_i32 s70, {wv}, {14*4096}
    s_add_u32 s69, s69, s70
    s_add_u32 s69, s69, {WS_ACT}
    s_mul_i32 s70, {wv}, {14*32*1024}
    s_lshl_b32 s71, s68, 7
    s_add_u32 s70, s70, s71
    s_lshl_b32 s71, {wv}, 15
    s_lshr_b32 s72, s67, 1
    s_and_b32 s73, s67, 1
    s_lshr_b32 s74, s72, 2
    s_lshl_b32 s74, s74, 11
    s_lshl_b32 s75, s73, 10
    s_add_u32 s74, s74, s75
    s_and_b32 s75, s72, 3
    s_lshl_b32 s75, s75, 8
    s_add_u32 s74, s74, s75""")
def w2_dma_addr(a,V,T):
    a.e(f"""v_lshrrev_b32 v{T}, 3, v0
    v_lshlrev_b32 v{V}, 10, v{T}
    v_lshrrev_b32 v{T}, 1, v{T}
    v_and_b32 v{T}, 3, v{T}
    v_bfe_u32 v{T+1}, v0, 1, 2
    v_xor_b32 v{T}, v{T}, v{T+1}
    v_lshlrev_b32 v{T}, 1, v{T}
    v_and_b32 v{T+1}, 1, v0
    v_add_u32 v{T}, v{T}, v{T+1}
    v_lshl_add_u32 v{V}, v{T}, 4, v{V}""")
def w2_group(t,v,V):
    return [f's_add_u32 m0, s71, {(t%8)*4096+v*1024}', f's_add_u32 s55, s70, {(32*t+8*v)*1024}',
            f'buffer_load_dwordx4 v{V}, {srd(S_W2)}, s55 offen lds']

def m_stream(a,cfg,end):
    a.e('s_waitcnt lgkmcnt(0)')
    if cfg.x.get('prio0'): a.e(f's_setprio {cfg.x["prio0"]}')
    stamp(a,cfg,26)
    a.e(f'''s_xor_b32 s56, {wv}, 3
    s_or_b32 s58, s56, s2
    s_cmp_eq_u32 s58, 0
    s_cselect_b32 s56, 0, {OOB}
    v_lshlrev_b32 v5, 7, v0
    v_add_u32 v5, s56, v5
    v_mov_b32 v6, 0
    s_mov_b32 s57, {WS_CNT}
    s_mov_b32 exec_hi, 0
    buffer_store_dword v6, v5, {srd(S_WS)}, s57 offen sc1
    s_mov_b32 exec_hi, -1''')
    mt=str(cfg.x.get('mt','xw'))
    a.e(f'''s_lshr_b32 s49, s2, 5
    s_and_b32 s50, s2, 31''')
    V_B1C=60; V_B1S=68; V_TC=76; V_TS=80; V_A2=84; V_A2N=88; T0=92; TA=100
    a.e(f'''s_lshl_b32 s67, {wv}, 4
    v_add_u32 v{T0}, s67, v1
    v_cvt_f32_u32 v{T0}, v{T0}
    v_mul_f32 v{T0+1}, {fl(1/64)}, v{T0}
    v_lshlrev_b32 v{T0+2}, 2, v2
    v_cvt_f32_u32 v{T0+2}, v{T0+2}
    v_mul_f32 v{T0+3}, v{T0+2}, v{T0+1}''')
    for ks in range(2):
        for hh in range(2):
            angles(a,[(T0+1,T0+3,32*ks+16*hh+u,(None,None,None),True) for u in range(4)],TA)
            for d in range(2):
                a.e(f'v_cvt_pk_bf16_f32 v{V_B1C+4*ks+2*hh+d}, v{TA+4+2*d}, v{TA+5+2*d}')
                a.e(f'v_cvt_pk_bf16_f32 v{V_B1S+4*ks+2*hh+d}, v{TA+8+2*d}, v{TA+9+2*d}')
    a.e(f'''v_and_b32 v{T0+4}, 1, v2
    v_lshlrev_b32 v{T0+4}, 2, v{T0+4}
    v_cvt_f32_u32 v{T0+4}, v{T0+4}
    v_mul_f32 v{T0+5}, {fl(1/512)}, v{T0}
    v_mul_f32 v{T0+6}, v{T0+4}, v{T0+5}''')
    angles(a,[(T0+5,T0+6,r,(V_TC+r,V_TS+r,None),True) for r in range(4)],TA)
    a.e(f'''v_lshrrev_b32 v{T0+5}, 2, v1
    v_cvt_f32_u32 v{T0+5}, v{T0+5}
    v_mul_f32 v{T0+5}, {fl(1/8)}, v{T0+5}
    v_and_b32 v{T0+6}, 1, v1
    v_cvt_f32_u32 v{T0+6}, v{T0+6}
    v_mul_f32 v{T0+6}, {fl(0.25)}, v{T0+6}
    v_fma_f32 v{T0+6}, v{T0+4}, v{T0+5}, v{T0+6}
    v_lshrrev_b32 v{T0+7}, 1, v1
    v_and_b32 v{T0+7}, 1, v{T0+7}
    v_lshrrev_b32 v{T0}, 1, v2
    v_cmp_eq_u32 s[68:69], v{T0+7}, v{T0}
    v_and_b32 v{T0+7}, 13, v1
    v_cmp_eq_u32 vcc, 1, v{T0+7}''')
    a.e('s_and_b64 s[70:71], vcc, s[68:69]')
    angles(a,[(T0+5,T0+6,dw,(None,None,None),False) for dw in range(4)],TA)
    for dw in range(4): a.e(f'v_cvt_pk_bf16_f32 v{TA+dw}, v{TA+4+dw}, v{TA+8+dw}')
    a.e(f'v_mov_b32 v{TA+4}, 0x3f80'); a.e(f'v_mov_b32 v{TA+5}, 0xbf80')
    for dw in range(4):
        a.e(f'v_cndmask_b32 v{V_A2+dw}, 0, v{TA+dw}, s[68:69]')
        a.e(f'v_cndmask_b32 v{V_A2N+dw}, 0, v{TA+4+(dw&1)}, s[70:71]')
    V_XA=108
    a.e(f'''v_and_b32 v{T0}, 3, v0
    v_lshrrev_b32 v{T0+1}, 1, v{T0}
    v_mul_u32_u24 v{V_XA}, {XA_PITCH}, v{T0+1}
    v_and_b32 v{T0}, 1, v{T0}
    v_lshlrev_b32 v{T0}, 3, v{T0}
    v_lshrrev_b32 v{T0+1}, 2, v1
    v_lshl_add_u32 v{T0+1}, v2, 2, v{T0+1}
    v_lshlrev_b32 v{T0+1}, 4, v{T0+1}
    v_add3_u32 v{V_XA}, v{V_XA}, v{T0}, v{T0+1}
    v_add_u32 v{V_XA}, {XA_BASE}, v{V_XA}
    s_mul_i32 s72, {wv}, {2*XA_PITCH}
    s_add_u32 s72, s72, {XA_BASE}
    v_add_u32 v{V_XA+1}, s72, v{V_L16}
    v_add_u32 v{V_XA+2}, {GW_LDS}, v{V_L16}''')
    a.e(f'''s_lshl_b32 s84, s49, 3
    s_lshl_b32 s85, {wv}, 1
    s_add_u32 s84, s84, s85
    s_lshr_b32 s85, s84, 4
    s_lshl_b32 s85, s85, 11
    s_lshr_b32 s86, s50, 4
    s_lshl_b32 s86, s86, 10
    s_add_u32 s85, s85, s86
    s_lshr_b32 s86, s84, 2
    s_and_b32 s86, s86, 3
    s_lshl_b32 s86, s86, 8
    s_add_u32 s85, s85, s86
    s_and_b32 s86, s50, 15
    s_lshl_b32 s86, s86, 4
    s_add_u32 s85, s85, s86
    s_and_b32 s86, s84, 3
    s_lshl_b32 s86, s86, 2
    s_add_u32 s85, s85, s86
    s_add_u32 s85, s85, {WS_G}
    ''')
    if mt!='0' and ('W' in mt or '2' in mt):
        a.e(f'''v_lshlrev_b32 v5, 7, v0
        v_mov_b32 v6, {OOB}
        v_cmp_gt_u32 vcc, 33, v0
        v_cndmask_b32 v7, v6, v5, vcc
        v_cmp_gt_u32 vcc, 56, v0
        v_cndmask_b32 v6, v6, v5, vcc
        s_cmp_eq_u32 {wv}, 2
        s_cselect_b32 s56, 0, {OOB}
        v_add_u32 v5, s56, v7
        s_cmp_eq_u32 {wv}, 3
        s_cselect_b32 s56, 0, {OOB}
        v_add_u32 v7, s56, v7
        s_cmp_eq_u32 {wv}, 0
        s_cselect_b32 s56, 0, {OOB}
        v_add_u32 v6, s56, v6
        s_mul_i32 s56, s2, {33*128}
        v_add_u32 v5, s56, v5
        v_add_u32 v7, s56, v7
        s_mul_i32 s57, s2, 7168''')
        if 'W' in mt:
            a.e(f'buffer_load_dword v245, v5, {srd(S_WR)}, 0 offen')
            a.e(f'buffer_load_dword v245, v7, {srd(S_WI)}, 0 offen')
        if '2' in mt: a.e(f'buffer_load_dword v245, v6, {srd(S_W2)}, s57 offen')
    a.e('s_cmp_lg_u32 s58, 0'); a.e('s_cbranch_scc1 L_m_nos0'); a.cond_begin()
    a.e(f'''s_waitcnt vmcnt(0)
    v_mov_b32 v5, 1
    v_mov_b32 v6, 32
    s_mov_b64 exec, 1
    buffer_store_dword v5, v6, {srd(S_DBG)}, 0 offen sc1
    s_mov_b64 exec, -1''')
    a.cond_end(); a.e('L_m_nos0:')
    stamp(a,cfg,0)
    a.e('s_barrier')
    stamp(a,cfg,1)
    V_AF=112; V_GX=144; V_GW=184; V_D1C=152; V_D1S=168
    for pi in range(4):
        for ks in range(2):
            for hh in range(2):
                a.e(f'ds_read_b64_tr_b16 {vr(V_AF+8*pi+4*ks+2*hh,2)}, v{V_XA} offset:{pi*2*XA_PITCH+ks*512+hh*256}')
        if pi==1: lg_01=a.lgtok()
    lg_af=a.lgtok()
    a.e(f'ds_read_b128 {vr(V_GX,4)}, v{V_XA+1}')
    a.e(f'ds_read_b128 {vr(V_GX+4,4)}, v{V_XA+1} offset:{XA_PITCH}')
    a.e(f'ds_read_b128 {vr(V_GW,4)}, v{V_XA+2}')
    lg_gx=a.lgtok()
    for pi in range(4):
        if pi==0: a.wait_lg(lg_01)
        if pi==2: a.wait_lg(lg_af)
        for ks in range(2):
            A=vr(V_AF+8*pi+4*ks,4); c=vr(V_D1C+4*pi,4); s=vr(V_D1S+4*pi,4)
            a.e(f'v_mfma_f32_16x16x32_bf16 {c}, {A}, {vr(V_B1C+4*ks,4)}, {c if ks else 0}')
            a.e(f'v_mfma_f32_16x16x32_bf16 {s}, {A}, {vr(V_B1S+4*ks,4)}, {s if ks else 0}')
    a.wait_lg(lg_gx)
    V_Z=T0+2; V_GOUT=T0+4
    for d in range(4):
        for rr in range(2):
            a.e(f'v_dot2_f32_bf16 v{V_Z+rr}, v{V_GX+4*rr+d}, v{V_GW+d}, {("v%d"%(V_Z+rr)) if d else 0}')
    TT=TA; V_B2=V_AF
    red=[('row_shr:1 row_mask:0xf bank_mask:0xf bound_ctrl:1'),('row_shr:2 row_mask:0xf bank_mask:0xf bound_ctrl:1'),
         ('row_shr:4 row_mask:0xf bank_mask:0xf bound_ctrl:1'),('row_shr:8 row_mask:0xf bank_mask:0xf bound_ctrl:1'),
         ('row_bcast:15 row_mask:0xa bank_mask:0xf'),('row_bcast:31 row_mask:0xc bank_mask:0xf')]
    ri=0
    for pi in range(4):
        cmul_pack(a,V_D1C+4*pi,V_D1S+4*pi,V_TC,V_TS,V_B2+4*pi,TT)
        for _ in range(2 if pi<2 else 1):
            for rr in range(2): a.e(f'v_add_f32_dpp v{V_Z+rr}, v{V_Z+rr}, v{V_Z+rr} {red[ri]}')
            ri+=1
    V_D2=V_D1C; V_D2N=V_D1S
    for pi in range(4):
        a.e(f'v_mfma_f32_16x16x32_bf16 {vr(V_D2+4*pi,4)}, {vr(V_A2,4)}, {vr(V_B2+4*pi,4)}, 0')
        a.e(f'v_mfma_f32_16x16x32_bf16 {vr(V_D2N+4*pi,4)}, {vr(V_A2N,4)}, {vr(V_B2+4*pi,4)}, 0')
    for rr in range(2): a.e(f'v_mul_f32 v{V_Z+rr}, {fl(-LOG2E)}, v{V_Z+rr}')
    for rr in range(2): a.e(f'v_exp_f32 v{V_Z+rr}, v{V_Z+rr}')
    for rr in range(2): a.e(f'v_add_f32 v{V_Z+rr}, 1.0, v{V_Z+rr}')
    for rr in range(2): a.e(f'v_rcp_f32 v{V_GOUT+rr}, v{V_Z+rr}')
    a.e(f'''s_cmp_eq_u32 {wv}, 0
    s_cselect_b32 s74, 1, 0
    s_mov_b32 s75, 0''')
    V_TO=8
    for pi in range(4):
        for rho in range(2):
            re=V_D2+4*pi+2*rho; im=re+1
            a.e(f'v_cndmask_b32 v{im}, v{im}, v{V_D2N+4*pi+2*rho+1}, s[74:75]')
            a.e(f'v_cvt_pk_bf16_f32 v{V_TO+2*pi+rho}, v{re}, v{im}')
    a.e(f'''v_lshrrev_b32 v18, 5, v0
    v_lshlrev_b32 v18, 11, v18
    v_and_b32 v19, 31, v0
    v_lshl_add_u32 v18, v19, 4, v18
    s_lshl_b32 s93, {wv}, 9
    v_add_u32 v18, s93, v18
    s_lshl_b32 s90, s2, 13
    s_add_u32 s90, s90, {WS_T}
    v_mov_b32 v16, v{V_GOUT}
    v_mov_b32 v17, v{V_GOUT+1}
    v_mov_b32 v19, 0
    s_mov_b32 s91, s85''')
    def row_stores():
        if cfg.x.get('x_nors'): return
        a.e(f'''s_add_u32 s93, s90, 4096
        buffer_store_dwordx4 v[8:11], v18, {srd(S_WS)}, s90 offen {cfg.f("stT")}
        buffer_store_dwordx4 v[12:15], v18, {srd(S_WS)}, s93 offen {cfg.f("stT")}
        s_mov_b32 exec_lo, 0
        s_mov_b32 exec_hi, 0x80000000
        buffer_store_dwordx2 v[16:17], v19, {srd(S_WS)}, s91 offen {cfg.f("stG")}
        s_mov_b64 exec, -1''')
    if cfg.x.get('rs_at',9)<0: row_stores()
    stamp(a,cfg,17)
    V_XF=80; V_XR=96; V_VA=102; V_BIAS=108; V_ACC=136; V_WF=192; V_BRAW=220; T0=234
    a.e(f'''s_lshl_b32 s76, {wv}, 12
    v_lshlrev_b32 v{T0}, 7, v1
    v_add_u32 v{T0}, s76, v{T0}
    v_lshrrev_b32 v{T0+1}, 1, v1
    v_xor_b32 v{T0+1}, v{T0+1}, v2
    v_lshl_add_u32 v{V_XR}, v{T0+1}, 4, v{T0}
    v_xor_b32 v{T0+1}, 4, v{T0+1}
    v_lshl_add_u32 v{V_XR+1}, v{T0+1}, 4, v{T0}
    v_mul_u32_u24 v{V_VA}, 1920, v2
    v_lshrrev_b32 v{T0}, 2, v1
    v_mul_u32_u24 v{T0}, 224, v{T0}
    v_and_b32 v{T0+1}, 3, v0
    v_lshlrev_b32 v{T0+1}, 3, v{T0+1}
    v_add3_u32 v{V_VA}, v{V_VA}, v{T0}, v{T0+1}
    v_add_u32 v{V_VA}, 16384, v{V_VA}
    s_cmp_eq_u32 s48, 0
    s_cselect_b32 s76, 192, 0
    v_add_u32 v{V_VA+1}, s76, v{V_VA}
    s_lshl_b32 s76, s48, 5
    v_add_u32 v{V_VA}, s76, v{V_VA}''')
    for st_ in (1,2):
        for j in range(2):
            a.e(f'v_add_u32 v{V_XR+2*st_+j}, {2*st_*SLOT}, v{V_XR+j}')
            a.e(f'v_add_u32 v{V_VA+2*st_+j}, {2*st_*SLOT}, v{V_VA+j}')
    a.e(f'''v_lshlrev_b32 v{T0}, 3, v2
    s_lshl_b32 s76, s48, 5
    s_add_u32 s77, s76, {B1_LDS}
    v_add_u32 v{T0+1}, s77, v{T0}
    s_cmp_eq_u32 s48, 0
    s_cselect_b32 s77, 192, 0
    s_add_u32 s77, s77, {B1_LDS}
    v_add_u32 v{T0}, s77, v{T0}''')
    if cfg.x.get('prio'): a.e(f's_setprio {cfg.x["prio"]}')
    a.e('s_barrier')
    stamp(a,cfg,3)
    a.e(f'''s_mul_i32 s93, {wv}, {2*XA_PITCH}
    s_add_u32 s93, s93, {XA_BASE}
    v_lshl_add_u32 v20, v0, 5, s93
    v_add_u32 v21, s93, v{V_L16}
    ds_write_b128 v20, v[8:11]
    ds_write_b128 v20, v[12:15] offset:16
    s_waitcnt lgkmcnt(0)
    ds_read_b128 v[8:11], v21
    ds_read_b128 v[12:15], v21 offset:1024''')
    def slot_set(c):
        j=c%5; return (j//2, (j%2)*SLOT)
    def w_read1(s,t,hh):
        c,kk=s//2,s%2; st_,off=slot_set(c)
        va=V_VA+2*st_+(1 if t==6 else 0)
        o=off+kk*7680+(32*t if t<6 else 0)
        a.e(f'ds_read_b64_tr_b16 {vr(V_WF+4*t+2*hh,2)}, v{va} offset:{o+960*hh}')
        return a.lgtok()
    def x_read1(s,nb):
        c,kk=s//2,s%2; st_,off=slot_set(c)
        a.e(f'ds_read_b128 {vr(V_XF+8*(s%2)+4*nb,4)}, v{V_XR+2*st_+kk} offset:{off+2048*nb}')
        return a.lgtok()
    for t in range(6): a.e(f'ds_read_b64 {vr(V_BRAW+2*t,2)}, v{T0+1} offset:{32*t}')
    a.e(f'ds_read_b64 {vr(V_BRAW+12,2)}, v{T0}')
    lg_b=a.lgtok()
    tw={}; tx={}
    for nb in range(2): tx[(0,nb)]=x_read1(0,nb)
    for t in range(3):
        for hh in range(2): tw[(0,t,hh)]=w_read1(0,t,hh)
    a.wait_lg(lg_b)
    for t in range(7):
        for d in range(2):
            raw=V_BRAW+2*t+d
            a.e(f'v_lshlrev_b32 v{V_BIAS+4*t+2*d}, 16, v{raw}')
            a.e(f'v_and_b32 v{V_BIAS+4*t+2*d+1}, 0xffff0000, v{raw}')
    for t in range(3,7):
        for hh in range(2): tw[(0,t,hh)]=w_read1(0,t,hh)
    for s in range(16):
        for t in range(7):
            need=max(tw[(s,t,1)],tx[(s,1)])
            n=a.lg-need
            if t%2==0 or t==1 or s==0 or True: a.e(f's_waitcnt lgkmcnt({min(n,15)})')
            for nb in range(2):
                acc=vr(V_ACC+28*nb+4*t,4)
                cc=acc if s>0 else vr(V_BIAS+4*t,4)
                a.e(f'v_mfma_f32_16x16x32_bf16 {acc}, {vr(V_WF+4*t,4)}, {vr(V_XF+8*(s%2)+4*nb,4)}, {cc}')
                if nb==0 and t==1 and s%2==1 and s<15:
                    if cfg.fine==2: stamp(a,cfg,32+2*(s//2))
                    if s==(7 if cfg.x.get('s1two',0) else 13): a.e('s_waitcnt vmcnt(0)')
                    a.e('s_barrier')
                    if cfg.fine==2: stamp(a,cfg,33+2*(s//2))
                ps,pt=(s+1,t-1) if t>=1 else (s,6)
                if (t>=1 and s<15) or (t==0 and 1<=s<=15 and (s,6,nb) not in tw):
                    tw[(ps,pt,nb)]=w_read1(ps,pt,nb)
                if t==2 and s<15: tx[(s+1,nb)]=x_read1(s+1,nb)
                if t==4 and nb==1 and s==cfg.x.get('rs_at',9): row_stores()
    a.e('s_barrier')
    stamp(a,cfg,4)
    V_E=V_WF; V_O=V_BIAS
    a.e(f's_mov_b32 s84, {fl(LOG2E)}'); a.e(f's_mov_b32 s85, {fl(LOG2E)}'); a.e(f's_mov_b32 s86, {fl(30.0)}')
    a.e(f'''s_mul_i32 s87, s7, 7
    s_add_u32 s87, s87, s48
    s_lshr_b32 s87, s87, 1
    s_lshl_b32 s87, s87, 12
    s_mul_i32 s88, s6, {2*RT_STRIDE}
    s_lshl_b32 s89, {wv}, 10
    s_add_u32 s88, s88, s89
    s_add_u32 s88, s88, {WS_ACT}
    s_add_u32 s88, s88, s87
    s_mov_b32 s89, {3*4096}
    s_cmp_eq_u32 s48, 0
    s_cselect_b32 s89, s89, {(-4096+512)&0xffffffff}
    s_add_u32 s89, s89, s88
    v_lshlrev_b32 v4, 3, v0''')
    G=4
    for nb in range(2):
        pairs=[(V_ACC+28*nb+4*t+2*d, V_O+14*nb+2*t+d) for t in range(7) for d in range(2)]
        for g0 in range(0,len(pairs),G):
            grp=pairs[g0:g0+G]
            Tq=lambda i: V_E+4*i
            for i,(h,o) in enumerate(grp): a.e(f'v_pk_mul_f32 {vr(Tq(i),2)}, {vr(h,2)}, s[84:85]')
            for i,(h,o) in enumerate(grp):
                a.e(f'v_min_f32 v{Tq(i)}, s86, v{Tq(i)}'); a.e(f'v_min_f32 v{Tq(i)+1}, s86, v{Tq(i)+1}')
            for i,(h,o) in enumerate(grp):
                a.e(f'v_exp_f32 v{Tq(i)}, v{Tq(i)}'); a.e(f'v_exp_f32 v{Tq(i)+1}, v{Tq(i)+1}')
            for i,(h,o) in enumerate(grp): a.e(f'v_pk_add_f32 {vr(Tq(i)+2,2)}, {vr(Tq(i),2)}, 2.0 op_sel_hi:[1,0]')
            for i,(h,o) in enumerate(grp): a.e(f'v_pk_mul_f32 {vr(Tq(i),2)}, {vr(Tq(i),2)}, {vr(Tq(i)+2,2)}')
            for i,(h,o) in enumerate(grp): a.e(f'v_pk_add_f32 {vr(Tq(i)+2,2)}, {vr(Tq(i),2)}, 2.0 op_sel_hi:[1,0]')
            for i,(h,o) in enumerate(grp):
                a.e(f'v_rcp_f32 v{Tq(i)+2}, v{Tq(i)+2}'); a.e(f'v_rcp_f32 v{Tq(i)+3}, v{Tq(i)+3}')
            for i,(h,o) in enumerate(grp): a.e(f'v_pk_mul_f32 {vr(Tq(i),2)}, {vr(Tq(i),2)}, {vr(Tq(i)+2,2)}')
            for i,(h,o) in enumerate(grp): a.e(f'v_pk_mul_f32 {vr(Tq(i),2)}, {vr(Tq(i),2)}, {vr(h,2)}')
            for i,(h,o) in enumerate(grp): a.e(f'v_cvt_pk_bf16_f32 v{o}, v{Tq(i)}, v{Tq(i)+1}')
            done=min(len(pairs),g0+G)
            if cfg.x.get('actil'):
                for pp in range(3):
                    if g0<4*(pp+1)<=done:
                        a.e(f'buffer_store_dwordx4 {vr(V_O+14*nb+4*pp,4)}, v{V_L16}, {srd(S_WS)}, s88 offen {cfg.f("stA")}')
                        a.e('s_add_u32 s88, s88, 4096')
                if done==14:
                    a.e(f'buffer_store_dwordx2 {vr(V_O+14*nb+12,2)}, v4, {srd(S_WS)}, s89 offen {cfg.f("stA")}')
        if nb==0 and cfg.x.get('actil'):
            a.e(f's_add_u32 s88, s88, {RT_STRIDE-3*4096}')
            a.e(f's_add_u32 s89, s89, {RT_STRIDE}')
    if not cfg.x.get('actil'):
        for nb in range(2):
            for pp in range(3):
                a.e(f'buffer_store_dwordx4 {vr(V_O+14*nb+4*pp,4)}, v{V_L16}, {srd(S_WS)}, s88 offen {cfg.f("stA")}')
                a.e('s_add_u32 s88, s88, 4096')
            a.e(f'buffer_store_dwordx2 {vr(V_O+14*nb+12,2)}, v4, {srd(S_WS)}, s89 offen {cfg.f("stA")}')
            if nb==0:
                a.e(f's_add_u32 s88, s88, {RT_STRIDE-3*4096}')
                a.e(f's_add_u32 s89, s89, {RT_STRIDE}')
    stamp(a,cfg,5)
    parts=p2_table_parts(a,cfg); npre=cfg.x.get('tabpre',4)
    for part in parts[:npre]: part()
    stamp(a,cfg,24)
    a.e('s_mov_b32 s93, 32'); poll_w0(a,S_DBG,'s93',1,0,1)
    a.e('s_waitcnt vmcnt(0)')
    a.e('s_barrier')
    stamp(a,cfg,7)
    p2_small_loads(a,cfg)
    tok_w=a.vmtok()
    for part in parts[npre:]: part()
    stamp(a,cfg,25)
    p2_compute(a,cfg,tok_w)
    tok_y=a.vmtok()
    stamp(a,cfg,8)
    m_g2_ids(a,cfg)
    T=5
    w2_dma_addr(a,V_W2D,T)
    a.e(f"""v_lshrrev_b32 v{T}, 2, v1
    v_lshl_add_u32 v{T+1}, v2, 2, v{T}
    v_lshlrev_b32 v{V_W2A}, 7, v{T+1}
    v_lshrrev_b32 v{T+1}, 1, v{T+1}
    v_and_b32 v{T+1}, 3, v{T+1}
    v_and_b32 v{T}, 3, v0
    v_lshl_add_u32 v{V_W2A}, v{T}, 3, v{V_W2A}
    v_add_u32 v{V_W2A}, s71, v{V_W2A}""")
    for c in (3,2,1,0):
        a.e(f'v_xor_b32 v{T}, {c}, v{T+1}')
        a.e(f'v_lshl_add_u32 v{V_W2A+c}, v{T}, 5, v{V_W2A}')
    stamp(a,cfg,9)
    if not cfg.x.get('ydefer'): a.e('s_waitcnt vmcnt(0)')
    a.e('s_barrier')
    stamp(a,cfg,10)
    m_gemm2(a,cfg,tok_y)
    stamp(a,cfg,13)
    stamps_flush(a,cfg)
    a.e(f's_branch {end}')
    p2_special(a,cfg)

def m_gemm2(a,cfg,tok_y):
    V_ACC=80; V_AF=144; D=8; V_G=72
    RB=lambda t: (8+16*(t%D)) if (t%D)<4 else (160+16*(t%D-4))
    toks={}; tokw={}
    def need(d,k):
        while k not in d: a.bg_pop()
    def a_read1(t,c,hh):
        a.e(f'ds_read_b64_tr_b16 {vr(V_AF+4*c+2*hh,2)}, v{V_W2A+c} offset:{(t%8)*4096+2048*hh}')
        return a.lgtok()
    def push_loads(t):
        b=RB(t)
        if t>=14:
            psi=t-14
            for u in range(4):
                a.bg_push([f's_add_u32 s79, s78, {(16*psi+u)*8192}',
                           f'buffer_load_dwordx4 {vr(b+4*u,4)}, v6, {srd(S_WS)}, s79 offen {cfg.f("ldY")}'],
                          (lambda t=t: toks.__setitem__(t,a.vmtok())) if u==3 else None)
            return
        sc=cfg.f('ldA')
        for q in range(4):
            if t in(3,10):
                l=[f'buffer_load_dwordx2 {vr(b+4*q,2)}, v4, {srd(S_WS)}, s69 offen offset:{1024*q} {sc}',
                   f'buffer_load_dwordx2 {vr(b+4*q+2,2)}, v4, {srd(S_WS)}, s69 offen offset:{1024*q+512} {sc}']
            else:
                l=[f'buffer_load_dwordx4 {vr(b+4*q,4)}, v{V_L16}, {srd(S_WS)}, s69 offen offset:{1024*q} {sc}']
            if q==3: l.append('s_add_u32 s69, s69, 4096')
            a.bg_push(l,(lambda t=t: toks.__setitem__(t,a.vmtok())) if q==3 else None)
    def push_w2(t):
        for v in range(4):
            a.bg_push(w2_group(t,v,V_W2D),(lambda t=t: tokw.__setitem__(t,a.vmtok())) if v==3 else None)
    a.e('v_lshlrev_b32 v4, 3, v0')
    npre=cfg.x.get('npre',4)
    for t in range(npre): push_loads(t)
    a.bg_flush()
    if cfg.x.get('ydefer'):
        for nb in range(2):
            a.e(f'buffer_store_dwordx4 {vr(P2["V_B"]+4*nb,4)}, v{V_L16}, {srd(S_WS)}, s62 offen offset:{1024*nb} {cfg.f("stY")}')
        tok_y=a.vmtok()
    nxt=npre
    a.e(f"""v_lshlrev_b32 v5, 4, v1
    v_lshlrev_b32 v6, 15, v2
    v_add_u32 v6, v6, v5
    v_add_u32 v7, s71, v{V_L16}
    s_lshl_b32 s78, {wv}, 19
    s_add_u32 s78, s78, s74
    s_add_u32 s78, s78, {WS_Y}""")
    V_AF2=224; ACC2=[40,56,160,176]; tg={}
    def g_read(psi,c):
        AFp=(V_AF2 if psi%2==0 else V_AF)
        a.e(f'ds_read_b128 {vr(AFp+4*c,4)}, v7 offset:{GSLOT[psi]*4096+c*1024}'); tg[(psi,c)]=a.lgtok()
    def swaps(t):
        b=RB(t)
        for (i,j) in[(0,1),(0,2),(0,3),(1,2),(1,3),(2,3)]:
            a.e(f'v_swap_b32 v{b+4*i+j}, v{b+4*j+i}')
    ta={}
    for c in range(4):
        for hh in range(2): ta[(0,c,hh)]=a_read1(0,c,hh)
    a.bg_set(cfg.x.get('g2r',2),mfma_weight=2)
    TS3=cfg.x.get('ts3',10)
    for t in range(18):
        if cfg.fine==1: stamp(a,cfg,32+t)
        if t<=14:
            need(toks,t); a.wait_vm(toks[t])
        if t+1 in range(8,14):
            need(tokw,t+1); a.wait_vm(tokw[t+1])
        k_=0
        while nxt<14 and nxt-D<t and k_<2 and t<14:
            if nxt-D==t-0 and False: break
            if nxt-D>=t: break
            push_loads(nxt); nxt+=1; k_+=1
        if 1<=t and t-1+8<14: push_w2(t-1+8)
        if t==TS3+1: push_loads(14); push_loads(15)
        if t==TS3+2: push_loads(16); push_loads(17)
        b=RB(t)
        if t<14:
            for c in range(4):
                n=a.lg-ta[(t,c,1)]
                a.e(f's_waitcnt lgkmcnt({min(n,15)})')
                A=vr(V_AF+4*c,4)
                for q in range(4):
                    d=vr(V_ACC+16*q+4*c,4)
                    r=a.bg_rate
                    if q<2: a.bg_rate=0
                    a.e(f'v_mfma_f32_16x16x32_bf16 {d}, {A}, {vr(b+4*q,4)}, {d if t else 0}')
                    if q<2:
                        if c>=1 and t<13: ta[(t+1,c-1,q)]=a_read1(t+1,c-1,q)
                        if c==0 and t>=1: ta[(t,3,q)]=a_read1(t,3,q)
                    a.bg_rate=r
        else:
            psi=t-14; AFp=(V_AF2 if psi%2==0 else V_AF)
            if psi==0: swaps(14)
            for c in range(4):
                a.e(f's_waitcnt lgkmcnt({min(a.lg-tg[(psi,c)],15)})')
                for q in range(4):
                    d=vr(ACC2[q]+4*c,4)
                    a.e(f'v_mfma_f32_16x16x32_bf16 {d}, {vr(AFp+4*c,4)}, {vr(b+4*q,4)}, {d if psi else 0}')
                    if psi<3 and c==0 and q==0:
                        for c2 in range(4): g_read(psi+1,c2)
                    if psi<3 and c==1 and q==0:
                        need(toks,t+1); a.wait_vm(toks[t+1]); swaps(t+1)
        if cfg.x.get('ydefer') and t==cfg.x['ydefer']:
            a.wait_vm(tok_y); a.e('s_barrier')
        if t==TS3:
            a.bg_flush()
            a.e(f's_mov_b32 s93, {WS_CNT+16*128}')
            poll_w0(a,S_WS,'s93',NS3,128,256//NS3)
            a.e('s_barrier')
            a.e(f's_add_u32 s75, s74, {WS_G}')
            a.e(f'buffer_load_dwordx4 {vr(V_G,4)}, v5, {srd(S_WS)}, s75 offen {cfg.f("ldW")}')
            tok_g=a.vmtok()
        if t==13:
            a.e('s_barrier')
            for c in range(4): g_read(0,c)
            stamp(a,cfg,11)
    a.bg_flush(); a.bg_set(0)
    a.need_vm(tok_g)
    for q in range(4): a.e(f'v_sub_f32 v{V_G+q}, 1.0, v{V_G+q}')
    for q in range(4):
        for h in range(8):
            a.e(f'v_pk_fma_f32 {vr(V_ACC+16*q+2*h,2)}, {vr(V_ACC+16*q+2*h,2)}, {vr(V_G+(q&~1),2)}, {vr(ACC2[q]+2*h,2)} op_sel:[0,{q&1},0] op_sel_hi:[1,{q&1},1]')
    stamp(a,cfg,12)
    a.e(f'v_add_u32 v7, s71, v{V_L16}')
    for w in range(4):
        a.e(f's_cmp_lg_u32 {wv}, {w}')
        a.e(f's_cbranch_scc1 L_k3_w{w}')
        a.cond_begin()
        slot=0
        for q in range(4):
            if q==w: continue
            for c in range(4):
                a.e(f'ds_write_b128 v7, {vr(V_ACC+16*q+4*c,4)} offset:{slot*4096+c*1024}')
            slot+=1
        if w!=0:
            for h in range(8): a.e(f'v_pk_mov_b32 {vr(V_ACC+2*h,2)}, {vr(V_ACC+16*w+2*h,2)}, {vr(V_ACC+16*w+2*h,2)} op_sel:[0,1]')
        a.cond_end()
        a.e(f'L_k3_w{w}:')
    a.e('s_waitcnt lgkmcnt(0)'); a.e('s_barrier')
    V_RD=160
    for k in range(1,4):
        a.e(f"""s_add_u32 s76, {wv}, {k}
        s_and_b32 s76, s76, 3
        s_lshl_b32 s77, s76, 15
        s_cmp_lt_u32 {wv}, s76
        s_cselect_b32 s79, 0, 1
        s_sub_u32 s79, {wv}, s79
        s_lshl_b32 s79, s79, 12
        s_add_u32 s77, s77, s79
        v_add_u32 v7, s77, v{V_L16}""")
        for c in range(4): a.e(f'ds_read_b128 {vr(V_RD+16*(k-1)+4*c,4)}, v7 offset:{c*1024}')
    a.e(f"""v_lshlrev_b32 v5, 10, v1
    v_lshl_add_u32 v5, v2, 3, v5
    s_lshl_b32 s76, s72, 17
    s_lshl_b32 s77, {wv}, 15
    s_add_u32 s76, s76, s77
    s_lshl_b32 s77, s73, 14
    s_add_u32 s76, s76, s77
    s_lshl_b32 s77, s68, 7
    s_add_u32 s76, s76, s77""")
    for k in range(3):
        a.e(f's_waitcnt lgkmcnt({8-4*k})')
        for h in range(8): a.e(f'v_pk_add_f32 {vr(V_ACC+2*h,2)}, {vr(V_ACC+2*h,2)}, {vr(V_RD+16*k+2*h,2)}')
    V_O=8
    for c in range(4):
        a.e(f'v_cvt_pk_bf16_f32 v{V_O+2*c}, v{V_ACC+4*c}, v{V_ACC+4*c+1}')
        a.e(f'v_cvt_pk_bf16_f32 v{V_O+2*c+1}, v{V_ACC+4*c+2}, v{V_ACC+4*c+3}')
        a.e(f'buffer_store_dwordx2 {vr(V_O+2*c,2)}, v5, {srd(S_OUT)}, s76 offen offset:{32*c} {str(cfg.x.get("outf","")).replace("_"," ")}')

P2=dict(V_U=8,V_W=40,V_GT=48,V_Q=56,T0=64,V_F64R=80,V_F64I=96,V_F32R=112,V_F32I=128,V_T1C=144,V_T1S=152,V_T3C=160,V_T3S=168,V_DR=176,V_DI=184,V_B=192)
V_FW2D=246
def f_stream(a,cfg,end):
    a.e('L_F:')
    a.e('s_mov_b32 s90, 1')
    if cfg.x.get('fprio'): a.e(f's_setprio {cfg.x["fprio"]}')
    a.e(f'''s_lshr_b32 s49, s2, 5
    s_and_b32 s50, s2, 31
    s_lshl_b32 s51, s6, 17
    s_lshl_b32 s56, {wv}, 13
    s_add_u32 s51, s51, s56
    s_mul_i32 s52, s7, 224
    s_mul_i32 s56, {wv}, 14336
    s_add_u32 s52, s52, s56
    s_lshl_b32 s53, {wv}, 10
    s_mul_i32 s54, {wv}, 960
    s_add_u32 s54, s54, 16384''')
    T=6; V_XD=4; V_WD=5
    a.e(f'''v_lshrrev_b32 v{T}, 3, v0
    v_lshlrev_b32 v{V_XD}, 10, v{T}
    v_lshrrev_b32 v{T}, 1, v{T}
    s_and_b32 s56, {wv}, 1
    s_lshl_b32 s56, s56, 2
    v_add_u32 v{T}, s56, v{T}
    v_and_b32 v{T+1}, 7, v0
    v_xor_b32 v{T}, v{T}, v{T+1}
    v_lshl_add_u32 v{V_XD}, v{T}, 4, v{V_XD}
    v_mul_u32_u24 v{T}, 4682, v0
    v_lshrrev_b32 v{T}, 16, v{T}
    v_mul_u32_u24 v{V_WD}, 3584, v{T}
    v_mul_u32_u24 v{T}, 14, v{T}
    v_sub_u32 v{T}, v0, v{T}
    v_lshl_add_u32 v{V_WD}, v{T}, 4, v{V_WD}
    v_mov_b32 v{V_LC}, {LC_BASE}''')
    a.e(f'''s_lshl_b32 s56, s49, 18
    s_lshl_b32 s57, s50, 10
    s_add_u32 s56, s56, s57
    s_lshl_b32 s57, {wv}, 16
    s_add_u32 s56, s56, s57
    s_add_u32 s58, s56, 32768
    s_mul_i32 s57, {wv}, {2*XA_PITCH}
    s_add_u32 s57, s57, {XA_BASE}''')
    a.e('s_waitcnt lgkmcnt(0)')
    stamp(a,cfg,26)
    a.e(f's_cmp_lg_u32 {wv}, 0'); a.e('s_cbranch_scc1 L_a_r0'); a.cond_begin()
    a.e(f's_mov_b32 m0, {GW_LDS}'); a.e('s_nop 0')
    a.e(f'buffer_load_dwordx4 v{V_L16}, {srd(S_GW)}, 0 offen lds')
    a.cond_end(); a.e('L_a_r0:')
    a.e(f's_cmp_lg_u32 {wv}, 1'); a.e('s_cbranch_scc1 L_a_r1'); a.cond_begin()
    a.e(f's_mul_i32 s64, s7, 224'); a.e(f's_mov_b32 m0, {B1_LDS}'); a.e('s_mov_b64 exec, 0x3fff')
    a.e(f'buffer_load_dwordx4 v{V_L16}, {srd(S_B1)}, s64 offen lds')
    a.e('s_mov_b64 exec, -1')
    a.cond_end(); a.e('L_a_r1:')
    tok_c={}
    def chunk_groups(c):
        gs=[]
        for u in range(4):
            gs.append(([f's_add_u32 m0, s53, {SB(c)+u*4096}', f's_add_u32 s55, s51, {u*32768+c*128}',
                        f'buffer_load_dwordx4 v{V_XD}, {srd(S_X)}, s55 offen lds'],None))
        for u in range(4):
            cb=(lambda c=c: tok_c.__setitem__(c,a.vmtok())) if u==3 else None
            gs.append(([f's_add_u32 m0, s54, {SB(c)+u*3840}', f's_add_u32 s55, s52, {u*57344+c*229376}',
                        's_mov_b32 exec_hi, 0x00ffffff',
                        f'buffer_load_dwordx4 v{V_WD}, {srd(S_W1)}, s55 offen lds',
                        's_mov_b32 exec_hi, -1'],cb))
        return gs
    def push_chunk(c):
        for g_ in chunk_groups(c): a.bg_push(*g_)
    def wait_role(tok,e3,e2):
        n=a.vm-tok; lab=f'L_wr{len(a.items)}'
        a.e(f's_cmp_eq_u32 {wv}, 3'); a.e(f's_cbranch_scc1 {lab}_3')
        a.e('s_cmp_eq_u32 s66, 0'); a.e(f's_cbranch_scc1 {lab}_2')
        a.e(f's_waitcnt vmcnt({n})'); a.e(f's_branch {lab}_e')
        a.e(f'{lab}_3:'); a.e(f's_waitcnt vmcnt({min(n+e3,62)})'); a.e(f's_branch {lab}_e')
        a.e(f'{lab}_2:'); a.e(f's_waitcnt vmcnt({min(n+e2,62)})')
        a.e(f'{lab}_e:')
    def chunk_now(c):
        if cfg.fine==3: stamp(a,cfg,48+2*c%16 if False else 40+c)
        push_chunk(c); a.bg_flush()
        if cfg.fine==3: stamp(a,cfg,50+c)
    a.e(f'''s_mov_b32 m0, s57
    s_add_u32 s57, s57, {XA_PITCH}
    buffer_load_dwordx4 v{V_L16}, {srd(S_X)}, s56 offen lds
    s_mov_b32 m0, s57
    s_nop 0
    buffer_load_dwordx4 v{V_L16}, {srd(S_X)}, s58 offen lds''')
    tok_xa=a.vmtok()
    st={'roles':None,'wt':None}
    V={}
    def do_roles(c):
        st['roles']=c
        a.e('''s_lshr_b32 s59, s50, 3
        s_lshr_b32 s60, s50, 2
        s_and_b32 s60, s60, 1
        s_and_b32 s61, s50, 3
        s_lshl_b32 s62, s59, 4
        s_lshl_b32 s63, s60, 10
        s_add_u32 s62, s62, s63
        s_lshl_b32 s63, s61, 8
        s_add_u32 s62, s62, s63
        s_lshl_b32 s63, s59, 11
        s_lshl_b32 s64, s60, 10
        s_add_u32 s63, s63, s64
        s_lshl_b32 s64, s61, 8
        s_add_u32 s63, s63, s64''')
        V_WR=8; V_WI=24; V_WO=7
        a.e(f's_cmp_lg_u32 {wv}, {9 if cfg.x.get("x_norole") else 3}'); a.e('s_cbranch_scc1 L_a_r3'); a.cond_begin()
        a.e(f'''v_lshrrev_b32 v{V_WO}, 2, v0
        v_mul_u32_u24 v{V_WO}, 514, v{V_WO}
        v_and_b32 v{T}, 3, v0
        v_lshl_add_u32 v{V_WO}, v{T}, 4, v{V_WO}
        s_mul_i32 s64, s62, 514
        s_lshl_b32 s65, s49, 6
        s_add_u32 s64, s64, s65''')
        for r in range(4):
            a.e(f'buffer_load_dwordx4 {vr(V_WR+4*r,4)}, v{V_WO}, {srd(S_WR)}, s64 offen')
            a.e(f'buffer_load_dwordx4 {vr(V_WI+4*r,4)}, v{V_WO}, {srd(S_WI)}, s64 offen')
            if r<3: a.e(f's_add_u32 s64, s64, {64*514}')
        a.cond_end(); a.e('L_a_r3:')
        V_SP=40; V_J=48; V_JR=49
        a.e(f'''s_lshl_b32 s65, s49, 2
        s_xor_b32 s66, {wv}, 2
        s_or_b32 s66, s66, s65''')
        a.e('s_cmp_lg_u32 s66, 0'); a.e('s_cbranch_scc1 L_a_r2'); a.cond_begin()
        a.e(f'''v_lshlrev_b32 v{V_J}, 6, v2
        v_add_u32 v{V_J}, v{V_J}, v1
        v_add_u32 v{V_J}, s62, v{V_J}
        v_sub_u32 v{V_JR}, 2048, v{V_J}
        v_and_b32 v{V_JR}, 2047, v{V_JR}
        v_mul_u32_u24 v{V_J}, 514, v{V_J}
        v_mul_u32_u24 v{V_JR}, 514, v{V_JR}''')
        for n,(S,vv,off) in enumerate([(S_WR,V_J,0),(S_WR,V_J,512),(S_WR,V_JR,0),(S_WR,V_JR,512),(S_WI,V_J,0),(S_WI,V_J,512),(S_WI,V_JR,0),(S_WI,V_JR,512)]):
            a.e(f'buffer_load_ushort v{V_SP+n}, v{vv}, {srd(S)}, 0 offen offset:{off}')
        a.cond_end(); a.e('L_a_r2:')
        tok_role=a.vmtok()
        V.update(V_WR=V_WR,V_WI=V_WI,V_SP=V_SP,tok_role=tok_role)
    def do_wt(c):
        st['wt']=c
        T0=92; V_B1S=68; V_WR=V['V_WR']; V_WI=V['V_WI']; V_SP=V['V_SP']; tok_role=V['tok_role']
        a.e(f's_cmp_lg_u32 {wv}, {9 if cfg.x.get("x_norole") else 3}'); a.e('s_cbranch_scc1 L_a_w3')
        a.wait_vm(tok_role); a.cond_begin()
        V_WP=188
        a.e('s_mov_b32 s78, 0x05040100'); a.e('s_mov_b32 s79, 0x07060302')
        for kk in range(8):
            for r in range(4):
                a.e(f'v_perm_b32 v{V_WP+4*kk+r}, v{V_WI+4*r+(kk>>1)}, v{V_WR+4*r+(kk>>1)}, s{78+(kk&1)}')
        a.e(f'''v_and_b32 v{T0+4}, 3, v0
        v_lshlrev_b32 v{T0+5}, 16, v{T0+4}
        v_lshrrev_b32 v{T0+6}, 2, v0
        v_lshl_add_u32 v{T0+5}, v{T0+6}, 4, v{T0+5}
        s_lshl_b32 s76, s49, 2
        v_add_u32 v{T0+4}, s76, v{T0+4}
        v_cmp_eq_u32 vcc, 0, v{T0+4}
        v_mov_b32 v{T0+6}, {OOB}
        v_cndmask_b32 v{T0+6}, v{T0+5}, v{T0+6}, vcc
        s_lshl_b32 s76, s49, 18
        s_add_u32 s76, s76, s63
        s_add_u32 s76, s76, {WS_WT}''')
        for kk in range(8):
            a.e(f'buffer_store_dwordx4 {vr(V_WP+4*kk,4)}, v{T0+6 if kk==0 else T0+5}, {srd(S_WS)}, s76 offen {cfg.f("stW")}')
            if kk<7: a.e('s_add_u32 s76, s76, 8192')
        a.cond_end(); a.e('L_a_w3:')
        a.e('s_cmp_lg_u32 s66, 0'); a.e('s_cbranch_scc1 L_a_w2')
        a.wait_vm(tok_role); a.cond_begin()
        for n in range(8): a.e(f'v_lshlrev_b32 v{V_SP+n}, 16, v{V_SP+n}')
        s=V_SP; t=V_B1S
        a.e(f'''v_add_f32 v{t}, v{s}, v{s+2}
        v_add_f32 v{t+1}, v{s+1}, v{s+3}
        v_sub_f32 v{t+2}, v{s+4}, v{s+6}
        v_sub_f32 v{t+3}, v{s+5}, v{s+7}
        v_add_f32 v{t+4}, v{t}, v{t+1}
        v_add_f32 v{t+5}, v{t+2}, v{t+3}
        v_sub_f32 v{t+6}, v{t}, v{t+1}
        v_sub_f32 v{t+7}, v{t+2}, v{t+3}
        v_mul_f32 v{t+4}, {fl(0.25)}, v{t+4}
        v_mul_f32 v{t+5}, {fl(0.25)}, v{t+5}
        v_mul_f32 v{t+6}, {fl(0.25)}, v{t+6}
        v_mul_f32 v{t+7}, {fl(0.25)}, v{t+7}
        v_cvt_pk_bf16_f32 v{t}, v{t+4}, v{t+5}
        v_cvt_pk_bf16_f32 v{t+1}, v{t+6}, v{t+7}
        v_lshlrev_b32 v{t+2}, 4, v1
        v_lshl_add_u32 v{t+2}, v2, 2, v{t+2}
        s_add_u32 s77, s63, {WS_QT}
        s_add_u32 s76, s63, {WS_WT}
        buffer_store_dword v{t}, v{t+2}, {srd(S_WS)}, s76 offen {cfg.f("stW")}
        buffer_store_dword v{t+1}, v{t+2}, {srd(S_WS)}, s77 offen {cfg.f("stW")}''')
        a.cond_end(); a.e('L_a_w2:')
    RL=cfg.x.get('rl_after',5); WT=cfg.x.get('wt_after',7)
    def chunk_plus(c):
        chunk_now(c)
        if RL==c: do_roles(c)
        if WT==c: do_wt(c)
    def wait_chunk(c):
        e3=e2=0
        if st['roles'] is not None and st['roles']>=c: e3+=8; e2+=8
        if st['wt'] is not None and st['wt']>=c: e3+=8; e2+=2
        if e3==0: a.wait_vm(tok_c[c])
        else: wait_role(tok_c[c],e3,e2)
    a.e(f'''s_lshl_b32 s65, s49, 2
    s_xor_b32 s66, {wv}, 2
    s_or_b32 s66, s66, s65''')
    chunk_plus(0)
    chunk_plus(1)
    if cfg.x.get('fprio'): a.e('s_setprio 0')
    stamp(a,cfg,0)
    a.wait_vm(tok_xa); a.e('s_barrier')
    stamp(a,cfg,1)
    chunk_plus(2)
    wait_chunk(0); a.e('s_barrier')
    chunk_plus(3)
    wait_chunk(1); a.e('s_barrier')
    chunk_plus(4)
    wait_chunk(2); a.e('s_barrier')
    chunk_plus(5)
    wait_chunk(3); a.e('s_barrier')
    chunk_plus(6)
    wait_chunk(4); a.e('s_barrier')
    chunk_plus(7)
    wait_chunk(5); a.e('s_barrier')
    m_g2_ids(a,cfg)
    w2_dma_addr(a,V_FW2D,244)
    wait_chunk(6); a.e('s_barrier')
    a.e('s_waitcnt vmcnt(0)'); a.e('s_barrier')
    a.e('s_and_b32 s92, s5, 3'); a.e('s_lshl_b32 s92, s92, 6')
    ssignal(a,S_DBG,'s92')
    a.e('s_barrier')
    stamp(a,cfg,4)
    def w2slots(lo,hi):
        for t in range(lo,hi):
            for v in range(4): a.bg_push(w2_group(t,v,V_FW2D))
        a.bg_flush()
    w2slots(0,cfg.x.get('w2pre',4))
    stamp(a,cfg,5)
    a.e(f's_cmp_lg_u32 {wv}, 0'); a.e('s_cbranch_scc1 L_f_s1'); a.cond_begin()
    if cfg.x.get('s1drain',1): a.e('s_waitcnt vmcnt(0)')
    a.e('s_mov_b32 s93, 0')
    spin_global(a,S_DBG,'s93',4,64,64)
    p2_t_loads(a,cfg)

    a.cond_end(); a.e('L_f_s1:')
    stamp(a,cfg,6)
    a.e('s_waitcnt vmcnt(0)'); a.e('s_barrier')
    a.e(f's_lshl_b32 s92, s6, 7'); a.e(f's_add_u32 s92, s92, {WS_CNT}')
    ssignal(a,S_WS,'s92')
    stamp(a,cfg,7)
    w2slots(cfg.x.get('w2pre',4),8)
    a.e('s_waitcnt vmcnt(0)'); a.e('s_barrier')
    a.e('s_lshl_b32 s56, s4, 5'); a.e('s_add_u32 s56, s56, s5')
    a.e('s_cmp_lg_u32 s56, 0'); a.e('s_cbranch_scc1 L_f_nospec'); a.cond_begin()
    a.e('s_barrier')
    a.cond_end(); a.e('L_f_nospec:')
    a.e(f's_lshl_b32 s93, s72, 7'); a.e(f's_add_u32 s93, s93, {WS_CNT}')
    poll_w0(a,S_WS,'s93',1,0,16)
    a.e('s_barrier')
    if cfg.x.get('ydefer'): a.e('s_barrier')
    a.e(f's_and_b32 s92, s2, {NS3-1}'); a.e('s_lshl_b32 s92, s92, 7'); a.e(f's_add_u32 s92, s92, {WS_CNT+16*128}')
    ssignal(a,S_WS,'s92')
    T0=80; TA=92
    a.e(f"""s_lshl_b32 s75, s68, 6
    v_add_u32 v{T0}, s75, v1
    v_cvt_f32_u32 v{T0}, v{T0}
    s_lshl_b32 s75, {wv}, 6
    v_lshlrev_b32 v{T0+1}, 2, v2
    v_add_u32 v{T0+1}, s75, v{T0+1}
    v_cvt_f32_u32 v{T0+1}, v{T0+1}""")
    for c in range(4):
        a.e(f'v_add_f32 v{T0+2+c}, {fl(16*c)}, v{T0}' if c else f'v_mov_b32 v{T0+2}, v{T0}')
        a.e(f'v_mul_f32 v{T0+2+c}, {fl(1/512)}, v{T0+2+c}')
        a.e(f'v_mul_f32 v{T0+6+c}, v{T0+1}, v{T0+2+c}')
    def pk(d): return lambda c,s: a.e(f'v_cvt_pk_bf16_f32 v{d}, v{c}, v{s}')
    angles(a,[(T0+2+c,T0+6+c,16*psi+u,(None,None,pk(V_GF+16*psi+4*c+u)),False) for (psi,c,u) in G_ITEMS],TA)
    a.e(f"""s_cmp_eq_u32 {wv}, 0
    s_cselect_b32 s76, 0xffff, 0
    s_mov_b32 s77, 0
    v_mov_b32 v{T0}, {hex(0xBF003F00)}
    v_and_b32 v{T0+1}, 1, v1
    v_lshlrev_b32 v{T0+1}, 31, v{T0+1}
    v_xor_b32 v{T0}, v{T0}, v{T0+1}""")
    for c in range(4): a.e(f'v_cndmask_b32 v{V_GF+4*c}, v{V_GF+4*c}, v{T0}, s[76:77]')
    a.e(f'v_add_u32 v7, s71, v{V_L16}')
    a.e('s_barrier')
    for psi in range(4):
        for c in range(4):
            a.e(f'ds_write_b128 v7, {vr(V_GF+16*psi+4*c,4)} offset:{GSLOT[psi]*4096+c*1024}')
    a.e('s_waitcnt lgkmcnt(0)'); a.e('s_barrier')
    stamps_flush(a,cfg)
    a.e(f's_branch {end}')

def p2_t_loads(a,cfg):
    T0=64
    a.e(f'''s_lshl_b32 s56, s4, 5
    s_add_u32 s56, s56, s5
    v_lshrrev_b32 v{T0}, 5, v0
    v_lshlrev_b32 v{T0}, 18, v{T0}
    v_bfe_u32 v{T0+1}, v0, 1, 4
    v_lshl_add_u32 v{T0}, v{T0+1}, 13, v{T0}
    v_and_b32 v{T0+1}, 1, v0
    v_lshl_add_u32 v{T0}, v{T0+1}, 4, v{T0}
    s_lshl_b32 s57, s56, 5
    s_add_u32 s57, s57, {WS_T}''')
    for ks in range(4):
        for mb in range(2):
            a.e(f's_mov_b32 m0, {TB_BASE+2048*ks+1024*mb}')
            a.e(f's_add_u32 s58, s57, {ks*524288+mb*131072}')
            a.e(f'buffer_load_dwordx4 v{T0}, {srd(S_WS)}, s58 offen {cfg.f("ldT")} lds')
    a.e(f's_lshl_b32 s57, s56, 13'); a.e(f's_add_u32 s57, s57, {WS_WT}')
    for j in range(8):
        a.e(f's_mov_b32 m0, {WB_BASE+1024*j}')
        a.e(f's_add_u32 s58, s57, {1024*j}')
        a.e(f'buffer_load_dwordx4 v{V_L16}, {srd(S_WS)}, s58 offen {cfg.f("ldW")} lds')

def p2_small_loads(a,cfg):
    V_W,V_GT,V_Q,T0=P2['V_W'],P2['V_GT'],P2['V_Q'],P2['T0']
    a.e(f'''s_lshl_b32 s56, s4, 5
    s_add_u32 s56, s56, s5
    s_lshl_b32 s60, s56, 13
    s_lshl_b32 s61, {wv}, 11
    s_add_u32 s60, s60, s61
    s_add_u32 s62, s60, {WS_WT}
    s_add_u32 s63, s61, {WS_G}
    s_add_u32 s64, s61, {WS_QT}''')
    for nb in range(2): a.e(f'buffer_load_dwordx4 {vr(V_GT+4*nb,4)}, v{V_L16}, {srd(S_WS)}, s63 offen offset:{1024*nb} {cfg.f("ldW")}')
    a.e(f'''s_cmp_eq_u32 s56, 0
    s_cselect_b32 s65, 0, {OOB}
    v_add_u32 v{T0+2}, s65, v{V_L16}''')
    for eh in range(2): a.e(f'buffer_load_dwordx4 {vr(V_Q+4*eh,4)}, v{T0+2}, {srd(S_WS)}, s64 offen offset:{1024*eh} {cfg.f("ldW")}')

def p2_table_parts(a,cfg):
    p=P2; T0=232; TA=200
    def pk(dr,di):
        def f(c,s):
            a.e(f'v_cvt_pk_bf16_f32 v{dr}, v{c}, v{s}')
            a.e(f'v_cvt_pk_bf16_f32 v{di}, -v{s}, v{c}')
        return f
    def part0():
        a.e(f'''s_lshl_b32 s83, {wv}, 4
        v_add_u32 v{T0}, s83, v1
        v_cvt_f32_u32 v{T0}, v{T0}
        v_lshlrev_b32 v{T0+2}, 2, v2
        v_cvt_f32_u32 v{T0+2}, v{T0+2}
        v_mul_f32 v{T0+1}, {fl(1/64)}, v{T0}
        v_mul_f32 v{T0+3}, v{T0+2}, v{T0+1}''')
        angles(a,[(T0+1,T0+3,16*ks+u,(None,None,pk(p['V_F64R']+4*ks+u,p['V_F64I']+4*ks+u)),False) for ks in range(3) for u in range(4)],TA)
    def part1():
        angles(a,[(T0+1,T0+3,16*ks+u,(None,None,pk(p['V_F64R']+4*ks+u,p['V_F64I']+4*ks+u)),False) for ks in range(3,4) for u in range(4)],TA)
        a.e(f'''v_mul_f32 v{T0+1}, {fl(1/2048)}, v{T0}
        v_mul_f32 v{T0+3}, v{T0+2}, v{T0+1}''')
        angles(a,[(T0+1,T0+3,16*mb+r,(p['V_T1C']+4*mb+r,p['V_T1S']+4*mb+r,None),True) for mb in range(2) for r in range(4)],TA)
    def part2():
        a.e(f'v_cvt_f32_u32 v{T0+7}, v1')
        for eh in range(2):
            a.e(f'''v_add_f32 v{T0+1}, {fl(16*eh)}, v{T0+7}
            v_mul_f32 v{T0+1}, {fl(1/32)}, v{T0+1}
            v_mul_f32 v{T0+3}, v{T0+2}, v{T0+1}''')
            angles(a,[(T0+1,T0+3,16*mb+u,(None,None,pk(p['V_F32R']+8*eh+4*mb+u,p['V_F32I']+8*eh+4*mb+u)),False) for mb in range(2) for u in range(4)],TA)
    def part3():
        a.e(f'''v_cvt_f32_u32 v{T0}, s83
        v_add_f32 v{T0+2}, v{T0}, v{T0+2}''')
        for nb in range(2):
            a.e(f'''v_add_f32 v{T0+1}, {fl(16*nb)}, v{T0+7}
            v_mul_f32 v{T0+1}, {fl(1/2048)}, v{T0+1}
            v_mul_f32 v{T0+3}, v{T0+2}, v{T0+1}''')
            angles(a,[(T0+1,T0+3,r,(p['V_T3C']+4*nb+r,p['V_T3S']+4*nb+r,None),True) for r in range(4)],TA)
    return [part0,part1,part2,part3]

def p2_compute(a,cfg,tok_w):
    p=P2
    V_U,V_W,V_GT,T0=p['V_U'],p['V_W'],p['V_GT'],p['T0']
    V_F64R,V_F64I,V_F32R,V_F32I=p['V_F64R'],p['V_F64I'],p['V_F32R'],p['V_F32I']
    V_T1C,V_T1S,V_T3C,V_T3S=p['V_T1C'],p['V_T1S'],p['V_T3C'],p['V_T3S']
    V_DR,V_DI,V_B=p['V_DR'],p['V_DI'],p['V_B']; TT=200
    a.e(f'''v_lshrrev_b32 v{T0+4}, 1, v2
    v_lshlrev_b32 v{T0+4}, 5, v{T0+4}
    v_lshl_add_u32 v{T0+4}, v1, 1, v{T0+4}
    v_and_b32 v{T0+5}, 1, v2
    v_add_u32 v{T0+4}, v{T0+4}, v{T0+5}
    v_lshlrev_b32 v{T0+4}, 4, v{T0+4}
    v_add_u32 v{T0+4}, {TB_BASE}, v{T0+4}''')
    for ks in range(4):
        for mb in range(2):
            a.e(f'ds_read_b128 {vr(V_U+16*mb+4*ks,4)}, v{T0+4} offset:{2048*ks+1024*mb}')
    V_WR=216; V_WI=224
    a.e(f's_lshl_b32 s65, {wv}, 11'); a.e(f's_add_u32 s65, s65, {WB_BASE}'); a.e(f'v_add_u32 v{T0+6}, s65, v{V_L16}')
    for eh in range(2): a.e(f'ds_read_b128 {vr(V_W+4*eh,4)}, v{T0+6} offset:{1024*eh}')
    for ks in range(4):
        a.e(f's_waitcnt lgkmcnt({8-2*ks})')
        for mb in range(2):
            A=vr(V_U+16*mb+4*ks,4)
            for (D,Fm) in((V_DR,V_F64R),(V_DI,V_F64I)):
                d=vr(D+4*mb,4)
                a.e(f'v_mfma_f32_16x16x32_bf16 {d}, {A}, {vr(Fm+4*ks,4)}, {d if ks else 0}')
    a.e('s_waitcnt lgkmcnt(0)')
    for e in range(8):
        a.e(f'v_lshlrev_b32 v{V_WR+e}, 16, v{V_W+e}')
        a.e(f'v_and_b32 v{V_WI+e}, 0xffff0000, v{V_W+e}')
    for mb in range(2): cmul_pack(a,V_DR+4*mb,V_DI+4*mb,V_T1C+4*mb,V_T1S+4*mb,V_B+4*mb,TT)
    for mb in range(2):
        for eh in range(2):
            for (D,Fm) in((V_DR,V_F32R),(V_DI,V_F32I)):
                d=vr(D+4*eh,4)
                a.e(f'v_mfma_f32_16x16x32_bf16 {d}, {vr(Fm+8*eh+4*mb,4)}, {vr(V_B+4*mb,4)}, {d if mb else 0}')
    a.e(f'''s_lshl_b32 s65, {wv}, 11
    s_add_u32 s65, s65, {XB_BASE}
    v_add_u32 v{T0+4}, s65, v{V_L16}
    v_add_u32 v{T0+5}, {XB_BASE}, v{V_L16}''')
    a.e('s_cmp_lg_u32 s56, 0')
    a.e('s_cbranch_scc0 L_p2_special')
    for eh in range(2): cmul_pack(a,V_DR+4*eh,V_DI+4*eh,V_WR+4*eh,V_WI+4*eh,V_B+4*eh,TT,negim=True)
    a.e('L_p2_join:')
    for ks in range(2):
        for nb in range(2):
            for (D,Fm) in((V_DR,V_F32R),(V_DI,V_F32I)):
                d=vr(D+4*nb,4)
                a.e(f'v_mfma_f32_16x16x32_bf16 {d}, {vr(V_B+4*ks,4)}, {vr(Fm+8*nb+4*ks,4)}, {d if ks else 0}')
    for nb in range(2):
        cmul_pack(a,V_DR+4*nb,V_DI+4*nb,V_T3C+4*nb,V_T3S+4*nb,V_B+4*nb,TT)
        a.e(f'ds_write_b128 v{T0+4}, {vr(V_B+4*nb,4)} offset:{1024*nb}')
    a.e('s_waitcnt lgkmcnt(0)')
    a.e('s_barrier')
    V_X=V_U
    for ks in range(4):
        for nb in range(2):
            a.e(f'ds_read_b128 {vr(V_X+8*ks+4*nb,4)}, v{T0+5} offset:{2048*ks+1024*nb}')
    for ks in range(4):
        a.e(f's_waitcnt lgkmcnt({6-2*ks})')
        for nb in range(2):
            for (D,Fm) in((V_DR,V_F64R),(V_DI,V_F64I)):
                d=vr(D+4*nb,4)
                a.e(f'v_mfma_f32_16x16x32_bf16 {d}, {vr(Fm+4*ks,4)}, {vr(V_X+8*ks+4*nb,4)}, {d if ks else 0}')
    a.wait_vm(tok_w)
    for e in range(8): a.e(f'v_mul_f32 v{V_GT+e}, {fl(2.0**-19)}, v{V_GT+e}')
    a.e(f's_add_u32 s62, s60, {WS_Y}')
    for nb in range(2):
        for h in range(2):
            a.e(f'v_pk_mul_f32 {vr(V_DR+4*nb+2*h,2)}, {vr(V_DR+4*nb+2*h,2)}, {vr(V_GT+4*nb+2*h,2)}')
            a.e(f'v_pk_mul_f32 {vr(V_DI+4*nb+2*h,2)}, {vr(V_DI+4*nb+2*h,2)}, {vr(V_GT+4*nb+2*h,2)}')
        for r in range(4): a.e(f'v_cvt_pk_bf16_f32 v{V_B+4*nb+r}, v{V_DR+4*nb+r}, v{V_DI+4*nb+r}')
        if not cfg.x.get('ydefer'): a.e(f'buffer_store_dwordx4 {vr(V_B+4*nb,4)}, v{V_L16}, {srd(S_WS)}, s62 offen offset:{1024*nb} {cfg.f("stY")}')

def p2_special(a,cfg):
    p=P2
    V_U,V_Q,T0,V_DR,V_DI,V_B=p['V_U'],p['V_Q'],p['T0'],p['V_DR'],p['V_DI'],p['V_B']
    V_WR=216; V_WI=224
    a.e('L_p2_special:')
    a.cond_begin()
    a.e('s_waitcnt vmcnt(0)')
    V_J=T0+8; V_ZA=V_U+16
    a.e(f'''s_lshl_b32 s65, {wv}, 4
    v_lshlrev_b32 v{V_J}, 8, v2
    v_add3_u32 v{V_J}, v{V_J}, v1, s65''')
    for eh in range(2):
        for r in range(4):
            n=1024*eh+64*r
            a.e(f'v_add_u32 v{T0}, {n}, v{V_J}')
            a.e(f'v_lshlrev_b32 v{T0}, 2, v{T0}')
            a.e(f'v_cvt_pk_bf16_f32 v{T0+2}, v{V_DR+4*eh+r}, v{V_DI+4*eh+r}')
            a.e(f'v_add_u32 v{T0}, {ZR_BASE}, v{T0}')
            a.e(f'ds_write_b32 v{T0}, v{T0+2}')
    a.e('s_waitcnt lgkmcnt(0)')
    a.e('s_barrier')
    for eh in range(2):
        for r in range(4):
            n=1024*eh+64*r
            a.e(f'v_sub_u32 v{T0}, {2048-n}, v{V_J}')
            a.e(f'v_and_b32 v{T0}, 2047, v{T0}')
            a.e(f'v_lshlrev_b32 v{T0}, 2, v{T0}')
            a.e(f'v_add_u32 v{T0}, {ZR_BASE}, v{T0}')
            a.e(f'ds_read_b32 v{V_ZA+4*eh+r}, v{T0}')
    a.e('s_waitcnt lgkmcnt(0)')
    for e in range(8):
        zr=V_DR+e; zi=V_DI+e; pr=V_WR+e; pi=V_WI+e; ar_=T0+6; ai=T0+7
        qr=T0; qi=T0+1; yr=T0+2; yi=T0+3
        a.e(f'''v_lshlrev_b32 v{qr}, 16, v{V_Q+e}
        v_and_b32 v{qi}, 0xffff0000, v{V_Q+e}
        v_lshlrev_b32 v{ar_}, 16, v{V_ZA+e}
        v_and_b32 v{ai}, 0xffff0000, v{V_ZA+e}
        v_mul_f32 v{yr}, v{zr}, v{pr}
        v_fma_f32 v{yr}, -v{zi}, v{pi}, v{yr}
        v_fma_f32 v{yr}, v{ar_}, v{qr}, v{yr}
        v_fma_f32 v{yr}, v{ai}, v{qi}, v{yr}
        v_mul_f32 v{yi}, v{zr}, v{pi}
        v_fma_f32 v{yi}, v{zi}, v{pr}, v{yi}
        v_fma_f32 v{yi}, v{ar_}, v{qi}, v{yi}
        v_fma_f32 v{yi}, -v{ai}, v{qr}, v{yi}
        v_cvt_pk_bf16_f32 v{V_B+e}, v{yr}, -v{yi}''')
    a.cond_end()
    a.e('s_branch L_p2_join')

HEADER='''; Gated mix of a GFNet spectral filter and a dense->mish->dense block, one persistent launch.
; (text generated by the author's own generator script; 256 workgroups, one per CU, hand-offs through counters)
'''
def build(stamps=False,off=(),**kw):
    cfg=Cfg(); cfg.stamps=stamps; cfg.off=set(off); cfg.x=kw; cfg.fine=kw.get('fine',0)
    label=NAME+'_kernel'
    a=Asm(); end='L_end'
    prologue(a,cfg,end)
    sv=(a.vm,a.lg)
    if kw.get('ffirst'):
        f_stream(a,cfg,end)
        nbF=sum(1 for i in a.items if i.op=='s_barrier'); n0=len(a.items)
        a.vm,a.lg=sv; a.bg_rate=0; assert not a.bg
        a.e('L_M:')
        m_stream(a,cfg,end)
        nbM=sum(1 for i in a.items[n0:] if i.op=='s_barrier')
    else:
        m_stream(a,cfg,end)
        nbM=sum(1 for i in a.items if i.op=='s_barrier'); n0=len(a.items)
        a.vm,a.lg=sv; a.bg_rate=0; assert not a.bg
        f_stream(a,cfg,end)
        nbF=sum(1 for i in a.items[n0:] if i.op=='s_barrier')
    a.e(f'{end}:'); a.e('s_endpgm')
    txt=a.text()
    errs=[]
    for role in (False,True):
        jump=lambda t: (role and t=='L_F') or ((not role) and t=='L_M')
        for nm,pol in (('fall',lambda i,n:i.target.endswith('_done') or jump(i.target)),
                       ('taken',lambda i,n:((not i.target.startswith('L_end')) and n==0 and (i.target not in('L_F','L_M') or jump(i.target))))):
            errs+=verify_waits(a.out,pol,('F' if role else 'M')+nm)
    for e in sorted(set(errs))[:30]: print('WAITERR',e,file=sys.stderr)
    print(dict(a.count()),'barriers M',nbM,'F',nbF,file=sys.stderr)
    out=HEADER+f'; @launch grid=(256,1,1) block=(512,1,1) lds={LDS_TOTAL}\n'
    out+='.amdgcn_target "amdgcn-amd-amdhsa--gfx950"\n.text\n'
    out+=f'.globl {label}\n.p2align 8\n.type {label},@function\n{label}:\n{txt}'
    out+=f'''.section .rodata,"a"
.p2align 6
.amdhsa_kernel {label}
  .amdhsa_next_free_vgpr 256
  .amdhsa_next_free_sgpr 102
  .amdhsa_accum_offset 256
  .amdhsa_group_segment_fixed_size 0
  .amdhsa_kernarg_size 88
  .amdhsa_user_sgpr_count 2
  .amdhsa_user_sgpr_kernarg_segment_ptr 1
  .amdhsa_system_sgpr_workgroup_id_x 1
.end_amdhsa_kernel
'''
    return out

if __name__=='__main__':
    mode=sys.argv[1] if len(sys.argv)>1 else 'persist'
    kw={}
    for x in sys.argv[3:]:
        k,v=x.split('='); kw[k]=int(v) if v.lstrip('-').isdigit() else v
    off=kw.pop('off','').split(',') if 'off' in kw else ()
    txt=build(stamps=(mode=='stamps'),off=off,**kw)
    open(sys.argv[2] if len(sys.argv)>2 else 'out.s','w').write(txt)
```

```python
import sys, os, struct
from dsl import Asm, verify_waits

NAME='gated_mix__spectral_gfnet__dense_activation_mish__prompt'
WS_T   =0x000000
WS_WT  =0x200000
WS_QT  =0x400000
WS_G   =0x402000
WS_CNT =0x404000
WS_Y   =0x600000
WS_ACT =0x800000
WS_STAMP=0x1000000
WS_SIZE=0x1080000
RT_STRIDE=56*4096
S_X,S_WR,S_WI,S_W1,S_B1,S_W2,S_GW,S_OUT,S_WS,S_DBG=8,12,16,20,24,28,32,36,40,44
def srd(n): return f's[{n}:{n+3}]'
SRDS=[(S_X,0,2048*1024),(S_WR,8,2048*514),(S_WI,16,2048*514),(S_W1,32,512*3584),(S_B1,40,3584),
      (S_W2,48,1792*1024),(S_GW,56,1024),(S_OUT,64,2048*1024),(S_WS,80,WS_SIZE),(S_DBG,72,256)]
def vr(b,n=1): return f'v{b}' if n==1 else f'v[{b}:{b+n-1}]'
def fl(x): return hex(struct.unpack('<I',struct.pack('<f',float(x)))[0])
S_WV=3; S_W8=49
wv=f's{S_WV}'
LOG2E=1.4426950408889634
OOB=0x40000000
SLEEP=int(os.environ.get('SLEEP','8'))
SPIN_MAX=50000
SLOT=31744
SB=lambda c:(c%5)*SLOT
XA_BASE=4*SLOT; XA_PITCH=1152
GW_LDS=5*SLOT; B1_LDS=GW_LDS+1024
LC_BASE=GW_LDS+2048
TB_BASE=131072; XB_BASE=139264; ZR_BASE=147456; WB_BASE=155648
LDS_TOTAL=163840
V_L16=3
V_PD,V_PA,V_SIG=250,251,252

class Cfg:
    stamps=False; dbgst=False; sc='sc1'
    off=set()
    def f(self,tag): return '' if (tag in self.off or 'all' in self.off) else self.sc

def stamp(a,cfg,idx):
    if not cfg.stamps: return
    r=a.bg_rate; a.bg_rate=0
    a.e('s_memrealtime s[96:97]'); a.e('s_waitcnt lgkmcnt(0)'); a.e(f'v_writelane_b32 v255, s96, {idx}')
    a.bg_rate=r
def stamps_flush(a,cfg):
    if not cfg.stamps: return
    a.e(f"""v_lshrrev_b32 v254, 6, v249
    s_nop 0
    v_readfirstlane_b32 s98, v254
    s_lshl_b32 s99, s2, 3
    s_add_u32 s98, s98, s99
    s_lshl_b32 s98, s98, 8
    s_add_u32 s98, s98, {WS_STAMP}
    v_lshlrev_b32 v254, 2, v0
    buffer_store_dword v255, v254, {srd(S_WS)}, s98 offen""")

def signal(a,S,soff):
    vt=V_SIG
    a.e(f"""s_cmp_eq_u32 {wv}, 0
    s_cselect_b32 s95, 0, {OOB}
    v_mov_b32 v{vt}, 1
    v_mov_b32 v{vt+1}, s95
    s_mov_b64 exec, 1
    buffer_atomic_add v{vt}, v{vt+1}, {srd(S)}, {soff} offen sc1
    s_mov_b64 exec, -1""")

def ssignal(a,S,soff):
    lab=f'L_ss{len(a.items)}'
    a.e(f's_cmp_lg_u32 {wv}, 0'); a.e(f's_cbranch_scc1 {lab}')
    a.e(f's_atomic_add s90, s[{S}:{S+1}], {soff}')
    a.e(f'{lab}:')

def spin_global(a,S,soff,nl,stride,target):
    lab=f'L_poll{len(a.items)}'
    a.e(f'v_mul_u32_u24 v{V_PA}, {stride}, v0')
    a.e(f's_mov_b64 exec, {hex((1<<nl)-1)}')
    a.e(f's_mov_b32 s94, 0')
    a.e(f'{lab}:')
    a.e(f'buffer_load_dword v{V_PD}, v{V_PA}, {srd(S)}, {soff} offen sc1')
    a.e(f's_add_u32 s94, s94, 1')
    a.e(f's_waitcnt vmcnt(0)')
    a.e(f'v_cmp_gt_u32 vcc, {target}, v{V_PD}')
    a.e(f's_cbranch_vccz {lab}_done')
    a.e(f's_cmp_gt_u32 s94, {SPIN_MAX}')
    a.e(f's_cbranch_scc1 {lab}_done')
    a.e(f's_sleep {SLEEP}')
    a.e(f's_branch {lab}')
    a.e(f'{lab}_done:')
    a.e('s_mov_b64 exec, -1')

def poll_w0(a,S,soff,nl,stride,target):
    lab=f'L_pw{len(a.items)}'
    a.e(f's_cmp_lg_u32 {wv}, 0'); a.e(f's_cbranch_scc1 {lab}')
    a.cond_begin(); spin_global(a,S,soff,nl,stride,target); a.cond_end()
    a.e(f'{lab}:')

V_LC=248
def lc_add(a,idx,rtn=None):
    a.e(f'v_mov_b32 v{V_LC-1}, 1')
    a.e('s_mov_b64 exec, 1')
    if rtn is None: a.e(f'ds_add_u32 v{V_LC}, v{V_LC-1} offset:{4*idx}')
    else: a.e(f'ds_add_rtn_u32 v{rtn}, v{V_LC}, v{V_LC-1} offset:{4*idx}')
    a.e('s_mov_b64 exec, -1')
def lc_wait(a,idx,target):
    lab=f'L_lc{len(a.items)}'
    a.e('s_mov_b32 s94, 0')
    a.e(f'{lab}:')
    a.e(f'ds_read_b32 v{V_LC-1}, v{V_LC} offset:{4*idx}')
    a.e('s_add_u32 s94, s94, 1')
    a.e('s_waitcnt lgkmcnt(0)')
    a.e(f'v_readfirstlane_b32 s93, v{V_LC-1}')
    a.e(f's_cmp_ge_u32 s93, {target}')
    a.e(f's_cbranch_scc1 {lab}_done')
    a.e('s_sleep 1')
    a.e(f's_cmp_lt_u32 s94, {20*SPIN_MAX}')
    a.e(f's_cbranch_scc1 {lab}')
    a.e(f'{lab}_done:')

def angles(a,items,T):
    for i0 in range(0,len(items),4):
        grp=items[i0:i0+4]; src=[]
        for j,(sl,base,n,fin,neg) in enumerate(grp):
            if n==0: src.append(f'v{base}')
            else:
                a.e(f'v_fmamk_f32 v{T+j}, v{sl}, {fl(n)}, v{base}'); src.append(f'v{T+j}')
        outs=[]
        for j,(sl,base,n,fin,neg) in enumerate(grp):
            c,s=fin[0] if fin[0] is not None else T+4+j, fin[1] if fin[1] is not None else T+8+j
            a.e(f'v_cos_f32 v{c}, {src[j]}')
            a.e(f'v_sin_f32_e64 v{s}, -{src[j]}' if neg else f'v_sin_f32 v{s}, {src[j]}')
            outs.append((c,s))
        for j,(sl,base,n,fin,neg) in enumerate(grp):
            if fin[2]: fin[2](*outs[j])

def cmul_pack(a,c,s,tc,ts,dst,TT,n=4,negim=False):
    H=n//2
    for h in range(H): a.e(f'v_pk_mul_f32 {vr(TT+4*h,2)}, {vr(s+2*h,2)}, {vr(ts+2*h,2)}')
    for h in range(H): a.e(f'v_pk_mul_f32 {vr(TT+4*h+2,2)}, {vr(s+2*h,2)}, {vr(tc+2*h,2)}')
    for h in range(H): a.e(f'v_pk_fma_f32 {vr(TT+4*h,2)}, {vr(c+2*h,2)}, {vr(tc+2*h,2)}, {vr(TT+4*h,2)} neg_lo:[0,0,1] neg_hi:[0,0,1]')
    for h in range(H): a.e(f'v_pk_fma_f32 {vr(TT+4*h+2,2)}, {vr(c+2*h,2)}, {vr(ts+2*h,2)}, {vr(TT+4*h+2,2)}')
    ng='-' if negim else ''
    for h in range(H):
        a.e(f'v_cvt_pk_bf16_f32 v{dst+2*h}, v{TT+4*h}, {ng}v{TT+4*h+2}')
        a.e(f'v_cvt_pk_bf16_f32 v{dst+2*h+1}, v{TT+4*h+1}, {ng}v{TT+4*h+3}')

def prologue(a,cfg,end):
    a.e('s_cmp_ge_u32 s2, 256'); a.e(f's_cbranch_scc1 {end}')
    for (n,off,sz) in SRDS: a.e(f's_load_dwordx2 s[{n}:{n+1}], s[0:1], {off}')
    if cfg.x.get('pf_code') and cfg.x.get('pf_top'):
        nw=cfg.x['pf_top']
        a.e('s_getpc_b64 s[64:65]')
        a.e('v_lshrrev_b32 v56, 6, v0'); a.e('v_and_b32 v57, 63, v0')
        a.e('v_readfirstlane_b32 s66, v56')
        a.e('v_lshlrev_b32 v57, 4, v57')
        a.e('s_lshr_b32 s67, s2, 3'); a.e(f's_mul_i32 s67, s67, {nw}'); a.e('s_add_u32 s67, s67, s66')
        a.e('s_lshl_b32 s68, s67, 10')
        a.e('s_add_u32 s64, s64, s68'); a.e('s_addc_u32 s65, s65, 0')
        a.e('v_mov_b32 v59, s65'); a.e('v_add_co_u32 v58, vcc, s64, v57'); a.e('s_nop 1'); a.e('v_addc_co_u32 v59, vcc, 0, v59, vcc')
        a.e(f's_cmp_lt_u32 s66, {nw}'); a.e('s_cbranch_scc0 L_nopf0'); a.cond_begin()
        a.e(f's_cmp_lt_u32 s67, {cfg.x["pf_code"]}'); a.e('s_cbranch_scc0 L_nopf0')
        a.e('global_load_dwordx4 v[52:55], v[58:59], off')
        a.cond_end(); a.e('L_nopf0:')
    if cfg.stamps: a.e('v_mov_b32 v249, v0')
    a.e('v_lshrrev_b32 v1, 6, v0')
    a.e('v_and_b32 v0, 63, v0')
    a.e('v_readfirstlane_b32 s48, v1')
    a.e('v_and_b32 v1, 15, v0')
    a.e('v_lshrrev_b32 v2, 4, v0')
    a.e(f'v_lshlrev_b32 v{V_L16}, 4, v0')
    for (n,off,sz) in SRDS:
        a.e(f's_mov_b32 s{n+2}, {hex(sz)}'); a.e(f's_mov_b32 s{n+3}, 0x20000')
    a.e(f'''s_mov_b32 s51, s48
    s_and_b32 {wv}, s48, 3
    s_lshr_b32 s50, s48, 2
    s_and_b32 s4, s2, 7
    s_lshr_b32 s5, s2, 3
    s_lshr_b32 s6, s4, 1
    s_lshl_b32 s6, s6, 2
    s_lshr_b32 s56, s5, 3
    s_add_u32 s6, s6, s56
    s_and_b32 s7, s4, 1
    s_lshl_b32 s7, s7, 3
    s_and_b32 s56, s5, 7
    s_add_u32 s7, s7, s56
    s_and_b32 s48, s7, 1''')
    a.e('s_waitcnt lgkmcnt(0)')
    if cfg.x.get('pf_code') and not cfg.x.get('pf_top'):
        a.e('s_getpc_b64 s[64:65]')
        a.e('s_lshl_b32 s66, s5, 10')
        a.e('s_add_u32 s64, s64, s66'); a.e('s_addc_u32 s65, s65, 0')
        a.e(f'v_mov_b32 v57, s65'); a.e(f'v_add_co_u32 v56, vcc, s64, v{V_L16}'); a.e('s_nop 1'); a.e(f'v_addc_co_u32 v57, vcc, 0, v57, vcc')
        a.e(f's_cmp_lt_u32 s5, {cfg.x["pf_code"]}'); a.e('s_cbranch_scc0 L_nopf'); a.cond_begin()
        a.e(f's_cmp_lg_u32 s51, 2'); a.e('s_cbranch_scc1 L_nopf')
        a.e('global_load_dwordx4 v[52:55], v[56:57], off')
        a.cond_end(); a.e('L_nopf:')
    mt=str(cfg.x.get('mt','xw'))
    if mt!='0':
        a.e(f'''v_lshlrev_b32 v5, 7, v0
        v_mov_b32 v6, {OOB}
        v_cmp_gt_u32 vcc, 56, v0
        v_cndmask_b32 v6, v6, v5, vcc
        s_cmp_eq_u32 s51, 0
        s_cselect_b32 s56, 0, {OOB}
        v_add_u32 v5, s56, v5
        s_cmp_eq_u32 s51, 1
        s_cselect_b32 s56, 0, {OOB}
        v_add_u32 v7, s56, v6
        s_lshl_b32 s56, s2, 13
        s_mul_i32 s57, s2, 7168''')
        if 'x' in mt: a.e(f'buffer_load_dword v245, v5, {srd(S_X)}, s56 offen')
        if 'w' in mt: a.e(f'buffer_load_dword v245, v7, {srd(S_W1)}, s57 offen')
    if cfg.x.get('gtouch'):
        a.e(f'''s_xor_b32 s56, s51, 2
        s_xor_b32 s57, s2, 1
        s_or_b32 s56, s56, s57
        s_cmp_eq_u32 s56, 0
        s_cselect_b32 s56, 0, {OOB}
        v_lshlrev_b32 v5, 7, v0
        v_add_u32 v5, s56, v5
        s_mov_b32 s57, {WS_G}
        buffer_load_dword v245, v5, {srd(S_WS)}, s57 offen''')
    if cfg.x.get('tlb'):
        a.e(f'''v_lshlrev_b32 v5, 21, v0
        v_mov_b32 v6, {OOB}
        v_cmp_gt_u32 vcc, 9, v0
        v_cndmask_b32 v5, v6, v5, vcc
        s_cmp_eq_u32 s51, 2
        s_cselect_b32 s56, 0, {OOB}
        v_or_b32 v5, s56, v5
        s_cmp_eq_u32 s51, 3
        s_cselect_b32 s56, 0, {OOB}
        v_cmp_gt_u32 vcc, 1, v0
        v_cndmask_b32 v6, v6, v0, vcc
        v_or_b32 v6, s56, v6
        buffer_load_dword v245, v5, {srd(S_WS)}, 0 offen
        buffer_load_dword v245, v6, {srd(S_OUT)}, 0 offen''')
    if cfg.x.get('ffirst'):
        a.e('s_cmp_eq_u32 s50, 0'); a.e('s_cbranch_scc1 L_M')
    else:
        a.e('s_cmp_lg_u32 s50, 0'); a.e('s_cbranch_scc1 L_F')

V_GF=8
V_W2A=240; V_W2D=244
NS3=int(os.environ.get('NS3','8'))
GSLOT=[6,7,0,1]
GT0=224; GTA=234
G_ITEMS=[(psi,c,u) for psi in range(4) for c in range(4) for u in range(4)]
def m_g2_ids(a,cfg):
    a.e(f"""s_lshl_b32 s67, s4, 2
    s_lshr_b32 s68, s5, 3
    s_add_u32 s67, s67, s68
    s_and_b32 s68, s5, 7
    s_mul_i32 s69, s67, {RT_STRIDE}
    s_mul_i32 s70, {wv}, {14*4096}
    s_add_u32 s69, s69, s70
    s_add_u32 s69, s69, {WS_ACT}
    s_mul_i32 s70, {wv}, {14*32*1024}
    s_lshl_b32 s71, s68, 7
    s_add_u32 s70, s70, s71
    s_lshl_b32 s71, {wv}, 15
    s_lshr_b32 s72, s67, 1
    s_and_b32 s73, s67, 1
    s_lshr_b32 s74, s72, 2
    s_lshl_b32 s74, s74, 11
    s_lshl_b32 s75, s73, 10
    s_add_u32 s74, s74, s75
    s_and_b32 s75, s72, 3
    s_lshl_b32 s75, s75, 8
    s_add_u32 s74, s74, s75""")
def w2_dma_addr(a,V,T):
    a.e(f"""v_lshrrev_b32 v{T}, 3, v0
    v_lshlrev_b32 v{V}, 10, v{T}
    v_lshrrev_b32 v{T}, 1, v{T}
    v_and_b32 v{T}, 3, v{T}
    v_bfe_u32 v{T+1}, v0, 1, 2
    v_xor_b32 v{T}, v{T}, v{T+1}
    v_lshlrev_b32 v{T}, 1, v{T}
    v_and_b32 v{T+1}, 1, v0
    v_add_u32 v{T}, v{T}, v{T+1}
    v_lshl_add_u32 v{V}, v{T}, 4, v{V}""")
def w2_group(t,v,V):
    return [f's_add_u32 m0, s71, {(t%8)*4096+v*1024}', f's_add_u32 s55, s70, {(32*t+8*v)*1024}',
            f'buffer_load_dwordx4 v{V}, {srd(S_W2)}, s55 offen lds']

def m_stream(a,cfg,end):
    a.e('s_waitcnt lgkmcnt(0)')
    if cfg.x.get('prio0'): a.e(f's_setprio {cfg.x["prio0"]}')
    stamp(a,cfg,26)
    a.e(f'''s_xor_b32 s56, {wv}, 3
    s_or_b32 s58, s56, s2
    s_cmp_eq_u32 s58, 0
    s_cselect_b32 s56, 0, {OOB}
    v_lshlrev_b32 v5, 7, v0
    v_add_u32 v5, s56, v5
    v_mov_b32 v6, 0
    s_mov_b32 s57, {WS_CNT}
    s_mov_b32 exec_hi, 0
    buffer_store_dword v6, v5, {srd(S_WS)}, s57 offen sc1
    s_mov_b32 exec_hi, -1''')
    mt=str(cfg.x.get('mt','xw'))
    a.e(f'''s_lshr_b32 s49, s2, 5
    s_and_b32 s50, s2, 31''')
    V_B1C=60; V_B1S=68; V_TC=76; V_TS=80; V_A2=84; V_A2N=88; T0=92; TA=100
    a.e(f'''s_lshl_b32 s67, {wv}, 4
    v_add_u32 v{T0}, s67, v1
    v_cvt_f32_u32 v{T0}, v{T0}
    v_mul_f32 v{T0+1}, {fl(1/64)}, v{T0}
    v_lshlrev_b32 v{T0+2}, 2, v2
    v_cvt_f32_u32 v{T0+2}, v{T0+2}
    v_mul_f32 v{T0+3}, v{T0+2}, v{T0+1}''')
    for ks in range(2):
        for hh in range(2):
            angles(a,[(T0+1,T0+3,32*ks+16*hh+u,(None,None,None),True) for u in range(4)],TA)
            for d in range(2):
                a.e(f'v_cvt_pk_bf16_f32 v{V_B1C+4*ks+2*hh+d}, v{TA+4+2*d}, v{TA+5+2*d}')
                a.e(f'v_cvt_pk_bf16_f32 v{V_B1S+4*ks+2*hh+d}, v{TA+8+2*d}, v{TA+9+2*d}')
    a.e(f'''v_and_b32 v{T0+4}, 1, v2
    v_lshlrev_b32 v{T0+4}, 2, v{T0+4}
    v_cvt_f32_u32 v{T0+4}, v{T0+4}
    v_mul_f32 v{T0+5}, {fl(1/512)}, v{T0}
    v_mul_f32 v{T0+6}, v{T0+4}, v{T0+5}''')
    angles(a,[(T0+5,T0+6,r,(V_TC+r,V_TS+r,None),True) for r in range(4)],TA)
    a.e(f'''v_lshrrev_b32 v{T0+5}, 2, v1
    v_cvt_f32_u32 v{T0+5}, v{T0+5}
    v_mul_f32 v{T0+5}, {fl(1/8)}, v{T0+5}
    v_and_b32 v{T0+6}, 1, v1
    v_cvt_f32_u32 v{T0+6}, v{T0+6}
    v_mul_f32 v{T0+6}, {fl(0.25)}, v{T0+6}
    v_fma_f32 v{T0+6}, v{T0+4}, v{T0+5}, v{T0+6}
    v_lshrrev_b32 v{T0+7}, 1, v1
    v_and_b32 v{T0+7}, 1, v{T0+7}
    v_lshrrev_b32 v{T0}, 1, v2
    v_cmp_eq_u32 s[68:69], v{T0+7}, v{T0}
    v_and_b32 v{T0+7}, 13, v1
    v_cmp_eq_u32 vcc, 1, v{T0+7}''')
    a.e('s_and_b64 s[70:71], vcc, s[68:69]')
    angles(a,[(T0+5,T0+6,dw,(None,None,None),False) for dw in range(4)],TA)
    for dw in range(4): a.e(f'v_cvt_pk_bf16_f32 v{TA+dw}, v{TA+4+dw}, v{TA+8+dw}')
    a.e(f'v_mov_b32 v{TA+4}, 0x3f80'); a.e(f'v_mov_b32 v{TA+5}, 0xbf80')
    for dw in range(4):
        a.e(f'v_cndmask_b32 v{V_A2+dw}, 0, v{TA+dw}, s[68:69]')
        a.e(f'v_cndmask_b32 v{V_A2N+dw}, 0, v{TA+4+(dw&1)}, s[70:71]')
    V_XA=108
    a.e(f'''v_and_b32 v{T0}, 3, v0
    v_lshrrev_b32 v{T0+1}, 1, v{T0}
    v_mul_u32_u24 v{V_XA}, {XA_PITCH}, v{T0+1}
    v_and_b32 v{T0}, 1, v{T0}
    v_lshlrev_b32 v{T0}, 3, v{T0}
    v_lshrrev_b32 v{T0+1}, 2, v1
    v_lshl_add_u32 v{T0+1}, v2, 2, v{T0+1}
    v_lshlrev_b32 v{T0+1}, 4, v{T0+1}
    v_add3_u32 v{V_XA}, v{V_XA}, v{T0}, v{T0+1}
    v_add_u32 v{V_XA}, {XA_BASE}, v{V_XA}
    s_mul_i32 s72, {wv}, {2*XA_PITCH}
    s_add_u32 s72, s72, {XA_BASE}
    v_add_u32 v{V_XA+1}, s72, v{V_L16}
    v_add_u32 v{V_XA+2}, {GW_LDS}, v{V_L16}''')
    a.e(f'''s_lshl_b32 s84, s49, 3
    s_lshl_b32 s85, {wv}, 1
    s_add_u32 s84, s84, s85
    s_lshr_b32 s85, s84, 4
    s_lshl_b32 s85, s85, 11
    s_lshr_b32 s86, s50, 4
    s_lshl_b32 s86, s86, 10
    s_add_u32 s85, s85, s86
    s_lshr_b32 s86, s84, 2
    s_and_b32 s86, s86, 3
    s_lshl_b32 s86, s86, 8
    s_add_u32 s85, s85, s86
    s_and_b32 s86, s50, 15
    s_lshl_b32 s86, s86, 4
    s_add_u32 s85, s85, s86
    s_and_b32 s86, s84, 3
    s_lshl_b32 s86, s86, 2
    s_add_u32 s85, s85, s86
    s_add_u32 s85, s85, {WS_G}
    ''')
    if mt!='0' and ('W' in mt or '2' in mt):
        a.e(f'''v_lshlrev_b32 v5, 7, v0
        v_mov_b32 v6, {OOB}
        v_cmp_gt_u32 vcc, 33, v0
        v_cndmask_b32 v7, v6, v5, vcc
        v_cmp_gt_u32 vcc, 56, v0
        v_cndmask_b32 v6, v6, v5, vcc
        s_cmp_eq_u32 {wv}, 2
        s_cselect_b32 s56, 0, {OOB}
        v_add_u32 v5, s56, v7
        s_cmp_eq_u32 {wv}, 3
        s_cselect_b32 s56, 0, {OOB}
        v_add_u32 v7, s56, v7
        s_cmp_eq_u32 {wv}, 0
        s_cselect_b32 s56, 0, {OOB}
        v_add_u32 v6, s56, v6
        s_mul_i32 s56, s2, {33*128}
        v_add_u32 v5, s56, v5
        v_add_u32 v7, s56, v7
        s_mul_i32 s57, s2, 7168''')
        if 'W' in mt:
            a.e(f'buffer_load_dword v245, v5, {srd(S_WR)}, 0 offen')
            a.e(f'buffer_load_dword v245, v7, {srd(S_WI)}, 0 offen')
        if '2' in mt: a.e(f'buffer_load_dword v245, v6, {srd(S_W2)}, s57 offen')
    a.e('s_cmp_lg_u32 s58, 0'); a.e('s_cbranch_scc1 L_m_nos0'); a.cond_begin()
    a.e(f'''s_waitcnt vmcnt(0)
    v_mov_b32 v5, 1
    v_mov_b32 v6, 32
    s_mov_b64 exec, 1
    buffer_store_dword v5, v6, {srd(S_DBG)}, 0 offen sc1
    s_mov_b64 exec, -1''')
    a.cond_end(); a.e('L_m_nos0:')
    stamp(a,cfg,0)
    a.e('s_barrier')
    stamp(a,cfg,1)
    V_AF=112; V_GX=144; V_GW=184; V_D1C=152; V_D1S=168
    for pi in range(4):
        for ks in range(2):
            for hh in range(2):
                a.e(f'ds_read_b64_tr_b16 {vr(V_AF+8*pi+4*ks+2*hh,2)}, v{V_XA} offset:{pi*2*XA_PITCH+ks*512+hh*256}')
        if pi==1: lg_01=a.lgtok()
    lg_af=a.lgtok()
    a.e(f'ds_read_b128 {vr(V_GX,4)}, v{V_XA+1}')
    a.e(f'ds_read_b128 {vr(V_GX+4,4)}, v{V_XA+1} offset:{XA_PITCH}')
    a.e(f'ds_read_b128 {vr(V_GW,4)}, v{V_XA+2}')
    lg_gx=a.lgtok()
    for pi in range(4):
        if pi==0: a.wait_lg(lg_01)
        if pi==2: a.wait_lg(lg_af)
        for ks in range(2):
            A=vr(V_AF+8*pi+4*ks,4); c=vr(V_D1C+4*pi,4); s=vr(V_D1S+4*pi,4)
            a.e(f'v_mfma_f32_16x16x32_bf16 {c}, {A}, {vr(V_B1C+4*ks,4)}, {c if ks else 0}')
            a.e(f'v_mfma_f32_16x16x32_bf16 {s}, {A}, {vr(V_B1S+4*ks,4)}, {s if ks else 0}')
    a.wait_lg(lg_gx)
    V_Z=T0+2; V_GOUT=T0+4
    for d in range(4):
        for rr in range(2):
            a.e(f'v_dot2_f32_bf16 v{V_Z+rr}, v{V_GX+4*rr+d}, v{V_GW+d}, {("v%d"%(V_Z+rr)) if d else 0}')
    TT=TA; V_B2=V_AF
    red=[('row_shr:1 row_mask:0xf bank_mask:0xf bound_ctrl:1'),('row_shr:2 row_mask:0xf bank_mask:0xf bound_ctrl:1'),
         ('row_shr:4 row_mask:0xf bank_mask:0xf bound_ctrl:1'),('row_shr:8 row_mask:0xf bank_mask:0xf bound_ctrl:1'),
         ('row_bcast:15 row_mask:0xa bank_mask:0xf'),('row_bcast:31 row_mask:0xc bank_mask:0xf')]
    ri=0
    for pi in range(4):
        cmul_pack(a,V_D1C+4*pi,V_D1S+4*pi,V_TC,V_TS,V_B2+4*pi,TT)
        for _ in range(2 if pi<2 else 1):
            for rr in range(2): a.e(f'v_add_f32_dpp v{V_Z+rr}, v{V_Z+rr}, v{V_Z+rr} {red[ri]}')
            ri+=1
    V_D2=V_D1C; V_D2N=V_D1S
    for pi in range(4):
        a.e(f'v_mfma_f32_16x16x32_bf16 {vr(V_D2+4*pi,4)}, {vr(V_A2,4)}, {vr(V_B2+4*pi,4)}, 0')
        a.e(f'v_mfma_f32_16x16x32_bf16 {vr(V_D2N+4*pi,4)}, {vr(V_A2N,4)}, {vr(V_B2+4*pi,4)}, 0')
    for rr in range(2): a.e(f'v_mul_f32 v{V_Z+rr}, {fl(-LOG2E)}, v{V_Z+rr}')
    for rr in range(2): a.e(f'v_exp_f32 v{V_Z+rr}, v{V_Z+rr}')
    for rr in range(2): a.e(f'v_add_f32 v{V_Z+rr}, 1.0, v{V_Z+rr}')
    for rr in range(2): a.e(f'v_rcp_f32 v{V_GOUT+rr}, v{V_Z+rr}')
    a.e(f'''s_cmp_eq_u32 {wv}, 0
    s_cselect_b32 s74, 1, 0
    s_mov_b32 s75, 0''')
    V_TO=8
    for pi in range(4):
        for rho in range(2):
            re=V_D2+4*pi+2*rho; im=re+1
            a.e(f'v_cndmask_b32 v{im}, v{im}, v{V_D2N+4*pi+2*rho+1}, s[74:75]')
            a.e(f'v_cvt_pk_bf16_f32 v{V_TO+2*pi+rho}, v{re}, v{im}')
    a.e(f'''v_lshrrev_b32 v18, 5, v0
    v_lshlrev_b32 v18, 11, v18
    v_and_b32 v19, 31, v0
    v_lshl_add_u32 v18, v19, 4, v18
    s_lshl_b32 s93, {wv}, 9
    v_add_u32 v18, s93, v18
    s_lshl_b32 s90, s2, 13
    s_add_u32 s90, s90, {WS_T}
    v_mov_b32 v16, v{V_GOUT}
    v_mov_b32 v17, v{V_GOUT+1}
    v_mov_b32 v19, 0
    s_mov_b32 s91, s85''')
    def row_stores():
        if cfg.x.get('x_nors'): return
        a.e(f'''s_add_u32 s93, s90, 4096
        buffer_store_dwordx4 v[8:11], v18, {srd(S_WS)}, s90 offen {cfg.f("stT")}
        buffer_store_dwordx4 v[12:15], v18, {srd(S_WS)}, s93 offen {cfg.f("stT")}
        s_mov_b32 exec_lo, 0
        s_mov_b32 exec_hi, 0x80000000
        buffer_store_dwordx2 v[16:17], v19, {srd(S_WS)}, s91 offen {cfg.f("stG")}
        s_mov_b64 exec, -1''')
    if cfg.x.get('rs_at',9)<0: row_stores()
    stamp(a,cfg,17)
    V_XF=80; V_XR=96; V_VA=102; V_BIAS=108; V_ACC=136; V_WF=192; V_BRAW=220; T0=234
    a.e(f'''s_lshl_b32 s76, {wv}, 12
    v_lshlrev_b32 v{T0}, 7, v1
    v_add_u32 v{T0}, s76, v{T0}
    v_lshrrev_b32 v{T0+1}, 1, v1
    v_xor_b32 v{T0+1}, v{T0+1}, v2
    v_lshl_add_u32 v{V_XR}, v{T0+1}, 4, v{T0}
    v_xor_b32 v{T0+1}, 4, v{T0+1}
    v_lshl_add_u32 v{V_XR+1}, v{T0+1}, 4, v{T0}
    v_mul_u32_u24 v{V_VA}, 1920, v2
    v_lshrrev_b32 v{T0}, 2, v1
    v_mul_u32_u24 v{T0}, 224, v{T0}
    v_and_b32 v{T0+1}, 3, v0
    v_lshlrev_b32 v{T0+1}, 3, v{T0+1}
    v_add3_u32 v{V_VA}, v{V_VA}, v{T0}, v{T0+1}
    v_add_u32 v{V_VA}, 16384, v{V_VA}
    s_cmp_eq_u32 s48, 0
    s_cselect_b32 s76, 192, 0
    v_add_u32 v{V_VA+1}, s76, v{V_VA}
    s_lshl_b32 s76, s48, 5
    v_add_u32 v{V_VA}, s76, v{V_VA}''')
    for st_ in (1,2):
        for j in range(2):
            a.e(f'v_add_u32 v{V_XR+2*st_+j}, {2*st_*SLOT}, v{V_XR+j}')
            a.e(f'v_add_u32 v{V_VA+2*st_+j}, {2*st_*SLOT}, v{V_VA+j}')
    a.e(f'''v_lshlrev_b32 v{T0}, 3, v2
    s_lshl_b32 s76, s48, 5
    s_add_u32 s77, s76, {B1_LDS}
    v_add_u32 v{T0+1}, s77, v{T0}
    s_cmp_eq_u32 s48, 0
    s_cselect_b32 s77, 192, 0
    s_add_u32 s77, s77, {B1_LDS}
    v_add_u32 v{T0}, s77, v{T0}''')
    if cfg.x.get('prio'): a.e(f's_setprio {cfg.x["prio"]}')
    a.e('s_barrier')
    stamp(a,cfg,3)
    a.e(f'''s_mul_i32 s93, {wv}, {2*XA_PITCH}
    s_add_u32 s93, s93, {XA_BASE}
    v_lshl_add_u32 v20, v0, 5, s93
    v_add_u32 v21, s93, v{V_L16}
    ds_write_b128 v20, v[8:11]
    ds_write_b128 v20, v[12:15] offset:16
    s_waitcnt lgkmcnt(0)
    ds_read_b128 v[8:11], v21
    ds_read_b128 v[12:15], v21 offset:1024''')
    def slot_set(c):
        j=c%5; return (j//2, (j%2)*SLOT)
    def w_read1(s,t,hh):
        c,kk=s//2,s%2; st_,off=slot_set(c)
        va=V_VA+2*st_+(1 if t==6 else 0)
        o=off+kk*7680+(32*t if t<6 else 0)
        a.e(f'ds_read_b64_tr_b16 {vr(V_WF+4*t+2*hh,2)}, v{va} offset:{o+960*hh}')
        return a.lgtok()
    def x_read1(s,nb):
        c,kk=s//2,s%2; st_,off=slot_set(c)
        a.e(f'ds_read_b128 {vr(V_XF+8*(s%2)+4*nb,4)}, v{V_XR+2*st_+kk} offset:{off+2048*nb}')
        return a.lgtok()
    for t in range(6): a.e(f'ds_read_b64 {vr(V_BRAW+2*t,2)}, v{T0+1} offset:{32*t}')
    a.e(f'ds_read_b64 {vr(V_BRAW+12,2)}, v{T0}')
    lg_b=a.lgtok()
    tw={}; tx={}
    for nb in range(2): tx[(0,nb)]=x_read1(0,nb)
    for t in range(3):
        for hh in range(2): tw[(0,t,hh)]=w_read1(0,t,hh)
    a.wait_lg(lg_b)
    for t in range(7):
        for d in range(2):
            raw=V_BRAW+2*t+d
            a.e(f'v_lshlrev_b32 v{V_BIAS+4*t+2*d}, 16, v{raw}')
            a.e(f'v_and_b32 v{V_BIAS+4*t+2*d+1}, 0xffff0000, v{raw}')
    for t in range(3,7):
        for hh in range(2): tw[(0,t,hh)]=w_read1(0,t,hh)
    for s in range(16):
        for t in range(7):
            need=max(tw[(s,t,1)],tx[(s,1)])
            n=a.lg-need
            if t%2==0 or t==1 or s==0 or True: a.e(f's_waitcnt lgkmcnt({min(n,15)})')
            for nb in range(2):
                acc=vr(V_ACC+28*nb+4*t,4)
                cc=acc if s>0 else vr(V_BIAS+4*t,4)
                a.e(f'v_mfma_f32_16x16x32_bf16 {acc}, {vr(V_WF+4*t,4)}, {vr(V_XF+8*(s%2)+4*nb,4)}, {cc}')
                if nb==0 and t==1 and s%2==1 and s<15:
                    if cfg.fine==2: stamp(a,cfg,32+2*(s//2))
                    if s==(7 if cfg.x.get('s1two',0) else 13): a.e('s_waitcnt vmcnt(0)')
                    a.e('s_barrier')
                    if cfg.fine==2: stamp(a,cfg,33+2*(s//2))
                ps,pt=(s+1,t-1) if t>=1 else (s,6)
                if (t>=1 and s<15) or (t==0 and 1<=s<=15 and (s,6,nb) not in tw):
                    tw[(ps,pt,nb)]=w_read1(ps,pt,nb)
                if t==2 and s<15: tx[(s+1,nb)]=x_read1(s+1,nb)
                if t==4 and nb==1 and s==cfg.x.get('rs_at',9): row_stores()
    a.e('s_barrier')
    stamp(a,cfg,4)
    V_E=V_WF; V_O=V_BIAS
    a.e(f's_mov_b32 s84, {fl(LOG2E)}'); a.e(f's_mov_b32 s85, {fl(LOG2E)}'); a.e(f's_mov_b32 s86, {fl(30.0)}')
    a.e(f'''s_mul_i32 s87, s7, 7
    s_add_u32 s87, s87, s48
    s_lshr_b32 s87, s87, 1
    s_lshl_b32 s87, s87, 12
    s_mul_i32 s88, s6, {2*RT_STRIDE}
    s_lshl_b32 s89, {wv}, 10
    s_add_u32 s88, s88, s89
    s_add_u32 s88, s88, {WS_ACT}
    s_add_u32 s88, s88, s87
    s_mov_b32 s89, {3*4096}
    s_cmp_eq_u32 s48, 0
    s_cselect_b32 s89, s89, {(-4096+512)&0xffffffff}
    s_add_u32 s89, s89, s88
    v_lshlrev_b32 v4, 3, v0''')
    G=4
    for nb in range(2):
        pairs=[(V_ACC+28*nb+4*t+2*d, V_O+14*nb+2*t+d) for t in range(7) for d in range(2)]
        for g0 in range(0,len(pairs),G):
            grp=pairs[g0:g0+G]
            Tq=lambda i: V_E+4*i
            for i,(h,o) in enumerate(grp): a.e(f'v_pk_mul_f32 {vr(Tq(i),2)}, {vr(h,2)}, s[84:85]')
            for i,(h,o) in enumerate(grp):
                a.e(f'v_min_f32 v{Tq(i)}, s86, v{Tq(i)}'); a.e(f'v_min_f32 v{Tq(i)+1}, s86, v{Tq(i)+1}')
            for i,(h,o) in enumerate(grp):
                a.e(f'v_exp_f32 v{Tq(i)}, v{Tq(i)}'); a.e(f'v_exp_f32 v{Tq(i)+1}, v{Tq(i)+1}')
            for i,(h,o) in enumerate(grp): a.e(f'v_pk_add_f32 {vr(Tq(i)+2,2)}, {vr(Tq(i),2)}, 2.0 op_sel_hi:[1,0]')
            for i,(h,o) in enumerate(grp): a.e(f'v_pk_mul_f32 {vr(Tq(i),2)}, {vr(Tq(i),2)}, {vr(Tq(i)+2,2)}')
            for i,(h,o) in enumerate(grp): a.e(f'v_pk_add_f32 {vr(Tq(i)+2,2)}, {vr(Tq(i),2)}, 2.0 op_sel_hi:[1,0]')
            for i,(h,o) in enumerate(grp):
                a.e(f'v_rcp_f32 v{Tq(i)+2}, v{Tq(i)+2}'); a.e(f'v_rcp_f32 v{Tq(i)+3}, v{Tq(i)+3}')
            for i,(h,o) in enumerate(grp): a.e(f'v_pk_mul_f32 {vr(Tq(i),2)}, {vr(Tq(i),2)}, {vr(Tq(i)+2,2)}')
            for i,(h,o) in enumerate(grp): a.e(f'v_pk_mul_f32 {vr(Tq(i),2)}, {vr(Tq(i),2)}, {vr(h,2)}')
            for i,(h,o) in enumerate(grp): a.e(f'v_cvt_pk_bf16_f32 v{o}, v{Tq(i)}, v{Tq(i)+1}')
            done=min(len(pairs),g0+G)
            if cfg.x.get('actil'):
                for pp in range(3):
                    if g0<4*(pp+1)<=done:
                        a.e(f'buffer_store_dwordx4 {vr(V_O+14*nb+4*pp,4)}, v{V_L16}, {srd(S_WS)}, s88 offen {cfg.f("stA")}')
                        a.e('s_add_u32 s88, s88, 4096')
                if done==14:
                    a.e(f'buffer_store_dwordx2 {vr(V_O+14*nb+12,2)}, v4, {srd(S_WS)}, s89 offen {cfg.f("stA")}')
        if nb==0 and cfg.x.get('actil'):
            a.e(f's_add_u32 s88, s88, {RT_STRIDE-3*4096}')
            a.e(f's_add_u32 s89, s89, {RT_STRIDE}')
    if not cfg.x.get('actil'):
        for nb in range(2):
            for pp in range(3):
                a.e(f'buffer_store_dwordx4 {vr(V_O+14*nb+4*pp,4)}, v{V_L16}, {srd(S_WS)}, s88 offen {cfg.f("stA")}')
                a.e('s_add_u32 s88, s88, 4096')
            a.e(f'buffer_store_dwordx2 {vr(V_O+14*nb+12,2)}, v4, {srd(S_WS)}, s89 offen {cfg.f("stA")}')
            if nb==0:
                a.e(f's_add_u32 s88, s88, {RT_STRIDE-3*4096}')
                a.e(f's_add_u32 s89, s89, {RT_STRIDE}')
    stamp(a,cfg,5)
    parts=p2_table_parts(a,cfg); npre=cfg.x.get('tabpre',4)
    for part in parts[:npre]: part()
    stamp(a,cfg,24)
    a.e('s_mov_b32 s93, 32'); poll_w0(a,S_DBG,'s93',1,0,1)
    a.e('s_waitcnt vmcnt(0)')
    a.e('s_barrier')
    stamp(a,cfg,7)
    p2_small_loads(a,cfg)
    tok_w=a.vmtok()
    for part in parts[npre:]: part()
    stamp(a,cfg,25)
    p2_compute(a,cfg,tok_w)
    tok_y=a.vmtok()
    stamp(a,cfg,8)
    m_g2_ids(a,cfg)
    T=5
    w2_dma_addr(a,V_W2D,T)
    a.e(f"""v_lshrrev_b32 v{T}, 2, v1
    v_lshl_add_u32 v{T+1}, v2, 2, v{T}
    v_lshlrev_b32 v{V_W2A}, 7, v{T+1}
    v_lshrrev_b32 v{T+1}, 1, v{T+1}
    v_and_b32 v{T+1}, 3, v{T+1}
    v_and_b32 v{T}, 3, v0
    v_lshl_add_u32 v{V_W2A}, v{T}, 3, v{V_W2A}
    v_add_u32 v{V_W2A}, s71, v{V_W2A}""")
    for c in (3,2,1,0):
        a.e(f'v_xor_b32 v{T}, {c}, v{T+1}')
        a.e(f'v_lshl_add_u32 v{V_W2A+c}, v{T}, 5, v{V_W2A}')
    stamp(a,cfg,9)
    if not cfg.x.get('ydefer'): a.e('s_waitcnt vmcnt(0)')
    a.e('s_barrier')
    stamp(a,cfg,10)
    m_gemm2(a,cfg,tok_y)
    stamp(a,cfg,13)
    stamps_flush(a,cfg)
    a.e(f's_branch {end}')
    p2_special(a,cfg)

def m_gemm2(a,cfg,tok_y):
    V_ACC=80; V_AF=144; D=8; V_G=72
    RB=lambda t: (8+16*(t%D)) if (t%D)<4 else (160+16*(t%D-4))
    toks={}; tokw={}
    def need(d,k):
        while k not in d: a.bg_pop()
    def a_read1(t,c,hh):
        a.e(f'ds_read_b64_tr_b16 {vr(V_AF+4*c+2*hh,2)}, v{V_W2A+c} offset:{(t%8)*4096+2048*hh}')
        return a.lgtok()
    def push_loads(t):
        b=RB(t)
        if t>=14:
            psi=t-14
            for u in range(4):
                a.bg_push([f's_add_u32 s79, s78, {(16*psi+u)*8192}',
                           f'buffer_load_dwordx4 {vr(b+4*u,4)}, v6, {srd(S_WS)}, s79 offen {cfg.f("ldY")}'],
                          (lambda t=t: toks.__setitem__(t,a.vmtok())) if u==3 else None)
            return
        sc=cfg.f('ldA')
        for q in range(4):
            if t in(3,10):
                l=[f'buffer_load_dwordx2 {vr(b+4*q,2)}, v4, {srd(S_WS)}, s69 offen offset:{1024*q} {sc}',
                   f'buffer_load_dwordx2 {vr(b+4*q+2,2)}, v4, {srd(S_WS)}, s69 offen offset:{1024*q+512} {sc}']
            else:
                l=[f'buffer_load_dwordx4 {vr(b+4*q,4)}, v{V_L16}, {srd(S_WS)}, s69 offen offset:{1024*q} {sc}']
            if q==3: l.append('s_add_u32 s69, s69, 4096')
            a.bg_push(l,(lambda t=t: toks.__setitem__(t,a.vmtok())) if q==3 else None)
    def push_w2(t):
        for v in range(4):
            a.bg_push(w2_group(t,v,V_W2D),(lambda t=t: tokw.__setitem__(t,a.vmtok())) if v==3 else None)
    a.e('v_lshlrev_b32 v4, 3, v0')
    npre=cfg.x.get('npre',4)
    for t in range(npre): push_loads(t)
    a.bg_flush()
    if cfg.x.get('ydefer'):
        for nb in range(2):
            a.e(f'buffer_store_dwordx4 {vr(P2["V_B"]+4*nb,4)}, v{V_L16}, {srd(S_WS)}, s62 offen offset:{1024*nb} {cfg.f("stY")}')
        tok_y=a.vmtok()
    nxt=npre
    a.e(f"""v_lshlrev_b32 v5, 4, v1
    v_lshlrev_b32 v6, 15, v2
    v_add_u32 v6, v6, v5
    v_add_u32 v7, s71, v{V_L16}
    s_lshl_b32 s78, {wv}, 19
    s_add_u32 s78, s78, s74
    s_add_u32 s78, s78, {WS_Y}""")
    V_AF2=224; ACC2=[40,56,160,176]; tg={}
    def g_read(psi,c):
        AFp=(V_AF2 if psi%2==0 else V_AF)
        a.e(f'ds_read_b128 {vr(AFp+4*c,4)}, v7 offset:{GSLOT[psi]*4096+c*1024}'); tg[(psi,c)]=a.lgtok()
    def swaps(t):
        b=RB(t)
        for (i,j) in[(0,1),(0,2),(0,3),(1,2),(1,3),(2,3)]:
            a.e(f'v_swap_b32 v{b+4*i+j}, v{b+4*j+i}')
    ta={}
    for c in range(4):
        for hh in range(2): ta[(0,c,hh)]=a_read1(0,c,hh)
    a.bg_set(cfg.x.get('g2r',2),mfma_weight=2)
    TS3=cfg.x.get('ts3',10)
    for t in range(18):
        if cfg.fine==1: stamp(a,cfg,32+t)
        if t<=14:
            need(toks,t); a.wait_vm(toks[t])
        if t+1 in range(8,14):
            need(tokw,t+1); a.wait_vm(tokw[t+1])
        k_=0
        while nxt<14 and nxt-D<t and k_<2 and t<14:
            if nxt-D==t-0 and False: break
            if nxt-D>=t: break
            push_loads(nxt); nxt+=1; k_+=1
        if 1<=t and t-1+8<14: push_w2(t-1+8)
        if t==TS3+1: push_loads(14); push_loads(15)
        if t==TS3+2: push_loads(16); push_loads(17)
        b=RB(t)
        if t<14:
            for c in range(4):
                n=a.lg-ta[(t,c,1)]
                a.e(f's_waitcnt lgkmcnt({min(n,15)})')
                A=vr(V_AF+4*c,4)
                for q in range(4):
                    d=vr(V_ACC+16*q+4*c,4)
                    r=a.bg_rate
                    if q<2: a.bg_rate=0
                    a.e(f'v_mfma_f32_16x16x32_bf16 {d}, {A}, {vr(b+4*q,4)}, {d if t else 0}')
                    if q<2:
                        if c>=1 and t<13: ta[(t+1,c-1,q)]=a_read1(t+1,c-1,q)
                        if c==0 and t>=1: ta[(t,3,q)]=a_read1(t,3,q)
                    a.bg_rate=r
        else:
            psi=t-14; AFp=(V_AF2 if psi%2==0 else V_AF)
            if psi==0: swaps(14)
            for c in range(4):
                a.e(f's_waitcnt lgkmcnt({min(a.lg-tg[(psi,c)],15)})')
                for q in range(4):
                    d=vr(ACC2[q]+4*c,4)
                    a.e(f'v_mfma_f32_16x16x32_bf16 {d}, {vr(AFp+4*c,4)}, {vr(b+4*q,4)}, {d if psi else 0}')
                    if psi<3 and c==0 and q==0:
                        for c2 in range(4): g_read(psi+1,c2)
                    if psi<3 and c==1 and q==0:
                        need(toks,t+1); a.wait_vm(toks[t+1]); swaps(t+1)
        if cfg.x.get('ydefer') and t==cfg.x['ydefer']:
            a.wait_vm(tok_y); a.e('s_barrier')
        if t==TS3:
            a.bg_flush()
            a.e(f's_mov_b32 s93, {WS_CNT+16*128}')
            poll_w0(a,S_WS,'s93',NS3,128,256//NS3)
            a.e('s_barrier')
            a.e(f's_add_u32 s75, s74, {WS_G}')
            a.e(f'buffer_load_dwordx4 {vr(V_G,4)}, v5, {srd(S_WS)}, s75 offen {cfg.f("ldW")}')
            tok_g=a.vmtok()
        if t==13:
            a.e('s_barrier')
            for c in range(4): g_read(0,c)
            stamp(a,cfg,11)
    a.bg_flush(); a.bg_set(0)
    a.need_vm(tok_g)
    for q in range(4): a.e(f'v_sub_f32 v{V_G+q}, 1.0, v{V_G+q}')
    for q in range(4):
        for h in range(8):
            a.e(f'v_pk_fma_f32 {vr(V_ACC+16*q+2*h,2)}, {vr(V_ACC+16*q+2*h,2)}, {vr(V_G+(q&~1),2)}, {vr(ACC2[q]+2*h,2)} op_sel:[0,{q&1},0] op_sel_hi:[1,{q&1},1]')
    stamp(a,cfg,12)
    a.e(f'v_add_u32 v7, s71, v{V_L16}')
    for w in range(4):
        a.e(f's_cmp_lg_u32 {wv}, {w}')
        a.e(f's_cbranch_scc1 L_k3_w{w}')
        a.cond_begin()
        slot=0
        for q in range(4):
            if q==w: continue
            for c in range(4):
                a.e(f'ds_write_b128 v7, {vr(V_ACC+16*q+4*c,4)} offset:{slot*4096+c*1024}')
            slot+=1
        if w!=0:
            for h in range(8): a.e(f'v_pk_mov_b32 {vr(V_ACC+2*h,2)}, {vr(V_ACC+16*w+2*h,2)}, {vr(V_ACC+16*w+2*h,2)} op_sel:[0,1]')
        a.cond_end()
        a.e(f'L_k3_w{w}:')
    a.e('s_waitcnt lgkmcnt(0)'); a.e('s_barrier')
    V_RD=160
    for k in range(1,4):
        a.e(f"""s_add_u32 s76, {wv}, {k}
        s_and_b32 s76, s76, 3
        s_lshl_b32 s77, s76, 15
        s_cmp_lt_u32 {wv}, s76
        s_cselect_b32 s79, 0, 1
        s_sub_u32 s79, {wv}, s79
        s_lshl_b32 s79, s79, 12
        s_add_u32 s77, s77, s79
        v_add_u32 v7, s77, v{V_L16}""")
        for c in range(4): a.e(f'ds_read_b128 {vr(V_RD+16*(k-1)+4*c,4)}, v7 offset:{c*1024}')
    a.e(f"""v_lshlrev_b32 v5, 10, v1
    v_lshl_add_u32 v5, v2, 3, v5
    s_lshl_b32 s76, s72, 17
    s_lshl_b32 s77, {wv}, 15
    s_add_u32 s76, s76, s77
    s_lshl_b32 s77, s73, 14
    s_add_u32 s76, s76, s77
    s_lshl_b32 s77, s68, 7
    s_add_u32 s76, s76, s77""")
    for k in range(3):
        a.e(f's_waitcnt lgkmcnt({8-4*k})')
        for h in range(8): a.e(f'v_pk_add_f32 {vr(V_ACC+2*h,2)}, {vr(V_ACC+2*h,2)}, {vr(V_RD+16*k+2*h,2)}')
    V_O=8
    for c in range(4):
        a.e(f'v_cvt_pk_bf16_f32 v{V_O+2*c}, v{V_ACC+4*c}, v{V_ACC+4*c+1}')
        a.e(f'v_cvt_pk_bf16_f32 v{V_O+2*c+1}, v{V_ACC+4*c+2}, v{V_ACC+4*c+3}')
        a.e(f'buffer_store_dwordx2 {vr(V_O+2*c,2)}, v5, {srd(S_OUT)}, s76 offen offset:{32*c} {str(cfg.x.get("outf","")).replace("_"," ")}')

P2=dict(V_U=8,V_W=40,V_GT=48,V_Q=56,T0=64,V_F64R=80,V_F64I=96,V_F32R=112,V_F32I=128,V_T1C=144,V_T1S=152,V_T3C=160,V_T3S=168,V_DR=176,V_DI=184,V_B=192)
V_FW2D=246
def f_stream(a,cfg,end):
    a.e('L_F:')
    a.e('s_mov_b32 s90, 1')
    if cfg.x.get('fprio'): a.e(f's_setprio {cfg.x["fprio"]}')
    a.e(f'''s_lshr_b32 s49, s2, 5
    s_and_b32 s50, s2, 31
    s_lshl_b32 s51, s6, 17
    s_lshl_b32 s56, {wv}, 13
    s_add_u32 s51, s51, s56
    s_mul_i32 s52, s7, 224
    s_mul_i32 s56, {wv}, 14336
    s_add_u32 s52, s52, s56
    s_lshl_b32 s53, {wv}, 10
    s_mul_i32 s54, {wv}, 960
    s_add_u32 s54, s54, 16384''')
    T=6; V_XD=4; V_WD=5
    a.e(f'''v_lshrrev_b32 v{T}, 3, v0
    v_lshlrev_b32 v{V_XD}, 10, v{T}
    v_lshrrev_b32 v{T}, 1, v{T}
    s_and_b32 s56, {wv}, 1
    s_lshl_b32 s56, s56, 2
    v_add_u32 v{T}, s56, v{T}
    v_and_b32 v{T+1}, 7, v0
    v_xor_b32 v{T}, v{T}, v{T+1}
    v_lshl_add_u32 v{V_XD}, v{T}, 4, v{V_XD}
    v_mul_u32_u24 v{T}, 4682, v0
    v_lshrrev_b32 v{T}, 16, v{T}
    v_mul_u32_u24 v{V_WD}, 3584, v{T}
    v_mul_u32_u24 v{T}, 14, v{T}
    v_sub_u32 v{T}, v0, v{T}
    v_lshl_add_u32 v{V_WD}, v{T}, 4, v{V_WD}
    v_mov_b32 v{V_LC}, {LC_BASE}''')
    a.e(f'''s_lshl_b32 s56, s49, 18
    s_lshl_b32 s57, s50, 10
    s_add_u32 s56, s56, s57
    s_lshl_b32 s57, {wv}, 16
    s_add_u32 s56, s56, s57
    s_add_u32 s58, s56, 32768
    s_mul_i32 s57, {wv}, {2*XA_PITCH}
    s_add_u32 s57, s57, {XA_BASE}''')
    a.e('s_waitcnt lgkmcnt(0)')
    stamp(a,cfg,26)
    a.e(f's_cmp_lg_u32 {wv}, 0'); a.e('s_cbranch_scc1 L_a_r0'); a.cond_begin()
    a.e(f's_mov_b32 m0, {GW_LDS}'); a.e('s_nop 0')
    a.e(f'buffer_load_dwordx4 v{V_L16}, {srd(S_GW)}, 0 offen lds')
    a.cond_end(); a.e('L_a_r0:')
    a.e(f's_cmp_lg_u32 {wv}, 1'); a.e('s_cbranch_scc1 L_a_r1'); a.cond_begin()
    a.e(f's_mul_i32 s64, s7, 224'); a.e(f's_mov_b32 m0, {B1_LDS}'); a.e('s_mov_b64 exec, 0x3fff')
    a.e(f'buffer_load_dwordx4 v{V_L16}, {srd(S_B1)}, s64 offen lds')
    a.e('s_mov_b64 exec, -1')
    a.cond_end(); a.e('L_a_r1:')
    tok_c={}
    def chunk_groups(c):
        gs=[]
        for u in range(4):
            gs.append(([f's_add_u32 m0, s53, {SB(c)+u*4096}', f's_add_u32 s55, s51, {u*32768+c*128}',
                        f'buffer_load_dwordx4 v{V_XD}, {srd(S_X)}, s55 offen lds'],None))
        for u in range(4):
            cb=(lambda c=c: tok_c.__setitem__(c,a.vmtok())) if u==3 else None
            gs.append(([f's_add_u32 m0, s54, {SB(c)+u*3840}', f's_add_u32 s55, s52, {u*57344+c*229376}',
                        's_mov_b32 exec_hi, 0x00ffffff',
                        f'buffer_load_dwordx4 v{V_WD}, {srd(S_W1)}, s55 offen lds',
                        's_mov_b32 exec_hi, -1'],cb))
        return gs
    def push_chunk(c):
        for g_ in chunk_groups(c): a.bg_push(*g_)
    def wait_role(tok,e3,e2):
        n=a.vm-tok; lab=f'L_wr{len(a.items)}'
        a.e(f's_cmp_eq_u32 {wv}, 3'); a.e(f's_cbranch_scc1 {lab}_3')
        a.e('s_cmp_eq_u32 s66, 0'); a.e(f's_cbranch_scc1 {lab}_2')
        a.e(f's_waitcnt vmcnt({n})'); a.e(f's_branch {lab}_e')
        a.e(f'{lab}_3:'); a.e(f's_waitcnt vmcnt({min(n+e3,62)})'); a.e(f's_branch {lab}_e')
        a.e(f'{lab}_2:'); a.e(f's_waitcnt vmcnt({min(n+e2,62)})')
        a.e(f'{lab}_e:')
    def chunk_now(c):
        if cfg.fine==3: stamp(a,cfg,48+2*c%16 if False else 40+c)
        push_chunk(c); a.bg_flush()
        if cfg.fine==3: stamp(a,cfg,50+c)
    a.e(f'''s_mov_b32 m0, s57
    s_add_u32 s57, s57, {XA_PITCH}
    buffer_load_dwordx4 v{V_L16}, {srd(S_X)}, s56 offen lds
    s_mov_b32 m0, s57
    s_nop 0
    buffer_load_dwordx4 v{V_L16}, {srd(S_X)}, s58 offen lds''')
    tok_xa=a.vmtok()
    st={'roles':None,'wt':None}
    V={}
    def do_roles(c):
        st['roles']=c
        a.e('''s_lshr_b32 s59, s50, 3
        s_lshr_b32 s60, s50, 2
        s_and_b32 s60, s60, 1
        s_and_b32 s61, s50, 3
        s_lshl_b32 s62, s59, 4
        s_lshl_b32 s63, s60, 10
        s_add_u32 s62, s62, s63
        s_lshl_b32 s63, s61, 8
        s_add_u32 s62, s62, s63
        s_lshl_b32 s63, s59, 11
        s_lshl_b32 s64, s60, 10
        s_add_u32 s63, s63, s64
        s_lshl_b32 s64, s61, 8
        s_add_u32 s63, s63, s64''')
        V_WR=8; V_WI=24; V_WO=7
        a.e(f's_cmp_lg_u32 {wv}, {9 if cfg.x.get("x_norole") else 3}'); a.e('s_cbranch_scc1 L_a_r3'); a.cond_begin()
        a.e(f'''v_lshrrev_b32 v{V_WO}, 2, v0
        v_mul_u32_u24 v{V_WO}, 514, v{V_WO}
        v_and_b32 v{T}, 3, v0
        v_lshl_add_u32 v{V_WO}, v{T}, 4, v{V_WO}
        s_mul_i32 s64, s62, 514
        s_lshl_b32 s65, s49, 6
        s_add_u32 s64, s64, s65''')
        for r in range(4):
            a.e(f'buffer_load_dwordx4 {vr(V_WR+4*r,4)}, v{V_WO}, {srd(S_WR)}, s64 offen')
            a.e(f'buffer_load_dwordx4 {vr(V_WI+4*r,4)}, v{V_WO}, {srd(S_WI)}, s64 offen')
            if r<3: a.e(f's_add_u32 s64, s64, {64*514}')
        a.cond_end(); a.e('L_a_r3:')
        V_SP=40; V_J=48; V_JR=49
        a.e(f'''s_lshl_b32 s65, s49, 2
        s_xor_b32 s66, {wv}, 2
        s_or_b32 s66, s66, s65''')
        a.e('s_cmp_lg_u32 s66, 0'); a.e('s_cbranch_scc1 L_a_r2'); a.cond_begin()
        a.e(f'''v_lshlrev_b32 v{V_J}, 6, v2
        v_add_u32 v{V_J}, v{V_J}, v1
        v_add_u32 v{V_J}, s62, v{V_J}
        v_sub_u32 v{V_JR}, 2048, v{V_J}
        v_and_b32 v{V_JR}, 2047, v{V_JR}
        v_mul_u32_u24 v{V_J}, 514, v{V_J}
        v_mul_u32_u24 v{V_JR}, 514, v{V_JR}''')
        for n,(S,vv,off) in enumerate([(S_WR,V_J,0),(S_WR,V_J,512),(S_WR,V_JR,0),(S_WR,V_JR,512),(S_WI,V_J,0),(S_WI,V_J,512),(S_WI,V_JR,0),(S_WI,V_JR,512)]):
            a.e(f'buffer_load_ushort v{V_SP+n}, v{vv}, {srd(S)}, 0 offen offset:{off}')
        a.cond_end(); a.e('L_a_r2:')
        tok_role=a.vmtok()
        V.update(V_WR=V_WR,V_WI=V_WI,V_SP=V_SP,tok_role=tok_role)
    def do_wt(c):
        st['wt']=c
        T0=92; V_B1S=68; V_WR=V['V_WR']; V_WI=V['V_WI']; V_SP=V['V_SP']; tok_role=V['tok_role']
        a.e(f's_cmp_lg_u32 {wv}, {9 if cfg.x.get("x_norole") else 3}'); a.e('s_cbranch_scc1 L_a_w3')
        a.wait_vm(tok_role); a.cond_begin()
        V_WP=188
        a.e('s_mov_b32 s78, 0x05040100'); a.e('s_mov_b32 s79, 0x07060302')
        for kk in range(8):
            for r in range(4):
                a.e(f'v_perm_b32 v{V_WP+4*kk+r}, v{V_WI+4*r+(kk>>1)}, v{V_WR+4*r+(kk>>1)}, s{78+(kk&1)}')
        a.e(f'''v_and_b32 v{T0+4}, 3, v0
        v_lshlrev_b32 v{T0+5}, 16, v{T0+4}
        v_lshrrev_b32 v{T0+6}, 2, v0
        v_lshl_add_u32 v{T0+5}, v{T0+6}, 4, v{T0+5}
        s_lshl_b32 s76, s49, 2
        v_add_u32 v{T0+4}, s76, v{T0+4}
        v_cmp_eq_u32 vcc, 0, v{T0+4}
        v_mov_b32 v{T0+6}, {OOB}
        v_cndmask_b32 v{T0+6}, v{T0+5}, v{T0+6}, vcc
        s_lshl_b32 s76, s49, 18
        s_add_u32 s76, s76, s63
        s_add_u32 s76, s76, {WS_WT}''')
        for kk in range(8):
            a.e(f'buffer_store_dwordx4 {vr(V_WP+4*kk,4)}, v{T0+6 if kk==0 else T0+5}, {srd(S_WS)}, s76 offen {cfg.f("stW")}')
            if kk<7: a.e('s_add_u32 s76, s76, 8192')
        a.cond_end(); a.e('L_a_w3:')
        a.e('s_cmp_lg_u32 s66, 0'); a.e('s_cbranch_scc1 L_a_w2')
        a.wait_vm(tok_role); a.cond_begin()
        for n in range(8): a.e(f'v_lshlrev_b32 v{V_SP+n}, 16, v{V_SP+n}')
        s=V_SP; t=V_B1S
        a.e(f'''v_add_f32 v{t}, v{s}, v{s+2}
        v_add_f32 v{t+1}, v{s+1}, v{s+3}
        v_sub_f32 v{t+2}, v{s+4}, v{s+6}
        v_sub_f32 v{t+3}, v{s+5}, v{s+7}
        v_add_f32 v{t+4}, v{t}, v{t+1}
        v_add_f32 v{t+5}, v{t+2}, v{t+3}
        v_sub_f32 v{t+6}, v{t}, v{t+1}
        v_sub_f32 v{t+7}, v{t+2}, v{t+3}
        v_mul_f32 v{t+4}, {fl(0.25)}, v{t+4}
        v_mul_f32 v{t+5}, {fl(0.25)}, v{t+5}
        v_mul_f32 v{t+6}, {fl(0.25)}, v{t+6}
        v_mul_f32 v{t+7}, {fl(0.25)}, v{t+7}
        v_cvt_pk_bf16_f32 v{t}, v{t+4}, v{t+5}
        v_cvt_pk_bf16_f32 v{t+1}, v{t+6}, v{t+7}
        v_lshlrev_b32 v{t+2}, 4, v1
        v_lshl_add_u32 v{t+2}, v2, 2, v{t+2}
        s_add_u32 s77, s63, {WS_QT}
        s_add_u32 s76, s63, {WS_WT}
        buffer_store_dword v{t}, v{t+2}, {srd(S_WS)}, s76 offen {cfg.f("stW")}
        buffer_store_dword v{t+1}, v{t+2}, {srd(S_WS)}, s77 offen {cfg.f("stW")}''')
        a.cond_end(); a.e('L_a_w2:')
    RL=cfg.x.get('rl_after',5); WT=cfg.x.get('wt_after',7)
    def chunk_plus(c):
        chunk_now(c)
        if RL==c: do_roles(c)
        if WT==c: do_wt(c)
    def wait_chunk(c):
        e3=e2=0
        if st['roles'] is not None and st['roles']>=c: e3+=8; e2+=8
        if st['wt'] is not None and st['wt']>=c: e3+=8; e2+=2
        if e3==0: a.wait_vm(tok_c[c])
        else: wait_role(tok_c[c],e3,e2)
    a.e(f'''s_lshl_b32 s65, s49, 2
    s_xor_b32 s66, {wv}, 2
    s_or_b32 s66, s66, s65''')
    chunk_plus(0)
    chunk_plus(1)
    if cfg.x.get('fprio'): a.e('s_setprio 0')
    stamp(a,cfg,0)
    a.wait_vm(tok_xa); a.e('s_barrier')
    stamp(a,cfg,1)
    chunk_plus(2)
    wait_chunk(0); a.e('s_barrier')
    chunk_plus(3)
    wait_chunk(1); a.e('s_barrier')
    chunk_plus(4)
    wait_chunk(2); a.e('s_barrier')
    chunk_plus(5)
    wait_chunk(3); a.e('s_barrier')
    chunk_plus(6)
    wait_chunk(4); a.e('s_barrier')
    chunk_plus(7)
    wait_chunk(5); a.e('s_barrier')
    m_g2_ids(a,cfg)
    w2_dma_addr(a,V_FW2D,244)
    wait_chunk(6); a.e('s_barrier')
    a.e('s_waitcnt vmcnt(0)'); a.e('s_barrier')
    a.e('s_and_b32 s92, s5, 3'); a.e('s_lshl_b32 s92, s92, 6')
    ssignal(a,S_DBG,'s92')
    a.e('s_barrier')
    stamp(a,cfg,4)
    def w2slots(lo,hi):
        for t in range(lo,hi):
            for v in range(4): a.bg_push(w2_group(t,v,V_FW2D))
        a.bg_flush()
    w2slots(0,cfg.x.get('w2pre',4))
    stamp(a,cfg,5)
    a.e(f's_cmp_lg_u32 {wv}, 0'); a.e('s_cbranch_scc1 L_f_s1'); a.cond_begin()
    if cfg.x.get('s1drain',1): a.e('s_waitcnt vmcnt(0)')
    a.e('s_mov_b32 s93, 0')
    spin_global(a,S_DBG,'s93',4,64,64)
    p2_t_loads(a,cfg)

    a.cond_end(); a.e('L_f_s1:')
    stamp(a,cfg,6)
    a.e('s_waitcnt vmcnt(0)'); a.e('s_barrier')
    a.e(f's_lshl_b32 s92, s6, 7'); a.e(f's_add_u32 s92, s92, {WS_CNT}')
    ssignal(a,S_WS,'s92')
    stamp(a,cfg,7)
    w2slots(cfg.x.get('w2pre',4),8)
    a.e('s_waitcnt vmcnt(0)'); a.e('s_barrier')
    a.e('s_lshl_b32 s56, s4, 5'); a.e('s_add_u32 s56, s56, s5')
    a.e('s_cmp_lg_u32 s56, 0'); a.e('s_cbranch_scc1 L_f_nospec'); a.cond_begin()
    a.e('s_barrier')
    a.cond_end(); a.e('L_f_nospec:')
    a.e(f's_lshl_b32 s93, s72, 7'); a.e(f's_add_u32 s93, s93, {WS_CNT}')
    poll_w0(a,S_WS,'s93',1,0,16)
    a.e('s_barrier')
    if cfg.x.get('ydefer'): a.e('s_barrier')
    a.e(f's_and_b32 s92, s2, {NS3-1}'); a.e('s_lshl_b32 s92, s92, 7'); a.e(f's_add_u32 s92, s92, {WS_CNT+16*128}')
    ssignal(a,S_WS,'s92')
    T0=80; TA=92
    a.e(f"""s_lshl_b32 s75, s68, 6
    v_add_u32 v{T0}, s75, v1
    v_cvt_f32_u32 v{T0}, v{T0}
    s_lshl_b32 s75, {wv}, 6
    v_lshlrev_b32 v{T0+1}, 2, v2
    v_add_u32 v{T0+1}, s75, v{T0+1}
    v_cvt_f32_u32 v{T0+1}, v{T0+1}""")
    for c in range(4):
        a.e(f'v_add_f32 v{T0+2+c}, {fl(16*c)}, v{T0}' if c else f'v_mov_b32 v{T0+2}, v{T0}')
        a.e(f'v_mul_f32 v{T0+2+c}, {fl(1/512)}, v{T0+2+c}')
        a.e(f'v_mul_f32 v{T0+6+c}, v{T0+1}, v{T0+2+c}')
    def pk(d): return lambda c,s: a.e(f'v_cvt_pk_bf16_f32 v{d}, v{c}, v{s}')
    angles(a,[(T0+2+c,T0+6+c,16*psi+u,(None,None,pk(V_GF+16*psi+4*c+u)),False) for (psi,c,u) in G_ITEMS],TA)
    a.e(f"""s_cmp_eq_u32 {wv}, 0
    s_cselect_b32 s76, 0xffff, 0
    s_mov_b32 s77, 0
    v_mov_b32 v{T0}, {hex(0xBF003F00)}
    v_and_b32 v{T0+1}, 1, v1
    v_lshlrev_b32 v{T0+1}, 31, v{T0+1}
    v_xor_b32 v{T0}, v{T0}, v{T0+1}""")
    for c in range(4): a.e(f'v_cndmask_b32 v{V_GF+4*c}, v{V_GF+4*c}, v{T0}, s[76:77]')
    a.e(f'v_add_u32 v7, s71, v{V_L16}')
    a.e('s_barrier')
    for psi in range(4):
        for c in range(4):
            a.e(f'ds_write_b128 v7, {vr(V_GF+16*psi+4*c,4)} offset:{GSLOT[psi]*4096+c*1024}')
    a.e('s_waitcnt lgkmcnt(0)'); a.e('s_barrier')
    stamps_flush(a,cfg)
    a.e(f's_branch {end}')

def p2_t_loads(a,cfg):
    T0=64
    a.e(f'''s_lshl_b32 s56, s4, 5
    s_add_u32 s56, s56, s5
    v_lshrrev_b32 v{T0}, 5, v0
    v_lshlrev_b32 v{T0}, 18, v{T0}
    v_bfe_u32 v{T0+1}, v0, 1, 4
    v_lshl_add_u32 v{T0}, v{T0+1}, 13, v{T0}
    v_and_b32 v{T0+1}, 1, v0
    v_lshl_add_u32 v{T0}, v{T0+1}, 4, v{T0}
    s_lshl_b32 s57, s56, 5
    s_add_u32 s57, s57, {WS_T}''')
    for ks in range(4):
        for mb in range(2):
            a.e(f's_mov_b32 m0, {TB_BASE+2048*ks+1024*mb}')
            a.e(f's_add_u32 s58, s57, {ks*524288+mb*131072}')
            a.e(f'buffer_load_dwordx4 v{T0}, {srd(S_WS)}, s58 offen {cfg.f("ldT")} lds')
    a.e(f's_lshl_b32 s57, s56, 13'); a.e(f's_add_u32 s57, s57, {WS_WT}')
    for j in range(8):
        a.e(f's_mov_b32 m0, {WB_BASE+1024*j}')
        a.e(f's_add_u32 s58, s57, {1024*j}')
        a.e(f'buffer_load_dwordx4 v{V_L16}, {srd(S_WS)}, s58 offen {cfg.f("ldW")} lds')

def p2_small_loads(a,cfg):
    V_W,V_GT,V_Q,T0=P2['V_W'],P2['V_GT'],P2['V_Q'],P2['T0']
    a.e(f'''s_lshl_b32 s56, s4, 5
    s_add_u32 s56, s56, s5
    s_lshl_b32 s60, s56, 13
    s_lshl_b32 s61, {wv}, 11
    s_add_u32 s60, s60, s61
    s_add_u32 s62, s60, {WS_WT}
    s_add_u32 s63, s61, {WS_G}
    s_add_u32 s64, s61, {WS_QT}''')
    for nb in range(2): a.e(f'buffer_load_dwordx4 {vr(V_GT+4*nb,4)}, v{V_L16}, {srd(S_WS)}, s63 offen offset:{1024*nb} {cfg.f("ldW")}')
    a.e(f'''s_cmp_eq_u32 s56, 0
    s_cselect_b32 s65, 0, {OOB}
    v_add_u32 v{T0+2}, s65, v{V_L16}''')
    for eh in range(2): a.e(f'buffer_load_dwordx4 {vr(V_Q+4*eh,4)}, v{T0+2}, {srd(S_WS)}, s64 offen offset:{1024*eh} {cfg.f("ldW")}')

def p2_table_parts(a,cfg):
    p=P2; T0=232; TA=200
    def pk(dr,di):
        def f(c,s):
            a.e(f'v_cvt_pk_bf16_f32 v{dr}, v{c}, v{s}')
            a.e(f'v_cvt_pk_bf16_f32 v{di}, -v{s}, v{c}')
        return f
    def part0():
        a.e(f'''s_lshl_b32 s83, {wv}, 4
        v_add_u32 v{T0}, s83, v1
        v_cvt_f32_u32 v{T0}, v{T0}
        v_lshlrev_b32 v{T0+2}, 2, v2
        v_cvt_f32_u32 v{T0+2}, v{T0+2}
        v_mul_f32 v{T0+1}, {fl(1/64)}, v{T0}
        v_mul_f32 v{T0+3}, v{T0+2}, v{T0+1}''')
        angles(a,[(T0+1,T0+3,16*ks+u,(None,None,pk(p['V_F64R']+4*ks+u,p['V_F64I']+4*ks+u)),False) for ks in range(3) for u in range(4)],TA)
    def part1():
        angles(a,[(T0+1,T0+3,16*ks+u,(None,None,pk(p['V_F64R']+4*ks+u,p['V_F64I']+4*ks+u)),False) for ks in range(3,4) for u in range(4)],TA)
        a.e(f'''v_mul_f32 v{T0+1}, {fl(1/2048)}, v{T0}
        v_mul_f32 v{T0+3}, v{T0+2}, v{T0+1}''')
        angles(a,[(T0+1,T0+3,16*mb+r,(p['V_T1C']+4*mb+r,p['V_T1S']+4*mb+r,None),True) for mb in range(2) for r in range(4)],TA)
    def part2():
        a.e(f'v_cvt_f32_u32 v{T0+7}, v1')
        for eh in range(2):
            a.e(f'''v_add_f32 v{T0+1}, {fl(16*eh)}, v{T0+7}
            v_mul_f32 v{T0+1}, {fl(1/32)}, v{T0+1}
            v_mul_f32 v{T0+3}, v{T0+2}, v{T0+1}''')
            angles(a,[(T0+1,T0+3,16*mb+u,(None,None,pk(p['V_F32R']+8*eh+4*mb+u,p['V_F32I']+8*eh+4*mb+u)),False) for mb in range(2) for u in range(4)],TA)
    def part3():
        a.e(f'''v_cvt_f32_u32 v{T0}, s83
        v_add_f32 v{T0+2}, v{T0}, v{T0+2}''')
        for nb in range(2):
            a.e(f'''v_add_f32 v{T0+1}, {fl(16*nb)}, v{T0+7}
            v_mul_f32 v{T0+1}, {fl(1/2048)}, v{T0+1}
            v_mul_f32 v{T0+3}, v{T0+2}, v{T0+1}''')
            angles(a,[(T0+1,T0+3,r,(p['V_T3C']+4*nb+r,p['V_T3S']+4*nb+r,None),True) for r in range(4)],TA)
    return [part0,part1,part2,part3]

def p2_compute(a,cfg,tok_w):
    p=P2
    V_U,V_W,V_GT,T0=p['V_U'],p['V_W'],p['V_GT'],p['T0']
    V_F64R,V_F64I,V_F32R,V_F32I=p['V_F64R'],p['V_F64I'],p['V_F32R'],p['V_F32I']
    V_T1C,V_T1S,V_T3C,V_T3S=p['V_T1C'],p['V_T1S'],p['V_T3C'],p['V_T3S']
    V_DR,V_DI,V_B=p['V_DR'],p['V_DI'],p['V_B']; TT=200
    a.e(f'''v_lshrrev_b32 v{T0+4}, 1, v2
    v_lshlrev_b32 v{T0+4}, 5, v{T0+4}
    v_lshl_add_u32 v{T0+4}, v1, 1, v{T0+4}
    v_and_b32 v{T0+5}, 1, v2
    v_add_u32 v{T0+4}, v{T0+4}, v{T0+5}
    v_lshlrev_b32 v{T0+4}, 4, v{T0+4}
    v_add_u32 v{T0+4}, {TB_BASE}, v{T0+4}''')
    for ks in range(4):
        for mb in range(2):
            a.e(f'ds_read_b128 {vr(V_U+16*mb+4*ks,4)}, v{T0+4} offset:{2048*ks+1024*mb}')
    V_WR=216; V_WI=224
    a.e(f's_lshl_b32 s65, {wv}, 11'); a.e(f's_add_u32 s65, s65, {WB_BASE}'); a.e(f'v_add_u32 v{T0+6}, s65, v{V_L16}')
    for eh in range(2): a.e(f'ds_read_b128 {vr(V_W+4*eh,4)}, v{T0+6} offset:{1024*eh}')
    for ks in range(4):
        a.e(f's_waitcnt lgkmcnt({8-2*ks})')
        for mb in range(2):
            A=vr(V_U+16*mb+4*ks,4)
            for (D,Fm) in((V_DR,V_F64R),(V_DI,V_F64I)):
                d=vr(D+4*mb,4)
                a.e(f'v_mfma_f32_16x16x32_bf16 {d}, {A}, {vr(Fm+4*ks,4)}, {d if ks else 0}')
    a.e('s_waitcnt lgkmcnt(0)')
    for e in range(8):
        a.e(f'v_lshlrev_b32 v{V_WR+e}, 16, v{V_W+e}')
        a.e(f'v_and_b32 v{V_WI+e}, 0xffff0000, v{V_W+e}')
    for mb in range(2): cmul_pack(a,V_DR+4*mb,V_DI+4*mb,V_T1C+4*mb,V_T1S+4*mb,V_B+4*mb,TT)
    for mb in range(2):
        for eh in range(2):
            for (D,Fm) in((V_DR,V_F32R),(V_DI,V_F32I)):
                d=vr(D+4*eh,4)
                a.e(f'v_mfma_f32_16x16x32_bf16 {d}, {vr(Fm+8*eh+4*mb,4)}, {vr(V_B+4*mb,4)}, {d if mb else 0}')
    a.e(f'''s_lshl_b32 s65, {wv}, 11
    s_add_u32 s65, s65, {XB_BASE}
    v_add_u32 v{T0+4}, s65, v{V_L16}
    v_add_u32 v{T0+5}, {XB_BASE}, v{V_L16}''')
    a.e('s_cmp_lg_u32 s56, 0')
    a.e('s_cbranch_scc0 L_p2_special')
    for eh in range(2): cmul_pack(a,V_DR+4*eh,V_DI+4*eh,V_WR+4*eh,V_WI+4*eh,V_B+4*eh,TT,negim=True)
    a.e('L_p2_join:')
    for ks in range(2):
        for nb in range(2):
            for (D,Fm) in((V_DR,V_F32R),(V_DI,V_F32I)):
                d=vr(D+4*nb,4)
                a.e(f'v_mfma_f32_16x16x32_bf16 {d}, {vr(V_B+4*ks,4)}, {vr(Fm+8*nb+4*ks,4)}, {d if ks else 0}')
    for nb in range(2):
        cmul_pack(a,V_DR+4*nb,V_DI+4*nb,V_T3C+4*nb,V_T3S+4*nb,V_B+4*nb,TT)
        a.e(f'ds_write_b128 v{T0+4}, {vr(V_B+4*nb,4)} offset:{1024*nb}')
    a.e('s_waitcnt lgkmcnt(0)')
    a.e('s_barrier')
    V_X=V_U
    for ks in range(4):
        for nb in range(2):
            a.e(f'ds_read_b128 {vr(V_X+8*ks+4*nb,4)}, v{T0+5} offset:{2048*ks+1024*nb}')
    for ks in range(4):
        a.e(f's_waitcnt lgkmcnt({6-2*ks})')
        for nb in range(2):
            for (D,Fm) in((V_DR,V_F64R),(V_DI,V_F64I)):
                d=vr(D+4*nb,4)
                a.e(f'v_mfma_f32_16x16x32_bf16 {d}, {vr(Fm+4*ks,4)}, {vr(V_X+8*ks+4*nb,4)}, {d if ks else 0}')
    a.wait_vm(tok_w)
    for e in range(8): a.e(f'v_mul_f32 v{V_GT+e}, {fl(2.0**-19)}, v{V_GT+e}')
    a.e(f's_add_u32 s62, s60, {WS_Y}')
    for nb in range(2):
        for h in range(2):
            a.e(f'v_pk_mul_f32 {vr(V_DR+4*nb+2*h,2)}, {vr(V_DR+4*nb+2*h,2)}, {vr(V_GT+4*nb+2*h,2)}')
            a.e(f'v_pk_mul_f32 {vr(V_DI+4*nb+2*h,2)}, {vr(V_DI+4*nb+2*h,2)}, {vr(V_GT+4*nb+2*h,2)}')
        for r in range(4): a.e(f'v_cvt_pk_bf16_f32 v{V_B+4*nb+r}, v{V_DR+4*nb+r}, v{V_DI+4*nb+r}')
        if not cfg.x.get('ydefer'): a.e(f'buffer_store_dwordx4 {vr(V_B+4*nb,4)}, v{V_L16}, {srd(S_WS)}, s62 offen offset:{1024*nb} {cfg.f("stY")}')

def p2_special(a,cfg):
    p=P2
    V_U,V_Q,T0,V_DR,V_DI,V_B=p['V_U'],p['V_Q'],p['T0'],p['V_DR'],p['V_DI'],p['V_B']
    V_WR=216; V_WI=224
    a.e('L_p2_special:')
    a.cond_begin()
    a.e('s_waitcnt vmcnt(0)')
    V_J=T0+8; V_ZA=V_U+16
    a.e(f'''s_lshl_b32 s65, {wv}, 4
    v_lshlrev_b32 v{V_J}, 8, v2
    v_add3_u32 v{V_J}, v{V_J}, v1, s65''')
    for eh in range(2):
        for r in range(4):
            n=1024*eh+64*r
            a.e(f'v_add_u32 v{T0}, {n}, v{V_J}')
            a.e(f'v_lshlrev_b32 v{T0}, 2, v{T0}')
            a.e(f'v_cvt_pk_bf16_f32 v{T0+2}, v{V_DR+4*eh+r}, v{V_DI+4*eh+r}')
            a.e(f'v_add_u32 v{T0}, {ZR_BASE}, v{T0}')
            a.e(f'ds_write_b32 v{T0}, v{T0+2}')
    a.e('s_waitcnt lgkmcnt(0)')
    a.e('s_barrier')
    for eh in range(2):
        for r in range(4):
            n=1024*eh+64*r
            a.e(f'v_sub_u32 v{T0}, {2048-n}, v{V_J}')
            a.e(f'v_and_b32 v{T0}, 2047, v{T0}')
            a.e(f'v_lshlrev_b32 v{T0}, 2, v{T0}')
            a.e(f'v_add_u32 v{T0}, {ZR_BASE}, v{T0}')
            a.e(f'ds_read_b32 v{V_ZA+4*eh+r}, v{T0}')
    a.e('s_waitcnt lgkmcnt(0)')
    for e in range(8):
        zr=V_DR+e; zi=V_DI+e; pr=V_WR+e; pi=V_WI+e; ar_=T0+6; ai=T0+7
        qr=T0; qi=T0+1; yr=T0+2; yi=T0+3
        a.e(f'''v_lshlrev_b32 v{qr}, 16, v{V_Q+e}
        v_and_b32 v{qi}, 0xffff0000, v{V_Q+e}
        v_lshlrev_b32 v{ar_}, 16, v{V_ZA+e}
        v_and_b32 v{ai}, 0xffff0000, v{V_ZA+e}
        v_mul_f32 v{yr}, v{zr}, v{pr}
        v_fma_f32 v{yr}, -v{zi}, v{pi}, v{yr}
        v_fma_f32 v{yr}, v{ar_}, v{qr}, v{yr}
        v_fma_f32 v{yr}, v{ai}, v{qi}, v{yr}
        v_mul_f32 v{yi}, v{zr}, v{pi}
        v_fma_f32 v{yi}, v{zi}, v{pr}, v{yi}
        v_fma_f32 v{yi}, v{ar_}, v{qi}, v{yi}
        v_fma_f32 v{yi}, -v{ai}, v{qr}, v{yi}
        v_cvt_pk_bf16_f32 v{V_B+e}, v{yr}, -v{yi}''')
    a.cond_end()
    a.e('s_branch L_p2_join')

HEADER='''; Gated mix of a GFNet spectral filter and a dense->mish->dense block, one persistent launch.
; (text generated by the author's own generator script; 256 workgroups, one per CU, hand-offs through counters)
'''
def build(stamps=False,off=(),**kw):
    cfg=Cfg(); cfg.stamps=stamps; cfg.off=set(off); cfg.x=kw; cfg.fine=kw.get('fine',0)
    label=NAME+'_kernel'
    a=Asm(); end='L_end'
    prologue(a,cfg,end)
    sv=(a.vm,a.lg)
    if kw.get('ffirst'):
        f_stream(a,cfg,end)
        nbF=sum(1 for i in a.items if i.op=='s_barrier'); n0=len(a.items)
        a.vm,a.lg=sv; a.bg_rate=0; assert not a.bg
        a.e('L_M:')
        m_stream(a,cfg,end)
        nbM=sum(1 for i in a.items[n0:] if i.op=='s_barrier')
    else:
        m_stream(a,cfg,end)
        nbM=sum(1 for i in a.items if i.op=='s_barrier'); n0=len(a.items)
        a.vm,a.lg=sv; a.bg_rate=0; assert not a.bg
        f_stream(a,cfg,end)
        nbF=sum(1 for i in a.items[n0:] if i.op=='s_barrier')
    a.e(f'{end}:'); a.e('s_endpgm')
    txt=a.text()
    errs=[]
    for role in (False,True):
        jump=lambda t: (role and t=='L_F') or ((not role) and t=='L_M')
        for nm,pol in (('fall',lambda i,n:i.target.endswith('_done') or jump(i.target)),
                       ('taken',lambda i,n:((not i.target.startswith('L_end')) and n==0 and (i.target not in('L_F','L_M') or jump(i.target))))):
            errs+=verify_waits(a.out,pol,('F' if role else 'M')+nm)
    for e in sorted(set(errs))[:30]: print('WAITERR',e,file=sys.stderr)
    print(dict(a.count()),'barriers M',nbM,'F',nbF,file=sys.stderr)
    out=HEADER+f'; @launch grid=(256,1,1) block=(512,1,1) lds={LDS_TOTAL}\n'
    out+='.amdgcn_target "amdgcn-amd-amdhsa--gfx950"\n.text\n'
    out+=f'.globl {label}\n.p2align 8\n.type {label},@function\n{label}:\n{txt}'
    out+=f'''.section .rodata,"a"
.p2align 6
.amdhsa_kernel {label}
  .amdhsa_next_free_vgpr 256
  .amdhsa_next_free_sgpr 102
  .amdhsa_accum_offset 256
  .amdhsa_group_segment_fixed_size 0
  .amdhsa_kernarg_size 88
  .amdhsa_user_sgpr_count 2
  .amdhsa_user_sgpr_kernarg_segment_ptr 1
  .amdhsa_system_sgpr_workgroup_id_x 1
.end_amdhsa_kernel
'''
    return out

if __name__=='__main__':
    mode=sys.argv[1] if len(sys.argv)>1 else 'persist'
    kw={}
    for x in sys.argv[3:]:
        k,v=x.split('='); kw[k]=int(v) if v.lstrip('-').isdigit() else v
    off=kw.pop('off','').split(',') if 'off' in kw else ()
    txt=build(stamps=(mode=='stamps'),off=off,**kw)
    open(sys.argv[2] if len(sys.argv)>2 else 'out.s','w').write(txt)
```

```python
import sys, os, struct
from dsl import Asm, verify_waits

NAME='gated_mix__spectral_gfnet__dense_activation_mish__prompt'
WS_T   =0x000000
WS_WT  =0x200000
WS_QT  =0x400000
WS_G   =0x402000
WS_CNT =0x404000
WS_Y   =0x600000
WS_ACT =0x800000
WS_STAMP=0x1000000
WS_SIZE=0x1080000
RT_STRIDE=56*4096
S_X,S_WR,S_WI,S_W1,S_B1,S_W2,S_GW,S_OUT,S_WS,S_DBG=8,12,16,20,24,28,32,36,40,44
def srd(n): return f's[{n}:{n+3}]'
SRDS=[(S_X,0,2048*1024),(S_WR,8,2048*514),(S_WI,16,2048*514),(S_W1,32,512*3584),(S_B1,40,3584),
      (S_W2,48,1792*1024),(S_GW,56,1024),(S_OUT,64,2048*1024),(S_WS,80,WS_SIZE),(S_DBG,72,256)]
def vr(b,n=1): return f'v{b}' if n==1 else f'v[{b}:{b+n-1}]'
def fl(x): return hex(struct.unpack('<I',struct.pack('<f',float(x)))[0])
S_WV=3; S_W8=49
wv=f's{S_WV}'
LOG2E=1.4426950408889634
OOB=0x40000000
SLEEP=int(os.environ.get('SLEEP','8'))
SPIN_MAX=50000
SLOT=31744
SB=lambda c:(c%5)*SLOT
XA_BASE=4*SLOT; XA_PITCH=1152
GW_LDS=5*SLOT; B1_LDS=GW_LDS+1024
LC_BASE=GW_LDS+2048
TB_BASE=131072; XB_BASE=139264; ZR_BASE=147456; WB_BASE=155648
LDS_TOTAL=163840
V_L16=3
V_PD,V_PA,V_SIG=250,251,252

class Cfg:
    stamps=False; dbgst=False; sc='sc1'
    off=set()
    def f(self,tag): return '' if (tag in self.off or 'all' in self.off) else self.sc

def stamp(a,cfg,idx):
    if not cfg.stamps: return
    r=a.bg_rate; a.bg_rate=0
    a.e('s_memrealtime s[96:97]'); a.e('s_waitcnt lgkmcnt(0)'); a.e(f'v_writelane_b32 v255, s96, {idx}')
    a.bg_rate=r
def stamps_flush(a,cfg):
    if not cfg.stamps: return
    a.e(f"""v_lshrrev_b32 v254, 6, v249
    s_nop 0
    v_readfirstlane_b32 s98, v254
    s_lshl_b32 s99, s2, 3
    s_add_u32 s98, s98, s99
    s_lshl_b32 s98, s98, 8
    s_add_u32 s98, s98, {WS_STAMP}
    v_lshlrev_b32 v254, 2, v0
    buffer_store_dword v255, v254, {srd(S_WS)}, s98 offen""")

def signal(a,S,soff):
    vt=V_SIG
    a.e(f"""s_cmp_eq_u32 {wv}, 0
    s_cselect_b32 s95, 0, {OOB}
    v_mov_b32 v{vt}, 1
    v_mov_b32 v{vt+1}, s95
    s_mov_b64 exec, 1
    buffer_atomic_add v{vt}, v{vt+1}, {srd(S)}, {soff} offen sc1
    s_mov_b64 exec, -1""")

def ssignal(a,S,soff):
    lab=f'L_ss{len(a.items)}'
    a.e(f's_cmp_lg_u32 {wv}, 0'); a.e(f's_cbranch_scc1 {lab}')
    a.e(f's_atomic_add s90, s[{S}:{S+1}], {soff}')
    a.e(f'{lab}:')

def spin_global(a,S,soff,nl,stride,target):
    lab=f'L_poll{len(a.items)}'
    a.e(f'v_mul_u32_u24 v{V_PA}, {stride}, v0')
    a.e(f's_mov_b64 exec, {hex((1<<nl)-1)}')
    a.e(f's_mov_b32 s94, 0')
    a.e(f'{lab}:')
    a.e(f'buffer_load_dword v{V_PD}, v{V_PA}, {srd(S)}, {soff} offen sc1')
    a.e(f's_add_u32 s94, s94, 1')
    a.e(f's_waitcnt vmcnt(0)')
    a.e(f'v_cmp_gt_u32 vcc, {target}, v{V_PD}')
    a.e(f's_cbranch_vccz {lab}_done')
    a.e(f's_cmp_gt_u32 s94, {SPIN_MAX}')
    a.e(f's_cbranch_scc1 {lab}_done')
    a.e(f's_sleep {SLEEP}')
    a.e(f's_branch {lab}')
    a.e(f'{lab}_done:')
    a.e('s_mov_b64 exec, -1')

def poll_w0(a,S,soff,nl,stride,target):
    lab=f'L_pw{len(a.items)}'
    a.e(f's_cmp_lg_u32 {wv}, 0'); a.e(f's_cbranch_scc1 {lab}')
    a.cond_begin(); spin_global(a,S,soff,nl,stride,target); a.cond_end()
    a.e(f'{lab}:')

V_LC=248
def lc_add(a,idx,rtn=None):
    a.e(f'v_mov_b32 v{V_LC-1}, 1')
    a.e('s_mov_b64 exec, 1')
    if rtn is None: a.e(f'ds_add_u32 v{V_LC}, v{V_LC-1} offset:{4*idx}')
    else: a.e(f'ds_add_rtn_u32 v{rtn}, v{V_LC}, v{V_LC-1} offset:{4*idx}')
    a.e('s_mov_b64 exec, -1')
def lc_wait(a,idx,target):
    lab=f'L_lc{len(a.items)}'
    a.e('s_mov_b32 s94, 0')
    a.e(f'{lab}:')
    a.e(f'ds_read_b32 v{V_LC-1}, v{V_LC} offset:{4*idx}')
    a.e('s_add_u32 s94, s94, 1')
    a.e('s_waitcnt lgkmcnt(0)')
    a.e(f'v_readfirstlane_b32 s93, v{V_LC-1}')
    a.e(f's_cmp_ge_u32 s93, {target}')
    a.e(f's_cbranch_scc1 {lab}_done')
    a.e('s_sleep 1')
    a.e(f's_cmp_lt_u32 s94, {20*SPIN_MAX}')
    a.e(f's_cbranch_scc1 {lab}')
    a.e(f'{lab}_done:')

def angles(a,items,T):
    for i0 in range(0,len(items),4):
        grp=items[i0:i0+4]; src=[]
        for j,(sl,base,n,fin,neg) in enumerate(grp):
            if n==0: src.append(f'v{base}')
            else:
                a.e(f'v_fmamk_f32 v{T+j}, v{sl}, {fl(n)}, v{base}'); src.append(f'v{T+j}')
        outs=[]
        for j,(sl,base,n,fin,neg) in enumerate(grp):
            c,s=fin[0] if fin[0] is not None else T+4+j, fin[1] if fin[1] is not None else T+8+j
            a.e(f'v_cos_f32 v{c}, {src[j]}')
            a.e(f'v_sin_f32_e64 v{s}, -{src[j]}' if neg else f'v_sin_f32 v{s}, {src[j]}')
            outs.append((c,s))
        for j,(sl,base,n,fin,neg) in enumerate(grp):
            if fin[2]: fin[2](*outs[j])

def cmul_pack(a,c,s,tc,ts,dst,TT,n=4,negim=False):
    H=n//2
    for h in range(H): a.e(f'v_pk_mul_f32 {vr(TT+4*h,2)}, {vr(s+2*h,2)}, {vr(ts+2*h,2)}')
    for h in range(H): a.e(f'v_pk_mul_f32 {vr(TT+4*h+2,2)}, {vr(s+2*h,2)}, {vr(tc+2*h,2)}')
    for h in range(H): a.e(f'v_pk_fma_f32 {vr(TT+4*h,2)}, {vr(c+2*h,2)}, {vr(tc+2*h,2)}, {vr(TT+4*h,2)} neg_lo:[0,0,1] neg_hi:[0,0,1]')
    for h in range(H): a.e(f'v_pk_fma_f32 {vr(TT+4*h+2,2)}, {vr(c+2*h,2)}, {vr(ts+2*h,2)}, {vr(TT+4*h+2,2)}')
    ng='-' if negim else ''
    for h in range(H):
        a.e(f'v_cvt_pk_bf16_f32 v{dst+2*h}, v{TT+4*h}, {ng}v{TT+4*h+2}')
        a.e(f'v_cvt_pk_bf16_f32 v{dst+2*h+1}, v{TT+4*h+1}, {ng}v{TT+4*h+3}')

def prologue(a,cfg,end):
    a.e('s_cmp_ge_u32 s2, 256'); a.e(f's_cbranch_scc1 {end}')
    for (n,off,sz) in SRDS: a.e(f's_load_dwordx2 s[{n}:{n+1}], s[0:1], {off}')
    if cfg.x.get('pf_code') and cfg.x.get('pf_top'):
        nw=cfg.x['pf_top']
        a.e('s_getpc_b64 s[64:65]')
        a.e('v_lshrrev_b32 v56, 6, v0'); a.e('v_and_b32 v57, 63, v0')
        a.e('v_readfirstlane_b32 s66, v56')
        a.e('v_lshlrev_b32 v57, 4, v57')
        a.e('s_lshr_b32 s67, s2, 3'); a.e(f's_mul_i32 s67, s67, {nw}'); a.e('s_add_u32 s67, s67, s66')
        a.e('s_lshl_b32 s68, s67, 10')
        a.e('s_add_u32 s64, s64, s68'); a.e('s_addc_u32 s65, s65, 0')
        a.e('v_mov_b32 v59, s65'); a.e('v_add_co_u32 v58, vcc, s64, v57'); a.e('s_nop 1'); a.e('v_addc_co_u32 v59, vcc, 0, v59, vcc')
        a.e(f's_cmp_lt_u32 s66, {nw}'); a.e('s_cbranch_scc0 L_nopf0'); a.cond_begin()
        a.e(f's_cmp_lt_u32 s67, {cfg.x["pf_code"]}'); a.e('s_cbranch_scc0 L_nopf0')
        a.e('global_load_dwordx4 v[52:55], v[58:59], off')
        a.cond_end(); a.e('L_nopf0:')
    if cfg.stamps: a.e('v_mov_b32 v249, v0')
    a.e('v_lshrrev_b32 v1, 6, v0')
    a.e('v_and_b32 v0, 63, v0')
    a.e('v_readfirstlane_b32 s48, v1')
    a.e('v_and_b32 v1, 15, v0')
    a.e('v_lshrrev_b32 v2, 4, v0')
    a.e(f'v_lshlrev_b32 v{V_L16}, 4, v0')
    for (n,off,sz) in SRDS:
        a.e(f's_mov_b32 s{n+2}, {hex(sz)}'); a.e(f's_mov_b32 s{n+3}, 0x20000')
    a.e(f'''s_mov_b32 s51, s48
    s_and_b32 {wv}, s48, 3
    s_lshr_b32 s50, s48, 2
    s_and_b32 s4, s2, 7
    s_lshr_b32 s5, s2, 3
    s_lshr_b32 s6, s4, 1
    s_lshl_b32 s6, s6, 2
    s_lshr_b32 s56, s5, 3
    s_add_u32 s6, s6, s56
    s_and_b32 s7, s4, 1
    s_lshl_b32 s7, s7, 3
    s_and_b32 s56, s5, 7
    s_add_u32 s7, s7, s56
    s_and_b32 s48, s7, 1''')
    a.e('s_waitcnt lgkmcnt(0)')
    if cfg.x.get('pf_code') and not cfg.x.get('pf_top'):
        a.e('s_getpc_b64 s[64:65]')
        a.e('s_lshl_b32 s66, s5, 10')
        a.e('s_add_u32 s64, s64, s66'); a.e('s_addc_u32 s65, s65, 0')
        a.e(f'v_mov_b32 v57, s65'); a.e(f'v_add_co_u32 v56, vcc, s64, v{V_L16}'); a.e('s_nop 1'); a.e(f'v_addc_co_u32 v57, vcc, 0, v57, vcc')
        a.e(f's_cmp_lt_u32 s5, {cfg.x["pf_code"]}'); a.e('s_cbranch_scc0 L_nopf'); a.cond_begin()
        a.e(f's_cmp_lg_u32 s51, 2'); a.e('s_cbranch_scc1 L_nopf')
        a.e('global_load_dwordx4 v[52:55], v[56:57], off')
        a.cond_end(); a.e('L_nopf:')
    mt=str(cfg.x.get('mt','xw'))
    if mt!='0':
        a.e(f'''v_lshlrev_b32 v5, 7, v0
        v_mov_b32 v6, {OOB}
        v_cmp_gt_u32 vcc, 56, v0
        v_cndmask_b32 v6, v6, v5, vcc
        s_cmp_eq_u32 s51, 0
        s_cselect_b32 s56, 0, {OOB}
        v_add_u32 v5, s56, v5
        s_cmp_eq_u32 s51, 1
        s_cselect_b32 s56, 0, {OOB}
        v_add_u32 v7, s56, v6
        s_lshl_b32 s56, s2, 13
        s_mul_i32 s57, s2, 7168''')
        if 'x' in mt: a.e(f'buffer_load_dword v245, v5, {srd(S_X)}, s56 offen')
        if 'w' in mt: a.e(f'buffer_load_dword v245, v7, {srd(S_W1)}, s57 offen')
    if cfg.x.get('xaearly'):
        a.e(f'''s_lshr_b32 s56, s2, 5
        s_lshl_b32 s56, s56, 18
        s_and_b32 s57, s2, 31
        s_lshl_b32 s57, s57, 10
        s_add_u32 s56, s56, s57
        s_lshl_b32 s57, {wv}, 16
        s_add_u32 s56, s56, s57
        s_add_u32 s58, s56, 32768
        s_mul_i32 s57, {wv}, {2*XA_PITCH}
        s_add_u32 s57, s57, {XA_BASE}''')
        a.e('s_cmp_eq_u32 s50, 0'); a.e('s_cbranch_scc1 L_noxa'); a.cond_begin()
        a.e(f'''s_mov_b32 m0, s57
        s_add_u32 s57, s57, {XA_PITCH}
        buffer_load_dwordx4 v{V_L16}, {srd(S_X)}, s56 offen lds
        s_mov_b32 m0, s57
        s_nop 0
        buffer_load_dwordx4 v{V_L16}, {srd(S_X)}, s58 offen lds''')
        a.cond_end(); a.e('L_noxa:')
    if cfg.x.get('gtouch'):
        a.e(f'''s_xor_b32 s56, s51, 2
        s_xor_b32 s57, s2, 1
        s_or_b32 s56, s56, s57
        s_cmp_eq_u32 s56, 0
        s_cselect_b32 s56, 0, {OOB}
        v_lshlrev_b32 v5, 7, v0
        v_add_u32 v5, s56, v5
        s_mov_b32 s57, {WS_G}
        buffer_load_dword v245, v5, {srd(S_WS)}, s57 offen''')
    if cfg.x.get('tlb'):
        a.e(f'''v_lshlrev_b32 v5, 21, v0
        v_mov_b32 v6, {OOB}
        v_cmp_gt_u32 vcc, 9, v0
        v_cndmask_b32 v5, v6, v5, vcc
        s_cmp_eq_u32 s51, 2
        s_cselect_b32 s56, 0, {OOB}
        v_or_b32 v5, s56, v5
        s_cmp_eq_u32 s51, 3
        s_cselect_b32 s56, 0, {OOB}
        v_cmp_gt_u32 vcc, 1, v0
        v_cndmask_b32 v6, v6, v0, vcc
        v_or_b32 v6, s56, v6
        buffer_load_dword v245, v5, {srd(S_WS)}, 0 offen
        buffer_load_dword v245, v6, {srd(S_OUT)}, 0 offen''')
    if cfg.x.get('ffirst'):
        a.e('s_cmp_eq_u32 s50, 0'); a.e('s_cbranch_scc1 L_M')
    else:
        a.e('s_cmp_lg_u32 s50, 0'); a.e('s_cbranch_scc1 L_F')

V_GF=8
V_W2A=240; V_W2D=244
NS3=int(os.environ.get('NS3','8'))
GSLOT=[6,7,0,1]
GT0=224; GTA=234
G_ITEMS=[(psi,c,u) for psi in range(4) for c in range(4) for u in range(4)]
def m_g2_ids(a,cfg):
    a.e(f"""s_lshl_b32 s67, s4, 2
    s_lshr_b32 s68, s5, 3
    s_add_u32 s67, s67, s68
    s_and_b32 s68, s5, 7
    s_mul_i32 s69, s67, {RT_STRIDE}
    s_mul_i32 s70, {wv}, {14*4096}
    s_add_u32 s69, s69, s70
    s_add_u32 s69, s69, {WS_ACT}
    s_mul_i32 s70, {wv}, {14*32*1024}
    s_lshl_b32 s71, s68, 7
    s_add_u32 s70, s70, s71
    s_lshl_b32 s71, {wv}, 15
    s_lshr_b32 s72, s67, 1
    s_and_b32 s73, s67, 1
    s_lshr_b32 s74, s72, 2
    s_lshl_b32 s74, s74, 11
    s_lshl_b32 s75, s73, 10
    s_add_u32 s74, s74, s75
    s_and_b32 s75, s72, 3
    s_lshl_b32 s75, s75, 8
    s_add_u32 s74, s74, s75""")
def w2_dma_addr(a,V,T):
    a.e(f"""v_lshrrev_b32 v{T}, 3, v0
    v_lshlrev_b32 v{V}, 10, v{T}
    v_lshrrev_b32 v{T}, 1, v{T}
    v_and_b32 v{T}, 3, v{T}
    v_bfe_u32 v{T+1}, v0, 1, 2
    v_xor_b32 v{T}, v{T}, v{T+1}
    v_lshlrev_b32 v{T}, 1, v{T}
    v_and_b32 v{T+1}, 1, v0
    v_add_u32 v{T}, v{T}, v{T+1}
    v_lshl_add_u32 v{V}, v{T}, 4, v{V}""")
def w2_group(t,v,V):
    return [f's_add_u32 m0, s71, {(t%8)*4096+v*1024}', f's_add_u32 s55, s70, {(32*t+8*v)*1024}',
            f'buffer_load_dwordx4 v{V}, {srd(S_W2)}, s55 offen lds']

def m_stream(a,cfg,end):
    a.e('s_waitcnt lgkmcnt(0)')
    if cfg.x.get('prio0'): a.e(f's_setprio {cfg.x["prio0"]}')
    stamp(a,cfg,26)
    a.e(f'''s_xor_b32 s56, {wv}, 3
    s_or_b32 s58, s56, s2
    s_cmp_eq_u32 s58, 0
    s_cselect_b32 s56, 0, {OOB}
    v_lshlrev_b32 v5, 7, v0
    v_add_u32 v5, s56, v5
    v_mov_b32 v6, 0
    s_mov_b32 s57, {WS_CNT}
    s_mov_b32 exec_hi, 0
    buffer_store_dword v6, v5, {srd(S_WS)}, s57 offen sc1
    s_mov_b32 exec_hi, -1''')
    mt=str(cfg.x.get('mt','xw'))
    a.e(f'''s_lshr_b32 s49, s2, 5
    s_and_b32 s50, s2, 31''')
    V_B1C=60; V_B1S=68; V_TC=76; V_TS=80; V_A2=84; V_A2N=88; T0=92; TA=100
    a.e(f'''s_lshl_b32 s67, {wv}, 4
    v_add_u32 v{T0}, s67, v1
    v_cvt_f32_u32 v{T0}, v{T0}
    v_mul_f32 v{T0+1}, {fl(1/64)}, v{T0}
    v_lshlrev_b32 v{T0+2}, 2, v2
    v_cvt_f32_u32 v{T0+2}, v{T0+2}
    v_mul_f32 v{T0+3}, v{T0+2}, v{T0+1}''')
    for ks in range(2):
        for hh in range(2):
            angles(a,[(T0+1,T0+3,32*ks+16*hh+u,(None,None,None),True) for u in range(4)],TA)
            for d in range(2):
                a.e(f'v_cvt_pk_bf16_f32 v{V_B1C+4*ks+2*hh+d}, v{TA+4+2*d}, v{TA+5+2*d}')
                a.e(f'v_cvt_pk_bf16_f32 v{V_B1S+4*ks+2*hh+d}, v{TA+8+2*d}, v{TA+9+2*d}')
    a.e(f'''v_and_b32 v{T0+4}, 1, v2
    v_lshlrev_b32 v{T0+4}, 2, v{T0+4}
    v_cvt_f32_u32 v{T0+4}, v{T0+4}
    v_mul_f32 v{T0+5}, {fl(1/512)}, v{T0}
    v_mul_f32 v{T0+6}, v{T0+4}, v{T0+5}''')
    angles(a,[(T0+5,T0+6,r,(V_TC+r,V_TS+r,None),True) for r in range(4)],TA)
    a.e(f'''v_lshrrev_b32 v{T0+5}, 2, v1
    v_cvt_f32_u32 v{T0+5}, v{T0+5}
    v_mul_f32 v{T0+5}, {fl(1/8)}, v{T0+5}
    v_and_b32 v{T0+6}, 1, v1
    v_cvt_f32_u32 v{T0+6}, v{T0+6}
    v_mul_f32 v{T0+6}, {fl(0.25)}, v{T0+6}
    v_fma_f32 v{T0+6}, v{T0+4}, v{T0+5}, v{T0+6}
    v_lshrrev_b32 v{T0+7}, 1, v1
    v_and_b32 v{T0+7}, 1, v{T0+7}
    v_lshrrev_b32 v{T0}, 1, v2
    v_cmp_eq_u32 s[68:69], v{T0+7}, v{T0}
    v_and_b32 v{T0+7}, 13, v1
    v_cmp_eq_u32 vcc, 1, v{T0+7}''')
    a.e('s_and_b64 s[70:71], vcc, s[68:69]')
    angles(a,[(T0+5,T0+6,dw,(None,None,None),False) for dw in range(4)],TA)
    for dw in range(4): a.e(f'v_cvt_pk_bf16_f32 v{TA+dw}, v{TA+4+dw}, v{TA+8+dw}')
    a.e(f'v_mov_b32 v{TA+4}, 0x3f80'); a.e(f'v_mov_b32 v{TA+5}, 0xbf80')
    for dw in range(4):
        a.e(f'v_cndmask_b32 v{V_A2+dw}, 0, v{TA+dw}, s[68:69]')
        a.e(f'v_cndmask_b32 v{V_A2N+dw}, 0, v{TA+4+(dw&1)}, s[70:71]')
    V_XA=108
    a.e(f'''v_and_b32 v{T0}, 3, v0
    v_lshrrev_b32 v{T0+1}, 1, v{T0}
    v_mul_u32_u24 v{V_XA}, {XA_PITCH}, v{T0+1}
    v_and_b32 v{T0}, 1, v{T0}
    v_lshlrev_b32 v{T0}, 3, v{T0}
    v_lshrrev_b32 v{T0+1}, 2, v1
    v_lshl_add_u32 v{T0+1}, v2, 2, v{T0+1}
    v_lshlrev_b32 v{T0+1}, 4, v{T0+1}
    v_add3_u32 v{V_XA}, v{V_XA}, v{T0}, v{T0+1}
    v_add_u32 v{V_XA}, {XA_BASE}, v{V_XA}
    s_mul_i32 s72, {wv}, {2*XA_PITCH}
    s_add_u32 s72, s72, {XA_BASE}
    v_add_u32 v{V_XA+1}, s72, v{V_L16}
    v_add_u32 v{V_XA+2}, {GW_LDS}, v{V_L16}''')
    a.e(f'''s_lshl_b32 s84, s49, 3
    s_lshl_b32 s85, {wv}, 1
    s_add_u32 s84, s84, s85
    s_lshr_b32 s85, s84, 4
    s_lshl_b32 s85, s85, 11
    s_lshr_b32 s86, s50, 4
    s_lshl_b32 s86, s86, 10
    s_add_u32 s85, s85, s86
    s_lshr_b32 s86, s84, 2
    s_and_b32 s86, s86, 3
    s_lshl_b32 s86, s86, 8
    s_add_u32 s85, s85, s86
    s_and_b32 s86, s50, 15
    s_lshl_b32 s86, s86, 4
    s_add_u32 s85, s85, s86
    s_and_b32 s86, s84, 3
    s_lshl_b32 s86, s86, 2
    s_add_u32 s85, s85, s86
    s_add_u32 s85, s85, {WS_G}
    ''')
    if mt!='0' and ('W' in mt or '2' in mt):
        a.e(f'''v_lshlrev_b32 v5, 7, v0
        v_mov_b32 v6, {OOB}
        v_cmp_gt_u32 vcc, 33, v0
        v_cndmask_b32 v7, v6, v5, vcc
        v_cmp_gt_u32 vcc, 56, v0
        v_cndmask_b32 v6, v6, v5, vcc
        s_cmp_eq_u32 {wv}, 2
        s_cselect_b32 s56, 0, {OOB}
        v_add_u32 v5, s56, v7
        s_cmp_eq_u32 {wv}, 3
        s_cselect_b32 s56, 0, {OOB}
        v_add_u32 v7, s56, v7
        s_cmp_eq_u32 {wv}, 0
        s_cselect_b32 s56, 0, {OOB}
        v_add_u32 v6, s56, v6
        s_mul_i32 s56, s2, {33*128}
        v_add_u32 v5, s56, v5
        v_add_u32 v7, s56, v7
        s_mul_i32 s57, s2, 7168''')
        if 'W' in mt:
            a.e(f'buffer_load_dword v245, v5, {srd(S_WR)}, 0 offen')
            a.e(f'buffer_load_dword v245, v7, {srd(S_WI)}, 0 offen')
        if '2' in mt: a.e(f'buffer_load_dword v245, v6, {srd(S_W2)}, s57 offen')
    a.e('s_cmp_lg_u32 s58, 0'); a.e('s_cbranch_scc1 L_m_nos0'); a.cond_begin()
    a.e(f'''s_waitcnt vmcnt(0)
    v_mov_b32 v5, 1
    v_mov_b32 v6, 32
    s_mov_b64 exec, 1
    buffer_store_dword v5, v6, {srd(S_DBG)}, 0 offen sc1
    s_mov_b64 exec, -1''')
    a.cond_end(); a.e('L_m_nos0:')
    stamp(a,cfg,0)
    a.e('s_barrier')
    stamp(a,cfg,1)
    V_AF=112; V_GX=144; V_GW=184; V_D1C=152; V_D1S=168
    for pi in range(4):
        for ks in range(2):
            for hh in range(2):
                a.e(f'ds_read_b64_tr_b16 {vr(V_AF+8*pi+4*ks+2*hh,2)}, v{V_XA} offset:{pi*2*XA_PITCH+ks*512+hh*256}')
        if pi==1: lg_01=a.lgtok()
    lg_af=a.lgtok()
    a.e(f'ds_read_b128 {vr(V_GX,4)}, v{V_XA+1}')
    a.e(f'ds_read_b128 {vr(V_GX+4,4)}, v{V_XA+1} offset:{XA_PITCH}')
    a.e(f'ds_read_b128 {vr(V_GW,4)}, v{V_XA+2}')
    lg_gx=a.lgtok()
    for pi in range(4):
        if pi==0: a.wait_lg(lg_01)
        if pi==2: a.wait_lg(lg_af)
        for ks in range(2):
            A=vr(V_AF+8*pi+4*ks,4); c=vr(V_D1C+4*pi,4); s=vr(V_D1S+4*pi,4)
            a.e(f'v_mfma_f32_16x16x32_bf16 {c}, {A}, {vr(V_B1C+4*ks,4)}, {c if ks else 0}')
            a.e(f'v_mfma_f32_16x16x32_bf16 {s}, {A}, {vr(V_B1S+4*ks,4)}, {s if ks else 0}')
    a.wait_lg(lg_gx)
    V_Z=T0+2; V_GOUT=T0+4
    for d in range(4):
        for rr in range(2):
            a.e(f'v_dot2_f32_bf16 v{V_Z+rr}, v{V_GX+4*rr+d}, v{V_GW+d}, {("v%d"%(V_Z+rr)) if d else 0}')
    TT=TA; V_B2=V_AF
    red=[('row_shr:1 row_mask:0xf bank_mask:0xf bound_ctrl:1'),('row_shr:2 row_mask:0xf bank_mask:0xf bound_ctrl:1'),
         ('row_shr:4 row_mask:0xf bank_mask:0xf bound_ctrl:1'),('row_shr:8 row_mask:0xf bank_mask:0xf bound_ctrl:1'),
         ('row_bcast:15 row_mask:0xa bank_mask:0xf'),('row_bcast:31 row_mask:0xc bank_mask:0xf')]
    ri=0
    for pi in range(4):
        cmul_pack(a,V_D1C+4*pi,V_D1S+4*pi,V_TC,V_TS,V_B2+4*pi,TT)
        for _ in range(2 if pi<2 else 1):
            for rr in range(2): a.e(f'v_add_f32_dpp v{V_Z+rr}, v{V_Z+rr}, v{V_Z+rr} {red[ri]}')
            ri+=1
    V_D2=V_D1C; V_D2N=V_D1S
    for pi in range(4):
        a.e(f'v_mfma_f32_16x16x32_bf16 {vr(V_D2+4*pi,4)}, {vr(V_A2,4)}, {vr(V_B2+4*pi,4)}, 0')
        a.e(f'v_mfma_f32_16x16x32_bf16 {vr(V_D2N+4*pi,4)}, {vr(V_A2N,4)}, {vr(V_B2+4*pi,4)}, 0')
    for rr in range(2): a.e(f'v_mul_f32 v{V_Z+rr}, {fl(-LOG2E)}, v{V_Z+rr}')
    for rr in range(2): a.e(f'v_exp_f32 v{V_Z+rr}, v{V_Z+rr}')
    for rr in range(2): a.e(f'v_add_f32 v{V_Z+rr}, 1.0, v{V_Z+rr}')
    for rr in range(2): a.e(f'v_rcp_f32 v{V_GOUT+rr}, v{V_Z+rr}')
    a.e(f'''s_cmp_eq_u32 {wv}, 0
    s_cselect_b32 s74, 1, 0
    s_mov_b32 s75, 0''')
    V_TO=8
    for pi in range(4):
        for rho in range(2):
            re=V_D2+4*pi+2*rho; im=re+1
            a.e(f'v_cndmask_b32 v{im}, v{im}, v{V_D2N+4*pi+2*rho+1}, s[74:75]')
            a.e(f'v_cvt_pk_bf16_f32 v{V_TO+2*pi+rho}, v{re}, v{im}')
    a.e(f'''v_lshrrev_b32 v18, 5, v0
    v_lshlrev_b32 v18, 11, v18
    v_and_b32 v19, 31, v0
    v_lshl_add_u32 v18, v19, 4, v18
    s_lshl_b32 s93, {wv}, 9
    v_add_u32 v18, s93, v18
    s_lshl_b32 s90, s2, 13
    s_add_u32 s90, s90, {WS_T}
    v_mov_b32 v16, v{V_GOUT}
    v_mov_b32 v17, v{V_GOUT+1}
    v_mov_b32 v19, 0
    s_mov_b32 s91, s85''')
    def row_stores():
        if cfg.x.get('x_nors'): return
        a.e(f'''s_add_u32 s93, s90, 4096
        buffer_store_dwordx4 v[8:11], v18, {srd(S_WS)}, s90 offen {cfg.f("stT")}
        buffer_store_dwordx4 v[12:15], v18, {srd(S_WS)}, s93 offen {cfg.f("stT")}
        s_mov_b32 exec_lo, 0
        s_mov_b32 exec_hi, 0x80000000
        buffer_store_dwordx2 v[16:17], v19, {srd(S_WS)}, s91 offen {cfg.f("stG")}
        s_mov_b64 exec, -1''')
    if cfg.x.get('rs_at',9)<0: row_stores()
    stamp(a,cfg,17)
    V_XF=80; V_XR=96; V_VA=102; V_BIAS=108; V_ACC=136; V_WF=192; V_BRAW=220; T0=234
    a.e(f'''s_lshl_b32 s76, {wv}, 12
    v_lshlrev_b32 v{T0}, 7, v1
    v_add_u32 v{T0}, s76, v{T0}
    v_lshrrev_b32 v{T0+1}, 1, v1
    v_xor_b32 v{T0+1}, v{T0+1}, v2
    v_lshl_add_u32 v{V_XR}, v{T0+1}, 4, v{T0}
    v_xor_b32 v{T0+1}, 4, v{T0+1}
    v_lshl_add_u32 v{V_XR+1}, v{T0+1}, 4, v{T0}
    v_mul_u32_u24 v{V_VA}, 1920, v2
    v_lshrrev_b32 v{T0}, 2, v1
    v_mul_u32_u24 v{T0}, 224, v{T0}
    v_and_b32 v{T0+1}, 3, v0
    v_lshlrev_b32 v{T0+1}, 3, v{T0+1}
    v_add3_u32 v{V_VA}, v{V_VA}, v{T0}, v{T0+1}
    v_add_u32 v{V_VA}, 16384, v{V_VA}
    s_cmp_eq_u32 s48, 0
    s_cselect_b32 s76, 192, 0
    v_add_u32 v{V_VA+1}, s76, v{V_VA}
    s_lshl_b32 s76, s48, 5
    v_add_u32 v{V_VA}, s76, v{V_VA}''')
    for st_ in (1,2):
        for j in range(2):
            a.e(f'v_add_u32 v{V_XR+2*st_+j}, {2*st_*SLOT}, v{V_XR+j}')
            a.e(f'v_add_u32 v{V_VA+2*st_+j}, {2*st_*SLOT}, v{V_VA+j}')
    a.e(f'''v_lshlrev_b32 v{T0}, 3, v2
    s_lshl_b32 s76, s48, 5
    s_add_u32 s77, s76, {B1_LDS}
    v_add_u32 v{T0+1}, s77, v{T0}
    s_cmp_eq_u32 s48, 0
    s_cselect_b32 s77, 192, 0
    s_add_u32 s77, s77, {B1_LDS}
    v_add_u32 v{T0}, s77, v{T0}''')
    if cfg.x.get('prio'): a.e(f's_setprio {cfg.x["prio"]}')
    a.e('s_barrier')
    stamp(a,cfg,3)
    a.e(f'''s_mul_i32 s93, {wv}, {2*XA_PITCH}
    s_add_u32 s93, s93, {XA_BASE}
    v_lshl_add_u32 v20, v0, 5, s93
    v_add_u32 v21, s93, v{V_L16}
    ds_write_b128 v20, v[8:11]
    ds_write_b128 v20, v[12:15] offset:16
    s_waitcnt lgkmcnt(0)
    ds_read_b128 v[8:11], v21
    ds_read_b128 v[12:15], v21 offset:1024''')
    def slot_set(c):
        j=c%5; return (j//2, (j%2)*SLOT)
    def w_read1(s,t,hh):
        c,kk=s//2,s%2; st_,off=slot_set(c)
        va=V_VA+2*st_+(1 if t==6 else 0)
        o=off+kk*7680+(32*t if t<6 else 0)
        a.e(f'ds_read_b64_tr_b16 {vr(V_WF+4*t+2*hh,2)}, v{va} offset:{o+960*hh}')
        return a.lgtok()
    def x_read1(s,nb):
        c,kk=s//2,s%2; st_,off=slot_set(c)
        a.e(f'ds_read_b128 {vr(V_XF+8*(s%2)+4*nb,4)}, v{V_XR+2*st_+kk} offset:{off+2048*nb}')
        return a.lgtok()
    for t in range(6): a.e(f'ds_read_b64 {vr(V_BRAW+2*t,2)}, v{T0+1} offset:{32*t}')
    a.e(f'ds_read_b64 {vr(V_BRAW+12,2)}, v{T0}')
    lg_b=a.lgtok()
    tw={}; tx={}
    for nb in range(2): tx[(0,nb)]=x_read1(0,nb)
    for t in range(3):
        for hh in range(2): tw[(0,t,hh)]=w_read1(0,t,hh)
    a.wait_lg(lg_b)
    for t in range(7):
        for d in range(2):
            raw=V_BRAW+2*t+d
            a.e(f'v_lshlrev_b32 v{V_BIAS+4*t+2*d}, 16, v{raw}')
            a.e(f'v_and_b32 v{V_BIAS+4*t+2*d+1}, 0xffff0000, v{raw}')
    for t in range(3,7):
        for hh in range(2): tw[(0,t,hh)]=w_read1(0,t,hh)
    for s in range(16):
        for t in range(7):
            need=max(tw[(s,t,1)],tx[(s,1)])
            n=a.lg-need
            if t%2==0 or t==1 or s==0 or True: a.e(f's_waitcnt lgkmcnt({min(n,15)})')
            for nb in range(2):
                acc=vr(V_ACC+28*nb+4*t,4)
                cc=acc if s>0 else vr(V_BIAS+4*t,4)
                a.e(f'v_mfma_f32_16x16x32_bf16 {acc}, {vr(V_WF+4*t,4)}, {vr(V_XF+8*(s%2)+4*nb,4)}, {cc}')
                if nb==0 and t==1 and s%2==1 and s<15:
                    if cfg.fine==2: stamp(a,cfg,32+2*(s//2))
                    if s==(7 if cfg.x.get('s1two',0) else 13): a.e('s_waitcnt vmcnt(0)')
                    a.e('s_barrier')
                    if cfg.fine==2: stamp(a,cfg,33+2*(s//2))
                ps,pt=(s+1,t-1) if t>=1 else (s,6)
                if (t>=1 and s<15) or (t==0 and 1<=s<=15 and (s,6,nb) not in tw):
                    tw[(ps,pt,nb)]=w_read1(ps,pt,nb)
                if t==2 and s<15: tx[(s+1,nb)]=x_read1(s+1,nb)
                if t==4 and nb==1 and s==cfg.x.get('rs_at',9): row_stores()
    a.e('s_barrier')
    stamp(a,cfg,4)
    V_E=V_WF; V_O=V_BIAS
    a.e(f's_mov_b32 s84, {fl(LOG2E)}'); a.e(f's_mov_b32 s85, {fl(LOG2E)}'); a.e(f's_mov_b32 s86, {fl(-2.0 if cfg.x.get("mish2") else 30.0)}')
    a.e(f'''s_mul_i32 s87, s7, 7
    s_add_u32 s87, s87, s48
    s_lshr_b32 s87, s87, 1
    s_lshl_b32 s87, s87, 12
    s_mul_i32 s88, s6, {2*RT_STRIDE}
    s_lshl_b32 s89, {wv}, 10
    s_add_u32 s88, s88, s89
    s_add_u32 s88, s88, {WS_ACT}
    s_add_u32 s88, s88, s87
    s_mov_b32 s89, {3*4096}
    s_cmp_eq_u32 s48, 0
    s_cselect_b32 s89, s89, {(-4096+512)&0xffffffff}
    s_add_u32 s89, s89, s88
    v_lshlrev_b32 v4, 3, v0''')
    G=4
    for nb in range(2):
        pairs=[(V_ACC+28*nb+4*t+2*d, V_O+14*nb+2*t+d) for t in range(7) for d in range(2)]
        for g0 in range(0,len(pairs),G):
            grp=pairs[g0:g0+G]
            Tq=lambda i: V_E+4*i
            if cfg.x.get('mish2'):
                for i,(h,o) in enumerate(grp): a.e(f'v_pk_mul_f32 {vr(Tq(i),2)}, {vr(h,2)}, s[84:85]')
                for i,(h,o) in enumerate(grp):
                    a.e(f'v_exp_f32 v{Tq(i)}, v{Tq(i)}'); a.e(f'v_exp_f32 v{Tq(i)+1}, v{Tq(i)+1}')
                for i,(h,o) in enumerate(grp): a.e(f'v_pk_add_f32 {vr(Tq(i)+2,2)}, {vr(Tq(i),2)}, 2.0 op_sel_hi:[1,0]')
                for i,(h,o) in enumerate(grp): a.e(f'v_pk_fma_f32 {vr(Tq(i),2)}, {vr(Tq(i),2)}, {vr(Tq(i)+2,2)}, 2.0 op_sel_hi:[1,1,0]')
                for i,(h,o) in enumerate(grp):
                    a.e(f'v_rcp_f32 v{Tq(i)}, v{Tq(i)}'); a.e(f'v_rcp_f32 v{Tq(i)+1}, v{Tq(i)+1}')
                for i,(h,o) in enumerate(grp): a.e(f'v_pk_fma_f32 {vr(Tq(i),2)}, {vr(Tq(i),2)}, s[86:87], 1.0 op_sel_hi:[1,0,0]')
                for i,(h,o) in enumerate(grp): a.e(f'v_pk_mul_f32 {vr(Tq(i),2)}, {vr(Tq(i),2)}, {vr(h,2)}')
            else:
                for i,(h,o) in enumerate(grp): a.e(f'v_pk_mul_f32 {vr(Tq(i),2)}, {vr(h,2)}, s[84:85]')
                for i,(h,o) in enumerate(grp):
                    a.e(f'v_min_f32 v{Tq(i)}, s86, v{Tq(i)}'); a.e(f'v_min_f32 v{Tq(i)+1}, s86, v{Tq(i)+1}')
                for i,(h,o) in enumerate(grp):
                    a.e(f'v_exp_f32 v{Tq(i)}, v{Tq(i)}'); a.e(f'v_exp_f32 v{Tq(i)+1}, v{Tq(i)+1}')
                for i,(h,o) in enumerate(grp): a.e(f'v_pk_add_f32 {vr(Tq(i)+2,2)}, {vr(Tq(i),2)}, 2.0 op_sel_hi:[1,0]')
                for i,(h,o) in enumerate(grp): a.e(f'v_pk_mul_f32 {vr(Tq(i),2)}, {vr(Tq(i),2)}, {vr(Tq(i)+2,2)}')
                for i,(h,o) in enumerate(grp): a.e(f'v_pk_add_f32 {vr(Tq(i)+2,2)}, {vr(Tq(i),2)}, 2.0 op_sel_hi:[1,0]')
                for i,(h,o) in enumerate(grp):
                    a.e(f'v_rcp_f32 v{Tq(i)+2}, v{Tq(i)+2}'); a.e(f'v_rcp_f32 v{Tq(i)+3}, v{Tq(i)+3}')
                for i,(h,o) in enumerate(grp): a.e(f'v_pk_mul_f32 {vr(Tq(i),2)}, {vr(Tq(i),2)}, {vr(Tq(i)+2,2)}')
                for i,(h,o) in enumerate(grp): a.e(f'v_pk_mul_f32 {vr(Tq(i),2)}, {vr(Tq(i),2)}, {vr(h,2)}')
            for i,(h,o) in enumerate(grp): a.e(f'v_cvt_pk_bf16_f32 v{o}, v{Tq(i)}, v{Tq(i)+1}')
            done=min(len(pairs),g0+G)
            if cfg.x.get('actil'):
                for pp in range(3):
                    if g0<4*(pp+1)<=done:
                        a.e(f'buffer_store_dwordx4 {vr(V_O+14*nb+4*pp,4)}, v{V_L16}, {srd(S_WS)}, s88 offen {cfg.f("stA")}')
                        a.e('s_add_u32 s88, s88, 4096')
                if done==14:
                    a.e(f'buffer_store_dwordx2 {vr(V_O+14*nb+12,2)}, v4, {srd(S_WS)}, s89 offen {cfg.f("stA")}')
        if nb==0 and cfg.x.get('actil'):
            a.e(f's_add_u32 s88, s88, {RT_STRIDE-3*4096}')
            a.e(f's_add_u32 s89, s89, {RT_STRIDE}')
    if not cfg.x.get('actil'):
        for nb in range(2):
            for pp in range(3):
                a.e(f'buffer_store_dwordx4 {vr(V_O+14*nb+4*pp,4)}, v{V_L16}, {srd(S_WS)}, s88 offen {cfg.f("stA")}')
                a.e('s_add_u32 s88, s88, 4096')
            a.e(f'buffer_store_dwordx2 {vr(V_O+14*nb+12,2)}, v4, {srd(S_WS)}, s89 offen {cfg.f("stA")}')
            if nb==0:
                a.e(f's_add_u32 s88, s88, {RT_STRIDE-3*4096}')
                a.e(f's_add_u32 s89, s89, {RT_STRIDE}')
    stamp(a,cfg,5)
    parts=p2_table_parts(a,cfg); npre=cfg.x.get('tabpre',4)
    for part in parts[:npre]: part()
    stamp(a,cfg,24)
    a.e('s_mov_b32 s93, 32'); poll_w0(a,S_DBG,'s93',1,0,1)
    a.e('s_waitcnt vmcnt(0)')
    a.e('s_barrier')
    stamp(a,cfg,7)
    p2_small_loads(a,cfg)
    tok_w=a.vmtok()
    for part in parts[npre:]: part()
    stamp(a,cfg,25)
    p2_compute(a,cfg,tok_w)
    tok_y=a.vmtok()
    stamp(a,cfg,8)
    m_g2_ids(a,cfg)
    T=5
    w2_dma_addr(a,V_W2D,T)
    a.e(f"""v_lshrrev_b32 v{T}, 2, v1
    v_lshl_add_u32 v{T+1}, v2, 2, v{T}
    v_lshlrev_b32 v{V_W2A}, 7, v{T+1}
    v_lshrrev_b32 v{T+1}, 1, v{T+1}
    v_and_b32 v{T+1}, 3, v{T+1}
    v_and_b32 v{T}, 3, v0
    v_lshl_add_u32 v{V_W2A}, v{T}, 3, v{V_W2A}
    v_add_u32 v{V_W2A}, s71, v{V_W2A}""")
    for c in (3,2,1,0):
        a.e(f'v_xor_b32 v{T}, {c}, v{T+1}')
        a.e(f'v_lshl_add_u32 v{V_W2A+c}, v{T}, 5, v{V_W2A}')
    stamp(a,cfg,9)
    if not cfg.x.get('ydefer'): a.e('s_waitcnt vmcnt(0)')
    a.e('s_barrier')
    stamp(a,cfg,10)
    m_gemm2(a,cfg,tok_y)
    stamp(a,cfg,13)
    stamps_flush(a,cfg)
    a.e(f's_branch {end}')
    p2_special(a,cfg)

def m_gemm2(a,cfg,tok_y):
    V_ACC=80; V_AF=144; D=8; V_G=72
    RB=lambda t: (8+16*(t%D)) if (t%D)<4 else (160+16*(t%D-4))
    toks={}; tokw={}
    def need(d,k):
        while k not in d: a.bg_pop()
    def a_read1(t,c,hh):
        a.e(f'ds_read_b64_tr_b16 {vr(V_AF+4*c+2*hh,2)}, v{V_W2A+c} offset:{(t%8)*4096+2048*hh}')
        return a.lgtok()
    def push_loads(t):
        b=RB(t)
        if t>=14:
            psi=t-14
            for u in range(4):
                a.bg_push([f's_add_u32 s79, s78, {(16*psi+u)*8192}',
                           f'buffer_load_dwordx4 {vr(b+4*u,4)}, v6, {srd(S_WS)}, s79 offen {cfg.f("ldY")}'],
                          (lambda t=t: toks.__setitem__(t,a.vmtok())) if u==3 else None)
            return
        sc=cfg.f('ldA')
        for q in range(4):
            if t in(3,10):
                l=[f'buffer_load_dwordx2 {vr(b+4*q,2)}, v4, {srd(S_WS)}, s69 offen offset:{1024*q} {sc}',
                   f'buffer_load_dwordx2 {vr(b+4*q+2,2)}, v4, {srd(S_WS)}, s69 offen offset:{1024*q+512} {sc}']
            else:
                l=[f'buffer_load_dwordx4 {vr(b+4*q,4)}, v{V_L16}, {srd(S_WS)}, s69 offen offset:{1024*q} {sc}']
            if q==3: l.append('s_add_u32 s69, s69, 4096')
            a.bg_push(l,(lambda t=t: toks.__setitem__(t,a.vmtok())) if q==3 else None)
    def push_w2(t):
        for v in range(4):
            a.bg_push(w2_group(t,v,V_W2D),(lambda t=t: tokw.__setitem__(t,a.vmtok())) if v==3 else None)
    a.e('v_lshlrev_b32 v4, 3, v0')
    npre=cfg.x.get('npre',4)
    for t in range(npre): push_loads(t)
    a.bg_flush()
    if cfg.x.get('ydefer'):
        for nb in range(2):
            a.e(f'buffer_store_dwordx4 {vr(P2["V_B"]+4*nb,4)}, v{V_L16}, {srd(S_WS)}, s62 offen offset:{1024*nb} {cfg.f("stY")}')
        tok_y=a.vmtok()
    nxt=npre
    a.e(f"""v_lshlrev_b32 v5, 4, v1
    v_lshlrev_b32 v6, 15, v2
    v_add_u32 v6, v6, v5
    v_add_u32 v7, s71, v{V_L16}
    s_lshl_b32 s78, {wv}, 19
    s_add_u32 s78, s78, s74
    s_add_u32 s78, s78, {WS_Y}""")
    V_AF2=224; ACC2=[40,56,160,176]; tg={}
    def g_read(psi,c):
        AFp=(V_AF2 if psi%2==0 else V_AF)
        a.e(f'ds_read_b128 {vr(AFp+4*c,4)}, v7 offset:{GSLOT[psi]*4096+c*1024}'); tg[(psi,c)]=a.lgtok()
    def swaps(t):
        b=RB(t)
        for (i,j) in[(0,1),(0,2),(0,3),(1,2),(1,3),(2,3)]:
            a.e(f'v_swap_b32 v{b+4*i+j}, v{b+4*j+i}')
    ta={}
    for c in range(4):
        for hh in range(2): ta[(0,c,hh)]=a_read1(0,c,hh)
    a.bg_set(cfg.x.get('g2r',2),mfma_weight=2)
    TS3=cfg.x.get('ts3',10)
    for t in range(18):
        if cfg.fine==1: stamp(a,cfg,32+t)
        if t<=14:
            need(toks,t); a.wait_vm(toks[t])
        if t+1 in range(8,14):
            need(tokw,t+1); a.wait_vm(tokw[t+1])
        k_=0
        while nxt<14 and nxt-D<t and k_<2 and t<14:
            if nxt-D==t-0 and False: break
            if nxt-D>=t: break
            push_loads(nxt); nxt+=1; k_+=1
        if 1<=t and t-1+8<14: push_w2(t-1+8)
        if t==TS3+1: push_loads(14); push_loads(15)
        if t==TS3+2: push_loads(16); push_loads(17)
        b=RB(t)
        if t<14:
            for c in range(4):
                n=a.lg-ta[(t,c,1)]
                a.e(f's_waitcnt lgkmcnt({min(n,15)})')
                A=vr(V_AF+4*c,4)
                for q in range(4):
                    d=vr(V_ACC+16*q+4*c,4)
                    r=a.bg_rate
                    if q<2: a.bg_rate=0
                    a.e(f'v_mfma_f32_16x16x32_bf16 {d}, {A}, {vr(b+4*q,4)}, {d if t else 0}')
                    if q<2:
                        if c>=1 and t<13: ta[(t+1,c-1,q)]=a_read1(t+1,c-1,q)
                        if c==0 and t>=1: ta[(t,3,q)]=a_read1(t,3,q)
                    a.bg_rate=r
        else:
            psi=t-14; AFp=(V_AF2 if psi%2==0 else V_AF)
            if psi==0: swaps(14)
            for c in range(4):
                a.e(f's_waitcnt lgkmcnt({min(a.lg-tg[(psi,c)],15)})')
                for q in range(4):
                    d=vr(ACC2[q]+4*c,4)
                    a.e(f'v_mfma_f32_16x16x32_bf16 {d}, {vr(AFp+4*c,4)}, {vr(b+4*q,4)}, {d if psi else 0}')
                    if psi<3 and c==0 and q==0:
                        for c2 in range(4): g_read(psi+1,c2)
                    if psi<3 and c==1 and q==0:
                        need(toks,t+1); a.wait_vm(toks[t+1]); swaps(t+1)
        if cfg.x.get('ydefer') and t==cfg.x['ydefer']:
            a.wait_vm(tok_y); a.e('s_barrier')
        if t==TS3:
            a.bg_flush()
            a.e(f's_mov_b32 s93, {WS_CNT+16*128}')
            poll_w0(a,S_WS,'s93',NS3,128,256//NS3)
            a.e('s_barrier')
            a.e(f's_add_u32 s75, s74, {WS_G}')
            a.e(f'buffer_load_dwordx4 {vr(V_G,4)}, v5, {srd(S_WS)}, s75 offen {cfg.f("ldW")}')
            tok_g=a.vmtok()
        if t==13:
            a.e('s_barrier')
            for c in range(4): g_read(0,c)
            stamp(a,cfg,11)
    a.bg_flush(); a.bg_set(0)
    a.need_vm(tok_g)
    for q in range(4): a.e(f'v_sub_f32 v{V_G+q}, 1.0, v{V_G+q}')
    for q in range(4):
        for h in range(8):
            a.e(f'v_pk_fma_f32 {vr(V_ACC+16*q+2*h,2)}, {vr(V_ACC+16*q+2*h,2)}, {vr(V_G+(q&~1),2)}, {vr(ACC2[q]+2*h,2)} op_sel:[0,{q&1},0] op_sel_hi:[1,{q&1},1]')
    stamp(a,cfg,12)
    a.e(f'v_add_u32 v7, s71, v{V_L16}')
    for w in range(4):
        a.e(f's_cmp_lg_u32 {wv}, {w}')
        a.e(f's_cbranch_scc1 L_k3_w{w}')
        a.cond_begin()
        slot=0
        for q in range(4):
            if q==w: continue
            for c in range(4):
                a.e(f'ds_write_b128 v7, {vr(V_ACC+16*q+4*c,4)} offset:{slot*4096+c*1024}')
            slot+=1
        if w!=0:
            for h in range(8): a.e(f'v_pk_mov_b32 {vr(V_ACC+2*h,2)}, {vr(V_ACC+16*w+2*h,2)}, {vr(V_ACC+16*w+2*h,2)} op_sel:[0,1]')
        a.cond_end()
        a.e(f'L_k3_w{w}:')
    a.e('s_waitcnt lgkmcnt(0)'); a.e('s_barrier')
    V_RD=160
    for k in range(1,4):
        a.e(f"""s_add_u32 s76, {wv}, {k}
        s_and_b32 s76, s76, 3
        s_lshl_b32 s77, s76, 15
        s_cmp_lt_u32 {wv}, s76
        s_cselect_b32 s79, 0, 1
        s_sub_u32 s79, {wv}, s79
        s_lshl_b32 s79, s79, 12
        s_add_u32 s77, s77, s79
        v_add_u32 v7, s77, v{V_L16}""")
        for c in range(4): a.e(f'ds_read_b128 {vr(V_RD+16*(k-1)+4*c,4)}, v7 offset:{c*1024}')
    a.e(f"""v_lshlrev_b32 v5, 10, v1
    v_lshl_add_u32 v5, v2, 3, v5
    s_lshl_b32 s76, s72, 17
    s_lshl_b32 s77, {wv}, 15
    s_add_u32 s76, s76, s77
    s_lshl_b32 s77, s73, 14
    s_add_u32 s76, s76, s77
    s_lshl_b32 s77, s68, 7
    s_add_u32 s76, s76, s77""")
    for k in range(3):
        a.e(f's_waitcnt lgkmcnt({8-4*k})')
        for h in range(8): a.e(f'v_pk_add_f32 {vr(V_ACC+2*h,2)}, {vr(V_ACC+2*h,2)}, {vr(V_RD+16*k+2*h,2)}')
    V_O=8
    for c in range(4):
        a.e(f'v_cvt_pk_bf16_f32 v{V_O+2*c}, v{V_ACC+4*c}, v{V_ACC+4*c+1}')
        a.e(f'v_cvt_pk_bf16_f32 v{V_O+2*c+1}, v{V_ACC+4*c+2}, v{V_ACC+4*c+3}')
        a.e(f'buffer_store_dwordx2 {vr(V_O+2*c,2)}, v5, {srd(S_OUT)}, s76 offen offset:{32*c} {str(cfg.x.get("outf","")).replace("_"," ")}')

P2=dict(V_U=8,V_W=40,V_GT=48,V_Q=56,T0=64,V_F64R=80,V_F64I=96,V_F32R=112,V_F32I=128,V_T1C=144,V_T1S=152,V_T3C=160,V_T3S=168,V_DR=176,V_DI=184,V_B=192)
V_FW2D=246
def f_stream(a,cfg,end):
    a.e('L_F:')
    a.e('s_mov_b32 s90, 1')
    if cfg.x.get('fprio'): a.e(f's_setprio {cfg.x["fprio"]}')
    a.e(f'''s_lshr_b32 s49, s2, 5
    s_and_b32 s50, s2, 31
    s_lshl_b32 s51, s6, 17
    s_lshl_b32 s56, {wv}, 13
    s_add_u32 s51, s51, s56
    s_mul_i32 s52, s7, 224
    s_mul_i32 s56, {wv}, 14336
    s_add_u32 s52, s52, s56
    s_lshl_b32 s53, {wv}, 10
    s_mul_i32 s54, {wv}, 960
    s_add_u32 s54, s54, 16384''')
    T=6; V_XD=4; V_WD=5
    a.e(f'''v_lshrrev_b32 v{T}, 3, v0
    v_lshlrev_b32 v{V_XD}, 10, v{T}
    v_lshrrev_b32 v{T}, 1, v{T}
    s_and_b32 s56, {wv}, 1
    s_lshl_b32 s56, s56, 2
    v_add_u32 v{T}, s56, v{T}
    v_and_b32 v{T+1}, 7, v0
    v_xor_b32 v{T}, v{T}, v{T+1}
    v_lshl_add_u32 v{V_XD}, v{T}, 4, v{V_XD}
    v_mul_u32_u24 v{T}, 4682, v0
    v_lshrrev_b32 v{T}, 16, v{T}
    v_mul_u32_u24 v{V_WD}, 3584, v{T}
    v_mul_u32_u24 v{T}, 14, v{T}
    v_sub_u32 v{T}, v0, v{T}
    v_lshl_add_u32 v{V_WD}, v{T}, 4, v{V_WD}
    v_mov_b32 v{V_LC}, {LC_BASE}''')
    a.e(f'''s_lshl_b32 s56, s49, 18
    s_lshl_b32 s57, s50, 10
    s_add_u32 s56, s56, s57
    s_lshl_b32 s57, {wv}, 16
    s_add_u32 s56, s56, s57
    s_add_u32 s58, s56, 32768
    s_mul_i32 s57, {wv}, {2*XA_PITCH}
    s_add_u32 s57, s57, {XA_BASE}''')
    a.e('s_waitcnt lgkmcnt(0)')
    stamp(a,cfg,26)
    a.e(f's_cmp_lg_u32 {wv}, 0'); a.e('s_cbranch_scc1 L_a_r0'); a.cond_begin()
    a.e(f's_mov_b32 m0, {GW_LDS}'); a.e('s_nop 0')
    a.e(f'buffer_load_dwordx4 v{V_L16}, {srd(S_GW)}, 0 offen lds')
    a.cond_end(); a.e('L_a_r0:')
    a.e(f's_cmp_lg_u32 {wv}, 1'); a.e('s_cbranch_scc1 L_a_r1'); a.cond_begin()
    a.e(f's_mul_i32 s64, s7, 224'); a.e(f's_mov_b32 m0, {B1_LDS}'); a.e('s_mov_b64 exec, 0x3fff')
    a.e(f'buffer_load_dwordx4 v{V_L16}, {srd(S_B1)}, s64 offen lds')
    a.e('s_mov_b64 exec, -1')
    a.cond_end(); a.e('L_a_r1:')
    tok_c={}
    def chunk_groups(c):
        gs=[]
        for u in range(4):
            gs.append(([f's_add_u32 m0, s53, {SB(c)+u*4096}', f's_add_u32 s55, s51, {u*32768+c*128}',
                        f'buffer_load_dwordx4 v{V_XD}, {srd(S_X)}, s55 offen lds'],None))
        for u in range(4):
            cb=(lambda c=c: tok_c.__setitem__(c,a.vmtok())) if u==3 else None
            gs.append(([f's_add_u32 m0, s54, {SB(c)+u*3840}', f's_add_u32 s55, s52, {u*57344+c*229376}',
                        's_mov_b32 exec_hi, 0x00ffffff',
                        f'buffer_load_dwordx4 v{V_WD}, {srd(S_W1)}, s55 offen lds',
                        's_mov_b32 exec_hi, -1'],cb))
        return gs
    def push_chunk(c):
        for g_ in chunk_groups(c): a.bg_push(*g_)
    def wait_role(tok,e3,e2):
        n=a.vm-tok; lab=f'L_wr{len(a.items)}'
        a.e(f's_cmp_eq_u32 {wv}, 3'); a.e(f's_cbranch_scc1 {lab}_3')
        a.e('s_cmp_eq_u32 s66, 0'); a.e(f's_cbranch_scc1 {lab}_2')
        a.e(f's_waitcnt vmcnt({n})'); a.e(f's_branch {lab}_e')
        a.e(f'{lab}_3:'); a.e(f's_waitcnt vmcnt({min(n+e3,62)})'); a.e(f's_branch {lab}_e')
        a.e(f'{lab}_2:'); a.e(f's_waitcnt vmcnt({min(n+e2,62)})')
        a.e(f'{lab}_e:')
    def chunk_now(c):
        if cfg.fine==3: stamp(a,cfg,48+2*c%16 if False else 40+c)
        push_chunk(c); a.bg_flush()
        if cfg.fine==3: stamp(a,cfg,50+c)
    if not cfg.x.get('xaearly'):
        a.e(f'''s_mov_b32 m0, s57
        s_add_u32 s57, s57, {XA_PITCH}
        buffer_load_dwordx4 v{V_L16}, {srd(S_X)}, s56 offen lds
        s_mov_b32 m0, s57
        s_nop 0
        buffer_load_dwordx4 v{V_L16}, {srd(S_X)}, s58 offen lds''')
    tok_xa=a.vmtok()
    st={'roles':None,'wt':None}
    V={}
    def do_roles(c):
        st['roles']=c
        a.e('''s_lshr_b32 s59, s50, 3
        s_lshr_b32 s60, s50, 2
        s_and_b32 s60, s60, 1
        s_and_b32 s61, s50, 3
        s_lshl_b32 s62, s59, 4
        s_lshl_b32 s63, s60, 10
        s_add_u32 s62, s62, s63
        s_lshl_b32 s63, s61, 8
        s_add_u32 s62, s62, s63
        s_lshl_b32 s63, s59, 11
        s_lshl_b32 s64, s60, 10
        s_add_u32 s63, s63, s64
        s_lshl_b32 s64, s61, 8
        s_add_u32 s63, s63, s64''')
        V_WR=8; V_WI=24; V_WO=7
        a.e(f's_cmp_lg_u32 {wv}, {9 if cfg.x.get("x_norole") else 3}'); a.e('s_cbranch_scc1 L_a_r3'); a.cond_begin()
        a.e(f'''v_lshrrev_b32 v{V_WO}, 2, v0
        v_mul_u32_u24 v{V_WO}, 514, v{V_WO}
        v_and_b32 v{T}, 3, v0
        v_lshl_add_u32 v{V_WO}, v{T}, 4, v{V_WO}
        s_mul_i32 s64, s62, 514
        s_lshl_b32 s65, s49, 6
        s_add_u32 s64, s64, s65''')
        for r in range(4):
            a.e(f'buffer_load_dwordx4 {vr(V_WR+4*r,4)}, v{V_WO}, {srd(S_WR)}, s64 offen')
            a.e(f'buffer_load_dwordx4 {vr(V_WI+4*r,4)}, v{V_WO}, {srd(S_WI)}, s64 offen')
            if r<3: a.e(f's_add_u32 s64, s64, {64*514}')
        a.cond_end(); a.e('L_a_r3:')
        V_SP=40; V_J=48; V_JR=49
        a.e(f'''s_lshl_b32 s65, s49, 2
        s_xor_b32 s66, {wv}, 2
        s_or_b32 s66, s66, s65''')
        a.e('s_cmp_lg_u32 s66, 0'); a.e('s_cbranch_scc1 L_a_r2'); a.cond_begin()
        a.e(f'''v_lshlrev_b32 v{V_J}, 6, v2
        v_add_u32 v{V_J}, v{V_J}, v1
        v_add_u32 v{V_J}, s62, v{V_J}
        v_sub_u32 v{V_JR}, 2048, v{V_J}
        v_and_b32 v{V_JR}, 2047, v{V_JR}
        v_mul_u32_u24 v{V_J}, 514, v{V_J}
        v_mul_u32_u24 v{V_JR}, 514, v{V_JR}''')
        for n,(S,vv,off) in enumerate([(S_WR,V_J,0),(S_WR,V_J,512),(S_WR,V_JR,0),(S_WR,V_JR,512),(S_WI,V_J,0),(S_WI,V_J,512),(S_WI,V_JR,0),(S_WI,V_JR,512)]):
            a.e(f'buffer_load_ushort v{V_SP+n}, v{vv}, {srd(S)}, 0 offen offset:{off}')
        a.cond_end(); a.e('L_a_r2:')
        tok_role=a.vmtok()
        V.update(V_WR=V_WR,V_WI=V_WI,V_SP=V_SP,tok_role=tok_role)
    def do_wt(c):
        st['wt']=c
        T0=92; V_B1S=68; V_WR=V['V_WR']; V_WI=V['V_WI']; V_SP=V['V_SP']; tok_role=V['tok_role']
        a.e(f's_cmp_lg_u32 {wv}, {9 if cfg.x.get("x_norole") else 3}'); a.e('s_cbranch_scc1 L_a_w3')
        a.wait_vm(tok_role); a.cond_begin()
        V_WP=188
        a.e('s_mov_b32 s78, 0x05040100'); a.e('s_mov_b32 s79, 0x07060302')
        for kk in range(8):
            for r in range(4):
                a.e(f'v_perm_b32 v{V_WP+4*kk+r}, v{V_WI+4*r+(kk>>1)}, v{V_WR+4*r+(kk>>1)}, s{78+(kk&1)}')
        a.e(f'''v_and_b32 v{T0+4}, 3, v0
        v_lshlrev_b32 v{T0+5}, 16, v{T0+4}
        v_lshrrev_b32 v{T0+6}, 2, v0
        v_lshl_add_u32 v{T0+5}, v{T0+6}, 4, v{T0+5}
        s_lshl_b32 s76, s49, 2
        v_add_u32 v{T0+4}, s76, v{T0+4}
        v_cmp_eq_u32 vcc, 0, v{T0+4}
        v_mov_b32 v{T0+6}, {OOB}
        v_cndmask_b32 v{T0+6}, v{T0+5}, v{T0+6}, vcc
        s_lshl_b32 s76, s49, 18
        s_add_u32 s76, s76, s63
        s_add_u32 s76, s76, {WS_WT}''')
        for kk in range(8):
            a.e(f'buffer_store_dwordx4 {vr(V_WP+4*kk,4)}, v{T0+6 if kk==0 else T0+5}, {srd(S_WS)}, s76 offen {cfg.f("stW")}')
            if kk<7: a.e('s_add_u32 s76, s76, 8192')
        a.cond_end(); a.e('L_a_w3:')
        a.e('s_cmp_lg_u32 s66, 0'); a.e('s_cbranch_scc1 L_a_w2')
        a.wait_vm(tok_role); a.cond_begin()
        for n in range(8): a.e(f'v_lshlrev_b32 v{V_SP+n}, 16, v{V_SP+n}')
        s=V_SP; t=V_B1S
        a.e(f'''v_add_f32 v{t}, v{s}, v{s+2}
        v_add_f32 v{t+1}, v{s+1}, v{s+3}
        v_sub_f32 v{t+2}, v{s+4}, v{s+6}
        v_sub_f32 v{t+3}, v{s+5}, v{s+7}
        v_add_f32 v{t+4}, v{t}, v{t+1}
        v_add_f32 v{t+5}, v{t+2}, v{t+3}
        v_sub_f32 v{t+6}, v{t}, v{t+1}
        v_sub_f32 v{t+7}, v{t+2}, v{t+3}
        v_mul_f32 v{t+4}, {fl(0.25)}, v{t+4}
        v_mul_f32 v{t+5}, {fl(0.25)}, v{t+5}
        v_mul_f32 v{t+6}, {fl(0.25)}, v{t+6}
        v_mul_f32 v{t+7}, {fl(0.25)}, v{t+7}
        v_cvt_pk_bf16_f32 v{t}, v{t+4}, v{t+5}
        v_cvt_pk_bf16_f32 v{t+1}, v{t+6}, v{t+7}
        v_lshlrev_b32 v{t+2}, 4, v1
        v_lshl_add_u32 v{t+2}, v2, 2, v{t+2}
        s_add_u32 s77, s63, {WS_QT}
        s_add_u32 s76, s63, {WS_WT}
        buffer_store_dword v{t}, v{t+2}, {srd(S_WS)}, s76 offen {cfg.f("stW")}
        buffer_store_dword v{t+1}, v{t+2}, {srd(S_WS)}, s77 offen {cfg.f("stW")}''')
        a.cond_end(); a.e('L_a_w2:')
    RL=cfg.x.get('rl_after',5); WT=cfg.x.get('wt_after',7)
    def chunk_plus(c):
        chunk_now(c)
        if RL==c: do_roles(c)
        if WT==c: do_wt(c)
    def wait_chunk(c):
        e3=e2=0
        if st['roles'] is not None and st['roles']>=c: e3+=8; e2+=8
        if st['wt'] is not None and st['wt']>=c: e3+=8; e2+=2
        if e3==0: a.wait_vm(tok_c[c])
        else: wait_role(tok_c[c],e3,e2)
    a.e(f'''s_lshl_b32 s65, s49, 2
    s_xor_b32 s66, {wv}, 2
    s_or_b32 s66, s66, s65''')
    chunk_plus(0)
    chunk_plus(1)
    if cfg.x.get('fprio'): a.e('s_setprio 0')
    stamp(a,cfg,0)
    a.wait_vm(tok_xa); a.e('s_barrier')
    stamp(a,cfg,1)
    chunk_plus(2)
    wait_chunk(0); a.e('s_barrier')
    chunk_plus(3)
    wait_chunk(1); a.e('s_barrier')
    chunk_plus(4)
    wait_chunk(2); a.e('s_barrier')
    chunk_plus(5)
    wait_chunk(3); a.e('s_barrier')
    chunk_plus(6)
    wait_chunk(4); a.e('s_barrier')
    chunk_plus(7)
    wait_chunk(5); a.e('s_barrier')
    m_g2_ids(a,cfg)
    w2_dma_addr(a,V_FW2D,244)
    wait_chunk(6); a.e('s_barrier')
    a.e('s_waitcnt vmcnt(0)'); a.e('s_barrier')
    a.e('s_and_b32 s92, s5, 3'); a.e('s_lshl_b32 s92, s92, 6')
    ssignal(a,S_DBG,'s92')
    a.e('s_barrier')
    stamp(a,cfg,4)
    def w2slots(lo,hi):
        for t in range(lo,hi):
            for v in range(4): a.bg_push(w2_group(t,v,V_FW2D))
        a.bg_flush()
    w2slots(0,cfg.x.get('w2pre',4))
    stamp(a,cfg,5)
    a.e(f's_cmp_lg_u32 {wv}, 0'); a.e('s_cbranch_scc1 L_f_s1'); a.cond_begin()
    if cfg.x.get('s1drain',1): a.e('s_waitcnt vmcnt(0)')
    a.e('s_mov_b32 s93, 0')
    spin_global(a,S_DBG,'s93',4,64,64)
    p2_t_loads(a,cfg)

    a.cond_end(); a.e('L_f_s1:')
    stamp(a,cfg,6)
    a.e('s_waitcnt vmcnt(0)'); a.e('s_barrier')
    a.e(f's_lshl_b32 s92, s6, 7'); a.e(f's_add_u32 s92, s92, {WS_CNT}')
    ssignal(a,S_WS,'s92')
    stamp(a,cfg,7)
    w2slots(cfg.x.get('w2pre',4),8)
    a.e('s_waitcnt vmcnt(0)'); a.e('s_barrier')
    a.e('s_lshl_b32 s56, s4, 5'); a.e('s_add_u32 s56, s56, s5')
    a.e('s_cmp_lg_u32 s56, 0'); a.e('s_cbranch_scc1 L_f_nospec'); a.cond_begin()
    a.e('s_barrier')
    a.cond_end(); a.e('L_f_nospec:')
    a.e(f's_lshl_b32 s93, s72, 7'); a.e(f's_add_u32 s93, s93, {WS_CNT}')
    poll_w0(a,S_WS,'s93',1,0,16)
    a.e('s_barrier')
    if cfg.x.get('ydefer'): a.e('s_barrier')
    a.e(f's_and_b32 s92, s2, {NS3-1}'); a.e('s_lshl_b32 s92, s92, 7'); a.e(f's_add_u32 s92, s92, {WS_CNT+16*128}')
    ssignal(a,S_WS,'s92')
    T0=80; TA=92
    a.e(f"""s_lshl_b32 s75, s68, 6
    v_add_u32 v{T0}, s75, v1
    v_cvt_f32_u32 v{T0}, v{T0}
    s_lshl_b32 s75, {wv}, 6
    v_lshlrev_b32 v{T0+1}, 2, v2
    v_add_u32 v{T0+1}, s75, v{T0+1}
    v_cvt_f32_u32 v{T0+1}, v{T0+1}""")
    for c in range(4):
        a.e(f'v_add_f32 v{T0+2+c}, {fl(16*c)}, v{T0}' if c else f'v_mov_b32 v{T0+2}, v{T0}')
        a.e(f'v_mul_f32 v{T0+2+c}, {fl(1/512)}, v{T0+2+c}')
        a.e(f'v_mul_f32 v{T0+6+c}, v{T0+1}, v{T0+2+c}')
    def pk(d): return lambda c,s: a.e(f'v_cvt_pk_bf16_f32 v{d}, v{c}, v{s}')
    angles(a,[(T0+2+c,T0+6+c,16*psi+u,(None,None,pk(V_GF+16*psi+4*c+u)),False) for (psi,c,u) in G_ITEMS],TA)
    a.e(f"""s_cmp_eq_u32 {wv}, 0
    s_cselect_b32 s76, 0xffff, 0
    s_mov_b32 s77, 0
    v_mov_b32 v{T0}, {hex(0xBF003F00)}
    v_and_b32 v{T0+1}, 1, v1
    v_lshlrev_b32 v{T0+1}, 31, v{T0+1}
    v_xor_b32 v{T0}, v{T0}, v{T0+1}""")
    for c in range(4): a.e(f'v_cndmask_b32 v{V_GF+4*c}, v{V_GF+4*c}, v{T0}, s[76:77]')
    a.e(f'v_add_u32 v7, s71, v{V_L16}')
    a.e('s_barrier')
    for psi in range(4):
        for c in range(4):
            a.e(f'ds_write_b128 v7, {vr(V_GF+16*psi+4*c,4)} offset:{GSLOT[psi]*4096+c*1024}')
    a.e('s_waitcnt lgkmcnt(0)'); a.e('s_barrier')
    stamps_flush(a,cfg)
    a.e(f's_branch {end}')

def p2_t_loads(a,cfg):
    T0=64
    a.e(f'''s_lshl_b32 s56, s4, 5
    s_add_u32 s56, s56, s5
    v_lshrrev_b32 v{T0}, 5, v0
    v_lshlrev_b32 v{T0}, 18, v{T0}
    v_bfe_u32 v{T0+1}, v0, 1, 4
    v_lshl_add_u32 v{T0}, v{T0+1}, 13, v{T0}
    v_and_b32 v{T0+1}, 1, v0
    v_lshl_add_u32 v{T0}, v{T0+1}, 4, v{T0}
    s_lshl_b32 s57, s56, 5
    s_add_u32 s57, s57, {WS_T}''')
    for ks in range(4):
        for mb in range(2):
            a.e(f's_mov_b32 m0, {TB_BASE+2048*ks+1024*mb}')
            a.e(f's_add_u32 s58, s57, {ks*524288+mb*131072}')
            a.e(f'buffer_load_dwordx4 v{T0}, {srd(S_WS)}, s58 offen {cfg.f("ldT")} lds')
    a.e(f's_lshl_b32 s57, s56, 13'); a.e(f's_add_u32 s57, s57, {WS_WT}')
    for j in range(8):
        a.e(f's_mov_b32 m0, {WB_BASE+1024*j}')
        a.e(f's_add_u32 s58, s57, {1024*j}')
        a.e(f'buffer_load_dwordx4 v{V_L16}, {srd(S_WS)}, s58 offen {cfg.f("ldW")} lds')

def p2_small_loads(a,cfg):
    V_W,V_GT,V_Q,T0=P2['V_W'],P2['V_GT'],P2['V_Q'],P2['T0']
    a.e(f'''s_lshl_b32 s56, s4, 5
    s_add_u32 s56, s56, s5
    s_lshl_b32 s60, s56, 13
    s_lshl_b32 s61, {wv}, 11
    s_add_u32 s60, s60, s61
    s_add_u32 s62, s60, {WS_WT}
    s_add_u32 s63, s61, {WS_G}
    s_add_u32 s64, s61, {WS_QT}''')
    for nb in range(2): a.e(f'buffer_load_dwordx4 {vr(V_GT+4*nb,4)}, v{V_L16}, {srd(S_WS)}, s63 offen offset:{1024*nb} {cfg.f("ldW")}')
    a.e(f'''s_cmp_eq_u32 s56, 0
    s_cselect_b32 s65, 0, {OOB}
    v_add_u32 v{T0+2}, s65, v{V_L16}''')
    for eh in range(2): a.e(f'buffer_load_dwordx4 {vr(V_Q+4*eh,4)}, v{T0+2}, {srd(S_WS)}, s64 offen offset:{1024*eh} {cfg.f("ldW")}')

def p2_table_parts(a,cfg):
    p=P2; T0=232; TA=200
    def pk(dr,di):
        def f(c,s):
            a.e(f'v_cvt_pk_bf16_f32 v{dr}, v{c}, v{s}')
            a.e(f'v_cvt_pk_bf16_f32 v{di}, -v{s}, v{c}')
        return f
    def part0():
        a.e(f'''s_lshl_b32 s83, {wv}, 4
        v_add_u32 v{T0}, s83, v1
        v_cvt_f32_u32 v{T0}, v{T0}
        v_lshlrev_b32 v{T0+2}, 2, v2
        v_cvt_f32_u32 v{T0+2}, v{T0+2}
        v_mul_f32 v{T0+1}, {fl(1/64)}, v{T0}
        v_mul_f32 v{T0+3}, v{T0+2}, v{T0+1}''')
        angles(a,[(T0+1,T0+3,16*ks+u,(None,None,pk(p['V_F64R']+4*ks+u,p['V_F64I']+4*ks+u)),False) for ks in range(3) for u in range(4)],TA)
    def part1():
        angles(a,[(T0+1,T0+3,16*ks+u,(None,None,pk(p['V_F64R']+4*ks+u,p['V_F64I']+4*ks+u)),False) for ks in range(3,4) for u in range(4)],TA)
        a.e(f'''v_mul_f32 v{T0+1}, {fl(1/2048)}, v{T0}
        v_mul_f32 v{T0+3}, v{T0+2}, v{T0+1}''')
        angles(a,[(T0+1,T0+3,16*mb+r,(p['V_T1C']+4*mb+r,p['V_T1S']+4*mb+r,None),True) for mb in range(2) for r in range(4)],TA)
    def part2():
        a.e(f'v_cvt_f32_u32 v{T0+7}, v1')
        for eh in range(2):
            a.e(f'''v_add_f32 v{T0+1}, {fl(16*eh)}, v{T0+7}
            v_mul_f32 v{T0+1}, {fl(1/32)}, v{T0+1}
            v_mul_f32 v{T0+3}, v{T0+2}, v{T0+1}''')
            angles(a,[(T0+1,T0+3,16*mb+u,(None,None,pk(p['V_F32R']+8*eh+4*mb+u,p['V_F32I']+8*eh+4*mb+u)),False) for mb in range(2) for u in range(4)],TA)
    def part3():
        a.e(f'''v_cvt_f32_u32 v{T0}, s83
        v_add_f32 v{T0+2}, v{T0}, v{T0+2}''')
        for nb in range(2):
            a.e(f'''v_add_f32 v{T0+1}, {fl(16*nb)}, v{T0+7}
            v_mul_f32 v{T0+1}, {fl(1/2048)}, v{T0+1}
            v_mul_f32 v{T0+3}, v{T0+2}, v{T0+1}''')
            angles(a,[(T0+1,T0+3,r,(p['V_T3C']+4*nb+r,p['V_T3S']+4*nb+r,None),True) for r in range(4)],TA)
    return [part0,part1,part2,part3]

def p2_compute(a,cfg,tok_w):
    p=P2
    V_U,V_W,V_GT,T0=p['V_U'],p['V_W'],p['V_GT'],p['T0']
    V_F64R,V_F64I,V_F32R,V_F32I=p['V_F64R'],p['V_F64I'],p['V_F32R'],p['V_F32I']
    V_T1C,V_T1S,V_T3C,V_T3S=p['V_T1C'],p['V_T1S'],p['V_T3C'],p['V_T3S']
    V_DR,V_DI,V_B=p['V_DR'],p['V_DI'],p['V_B']; TT=200
    a.e(f'''v_lshrrev_b32 v{T0+4}, 1, v2
    v_lshlrev_b32 v{T0+4}, 5, v{T0+4}
    v_lshl_add_u32 v{T0+4}, v1, 1, v{T0+4}
    v_and_b32 v{T0+5}, 1, v2
    v_add_u32 v{T0+4}, v{T0+4}, v{T0+5}
    v_lshlrev_b32 v{T0+4}, 4, v{T0+4}
    v_add_u32 v{T0+4}, {TB_BASE}, v{T0+4}''')
    for ks in range(4):
        for mb in range(2):
            a.e(f'ds_read_b128 {vr(V_U+16*mb+4*ks,4)}, v{T0+4} offset:{2048*ks+1024*mb}')
    V_WR=216; V_WI=224
    a.e(f's_lshl_b32 s65, {wv}, 11'); a.e(f's_add_u32 s65, s65, {WB_BASE}'); a.e(f'v_add_u32 v{T0+6}, s65, v{V_L16}')
    for eh in range(2): a.e(f'ds_read_b128 {vr(V_W+4*eh,4)}, v{T0+6} offset:{1024*eh}')
    for ks in range(4):
        a.e(f's_waitcnt lgkmcnt({8-2*ks})')
        for mb in range(2):
            A=vr(V_U+16*mb+4*ks,4)
            for (D,Fm) in((V_DR,V_F64R),(V_DI,V_F64I)):
                d=vr(D+4*mb,4)
                a.e(f'v_mfma_f32_16x16x32_bf16 {d}, {A}, {vr(Fm+4*ks,4)}, {d if ks else 0}')
    a.e('s_waitcnt lgkmcnt(0)')
    for e in range(8):
        a.e(f'v_lshlrev_b32 v{V_WR+e}, 16, v{V_W+e}')
        a.e(f'v_and_b32 v{V_WI+e}, 0xffff0000, v{V_W+e}')
    for mb in range(2): cmul_pack(a,V_DR+4*mb,V_DI+4*mb,V_T1C+4*mb,V_T1S+4*mb,V_B+4*mb,TT)
    for mb in range(2):
        for eh in range(2):
            for (D,Fm) in((V_DR,V_F32R),(V_DI,V_F32I)):
                d=vr(D+4*eh,4)
                a.e(f'v_mfma_f32_16x16x32_bf16 {d}, {vr(Fm+8*eh+4*mb,4)}, {vr(V_B+4*mb,4)}, {d if mb else 0}')
    a.e(f'''s_lshl_b32 s65, {wv}, 11
    s_add_u32 s65, s65, {XB_BASE}
    v_add_u32 v{T0+4}, s65, v{V_L16}
    v_add_u32 v{T0+5}, {XB_BASE}, v{V_L16}''')
    a.e('s_cmp_lg_u32 s56, 0')
    a.e('s_cbranch_scc0 L_p2_special')
    for eh in range(2): cmul_pack(a,V_DR+4*eh,V_DI+4*eh,V_WR+4*eh,V_WI+4*eh,V_B+4*eh,TT,negim=True)
    a.e('L_p2_join:')
    for ks in range(2):
        for nb in range(2):
            for (D,Fm) in((V_DR,V_F32R),(V_DI,V_F32I)):
                d=vr(D+4*nb,4)
                a.e(f'v_mfma_f32_16x16x32_bf16 {d}, {vr(V_B+4*ks,4)}, {vr(Fm+8*nb+4*ks,4)}, {d if ks else 0}')
    for nb in range(2):
        cmul_pack(a,V_DR+4*nb,V_DI+4*nb,V_T3C+4*nb,V_T3S+4*nb,V_B+4*nb,TT)
        a.e(f'ds_write_b128 v{T0+4}, {vr(V_B+4*nb,4)} offset:{1024*nb}')
    a.e('s_waitcnt lgkmcnt(0)')
    a.e('s_barrier')
    V_X=V_U
    for ks in range(4):
        for nb in range(2):
            a.e(f'ds_read_b128 {vr(V_X+8*ks+4*nb,4)}, v{T0+5} offset:{2048*ks+1024*nb}')
    for ks in range(4):
        a.e(f's_waitcnt lgkmcnt({6-2*ks})')
        for nb in range(2):
            for (D,Fm) in((V_DR,V_F64R),(V_DI,V_F64I)):
                d=vr(D+4*nb,4)
                a.e(f'v_mfma_f32_16x16x32_bf16 {d}, {vr(Fm+4*ks,4)}, {vr(V_X+8*ks+4*nb,4)}, {d if ks else 0}')
    a.wait_vm(tok_w)
    for e in range(8): a.e(f'v_mul_f32 v{V_GT+e}, {fl(2.0**-19)}, v{V_GT+e}')
    a.e(f's_add_u32 s62, s60, {WS_Y}')
    for nb in range(2):
        for h in range(2):
            a.e(f'v_pk_mul_f32 {vr(V_DR+4*nb+2*h,2)}, {vr(V_DR+4*nb+2*h,2)}, {vr(V_GT+4*nb+2*h,2)}')
            a.e(f'v_pk_mul_f32 {vr(V_DI+4*nb+2*h,2)}, {vr(V_DI+4*nb+2*h,2)}, {vr(V_GT+4*nb+2*h,2)}')
        for r in range(4): a.e(f'v_cvt_pk_bf16_f32 v{V_B+4*nb+r}, v{V_DR+4*nb+r}, v{V_DI+4*nb+r}')
        if not cfg.x.get('ydefer'): a.e(f'buffer_store_dwordx4 {vr(V_B+4*nb,4)}, v{V_L16}, {srd(S_WS)}, s62 offen offset:{1024*nb} {cfg.f("stY")}')

def p2_special(a,cfg):
    p=P2
    V_U,V_Q,T0,V_DR,V_DI,V_B=p['V_U'],p['V_Q'],p['T0'],p['V_DR'],p['V_DI'],p['V_B']
    V_WR=216; V_WI=224
    a.e('L_p2_special:')
    a.cond_begin()
    a.e('s_waitcnt vmcnt(0)')
    V_J=T0+8; V_ZA=V_U+16
    a.e(f'''s_lshl_b32 s65, {wv}, 4
    v_lshlrev_b32 v{V_J}, 8, v2
    v_add3_u32 v{V_J}, v{V_J}, v1, s65''')
    for eh in range(2):
        for r in range(4):
            n=1024*eh+64*r
            a.e(f'v_add_u32 v{T0}, {n}, v{V_J}')
            a.e(f'v_lshlrev_b32 v{T0}, 2, v{T0}')
            a.e(f'v_cvt_pk_bf16_f32 v{T0+2}, v{V_DR+4*eh+r}, v{V_DI+4*eh+r}')
            a.e(f'v_add_u32 v{T0}, {ZR_BASE}, v{T0}')
            a.e(f'ds_write_b32 v{T0}, v{T0+2}')
    a.e('s_waitcnt lgkmcnt(0)')
    a.e('s_barrier')
    for eh in range(2):
        for r in range(4):
            n=1024*eh+64*r
            a.e(f'v_sub_u32 v{T0}, {2048-n}, v{V_J}')
            a.e(f'v_and_b32 v{T0}, 2047, v{T0}')
            a.e(f'v_lshlrev_b32 v{T0}, 2, v{T0}')
            a.e(f'v_add_u32 v{T0}, {ZR_BASE}, v{T0}')
            a.e(f'ds_read_b32 v{V_ZA+4*eh+r}, v{T0}')
    a.e('s_waitcnt lgkmcnt(0)')
    for e in range(8):
        zr=V_DR+e; zi=V_DI+e; pr=V_WR+e; pi=V_WI+e; ar_=T0+6; ai=T0+7
        qr=T0; qi=T0+1; yr=T0+2; yi=T0+3
        a.e(f'''v_lshlrev_b32 v{qr}, 16, v{V_Q+e}
        v_and_b32 v{qi}, 0xffff0000, v{V_Q+e}
        v_lshlrev_b32 v{ar_}, 16, v{V_ZA+e}
        v_and_b32 v{ai}, 0xffff0000, v{V_ZA+e}
        v_mul_f32 v{yr}, v{zr}, v{pr}
        v_fma_f32 v{yr}, -v{zi}, v{pi}, v{yr}
        v_fma_f32 v{yr}, v{ar_}, v{qr}, v{yr}
        v_fma_f32 v{yr}, v{ai}, v{qi}, v{yr}
        v_mul_f32 v{yi}, v{zr}, v{pi}
        v_fma_f32 v{yi}, v{zi}, v{pr}, v{yi}
        v_fma_f32 v{yi}, v{ar_}, v{qi}, v{yi}
        v_fma_f32 v{yi}, -v{ai}, v{qr}, v{yi}
        v_cvt_pk_bf16_f32 v{V_B+e}, v{yr}, -v{yi}''')
    a.cond_end()
    a.e('s_branch L_p2_join')

HEADER='''; Gated mix of a GFNet spectral filter and a dense->mish->dense block, one persistent launch.
; (text generated by the author's own generator script; 256 workgroups, one per CU, hand-offs through counters)
'''
def build(stamps=False,off=(),**kw):
    cfg=Cfg(); cfg.stamps=stamps; cfg.off=set(off); cfg.x=kw; cfg.fine=kw.get('fine',0)
    label=NAME+'_kernel'
    a=Asm(); end='L_end'
    prologue(a,cfg,end)
    sv=(a.vm,a.lg)
    if kw.get('ffirst'):
        f_stream(a,cfg,end)
        nbF=sum(1 for i in a.items if i.op=='s_barrier'); n0=len(a.items)
        a.vm,a.lg=sv; a.bg_rate=0; assert not a.bg
        a.e('L_M:')
        m_stream(a,cfg,end)
        nbM=sum(1 for i in a.items[n0:] if i.op=='s_barrier')
    else:
        m_stream(a,cfg,end)
        nbM=sum(1 for i in a.items if i.op=='s_barrier'); n0=len(a.items)
        a.vm,a.lg=sv; a.bg_rate=0; assert not a.bg
        f_stream(a,cfg,end)
        nbF=sum(1 for i in a.items[n0:] if i.op=='s_barrier')
    a.e(f'{end}:'); a.e('s_endpgm')
    txt=a.text()
    errs=[]
    for role in (False,True):
        jump=lambda t: (role and t=='L_F') or ((not role) and t=='L_M')
        for nm,pol in (('fall',lambda i,n:i.target.endswith('_done') or jump(i.target)),
                       ('taken',lambda i,n:((not i.target.startswith('L_end')) and n==0 and (i.target not in('L_F','L_M') or jump(i.target))))):
            errs+=verify_waits(a.out,pol,('F' if role else 'M')+nm)
    for e in sorted(set(errs))[:30]: print('WAITERR',e,file=sys.stderr)
    print(dict(a.count()),'barriers M',nbM,'F',nbF,file=sys.stderr)
    out=HEADER+f'; @launch grid=(256,1,1) block=(512,1,1) lds={LDS_TOTAL}\n'
    out+='.amdgcn_target "amdgcn-amd-amdhsa--gfx950"\n.text\n'
    out+=f'.globl {label}\n.p2align 8\n.type {label},@function\n{label}:\n{txt}'
    out+=f'''.section .rodata,"a"
.p2align 6
.amdhsa_kernel {label}
  .amdhsa_next_free_vgpr 256
  .amdhsa_next_free_sgpr 102
  .amdhsa_accum_offset 256
  .amdhsa_group_segment_fixed_size 0
  .amdhsa_kernarg_size 88
  .amdhsa_user_sgpr_count 2
  .amdhsa_user_sgpr_kernarg_segment_ptr 1
  .amdhsa_system_sgpr_workgroup_id_x 1
.end_amdhsa_kernel
'''
    return out

if __name__=='__main__':
    mode=sys.argv[1] if len(sys.argv)>1 else 'persist'
    kw={}
    for x in sys.argv[3:]:
        k,v=x.split('='); kw[k]=int(v) if v.lstrip('-').isdigit() else v
    off=kw.pop('off','').split(',') if 'off' in kw else ()
    txt=build(stamps=(mode=='stamps'),off=off,**kw)
    open(sys.argv[2] if len(sys.argv)>2 else 'out.s','w').write(txt)
```

```python
import sys, os, struct
from dsl import Asm, verify_waits

NAME='gated_mix__spectral_gfnet__dense_activation_mish__prompt'
WS_T   =0x000000
WS_WT  =0x200000
WS_QT  =0x400000
WS_G   =0x402000
WS_CNT =0x404000
WS_Y   =0x600000
WS_ACT =0x800000
WS_STAMP=0x1000000
WS_SIZE=0x1080000
RT_STRIDE=56*4096
S_X,S_WR,S_WI,S_W1,S_B1,S_W2,S_GW,S_OUT,S_WS,S_DBG=8,12,16,20,24,28,32,36,40,44
def srd(n): return f's[{n}:{n+3}]'
SRDS=[(S_X,0,2048*1024),(S_WR,8,2048*514),(S_WI,16,2048*514),(S_W1,32,512*3584),(S_B1,40,3584),
      (S_W2,48,1792*1024),(S_GW,56,1024),(S_OUT,64,2048*1024),(S_WS,80,WS_SIZE),(S_DBG,72,256)]
def vr(b,n=1): return f'v{b}' if n==1 else f'v[{b}:{b+n-1}]'
def fl(x): return hex(struct.unpack('<I',struct.pack('<f',float(x)))[0])
S_WV=3; S_W8=49
wv=f's{S_WV}'
LOG2E=1.4426950408889634
OOB=0x40000000
SLEEP=int(os.environ.get('SLEEP','8'))
SPIN_MAX=50000
SLOT=31744
SB=lambda c:(c%5)*SLOT
XA_BASE=4*SLOT; XA_PITCH=1152
GW_LDS=5*SLOT; B1_LDS=GW_LDS+1024
LC_BASE=GW_LDS+2048
TB_BASE=131072; XB_BASE=139264; ZR_BASE=147456; WB_BASE=155648
LDS_TOTAL=163840
V_L16=3
V_PD,V_PA,V_SIG=250,251,252

class Cfg:
    stamps=False; dbgst=False; sc='sc1'
    off=set()
    def f(self,tag): return '' if (tag in self.off or 'all' in self.off) else self.sc

def stamp(a,cfg,idx):
    if not cfg.stamps: return
    r=a.bg_rate; a.bg_rate=0
    a.e('s_memrealtime s[96:97]'); a.e('s_waitcnt lgkmcnt(0)'); a.e(f'v_writelane_b32 v255, s96, {idx}')
    a.bg_rate=r
def stamps_flush(a,cfg):
    if not cfg.stamps: return
    a.e(f"""v_lshrrev_b32 v254, 6, v249
    s_nop 0
    v_readfirstlane_b32 s98, v254
    s_lshl_b32 s99, s2, 3
    s_add_u32 s98, s98, s99
    s_lshl_b32 s98, s98, 8
    s_add_u32 s98, s98, {WS_STAMP}
    v_lshlrev_b32 v254, 2, v0
    buffer_store_dword v255, v254, {srd(S_WS)}, s98 offen""")

def signal(a,S,soff):
    vt=V_SIG
    a.e(f"""s_cmp_eq_u32 {wv}, 0
    s_cselect_b32 s95, 0, {OOB}
    v_mov_b32 v{vt}, 1
    v_mov_b32 v{vt+1}, s95
    s_mov_b64 exec, 1
    buffer_atomic_add v{vt}, v{vt+1}, {srd(S)}, {soff} offen sc1
    s_mov_b64 exec, -1""")

def ssignal(a,S,soff):
    lab=f'L_ss{len(a.items)}'
    a.e(f's_cmp_lg_u32 {wv}, 0'); a.e(f's_cbranch_scc1 {lab}')
    a.e(f's_atomic_add s90, s[{S}:{S+1}], {soff}')
    a.e(f'{lab}:')

def spin_global(a,S,soff,nl,stride,target):
    lab=f'L_poll{len(a.items)}'
    a.e(f'v_mul_u32_u24 v{V_PA}, {stride}, v0')
    a.e(f's_mov_b64 exec, {hex((1<<nl)-1)}')
    a.e(f's_mov_b32 s94, 0')
    a.e(f'{lab}:')
    a.e(f'buffer_load_dword v{V_PD}, v{V_PA}, {srd(S)}, {soff} offen sc1')
    a.e(f's_add_u32 s94, s94, 1')
    a.e(f's_waitcnt vmcnt(0)')
    a.e(f'v_cmp_gt_u32 vcc, {target}, v{V_PD}')
    a.e(f's_cbranch_vccz {lab}_done')
    a.e(f's_cmp_gt_u32 s94, {SPIN_MAX}')
    a.e(f's_cbranch_scc1 {lab}_done')
    a.e(f's_sleep {SLEEP}')
    a.e(f's_branch {lab}')
    a.e(f'{lab}_done:')
    a.e('s_mov_b64 exec, -1')

def poll_w0(a,S,soff,nl,stride,target):
    lab=f'L_pw{len(a.items)}'
    a.e(f's_cmp_lg_u32 {wv}, 0'); a.e(f's_cbranch_scc1 {lab}')
    a.cond_begin(); spin_global(a,S,soff,nl,stride,target); a.cond_end()
    a.e(f'{lab}:')

V_LC=248
def lc_add(a,idx,rtn=None):
    a.e(f'v_mov_b32 v{V_LC-1}, 1')
    a.e('s_mov_b64 exec, 1')
    if rtn is None: a.e(f'ds_add_u32 v{V_LC}, v{V_LC-1} offset:{4*idx}')
    else: a.e(f'ds_add_rtn_u32 v{rtn}, v{V_LC}, v{V_LC-1} offset:{4*idx}')
    a.e('s_mov_b64 exec, -1')
def lc_wait(a,idx,target):
    lab=f'L_lc{len(a.items)}'
    a.e('s_mov_b32 s94, 0')
    a.e(f'{lab}:')
    a.e(f'ds_read_b32 v{V_LC-1}, v{V_LC} offset:{4*idx}')
    a.e('s_add_u32 s94, s94, 1')
    a.e('s_waitcnt lgkmcnt(0)')
    a.e(f'v_readfirstlane_b32 s93, v{V_LC-1}')
    a.e(f's_cmp_ge_u32 s93, {target}')
    a.e(f's_cbranch_scc1 {lab}_done')
    a.e('s_sleep 1')
    a.e(f's_cmp_lt_u32 s94, {20*SPIN_MAX}')
    a.e(f's_cbranch_scc1 {lab}')
    a.e(f'{lab}_done:')

def angles(a,items,T):
    for i0 in range(0,len(items),4):
        grp=items[i0:i0+4]; src=[]
        for j,(sl,base,n,fin,neg) in enumerate(grp):
            if n==0: src.append(f'v{base}')
            else:
                a.e(f'v_fmamk_f32 v{T+j}, v{sl}, {fl(n)}, v{base}'); src.append(f'v{T+j}')
        outs=[]
        for j,(sl,base,n,fin,neg) in enumerate(grp):
            c,s=fin[0] if fin[0] is not None else T+4+j, fin[1] if fin[1] is not None else T+8+j
            a.e(f'v_cos_f32 v{c}, {src[j]}')
            a.e(f'v_sin_f32_e64 v{s}, -{src[j]}' if neg else f'v_sin_f32 v{s}, {src[j]}')
            outs.append((c,s))
        for j,(sl,base,n,fin,neg) in enumerate(grp):
            if fin[2]: fin[2](*outs[j])

def cmul_pack(a,c,s,tc,ts,dst,TT,n=4,negim=False):
    H=n//2
    for h in range(H): a.e(f'v_pk_mul_f32 {vr(TT+4*h,2)}, {vr(s+2*h,2)}, {vr(ts+2*h,2)}')
    for h in range(H): a.e(f'v_pk_mul_f32 {vr(TT+4*h+2,2)}, {vr(s+2*h,2)}, {vr(tc+2*h,2)}')
    for h in range(H): a.e(f'v_pk_fma_f32 {vr(TT+4*h,2)}, {vr(c+2*h,2)}, {vr(tc+2*h,2)}, {vr(TT+4*h,2)} neg_lo:[0,0,1] neg_hi:[0,0,1]')
    for h in range(H): a.e(f'v_pk_fma_f32 {vr(TT+4*h+2,2)}, {vr(c+2*h,2)}, {vr(ts+2*h,2)}, {vr(TT+4*h+2,2)}')
    ng='-' if negim else ''
    for h in range(H):
        a.e(f'v_cvt_pk_bf16_f32 v{dst+2*h}, v{TT+4*h}, {ng}v{TT+4*h+2}')
        a.e(f'v_cvt_pk_bf16_f32 v{dst+2*h+1}, v{TT+4*h+1}, {ng}v{TT+4*h+3}')

def prologue(a,cfg,end):
    a.e('s_cmp_ge_u32 s2, 256'); a.e(f's_cbranch_scc1 {end}')
    for (n,off,sz) in SRDS: a.e(f's_load_dwordx2 s[{n}:{n+1}], s[0:1], {off}')
    if cfg.x.get('pf_code') and cfg.x.get('pf_top'):
        nw=cfg.x['pf_top']
        a.e('s_getpc_b64 s[64:65]')
        a.e('v_lshrrev_b32 v56, 6, v0'); a.e('v_and_b32 v57, 63, v0')
        a.e('v_readfirstlane_b32 s66, v56')
        a.e('v_lshlrev_b32 v57, 4, v57')
        a.e('s_lshr_b32 s67, s2, 3'); a.e(f's_mul_i32 s67, s67, {nw}'); a.e('s_add_u32 s67, s67, s66')
        a.e('s_lshl_b32 s68, s67, 10')
        a.e('s_add_u32 s64, s64, s68'); a.e('s_addc_u32 s65, s65, 0')
        a.e('v_mov_b32 v59, s65'); a.e('v_add_co_u32 v58, vcc, s64, v57'); a.e('s_nop 1'); a.e('v_addc_co_u32 v59, vcc, 0, v59, vcc')
        a.e(f's_cmp_lt_u32 s66, {nw}'); a.e('s_cbranch_scc0 L_nopf0'); a.cond_begin()
        a.e(f's_cmp_lt_u32 s67, {cfg.x["pf_code"]}'); a.e('s_cbranch_scc0 L_nopf0')
        a.e('global_load_dwordx4 v[52:55], v[58:59], off')
        a.cond_end(); a.e('L_nopf0:')
    if cfg.stamps: a.e('v_mov_b32 v249, v0')
    a.e('v_lshrrev_b32 v1, 6, v0')
    a.e('v_and_b32 v0, 63, v0')
    a.e('v_readfirstlane_b32 s48, v1')
    a.e('v_and_b32 v1, 15, v0')
    a.e('v_lshrrev_b32 v2, 4, v0')
    a.e(f'v_lshlrev_b32 v{V_L16}, 4, v0')
    for (n,off,sz) in SRDS:
        a.e(f's_mov_b32 s{n+2}, {hex(sz)}'); a.e(f's_mov_b32 s{n+3}, 0x20000')
    a.e(f'''s_mov_b32 s51, s48
    s_and_b32 {wv}, s48, 3
    s_lshr_b32 s50, s48, 2
    s_and_b32 s4, s2, 7
    s_lshr_b32 s5, s2, 3
    s_lshr_b32 s6, s4, 1
    s_lshl_b32 s6, s6, 2
    s_lshr_b32 s56, s5, 3
    s_add_u32 s6, s6, s56
    s_and_b32 s7, s4, 1
    s_lshl_b32 s7, s7, 3
    s_and_b32 s56, s5, 7
    s_add_u32 s7, s7, s56
    s_and_b32 s48, s7, 1''')
    a.e('s_waitcnt lgkmcnt(0)')
    if cfg.x.get('pf_code') and not cfg.x.get('pf_top'):
        a.e('s_getpc_b64 s[64:65]')
        a.e('s_lshl_b32 s66, s5, 10')
        a.e('s_add_u32 s64, s64, s66'); a.e('s_addc_u32 s65, s65, 0')
        a.e(f'v_mov_b32 v57, s65'); a.e(f'v_add_co_u32 v56, vcc, s64, v{V_L16}'); a.e('s_nop 1'); a.e(f'v_addc_co_u32 v57, vcc, 0, v57, vcc')
        a.e(f's_cmp_lt_u32 s5, {cfg.x["pf_code"]}'); a.e('s_cbranch_scc0 L_nopf'); a.cond_begin()
        a.e(f's_cmp_lg_u32 s51, 2'); a.e('s_cbranch_scc1 L_nopf')
        a.e('global_load_dwordx4 v[52:55], v[56:57], off')
        a.cond_end(); a.e('L_nopf:')
    mt=str(cfg.x.get('mt','xw'))
    if mt!='0':
        a.e(f'''v_lshlrev_b32 v5, 7, v0
        v_mov_b32 v6, {OOB}
        v_cmp_gt_u32 vcc, 56, v0
        v_cndmask_b32 v6, v6, v5, vcc
        s_cmp_eq_u32 s51, 0
        s_cselect_b32 s56, 0, {OOB}
        v_add_u32 v5, s56, v5
        s_cmp_eq_u32 s51, 1
        s_cselect_b32 s56, 0, {OOB}
        v_add_u32 v7, s56, v6
        s_lshl_b32 s56, s2, 13
        s_mul_i32 s57, s2, 7168''')
        if 'x' in mt: a.e(f'buffer_load_dword v245, v5, {srd(S_X)}, s56 offen')
        if 'w' in mt: a.e(f'buffer_load_dword v245, v7, {srd(S_W1)}, s57 offen')
    if cfg.x.get('xaearly'):
        a.e(f'''s_lshr_b32 s56, s2, 5
        s_lshl_b32 s56, s56, 18
        s_and_b32 s57, s2, 31
        s_lshl_b32 s57, s57, 10
        s_add_u32 s56, s56, s57
        s_lshl_b32 s57, {wv}, 16
        s_add_u32 s56, s56, s57
        s_add_u32 s58, s56, 32768
        s_mul_i32 s57, {wv}, {2*XA_PITCH}
        s_add_u32 s57, s57, {XA_BASE}''')
        a.e('s_cmp_eq_u32 s50, 0'); a.e('s_cbranch_scc1 L_noxa'); a.cond_begin()
        a.e(f'''s_mov_b32 m0, s57
        s_add_u32 s57, s57, {XA_PITCH}
        buffer_load_dwordx4 v{V_L16}, {srd(S_X)}, s56 offen lds
        s_mov_b32 m0, s57
        s_nop 0
        buffer_load_dwordx4 v{V_L16}, {srd(S_X)}, s58 offen lds''')
        a.cond_end(); a.e('L_noxa:')
    if cfg.x.get('gtouch'):
        a.e(f'''s_xor_b32 s56, s51, 2
        s_xor_b32 s57, s2, 1
        s_or_b32 s56, s56, s57
        s_cmp_eq_u32 s56, 0
        s_cselect_b32 s56, 0, {OOB}
        v_lshlrev_b32 v5, 7, v0
        v_add_u32 v5, s56, v5
        s_mov_b32 s57, {WS_G}
        buffer_load_dword v245, v5, {srd(S_WS)}, s57 offen''')
    if cfg.x.get('tlb'):
        a.e(f'''v_lshlrev_b32 v5, 21, v0
        v_mov_b32 v6, {OOB}
        v_cmp_gt_u32 vcc, 9, v0
        v_cndmask_b32 v5, v6, v5, vcc
        s_cmp_eq_u32 s51, 2
        s_cselect_b32 s56, 0, {OOB}
        v_or_b32 v5, s56, v5
        s_cmp_eq_u32 s51, 3
        s_cselect_b32 s56, 0, {OOB}
        v_cmp_gt_u32 vcc, 1, v0
        v_cndmask_b32 v6, v6, v0, vcc
        v_or_b32 v6, s56, v6
        buffer_load_dword v245, v5, {srd(S_WS)}, 0 offen
        buffer_load_dword v245, v6, {srd(S_OUT)}, 0 offen''')
    if cfg.x.get('ffirst'):
        a.e('s_cmp_eq_u32 s50, 0'); a.e('s_cbranch_scc1 L_M')
    else:
        a.e('s_cmp_lg_u32 s50, 0'); a.e('s_cbranch_scc1 L_F')

V_GF=8
V_W2A=240; V_W2D=244
NS3=int(os.environ.get('NS3','8'))
GSLOT=[6,7,0,1]
GT0=224; GTA=234
G_ITEMS=[(psi,c,u) for psi in range(4) for c in range(4) for u in range(4)]
def m_g2_ids(a,cfg):
    a.e(f"""s_lshl_b32 s67, s4, 2
    s_lshr_b32 s68, s5, 3
    s_add_u32 s67, s67, s68
    s_and_b32 s68, s5, 7
    s_mul_i32 s69, s67, {RT_STRIDE}
    s_mul_i32 s70, {wv}, {14*4096}
    s_add_u32 s69, s69, s70
    s_add_u32 s69, s69, {WS_ACT}
    s_mul_i32 s70, {wv}, {14*32*1024}
    s_lshl_b32 s71, s68, 7
    s_add_u32 s70, s70, s71
    s_lshl_b32 s71, {wv}, 15
    s_lshr_b32 s72, s67, 1
    s_and_b32 s73, s67, 1
    s_lshr_b32 s74, s72, 2
    s_lshl_b32 s74, s74, 11
    s_lshl_b32 s75, s73, 10
    s_add_u32 s74, s74, s75
    s_and_b32 s75, s72, 3
    s_lshl_b32 s75, s75, 8
    s_add_u32 s74, s74, s75""")
def w2_dma_addr(a,V,T):
    a.e(f"""v_lshrrev_b32 v{T}, 3, v0
    v_lshlrev_b32 v{V}, 10, v{T}
    v_lshrrev_b32 v{T}, 1, v{T}
    v_and_b32 v{T}, 3, v{T}
    v_bfe_u32 v{T+1}, v0, 1, 2
    v_xor_b32 v{T}, v{T}, v{T+1}
    v_lshlrev_b32 v{T}, 1, v{T}
    v_and_b32 v{T+1}, 1, v0
    v_add_u32 v{T}, v{T}, v{T+1}
    v_lshl_add_u32 v{V}, v{T}, 4, v{V}""")
def w2_group(t,v,V):
    return [f's_add_u32 m0, s71, {(t%8)*4096+v*1024}', f's_add_u32 s55, s70, {(32*t+8*v)*1024}',
            f'buffer_load_dwordx4 v{V}, {srd(S_W2)}, s55 offen lds']

def m_stream(a,cfg,end):
    a.e('s_waitcnt lgkmcnt(0)')
    if cfg.x.get('prio0'): a.e(f's_setprio {cfg.x["prio0"]}')
    stamp(a,cfg,26)
    a.e(f'''s_xor_b32 s56, {wv}, 3
    s_or_b32 s58, s56, s2
    s_cmp_eq_u32 s58, 0
    s_cselect_b32 s56, 0, {OOB}
    v_lshlrev_b32 v5, 7, v0
    v_add_u32 v5, s56, v5
    v_mov_b32 v6, 0
    s_mov_b32 s57, {WS_CNT}
    s_mov_b32 exec_hi, 0
    buffer_store_dword v6, v5, {srd(S_WS)}, s57 offen sc1
    s_mov_b32 exec_hi, -1''')
    mt=str(cfg.x.get('mt','xw'))
    a.e(f'''s_lshr_b32 s49, s2, 5
    s_and_b32 s50, s2, 31''')
    V_B1C=60; V_B1S=68; V_TC=76; V_TS=80; V_A2=84; V_A2N=88; T0=92; TA=100
    a.e(f'''s_lshl_b32 s67, {wv}, 4
    v_add_u32 v{T0}, s67, v1
    v_cvt_f32_u32 v{T0}, v{T0}
    v_mul_f32 v{T0+1}, {fl(1/64)}, v{T0}
    v_lshlrev_b32 v{T0+2}, 2, v2
    v_cvt_f32_u32 v{T0+2}, v{T0+2}
    v_mul_f32 v{T0+3}, v{T0+2}, v{T0+1}''')
    for ks in range(2):
        for hh in range(2):
            angles(a,[(T0+1,T0+3,32*ks+16*hh+u,(None,None,None),True) for u in range(4)],TA)
            for d in range(2):
                a.e(f'v_cvt_pk_bf16_f32 v{V_B1C+4*ks+2*hh+d}, v{TA+4+2*d}, v{TA+5+2*d}')
                a.e(f'v_cvt_pk_bf16_f32 v{V_B1S+4*ks+2*hh+d}, v{TA+8+2*d}, v{TA+9+2*d}')
    a.e(f'''v_and_b32 v{T0+4}, 1, v2
    v_lshlrev_b32 v{T0+4}, 2, v{T0+4}
    v_cvt_f32_u32 v{T0+4}, v{T0+4}
    v_mul_f32 v{T0+5}, {fl(1/512)}, v{T0}
    v_mul_f32 v{T0+6}, v{T0+4}, v{T0+5}''')
    angles(a,[(T0+5,T0+6,r,(V_TC+r,V_TS+r,None),True) for r in range(4)],TA)
    a.e(f'''v_lshrrev_b32 v{T0+5}, 2, v1
    v_cvt_f32_u32 v{T0+5}, v{T0+5}
    v_mul_f32 v{T0+5}, {fl(1/8)}, v{T0+5}
    v_and_b32 v{T0+6}, 1, v1
    v_cvt_f32_u32 v{T0+6}, v{T0+6}
    v_mul_f32 v{T0+6}, {fl(0.25)}, v{T0+6}
    v_fma_f32 v{T0+6}, v{T0+4}, v{T0+5}, v{T0+6}
    v_lshrrev_b32 v{T0+7}, 1, v1
    v_and_b32 v{T0+7}, 1, v{T0+7}
    v_lshrrev_b32 v{T0}, 1, v2
    v_cmp_eq_u32 s[68:69], v{T0+7}, v{T0}
    v_and_b32 v{T0+7}, 13, v1
    v_cmp_eq_u32 vcc, 1, v{T0+7}''')
    a.e('s_and_b64 s[70:71], vcc, s[68:69]')
    angles(a,[(T0+5,T0+6,dw,(None,None,None),False) for dw in range(4)],TA)
    for dw in range(4): a.e(f'v_cvt_pk_bf16_f32 v{TA+dw}, v{TA+4+dw}, v{TA+8+dw}')
    a.e(f'v_mov_b32 v{TA+4}, 0x3f80'); a.e(f'v_mov_b32 v{TA+5}, 0xbf80')
    for dw in range(4):
        a.e(f'v_cndmask_b32 v{V_A2+dw}, 0, v{TA+dw}, s[68:69]')
        a.e(f'v_cndmask_b32 v{V_A2N+dw}, 0, v{TA+4+(dw&1)}, s[70:71]')
    V_XA=108
    a.e(f'''v_and_b32 v{T0}, 3, v0
    v_lshrrev_b32 v{T0+1}, 1, v{T0}
    v_mul_u32_u24 v{V_XA}, {XA_PITCH}, v{T0+1}
    v_and_b32 v{T0}, 1, v{T0}
    v_lshlrev_b32 v{T0}, 3, v{T0}
    v_lshrrev_b32 v{T0+1}, 2, v1
    v_lshl_add_u32 v{T0+1}, v2, 2, v{T0+1}
    v_lshlrev_b32 v{T0+1}, 4, v{T0+1}
    v_add3_u32 v{V_XA}, v{V_XA}, v{T0}, v{T0+1}
    v_add_u32 v{V_XA}, {XA_BASE}, v{V_XA}
    s_mul_i32 s72, {wv}, {2*XA_PITCH}
    s_add_u32 s72, s72, {XA_BASE}
    v_add_u32 v{V_XA+1}, s72, v{V_L16}
    v_add_u32 v{V_XA+2}, {GW_LDS}, v{V_L16}''')
    a.e(f'''s_lshl_b32 s84, s49, 3
    s_lshl_b32 s85, {wv}, 1
    s_add_u32 s84, s84, s85
    s_lshr_b32 s85, s84, 4
    s_lshl_b32 s85, s85, 11
    s_lshr_b32 s86, s50, 4
    s_lshl_b32 s86, s86, 10
    s_add_u32 s85, s85, s86
    s_lshr_b32 s86, s84, 2
    s_and_b32 s86, s86, 3
    s_lshl_b32 s86, s86, 8
    s_add_u32 s85, s85, s86
    s_and_b32 s86, s50, 15
    s_lshl_b32 s86, s86, 4
    s_add_u32 s85, s85, s86
    s_and_b32 s86, s84, 3
    s_lshl_b32 s86, s86, 2
    s_add_u32 s85, s85, s86
    s_add_u32 s85, s85, {WS_G}
    ''')
    if mt!='0' and ('W' in mt or '2' in mt):
        a.e(f'''v_lshlrev_b32 v5, 7, v0
        v_mov_b32 v6, {OOB}
        v_cmp_gt_u32 vcc, 33, v0
        v_cndmask_b32 v7, v6, v5, vcc
        v_cmp_gt_u32 vcc, 56, v0
        v_cndmask_b32 v6, v6, v5, vcc
        s_cmp_eq_u32 {wv}, 2
        s_cselect_b32 s56, 0, {OOB}
        v_add_u32 v5, s56, v7
        s_cmp_eq_u32 {wv}, 3
        s_cselect_b32 s56, 0, {OOB}
        v_add_u32 v7, s56, v7
        s_cmp_eq_u32 {wv}, 0
        s_cselect_b32 s56, 0, {OOB}
        v_add_u32 v6, s56, v6
        s_mul_i32 s56, s2, {33*128}
        v_add_u32 v5, s56, v5
        v_add_u32 v7, s56, v7
        s_mul_i32 s57, s2, 7168''')
        if 'W' in mt:
            a.e(f'buffer_load_dword v245, v5, {srd(S_WR)}, 0 offen')
            a.e(f'buffer_load_dword v245, v7, {srd(S_WI)}, 0 offen')
        if '2' in mt: a.e(f'buffer_load_dword v245, v6, {srd(S_W2)}, s57 offen')
    a.e('s_cmp_lg_u32 s58, 0'); a.e('s_cbranch_scc1 L_m_nos0'); a.cond_begin()
    a.e(f'''s_waitcnt vmcnt(0)
    v_mov_b32 v5, 1
    v_mov_b32 v6, 32
    s_mov_b64 exec, 1
    buffer_store_dword v5, v6, {srd(S_DBG)}, 0 offen sc1
    s_mov_b64 exec, -1''')
    a.cond_end(); a.e('L_m_nos0:')
    stamp(a,cfg,0)
    a.e('s_barrier')
    stamp(a,cfg,1)
    V_AF=112; V_GX=144; V_GW=184; V_D1C=152; V_D1S=168
    for pi in range(4):
        for ks in range(2):
            for hh in range(2):
                a.e(f'ds_read_b64_tr_b16 {vr(V_AF+8*pi+4*ks+2*hh,2)}, v{V_XA} offset:{pi*2*XA_PITCH+ks*512+hh*256}')
        if pi==1: lg_01=a.lgtok()
    lg_af=a.lgtok()
    a.e(f'ds_read_b128 {vr(V_GX,4)}, v{V_XA+1}')
    a.e(f'ds_read_b128 {vr(V_GX+4,4)}, v{V_XA+1} offset:{XA_PITCH}')
    a.e(f'ds_read_b128 {vr(V_GW,4)}, v{V_XA+2}')
    lg_gx=a.lgtok()
    for pi in range(4):
        if pi==0: a.wait_lg(lg_01)
        if pi==2: a.wait_lg(lg_af)
        for ks in range(2):
            A=vr(V_AF+8*pi+4*ks,4); c=vr(V_D1C+4*pi,4); s=vr(V_D1S+4*pi,4)
            a.e(f'v_mfma_f32_16x16x32_bf16 {c}, {A}, {vr(V_B1C+4*ks,4)}, {c if ks else 0}')
            a.e(f'v_mfma_f32_16x16x32_bf16 {s}, {A}, {vr(V_B1S+4*ks,4)}, {s if ks else 0}')
    a.wait_lg(lg_gx)
    V_Z=T0+2; V_GOUT=T0+4
    for d in range(4):
        for rr in range(2):
            a.e(f'v_dot2_f32_bf16 v{V_Z+rr}, v{V_GX+4*rr+d}, v{V_GW+d}, {("v%d"%(V_Z+rr)) if d else 0}')
    TT=TA; V_B2=V_AF
    red=[('row_shr:1 row_mask:0xf bank_mask:0xf bound_ctrl:1'),('row_shr:2 row_mask:0xf bank_mask:0xf bound_ctrl:1'),
         ('row_shr:4 row_mask:0xf bank_mask:0xf bound_ctrl:1'),('row_shr:8 row_mask:0xf bank_mask:0xf bound_ctrl:1'),
         ('row_bcast:15 row_mask:0xa bank_mask:0xf'),('row_bcast:31 row_mask:0xc bank_mask:0xf')]
    ri=0
    for pi in range(4):
        cmul_pack(a,V_D1C+4*pi,V_D1S+4*pi,V_TC,V_TS,V_B2+4*pi,TT)
        for _ in range(2 if pi<2 else 1):
            for rr in range(2): a.e(f'v_add_f32_dpp v{V_Z+rr}, v{V_Z+rr}, v{V_Z+rr} {red[ri]}')
            ri+=1
    V_D2=V_D1C; V_D2N=V_D1S
    for pi in range(4):
        a.e(f'v_mfma_f32_16x16x32_bf16 {vr(V_D2+4*pi,4)}, {vr(V_A2,4)}, {vr(V_B2+4*pi,4)}, 0')
        a.e(f'v_mfma_f32_16x16x32_bf16 {vr(V_D2N+4*pi,4)}, {vr(V_A2N,4)}, {vr(V_B2+4*pi,4)}, 0')
    for rr in range(2): a.e(f'v_mul_f32 v{V_Z+rr}, {fl(-LOG2E)}, v{V_Z+rr}')
    for rr in range(2): a.e(f'v_exp_f32 v{V_Z+rr}, v{V_Z+rr}')
    for rr in range(2): a.e(f'v_add_f32 v{V_Z+rr}, 1.0, v{V_Z+rr}')
    for rr in range(2): a.e(f'v_rcp_f32 v{V_GOUT+rr}, v{V_Z+rr}')
    a.e(f'''s_cmp_eq_u32 {wv}, 0
    s_cselect_b32 s74, 1, 0
    s_mov_b32 s75, 0''')
    V_TO=8
    for pi in range(4):
        for rho in range(2):
            re=V_D2+4*pi+2*rho; im=re+1
            a.e(f'v_cndmask_b32 v{im}, v{im}, v{V_D2N+4*pi+2*rho+1}, s[74:75]')
            a.e(f'v_cvt_pk_bf16_f32 v{V_TO+2*pi+rho}, v{re}, v{im}')
    a.e(f'''v_lshrrev_b32 v18, 5, v0
    v_lshlrev_b32 v18, 11, v18
    v_and_b32 v19, 31, v0
    v_lshl_add_u32 v18, v19, 4, v18
    s_lshl_b32 s93, {wv}, 9
    v_add_u32 v18, s93, v18
    s_lshl_b32 s90, s2, 13
    s_add_u32 s90, s90, {WS_T}
    v_mov_b32 v16, v{V_GOUT}
    v_mov_b32 v17, v{V_GOUT+1}
    v_mov_b32 v19, 0
    s_mov_b32 s91, s85''')
    def row_stores():
        if cfg.x.get('x_nors'): return
        a.e(f'''s_add_u32 s93, s90, 4096
        buffer_store_dwordx4 v[8:11], v18, {srd(S_WS)}, s90 offen {cfg.f("stT")}
        buffer_store_dwordx4 v[12:15], v18, {srd(S_WS)}, s93 offen {cfg.f("stT")}
        s_mov_b32 exec_lo, 0
        s_mov_b32 exec_hi, 0x80000000
        buffer_store_dwordx2 v[16:17], v19, {srd(S_WS)}, s91 offen {cfg.f("stG")}
        s_mov_b64 exec, -1''')
    if cfg.x.get('rs_at',9)<0: row_stores()
    stamp(a,cfg,17)
    V_XF=80; V_XR=96; V_VA=102; V_BIAS=108; V_ACC=136; V_WF=192; V_BRAW=220; T0=234
    a.e(f'''s_lshl_b32 s76, {wv}, 12
    v_lshlrev_b32 v{T0}, 7, v1
    v_add_u32 v{T0}, s76, v{T0}
    v_lshrrev_b32 v{T0+1}, 1, v1
    v_xor_b32 v{T0+1}, v{T0+1}, v2
    v_lshl_add_u32 v{V_XR}, v{T0+1}, 4, v{T0}
    v_xor_b32 v{T0+1}, 4, v{T0+1}
    v_lshl_add_u32 v{V_XR+1}, v{T0+1}, 4, v{T0}
    v_mul_u32_u24 v{V_VA}, 1920, v2
    v_lshrrev_b32 v{T0}, 2, v1
    v_mul_u32_u24 v{T0}, 224, v{T0}
    v_and_b32 v{T0+1}, 3, v0
    v_lshlrev_b32 v{T0+1}, 3, v{T0+1}
    v_add3_u32 v{V_VA}, v{V_VA}, v{T0}, v{T0+1}
    v_add_u32 v{V_VA}, 16384, v{V_VA}
    s_cmp_eq_u32 s48, 0
    s_cselect_b32 s76, 192, 0
    v_add_u32 v{V_VA+1}, s76, v{V_VA}
    s_lshl_b32 s76, s48, 5
    v_add_u32 v{V_VA}, s76, v{V_VA}''')
    for st_ in (1,2):
        for j in range(2):
            a.e(f'v_add_u32 v{V_XR+2*st_+j}, {2*st_*SLOT}, v{V_XR+j}')
            a.e(f'v_add_u32 v{V_VA+2*st_+j}, {2*st_*SLOT}, v{V_VA+j}')
    a.e(f'''v_lshlrev_b32 v{T0}, 3, v2
    s_lshl_b32 s76, s48, 5
    s_add_u32 s77, s76, {B1_LDS}
    v_add_u32 v{T0+1}, s77, v{T0}
    s_cmp_eq_u32 s48, 0
    s_cselect_b32 s77, 192, 0
    s_add_u32 s77, s77, {B1_LDS}
    v_add_u32 v{T0}, s77, v{T0}''')
    if cfg.x.get('prio'): a.e(f's_setprio {cfg.x["prio"]}')
    a.e('s_barrier')
    stamp(a,cfg,3)
    a.e(f'''s_mul_i32 s93, {wv}, {2*XA_PITCH}
    s_add_u32 s93, s93, {XA_BASE}
    v_lshl_add_u32 v20, v0, 5, s93
    v_add_u32 v21, s93, v{V_L16}
    ds_write_b128 v20, v[8:11]
    ds_write_b128 v20, v[12:15] offset:16
    s_waitcnt lgkmcnt(0)
    ds_read_b128 v[8:11], v21
    ds_read_b128 v[12:15], v21 offset:1024''')
    def slot_set(c):
        j=c%5; return (j//2, (j%2)*SLOT)
    def w_read1(s,t,hh):
        c,kk=s//2,s%2; st_,off=slot_set(c)
        va=V_VA+2*st_+(1 if t==6 else 0)
        o=off+kk*7680+(32*t if t<6 else 0)
        a.e(f'ds_read_b64_tr_b16 {vr(V_WF+4*t+2*hh,2)}, v{va} offset:{o+960*hh}')
        return a.lgtok()
    def x_read1(s,nb):
        c,kk=s//2,s%2; st_,off=slot_set(c)
        a.e(f'ds_read_b128 {vr(V_XF+8*(s%2)+4*nb,4)}, v{V_XR+2*st_+kk} offset:{off+2048*nb}')
        return a.lgtok()
    for t in range(6): a.e(f'ds_read_b64 {vr(V_BRAW+2*t,2)}, v{T0+1} offset:{32*t}')
    a.e(f'ds_read_b64 {vr(V_BRAW+12,2)}, v{T0}')
    lg_b=a.lgtok()
    tw={}; tx={}
    for nb in range(2): tx[(0,nb)]=x_read1(0,nb)
    for t in range(3):
        for hh in range(2): tw[(0,t,hh)]=w_read1(0,t,hh)
    a.wait_lg(lg_b)
    for t in range(7):
        for d in range(2):
            raw=V_BRAW+2*t+d
            a.e(f'v_lshlrev_b32 v{V_BIAS+4*t+2*d}, 16, v{raw}')
            a.e(f'v_and_b32 v{V_BIAS+4*t+2*d+1}, 0xffff0000, v{raw}')
    for t in range(3,7):
        for hh in range(2): tw[(0,t,hh)]=w_read1(0,t,hh)
    for s in range(16):
        for t in range(7):
            need=max(tw[(s,t,1)],tx[(s,1)])
            n=a.lg-need
            if t%2==0 or t==1 or s==0 or True: a.e(f's_waitcnt lgkmcnt({min(n,15)})')
            for nb in range(2):
                acc=vr(V_ACC+28*nb+4*t,4)
                cc=acc if s>0 else vr(V_BIAS+4*t,4)
                a.e(f'v_mfma_f32_16x16x32_bf16 {acc}, {vr(V_WF+4*t,4)}, {vr(V_XF+8*(s%2)+4*nb,4)}, {cc}')
                if nb==0 and t==1 and s%2==1 and s<15:
                    if cfg.fine==2: stamp(a,cfg,32+2*(s//2))
                    if s==(7 if cfg.x.get('s1two',0) else 13): a.e('s_waitcnt vmcnt(0)')
                    a.e('s_barrier')
                    if cfg.fine==2: stamp(a,cfg,33+2*(s//2))
                ps,pt=(s+1,t-1) if t>=1 else (s,6)
                if (t>=1 and s<15) or (t==0 and 1<=s<=15 and (s,6,nb) not in tw):
                    tw[(ps,pt,nb)]=w_read1(ps,pt,nb)
                if t==2 and s<15: tx[(s+1,nb)]=x_read1(s+1,nb)
                if t==4 and nb==1 and s==cfg.x.get('rs_at',9): row_stores()
    a.e('s_barrier')
    stamp(a,cfg,4)
    V_E=V_WF; V_O=V_BIAS
    a.e(f's_mov_b32 s84, {fl(LOG2E)}'); a.e(f's_mov_b32 s85, {fl(LOG2E)}'); a.e(f's_mov_b32 s86, {fl(-2.0 if cfg.x.get("mish2") else 30.0)}')
    a.e(f'''s_mul_i32 s87, s7, 7
    s_add_u32 s87, s87, s48
    s_lshr_b32 s87, s87, 1
    s_lshl_b32 s87, s87, 12
    s_mul_i32 s88, s6, {2*RT_STRIDE}
    s_lshl_b32 s89, {wv}, 10
    s_add_u32 s88, s88, s89
    s_add_u32 s88, s88, {WS_ACT}
    s_add_u32 s88, s88, s87
    s_mov_b32 s89, {3*4096}
    s_cmp_eq_u32 s48, 0
    s_cselect_b32 s89, s89, {(-4096+512)&0xffffffff}
    s_add_u32 s89, s89, s88
    v_lshlrev_b32 v4, 3, v0''')
    G=4
    for nb in range(2):
        pairs=[(V_ACC+28*nb+4*t+2*d, V_O+14*nb+2*t+d) for t in range(7) for d in range(2)]
        for g0 in range(0,len(pairs),G):
            grp=pairs[g0:g0+G]
            Tq=lambda i: V_E+4*i
            if cfg.x.get('mish2'):
                for i,(h,o) in enumerate(grp): a.e(f'v_pk_mul_f32 {vr(Tq(i),2)}, {vr(h,2)}, s[84:85]')
                for i,(h,o) in enumerate(grp):
                    a.e(f'v_exp_f32 v{Tq(i)}, v{Tq(i)}'); a.e(f'v_exp_f32 v{Tq(i)+1}, v{Tq(i)+1}')
                for i,(h,o) in enumerate(grp): a.e(f'v_pk_add_f32 {vr(Tq(i)+2,2)}, {vr(Tq(i),2)}, 2.0 op_sel_hi:[1,0]')
                for i,(h,o) in enumerate(grp): a.e(f'v_pk_fma_f32 {vr(Tq(i),2)}, {vr(Tq(i),2)}, {vr(Tq(i)+2,2)}, 2.0 op_sel_hi:[1,1,0]')
                for i,(h,o) in enumerate(grp):
                    a.e(f'v_rcp_f32 v{Tq(i)}, v{Tq(i)}'); a.e(f'v_rcp_f32 v{Tq(i)+1}, v{Tq(i)+1}')
                for i,(h,o) in enumerate(grp): a.e(f'v_pk_fma_f32 {vr(Tq(i),2)}, {vr(Tq(i),2)}, s[86:87], 1.0 op_sel_hi:[1,0,0]')
                for i,(h,o) in enumerate(grp): a.e(f'v_pk_mul_f32 {vr(Tq(i),2)}, {vr(Tq(i),2)}, {vr(h,2)}')
            else:
                for i,(h,o) in enumerate(grp): a.e(f'v_pk_mul_f32 {vr(Tq(i),2)}, {vr(h,2)}, s[84:85]')
                for i,(h,o) in enumerate(grp):
                    a.e(f'v_min_f32 v{Tq(i)}, s86, v{Tq(i)}'); a.e(f'v_min_f32 v{Tq(i)+1}, s86, v{Tq(i)+1}')
                for i,(h,o) in enumerate(grp):
                    a.e(f'v_exp_f32 v{Tq(i)}, v{Tq(i)}'); a.e(f'v_exp_f32 v{Tq(i)+1}, v{Tq(i)+1}')
                for i,(h,o) in enumerate(grp): a.e(f'v_pk_add_f32 {vr(Tq(i)+2,2)}, {vr(Tq(i),2)}, 2.0 op_sel_hi:[1,0]')
                for i,(h,o) in enumerate(grp): a.e(f'v_pk_mul_f32 {vr(Tq(i),2)}, {vr(Tq(i),2)}, {vr(Tq(i)+2,2)}')
                for i,(h,o) in enumerate(grp): a.e(f'v_pk_add_f32 {vr(Tq(i)+2,2)}, {vr(Tq(i),2)}, 2.0 op_sel_hi:[1,0]')
                for i,(h,o) in enumerate(grp):
                    a.e(f'v_rcp_f32 v{Tq(i)+2}, v{Tq(i)+2}'); a.e(f'v_rcp_f32 v{Tq(i)+3}, v{Tq(i)+3}')
                for i,(h,o) in enumerate(grp): a.e(f'v_pk_mul_f32 {vr(Tq(i),2)}, {vr(Tq(i),2)}, {vr(Tq(i)+2,2)}')
                for i,(h,o) in enumerate(grp): a.e(f'v_pk_mul_f32 {vr(Tq(i),2)}, {vr(Tq(i),2)}, {vr(h,2)}')
            for i,(h,o) in enumerate(grp): a.e(f'v_cvt_pk_bf16_f32 v{o}, v{Tq(i)}, v{Tq(i)+1}')
            done=min(len(pairs),g0+G)
            if cfg.x.get('actil'):
                for pp in range(3):
                    if g0<4*(pp+1)<=done:
                        a.e(f'buffer_store_dwordx4 {vr(V_O+14*nb+4*pp,4)}, v{V_L16}, {srd(S_WS)}, s88 offen {cfg.f("stA")}')
                        a.e('s_add_u32 s88, s88, 4096')
                if done==14:
                    a.e(f'buffer_store_dwordx2 {vr(V_O+14*nb+12,2)}, v4, {srd(S_WS)}, s89 offen {cfg.f("stA")}')
        if nb==0 and cfg.x.get('actil'):
            a.e(f's_add_u32 s88, s88, {RT_STRIDE-3*4096}')
            a.e(f's_add_u32 s89, s89, {RT_STRIDE}')
    if not cfg.x.get('actil'):
        for nb in range(2):
            for pp in range(3):
                a.e(f'buffer_store_dwordx4 {vr(V_O+14*nb+4*pp,4)}, v{V_L16}, {srd(S_WS)}, s88 offen {cfg.f("stA")}')
                a.e('s_add_u32 s88, s88, 4096')
            a.e(f'buffer_store_dwordx2 {vr(V_O+14*nb+12,2)}, v4, {srd(S_WS)}, s89 offen {cfg.f("stA")}')
            if nb==0:
                a.e(f's_add_u32 s88, s88, {RT_STRIDE-3*4096}')
                a.e(f's_add_u32 s89, s89, {RT_STRIDE}')
    stamp(a,cfg,5)
    parts=p2_table_parts(a,cfg); npre=cfg.x.get('tabpre',4)
    for part in parts[:npre]: part()
    stamp(a,cfg,24)
    a.e('s_mov_b32 s93, 32'); poll_w0(a,S_DBG,'s93',1,0,1)
    a.e('s_waitcnt vmcnt(0)')
    a.e('s_barrier')
    stamp(a,cfg,7)
    p2_small_loads(a,cfg)
    tok_w=a.vmtok()
    for part in parts[npre:]: part()
    stamp(a,cfg,25)
    p2_compute(a,cfg,tok_w)
    tok_y=a.vmtok()
    stamp(a,cfg,8)
    m_g2_ids(a,cfg)
    T=5
    w2_dma_addr(a,V_W2D,T)
    a.e(f"""v_lshrrev_b32 v{T}, 2, v1
    v_lshl_add_u32 v{T+1}, v2, 2, v{T}
    v_lshlrev_b32 v{V_W2A}, 7, v{T+1}
    v_lshrrev_b32 v{T+1}, 1, v{T+1}
    v_and_b32 v{T+1}, 3, v{T+1}
    v_and_b32 v{T}, 3, v0
    v_lshl_add_u32 v{V_W2A}, v{T}, 3, v{V_W2A}
    v_add_u32 v{V_W2A}, s71, v{V_W2A}""")
    for c in (3,2,1,0):
        a.e(f'v_xor_b32 v{T}, {c}, v{T+1}')
        a.e(f'v_lshl_add_u32 v{V_W2A+c}, v{T}, 5, v{V_W2A}')
    stamp(a,cfg,9)
    if not cfg.x.get('ydefer'): a.e('s_waitcnt vmcnt(0)')
    a.e('s_barrier')
    stamp(a,cfg,10)
    m_gemm2(a,cfg,tok_y)
    stamp(a,cfg,13)
    stamps_flush(a,cfg)
    a.e(f's_branch {end}')
    p2_special(a,cfg)

def m_gemm2(a,cfg,tok_y):
    V_ACC=80; V_AF=144; D=8; V_G=72
    RB=lambda t: (8+16*(t%D)) if (t%D)<4 else (160+16*(t%D-4))
    toks={}; tokw={}
    def need(d,k):
        while k not in d: a.bg_pop()
    def a_read1(t,c,hh):
        a.e(f'ds_read_b64_tr_b16 {vr(V_AF+4*c+2*hh,2)}, v{V_W2A+c} offset:{(t%8)*4096+2048*hh}')
        return a.lgtok()
    def push_loads(t):
        b=RB(t)
        if t>=14:
            psi=t-14
            for u in range(4):
                a.bg_push([f's_add_u32 s79, s78, {(16*psi+u)*8192}',
                           f'buffer_load_dwordx4 {vr(b+4*u,4)}, v6, {srd(S_WS)}, s79 offen {cfg.f("ldY")}'],
                          (lambda t=t: toks.__setitem__(t,a.vmtok())) if u==3 else None)
            return
        sc=cfg.f('ldA')
        for q in range(4):
            if t in(3,10):
                l=[f'buffer_load_dwordx2 {vr(b+4*q,2)}, v4, {srd(S_WS)}, s69 offen offset:{1024*q} {sc}',
                   f'buffer_load_dwordx2 {vr(b+4*q+2,2)}, v4, {srd(S_WS)}, s69 offen offset:{1024*q+512} {sc}']
            else:
                l=[f'buffer_load_dwordx4 {vr(b+4*q,4)}, v{V_L16}, {srd(S_WS)}, s69 offen offset:{1024*q} {sc}']
            if q==3: l.append('s_add_u32 s69, s69, 4096')
            a.bg_push(l,(lambda t=t: toks.__setitem__(t,a.vmtok())) if q==3 else None)
    def push_w2(t):
        for v in range(4):
            a.bg_push(w2_group(t,v,V_W2D),(lambda t=t: tokw.__setitem__(t,a.vmtok())) if v==3 else None)
    a.e('v_lshlrev_b32 v4, 3, v0')
    npre=cfg.x.get('npre',4)
    for t in range(npre): push_loads(t)
    a.bg_flush()
    if cfg.x.get('ydefer'):
        for nb in range(2):
            a.e(f'buffer_store_dwordx4 {vr(P2["V_B"]+4*nb,4)}, v{V_L16}, {srd(S_WS)}, s62 offen offset:{1024*nb} {cfg.f("stY")}')
        tok_y=a.vmtok()
    nxt=npre
    a.e(f"""v_lshlrev_b32 v5, 4, v1
    v_lshlrev_b32 v6, 15, v2
    v_add_u32 v6, v6, v5
    v_add_u32 v7, s71, v{V_L16}
    s_lshl_b32 s78, {wv}, 19
    s_add_u32 s78, s78, s74
    s_add_u32 s78, s78, {WS_Y}""")
    V_AF2=224; ACC2=[40,56,160,176]; tg={}
    def g_read(psi,c):
        AFp=(V_AF2 if psi%2==0 else V_AF)
        a.e(f'ds_read_b128 {vr(AFp+4*c,4)}, v7 offset:{GSLOT[psi]*4096+c*1024}'); tg[(psi,c)]=a.lgtok()
    def swaps(t):
        b=RB(t)
        for (i,j) in[(0,1),(0,2),(0,3),(1,2),(1,3),(2,3)]:
            a.e(f'v_swap_b32 v{b+4*i+j}, v{b+4*j+i}')
    ta={}
    for c in range(4):
        for hh in range(2): ta[(0,c,hh)]=a_read1(0,c,hh)
    a.bg_set(cfg.x.get('g2r',2),mfma_weight=2)
    TS3=cfg.x.get('ts3',10)
    for t in range(18):
        if cfg.fine==1: stamp(a,cfg,32+t)
        if t<=14:
            need(toks,t); a.wait_vm(toks[t])
        if t+1 in range(8,14):
            need(tokw,t+1); a.wait_vm(tokw[t+1])
        k_=0
        while nxt<14 and nxt-D<t and k_<2 and t<14:
            if nxt-D==t-0 and False: break
            if nxt-D>=t: break
            push_loads(nxt); nxt+=1; k_+=1
        if 1<=t and t-1+8<14: push_w2(t-1+8)
        if t==TS3+1: push_loads(14); push_loads(15)
        if t==TS3+2: push_loads(16); push_loads(17)
        b=RB(t)
        if t<14:
            for c in range(4):
                n=a.lg-ta[(t,c,1)]
                a.e(f's_waitcnt lgkmcnt({min(n,15)})')
                A=vr(V_AF+4*c,4)
                for q in range(4):
                    d=vr(V_ACC+16*q+4*c,4)
                    r=a.bg_rate
                    if q<2: a.bg_rate=0
                    a.e(f'v_mfma_f32_16x16x32_bf16 {d}, {A}, {vr(b+4*q,4)}, {d if t else 0}')
                    if q<2:
                        if c>=1 and t<13: ta[(t+1,c-1,q)]=a_read1(t+1,c-1,q)
                        if c==0 and t>=1: ta[(t,3,q)]=a_read1(t,3,q)
                    a.bg_rate=r
        else:
            psi=t-14; AFp=(V_AF2 if psi%2==0 else V_AF)
            if psi==0: swaps(14)
            for c in range(4):
                a.e(f's_waitcnt lgkmcnt({min(a.lg-tg[(psi,c)],15)})')
                for q in range(4):
                    d=vr(ACC2[q]+4*c,4)
                    a.e(f'v_mfma_f32_16x16x32_bf16 {d}, {vr(AFp+4*c,4)}, {vr(b+4*q,4)}, {d if psi else 0}')
                    if psi<3 and c==0 and q==0:
                        for c2 in range(4): g_read(psi+1,c2)
                    if psi<3 and c==1 and q==0:
                        need(toks,t+1); a.wait_vm(toks[t+1]); swaps(t+1)
        if cfg.x.get('ydefer') and t==cfg.x['ydefer']:
            a.wait_vm(tok_y); a.e('s_barrier')
        if cfg.x.get('fs3') and t==TS3-cfg.x['fs3']: a.e('s_barrier')
        if t==TS3:
            if not cfg.x.get('fs3'):
                a.bg_flush()
                a.e(f's_mov_b32 s93, {WS_CNT+16*128}')
                poll_w0(a,S_WS,'s93',NS3,128,256//NS3)
            a.e('s_barrier')
            a.e(f's_add_u32 s75, s74, {WS_G}')
            a.e(f'buffer_load_dwordx4 {vr(V_G,4)}, v5, {srd(S_WS)}, s75 offen {cfg.f("ldW")}')
            tok_g=a.vmtok()
        if t==13:
            a.e('s_barrier')
            for c in range(4): g_read(0,c)
            stamp(a,cfg,11)
    a.bg_flush(); a.bg_set(0)
    a.need_vm(tok_g)
    for q in range(4): a.e(f'v_sub_f32 v{V_G+q}, 1.0, v{V_G+q}')
    for q in range(4):
        for h in range(8):
            a.e(f'v_pk_fma_f32 {vr(V_ACC+16*q+2*h,2)}, {vr(V_ACC+16*q+2*h,2)}, {vr(V_G+(q&~1),2)}, {vr(ACC2[q]+2*h,2)} op_sel:[0,{q&1},0] op_sel_hi:[1,{q&1},1]')
    stamp(a,cfg,12)
    a.e(f'v_add_u32 v7, s71, v{V_L16}')
    for w in range(4):
        a.e(f's_cmp_lg_u32 {wv}, {w}')
        a.e(f's_cbranch_scc1 L_k3_w{w}')
        a.cond_begin()
        slot=0
        for q in range(4):
            if q==w: continue
            for c in range(4):
                a.e(f'ds_write_b128 v7, {vr(V_ACC+16*q+4*c,4)} offset:{slot*4096+c*1024}')
            slot+=1
        if w!=0:
            for h in range(8): a.e(f'v_pk_mov_b32 {vr(V_ACC+2*h,2)}, {vr(V_ACC+16*w+2*h,2)}, {vr(V_ACC+16*w+2*h,2)} op_sel:[0,1]')
        a.cond_end()
        a.e(f'L_k3_w{w}:')
    a.e('s_waitcnt lgkmcnt(0)'); a.e('s_barrier')
    V_RD=160
    for k in range(1,4):
        a.e(f"""s_add_u32 s76, {wv}, {k}
        s_and_b32 s76, s76, 3
        s_lshl_b32 s77, s76, 15
        s_cmp_lt_u32 {wv}, s76
        s_cselect_b32 s79, 0, 1
        s_sub_u32 s79, {wv}, s79
        s_lshl_b32 s79, s79, 12
        s_add_u32 s77, s77, s79
        v_add_u32 v7, s77, v{V_L16}""")
        for c in range(4): a.e(f'ds_read_b128 {vr(V_RD+16*(k-1)+4*c,4)}, v7 offset:{c*1024}')
    a.e(f"""v_lshlrev_b32 v5, 10, v1
    v_lshl_add_u32 v5, v2, 3, v5
    s_lshl_b32 s76, s72, 17
    s_lshl_b32 s77, {wv}, 15
    s_add_u32 s76, s76, s77
    s_lshl_b32 s77, s73, 14
    s_add_u32 s76, s76, s77
    s_lshl_b32 s77, s68, 7
    s_add_u32 s76, s76, s77""")
    for k in range(3):
        a.e(f's_waitcnt lgkmcnt({8-4*k})')
        for h in range(8): a.e(f'v_pk_add_f32 {vr(V_ACC+2*h,2)}, {vr(V_ACC+2*h,2)}, {vr(V_RD+16*k+2*h,2)}')
    V_O=8
    for c in range(4):
        a.e(f'v_cvt_pk_bf16_f32 v{V_O+2*c}, v{V_ACC+4*c}, v{V_ACC+4*c+1}')
        a.e(f'v_cvt_pk_bf16_f32 v{V_O+2*c+1}, v{V_ACC+4*c+2}, v{V_ACC+4*c+3}')
        a.e(f'buffer_store_dwordx2 {vr(V_O+2*c,2)}, v5, {srd(S_OUT)}, s76 offen offset:{32*c} {str(cfg.x.get("outf","")).replace("_"," ")}')

P2=dict(V_U=8,V_W=40,V_GT=48,V_Q=56,T0=64,V_F64R=80,V_F64I=96,V_F32R=112,V_F32I=128,V_T1C=144,V_T1S=152,V_T3C=160,V_T3S=168,V_DR=176,V_DI=184,V_B=192)
V_FW2D=246
def f_stream(a,cfg,end):
    a.e('L_F:')
    a.e('s_mov_b32 s90, 1')
    if cfg.x.get('fprio'): a.e(f's_setprio {cfg.x["fprio"]}')
    a.e(f'''s_lshr_b32 s49, s2, 5
    s_and_b32 s50, s2, 31
    s_lshl_b32 s51, s6, 17
    s_lshl_b32 s56, {wv}, 13
    s_add_u32 s51, s51, s56
    s_mul_i32 s52, s7, 224
    s_mul_i32 s56, {wv}, 14336
    s_add_u32 s52, s52, s56
    s_lshl_b32 s53, {wv}, 10
    s_mul_i32 s54, {wv}, 960
    s_add_u32 s54, s54, 16384''')
    T=6; V_XD=4; V_WD=5
    a.e(f'''v_lshrrev_b32 v{T}, 3, v0
    v_lshlrev_b32 v{V_XD}, 10, v{T}
    v_lshrrev_b32 v{T}, 1, v{T}
    s_and_b32 s56, {wv}, 1
    s_lshl_b32 s56, s56, 2
    v_add_u32 v{T}, s56, v{T}
    v_and_b32 v{T+1}, 7, v0
    v_xor_b32 v{T}, v{T}, v{T+1}
    v_lshl_add_u32 v{V_XD}, v{T}, 4, v{V_XD}
    v_mul_u32_u24 v{T}, 4682, v0
    v_lshrrev_b32 v{T}, 16, v{T}
    v_mul_u32_u24 v{V_WD}, 3584, v{T}
    v_mul_u32_u24 v{T}, 14, v{T}
    v_sub_u32 v{T}, v0, v{T}
    v_lshl_add_u32 v{V_WD}, v{T}, 4, v{V_WD}
    v_mov_b32 v{V_LC}, {LC_BASE}''')
    a.e(f'''s_lshl_b32 s56, s49, 18
    s_lshl_b32 s57, s50, 10
    s_add_u32 s56, s56, s57
    s_lshl_b32 s57, {wv}, 16
    s_add_u32 s56, s56, s57
    s_add_u32 s58, s56, 32768
    s_mul_i32 s57, {wv}, {2*XA_PITCH}
    s_add_u32 s57, s57, {XA_BASE}''')
    a.e('s_waitcnt lgkmcnt(0)')
    stamp(a,cfg,26)
    a.e(f's_cmp_lg_u32 {wv}, 0'); a.e('s_cbranch_scc1 L_a_r0'); a.cond_begin()
    a.e(f's_mov_b32 m0, {GW_LDS}'); a.e('s_nop 0')
    a.e(f'buffer_load_dwordx4 v{V_L16}, {srd(S_GW)}, 0 offen lds')
    a.cond_end(); a.e('L_a_r0:')
    a.e(f's_cmp_lg_u32 {wv}, 1'); a.e('s_cbranch_scc1 L_a_r1'); a.cond_begin()
    a.e(f's_mul_i32 s64, s7, 224'); a.e(f's_mov_b32 m0, {B1_LDS}'); a.e('s_mov_b64 exec, 0x3fff')
    a.e(f'buffer_load_dwordx4 v{V_L16}, {srd(S_B1)}, s64 offen lds')
    a.e('s_mov_b64 exec, -1')
    a.cond_end(); a.e('L_a_r1:')
    tok_c={}
    def chunk_groups(c):
        gs=[]
        for u in range(4):
            gs.append(([f's_add_u32 m0, s53, {SB(c)+u*4096}', f's_add_u32 s55, s51, {u*32768+c*128}',
                        f'buffer_load_dwordx4 v{V_XD}, {srd(S_X)}, s55 offen lds'],None))
        for u in range(4):
            cb=(lambda c=c: tok_c.__setitem__(c,a.vmtok())) if u==3 else None
            gs.append(([f's_add_u32 m0, s54, {SB(c)+u*3840}', f's_add_u32 s55, s52, {u*57344+c*229376}',
                        's_mov_b32 exec_hi, 0x00ffffff',
                        f'buffer_load_dwordx4 v{V_WD}, {srd(S_W1)}, s55 offen lds',
                        's_mov_b32 exec_hi, -1'],cb))
        return gs
    def push_chunk(c):
        for g_ in chunk_groups(c): a.bg_push(*g_)
    def wait_role(tok,e3,e2):
        n=a.vm-tok; lab=f'L_wr{len(a.items)}'
        a.e(f's_cmp_eq_u32 {wv}, 3'); a.e(f's_cbranch_scc1 {lab}_3')
        a.e('s_cmp_eq_u32 s66, 0'); a.e(f's_cbranch_scc1 {lab}_2')
        a.e(f's_waitcnt vmcnt({n})'); a.e(f's_branch {lab}_e')
        a.e(f'{lab}_3:'); a.e(f's_waitcnt vmcnt({min(n+e3,62)})'); a.e(f's_branch {lab}_e')
        a.e(f'{lab}_2:'); a.e(f's_waitcnt vmcnt({min(n+e2,62)})')
        a.e(f'{lab}_e:')
    def chunk_now(c):
        if cfg.fine==3: stamp(a,cfg,48+2*c%16 if False else 40+c)
        push_chunk(c); a.bg_flush()
        if cfg.fine==3: stamp(a,cfg,50+c)
    if not cfg.x.get('xaearly'):
        a.e(f'''s_mov_b32 m0, s57
        s_add_u32 s57, s57, {XA_PITCH}
        buffer_load_dwordx4 v{V_L16}, {srd(S_X)}, s56 offen lds
        s_mov_b32 m0, s57
        s_nop 0
        buffer_load_dwordx4 v{V_L16}, {srd(S_X)}, s58 offen lds''')
    tok_xa=a.vmtok()
    st={'roles':None,'wt':None}
    V={}
    def do_roles(c):
        st['roles']=c
        a.e('''s_lshr_b32 s59, s50, 3
        s_lshr_b32 s60, s50, 2
        s_and_b32 s60, s60, 1
        s_and_b32 s61, s50, 3
        s_lshl_b32 s62, s59, 4
        s_lshl_b32 s63, s60, 10
        s_add_u32 s62, s62, s63
        s_lshl_b32 s63, s61, 8
        s_add_u32 s62, s62, s63
        s_lshl_b32 s63, s59, 11
        s_lshl_b32 s64, s60, 10
        s_add_u32 s63, s63, s64
        s_lshl_b32 s64, s61, 8
        s_add_u32 s63, s63, s64''')
        V_WR=8; V_WI=24; V_WO=7
        a.e(f's_cmp_lg_u32 {wv}, {9 if cfg.x.get("x_norole") else 3}'); a.e('s_cbranch_scc1 L_a_r3'); a.cond_begin()
        a.e(f'''v_lshrrev_b32 v{V_WO}, 2, v0
        v_mul_u32_u24 v{V_WO}, 514, v{V_WO}
        v_and_b32 v{T}, 3, v0
        v_lshl_add_u32 v{V_WO}, v{T}, 4, v{V_WO}
        s_mul_i32 s64, s62, 514
        s_lshl_b32 s65, s49, 6
        s_add_u32 s64, s64, s65''')
        for r in range(4):
            a.e(f'buffer_load_dwordx4 {vr(V_WR+4*r,4)}, v{V_WO}, {srd(S_WR)}, s64 offen')
            a.e(f'buffer_load_dwordx4 {vr(V_WI+4*r,4)}, v{V_WO}, {srd(S_WI)}, s64 offen')
            if r<3: a.e(f's_add_u32 s64, s64, {64*514}')
        a.cond_end(); a.e('L_a_r3:')
        V_SP=40; V_J=48; V_JR=49
        a.e(f'''s_lshl_b32 s65, s49, 2
        s_xor_b32 s66, {wv}, 2
        s_or_b32 s66, s66, s65''')
        a.e('s_cmp_lg_u32 s66, 0'); a.e('s_cbranch_scc1 L_a_r2'); a.cond_begin()
        a.e(f'''v_lshlrev_b32 v{V_J}, 6, v2
        v_add_u32 v{V_J}, v{V_J}, v1
        v_add_u32 v{V_J}, s62, v{V_J}
        v_sub_u32 v{V_JR}, 2048, v{V_J}
        v_and_b32 v{V_JR}, 2047, v{V_JR}
        v_mul_u32_u24 v{V_J}, 514, v{V_J}
        v_mul_u32_u24 v{V_JR}, 514, v{V_JR}''')
        for n,(S,vv,off) in enumerate([(S_WR,V_J,0),(S_WR,V_J,512),(S_WR,V_JR,0),(S_WR,V_JR,512),(S_WI,V_J,0),(S_WI,V_J,512),(S_WI,V_JR,0),(S_WI,V_JR,512)]):
            a.e(f'buffer_load_ushort v{V_SP+n}, v{vv}, {srd(S)}, 0 offen offset:{off}')
        a.cond_end(); a.e('L_a_r2:')
        tok_role=a.vmtok()
        V.update(V_WR=V_WR,V_WI=V_WI,V_SP=V_SP,tok_role=tok_role)
    def do_wt(c):
        st['wt']=c
        T0=92; V_B1S=68; V_WR=V['V_WR']; V_WI=V['V_WI']; V_SP=V['V_SP']; tok_role=V['tok_role']
        a.e(f's_cmp_lg_u32 {wv}, {9 if cfg.x.get("x_norole") else 3}'); a.e('s_cbranch_scc1 L_a_w3')
        a.wait_vm(tok_role); a.cond_begin()
        V_WP=188
        a.e('s_mov_b32 s78, 0x05040100'); a.e('s_mov_b32 s79, 0x07060302')
        for kk in range(8):
            for r in range(4):
                a.e(f'v_perm_b32 v{V_WP+4*kk+r}, v{V_WI+4*r+(kk>>1)}, v{V_WR+4*r+(kk>>1)}, s{78+(kk&1)}')
        a.e(f'''v_and_b32 v{T0+4}, 3, v0
        v_lshlrev_b32 v{T0+5}, 16, v{T0+4}
        v_lshrrev_b32 v{T0+6}, 2, v0
        v_lshl_add_u32 v{T0+5}, v{T0+6}, 4, v{T0+5}
        s_lshl_b32 s76, s49, 2
        v_add_u32 v{T0+4}, s76, v{T0+4}
        v_cmp_eq_u32 vcc, 0, v{T0+4}
        v_mov_b32 v{T0+6}, {OOB}
        v_cndmask_b32 v{T0+6}, v{T0+5}, v{T0+6}, vcc
        s_lshl_b32 s76, s49, 18
        s_add_u32 s76, s76, s63
        s_add_u32 s76, s76, {WS_WT}''')
        for kk in range(8):
            a.e(f'buffer_store_dwordx4 {vr(V_WP+4*kk,4)}, v{T0+6 if kk==0 else T0+5}, {srd(S_WS)}, s76 offen {cfg.f("stW")}')
            if kk<7: a.e('s_add_u32 s76, s76, 8192')
        a.cond_end(); a.e('L_a_w3:')
        a.e('s_cmp_lg_u32 s66, 0'); a.e('s_cbranch_scc1 L_a_w2')
        a.wait_vm(tok_role); a.cond_begin()
        for n in range(8): a.e(f'v_lshlrev_b32 v{V_SP+n}, 16, v{V_SP+n}')
        s=V_SP; t=V_B1S
        a.e(f'''v_add_f32 v{t}, v{s}, v{s+2}
        v_add_f32 v{t+1}, v{s+1}, v{s+3}
        v_sub_f32 v{t+2}, v{s+4}, v{s+6}
        v_sub_f32 v{t+3}, v{s+5}, v{s+7}
        v_add_f32 v{t+4}, v{t}, v{t+1}
        v_add_f32 v{t+5}, v{t+2}, v{t+3}
        v_sub_f32 v{t+6}, v{t}, v{t+1}
        v_sub_f32 v{t+7}, v{t+2}, v{t+3}
        v_mul_f32 v{t+4}, {fl(0.25)}, v{t+4}
        v_mul_f32 v{t+5}, {fl(0.25)}, v{t+5}
        v_mul_f32 v{t+6}, {fl(0.25)}, v{t+6}
        v_mul_f32 v{t+7}, {fl(0.25)}, v{t+7}
        v_cvt_pk_bf16_f32 v{t}, v{t+4}, v{t+5}
        v_cvt_pk_bf16_f32 v{t+1}, v{t+6}, v{t+7}
        v_lshlrev_b32 v{t+2}, 4, v1
        v_lshl_add_u32 v{t+2}, v2, 2, v{t+2}
        s_add_u32 s77, s63, {WS_QT}
        s_add_u32 s76, s63, {WS_WT}
        buffer_store_dword v{t}, v{t+2}, {srd(S_WS)}, s76 offen {cfg.f("stW")}
        buffer_store_dword v{t+1}, v{t+2}, {srd(S_WS)}, s77 offen {cfg.f("stW")}''')
        a.cond_end(); a.e('L_a_w2:')
    RL=cfg.x.get('rl_after',5); WT=cfg.x.get('wt_after',7)
    def chunk_plus(c):
        chunk_now(c)
        if RL==c: do_roles(c)
        if WT==c: do_wt(c)
    def wait_chunk(c):
        e3=e2=0
        if st['roles'] is not None and st['roles']>=c: e3+=8; e2+=8
        if st['wt'] is not None and st['wt']>=c: e3+=8; e2+=2
        if e3==0: a.wait_vm(tok_c[c])
        else: wait_role(tok_c[c],e3,e2)
    a.e(f'''s_lshl_b32 s65, s49, 2
    s_xor_b32 s66, {wv}, 2
    s_or_b32 s66, s66, s65''')
    chunk_plus(0)
    chunk_plus(1)
    if cfg.x.get('fprio'): a.e('s_setprio 0')
    stamp(a,cfg,0)
    a.wait_vm(tok_xa); a.e('s_barrier')
    stamp(a,cfg,1)
    chunk_plus(2)
    wait_chunk(0); a.e('s_barrier')
    chunk_plus(3)
    wait_chunk(1); a.e('s_barrier')
    chunk_plus(4)
    wait_chunk(2); a.e('s_barrier')
    chunk_plus(5)
    wait_chunk(3); a.e('s_barrier')
    chunk_plus(6)
    wait_chunk(4); a.e('s_barrier')
    chunk_plus(7)
    wait_chunk(5); a.e('s_barrier')
    m_g2_ids(a,cfg)
    w2_dma_addr(a,V_FW2D,244)
    wait_chunk(6); a.e('s_barrier')
    a.e('s_waitcnt vmcnt(0)'); a.e('s_barrier')
    a.e('s_and_b32 s92, s5, 3'); a.e('s_lshl_b32 s92, s92, 6')
    ssignal(a,S_DBG,'s92')
    a.e('s_barrier')
    stamp(a,cfg,4)
    def w2slots(lo,hi):
        for t in range(lo,hi):
            for v in range(4): a.bg_push(w2_group(t,v,V_FW2D))
        a.bg_flush()
    w2slots(0,cfg.x.get('w2pre',4))
    stamp(a,cfg,5)
    a.e(f's_cmp_lg_u32 {wv}, 0'); a.e('s_cbranch_scc1 L_f_s1'); a.cond_begin()
    if cfg.x.get('s1drain',1): a.e('s_waitcnt vmcnt(0)')
    a.e('s_mov_b32 s93, 0')
    spin_global(a,S_DBG,'s93',4,64,64)
    p2_t_loads(a,cfg)

    a.cond_end(); a.e('L_f_s1:')
    stamp(a,cfg,6)
    a.e('s_waitcnt vmcnt(0)'); a.e('s_barrier')
    a.e(f's_lshl_b32 s92, s6, 7'); a.e(f's_add_u32 s92, s92, {WS_CNT}')
    ssignal(a,S_WS,'s92')
    stamp(a,cfg,7)
    w2slots(cfg.x.get('w2pre',4),8)
    a.e('s_waitcnt vmcnt(0)'); a.e('s_barrier')
    a.e('s_lshl_b32 s56, s4, 5'); a.e('s_add_u32 s56, s56, s5')
    a.e('s_cmp_lg_u32 s56, 0'); a.e('s_cbranch_scc1 L_f_nospec'); a.cond_begin()
    a.e('s_barrier')
    a.cond_end(); a.e('L_f_nospec:')
    a.e(f's_lshl_b32 s93, s72, 7'); a.e(f's_add_u32 s93, s93, {WS_CNT}')
    poll_w0(a,S_WS,'s93',1,0,16)
    a.e('s_barrier')
    if cfg.x.get('ydefer'): a.e('s_barrier')
    a.e(f's_and_b32 s92, s2, {NS3-1}'); a.e('s_lshl_b32 s92, s92, 7'); a.e(f's_add_u32 s92, s92, {WS_CNT+16*128}')
    ssignal(a,S_WS,'s92')
    T0=80; TA=92
    a.e(f"""s_lshl_b32 s75, s68, 6
    v_add_u32 v{T0}, s75, v1
    v_cvt_f32_u32 v{T0}, v{T0}
    s_lshl_b32 s75, {wv}, 6
    v_lshlrev_b32 v{T0+1}, 2, v2
    v_add_u32 v{T0+1}, s75, v{T0+1}
    v_cvt_f32_u32 v{T0+1}, v{T0+1}""")
    for c in range(4):
        a.e(f'v_add_f32 v{T0+2+c}, {fl(16*c)}, v{T0}' if c else f'v_mov_b32 v{T0+2}, v{T0}')
        a.e(f'v_mul_f32 v{T0+2+c}, {fl(1/512)}, v{T0+2+c}')
        a.e(f'v_mul_f32 v{T0+6+c}, v{T0+1}, v{T0+2+c}')
    def pk(d): return lambda c,s: a.e(f'v_cvt_pk_bf16_f32 v{d}, v{c}, v{s}')
    angles(a,[(T0+2+c,T0+6+c,16*psi+u,(None,None,pk(V_GF+16*psi+4*c+u)),False) for (psi,c,u) in G_ITEMS],TA)
    a.e(f"""s_cmp_eq_u32 {wv}, 0
    s_cselect_b32 s76, 0xffff, 0
    s_mov_b32 s77, 0
    v_mov_b32 v{T0}, {hex(0xBF003F00)}
    v_and_b32 v{T0+1}, 1, v1
    v_lshlrev_b32 v{T0+1}, 31, v{T0+1}
    v_xor_b32 v{T0}, v{T0}, v{T0+1}""")
    for c in range(4): a.e(f'v_cndmask_b32 v{V_GF+4*c}, v{V_GF+4*c}, v{T0}, s[76:77]')
    a.e(f'v_add_u32 v7, s71, v{V_L16}')
    if cfg.x.get('fs3'):
        a.e('s_barrier')
        a.e(f's_mov_b32 s93, {WS_CNT+16*128}')
        poll_w0(a,S_WS,'s93',NS3,128,256//NS3)
    a.e('s_barrier')
    for psi in range(4):
        for c in range(4):
            a.e(f'ds_write_b128 v7, {vr(V_GF+16*psi+4*c,4)} offset:{GSLOT[psi]*4096+c*1024}')
    a.e('s_waitcnt lgkmcnt(0)'); a.e('s_barrier')
    stamps_flush(a,cfg)
    a.e(f's_branch {end}')

def p2_t_loads(a,cfg):
    T0=64
    a.e(f'''s_lshl_b32 s56, s4, 5
    s_add_u32 s56, s56, s5
    v_lshrrev_b32 v{T0}, 5, v0
    v_lshlrev_b32 v{T0}, 18, v{T0}
    v_bfe_u32 v{T0+1}, v0, 1, 4
    v_lshl_add_u32 v{T0}, v{T0+1}, 13, v{T0}
    v_and_b32 v{T0+1}, 1, v0
    v_lshl_add_u32 v{T0}, v{T0+1}, 4, v{T0}
    s_lshl_b32 s57, s56, 5
    s_add_u32 s57, s57, {WS_T}''')
    for ks in range(4):
        for mb in range(2):
            a.e(f's_mov_b32 m0, {TB_BASE+2048*ks+1024*mb}')
            a.e(f's_add_u32 s58, s57, {ks*524288+mb*131072}')
            a.e(f'buffer_load_dwordx4 v{T0}, {srd(S_WS)}, s58 offen {cfg.f("ldT")} lds')
    a.e(f's_lshl_b32 s57, s56, 13'); a.e(f's_add_u32 s57, s57, {WS_WT}')
    for j in range(8):
        a.e(f's_mov_b32 m0, {WB_BASE+1024*j}')
        a.e(f's_add_u32 s58, s57, {1024*j}')
        a.e(f'buffer_load_dwordx4 v{V_L16}, {srd(S_WS)}, s58 offen {cfg.f("ldW")} lds')

def p2_small_loads(a,cfg):
    V_W,V_GT,V_Q,T0=P2['V_W'],P2['V_GT'],P2['V_Q'],P2['T0']
    a.e(f'''s_lshl_b32 s56, s4, 5
    s_add_u32 s56, s56, s5
    s_lshl_b32 s60, s56, 13
    s_lshl_b32 s61, {wv}, 11
    s_add_u32 s60, s60, s61
    s_add_u32 s62, s60, {WS_WT}
    s_add_u32 s63, s61, {WS_G}
    s_add_u32 s64, s61, {WS_QT}''')
    for nb in range(2): a.e(f'buffer_load_dwordx4 {vr(V_GT+4*nb,4)}, v{V_L16}, {srd(S_WS)}, s63 offen offset:{1024*nb} {cfg.f("ldW")}')
    a.e(f'''s_cmp_eq_u32 s56, 0
    s_cselect_b32 s65, 0, {OOB}
    v_add_u32 v{T0+2}, s65, v{V_L16}''')
    for eh in range(2): a.e(f'buffer_load_dwordx4 {vr(V_Q+4*eh,4)}, v{T0+2}, {srd(S_WS)}, s64 offen offset:{1024*eh} {cfg.f("ldW")}')

def p2_table_parts(a,cfg):
    p=P2; T0=232; TA=200
    def pk(dr,di):
        def f(c,s):
            a.e(f'v_cvt_pk_bf16_f32 v{dr}, v{c}, v{s}')
            a.e(f'v_cvt_pk_bf16_f32 v{di}, -v{s}, v{c}')
        return f
    def part0():
        a.e(f'''s_lshl_b32 s83, {wv}, 4
        v_add_u32 v{T0}, s83, v1
        v_cvt_f32_u32 v{T0}, v{T0}
        v_lshlrev_b32 v{T0+2}, 2, v2
        v_cvt_f32_u32 v{T0+2}, v{T0+2}
        v_mul_f32 v{T0+1}, {fl(1/64)}, v{T0}
        v_mul_f32 v{T0+3}, v{T0+2}, v{T0+1}''')
        angles(a,[(T0+1,T0+3,16*ks+u,(None,None,pk(p['V_F64R']+4*ks+u,p['V_F64I']+4*ks+u)),False) for ks in range(3) for u in range(4)],TA)
    def part1():
        angles(a,[(T0+1,T0+3,16*ks+u,(None,None,pk(p['V_F64R']+4*ks+u,p['V_F64I']+4*ks+u)),False) for ks in range(3,4) for u in range(4)],TA)
        a.e(f'''v_mul_f32 v{T0+1}, {fl(1/2048)}, v{T0}
        v_mul_f32 v{T0+3}, v{T0+2}, v{T0+1}''')
        angles(a,[(T0+1,T0+3,16*mb+r,(p['V_T1C']+4*mb+r,p['V_T1S']+4*mb+r,None),True) for mb in range(2) for r in range(4)],TA)
    def part2():
        a.e(f'v_cvt_f32_u32 v{T0+7}, v1')
        for eh in range(2):
            a.e(f'''v_add_f32 v{T0+1}, {fl(16*eh)}, v{T0+7}
            v_mul_f32 v{T0+1}, {fl(1/32)}, v{T0+1}
            v_mul_f32 v{T0+3}, v{T0+2}, v{T0+1}''')
            angles(a,[(T0+1,T0+3,16*mb+u,(None,None,pk(p['V_F32R']+8*eh+4*mb+u,p['V_F32I']+8*eh+4*mb+u)),False) for mb in range(2) for u in range(4)],TA)
    def part3():
        a.e(f'''v_cvt_f32_u32 v{T0}, s83
        v_add_f32 v{T0+2}, v{T0}, v{T0+2}''')
        for nb in range(2):
            a.e(f'''v_add_f32 v{T0+1}, {fl(16*nb)}, v{T0+7}
            v_mul_f32 v{T0+1}, {fl(1/2048)}, v{T0+1}
            v_mul_f32 v{T0+3}, v{T0+2}, v{T0+1}''')
            angles(a,[(T0+1,T0+3,r,(p['V_T3C']+4*nb+r,p['V_T3S']+4*nb+r,None),True) for r in range(4)],TA)
    return [part0,part1,part2,part3]

def p2_compute(a,cfg,tok_w):
    p=P2
    V_U,V_W,V_GT,T0=p['V_U'],p['V_W'],p['V_GT'],p['T0']
    V_F64R,V_F64I,V_F32R,V_F32I=p['V_F64R'],p['V_F64I'],p['V_F32R'],p['V_F32I']
    V_T1C,V_T1S,V_T3C,V_T3S=p['V_T1C'],p['V_T1S'],p['V_T3C'],p['V_T3S']
    V_DR,V_DI,V_B=p['V_DR'],p['V_DI'],p['V_B']; TT=200
    a.e(f'''v_lshrrev_b32 v{T0+4}, 1, v2
    v_lshlrev_b32 v{T0+4}, 5, v{T0+4}
    v_lshl_add_u32 v{T0+4}, v1, 1, v{T0+4}
    v_and_b32 v{T0+5}, 1, v2
    v_add_u32 v{T0+4}, v{T0+4}, v{T0+5}
    v_lshlrev_b32 v{T0+4}, 4, v{T0+4}
    v_add_u32 v{T0+4}, {TB_BASE}, v{T0+4}''')
    for ks in range(4):
        for mb in range(2):
            a.e(f'ds_read_b128 {vr(V_U+16*mb+4*ks,4)}, v{T0+4} offset:{2048*ks+1024*mb}')
    V_WR=216; V_WI=224
    a.e(f's_lshl_b32 s65, {wv}, 11'); a.e(f's_add_u32 s65, s65, {WB_BASE}'); a.e(f'v_add_u32 v{T0+6}, s65, v{V_L16}')
    for eh in range(2): a.e(f'ds_read_b128 {vr(V_W+4*eh,4)}, v{T0+6} offset:{1024*eh}')
    for ks in range(4):
        a.e(f's_waitcnt lgkmcnt({8-2*ks})')
        for mb in range(2):
            A=vr(V_U+16*mb+4*ks,4)
            for (D,Fm) in((V_DR,V_F64R),(V_DI,V_F64I)):
                d=vr(D+4*mb,4)
                a.e(f'v_mfma_f32_16x16x32_bf16 {d}, {A}, {vr(Fm+4*ks,4)}, {d if ks else 0}')
    a.e('s_waitcnt lgkmcnt(0)')
    for e in range(8):
        a.e(f'v_lshlrev_b32 v{V_WR+e}, 16, v{V_W+e}')
        a.e(f'v_and_b32 v{V_WI+e}, 0xffff0000, v{V_W+e}')
    for mb in range(2): cmul_pack(a,V_DR+4*mb,V_DI+4*mb,V_T1C+4*mb,V_T1S+4*mb,V_B+4*mb,TT)
    for mb in range(2):
        for eh in range(2):
            for (D,Fm) in((V_DR,V_F32R),(V_DI,V_F32I)):
                d=vr(D+4*eh,4)
                a.e(f'v_mfma_f32_16x16x32_bf16 {d}, {vr(Fm+8*eh+4*mb,4)}, {vr(V_B+4*mb,4)}, {d if mb else 0}')
    a.e(f'''s_lshl_b32 s65, {wv}, 11
    s_add_u32 s65, s65, {XB_BASE}
    v_add_u32 v{T0+4}, s65, v{V_L16}
    v_add_u32 v{T0+5}, {XB_BASE}, v{V_L16}''')
    a.e('s_cmp_lg_u32 s56, 0')
    a.e('s_cbranch_scc0 L_p2_special')
    for eh in range(2): cmul_pack(a,V_DR+4*eh,V_DI+4*eh,V_WR+4*eh,V_WI+4*eh,V_B+4*eh,TT,negim=True)
    a.e('L_p2_join:')
    for ks in range(2):
        for nb in range(2):
            for (D,Fm) in((V_DR,V_F32R),(V_DI,V_F32I)):
                d=vr(D+4*nb,4)
                a.e(f'v_mfma_f32_16x16x32_bf16 {d}, {vr(V_B+4*ks,4)}, {vr(Fm+8*nb+4*ks,4)}, {d if ks else 0}')
    for nb in range(2):
        cmul_pack(a,V_DR+4*nb,V_DI+4*nb,V_T3C+4*nb,V_T3S+4*nb,V_B+4*nb,TT)
        a.e(f'ds_write_b128 v{T0+4}, {vr(V_B+4*nb,4)} offset:{1024*nb}')
    a.e('s_waitcnt lgkmcnt(0)')
    a.e('s_barrier')
    V_X=V_U
    for ks in range(4):
        for nb in range(2):
            a.e(f'ds_read_b128 {vr(V_X+8*ks+4*nb,4)}, v{T0+5} offset:{2048*ks+1024*nb}')
    for ks in range(4):
        a.e(f's_waitcnt lgkmcnt({6-2*ks})')
        for nb in range(2):
            for (D,Fm) in((V_DR,V_F64R),(V_DI,V_F64I)):
                d=vr(D+4*nb,4)
                a.e(f'v_mfma_f32_16x16x32_bf16 {d}, {vr(Fm+4*ks,4)}, {vr(V_X+8*ks+4*nb,4)}, {d if ks else 0}')
    a.wait_vm(tok_w)
    for e in range(8): a.e(f'v_mul_f32 v{V_GT+e}, {fl(2.0**-19)}, v{V_GT+e}')
    a.e(f's_add_u32 s62, s60, {WS_Y}')
    for nb in range(2):
        for h in range(2):
            a.e(f'v_pk_mul_f32 {vr(V_DR+4*nb+2*h,2)}, {vr(V_DR+4*nb+2*h,2)}, {vr(V_GT+4*nb+2*h,2)}')
            a.e(f'v_pk_mul_f32 {vr(V_DI+4*nb+2*h,2)}, {vr(V_DI+4*nb+2*h,2)}, {vr(V_GT+4*nb+2*h,2)}')
        for r in range(4): a.e(f'v_cvt_pk_bf16_f32 v{V_B+4*nb+r}, v{V_DR+4*nb+r}, v{V_DI+4*nb+r}')
        if not cfg.x.get('ydefer'): a.e(f'buffer_store_dwordx4 {vr(V_B+4*nb,4)}, v{V_L16}, {srd(S_WS)}, s62 offen offset:{1024*nb} {cfg.f("stY")}')

def p2_special(a,cfg):
    p=P2
    V_U,V_Q,T0,V_DR,V_DI,V_B=p['V_U'],p['V_Q'],p['T0'],p['V_DR'],p['V_DI'],p['V_B']
    V_WR=216; V_WI=224
    a.e('L_p2_special:')
    a.cond_begin()
    a.e('s_waitcnt vmcnt(0)')
    V_J=T0+8; V_ZA=V_U+16
    a.e(f'''s_lshl_b32 s65, {wv}, 4
    v_lshlrev_b32 v{V_J}, 8, v2
    v_add3_u32 v{V_J}, v{V_J}, v1, s65''')
    for eh in range(2):
        for r in range(4):
            n=1024*eh+64*r
            a.e(f'v_add_u32 v{T0}, {n}, v{V_J}')
            a.e(f'v_lshlrev_b32 v{T0}, 2, v{T0}')
            a.e(f'v_cvt_pk_bf16_f32 v{T0+2}, v{V_DR+4*eh+r}, v{V_DI+4*eh+r}')
            a.e(f'v_add_u32 v{T0}, {ZR_BASE}, v{T0}')
            a.e(f'ds_write_b32 v{T0}, v{T0+2}')
    a.e('s_waitcnt lgkmcnt(0)')
    a.e('s_barrier')
    for eh in range(2):
        for r in range(4):
            n=1024*eh+64*r
            a.e(f'v_sub_u32 v{T0}, {2048-n}, v{V_J}')
            a.e(f'v_and_b32 v{T0}, 2047, v{T0}')
            a.e(f'v_lshlrev_b32 v{T0}, 2, v{T0}')
            a.e(f'v_add_u32 v{T0}, {ZR_BASE}, v{T0}')
            a.e(f'ds_read_b32 v{V_ZA+4*eh+r}, v{T0}')
    a.e('s_waitcnt lgkmcnt(0)')
    for e in range(8):
        zr=V_DR+e; zi=V_DI+e; pr=V_WR+e; pi=V_WI+e; ar_=T0+6; ai=T0+7
        qr=T0; qi=T0+1; yr=T0+2; yi=T0+3
        a.e(f'''v_lshlrev_b32 v{qr}, 16, v{V_Q+e}
        v_and_b32 v{qi}, 0xffff0000, v{V_Q+e}
        v_lshlrev_b32 v{ar_}, 16, v{V_ZA+e}
        v_and_b32 v{ai}, 0xffff0000, v{V_ZA+e}
        v_mul_f32 v{yr}, v{zr}, v{pr}
        v_fma_f32 v{yr}, -v{zi}, v{pi}, v{yr}
        v_fma_f32 v{yr}, v{ar_}, v{qr}, v{yr}
        v_fma_f32 v{yr}, v{ai}, v{qi}, v{yr}
        v_mul_f32 v{yi}, v{zr}, v{pi}
        v_fma_f32 v{yi}, v{zi}, v{pr}, v{yi}
        v_fma_f32 v{yi}, v{ar_}, v{qi}, v{yi}
        v_fma_f32 v{yi}, -v{ai}, v{qr}, v{yi}
        v_cvt_pk_bf16_f32 v{V_B+e}, v{yr}, -v{yi}''')
    a.cond_end()
    a.e('s_branch L_p2_join')

HEADER='''; Gated mix of a GFNet spectral filter and a dense->mish->dense block, one persistent launch.
; (text generated by the author's own generator script; 256 workgroups, one per CU, hand-offs through counters)
'''
def build(stamps=False,off=(),**kw):
    cfg=Cfg(); cfg.stamps=stamps; cfg.off=set(off); cfg.x=kw; cfg.fine=kw.get('fine',0)
    label=NAME+'_kernel'
    a=Asm(); end='L_end'
    prologue(a,cfg,end)
    sv=(a.vm,a.lg)
    if kw.get('ffirst'):
        f_stream(a,cfg,end)
        nbF=sum(1 for i in a.items if i.op=='s_barrier'); n0=len(a.items)
        a.vm,a.lg=sv; a.bg_rate=0; assert not a.bg
        a.e('L_M:')
        m_stream(a,cfg,end)
        nbM=sum(1 for i in a.items[n0:] if i.op=='s_barrier')
    else:
        m_stream(a,cfg,end)
        nbM=sum(1 for i in a.items if i.op=='s_barrier'); n0=len(a.items)
        a.vm,a.lg=sv; a.bg_rate=0; assert not a.bg
        f_stream(a,cfg,end)
        nbF=sum(1 for i in a.items[n0:] if i.op=='s_barrier')
    a.e(f'{end}:'); a.e('s_endpgm')
    txt=a.text()
    errs=[]
    for role in (False,True):
        jump=lambda t: (role and t=='L_F') or ((not role) and t=='L_M')
        for nm,pol in (('fall',lambda i,n:i.target.endswith('_done') or jump(i.target)),
                       ('taken',lambda i,n:((not i.target.startswith('L_end')) and n==0 and (i.target not in('L_F','L_M') or jump(i.target))))):
            errs+=verify_waits(a.out,pol,('F' if role else 'M')+nm)
    for e in sorted(set(errs))[:30]: print('WAITERR',e,file=sys.stderr)
    print(dict(a.count()),'barriers M',nbM,'F',nbF,file=sys.stderr)
    out=HEADER+f'; @launch grid=(256,1,1) block=(512,1,1) lds={LDS_TOTAL}\n'
    out+='.amdgcn_target "amdgcn-amd-amdhsa--gfx950"\n.text\n'
    out+=f'.globl {label}\n.p2align 8\n.type {label},@function\n{label}:\n{txt}'
    out+=f'''.section .rodata,"a"
.p2align 6
.amdhsa_kernel {label}
  .amdhsa_next_free_vgpr 256
  .amdhsa_next_free_sgpr 102
  .amdhsa_accum_offset 256
  .amdhsa_group_segment_fixed_size 0
  .amdhsa_kernarg_size 88
  .amdhsa_user_sgpr_count 2
  .amdhsa_user_sgpr_kernarg_segment_ptr 1
  .amdhsa_system_sgpr_workgroup_id_x 1
.end_amdhsa_kernel
'''
    return out

if __name__=='__main__':
    mode=sys.argv[1] if len(sys.argv)>1 else 'persist'
    kw={}
    for x in sys.argv[3:]:
        k,v=x.split('='); kw[k]=int(v) if v.lstrip('-').isdigit() else v
    off=kw.pop('off','').split(',') if 'off' in kw else ()
    txt=build(stamps=(mode=='stamps'),off=off,**kw)
    open(sys.argv[2] if len(sys.argv)>2 else 'out.s','w').write(txt)
```

```python
import sys, os, struct
from dsl import Asm, verify_waits

NAME='gated_mix__spectral_gfnet__dense_activation_mish__prompt'
WS_T   =0x000000
WS_WT  =0x200000
WS_QT  =0x400000
WS_G   =0x402000
WS_CNT =0x404000
WS_Y   =0x600000
WS_ACT =0x800000
WS_STAMP=0x1000000
WS_SIZE=0x1080000
RT_STRIDE=56*4096
S_X,S_WR,S_WI,S_W1,S_B1,S_W2,S_GW,S_OUT,S_WS,S_DBG=8,12,16,20,24,28,32,36,40,44
def srd(n): return f's[{n}:{n+3}]'
SRDS=[(S_X,0,2048*1024),(S_WR,8,2048*514),(S_WI,16,2048*514),(S_W1,32,512*3584),(S_B1,40,3584),
      (S_W2,48,1792*1024),(S_GW,56,1024),(S_OUT,64,2048*1024),(S_WS,80,WS_SIZE),(S_DBG,72,256)]
def vr(b,n=1): return f'v{b}' if n==1 else f'v[{b}:{b+n-1}]'
def fl(x): return hex(struct.unpack('<I',struct.pack('<f',float(x)))[0])
S_WV=3; S_W8=49
wv=f's{S_WV}'
LOG2E=1.4426950408889634
OOB=0x40000000
SLEEP=int(os.environ.get('SLEEP','8'))
SPIN_MAX=50000
SLOT=31744
SB=lambda c:(c%5)*SLOT
XA_BASE=4*SLOT; XA_PITCH=1152
GW_LDS=5*SLOT; B1_LDS=GW_LDS+1024
LC_BASE=GW_LDS+2048
TB_BASE=131072; XB_BASE=139264; ZR_BASE=147456; WB_BASE=155648
LDS_TOTAL=163840
V_L16=3
V_PD,V_PA,V_SIG=250,251,252

class Cfg:
    stamps=False; dbgst=False; sc='sc1'
    off=set()
    def f(self,tag): return '' if (tag in self.off or 'all' in self.off) else self.sc

def stamp(a,cfg,idx):
    if not cfg.stamps: return
    r=a.bg_rate; a.bg_rate=0
    a.e('s_memrealtime s[96:97]'); a.e('s_waitcnt lgkmcnt(0)'); a.e(f'v_writelane_b32 v255, s96, {idx}')
    a.bg_rate=r
def stamps_flush(a,cfg):
    if not cfg.stamps: return
    a.e(f"""v_lshrrev_b32 v254, 6, v249
    s_nop 0
    v_readfirstlane_b32 s98, v254
    s_lshl_b32 s99, s2, 3
    s_add_u32 s98, s98, s99
    s_lshl_b32 s98, s98, 8
    s_add_u32 s98, s98, {WS_STAMP}
    v_lshlrev_b32 v254, 2, v0
    buffer_store_dword v255, v254, {srd(S_WS)}, s98 offen""")

def signal(a,S,soff):
    vt=V_SIG
    a.e(f"""s_cmp_eq_u32 {wv}, 0
    s_cselect_b32 s95, 0, {OOB}
    v_mov_b32 v{vt}, 1
    v_mov_b32 v{vt+1}, s95
    s_mov_b64 exec, 1
    buffer_atomic_add v{vt}, v{vt+1}, {srd(S)}, {soff} offen sc1
    s_mov_b64 exec, -1""")

def ssignal(a,S,soff):
    lab=f'L_ss{len(a.items)}'
    a.e(f's_cmp_lg_u32 {wv}, 0'); a.e(f's_cbranch_scc1 {lab}')
    a.e(f's_atomic_add s90, s[{S}:{S+1}], {soff}')
    a.e(f'{lab}:')

def spin_global(a,S,soff,nl,stride,target):
    lab=f'L_poll{len(a.items)}'
    a.e(f'v_mul_u32_u24 v{V_PA}, {stride}, v0')
    a.e(f's_mov_b64 exec, {hex((1<<nl)-1)}')
    a.e(f's_mov_b32 s94, 0')
    a.e(f'{lab}:')
    a.e(f'buffer_load_dword v{V_PD}, v{V_PA}, {srd(S)}, {soff} offen sc1')
    a.e(f's_add_u32 s94, s94, 1')
    a.e(f's_waitcnt vmcnt(0)')
    a.e(f'v_cmp_gt_u32 vcc, {target}, v{V_PD}')
    a.e(f's_cbranch_vccz {lab}_done')
    a.e(f's_cmp_gt_u32 s94, {SPIN_MAX}')
    a.e(f's_cbranch_scc1 {lab}_done')
    a.e(f's_sleep {SLEEP}')
    a.e(f's_branch {lab}')
    a.e(f'{lab}_done:')
    a.e('s_mov_b64 exec, -1')

def poll_w0(a,S,soff,nl,stride,target):
    lab=f'L_pw{len(a.items)}'
    a.e(f's_cmp_lg_u32 {wv}, 0'); a.e(f's_cbranch_scc1 {lab}')
    a.cond_begin(); spin_global(a,S,soff,nl,stride,target); a.cond_end()
    a.e(f'{lab}:')

V_LC=248
def lc_add(a,idx,rtn=None):
    a.e(f'v_mov_b32 v{V_LC-1}, 1')
    a.e('s_mov_b64 exec, 1')
    if rtn is None: a.e(f'ds_add_u32 v{V_LC}, v{V_LC-1} offset:{4*idx}')
    else: a.e(f'ds_add_rtn_u32 v{rtn}, v{V_LC}, v{V_LC-1} offset:{4*idx}')
    a.e('s_mov_b64 exec, -1')
def lc_wait(a,idx,target):
    lab=f'L_lc{len(a.items)}'
    a.e('s_mov_b32 s94, 0')
    a.e(f'{lab}:')
    a.e(f'ds_read_b32 v{V_LC-1}, v{V_LC} offset:{4*idx}')
    a.e('s_add_u32 s94, s94, 1')
    a.e('s_waitcnt lgkmcnt(0)')
    a.e(f'v_readfirstlane_b32 s93, v{V_LC-1}')
    a.e(f's_cmp_ge_u32 s93, {target}')
    a.e(f's_cbranch_scc1 {lab}_done')
    a.e('s_sleep 1')
    a.e(f's_cmp_lt_u32 s94, {20*SPIN_MAX}')
    a.e(f's_cbranch_scc1 {lab}')
    a.e(f'{lab}_done:')

def angles(a,items,T):
    for i0 in range(0,len(items),4):
        grp=items[i0:i0+4]; src=[]
        for j,(sl,base,n,fin,neg) in enumerate(grp):
            if n==0: src.append(f'v{base}')
            else:
                a.e(f'v_fmamk_f32 v{T+j}, v{sl}, {fl(n)}, v{base}'); src.append(f'v{T+j}')
        outs=[]
        for j,(sl,base,n,fin,neg) in enumerate(grp):
            c,s=fin[0] if fin[0] is not None else T+4+j, fin[1] if fin[1] is not None else T+8+j
            a.e(f'v_cos_f32 v{c}, {src[j]}')
            a.e(f'v_sin_f32_e64 v{s}, -{src[j]}' if neg else f'v_sin_f32 v{s}, {src[j]}')
            outs.append((c,s))
        for j,(sl,base,n,fin,neg) in enumerate(grp):
            if fin[2]: fin[2](*outs[j])

def cmul_pack(a,c,s,tc,ts,dst,TT,n=4,negim=False):
    H=n//2
    for h in range(H): a.e(f'v_pk_mul_f32 {vr(TT+4*h,2)}, {vr(s+2*h,2)}, {vr(ts+2*h,2)}')
    for h in range(H): a.e(f'v_pk_mul_f32 {vr(TT+4*h+2,2)}, {vr(s+2*h,2)}, {vr(tc+2*h,2)}')
    for h in range(H): a.e(f'v_pk_fma_f32 {vr(TT+4*h,2)}, {vr(c+2*h,2)}, {vr(tc+2*h,2)}, {vr(TT+4*h,2)} neg_lo:[0,0,1] neg_hi:[0,0,1]')
    for h in range(H): a.e(f'v_pk_fma_f32 {vr(TT+4*h+2,2)}, {vr(c+2*h,2)}, {vr(ts+2*h,2)}, {vr(TT+4*h+2,2)}')
    ng='-' if negim else ''
    for h in range(H):
        a.e(f'v_cvt_pk_bf16_f32 v{dst+2*h}, v{TT+4*h}, {ng}v{TT+4*h+2}')
        a.e(f'v_cvt_pk_bf16_f32 v{dst+2*h+1}, v{TT+4*h+1}, {ng}v{TT+4*h+3}')

def prologue(a,cfg,end):
    a.e('s_cmp_ge_u32 s2, 256'); a.e(f's_cbranch_scc1 {end}')
    for (n,off,sz) in SRDS: a.e(f's_load_dwordx2 s[{n}:{n+1}], s[0:1], {off}')
    if cfg.x.get('pf_code') and cfg.x.get('pf_top'):
        nw=cfg.x['pf_top']
        a.e('s_getpc_b64 s[64:65]')
        a.e('v_lshrrev_b32 v56, 6, v0'); a.e('v_and_b32 v57, 63, v0')
        a.e('v_readfirstlane_b32 s66, v56')
        a.e('v_lshlrev_b32 v57, 4, v57')
        a.e('s_lshr_b32 s67, s2, 3'); a.e(f's_mul_i32 s67, s67, {nw}'); a.e('s_add_u32 s67, s67, s66')
        a.e('s_lshl_b32 s68, s67, 10')
        a.e('s_add_u32 s64, s64, s68'); a.e('s_addc_u32 s65, s65, 0')
        a.e('v_mov_b32 v59, s65'); a.e('v_add_co_u32 v58, vcc, s64, v57'); a.e('s_nop 1'); a.e('v_addc_co_u32 v59, vcc, 0, v59, vcc')
        a.e(f's_cmp_lt_u32 s66, {nw}'); a.e('s_cbranch_scc0 L_nopf0'); a.cond_begin()
        a.e(f's_cmp_lt_u32 s67, {cfg.x["pf_code"]}'); a.e('s_cbranch_scc0 L_nopf0')
        a.e('global_load_dwordx4 v[52:55], v[58:59], off')
        a.cond_end(); a.e('L_nopf0:')
    if cfg.stamps: a.e('v_mov_b32 v249, v0')
    a.e('v_lshrrev_b32 v1, 6, v0')
    a.e('v_and_b32 v0, 63, v0')
    a.e('v_readfirstlane_b32 s48, v1')
    a.e('v_and_b32 v1, 15, v0')
    a.e('v_lshrrev_b32 v2, 4, v0')
    a.e(f'v_lshlrev_b32 v{V_L16}, 4, v0')
    for (n,off,sz) in SRDS:
        a.e(f's_mov_b32 s{n+2}, {hex(sz)}'); a.e(f's_mov_b32 s{n+3}, 0x20000')
    a.e(f'''s_mov_b32 s51, s48
    s_and_b32 {wv}, s48, 3
    s_lshr_b32 s50, s48, 2
    s_and_b32 s4, s2, 7
    s_lshr_b32 s5, s2, 3
    s_lshr_b32 s6, s4, 1
    s_lshl_b32 s6, s6, 2
    s_lshr_b32 s56, s5, 3
    s_add_u32 s6, s6, s56
    s_and_b32 s7, s4, 1
    s_lshl_b32 s7, s7, 3
    s_and_b32 s56, s5, 7
    s_add_u32 s7, s7, s56
    s_and_b32 s48, s7, 1''')
    a.e('s_waitcnt lgkmcnt(0)')
    if cfg.x.get('pf_code') and not cfg.x.get('pf_top'):
        a.e('s_getpc_b64 s[64:65]')
        a.e('s_lshl_b32 s66, s5, 10')
        a.e('s_add_u32 s64, s64, s66'); a.e('s_addc_u32 s65, s65, 0')
        a.e(f'v_mov_b32 v57, s65'); a.e(f'v_add_co_u32 v56, vcc, s64, v{V_L16}'); a.e('s_nop 1'); a.e(f'v_addc_co_u32 v57, vcc, 0, v57, vcc')
        a.e(f's_cmp_lt_u32 s5, {cfg.x["pf_code"]}'); a.e('s_cbranch_scc0 L_nopf'); a.cond_begin()
        a.e(f's_cmp_lg_u32 s51, 2'); a.e('s_cbranch_scc1 L_nopf')
        a.e('global_load_dwordx4 v[52:55], v[56:57], off')
        a.cond_end(); a.e('L_nopf:')
    mt=str(cfg.x.get('mt','xw'))
    if mt!='0':
        a.e(f'''v_lshlrev_b32 v5, 7, v0
        v_mov_b32 v6, {OOB}
        v_cmp_gt_u32 vcc, 56, v0
        v_cndmask_b32 v6, v6, v5, vcc
        s_cmp_eq_u32 s51, 0
        s_cselect_b32 s56, 0, {OOB}
        v_add_u32 v5, s56, v5
        s_cmp_eq_u32 s51, 1
        s_cselect_b32 s56, 0, {OOB}
        v_add_u32 v7, s56, v6
        s_lshl_b32 s56, s2, 13
        s_mul_i32 s57, s2, 7168''')
        if 'x' in mt: a.e(f'buffer_load_dword v245, v5, {srd(S_X)}, s56 offen')
        if 'w' in mt: a.e(f'buffer_load_dword v245, v7, {srd(S_W1)}, s57 offen')
    if cfg.x.get('xaearly'):
        a.e(f'''s_lshr_b32 s56, s2, 5
        s_lshl_b32 s56, s56, 18
        s_and_b32 s57, s2, 31
        s_lshl_b32 s57, s57, 10
        s_add_u32 s56, s56, s57
        s_lshl_b32 s57, {wv}, 16
        s_add_u32 s56, s56, s57
        s_add_u32 s58, s56, 32768
        s_mul_i32 s57, {wv}, {2*XA_PITCH}
        s_add_u32 s57, s57, {XA_BASE}''')
        a.e('s_cmp_eq_u32 s50, 0'); a.e('s_cbranch_scc1 L_noxa'); a.cond_begin()
        a.e(f'''s_mov_b32 m0, s57
        s_add_u32 s57, s57, {XA_PITCH}
        buffer_load_dwordx4 v{V_L16}, {srd(S_X)}, s56 offen lds
        s_mov_b32 m0, s57
        s_nop 0
        buffer_load_dwordx4 v{V_L16}, {srd(S_X)}, s58 offen lds''')
        a.cond_end(); a.e('L_noxa:')
    if cfg.x.get('gtouch'):
        a.e(f'''s_xor_b32 s56, s51, 2
        s_xor_b32 s57, s2, 1
        s_or_b32 s56, s56, s57
        s_cmp_eq_u32 s56, 0
        s_cselect_b32 s56, 0, {OOB}
        v_lshlrev_b32 v5, 7, v0
        v_add_u32 v5, s56, v5
        s_mov_b32 s57, {WS_G}
        buffer_load_dword v245, v5, {srd(S_WS)}, s57 offen''')
    if cfg.x.get('tlb'):
        a.e(f'''v_lshlrev_b32 v5, 21, v0
        v_mov_b32 v6, {OOB}
        v_cmp_gt_u32 vcc, 9, v0
        v_cndmask_b32 v5, v6, v5, vcc
        s_cmp_eq_u32 s51, 2
        s_cselect_b32 s56, 0, {OOB}
        v_or_b32 v5, s56, v5
        s_cmp_eq_u32 s51, 3
        s_cselect_b32 s56, 0, {OOB}
        v_cmp_gt_u32 vcc, 1, v0
        v_cndmask_b32 v6, v6, v0, vcc
        v_or_b32 v6, s56, v6
        buffer_load_dword v245, v5, {srd(S_WS)}, 0 offen
        buffer_load_dword v245, v6, {srd(S_OUT)}, 0 offen''')
    if cfg.x.get('ffirst'):
        a.e('s_cmp_eq_u32 s50, 0'); a.e('s_cbranch_scc1 L_M')
    else:
        a.e('s_cmp_lg_u32 s50, 0'); a.e('s_cbranch_scc1 L_F')

V_GF=8
V_W2A=240; V_W2D=244
NS3=int(os.environ.get('NS3','8'))
GSLOT=[6,7,0,1]
GT0=224; GTA=234
G_ITEMS=[(psi,c,u) for psi in range(4) for c in range(4) for u in range(4)]
def m_g2_ids(a,cfg):
    a.e(f"""s_lshl_b32 s67, s4, 2
    s_lshr_b32 s68, s5, 3
    s_add_u32 s67, s67, s68
    s_and_b32 s68, s5, 7
    s_mul_i32 s69, s67, {RT_STRIDE}
    s_mul_i32 s70, {wv}, {14*4096}
    s_add_u32 s69, s69, s70
    s_add_u32 s69, s69, {WS_ACT}
    s_mul_i32 s70, {wv}, {14*32*1024}
    s_lshl_b32 s71, s68, 7
    s_add_u32 s70, s70, s71
    s_lshl_b32 s71, {wv}, 15
    s_lshr_b32 s72, s67, 1
    s_and_b32 s73, s67, 1
    s_lshr_b32 s74, s72, 2
    s_lshl_b32 s74, s74, 11
    s_lshl_b32 s75, s73, 10
    s_add_u32 s74, s74, s75
    s_and_b32 s75, s72, 3
    s_lshl_b32 s75, s75, 8
    s_add_u32 s74, s74, s75""")
def w2_dma_addr(a,V,T):
    a.e(f"""v_lshrrev_b32 v{T}, 3, v0
    v_lshlrev_b32 v{V}, 10, v{T}
    v_lshrrev_b32 v{T}, 1, v{T}
    v_and_b32 v{T}, 3, v{T}
    v_bfe_u32 v{T+1}, v0, 1, 2
    v_xor_b32 v{T}, v{T}, v{T+1}
    v_lshlrev_b32 v{T}, 1, v{T}
    v_and_b32 v{T+1}, 1, v0
    v_add_u32 v{T}, v{T}, v{T+1}
    v_lshl_add_u32 v{V}, v{T}, 4, v{V}""")
def w2_group(t,v,V):
    return [f's_add_u32 m0, s71, {(t%8)*4096+v*1024}', f's_add_u32 s55, s70, {(32*t+8*v)*1024}',
            f'buffer_load_dwordx4 v{V}, {srd(S_W2)}, s55 offen lds']

def m_stream(a,cfg,end):
    a.e('s_waitcnt lgkmcnt(0)')
    if cfg.x.get('prio0'): a.e(f's_setprio {cfg.x["prio0"]}')
    stamp(a,cfg,26)
    a.e(f'''s_xor_b32 s56, {wv}, 3
    s_or_b32 s58, s56, s2
    s_cmp_eq_u32 s58, 0
    s_cselect_b32 s56, 0, {OOB}
    v_lshlrev_b32 v5, 7, v0
    v_add_u32 v5, s56, v5
    v_mov_b32 v6, 0
    s_mov_b32 s57, {WS_CNT}
    s_mov_b32 exec_hi, 0
    buffer_store_dword v6, v5, {srd(S_WS)}, s57 offen sc1
    s_mov_b32 exec_hi, -1''')
    mt=str(cfg.x.get('mt','xw'))
    a.e(f'''s_lshr_b32 s49, s2, 5
    s_and_b32 s50, s2, 31''')
    V_B1C=60; V_B1S=68; V_TC=76; V_TS=80; V_A2=84; V_A2N=88; T0=92; TA=100
    a.e(f'''s_lshl_b32 s67, {wv}, 4
    v_add_u32 v{T0}, s67, v1
    v_cvt_f32_u32 v{T0}, v{T0}
    v_mul_f32 v{T0+1}, {fl(1/64)}, v{T0}
    v_lshlrev_b32 v{T0+2}, 2, v2
    v_cvt_f32_u32 v{T0+2}, v{T0+2}
    v_mul_f32 v{T0+3}, v{T0+2}, v{T0+1}''')
    for ks in range(2):
        for hh in range(2):
            angles(a,[(T0+1,T0+3,32*ks+16*hh+u,(None,None,None),True) for u in range(4)],TA)
            for d in range(2):
                a.e(f'v_cvt_pk_bf16_f32 v{V_B1C+4*ks+2*hh+d}, v{TA+4+2*d}, v{TA+5+2*d}')
                a.e(f'v_cvt_pk_bf16_f32 v{V_B1S+4*ks+2*hh+d}, v{TA+8+2*d}, v{TA+9+2*d}')
    a.e(f'''v_and_b32 v{T0+4}, 1, v2
    v_lshlrev_b32 v{T0+4}, 2, v{T0+4}
    v_cvt_f32_u32 v{T0+4}, v{T0+4}
    v_mul_f32 v{T0+5}, {fl(1/512)}, v{T0}
    v_mul_f32 v{T0+6}, v{T0+4}, v{T0+5}''')
    angles(a,[(T0+5,T0+6,r,(V_TC+r,V_TS+r,None),True) for r in range(4)],TA)
    a.e(f'''v_lshrrev_b32 v{T0+5}, 2, v1
    v_cvt_f32_u32 v{T0+5}, v{T0+5}
    v_mul_f32 v{T0+5}, {fl(1/8)}, v{T0+5}
    v_and_b32 v{T0+6}, 1, v1
    v_cvt_f32_u32 v{T0+6}, v{T0+6}
    v_mul_f32 v{T0+6}, {fl(0.25)}, v{T0+6}
    v_fma_f32 v{T0+6}, v{T0+4}, v{T0+5}, v{T0+6}
    v_lshrrev_b32 v{T0+7}, 1, v1
    v_and_b32 v{T0+7}, 1, v{T0+7}
    v_lshrrev_b32 v{T0}, 1, v2
    v_cmp_eq_u32 s[68:69], v{T0+7}, v{T0}
    v_and_b32 v{T0+7}, 13, v1
    v_cmp_eq_u32 vcc, 1, v{T0+7}''')
    a.e('s_and_b64 s[70:71], vcc, s[68:69]')
    angles(a,[(T0+5,T0+6,dw,(None,None,None),False) for dw in range(4)],TA)
    for dw in range(4): a.e(f'v_cvt_pk_bf16_f32 v{TA+dw}, v{TA+4+dw}, v{TA+8+dw}')
    a.e(f'v_mov_b32 v{TA+4}, 0x3f80'); a.e(f'v_mov_b32 v{TA+5}, 0xbf80')
    for dw in range(4):
        a.e(f'v_cndmask_b32 v{V_A2+dw}, 0, v{TA+dw}, s[68:69]')
        a.e(f'v_cndmask_b32 v{V_A2N+dw}, 0, v{TA+4+(dw&1)}, s[70:71]')
    V_XA=108
    a.e(f'''v_and_b32 v{T0}, 3, v0
    v_lshrrev_b32 v{T0+1}, 1, v{T0}
    v_mul_u32_u24 v{V_XA}, {XA_PITCH}, v{T0+1}
    v_and_b32 v{T0}, 1, v{T0}
    v_lshlrev_b32 v{T0}, 3, v{T0}
    v_lshrrev_b32 v{T0+1}, 2, v1
    v_lshl_add_u32 v{T0+1}, v2, 2, v{T0+1}
    v_lshlrev_b32 v{T0+1}, 4, v{T0+1}
    v_add3_u32 v{V_XA}, v{V_XA}, v{T0}, v{T0+1}
    v_add_u32 v{V_XA}, {XA_BASE}, v{V_XA}
    s_mul_i32 s72, {wv}, {2*XA_PITCH}
    s_add_u32 s72, s72, {XA_BASE}
    v_add_u32 v{V_XA+1}, s72, v{V_L16}
    v_add_u32 v{V_XA+2}, {GW_LDS}, v{V_L16}''')
    a.e(f'''s_lshl_b32 s84, s49, 3
    s_lshl_b32 s85, {wv}, 1
    s_add_u32 s84, s84, s85
    s_lshr_b32 s85, s84, 4
    s_lshl_b32 s85, s85, 11
    s_lshr_b32 s86, s50, 4
    s_lshl_b32 s86, s86, 10
    s_add_u32 s85, s85, s86
    s_lshr_b32 s86, s84, 2
    s_and_b32 s86, s86, 3
    s_lshl_b32 s86, s86, 8
    s_add_u32 s85, s85, s86
    s_and_b32 s86, s50, 15
    s_lshl_b32 s86, s86, 4
    s_add_u32 s85, s85, s86
    s_and_b32 s86, s84, 3
    s_lshl_b32 s86, s86, 2
    s_add_u32 s85, s85, s86
    s_add_u32 s85, s85, {WS_G}
    ''')
    if mt!='0' and ('W' in mt or '2' in mt):
        a.e(f'''v_lshlrev_b32 v5, 7, v0
        v_mov_b32 v6, {OOB}
        v_cmp_gt_u32 vcc, 33, v0
        v_cndmask_b32 v7, v6, v5, vcc
        v_cmp_gt_u32 vcc, 56, v0
        v_cndmask_b32 v6, v6, v5, vcc
        s_cmp_eq_u32 {wv}, 2
        s_cselect_b32 s56, 0, {OOB}
        v_add_u32 v5, s56, v7
        s_cmp_eq_u32 {wv}, 3
        s_cselect_b32 s56, 0, {OOB}
        v_add_u32 v7, s56, v7
        s_cmp_eq_u32 {wv}, 0
        s_cselect_b32 s56, 0, {OOB}
        v_add_u32 v6, s56, v6
        s_mul_i32 s56, s2, {33*128}
        v_add_u32 v5, s56, v5
        v_add_u32 v7, s56, v7
        s_mul_i32 s57, s2, 7168''')
        if 'W' in mt:
            a.e(f'buffer_load_dword v245, v5, {srd(S_WR)}, 0 offen')
            a.e(f'buffer_load_dword v245, v7, {srd(S_WI)}, 0 offen')
        if '2' in mt: a.e(f'buffer_load_dword v245, v6, {srd(S_W2)}, s57 offen')
    a.e('s_cmp_lg_u32 s58, 0'); a.e('s_cbranch_scc1 L_m_nos0'); a.cond_begin()
    a.e(f'''s_waitcnt vmcnt(0)
    v_mov_b32 v5, 1
    v_mov_b32 v6, 32
    s_mov_b64 exec, 1
    buffer_store_dword v5, v6, {srd(S_DBG)}, 0 offen sc1
    s_mov_b64 exec, -1''')
    a.cond_end(); a.e('L_m_nos0:')
    stamp(a,cfg,0)
    a.e('s_barrier')
    stamp(a,cfg,1)
    V_AF=112; V_GX=144; V_GW=184; V_D1C=152; V_D1S=168
    for pi in range(4):
        for ks in range(2):
            for hh in range(2):
                a.e(f'ds_read_b64_tr_b16 {vr(V_AF+8*pi+4*ks+2*hh,2)}, v{V_XA} offset:{pi*2*XA_PITCH+ks*512+hh*256}')
        if pi==1: lg_01=a.lgtok()
    lg_af=a.lgtok()
    a.e(f'ds_read_b128 {vr(V_GX,4)}, v{V_XA+1}')
    a.e(f'ds_read_b128 {vr(V_GX+4,4)}, v{V_XA+1} offset:{XA_PITCH}')
    a.e(f'ds_read_b128 {vr(V_GW,4)}, v{V_XA+2}')
    lg_gx=a.lgtok()
    for pi in range(4):
        if pi==0: a.wait_lg(lg_01)
        if pi==2: a.wait_lg(lg_af)
        for ks in range(2):
            A=vr(V_AF+8*pi+4*ks,4); c=vr(V_D1C+4*pi,4); s=vr(V_D1S+4*pi,4)
            a.e(f'v_mfma_f32_16x16x32_bf16 {c}, {A}, {vr(V_B1C+4*ks,4)}, {c if ks else 0}')
            a.e(f'v_mfma_f32_16x16x32_bf16 {s}, {A}, {vr(V_B1S+4*ks,4)}, {s if ks else 0}')
    a.wait_lg(lg_gx)
    V_Z=T0+2; V_GOUT=T0+4
    for d in range(4):
        for rr in range(2):
            a.e(f'v_dot2_f32_bf16 v{V_Z+rr}, v{V_GX+4*rr+d}, v{V_GW+d}, {("v%d"%(V_Z+rr)) if d else 0}')
    TT=TA; V_B2=V_AF
    red=[('row_shr:1 row_mask:0xf bank_mask:0xf bound_ctrl:1'),('row_shr:2 row_mask:0xf bank_mask:0xf bound_ctrl:1'),
         ('row_shr:4 row_mask:0xf bank_mask:0xf bound_ctrl:1'),('row_shr:8 row_mask:0xf bank_mask:0xf bound_ctrl:1'),
         ('row_bcast:15 row_mask:0xa bank_mask:0xf'),('row_bcast:31 row_mask:0xc bank_mask:0xf')]
    ri=0
    for pi in range(4):
        cmul_pack(a,V_D1C+4*pi,V_D1S+4*pi,V_TC,V_TS,V_B2+4*pi,TT)
        for _ in range(2 if pi<2 else 1):
            for rr in range(2): a.e(f'v_add_f32_dpp v{V_Z+rr}, v{V_Z+rr}, v{V_Z+rr} {red[ri]}')
            ri+=1
    V_D2=V_D1C; V_D2N=V_D1S
    for pi in range(4):
        a.e(f'v_mfma_f32_16x16x32_bf16 {vr(V_D2+4*pi,4)}, {vr(V_A2,4)}, {vr(V_B2+4*pi,4)}, 0')
        a.e(f'v_mfma_f32_16x16x32_bf16 {vr(V_D2N+4*pi,4)}, {vr(V_A2N,4)}, {vr(V_B2+4*pi,4)}, 0')
    for rr in range(2): a.e(f'v_mul_f32 v{V_Z+rr}, {fl(-LOG2E)}, v{V_Z+rr}')
    for rr in range(2): a.e(f'v_exp_f32 v{V_Z+rr}, v{V_Z+rr}')
    for rr in range(2): a.e(f'v_add_f32 v{V_Z+rr}, 1.0, v{V_Z+rr}')
    for rr in range(2): a.e(f'v_rcp_f32 v{V_GOUT+rr}, v{V_Z+rr}')
    a.e(f'''s_cmp_eq_u32 {wv}, 0
    s_cselect_b32 s74, 1, 0
    s_mov_b32 s75, 0''')
    V_TO=8
    for pi in range(4):
        for rho in range(2):
            re=V_D2+4*pi+2*rho; im=re+1
            a.e(f'v_cndmask_b32 v{im}, v{im}, v{V_D2N+4*pi+2*rho+1}, s[74:75]')
            a.e(f'v_cvt_pk_bf16_f32 v{V_TO+2*pi+rho}, v{re}, v{im}')
    a.e(f'''v_lshrrev_b32 v18, 5, v0
    v_lshlrev_b32 v18, 11, v18
    v_and_b32 v19, 31, v0
    v_lshl_add_u32 v18, v19, 4, v18
    s_lshl_b32 s93, {wv}, 9
    v_add_u32 v18, s93, v18
    s_lshl_b32 s90, s2, 13
    s_add_u32 s90, s90, {WS_T}
    v_mov_b32 v16, v{V_GOUT}
    v_mov_b32 v17, v{V_GOUT+1}
    v_mov_b32 v19, 0
    s_mov_b32 s91, s85''')
    def row_stores():
        if cfg.x.get('x_nors'): return
        a.e(f'''s_add_u32 s93, s90, 4096
        buffer_store_dwordx4 v[8:11], v18, {srd(S_WS)}, s90 offen {cfg.f("stT")}
        buffer_store_dwordx4 v[12:15], v18, {srd(S_WS)}, s93 offen {cfg.f("stT")}
        s_mov_b32 exec_lo, 0
        s_mov_b32 exec_hi, 0x80000000
        buffer_store_dwordx2 v[16:17], v19, {srd(S_WS)}, s91 offen {cfg.f("stG")}
        s_mov_b64 exec, -1''')
    if cfg.x.get('rs_at',9)<0: row_stores()
    stamp(a,cfg,17)
    V_XF=80; V_XR=96; V_VA=102; V_BIAS=108; V_ACC=136; V_WF=192; V_BRAW=220; T0=234
    a.e(f'''s_lshl_b32 s76, {wv}, 12
    v_lshlrev_b32 v{T0}, 7, v1
    v_add_u32 v{T0}, s76, v{T0}
    v_lshrrev_b32 v{T0+1}, 1, v1
    v_xor_b32 v{T0+1}, v{T0+1}, v2
    v_lshl_add_u32 v{V_XR}, v{T0+1}, 4, v{T0}
    v_xor_b32 v{T0+1}, 4, v{T0+1}
    v_lshl_add_u32 v{V_XR+1}, v{T0+1}, 4, v{T0}
    v_mul_u32_u24 v{V_VA}, 1920, v2
    v_lshrrev_b32 v{T0}, 2, v1
    v_mul_u32_u24 v{T0}, 224, v{T0}
    v_and_b32 v{T0+1}, 3, v0
    v_lshlrev_b32 v{T0+1}, 3, v{T0+1}
    v_add3_u32 v{V_VA}, v{V_VA}, v{T0}, v{T0+1}
    v_add_u32 v{V_VA}, 16384, v{V_VA}
    s_cmp_eq_u32 s48, 0
    s_cselect_b32 s76, 192, 0
    v_add_u32 v{V_VA+1}, s76, v{V_VA}
    s_lshl_b32 s76, s48, 5
    v_add_u32 v{V_VA}, s76, v{V_VA}''')
    for st_ in (1,2):
        for j in range(2):
            a.e(f'v_add_u32 v{V_XR+2*st_+j}, {2*st_*SLOT}, v{V_XR+j}')
            a.e(f'v_add_u32 v{V_VA+2*st_+j}, {2*st_*SLOT}, v{V_VA+j}')
    a.e(f'''v_lshlrev_b32 v{T0}, 3, v2
    s_lshl_b32 s76, s48, 5
    s_add_u32 s77, s76, {B1_LDS}
    v_add_u32 v{T0+1}, s77, v{T0}
    s_cmp_eq_u32 s48, 0
    s_cselect_b32 s77, 192, 0
    s_add_u32 s77, s77, {B1_LDS}
    v_add_u32 v{T0}, s77, v{T0}''')
    if cfg.x.get('prio'): a.e(f's_setprio {cfg.x["prio"]}')
    a.e('s_barrier')
    stamp(a,cfg,3)
    a.e(f'''s_mul_i32 s93, {wv}, {2*XA_PITCH}
    s_add_u32 s93, s93, {XA_BASE}
    v_lshl_add_u32 v20, v0, 5, s93
    v_add_u32 v21, s93, v{V_L16}
    ds_write_b128 v20, v[8:11]
    ds_write_b128 v20, v[12:15] offset:16
    s_waitcnt lgkmcnt(0)
    ds_read_b128 v[8:11], v21
    ds_read_b128 v[12:15], v21 offset:1024''')
    def slot_set(c):
        j=c%5; return (j//2, (j%2)*SLOT)
    def w_read1(s,t,hh):
        c,kk=s//2,s%2; st_,off=slot_set(c)
        va=V_VA+2*st_+(1 if t==6 else 0)
        o=off+kk*7680+(32*t if t<6 else 0)
        a.e(f'ds_read_b64_tr_b16 {vr(V_WF+4*t+2*hh,2)}, v{va} offset:{o+960*hh}')
        return a.lgtok()
    def x_read1(s,nb):
        c,kk=s//2,s%2; st_,off=slot_set(c)
        a.e(f'ds_read_b128 {vr(V_XF+8*(s%2)+4*nb,4)}, v{V_XR+2*st_+kk} offset:{off+2048*nb}')
        return a.lgtok()
    for t in range(6): a.e(f'ds_read_b64 {vr(V_BRAW+2*t,2)}, v{T0+1} offset:{32*t}')
    a.e(f'ds_read_b64 {vr(V_BRAW+12,2)}, v{T0}')
    lg_b=a.lgtok()
    tw={}; tx={}
    for nb in range(2): tx[(0,nb)]=x_read1(0,nb)
    for t in range(3):
        for hh in range(2): tw[(0,t,hh)]=w_read1(0,t,hh)
    a.wait_lg(lg_b)
    for t in range(7):
        for d in range(2):
            raw=V_BRAW+2*t+d
            a.e(f'v_lshlrev_b32 v{V_BIAS+4*t+2*d}, 16, v{raw}')
            a.e(f'v_and_b32 v{V_BIAS+4*t+2*d+1}, 0xffff0000, v{raw}')
    for t in range(3,7):
        for hh in range(2): tw[(0,t,hh)]=w_read1(0,t,hh)
    for s in range(16):
        for t in range(7):
            need=max(tw[(s,t,1)],tx[(s,1)])
            n=a.lg-need
            if t%2==0 or t==1 or s==0 or True: a.e(f's_waitcnt lgkmcnt({min(n,15)})')
            for nb in range(2):
                acc=vr(V_ACC+28*nb+4*t,4)
                cc=acc if s>0 else vr(V_BIAS+4*t,4)
                a.e(f'v_mfma_f32_16x16x32_bf16 {acc}, {vr(V_WF+4*t,4)}, {vr(V_XF+8*(s%2)+4*nb,4)}, {cc}')
                if nb==0 and t==1 and s%2==1 and s<15:
                    if cfg.fine==2: stamp(a,cfg,32+2*(s//2))
                    if s==(7 if cfg.x.get('s1two',0) else 13): a.e('s_waitcnt vmcnt(0)')
                    a.e('s_barrier')
                    if cfg.fine==2: stamp(a,cfg,33+2*(s//2))
                ps,pt=(s+1,t-1) if t>=1 else (s,6)
                if (t>=1 and s<15) or (t==0 and 1<=s<=15 and (s,6,nb) not in tw):
                    tw[(ps,pt,nb)]=w_read1(ps,pt,nb)
                if t==2 and s<15: tx[(s+1,nb)]=x_read1(s+1,nb)
                if t==4 and nb==1 and s==cfg.x.get('rs_at',9): row_stores()
    a.e('s_barrier')
    stamp(a,cfg,4)
    V_E=V_WF; V_O=V_BIAS
    a.e(f's_mov_b32 s84, {fl(LOG2E)}'); a.e(f's_mov_b32 s85, {fl(LOG2E)}'); a.e(f's_mov_b32 s86, {fl(-2.0 if cfg.x.get("mish2") else 30.0)}')
    a.e(f'''s_mul_i32 s87, s7, 7
    s_add_u32 s87, s87, s48
    s_lshr_b32 s87, s87, 1
    s_lshl_b32 s87, s87, 12
    s_mul_i32 s88, s6, {2*RT_STRIDE}
    s_lshl_b32 s89, {wv}, 10
    s_add_u32 s88, s88, s89
    s_add_u32 s88, s88, {WS_ACT}
    s_add_u32 s88, s88, s87
    s_mov_b32 s89, {3*4096}
    s_cmp_eq_u32 s48, 0
    s_cselect_b32 s89, s89, {(-4096+512)&0xffffffff}
    s_add_u32 s89, s89, s88
    v_lshlrev_b32 v4, 3, v0''')
    G=4
    for nb in range(2):
        pairs=[(V_ACC+28*nb+4*t+2*d, V_O+14*nb+2*t+d) for t in range(7) for d in range(2)]
        for g0 in range(0,len(pairs),G):
            grp=pairs[g0:g0+G]
            Tq=lambda i: V_E+4*i
            if cfg.x.get('mish2'):
                for i,(h,o) in enumerate(grp): a.e(f'v_pk_mul_f32 {vr(Tq(i),2)}, {vr(h,2)}, s[84:85]')
                for i,(h,o) in enumerate(grp):
                    a.e(f'v_exp_f32 v{Tq(i)}, v{Tq(i)}'); a.e(f'v_exp_f32 v{Tq(i)+1}, v{Tq(i)+1}')
                for i,(h,o) in enumerate(grp): a.e(f'v_pk_add_f32 {vr(Tq(i)+2,2)}, {vr(Tq(i),2)}, 2.0 op_sel_hi:[1,0]')
                for i,(h,o) in enumerate(grp): a.e(f'v_pk_fma_f32 {vr(Tq(i),2)}, {vr(Tq(i),2)}, {vr(Tq(i)+2,2)}, 2.0 op_sel_hi:[1,1,0]')
                for i,(h,o) in enumerate(grp):
                    a.e(f'v_rcp_f32 v{Tq(i)}, v{Tq(i)}'); a.e(f'v_rcp_f32 v{Tq(i)+1}, v{Tq(i)+1}')
                for i,(h,o) in enumerate(grp): a.e(f'v_pk_fma_f32 {vr(Tq(i),2)}, {vr(Tq(i),2)}, s[86:87], 1.0 op_sel_hi:[1,0,0]')
                for i,(h,o) in enumerate(grp): a.e(f'v_pk_mul_f32 {vr(Tq(i),2)}, {vr(Tq(i),2)}, {vr(h,2)}')
            else:
                for i,(h,o) in enumerate(grp): a.e(f'v_pk_mul_f32 {vr(Tq(i),2)}, {vr(h,2)}, s[84:85]')
                for i,(h,o) in enumerate(grp):
                    a.e(f'v_min_f32 v{Tq(i)}, s86, v{Tq(i)}'); a.e(f'v_min_f32 v{Tq(i)+1}, s86, v{Tq(i)+1}')
                for i,(h,o) in enumerate(grp):
                    a.e(f'v_exp_f32 v{Tq(i)}, v{Tq(i)}'); a.e(f'v_exp_f32 v{Tq(i)+1}, v{Tq(i)+1}')
                for i,(h,o) in enumerate(grp): a.e(f'v_pk_add_f32 {vr(Tq(i)+2,2)}, {vr(Tq(i),2)}, 2.0 op_sel_hi:[1,0]')
                for i,(h,o) in enumerate(grp): a.e(f'v_pk_mul_f32 {vr(Tq(i),2)}, {vr(Tq(i),2)}, {vr(Tq(i)+2,2)}')
                for i,(h,o) in enumerate(grp): a.e(f'v_pk_add_f32 {vr(Tq(i)+2,2)}, {vr(Tq(i),2)}, 2.0 op_sel_hi:[1,0]')
                for i,(h,o) in enumerate(grp):
                    a.e(f'v_rcp_f32 v{Tq(i)+2}, v{Tq(i)+2}'); a.e(f'v_rcp_f32 v{Tq(i)+3}, v{Tq(i)+3}')
                for i,(h,o) in enumerate(grp): a.e(f'v_pk_mul_f32 {vr(Tq(i),2)}, {vr(Tq(i),2)}, {vr(Tq(i)+2,2)}')
                for i,(h,o) in enumerate(grp): a.e(f'v_pk_mul_f32 {vr(Tq(i),2)}, {vr(Tq(i),2)}, {vr(h,2)}')
            for i,(h,o) in enumerate(grp): a.e(f'v_cvt_pk_bf16_f32 v{o}, v{Tq(i)}, v{Tq(i)+1}')
            done=min(len(pairs),g0+G)
            if cfg.x.get('actil'):
                for pp in range(3):
                    if g0<4*(pp+1)<=done:
                        a.e(f'buffer_store_dwordx4 {vr(V_O+14*nb+4*pp,4)}, v{V_L16}, {srd(S_WS)}, s88 offen {cfg.f("stA")}')
                        a.e('s_add_u32 s88, s88, 4096')
                if done==14:
                    a.e(f'buffer_store_dwordx2 {vr(V_O+14*nb+12,2)}, v4, {srd(S_WS)}, s89 offen {cfg.f("stA")}')
        if nb==0 and cfg.x.get('actil'):
            a.e(f's_add_u32 s88, s88, {RT_STRIDE-3*4096}')
            a.e(f's_add_u32 s89, s89, {RT_STRIDE}')
    if not cfg.x.get('actil'):
        for nb in range(2):
            for pp in range(3):
                a.e(f'buffer_store_dwordx4 {vr(V_O+14*nb+4*pp,4)}, v{V_L16}, {srd(S_WS)}, s88 offen {cfg.f("stA")}')
                a.e('s_add_u32 s88, s88, 4096')
            a.e(f'buffer_store_dwordx2 {vr(V_O+14*nb+12,2)}, v4, {srd(S_WS)}, s89 offen {cfg.f("stA")}')
            if nb==0:
                a.e(f's_add_u32 s88, s88, {RT_STRIDE-3*4096}')
                a.e(f's_add_u32 s89, s89, {RT_STRIDE}')
    stamp(a,cfg,5)
    parts=p2_table_parts(a,cfg); npre=cfg.x.get('tabpre',4)
    for part in parts[:npre]: part()
    stamp(a,cfg,24)
    a.e('s_mov_b32 s93, 32'); poll_w0(a,S_DBG,'s93',1,0,1)
    a.e('s_waitcnt vmcnt(0)')
    a.e('s_barrier')
    stamp(a,cfg,7)
    p2_small_loads(a,cfg)
    tok_w=a.vmtok()
    for part in parts[npre:]: part()
    stamp(a,cfg,25)
    p2_compute(a,cfg,tok_w)
    tok_y=a.vmtok()
    stamp(a,cfg,8)
    m_g2_ids(a,cfg)
    T=5
    w2_dma_addr(a,V_W2D,T)
    a.e(f"""v_lshrrev_b32 v{T}, 2, v1
    v_lshl_add_u32 v{T+1}, v2, 2, v{T}
    v_lshlrev_b32 v{V_W2A}, 7, v{T+1}
    v_lshrrev_b32 v{T+1}, 1, v{T+1}
    v_and_b32 v{T+1}, 3, v{T+1}
    v_and_b32 v{T}, 3, v0
    v_lshl_add_u32 v{V_W2A}, v{T}, 3, v{V_W2A}
    v_add_u32 v{V_W2A}, s71, v{V_W2A}""")
    for c in (3,2,1,0):
        a.e(f'v_xor_b32 v{T}, {c}, v{T+1}')
        a.e(f'v_lshl_add_u32 v{V_W2A+c}, v{T}, 5, v{V_W2A}')
    stamp(a,cfg,9)
    if not cfg.x.get('ydefer'): a.e('s_waitcnt vmcnt(0)')
    a.e('s_barrier')
    stamp(a,cfg,10)
    m_gemm2(a,cfg,tok_y)
    stamp(a,cfg,13)
    stamps_flush(a,cfg)
    a.e(f's_branch {end}')
    p2_special(a,cfg)

def m_gemm2(a,cfg,tok_y):
    V_ACC=80; V_AF=144; D=8; V_G=72
    RB=lambda t: (8+16*(t%D)) if (t%D)<4 else (160+16*(t%D-4))
    toks={}; tokw={}
    def need(d,k):
        while k not in d: a.bg_pop()
    def a_read1(t,c,hh):
        a.e(f'ds_read_b64_tr_b16 {vr(V_AF+4*c+2*hh,2)}, v{V_W2A+c} offset:{(t%8)*4096+2048*hh}')
        return a.lgtok()
    def push_loads(t):
        b=RB(t)
        if t>=14:
            psi=t-14
            for u in range(4):
                a.bg_push([f's_add_u32 s79, s78, {(16*psi+u)*8192}',
                           f'buffer_load_dwordx4 {vr(b+4*u,4)}, v6, {srd(S_WS)}, s79 offen {cfg.f("ldY")}'],
                          (lambda t=t: toks.__setitem__(t,a.vmtok())) if u==3 else None)
            return
        sc=cfg.f('ldA')
        for q in range(4):
            if t in(3,10):
                l=[f'buffer_load_dwordx2 {vr(b+4*q,2)}, v4, {srd(S_WS)}, s69 offen offset:{1024*q} {sc}',
                   f'buffer_load_dwordx2 {vr(b+4*q+2,2)}, v4, {srd(S_WS)}, s69 offen offset:{1024*q+512} {sc}']
            else:
                l=[f'buffer_load_dwordx4 {vr(b+4*q,4)}, v{V_L16}, {srd(S_WS)}, s69 offen offset:{1024*q} {sc}']
            if q==3: l.append('s_add_u32 s69, s69, 4096')
            a.bg_push(l,(lambda t=t: toks.__setitem__(t,a.vmtok())) if q==3 else None)
    def push_w2(t):
        for v in range(4):
            a.bg_push(w2_group(t,v,V_W2D),(lambda t=t: tokw.__setitem__(t,a.vmtok())) if v==3 else None)
    a.e('v_lshlrev_b32 v4, 3, v0')
    npre=cfg.x.get('npre',4)
    for t in range(npre): push_loads(t)
    a.bg_flush()
    if cfg.x.get('ydefer'):
        for nb in range(2):
            a.e(f'buffer_store_dwordx4 {vr(P2["V_B"]+4*nb,4)}, v{V_L16}, {srd(S_WS)}, s62 offen offset:{1024*nb} {cfg.f("stY")}')
        tok_y=a.vmtok()
    nxt=npre
    a.e(f"""v_lshlrev_b32 v5, 4, v1
    v_lshlrev_b32 v6, 15, v2
    v_add_u32 v6, v6, v5
    v_add_u32 v7, s71, v{V_L16}
    s_lshl_b32 s78, {wv}, 19
    s_add_u32 s78, s78, s74
    s_add_u32 s78, s78, {WS_Y}""")
    V_AF2=224; ACC2=[40,56,160,176]; tg={}
    def g_read(psi,c):
        AFp=(V_AF2 if psi%2==0 else V_AF)
        a.e(f'ds_read_b128 {vr(AFp+4*c,4)}, v7 offset:{GSLOT[psi]*4096+c*1024}'); tg[(psi,c)]=a.lgtok()
    def swaps(t):
        b=RB(t)
        for (i,j) in[(0,1),(0,2),(0,3),(1,2),(1,3),(2,3)]:
            a.e(f'v_swap_b32 v{b+4*i+j}, v{b+4*j+i}')
    ta={}
    for c in range(4):
        for hh in range(2): ta[(0,c,hh)]=a_read1(0,c,hh)
    a.bg_set(cfg.x.get('g2r',2),mfma_weight=2)
    TS3=cfg.x.get('ts3',10)
    for t in range(18):
        if cfg.fine==1: stamp(a,cfg,32+t)
        if t<=14:
            need(toks,t); a.wait_vm(toks[t])
        if t+1 in range(8,14):
            need(tokw,t+1); a.wait_vm(tokw[t+1])
        k_=0
        while nxt<14 and nxt-D<t and k_<2 and t<14:
            if nxt-D==t-0 and False: break
            if nxt-D>=t: break
            push_loads(nxt); nxt+=1; k_+=1
        rl_=cfg.x.get('rf_lag',7)
        if 8<=t+rl_<14: push_w2(t+rl_)
        if t==TS3+1: push_loads(14); push_loads(15)
        if t==TS3+2: push_loads(16); push_loads(17)
        b=RB(t)
        if t<14:
            for c in range(4):
                n=a.lg-ta[(t,c,1)]
                a.e(f's_waitcnt lgkmcnt({min(n,15)})')
                A=vr(V_AF+4*c,4)
                for q in range(4):
                    d=vr(V_ACC+16*q+4*c,4)
                    r=a.bg_rate
                    if q<2: a.bg_rate=0
                    a.e(f'v_mfma_f32_16x16x32_bf16 {d}, {A}, {vr(b+4*q,4)}, {d if t else 0}')
                    if q<2:
                        if c>=1 and t<13: ta[(t+1,c-1,q)]=a_read1(t+1,c-1,q)
                        if c==0 and t>=1: ta[(t,3,q)]=a_read1(t,3,q)
                    a.bg_rate=r
        else:
            psi=t-14; AFp=(V_AF2 if psi%2==0 else V_AF)
            if psi==0: swaps(14)
            for c in range(4):
                a.e(f's_waitcnt lgkmcnt({min(a.lg-tg[(psi,c)],15)})')
                for q in range(4):
                    d=vr(ACC2[q]+4*c,4)
                    a.e(f'v_mfma_f32_16x16x32_bf16 {d}, {vr(AFp+4*c,4)}, {vr(b+4*q,4)}, {d if psi else 0}')
                    if psi<3 and c==0 and q==0:
                        for c2 in range(4): g_read(psi+1,c2)
                    if psi<3 and c==1 and q==0:
                        need(toks,t+1); a.wait_vm(toks[t+1]); swaps(t+1)
        if cfg.x.get('ydefer') and t==cfg.x['ydefer']:
            a.wait_vm(tok_y); a.e('s_barrier')
        if cfg.x.get('fs3') and t==TS3-cfg.x['fs3']: a.e('s_barrier')
        if t==TS3:
            if not cfg.x.get('fs3'):
                a.bg_flush()
                a.e(f's_mov_b32 s93, {WS_CNT+16*128}')
                poll_w0(a,S_WS,'s93',NS3,128,256//NS3)
            a.e('s_barrier')
            a.e(f's_add_u32 s75, s74, {WS_G}')
            a.e(f'buffer_load_dwordx4 {vr(V_G,4)}, v5, {srd(S_WS)}, s75 offen {cfg.f("ldW")}')
            tok_g=a.vmtok()
        if t==13:
            a.e('s_barrier')
            for c in range(4): g_read(0,c)
            stamp(a,cfg,11)
    a.bg_flush(); a.bg_set(0)
    a.need_vm(tok_g)
    for q in range(4): a.e(f'v_sub_f32 v{V_G+q}, 1.0, v{V_G+q}')
    for q in range(4):
        for h in range(8):
            a.e(f'v_pk_fma_f32 {vr(V_ACC+16*q+2*h,2)}, {vr(V_ACC+16*q+2*h,2)}, {vr(V_G+(q&~1),2)}, {vr(ACC2[q]+2*h,2)} op_sel:[0,{q&1},0] op_sel_hi:[1,{q&1},1]')
    stamp(a,cfg,12)
    a.e(f'v_add_u32 v7, s71, v{V_L16}')
    for w in range(4):
        a.e(f's_cmp_lg_u32 {wv}, {w}')
        a.e(f's_cbranch_scc1 L_k3_w{w}')
        a.cond_begin()
        slot=0
        for q in range(4):
            if q==w: continue
            for c in range(4):
                a.e(f'ds_write_b128 v7, {vr(V_ACC+16*q+4*c,4)} offset:{slot*4096+c*1024}')
            slot+=1
        if w!=0:
            for h in range(8): a.e(f'v_pk_mov_b32 {vr(V_ACC+2*h,2)}, {vr(V_ACC+16*w+2*h,2)}, {vr(V_ACC+16*w+2*h,2)} op_sel:[0,1]')
        a.cond_end()
        a.e(f'L_k3_w{w}:')
    a.e('s_waitcnt lgkmcnt(0)'); a.e('s_barrier')
    V_RD=160
    for k in range(1,4):
        a.e(f"""s_add_u32 s76, {wv}, {k}
        s_and_b32 s76, s76, 3
        s_lshl_b32 s77, s76, 15
        s_cmp_lt_u32 {wv}, s76
        s_cselect_b32 s79, 0, 1
        s_sub_u32 s79, {wv}, s79
        s_lshl_b32 s79, s79, 12
        s_add_u32 s77, s77, s79
        v_add_u32 v7, s77, v{V_L16}""")
        for c in range(4): a.e(f'ds_read_b128 {vr(V_RD+16*(k-1)+4*c,4)}, v7 offset:{c*1024}')
    a.e(f"""v_lshlrev_b32 v5, 10, v1
    v_lshl_add_u32 v5, v2, 3, v5
    s_lshl_b32 s76, s72, 17
    s_lshl_b32 s77, {wv}, 15
    s_add_u32 s76, s76, s77
    s_lshl_b32 s77, s73, 14
    s_add_u32 s76, s76, s77
    s_lshl_b32 s77, s68, 7
    s_add_u32 s76, s76, s77""")
    for k in range(3):
        a.e(f's_waitcnt lgkmcnt({8-4*k})')
        for h in range(8): a.e(f'v_pk_add_f32 {vr(V_ACC+2*h,2)}, {vr(V_ACC+2*h,2)}, {vr(V_RD+16*k+2*h,2)}')
    V_O=8
    for c in range(4):
        a.e(f'v_cvt_pk_bf16_f32 v{V_O+2*c}, v{V_ACC+4*c}, v{V_ACC+4*c+1}')
        a.e(f'v_cvt_pk_bf16_f32 v{V_O+2*c+1}, v{V_ACC+4*c+2}, v{V_ACC+4*c+3}')
        a.e(f'buffer_store_dwordx2 {vr(V_O+2*c,2)}, v5, {srd(S_OUT)}, s76 offen offset:{32*c} {str(cfg.x.get("outf","")).replace("_"," ")}')

P2=dict(V_U=8,V_W=40,V_GT=48,V_Q=56,T0=64,V_F64R=80,V_F64I=96,V_F32R=112,V_F32I=128,V_T1C=144,V_T1S=152,V_T3C=160,V_T3S=168,V_DR=176,V_DI=184,V_B=192)
V_FW2D=246
def f_stream(a,cfg,end):
    a.e('L_F:')
    a.e('s_mov_b32 s90, 1')
    if cfg.x.get('fprio'): a.e(f's_setprio {cfg.x["fprio"]}')
    a.e(f'''s_lshr_b32 s49, s2, 5
    s_and_b32 s50, s2, 31
    s_lshl_b32 s51, s6, 17
    s_lshl_b32 s56, {wv}, 13
    s_add_u32 s51, s51, s56
    s_mul_i32 s52, s7, 224
    s_mul_i32 s56, {wv}, 14336
    s_add_u32 s52, s52, s56
    s_lshl_b32 s53, {wv}, 10
    s_mul_i32 s54, {wv}, 960
    s_add_u32 s54, s54, 16384''')
    T=6; V_XD=4; V_WD=5
    a.e(f'''v_lshrrev_b32 v{T}, 3, v0
    v_lshlrev_b32 v{V_XD}, 10, v{T}
    v_lshrrev_b32 v{T}, 1, v{T}
    s_and_b32 s56, {wv}, 1
    s_lshl_b32 s56, s56, 2
    v_add_u32 v{T}, s56, v{T}
    v_and_b32 v{T+1}, 7, v0
    v_xor_b32 v{T}, v{T}, v{T+1}
    v_lshl_add_u32 v{V_XD}, v{T}, 4, v{V_XD}
    v_mul_u32_u24 v{T}, 4682, v0
    v_lshrrev_b32 v{T}, 16, v{T}
    v_mul_u32_u24 v{V_WD}, 3584, v{T}
    v_mul_u32_u24 v{T}, 14, v{T}
    v_sub_u32 v{T}, v0, v{T}
    v_lshl_add_u32 v{V_WD}, v{T}, 4, v{V_WD}
    v_mov_b32 v{V_LC}, {LC_BASE}''')
    a.e(f'''s_lshl_b32 s56, s49, 18
    s_lshl_b32 s57, s50, 10
    s_add_u32 s56, s56, s57
    s_lshl_b32 s57, {wv}, 16
    s_add_u32 s56, s56, s57
    s_add_u32 s58, s56, 32768
    s_mul_i32 s57, {wv}, {2*XA_PITCH}
    s_add_u32 s57, s57, {XA_BASE}''')
    a.e('s_waitcnt lgkmcnt(0)')
    stamp(a,cfg,26)
    a.e(f's_cmp_lg_u32 {wv}, 0'); a.e('s_cbranch_scc1 L_a_r0'); a.cond_begin()
    a.e(f's_mov_b32 m0, {GW_LDS}'); a.e('s_nop 0')
    a.e(f'buffer_load_dwordx4 v{V_L16}, {srd(S_GW)}, 0 offen lds')
    a.cond_end(); a.e('L_a_r0:')
    a.e(f's_cmp_lg_u32 {wv}, 1'); a.e('s_cbranch_scc1 L_a_r1'); a.cond_begin()
    a.e(f's_mul_i32 s64, s7, 224'); a.e(f's_mov_b32 m0, {B1_LDS}'); a.e('s_mov_b64 exec, 0x3fff')
    a.e(f'buffer_load_dwordx4 v{V_L16}, {srd(S_B1)}, s64 offen lds')
    a.e('s_mov_b64 exec, -1')
    a.cond_end(); a.e('L_a_r1:')
    tok_c={}
    def chunk_groups(c):
        gs=[]
        for u in range(4):
            gs.append(([f's_add_u32 m0, s53, {SB(c)+u*4096}', f's_add_u32 s55, s51, {u*32768+c*128}',
                        f'buffer_load_dwordx4 v{V_XD}, {srd(S_X)}, s55 offen lds'],None))
        for u in range(4):
            cb=(lambda c=c: tok_c.__setitem__(c,a.vmtok())) if u==3 else None
            gs.append(([f's_add_u32 m0, s54, {SB(c)+u*3840}', f's_add_u32 s55, s52, {u*57344+c*229376}',
                        's_mov_b32 exec_hi, 0x00ffffff',
                        f'buffer_load_dwordx4 v{V_WD}, {srd(S_W1)}, s55 offen lds',
                        's_mov_b32 exec_hi, -1'],cb))
        return gs
    def push_chunk(c):
        for g_ in chunk_groups(c): a.bg_push(*g_)
    def wait_role(tok,e3,e2):
        n=a.vm-tok; lab=f'L_wr{len(a.items)}'
        a.e(f's_cmp_eq_u32 {wv}, 3'); a.e(f's_cbranch_scc1 {lab}_3')
        a.e('s_cmp_eq_u32 s66, 0'); a.e(f's_cbranch_scc1 {lab}_2')
        a.e(f's_waitcnt vmcnt({n})'); a.e(f's_branch {lab}_e')
        a.e(f'{lab}_3:'); a.e(f's_waitcnt vmcnt({min(n+e3,62)})'); a.e(f's_branch {lab}_e')
        a.e(f'{lab}_2:'); a.e(f's_waitcnt vmcnt({min(n+e2,62)})')
        a.e(f'{lab}_e:')
    def chunk_now(c):
        if cfg.fine==3: stamp(a,cfg,48+2*c%16 if False else 40+c)
        push_chunk(c); a.bg_flush()
        if cfg.fine==3: stamp(a,cfg,50+c)
    if not cfg.x.get('xaearly'):
        a.e(f'''s_mov_b32 m0, s57
        s_add_u32 s57, s57, {XA_PITCH}
        buffer_load_dwordx4 v{V_L16}, {srd(S_X)}, s56 offen lds
        s_mov_b32 m0, s57
        s_nop 0
        buffer_load_dwordx4 v{V_L16}, {srd(S_X)}, s58 offen lds''')
    tok_xa=a.vmtok()
    st={'roles':None,'wt':None}
    V={}
    def do_roles(c):
        st['roles']=c
        a.e('''s_lshr_b32 s59, s50, 3
        s_lshr_b32 s60, s50, 2
        s_and_b32 s60, s60, 1
        s_and_b32 s61, s50, 3
        s_lshl_b32 s62, s59, 4
        s_lshl_b32 s63, s60, 10
        s_add_u32 s62, s62, s63
        s_lshl_b32 s63, s61, 8
        s_add_u32 s62, s62, s63
        s_lshl_b32 s63, s59, 11
        s_lshl_b32 s64, s60, 10
        s_add_u32 s63, s63, s64
        s_lshl_b32 s64, s61, 8
        s_add_u32 s63, s63, s64''')
        V_WR=8; V_WI=24; V_WO=7
        a.e(f's_cmp_lg_u32 {wv}, {9 if cfg.x.get("x_norole") else 3}'); a.e('s_cbranch_scc1 L_a_r3'); a.cond_begin()
        a.e(f'''v_lshrrev_b32 v{V_WO}, 2, v0
        v_mul_u32_u24 v{V_WO}, 514, v{V_WO}
        v_and_b32 v{T}, 3, v0
        v_lshl_add_u32 v{V_WO}, v{T}, 4, v{V_WO}
        s_mul_i32 s64, s62, 514
        s_lshl_b32 s65, s49, 6
        s_add_u32 s64, s64, s65''')
        for r in range(4):
            a.e(f'buffer_load_dwordx4 {vr(V_WR+4*r,4)}, v{V_WO}, {srd(S_WR)}, s64 offen')
            a.e(f'buffer_load_dwordx4 {vr(V_WI+4*r,4)}, v{V_WO}, {srd(S_WI)}, s64 offen')
            if r<3: a.e(f's_add_u32 s64, s64, {64*514}')
        a.cond_end(); a.e('L_a_r3:')
        V_SP=40; V_J=48; V_JR=49
        a.e(f'''s_lshl_b32 s65, s49, 2
        s_xor_b32 s66, {wv}, 2
        s_or_b32 s66, s66, s65''')
        a.e('s_cmp_lg_u32 s66, 0'); a.e('s_cbranch_scc1 L_a_r2'); a.cond_begin()
        a.e(f'''v_lshlrev_b32 v{V_J}, 6, v2
        v_add_u32 v{V_J}, v{V_J}, v1
        v_add_u32 v{V_J}, s62, v{V_J}
        v_sub_u32 v{V_JR}, 2048, v{V_J}
        v_and_b32 v{V_JR}, 2047, v{V_JR}
        v_mul_u32_u24 v{V_J}, 514, v{V_J}
        v_mul_u32_u24 v{V_JR}, 514, v{V_JR}''')
        for n,(S,vv,off) in enumerate([(S_WR,V_J,0),(S_WR,V_J,512),(S_WR,V_JR,0),(S_WR,V_JR,512),(S_WI,V_J,0),(S_WI,V_J,512),(S_WI,V_JR,0),(S_WI,V_JR,512)]):
            a.e(f'buffer_load_ushort v{V_SP+n}, v{vv}, {srd(S)}, 0 offen offset:{off}')
        a.cond_end(); a.e('L_a_r2:')
        tok_role=a.vmtok()
        V.update(V_WR=V_WR,V_WI=V_WI,V_SP=V_SP,tok_role=tok_role)
    def do_wt(c):
        st['wt']=c
        T0=92; V_B1S=68; V_WR=V['V_WR']; V_WI=V['V_WI']; V_SP=V['V_SP']; tok_role=V['tok_role']
        a.e(f's_cmp_lg_u32 {wv}, {9 if cfg.x.get("x_norole") else 3}'); a.e('s_cbranch_scc1 L_a_w3')
        a.wait_vm(tok_role); a.cond_begin()
        V_WP=188
        a.e('s_mov_b32 s78, 0x05040100'); a.e('s_mov_b32 s79, 0x07060302')
        for kk in range(8):
            for r in range(4):
                a.e(f'v_perm_b32 v{V_WP+4*kk+r}, v{V_WI+4*r+(kk>>1)}, v{V_WR+4*r+(kk>>1)}, s{78+(kk&1)}')
        a.e(f'''v_and_b32 v{T0+4}, 3, v0
        v_lshlrev_b32 v{T0+5}, 16, v{T0+4}
        v_lshrrev_b32 v{T0+6}, 2, v0
        v_lshl_add_u32 v{T0+5}, v{T0+6}, 4, v{T0+5}
        s_lshl_b32 s76, s49, 2
        v_add_u32 v{T0+4}, s76, v{T0+4}
        v_cmp_eq_u32 vcc, 0, v{T0+4}
        v_mov_b32 v{T0+6}, {OOB}
        v_cndmask_b32 v{T0+6}, v{T0+5}, v{T0+6}, vcc
        s_lshl_b32 s76, s49, 18
        s_add_u32 s76, s76, s63
        s_add_u32 s76, s76, {WS_WT}''')
        for kk in range(8):
            a.e(f'buffer_store_dwordx4 {vr(V_WP+4*kk,4)}, v{T0+6 if kk==0 else T0+5}, {srd(S_WS)}, s76 offen {cfg.f("stW")}')
            if kk<7: a.e('s_add_u32 s76, s76, 8192')
        a.cond_end(); a.e('L_a_w3:')
        a.e('s_cmp_lg_u32 s66, 0'); a.e('s_cbranch_scc1 L_a_w2')
        a.wait_vm(tok_role); a.cond_begin()
        for n in range(8): a.e(f'v_lshlrev_b32 v{V_SP+n}, 16, v{V_SP+n}')
        s=V_SP; t=V_B1S
        a.e(f'''v_add_f32 v{t}, v{s}, v{s+2}
        v_add_f32 v{t+1}, v{s+1}, v{s+3}
        v_sub_f32 v{t+2}, v{s+4}, v{s+6}
        v_sub_f32 v{t+3}, v{s+5}, v{s+7}
        v_add_f32 v{t+4}, v{t}, v{t+1}
        v_add_f32 v{t+5}, v{t+2}, v{t+3}
        v_sub_f32 v{t+6}, v{t}, v{t+1}
        v_sub_f32 v{t+7}, v{t+2}, v{t+3}
        v_mul_f32 v{t+4}, {fl(0.25)}, v{t+4}
        v_mul_f32 v{t+5}, {fl(0.25)}, v{t+5}
        v_mul_f32 v{t+6}, {fl(0.25)}, v{t+6}
        v_mul_f32 v{t+7}, {fl(0.25)}, v{t+7}
        v_cvt_pk_bf16_f32 v{t}, v{t+4}, v{t+5}
        v_cvt_pk_bf16_f32 v{t+1}, v{t+6}, v{t+7}
        v_lshlrev_b32 v{t+2}, 4, v1
        v_lshl_add_u32 v{t+2}, v2, 2, v{t+2}
        s_add_u32 s77, s63, {WS_QT}
        s_add_u32 s76, s63, {WS_WT}
        buffer_store_dword v{t}, v{t+2}, {srd(S_WS)}, s76 offen {cfg.f("stW")}
        buffer_store_dword v{t+1}, v{t+2}, {srd(S_WS)}, s77 offen {cfg.f("stW")}''')
        a.cond_end(); a.e('L_a_w2:')
    RL=cfg.x.get('rl_after',5); WT=cfg.x.get('wt_after',7)
    def chunk_plus(c):
        chunk_now(c)
        if RL==c: do_roles(c)
        if WT==c: do_wt(c)
    def wait_chunk(c):
        e3=e2=0
        if st['roles'] is not None and st['roles']>=c: e3+=8; e2+=8
        if st['wt'] is not None and st['wt']>=c: e3+=8; e2+=2
        if e3==0: a.wait_vm(tok_c[c])
        else: wait_role(tok_c[c],e3,e2)
    a.e(f'''s_lshl_b32 s65, s49, 2
    s_xor_b32 s66, {wv}, 2
    s_or_b32 s66, s66, s65''')
    chunk_plus(0)
    chunk_plus(1)
    if cfg.x.get('fprio'): a.e('s_setprio 0')
    stamp(a,cfg,0)
    a.wait_vm(tok_xa); a.e('s_barrier')
    stamp(a,cfg,1)
    chunk_plus(2)
    wait_chunk(0); a.e('s_barrier')
    chunk_plus(3)
    wait_chunk(1); a.e('s_barrier')
    chunk_plus(4)
    wait_chunk(2); a.e('s_barrier')
    chunk_plus(5)
    wait_chunk(3); a.e('s_barrier')
    chunk_plus(6)
    wait_chunk(4); a.e('s_barrier')
    chunk_plus(7)
    wait_chunk(5); a.e('s_barrier')
    m_g2_ids(a,cfg)
    w2_dma_addr(a,V_FW2D,244)
    wait_chunk(6); a.e('s_barrier')
    a.e('s_waitcnt vmcnt(0)'); a.e('s_barrier')
    a.e('s_and_b32 s92, s5, 3'); a.e('s_lshl_b32 s92, s92, 6')
    ssignal(a,S_DBG,'s92')
    a.e('s_barrier')
    stamp(a,cfg,4)
    def w2slots(lo,hi):
        for t in range(lo,hi):
            for v in range(4): a.bg_push(w2_group(t,v,V_FW2D))
        a.bg_flush()
    w2slots(0,cfg.x.get('w2pre',4))
    stamp(a,cfg,5)
    a.e(f's_cmp_lg_u32 {wv}, 0'); a.e('s_cbranch_scc1 L_f_s1'); a.cond_begin()
    if cfg.x.get('s1drain',1): a.e('s_waitcnt vmcnt(0)')
    a.e('s_mov_b32 s93, 0')
    spin_global(a,S_DBG,'s93',4,64,64)
    p2_t_loads(a,cfg)

    a.cond_end(); a.e('L_f_s1:')
    stamp(a,cfg,6)
    a.e('s_waitcnt vmcnt(0)'); a.e('s_barrier')
    a.e(f's_lshl_b32 s92, s6, 7'); a.e(f's_add_u32 s92, s92, {WS_CNT}')
    ssignal(a,S_WS,'s92')
    stamp(a,cfg,7)
    w2slots(cfg.x.get('w2pre',4),8)
    a.e('s_waitcnt vmcnt(0)'); a.e('s_barrier')
    a.e('s_lshl_b32 s56, s4, 5'); a.e('s_add_u32 s56, s56, s5')
    a.e('s_cmp_lg_u32 s56, 0'); a.e('s_cbranch_scc1 L_f_nospec'); a.cond_begin()
    a.e('s_barrier')
    a.cond_end(); a.e('L_f_nospec:')
    a.e(f's_lshl_b32 s93, s72, 7'); a.e(f's_add_u32 s93, s93, {WS_CNT}')
    poll_w0(a,S_WS,'s93',1,0,16)
    a.e('s_barrier')
    if cfg.x.get('ydefer'): a.e('s_barrier')
    a.e(f's_and_b32 s92, s2, {NS3-1}'); a.e('s_lshl_b32 s92, s92, 7'); a.e(f's_add_u32 s92, s92, {WS_CNT+16*128}')
    ssignal(a,S_WS,'s92')
    T0=80; TA=92
    a.e(f"""s_lshl_b32 s75, s68, 6
    v_add_u32 v{T0}, s75, v1
    v_cvt_f32_u32 v{T0}, v{T0}
    s_lshl_b32 s75, {wv}, 6
    v_lshlrev_b32 v{T0+1}, 2, v2
    v_add_u32 v{T0+1}, s75, v{T0+1}
    v_cvt_f32_u32 v{T0+1}, v{T0+1}""")
    for c in range(4):
        a.e(f'v_add_f32 v{T0+2+c}, {fl(16*c)}, v{T0}' if c else f'v_mov_b32 v{T0+2}, v{T0}')
        a.e(f'v_mul_f32 v{T0+2+c}, {fl(1/512)}, v{T0+2+c}')
        a.e(f'v_mul_f32 v{T0+6+c}, v{T0+1}, v{T0+2+c}')
    def pk(d): return lambda c,s: a.e(f'v_cvt_pk_bf16_f32 v{d}, v{c}, v{s}')
    angles(a,[(T0+2+c,T0+6+c,16*psi+u,(None,None,pk(V_GF+16*psi+4*c+u)),False) for (psi,c,u) in G_ITEMS],TA)
    a.e(f"""s_cmp_eq_u32 {wv}, 0
    s_cselect_b32 s76, 0xffff, 0
    s_mov_b32 s77, 0
    v_mov_b32 v{T0}, {hex(0xBF003F00)}
    v_and_b32 v{T0+1}, 1, v1
    v_lshlrev_b32 v{T0+1}, 31, v{T0+1}
    v_xor_b32 v{T0}, v{T0}, v{T0+1}""")
    for c in range(4): a.e(f'v_cndmask_b32 v{V_GF+4*c}, v{V_GF+4*c}, v{T0}, s[76:77]')
    a.e(f'v_add_u32 v7, s71, v{V_L16}')
    if cfg.x.get('fs3'):
        a.e('s_barrier')
        a.e(f's_mov_b32 s93, {WS_CNT+16*128}')
        poll_w0(a,S_WS,'s93',NS3,128,256//NS3)
    a.e('s_barrier')
    for psi in range(4):
        for c in range(4):
            a.e(f'ds_write_b128 v7, {vr(V_GF+16*psi+4*c,4)} offset:{GSLOT[psi]*4096+c*1024}')
    a.e('s_waitcnt lgkmcnt(0)'); a.e('s_barrier')
    stamps_flush(a,cfg)
    a.e(f's_branch {end}')

def p2_t_loads(a,cfg):
    T0=64
    a.e(f'''s_lshl_b32 s56, s4, 5
    s_add_u32 s56, s56, s5
    v_lshrrev_b32 v{T0}, 5, v0
    v_lshlrev_b32 v{T0}, 18, v{T0}
    v_bfe_u32 v{T0+1}, v0, 1, 4
    v_lshl_add_u32 v{T0}, v{T0+1}, 13, v{T0}
    v_and_b32 v{T0+1}, 1, v0
    v_lshl_add_u32 v{T0}, v{T0+1}, 4, v{T0}
    s_lshl_b32 s57, s56, 5
    s_add_u32 s57, s57, {WS_T}''')
    for ks in range(4):
        for mb in range(2):
            a.e(f's_mov_b32 m0, {TB_BASE+2048*ks+1024*mb}')
            a.e(f's_add_u32 s58, s57, {ks*524288+mb*131072}')
            a.e(f'buffer_load_dwordx4 v{T0}, {srd(S_WS)}, s58 offen {cfg.f("ldT")} lds')
    a.e(f's_lshl_b32 s57, s56, 13'); a.e(f's_add_u32 s57, s57, {WS_WT}')
    for j in range(8):
        a.e(f's_mov_b32 m0, {WB_BASE+1024*j}')
        a.e(f's_add_u32 s58, s57, {1024*j}')
        a.e(f'buffer_load_dwordx4 v{V_L16}, {srd(S_WS)}, s58 offen {cfg.f("ldW")} lds')

def p2_small_loads(a,cfg):
    V_W,V_GT,V_Q,T0=P2['V_W'],P2['V_GT'],P2['V_Q'],P2['T0']
    a.e(f'''s_lshl_b32 s56, s4, 5
    s_add_u32 s56, s56, s5
    s_lshl_b32 s60, s56, 13
    s_lshl_b32 s61, {wv}, 11
    s_add_u32 s60, s60, s61
    s_add_u32 s62, s60, {WS_WT}
    s_add_u32 s63, s61, {WS_G}
    s_add_u32 s64, s61, {WS_QT}''')
    for nb in range(2): a.e(f'buffer_load_dwordx4 {vr(V_GT+4*nb,4)}, v{V_L16}, {srd(S_WS)}, s63 offen offset:{1024*nb} {cfg.f("ldW")}')
    a.e(f'''s_cmp_eq_u32 s56, 0
    s_cselect_b32 s65, 0, {OOB}
    v_add_u32 v{T0+2}, s65, v{V_L16}''')
    for eh in range(2): a.e(f'buffer_load_dwordx4 {vr(V_Q+4*eh,4)}, v{T0+2}, {srd(S_WS)}, s64 offen offset:{1024*eh} {cfg.f("ldW")}')

def p2_table_parts(a,cfg):
    p=P2; T0=232; TA=200
    def pk(dr,di):
        def f(c,s):
            a.e(f'v_cvt_pk_bf16_f32 v{dr}, v{c}, v{s}')
            a.e(f'v_cvt_pk_bf16_f32 v{di}, -v{s}, v{c}')
        return f
    def part0():
        a.e(f'''s_lshl_b32 s83, {wv}, 4
        v_add_u32 v{T0}, s83, v1
        v_cvt_f32_u32 v{T0}, v{T0}
        v_lshlrev_b32 v{T0+2}, 2, v2
        v_cvt_f32_u32 v{T0+2}, v{T0+2}
        v_mul_f32 v{T0+1}, {fl(1/64)}, v{T0}
        v_mul_f32 v{T0+3}, v{T0+2}, v{T0+1}''')
        angles(a,[(T0+1,T0+3,16*ks+u,(None,None,pk(p['V_F64R']+4*ks+u,p['V_F64I']+4*ks+u)),False) for ks in range(3) for u in range(4)],TA)
    def part1():
        angles(a,[(T0+1,T0+3,16*ks+u,(None,None,pk(p['V_F64R']+4*ks+u,p['V_F64I']+4*ks+u)),False) for ks in range(3,4) for u in range(4)],TA)
        a.e(f'''v_mul_f32 v{T0+1}, {fl(1/2048)}, v{T0}
        v_mul_f32 v{T0+3}, v{T0+2}, v{T0+1}''')
        angles(a,[(T0+1,T0+3,16*mb+r,(p['V_T1C']+4*mb+r,p['V_T1S']+4*mb+r,None),True) for mb in range(2) for r in range(4)],TA)
    def part2():
        a.e(f'v_cvt_f32_u32 v{T0+7}, v1')
        for eh in range(2):
            a.e(f'''v_add_f32 v{T0+1}, {fl(16*eh)}, v{T0+7}
            v_mul_f32 v{T0+1}, {fl(1/32)}, v{T0+1}
            v_mul_f32 v{T0+3}, v{T0+2}, v{T0+1}''')
            angles(a,[(T0+1,T0+3,16*mb+u,(None,None,pk(p['V_F32R']+8*eh+4*mb+u,p['V_F32I']+8*eh+4*mb+u)),False) for mb in range(2) for u in range(4)],TA)
    def part3():
        a.e(f'''v_cvt_f32_u32 v{T0}, s83
        v_add_f32 v{T0+2}, v{T0}, v{T0+2}''')
        for nb in range(2):
            a.e(f'''v_add_f32 v{T0+1}, {fl(16*nb)}, v{T0+7}
            v_mul_f32 v{T0+1}, {fl(1/2048)}, v{T0+1}
            v_mul_f32 v{T0+3}, v{T0+2}, v{T0+1}''')
            angles(a,[(T0+1,T0+3,r,(p['V_T3C']+4*nb+r,p['V_T3S']+4*nb+r,None),True) for r in range(4)],TA)
    return [part0,part1,part2,part3]

def p2_compute(a,cfg,tok_w):
    p=P2
    V_U,V_W,V_GT,T0=p['V_U'],p['V_W'],p['V_GT'],p['T0']
    V_F64R,V_F64I,V_F32R,V_F32I=p['V_F64R'],p['V_F64I'],p['V_F32R'],p['V_F32I']
    V_T1C,V_T1S,V_T3C,V_T3S=p['V_T1C'],p['V_T1S'],p['V_T3C'],p['V_T3S']
    V_DR,V_DI,V_B=p['V_DR'],p['V_DI'],p['V_B']; TT=200
    a.e(f'''v_lshrrev_b32 v{T0+4}, 1, v2
    v_lshlrev_b32 v{T0+4}, 5, v{T0+4}
    v_lshl_add_u32 v{T0+4}, v1, 1, v{T0+4}
    v_and_b32 v{T0+5}, 1, v2
    v_add_u32 v{T0+4}, v{T0+4}, v{T0+5}
    v_lshlrev_b32 v{T0+4}, 4, v{T0+4}
    v_add_u32 v{T0+4}, {TB_BASE}, v{T0+4}''')
    for ks in range(4):
        for mb in range(2):
            a.e(f'ds_read_b128 {vr(V_U+16*mb+4*ks,4)}, v{T0+4} offset:{2048*ks+1024*mb}')
    V_WR=216; V_WI=224
    a.e(f's_lshl_b32 s65, {wv}, 11'); a.e(f's_add_u32 s65, s65, {WB_BASE}'); a.e(f'v_add_u32 v{T0+6}, s65, v{V_L16}')
    for eh in range(2): a.e(f'ds_read_b128 {vr(V_W+4*eh,4)}, v{T0+6} offset:{1024*eh}')
    for ks in range(4):
        a.e(f's_waitcnt lgkmcnt({8-2*ks})')
        for mb in range(2):
            A=vr(V_U+16*mb+4*ks,4)
            for (D,Fm) in((V_DR,V_F64R),(V_DI,V_F64I)):
                d=vr(D+4*mb,4)
                a.e(f'v_mfma_f32_16x16x32_bf16 {d}, {A}, {vr(Fm+4*ks,4)}, {d if ks else 0}')
    a.e('s_waitcnt lgkmcnt(0)')
    for e in range(8):
        a.e(f'v_lshlrev_b32 v{V_WR+e}, 16, v{V_W+e}')
        a.e(f'v_and_b32 v{V_WI+e}, 0xffff0000, v{V_W+e}')
    for mb in range(2): cmul_pack(a,V_DR+4*mb,V_DI+4*mb,V_T1C+4*mb,V_T1S+4*mb,V_B+4*mb,TT)
    for mb in range(2):
        for eh in range(2):
            for (D,Fm) in((V_DR,V_F32R),(V_DI,V_F32I)):
                d=vr(D+4*eh,4)
                a.e(f'v_mfma_f32_16x16x32_bf16 {d}, {vr(Fm+8*eh+4*mb,4)}, {vr(V_B+4*mb,4)}, {d if mb else 0}')
    a.e(f'''s_lshl_b32 s65, {wv}, 11
    s_add_u32 s65, s65, {XB_BASE}
    v_add_u32 v{T0+4}, s65, v{V_L16}
    v_add_u32 v{T0+5}, {XB_BASE}, v{V_L16}''')
    a.e('s_cmp_lg_u32 s56, 0')
    a.e('s_cbranch_scc0 L_p2_special')
    for eh in range(2): cmul_pack(a,V_DR+4*eh,V_DI+4*eh,V_WR+4*eh,V_WI+4*eh,V_B+4*eh,TT,negim=True)
    a.e('L_p2_join:')
    for ks in range(2):
        for nb in range(2):
            for (D,Fm) in((V_DR,V_F32R),(V_DI,V_F32I)):
                d=vr(D+4*nb,4)
                a.e(f'v_mfma_f32_16x16x32_bf16 {d}, {vr(V_B+4*ks,4)}, {vr(Fm+8*nb+4*ks,4)}, {d if ks else 0}')
    for nb in range(2):
        cmul_pack(a,V_DR+4*nb,V_DI+4*nb,V_T3C+4*nb,V_T3S+4*nb,V_B+4*nb,TT)
        a.e(f'ds_write_b128 v{T0+4}, {vr(V_B+4*nb,4)} offset:{1024*nb}')
    a.e('s_waitcnt lgkmcnt(0)')
    a.e('s_barrier')
    V_X=V_U
    for ks in range(4):
        for nb in range(2):
            a.e(f'ds_read_b128 {vr(V_X+8*ks+4*nb,4)}, v{T0+5} offset:{2048*ks+1024*nb}')
    for ks in range(4):
        a.e(f's_waitcnt lgkmcnt({6-2*ks})')
        for nb in range(2):
            for (D,Fm) in((V_DR,V_F64R),(V_DI,V_F64I)):
                d=vr(D+4*nb,4)
                a.e(f'v_mfma_f32_16x16x32_bf16 {d}, {vr(Fm+4*ks,4)}, {vr(V_X+8*ks+4*nb,4)}, {d if ks else 0}')
    a.wait_vm(tok_w)
    for e in range(8): a.e(f'v_mul_f32 v{V_GT+e}, {fl(2.0**-19)}, v{V_GT+e}')
    a.e(f's_add_u32 s62, s60, {WS_Y}')
    for nb in range(2):
        for h in range(2):
            a.e(f'v_pk_mul_f32 {vr(V_DR+4*nb+2*h,2)}, {vr(V_DR+4*nb+2*h,2)}, {vr(V_GT+4*nb+2*h,2)}')
            a.e(f'v_pk_mul_f32 {vr(V_DI+4*nb+2*h,2)}, {vr(V_DI+4*nb+2*h,2)}, {vr(V_GT+4*nb+2*h,2)}')
        for r in range(4): a.e(f'v_cvt_pk_bf16_f32 v{V_B+4*nb+r}, v{V_DR+4*nb+r}, v{V_DI+4*nb+r}')
        if not cfg.x.get('ydefer'): a.e(f'buffer_store_dwordx4 {vr(V_B+4*nb,4)}, v{V_L16}, {srd(S_WS)}, s62 offen offset:{1024*nb} {cfg.f("stY")}')

def p2_special(a,cfg):
    p=P2
    V_U,V_Q,T0,V_DR,V_DI,V_B=p['V_U'],p['V_Q'],p['T0'],p['V_DR'],p['V_DI'],p['V_B']
    V_WR=216; V_WI=224
    a.e('L_p2_special:')
    a.cond_begin()
    a.e('s_waitcnt vmcnt(0)')
    V_J=T0+8; V_ZA=V_U+16
    a.e(f'''s_lshl_b32 s65, {wv}, 4
    v_lshlrev_b32 v{V_J}, 8, v2
    v_add3_u32 v{V_J}, v{V_J}, v1, s65''')
    for eh in range(2):
        for r in range(4):
            n=1024*eh+64*r
            a.e(f'v_add_u32 v{T0}, {n}, v{V_J}')
            a.e(f'v_lshlrev_b32 v{T0}, 2, v{T0}')
            a.e(f'v_cvt_pk_bf16_f32 v{T0+2}, v{V_DR+4*eh+r}, v{V_DI+4*eh+r}')
            a.e(f'v_add_u32 v{T0}, {ZR_BASE}, v{T0}')
            a.e(f'ds_write_b32 v{T0}, v{T0+2}')
    a.e('s_waitcnt lgkmcnt(0)')
    a.e('s_barrier')
    for eh in range(2):
        for r in range(4):
            n=1024*eh+64*r
            a.e(f'v_sub_u32 v{T0}, {2048-n}, v{V_J}')
            a.e(f'v_and_b32 v{T0}, 2047, v{T0}')
            a.e(f'v_lshlrev_b32 v{T0}, 2, v{T0}')
            a.e(f'v_add_u32 v{T0}, {ZR_BASE}, v{T0}')
            a.e(f'ds_read_b32 v{V_ZA+4*eh+r}, v{T0}')
    a.e('s_waitcnt lgkmcnt(0)')
    for e in range(8):
        zr=V_DR+e; zi=V_DI+e; pr=V_WR+e; pi=V_WI+e; ar_=T0+6; ai=T0+7
        qr=T0; qi=T0+1; yr=T0+2; yi=T0+3
        a.e(f'''v_lshlrev_b32 v{qr}, 16, v{V_Q+e}
        v_and_b32 v{qi}, 0xffff0000, v{V_Q+e}
        v_lshlrev_b32 v{ar_}, 16, v{V_ZA+e}
        v_and_b32 v{ai}, 0xffff0000, v{V_ZA+e}
        v_mul_f32 v{yr}, v{zr}, v{pr}
        v_fma_f32 v{yr}, -v{zi}, v{pi}, v{yr}
        v_fma_f32 v{yr}, v{ar_}, v{qr}, v{yr}
        v_fma_f32 v{yr}, v{ai}, v{qi}, v{yr}
        v_mul_f32 v{yi}, v{zr}, v{pi}
        v_fma_f32 v{yi}, v{zi}, v{pr}, v{yi}
        v_fma_f32 v{yi}, v{ar_}, v{qi}, v{yi}
        v_fma_f32 v{yi}, -v{ai}, v{qr}, v{yi}
        v_cvt_pk_bf16_f32 v{V_B+e}, v{yr}, -v{yi}''')
    a.cond_end()
    a.e('s_branch L_p2_join')

HEADER='''; out = g * irfft2(rfft2(x) * W) + (1 - g) * (mish(x w1 + b1) w2),  g = sigmoid(x . gate_w)      (x: 2048 x 512, bf16)
;
;   waves 4-7 ("F", feeder waves): all LDS-DMA of the GEMM1 operand ring, W transpose, w2 ring prefetch, DFT-matrix fragments,
;       hand-off signals.
; Hand-offs between workgroups go through d_ws with write-through (sc1) stores / sc1 loads and counters:
'''
def build(stamps=False,off=(),**kw):
    cfg=Cfg(); cfg.stamps=stamps; cfg.off=set(off); cfg.x=kw; cfg.fine=kw.get('fine',0)
    label=NAME+'_kernel'
    a=Asm(); end='L_end'
    prologue(a,cfg,end)
    sv=(a.vm,a.lg)
    if kw.get('ffirst'):
        f_stream(a,cfg,end)
        nbF=sum(1 for i in a.items if i.op=='s_barrier'); n0=len(a.items)
        a.vm,a.lg=sv; a.bg_rate=0; assert not a.bg
        a.e('L_M:')
        m_stream(a,cfg,end)
        nbM=sum(1 for i in a.items[n0:] if i.op=='s_barrier')
    else:
        m_stream(a,cfg,end)
        nbM=sum(1 for i in a.items if i.op=='s_barrier'); n0=len(a.items)
        a.vm,a.lg=sv; a.bg_rate=0; assert not a.bg
        f_stream(a,cfg,end)
        nbF=sum(1 for i in a.items[n0:] if i.op=='s_barrier')
    a.e(f'{end}:'); a.e('s_endpgm')
    txt=a.text()
    errs=[]
    for role in (False,True):
        jump=lambda t: (role and t=='L_F') or ((not role) and t=='L_M')
        for nm,pol in (('fall',lambda i,n:i.target.endswith('_done') or jump(i.target)),
                       ('taken',lambda i,n:((not i.target.startswith('L_end')) and n==0 and (i.target not in('L_F','L_M') or jump(i.target))))):
            errs+=verify_waits(a.out,pol,('F' if role else 'M')+nm)
    for e in sorted(set(errs))[:30]: print('WAITERR',e,file=sys.stderr)
    print(dict(a.count()),'barriers M',nbM,'F',nbF,file=sys.stderr)
    out=HEADER+f'; @launch grid=(256,1,1) block=(512,1,1) lds={LDS_TOTAL}\n'
    out+='.amdgcn_target "amdgcn-amd-amdhsa--gfx950"\n.text\n'
    out+=f'.globl {label}\n.p2align 8\n.type {label},@function\n{label}:\n{txt}'
    out+=f'''.section .rodata,"a"
.p2align 6
.amdhsa_kernel {label}
  .amdhsa_next_free_vgpr 256
  .amdhsa_next_free_sgpr 102
  .amdhsa_accum_offset 256
  .amdhsa_group_segment_fixed_size 0
  .amdhsa_kernarg_size 88
  .amdhsa_user_sgpr_count 2
  .amdhsa_user_sgpr_kernarg_segment_ptr 1
  .amdhsa_system_sgpr_workgroup_id_x 1
.end_amdhsa_kernel
'''
    return out

if __name__=='__main__':
    mode=sys.argv[1] if len(sys.argv)>1 else 'persist'
    kw={}
    for x in sys.argv[3:]:
        k,v=x.split('='); kw[k]=int(v) if v.lstrip('-').isdigit() else v
    off=kw.pop('off','').split(',') if 'off' in kw else ()
    txt=build(stamps=(mode=='stamps'),off=off,**kw)
    open(sys.argv[2] if len(sys.argv)>2 else 'out.s','w').write(txt)
```

```python
import sys, os, struct
from dsl import Asm, verify_waits

NAME='gated_mix__spectral_gfnet__dense_activation_mish__prompt'
WS_T   =0x000000
WS_WT  =0x200000
WS_QT  =0x400000
WS_G   =0x402000
WS_CNT =0x404000
WS_Y   =0x600000
WS_ACT =0x800000
WS_STAMP=0x1000000
WS_SIZE=0x1080000
RT_STRIDE=56*4096
S_X,S_WR,S_WI,S_W1,S_B1,S_W2,S_GW,S_OUT,S_WS,S_DBG=8,12,16,20,24,28,32,36,40,44
def srd(n): return f's[{n}:{n+3}]'
SRDS=[(S_X,0,2048*1024),(S_WR,8,2048*514),(S_WI,16,2048*514),(S_W1,32,512*3584),(S_B1,40,3584),
      (S_W2,48,1792*1024),(S_GW,56,1024),(S_OUT,64,2048*1024),(S_WS,80,WS_SIZE),(S_DBG,72,256)]
def vr(b,n=1): return f'v{b}' if n==1 else f'v[{b}:{b+n-1}]'
def fl(x): return hex(struct.unpack('<I',struct.pack('<f',float(x)))[0])
S_WV=3; S_W8=49
wv=f's{S_WV}'
LOG2E=1.4426950408889634
OOB=0x40000000
SLEEP=int(os.environ.get('SLEEP','8'))
SPIN_MAX=50000
SLOT=31744
SB=lambda c:(c%5)*SLOT
XA_BASE=4*SLOT; XA_PITCH=1152
GW_LDS=5*SLOT; B1_LDS=GW_LDS+1024
LC_BASE=GW_LDS+2048
TB_BASE=131072; XB_BASE=139264; ZR_BASE=147456; WB_BASE=155648
LDS_TOTAL=163840
V_L16=3
V_PD,V_PA,V_SIG=250,251,252

class Cfg:
    stamps=False; dbgst=False; sc='sc1'
    off=set()
    def f(self,tag): return '' if (tag in self.off or 'all' in self.off) else self.sc

def stamp(a,cfg,idx):
    if not cfg.stamps: return
    r=a.bg_rate; a.bg_rate=0
    a.e('s_memrealtime s[96:97]'); a.e('s_waitcnt lgkmcnt(0)'); a.e(f'v_writelane_b32 v255, s96, {idx}')
    a.bg_rate=r
def stamps_flush(a,cfg):
    if not cfg.stamps: return
    a.e(f"""v_lshrrev_b32 v254, 6, v249
    s_nop 0
    v_readfirstlane_b32 s98, v254
    s_lshl_b32 s99, s2, 3
    s_add_u32 s98, s98, s99
    s_lshl_b32 s98, s98, 8
    s_add_u32 s98, s98, {WS_STAMP}
    v_lshlrev_b32 v254, 2, v0
    buffer_store_dword v255, v254, {srd(S_WS)}, s98 offen""")

def signal(a,S,soff):
    vt=V_SIG
    a.e(f"""s_cmp_eq_u32 {wv}, 0
    s_cselect_b32 s95, 0, {OOB}
    v_mov_b32 v{vt}, 1
    v_mov_b32 v{vt+1}, s95
    s_mov_b64 exec, 1
    buffer_atomic_add v{vt}, v{vt+1}, {srd(S)}, {soff} offen sc1
    s_mov_b64 exec, -1""")

def ssignal(a,S,soff):
    lab=f'L_ss{len(a.items)}'
    a.e(f's_cmp_lg_u32 {wv}, 0'); a.e(f's_cbranch_scc1 {lab}')
    a.e(f's_atomic_add s90, s[{S}:{S+1}], {soff}')
    a.e(f'{lab}:')

def spin_global(a,S,soff,nl,stride,target):
    lab=f'L_poll{len(a.items)}'
    a.e(f'v_mul_u32_u24 v{V_PA}, {stride}, v0')
    a.e(f's_mov_b64 exec, {hex((1<<nl)-1)}')
    a.e(f's_mov_b32 s94, 0')
    a.e(f'{lab}:')
    a.e(f'buffer_load_dword v{V_PD}, v{V_PA}, {srd(S)}, {soff} offen sc1')
    a.e(f's_add_u32 s94, s94, 1')
    a.e(f's_waitcnt vmcnt(0)')
    a.e(f'v_cmp_gt_u32 vcc, {target}, v{V_PD}')
    a.e(f's_cbranch_vccz {lab}_done')
    a.e(f's_cmp_gt_u32 s94, {SPIN_MAX}')
    a.e(f's_cbranch_scc1 {lab}_done')
    a.e(f's_sleep {SLEEP}')
    a.e(f's_branch {lab}')
    a.e(f'{lab}_done:')
    a.e('s_mov_b64 exec, -1')

def poll_w0(a,S,soff,nl,stride,target):
    lab=f'L_pw{len(a.items)}'
    a.e(f's_cmp_lg_u32 {wv}, 0'); a.e(f's_cbranch_scc1 {lab}')
    a.cond_begin(); spin_global(a,S,soff,nl,stride,target); a.cond_end()
    a.e(f'{lab}:')

V_LC=248
def lc_add(a,idx,rtn=None):
    a.e(f'v_mov_b32 v{V_LC-1}, 1')
    a.e('s_mov_b64 exec, 1')
    if rtn is None: a.e(f'ds_add_u32 v{V_LC}, v{V_LC-1} offset:{4*idx}')
    else: a.e(f'ds_add_rtn_u32 v{rtn}, v{V_LC}, v{V_LC-1} offset:{4*idx}')
    a.e('s_mov_b64 exec, -1')
def lc_wait(a,idx,target):
    lab=f'L_lc{len(a.items)}'
    a.e('s_mov_b32 s94, 0')
    a.e(f'{lab}:')
    a.e(f'ds_read_b32 v{V_LC-1}, v{V_LC} offset:{4*idx}')
    a.e('s_add_u32 s94, s94, 1')
    a.e('s_waitcnt lgkmcnt(0)')
    a.e(f'v_readfirstlane_b32 s93, v{V_LC-1}')
    a.e(f's_cmp_ge_u32 s93, {target}')
    a.e(f's_cbranch_scc1 {lab}_done')
    a.e('s_sleep 1')
    a.e(f's_cmp_lt_u32 s94, {20*SPIN_MAX}')
    a.e(f's_cbranch_scc1 {lab}')
    a.e(f'{lab}_done:')

def angles(a,items,T):
    for i0 in range(0,len(items),4):
        grp=items[i0:i0+4]; src=[]
        for j,(sl,base,n,fin,neg) in enumerate(grp):
            if n==0: src.append(f'v{base}')
            else:
                a.e(f'v_fmamk_f32 v{T+j}, v{sl}, {fl(n)}, v{base}'); src.append(f'v{T+j}')
        outs=[]
        for j,(sl,base,n,fin,neg) in enumerate(grp):
            c,s=fin[0] if fin[0] is not None else T+4+j, fin[1] if fin[1] is not None else T+8+j
            a.e(f'v_cos_f32 v{c}, {src[j]}')
            a.e(f'v_sin_f32_e64 v{s}, -{src[j]}' if neg else f'v_sin_f32 v{s}, {src[j]}')
            outs.append((c,s))
        for j,(sl,base,n,fin,neg) in enumerate(grp):
            if fin[2]: fin[2](*outs[j])

def cmul_pack(a,c,s,tc,ts,dst,TT,n=4,negim=False):
    H=n//2
    for h in range(H): a.e(f'v_pk_mul_f32 {vr(TT+4*h,2)}, {vr(s+2*h,2)}, {vr(ts+2*h,2)}')
    for h in range(H): a.e(f'v_pk_mul_f32 {vr(TT+4*h+2,2)}, {vr(s+2*h,2)}, {vr(tc+2*h,2)}')
    for h in range(H): a.e(f'v_pk_fma_f32 {vr(TT+4*h,2)}, {vr(c+2*h,2)}, {vr(tc+2*h,2)}, {vr(TT+4*h,2)} neg_lo:[0,0,1] neg_hi:[0,0,1]')
    for h in range(H): a.e(f'v_pk_fma_f32 {vr(TT+4*h+2,2)}, {vr(c+2*h,2)}, {vr(ts+2*h,2)}, {vr(TT+4*h+2,2)}')
    ng='-' if negim else ''
    for h in range(H):
        a.e(f'v_cvt_pk_bf16_f32 v{dst+2*h}, v{TT+4*h}, {ng}v{TT+4*h+2}')
        a.e(f'v_cvt_pk_bf16_f32 v{dst+2*h+1}, v{TT+4*h+1}, {ng}v{TT+4*h+3}')

def prologue(a,cfg,end):
    a.e('s_cmp_ge_u32 s2, 256'); a.e(f's_cbranch_scc1 {end}')
    for (n,off,sz) in SRDS: a.e(f's_load_dwordx2 s[{n}:{n+1}], s[0:1], {off}')
    if cfg.x.get('pf_code') and cfg.x.get('pf_top'):
        nw=cfg.x['pf_top']
        a.e('s_getpc_b64 s[64:65]')
        a.e('v_lshrrev_b32 v56, 6, v0'); a.e('v_and_b32 v57, 63, v0')
        a.e('v_readfirstlane_b32 s66, v56')
        a.e('v_lshlrev_b32 v57, 4, v57')
        a.e('s_lshr_b32 s67, s2, 3'); a.e(f's_mul_i32 s67, s67, {nw}'); a.e('s_add_u32 s67, s67, s66')
        a.e('s_lshl_b32 s68, s67, 10')
        a.e('s_add_u32 s64, s64, s68'); a.e('s_addc_u32 s65, s65, 0')
        a.e('v_mov_b32 v59, s65'); a.e('v_add_co_u32 v58, vcc, s64, v57'); a.e('s_nop 1'); a.e('v_addc_co_u32 v59, vcc, 0, v59, vcc')
        a.e(f's_cmp_lt_u32 s66, {nw}'); a.e('s_cbranch_scc0 L_nopf0'); a.cond_begin()
        a.e(f's_cmp_lt_u32 s67, {cfg.x["pf_code"]}'); a.e('s_cbranch_scc0 L_nopf0')
        a.e('global_load_dwordx4 v[52:55], v[58:59], off')
        a.cond_end(); a.e('L_nopf0:')
    if cfg.stamps: a.e('v_mov_b32 v249, v0')
    a.e('v_lshrrev_b32 v1, 6, v0')
    a.e('v_and_b32 v0, 63, v0')
    a.e('v_readfirstlane_b32 s48, v1')
    a.e('v_and_b32 v1, 15, v0')
    a.e('v_lshrrev_b32 v2, 4, v0')
    a.e(f'v_lshlrev_b32 v{V_L16}, 4, v0')
    for (n,off,sz) in SRDS:
        a.e(f's_mov_b32 s{n+2}, {hex(sz)}'); a.e(f's_mov_b32 s{n+3}, 0x20000')
    a.e(f'''s_mov_b32 s51, s48
    s_and_b32 {wv}, s48, 3
    s_lshr_b32 s50, s48, 2
    s_and_b32 s4, s2, 7
    s_lshr_b32 s5, s2, 3
    s_lshr_b32 s6, s4, 1
    s_lshl_b32 s6, s6, 2
    s_lshr_b32 s56, s5, 3
    s_add_u32 s6, s6, s56
    s_and_b32 s7, s4, 1
    s_lshl_b32 s7, s7, 3
    s_and_b32 s56, s5, 7
    s_add_u32 s7, s7, s56
    s_and_b32 s48, s7, 1''')
    a.e('s_waitcnt lgkmcnt(0)')
    if cfg.x.get('pf_code') and not cfg.x.get('pf_top'):
        a.e('s_getpc_b64 s[64:65]')
        a.e('s_lshl_b32 s66, s5, 10')
        a.e('s_add_u32 s64, s64, s66'); a.e('s_addc_u32 s65, s65, 0')
        a.e(f'v_mov_b32 v57, s65'); a.e(f'v_add_co_u32 v56, vcc, s64, v{V_L16}'); a.e('s_nop 1'); a.e(f'v_addc_co_u32 v57, vcc, 0, v57, vcc')
        a.e(f's_cmp_lt_u32 s5, {cfg.x["pf_code"]}'); a.e('s_cbranch_scc0 L_nopf'); a.cond_begin()
        a.e(f's_cmp_lg_u32 s51, 2'); a.e('s_cbranch_scc1 L_nopf')
        a.e('global_load_dwordx4 v[52:55], v[56:57], off')
        a.cond_end(); a.e('L_nopf:')
    mt=str(cfg.x.get('mt','xw'))
    if mt!='0':
        a.e(f'''v_lshlrev_b32 v5, 7, v0
        v_mov_b32 v6, {OOB}
        v_cmp_gt_u32 vcc, 56, v0
        v_cndmask_b32 v6, v6, v5, vcc
        s_cmp_eq_u32 s51, 0
        s_cselect_b32 s56, 0, {OOB}
        v_add_u32 v5, s56, v5
        s_cmp_eq_u32 s51, 1
        s_cselect_b32 s56, 0, {OOB}
        v_add_u32 v7, s56, v6
        s_lshl_b32 s56, s2, 13
        s_mul_i32 s57, s2, 7168''')
        if 'x' in mt: a.e(f'buffer_load_dword v245, v5, {srd(S_X)}, s56 offen')
        if 'w' in mt: a.e(f'buffer_load_dword v245, v7, {srd(S_W1)}, s57 offen')
    if cfg.x.get('xaearly'):
        a.e(f'''s_lshr_b32 s56, s2, 5
        s_lshl_b32 s56, s56, 18
        s_and_b32 s57, s2, 31
        s_lshl_b32 s57, s57, 10
        s_add_u32 s56, s56, s57
        s_lshl_b32 s57, {wv}, 16
        s_add_u32 s56, s56, s57
        s_add_u32 s58, s56, 32768
        s_mul_i32 s57, {wv}, {2*XA_PITCH}
        s_add_u32 s57, s57, {XA_BASE}''')
        a.e('s_cmp_eq_u32 s50, 0'); a.e('s_cbranch_scc1 L_noxa'); a.cond_begin()
        a.e(f'''s_mov_b32 m0, s57
        s_add_u32 s57, s57, {XA_PITCH}
        buffer_load_dwordx4 v{V_L16}, {srd(S_X)}, s56 offen lds
        s_mov_b32 m0, s57
        s_nop 0
        buffer_load_dwordx4 v{V_L16}, {srd(S_X)}, s58 offen lds''')
        a.cond_end(); a.e('L_noxa:')
    if cfg.x.get('gtouch'):
        a.e(f'''s_xor_b32 s56, s51, 2
        s_xor_b32 s57, s2, 1
        s_or_b32 s56, s56, s57
        s_cmp_eq_u32 s56, 0
        s_cselect_b32 s56, 0, {OOB}
        v_lshlrev_b32 v5, 7, v0
        v_add_u32 v5, s56, v5
        s_mov_b32 s57, {WS_G}
        buffer_load_dword v245, v5, {srd(S_WS)}, s57 offen''')
    if cfg.x.get('tlb'):
        a.e(f'''v_lshlrev_b32 v5, 21, v0
        v_mov_b32 v6, {OOB}
        v_cmp_gt_u32 vcc, 9, v0
        v_cndmask_b32 v5, v6, v5, vcc
        s_cmp_eq_u32 s51, 2
        s_cselect_b32 s56, 0, {OOB}
        v_or_b32 v5, s56, v5
        s_cmp_eq_u32 s51, 3
        s_cselect_b32 s56, 0, {OOB}
        v_cmp_gt_u32 vcc, 1, v0
        v_cndmask_b32 v6, v6, v0, vcc
        v_or_b32 v6, s56, v6
        buffer_load_dword v245, v5, {srd(S_WS)}, 0 offen
        buffer_load_dword v245, v6, {srd(S_OUT)}, 0 offen''')
    if cfg.x.get('ffirst'):
        a.e('s_cmp_eq_u32 s50, 0'); a.e('s_cbranch_scc1 L_M')
    else:
        a.e('s_cmp_lg_u32 s50, 0'); a.e('s_cbranch_scc1 L_F')

V_GF=8
V_W2A=240; V_W2D=244
NS3=int(os.environ.get('NS3','8'))
GSLOT=[6,7,0,1]
GT0=224; GTA=234
G_ITEMS=[(psi,c,u) for psi in range(4) for c in range(4) for u in range(4)]
def m_g2_ids(a,cfg):
    a.e(f"""s_lshl_b32 s67, s4, 2
    s_lshr_b32 s68, s5, 3
    s_add_u32 s67, s67, s68
    s_and_b32 s68, s5, 7
    s_mul_i32 s69, s67, {RT_STRIDE}
    s_mul_i32 s70, {wv}, {14*4096}
    s_add_u32 s69, s69, s70
    s_add_u32 s69, s69, {WS_ACT}
    s_mul_i32 s70, {wv}, {14*32*1024}
    s_lshl_b32 s71, s68, 7
    s_add_u32 s70, s70, s71
    s_lshl_b32 s71, {wv}, 15
    s_lshr_b32 s72, s67, 1
    s_and_b32 s73, s67, 1
    s_lshr_b32 s74, s72, 2
    s_lshl_b32 s74, s74, 11
    s_lshl_b32 s75, s73, 10
    s_add_u32 s74, s74, s75
    s_and_b32 s75, s72, 3
    s_lshl_b32 s75, s75, 8
    s_add_u32 s74, s74, s75""")
def w2_dma_addr(a,V,T):
    a.e(f"""v_lshrrev_b32 v{T}, 3, v0
    v_lshlrev_b32 v{V}, 10, v{T}
    v_lshrrev_b32 v{T}, 1, v{T}
    v_and_b32 v{T}, 3, v{T}
    v_bfe_u32 v{T+1}, v0, 1, 2
    v_xor_b32 v{T}, v{T}, v{T+1}
    v_lshlrev_b32 v{T}, 1, v{T}
    v_and_b32 v{T+1}, 1, v0
    v_add_u32 v{T}, v{T}, v{T+1}
    v_lshl_add_u32 v{V}, v{T}, 4, v{V}""")
def w2_group(t,v,V):
    return [f's_add_u32 m0, s71, {(t%8)*4096+v*1024}', f's_add_u32 s55, s70, {(32*t+8*v)*1024}',
            f'buffer_load_dwordx4 v{V}, {srd(S_W2)}, s55 offen lds']

def m_stream(a,cfg,end):
    a.e('s_waitcnt lgkmcnt(0)')
    if cfg.x.get('prio0'): a.e(f's_setprio {cfg.x["prio0"]}')
    stamp(a,cfg,26)
    a.e(f'''s_xor_b32 s56, {wv}, 3
    s_or_b32 s58, s56, s2
    s_cmp_eq_u32 s58, 0
    s_cselect_b32 s56, 0, {OOB}
    v_lshlrev_b32 v5, 7, v0
    v_add_u32 v5, s56, v5
    v_mov_b32 v6, 0
    s_mov_b32 s57, {WS_CNT}
    buffer_store_dword v6, v5, {srd(S_WS)}, s57 offen sc1''')
    mt=str(cfg.x.get('mt','xw'))
    a.e(f'''s_lshr_b32 s49, s2, 5
    s_and_b32 s50, s2, 31''')
    V_B1C=60; V_B1S=68; V_TC=76; V_TS=80; V_A2=84; V_A2N=88; T0=92; TA=100
    a.e(f'''s_lshl_b32 s67, {wv}, 4
    v_add_u32 v{T0}, s67, v1
    v_cvt_f32_u32 v{T0}, v{T0}
    v_mul_f32 v{T0+1}, {fl(1/64)}, v{T0}
    v_lshlrev_b32 v{T0+2}, 2, v2
    v_cvt_f32_u32 v{T0+2}, v{T0+2}
    v_mul_f32 v{T0+3}, v{T0+2}, v{T0+1}''')
    for ks in range(2):
        for hh in range(2):
            angles(a,[(T0+1,T0+3,32*ks+16*hh+u,(None,None,None),True) for u in range(4)],TA)
            for d in range(2):
                a.e(f'v_cvt_pk_bf16_f32 v{V_B1C+4*ks+2*hh+d}, v{TA+4+2*d}, v{TA+5+2*d}')
                a.e(f'v_cvt_pk_bf16_f32 v{V_B1S+4*ks+2*hh+d}, v{TA+8+2*d}, v{TA+9+2*d}')
    a.e(f'''v_and_b32 v{T0+4}, 1, v2
    v_lshlrev_b32 v{T0+4}, 2, v{T0+4}
    v_cvt_f32_u32 v{T0+4}, v{T0+4}
    v_mul_f32 v{T0+5}, {fl(1/512)}, v{T0}
    v_mul_f32 v{T0+6}, v{T0+4}, v{T0+5}''')
    angles(a,[(T0+5,T0+6,r,(V_TC+r,V_TS+r,None),True) for r in range(4)],TA)
    a.e(f'''v_lshrrev_b32 v{T0+5}, 2, v1
    v_cvt_f32_u32 v{T0+5}, v{T0+5}
    v_mul_f32 v{T0+5}, {fl(1/8)}, v{T0+5}
    v_and_b32 v{T0+6}, 1, v1
    v_cvt_f32_u32 v{T0+6}, v{T0+6}
    v_mul_f32 v{T0+6}, {fl(0.25)}, v{T0+6}
    v_fma_f32 v{T0+6}, v{T0+4}, v{T0+5}, v{T0+6}
    v_lshrrev_b32 v{T0+7}, 1, v1
    v_and_b32 v{T0+7}, 1, v{T0+7}
    v_lshrrev_b32 v{T0}, 1, v2
    v_cmp_eq_u32 s[68:69], v{T0+7}, v{T0}
    v_and_b32 v{T0+7}, 13, v1
    v_cmp_eq_u32 vcc, 1, v{T0+7}''')
    a.e('s_and_b64 s[70:71], vcc, s[68:69]')
    angles(a,[(T0+5,T0+6,dw,(None,None,None),False) for dw in range(4)],TA)
    for dw in range(4): a.e(f'v_cvt_pk_bf16_f32 v{TA+dw}, v{TA+4+dw}, v{TA+8+dw}')
    a.e(f'v_mov_b32 v{TA+4}, 0x3f80'); a.e(f'v_mov_b32 v{TA+5}, 0xbf80')
    for dw in range(4):
        a.e(f'v_cndmask_b32 v{V_A2+dw}, 0, v{TA+dw}, s[68:69]')
        a.e(f'v_cndmask_b32 v{V_A2N+dw}, 0, v{TA+4+(dw&1)}, s[70:71]')
    V_XA=108
    a.e(f'''v_and_b32 v{T0}, 3, v0
    v_lshrrev_b32 v{T0+1}, 1, v{T0}
    v_mul_u32_u24 v{V_XA}, {XA_PITCH}, v{T0+1}
    v_and_b32 v{T0}, 1, v{T0}
    v_lshlrev_b32 v{T0}, 3, v{T0}
    v_lshrrev_b32 v{T0+1}, 2, v1
    v_lshl_add_u32 v{T0+1}, v2, 2, v{T0+1}
    v_lshlrev_b32 v{T0+1}, 4, v{T0+1}
    v_add3_u32 v{V_XA}, v{V_XA}, v{T0}, v{T0+1}
    v_add_u32 v{V_XA}, {XA_BASE}, v{V_XA}
    s_mul_i32 s72, {wv}, {2*XA_PITCH}
    s_add_u32 s72, s72, {XA_BASE}
    v_add_u32 v{V_XA+1}, s72, v{V_L16}
    v_add_u32 v{V_XA+2}, {GW_LDS}, v{V_L16}''')
    a.e(f'''s_lshl_b32 s84, s49, 3
    s_lshl_b32 s85, {wv}, 1
    s_add_u32 s84, s84, s85
    s_lshr_b32 s85, s84, 4
    s_lshl_b32 s85, s85, 11
    s_lshr_b32 s86, s50, 4
    s_lshl_b32 s86, s86, 10
    s_add_u32 s85, s85, s86
    s_lshr_b32 s86, s84, 2
    s_and_b32 s86, s86, 3
    s_lshl_b32 s86, s86, 8
    s_add_u32 s85, s85, s86
    s_and_b32 s86, s50, 15
    s_lshl_b32 s86, s86, 4
    s_add_u32 s85, s85, s86
    s_and_b32 s86, s84, 3
    s_lshl_b32 s86, s86, 2
    s_add_u32 s85, s85, s86
    s_add_u32 s85, s85, {WS_G}
    ''')
    if mt!='0' and ('W' in mt or '2' in mt):
        a.e(f'''v_lshlrev_b32 v5, 7, v0
        v_mov_b32 v6, {OOB}
        v_cmp_gt_u32 vcc, 33, v0
        v_cndmask_b32 v7, v6, v5, vcc
        v_cmp_gt_u32 vcc, 56, v0
        v_cndmask_b32 v6, v6, v5, vcc
        s_cmp_eq_u32 {wv}, 2
        s_cselect_b32 s56, 0, {OOB}
        v_add_u32 v5, s56, v7
        s_cmp_eq_u32 {wv}, 3
        s_cselect_b32 s56, 0, {OOB}
        v_add_u32 v7, s56, v7
        s_cmp_eq_u32 {wv}, 0
        s_cselect_b32 s56, 0, {OOB}
        v_add_u32 v6, s56, v6
        s_mul_i32 s56, s2, {33*128}
        v_add_u32 v5, s56, v5
        v_add_u32 v7, s56, v7
        s_mul_i32 s57, s2, 7168''')
        if 'W' in mt:
            a.e(f'buffer_load_dword v245, v5, {srd(S_WR)}, 0 offen')
            a.e(f'buffer_load_dword v245, v7, {srd(S_WI)}, 0 offen')
        if '2' in mt: a.e(f'buffer_load_dword v245, v6, {srd(S_W2)}, s57 offen')
    a.e('s_cmp_lg_u32 s58, 0'); a.e('s_cbranch_scc1 L_m_nos0'); a.cond_begin()
    a.e(f'''s_waitcnt vmcnt(0)
    v_mov_b32 v5, 1
    v_mov_b32 v6, 32
    s_mov_b64 exec, 1
    buffer_store_dword v5, v6, {srd(S_DBG)}, 0 offen sc1
    s_mov_b64 exec, -1''')
    a.cond_end(); a.e('L_m_nos0:')
    stamp(a,cfg,0)
    a.e('s_barrier')
    stamp(a,cfg,1)
    V_AF=112; V_GX=144; V_GW=184; V_D1C=152; V_D1S=168
    for pi in range(4):
        for ks in range(2):
            for hh in range(2):
                a.e(f'ds_read_b64_tr_b16 {vr(V_AF+8*pi+4*ks+2*hh,2)}, v{V_XA} offset:{pi*2*XA_PITCH+ks*512+hh*256}')
        if pi==1: lg_01=a.lgtok()
    lg_af=a.lgtok()
    a.e(f'ds_read_b128 {vr(V_GX,4)}, v{V_XA+1}')
    a.e(f'ds_read_b128 {vr(V_GX+4,4)}, v{V_XA+1} offset:{XA_PITCH}')
    a.e(f'ds_read_b128 {vr(V_GW,4)}, v{V_XA+2}')
    lg_gx=a.lgtok()
    for pi in range(4):
        if pi==0: a.wait_lg(lg_01)
        if pi==2: a.wait_lg(lg_af)
        for ks in range(2):
            A=vr(V_AF+8*pi+4*ks,4); c=vr(V_D1C+4*pi,4); s=vr(V_D1S+4*pi,4)
            a.e(f'v_mfma_f32_16x16x32_bf16 {c}, {A}, {vr(V_B1C+4*ks,4)}, {c if ks else 0}')
            a.e(f'v_mfma_f32_16x16x32_bf16 {s}, {A}, {vr(V_B1S+4*ks,4)}, {s if ks else 0}')
    a.wait_lg(lg_gx)
    V_Z=T0+2; V_GOUT=T0+4
    for d in range(4):
        for rr in range(2):
            a.e(f'v_dot2_f32_bf16 v{V_Z+rr}, v{V_GX+4*rr+d}, v{V_GW+d}, {("v%d"%(V_Z+rr)) if d else 0}')
    TT=TA; V_B2=V_AF
    red=[('row_shr:1 row_mask:0xf bank_mask:0xf bound_ctrl:1'),('row_shr:2 row_mask:0xf bank_mask:0xf bound_ctrl:1'),
         ('row_shr:4 row_mask:0xf bank_mask:0xf bound_ctrl:1'),('row_shr:8 row_mask:0xf bank_mask:0xf bound_ctrl:1'),
         ('row_bcast:15 row_mask:0xa bank_mask:0xf'),('row_bcast:31 row_mask:0xc bank_mask:0xf')]
    ri=0
    for pi in range(4):
        cmul_pack(a,V_D1C+4*pi,V_D1S+4*pi,V_TC,V_TS,V_B2+4*pi,TT)
        for _ in range(2 if pi<2 else 1):
            for rr in range(2): a.e(f'v_add_f32_dpp v{V_Z+rr}, v{V_Z+rr}, v{V_Z+rr} {red[ri]}')
            ri+=1
    V_D2=V_D1C; V_D2N=V_D1S
    for pi in range(4):
        a.e(f'v_mfma_f32_16x16x32_bf16 {vr(V_D2+4*pi,4)}, {vr(V_A2,4)}, {vr(V_B2+4*pi,4)}, 0')
        a.e(f'v_mfma_f32_16x16x32_bf16 {vr(V_D2N+4*pi,4)}, {vr(V_A2N,4)}, {vr(V_B2+4*pi,4)}, 0')
    for rr in range(2): a.e(f'v_mul_f32 v{V_Z+rr}, {fl(-LOG2E)}, v{V_Z+rr}')
    for rr in range(2): a.e(f'v_exp_f32 v{V_Z+rr}, v{V_Z+rr}')
    for rr in range(2): a.e(f'v_add_f32 v{V_Z+rr}, 1.0, v{V_Z+rr}')
    for rr in range(2): a.e(f'v_rcp_f32 v{V_GOUT+rr}, v{V_Z+rr}')
    a.e(f'''s_cmp_eq_u32 {wv}, 0
    s_cselect_b32 s74, 1, 0
    s_mov_b32 s75, 0''')
    V_TO=8
    for pi in range(4):
        for rho in range(2):
            re=V_D2+4*pi+2*rho; im=re+1
            a.e(f'v_cndmask_b32 v{im}, v{im}, v{V_D2N+4*pi+2*rho+1}, s[74:75]')
            a.e(f'v_cvt_pk_bf16_f32 v{V_TO+2*pi+rho}, v{re}, v{im}')
    a.e(f'''v_lshrrev_b32 v18, 5, v0
    v_lshlrev_b32 v18, 11, v18
    v_and_b32 v19, 31, v0
    v_lshl_add_u32 v18, v19, 4, v18
    s_lshl_b32 s93, {wv}, 9
    v_add_u32 v18, s93, v18
    s_lshl_b32 s90, s2, 13
    s_add_u32 s90, s90, {WS_T}
    v_mov_b32 v16, v{V_GOUT}
    v_mov_b32 v17, v{V_GOUT+1}
    v_mov_b32 v19, 0
    s_mov_b32 s91, s85''')
    def row_stores():
        if cfg.x.get('x_nors'): return
        a.e(f'''s_add_u32 s93, s90, 4096
        buffer_store_dwordx4 v[8:11], v18, {srd(S_WS)}, s90 offen {cfg.f("stT")}
        buffer_store_dwordx4 v[12:15], v18, {srd(S_WS)}, s93 offen {cfg.f("stT")}
        s_mov_b32 exec_lo, 0
        s_mov_b32 exec_hi, 0x80000000
        buffer_store_dwordx2 v[16:17], v19, {srd(S_WS)}, s91 offen {cfg.f("stG")}
        s_mov_b64 exec, -1''')
    if cfg.x.get('rs_at',9)<0: row_stores()
    stamp(a,cfg,17)
    V_XF=80; V_XR=96; V_VA=102; V_BIAS=108; V_ACC=136; V_WF=192; V_BRAW=220; T0=234
    a.e(f'''s_lshl_b32 s76, {wv}, 12
    v_lshlrev_b32 v{T0}, 7, v1
    v_add_u32 v{T0}, s76, v{T0}
    v_lshrrev_b32 v{T0+1}, 1, v1
    v_xor_b32 v{T0+1}, v{T0+1}, v2
    v_lshl_add_u32 v{V_XR}, v{T0+1}, 4, v{T0}
    v_xor_b32 v{T0+1}, 4, v{T0+1}
    v_lshl_add_u32 v{V_XR+1}, v{T0+1}, 4, v{T0}
    v_mul_u32_u24 v{V_VA}, 1920, v2
    v_lshrrev_b32 v{T0}, 2, v1
    v_mul_u32_u24 v{T0}, 224, v{T0}
    v_and_b32 v{T0+1}, 3, v0
    v_lshlrev_b32 v{T0+1}, 3, v{T0+1}
    v_add3_u32 v{V_VA}, v{V_VA}, v{T0}, v{T0+1}
    v_add_u32 v{V_VA}, 16384, v{V_VA}
    s_cmp_eq_u32 s48, 0
    s_cselect_b32 s76, 192, 0
    v_add_u32 v{V_VA+1}, s76, v{V_VA}
    s_lshl_b32 s76, s48, 5
    v_add_u32 v{V_VA}, s76, v{V_VA}''')
    for st_ in (1,2):
        for j in range(2):
            a.e(f'v_add_u32 v{V_XR+2*st_+j}, {2*st_*SLOT}, v{V_XR+j}')
            a.e(f'v_add_u32 v{V_VA+2*st_+j}, {2*st_*SLOT}, v{V_VA+j}')
    a.e(f'''v_lshlrev_b32 v{T0}, 3, v2
    s_lshl_b32 s76, s48, 5
    s_add_u32 s77, s76, {B1_LDS}
    v_add_u32 v{T0+1}, s77, v{T0}
    s_cmp_eq_u32 s48, 0
    s_cselect_b32 s77, 192, 0
    s_add_u32 s77, s77, {B1_LDS}
    v_add_u32 v{T0}, s77, v{T0}''')
    if cfg.x.get('prio'): a.e(f's_setprio {cfg.x["prio"]}')
    a.e('s_barrier')
    stamp(a,cfg,3)
    a.e(f'''s_mul_i32 s93, {wv}, {2*XA_PITCH}
    s_add_u32 s93, s93, {XA_BASE}
    v_lshl_add_u32 v20, v0, 5, s93
    v_add_u32 v21, s93, v{V_L16}
    ds_write_b128 v20, v[8:11]
    ds_write_b128 v20, v[12:15] offset:16
    s_waitcnt lgkmcnt(0)
    ds_read_b128 v[8:11], v21
    ds_read_b128 v[12:15], v21 offset:1024''')
    def slot_set(c):
        j=c%5; return (j//2, (j%2)*SLOT)
    def w_read1(s,t,hh):
        c,kk=s//2,s%2; st_,off=slot_set(c)
        va=V_VA+2*st_+(1 if t==6 else 0)
        o=off+kk*7680+(32*t if t<6 else 0)
        a.e(f'ds_read_b64_tr_b16 {vr(V_WF+4*t+2*hh,2)}, v{va} offset:{o+960*hh}')
        return a.lgtok()
    def x_read1(s,nb):
        c,kk=s//2,s%2; st_,off=slot_set(c)
        a.e(f'ds_read_b128 {vr(V_XF+8*(s%2)+4*nb,4)}, v{V_XR+2*st_+kk} offset:{off+2048*nb}')
        return a.lgtok()
    for t in range(6): a.e(f'ds_read_b64 {vr(V_BRAW+2*t,2)}, v{T0+1} offset:{32*t}')
    a.e(f'ds_read_b64 {vr(V_BRAW+12,2)}, v{T0}')
    lg_b=a.lgtok()
    tw={}; tx={}
    for nb in range(2): tx[(0,nb)]=x_read1(0,nb)
    for t in range(3):
        for hh in range(2): tw[(0,t,hh)]=w_read1(0,t,hh)
    a.wait_lg(lg_b)
    for t in range(7):
        for d in range(2):
            raw=V_BRAW+2*t+d
            a.e(f'v_lshlrev_b32 v{V_BIAS+4*t+2*d}, 16, v{raw}')
            a.e(f'v_and_b32 v{V_BIAS+4*t+2*d+1}, 0xffff0000, v{raw}')
    for t in range(3,7):
        for hh in range(2): tw[(0,t,hh)]=w_read1(0,t,hh)
    for s in range(16):
        for t in range(7):
            need=max(tw[(s,t,1)],tx[(s,1)])
            n=a.lg-need
            if t%2==0 or t==1 or s==0 or True: a.e(f's_waitcnt lgkmcnt({min(n,15)})')
            for nb in range(2):
                acc=vr(V_ACC+28*nb+4*t,4)
                cc=acc if s>0 else vr(V_BIAS+4*t,4)
                a.e(f'v_mfma_f32_16x16x32_bf16 {acc}, {vr(V_WF+4*t,4)}, {vr(V_XF+8*(s%2)+4*nb,4)}, {cc}')
                if nb==0 and t==1 and s%2==1 and s<15:
                    if cfg.fine==2: stamp(a,cfg,32+2*(s//2))
                    if s==(7 if cfg.x.get('s1two',0) else 13): a.e('s_waitcnt vmcnt(0)')
                    a.e('s_barrier')
                    if cfg.fine==2: stamp(a,cfg,33+2*(s//2))
                ps,pt=(s+1,t-1) if t>=1 else (s,6)
                if (t>=1 and s<15) or (t==0 and 1<=s<=15 and (s,6,nb) not in tw):
                    tw[(ps,pt,nb)]=w_read1(ps,pt,nb)
                if t==2 and s<15: tx[(s+1,nb)]=x_read1(s+1,nb)
                if t==4 and nb==1 and s==cfg.x.get('rs_at',9): row_stores()
    a.e('s_barrier')
    stamp(a,cfg,4)
    V_E=V_WF; V_O=V_BIAS
    a.e(f's_mov_b32 s84, {fl(LOG2E)}'); a.e(f's_mov_b32 s85, {fl(LOG2E)}'); a.e(f's_mov_b32 s86, {fl(-2.0 if cfg.x.get("mish2") else 30.0)}')
    a.e(f'''s_mul_i32 s87, s7, 7
    s_add_u32 s87, s87, s48
    s_lshr_b32 s87, s87, 1
    s_lshl_b32 s87, s87, 12
    s_mul_i32 s88, s6, {2*RT_STRIDE}
    s_lshl_b32 s89, {wv}, 10
    s_add_u32 s88, s88, s89
    s_add_u32 s88, s88, {WS_ACT}
    s_add_u32 s88, s88, s87
    s_mov_b32 s89, {3*4096}
    s_cmp_eq_u32 s48, 0
    s_cselect_b32 s89, s89, {(-4096+512)&0xffffffff}
    s_add_u32 s89, s89, s88
    v_lshlrev_b32 v4, 3, v0''')
    G=4
    for nb in range(2):
        pairs=[(V_ACC+28*nb+4*t+2*d, V_O+14*nb+2*t+d) for t in range(7) for d in range(2)]
        for g0 in range(0,len(pairs),G):
            grp=pairs[g0:g0+G]
            Tq=lambda i: V_E+4*i
            if cfg.x.get('mish2'):
                for i,(h,o) in enumerate(grp): a.e(f'v_pk_mul_f32 {vr(Tq(i),2)}, {vr(h,2)}, s[84:85]')
                for i,(h,o) in enumerate(grp):
                    a.e(f'v_exp_f32 v{Tq(i)}, v{Tq(i)}'); a.e(f'v_exp_f32 v{Tq(i)+1}, v{Tq(i)+1}')
                for i,(h,o) in enumerate(grp): a.e(f'v_pk_add_f32 {vr(Tq(i)+2,2)}, {vr(Tq(i),2)}, 2.0 op_sel_hi:[1,0]')
                for i,(h,o) in enumerate(grp): a.e(f'v_pk_fma_f32 {vr(Tq(i),2)}, {vr(Tq(i),2)}, {vr(Tq(i)+2,2)}, 2.0 op_sel_hi:[1,1,0]')
                for i,(h,o) in enumerate(grp):
                    a.e(f'v_rcp_f32 v{Tq(i)}, v{Tq(i)}'); a.e(f'v_rcp_f32 v{Tq(i)+1}, v{Tq(i)+1}')
                for i,(h,o) in enumerate(grp): a.e(f'v_pk_fma_f32 {vr(Tq(i),2)}, {vr(Tq(i),2)}, s[86:87], 1.0 op_sel_hi:[1,0,0]')
                for i,(h,o) in enumerate(grp): a.e(f'v_pk_mul_f32 {vr(Tq(i),2)}, {vr(Tq(i),2)}, {vr(h,2)}')
            else:
                for i,(h,o) in enumerate(grp): a.e(f'v_pk_mul_f32 {vr(Tq(i),2)}, {vr(h,2)}, s[84:85]')
                for i,(h,o) in enumerate(grp):
                    a.e(f'v_min_f32 v{Tq(i)}, s86, v{Tq(i)}'); a.e(f'v_min_f32 v{Tq(i)+1}, s86, v{Tq(i)+1}')
                for i,(h,o) in enumerate(grp):
                    a.e(f'v_exp_f32 v{Tq(i)}, v{Tq(i)}'); a.e(f'v_exp_f32 v{Tq(i)+1}, v{Tq(i)+1}')
                for i,(h,o) in enumerate(grp): a.e(f'v_pk_add_f32 {vr(Tq(i)+2,2)}, {vr(Tq(i),2)}, 2.0 op_sel_hi:[1,0]')
                for i,(h,o) in enumerate(grp): a.e(f'v_pk_mul_f32 {vr(Tq(i),2)}, {vr(Tq(i),2)}, {vr(Tq(i)+2,2)}')
                for i,(h,o) in enumerate(grp): a.e(f'v_pk_add_f32 {vr(Tq(i)+2,2)}, {vr(Tq(i),2)}, 2.0 op_sel_hi:[1,0]')
                for i,(h,o) in enumerate(grp):
                    a.e(f'v_rcp_f32 v{Tq(i)+2}, v{Tq(i)+2}'); a.e(f'v_rcp_f32 v{Tq(i)+3}, v{Tq(i)+3}')
                for i,(h,o) in enumerate(grp): a.e(f'v_pk_mul_f32 {vr(Tq(i),2)}, {vr(Tq(i),2)}, {vr(Tq(i)+2,2)}')
                for i,(h,o) in enumerate(grp): a.e(f'v_pk_mul_f32 {vr(Tq(i),2)}, {vr(Tq(i),2)}, {vr(h,2)}')
            for i,(h,o) in enumerate(grp): a.e(f'v_cvt_pk_bf16_f32 v{o}, v{Tq(i)}, v{Tq(i)+1}')
            done=min(len(pairs),g0+G)
            if cfg.x.get('actil'):
                for pp in range(3):
                    if g0<4*(pp+1)<=done:
                        a.e(f'buffer_store_dwordx4 {vr(V_O+14*nb+4*pp,4)}, v{V_L16}, {srd(S_WS)}, s88 offen {cfg.f("stA")}')
                        a.e('s_add_u32 s88, s88, 4096')
                if done==14:
                    a.e(f'buffer_store_dwordx2 {vr(V_O+14*nb+12,2)}, v4, {srd(S_WS)}, s89 offen {cfg.f("stA")}')
        if nb==0 and cfg.x.get('actil'):
            a.e(f's_add_u32 s88, s88, {RT_STRIDE-3*4096}')
            a.e(f's_add_u32 s89, s89, {RT_STRIDE}')
    if not cfg.x.get('actil'):
        for nb in range(2):
            for pp in range(3):
                a.e(f'buffer_store_dwordx4 {vr(V_O+14*nb+4*pp,4)}, v{V_L16}, {srd(S_WS)}, s88 offen {cfg.f("stA")}')
                a.e('s_add_u32 s88, s88, 4096')
            a.e(f'buffer_store_dwordx2 {vr(V_O+14*nb+12,2)}, v4, {srd(S_WS)}, s89 offen {cfg.f("stA")}')
            if nb==0:
                a.e(f's_add_u32 s88, s88, {RT_STRIDE-3*4096}')
                a.e(f's_add_u32 s89, s89, {RT_STRIDE}')
    stamp(a,cfg,5)
    parts=p2_table_parts(a,cfg); npre=cfg.x.get('tabpre',4)
    for part in parts[:npre]: part()
    stamp(a,cfg,24)
    a.e('s_mov_b32 s93, 32'); poll_w0(a,S_DBG,'s93',1,0,1)
    a.e('s_waitcnt vmcnt(0)')
    a.e('s_barrier')
    stamp(a,cfg,7)
    p2_small_loads(a,cfg)
    tok_w=a.vmtok()
    for part in parts[npre:]: part()
    stamp(a,cfg,25)
    p2_compute(a,cfg,tok_w)
    tok_y=a.vmtok()
    stamp(a,cfg,8)
    m_g2_ids(a,cfg)
    T=5
    w2_dma_addr(a,V_W2D,T)
    a.e(f"""v_lshrrev_b32 v{T}, 2, v1
    v_lshl_add_u32 v{T+1}, v2, 2, v{T}
    v_lshlrev_b32 v{V_W2A}, 7, v{T+1}
    v_lshrrev_b32 v{T+1}, 1, v{T+1}
    v_and_b32 v{T+1}, 3, v{T+1}
    v_and_b32 v{T}, 3, v0
    v_lshl_add_u32 v{V_W2A}, v{T}, 3, v{V_W2A}
    v_add_u32 v{V_W2A}, s71, v{V_W2A}""")
    for c in (3,2,1,0):
        a.e(f'v_xor_b32 v{T}, {c}, v{T+1}')
        a.e(f'v_lshl_add_u32 v{V_W2A+c}, v{T}, 5, v{V_W2A}')
    stamp(a,cfg,9)
    if not cfg.x.get('ydefer'): a.e('s_waitcnt vmcnt(0)')
    a.e('s_barrier')
    stamp(a,cfg,10)
    m_gemm2(a,cfg,tok_y)
    stamp(a,cfg,13)
    stamps_flush(a,cfg)
    a.e(f's_branch {end}')
    p2_special(a,cfg)

def m_gemm2(a,cfg,tok_y):
    V_ACC=80; V_AF=144; D=8; V_G=72
    RB=lambda t: (8+16*(t%D)) if (t%D)<4 else (160+16*(t%D-4))
    toks={}; tokw={}
    def need(d,k):
        while k not in d: a.bg_pop()
    def a_read1(t,c,hh):
        a.e(f'ds_read_b64_tr_b16 {vr(V_AF+4*c+2*hh,2)}, v{V_W2A+c} offset:{(t%8)*4096+2048*hh}')
        return a.lgtok()
    def push_loads(t):
        b=RB(t)
        if t>=14:
            psi=t-14
            for u in range(4):
                a.bg_push([f's_add_u32 s79, s78, {(16*psi+u)*8192}',
                           f'buffer_load_dwordx4 {vr(b+4*u,4)}, v6, {srd(S_WS)}, s79 offen {cfg.f("ldY")}'],
                          (lambda t=t: toks.__setitem__(t,a.vmtok())) if u==3 else None)
            return
        sc=cfg.f('ldA')
        for q in range(4):
            if t in(3,10):
                l=[f'buffer_load_dwordx2 {vr(b+4*q,2)}, v4, {srd(S_WS)}, s69 offen offset:{1024*q} {sc}',
                   f'buffer_load_dwordx2 {vr(b+4*q+2,2)}, v4, {srd(S_WS)}, s69 offen offset:{1024*q+512} {sc}']
            else:
                l=[f'buffer_load_dwordx4 {vr(b+4*q,4)}, v{V_L16}, {srd(S_WS)}, s69 offen offset:{1024*q} {sc}']
            if q==3: l.append('s_add_u32 s69, s69, 4096')
            a.bg_push(l,(lambda t=t: toks.__setitem__(t,a.vmtok())) if q==3 else None)
    def push_w2(t):
        for v in range(4):
            a.bg_push(w2_group(t,v,V_W2D),(lambda t=t: tokw.__setitem__(t,a.vmtok())) if v==3 else None)
    a.e('v_lshlrev_b32 v4, 3, v0')
    npre=cfg.x.get('npre',4)
    for t in range(npre): push_loads(t)
    a.bg_flush()
    if cfg.x.get('ydefer'):
        for nb in range(2):
            a.e(f'buffer_store_dwordx4 {vr(P2["V_B"]+4*nb,4)}, v{V_L16}, {srd(S_WS)}, s62 offen offset:{1024*nb} {cfg.f("stY")}')
        tok_y=a.vmtok()
    nxt=npre
    a.e(f"""v_lshlrev_b32 v5, 4, v1
    v_lshlrev_b32 v6, 15, v2
    v_add_u32 v6, v6, v5
    v_add_u32 v7, s71, v{V_L16}
    s_lshl_b32 s78, {wv}, 19
    s_add_u32 s78, s78, s74
    s_add_u32 s78, s78, {WS_Y}""")
    V_AF2=224; ACC2=[40,56,160,176]; tg={}
    def g_read(psi,c):
        AFp=(V_AF2 if psi%2==0 else V_AF)
        a.e(f'ds_read_b128 {vr(AFp+4*c,4)}, v7 offset:{GSLOT[psi]*4096+c*1024}'); tg[(psi,c)]=a.lgtok()
    def swaps(t):
        b=RB(t)
        for (i,j) in[(0,1),(0,2),(0,3),(1,2),(1,3),(2,3)]:
            a.e(f'v_swap_b32 v{b+4*i+j}, v{b+4*j+i}')
    ta={}
    for c in range(4):
        for hh in range(2): ta[(0,c,hh)]=a_read1(0,c,hh)
    a.bg_set(cfg.x.get('g2r',2),mfma_weight=2)
    TS3=cfg.x.get('ts3',10)
    for t in range(18):
        if cfg.fine==1: stamp(a,cfg,32+t)
        if t<=14:
            need(toks,t); a.wait_vm(toks[t])
        if t+1 in range(8,14):
            need(tokw,t+1); a.wait_vm(tokw[t+1])
        k_=0
        while nxt<14 and nxt-D<t and k_<2 and t<14:
            if nxt-D==t-0 and False: break
            if nxt-D>=t: break
            push_loads(nxt); nxt+=1; k_+=1
        if 1<=t and t-1+8<14: push_w2(t-1+8)
        if t==TS3+1: push_loads(14); push_loads(15)
        if t==TS3+2: push_loads(16); push_loads(17)
        b=RB(t)
        if t<14:
            for c in range(4):
                n=a.lg-ta[(t,c,1)]
                a.e(f's_waitcnt lgkmcnt({min(n,15)})')
                A=vr(V_AF+4*c,4)
                for q in range(4):
                    d=vr(V_ACC+16*q+4*c,4)
                    r=a.bg_rate
                    if q<2: a.bg_rate=0
                    a.e(f'v_mfma_f32_16x16x32_bf16 {d}, {A}, {vr(b+4*q,4)}, {d if t else 0}')
                    if q<2:
                        if c>=1 and t<13: ta[(t+1,c-1,q)]=a_read1(t+1,c-1,q)
                        if c==0 and t>=1: ta[(t,3,q)]=a_read1(t,3,q)
                    a.bg_rate=r
        else:
            psi=t-14; AFp=(V_AF2 if psi%2==0 else V_AF)
            if psi==0: swaps(14)
            for c in range(4):
                a.e(f's_waitcnt lgkmcnt({min(a.lg-tg[(psi,c)],15)})')
                for q in range(4):
                    d=vr(ACC2[q]+4*c,4)
                    a.e(f'v_mfma_f32_16x16x32_bf16 {d}, {vr(AFp+4*c,4)}, {vr(b+4*q,4)}, {d if psi else 0}')
                    if psi<3 and c==0 and q==0:
                        for c2 in range(4): g_read(psi+1,c2)
                    if psi<3 and c==1 and q==0:
                        need(toks,t+1); a.wait_vm(toks[t+1]); swaps(t+1)
        if cfg.x.get('ydefer') and t==cfg.x['ydefer']:
            a.wait_vm(tok_y); a.e('s_barrier')
        if cfg.x.get('fs3') and t==TS3-cfg.x['fs3']: a.e('s_barrier')
        if t==TS3:
            if not cfg.x.get('fs3'):
                a.bg_flush()
                a.e(f's_mov_b32 s93, {WS_CNT+16*128}')
                poll_w0(a,S_WS,'s93',NS3,128,256//NS3)
            a.e('s_barrier')
            a.e(f's_add_u32 s75, s74, {WS_G}')
            a.e(f'buffer_load_dwordx4 {vr(V_G,4)}, v5, {srd(S_WS)}, s75 offen {cfg.f("ldW")}')
            tok_g=a.vmtok()
        if t==13:
            a.e('s_barrier')
            for c in range(4): g_read(0,c)
            stamp(a,cfg,11)
    a.bg_flush(); a.bg_set(0)
    a.need_vm(tok_g)
    for q in range(4): a.e(f'v_sub_f32 v{V_G+q}, 1.0, v{V_G+q}')
    for q in range(4):
        for h in range(8):
            a.e(f'v_pk_fma_f32 {vr(V_ACC+16*q+2*h,2)}, {vr(V_ACC+16*q+2*h,2)}, {vr(V_G+(q&~1),2)}, {vr(ACC2[q]+2*h,2)} op_sel:[0,{q&1},0] op_sel_hi:[1,{q&1},1]')
    stamp(a,cfg,12)
    a.e(f'v_add_u32 v7, s71, v{V_L16}')
    for w in range(4):
        a.e(f's_cmp_lg_u32 {wv}, {w}')
        a.e(f's_cbranch_scc1 L_k3_w{w}')
        a.cond_begin()
        slot=0
        for q in range(4):
            if q==w: continue
            for c in range(4):
                a.e(f'ds_write_b128 v7, {vr(V_ACC+16*q+4*c,4)} offset:{slot*4096+c*1024}')
            slot+=1
        if w!=0:
            for h in range(8): a.e(f'v_pk_mov_b32 {vr(V_ACC+2*h,2)}, {vr(V_ACC+16*w+2*h,2)}, {vr(V_ACC+16*w+2*h,2)} op_sel:[0,1]')
        a.cond_end()
        a.e(f'L_k3_w{w}:')
    a.e('s_waitcnt lgkmcnt(0)'); a.e('s_barrier')
    V_RD=160
    for k in range(1,4):
        a.e(f"""s_add_u32 s76, {wv}, {k}
        s_and_b32 s76, s76, 3
        s_lshl_b32 s77, s76, 15
        s_cmp_lt_u32 {wv}, s76
        s_cselect_b32 s79, 0, 1
        s_sub_u32 s79, {wv}, s79
        s_lshl_b32 s79, s79, 12
        s_add_u32 s77, s77, s79
        v_add_u32 v7, s77, v{V_L16}""")
        for c in range(4): a.e(f'ds_read_b128 {vr(V_RD+16*(k-1)+4*c,4)}, v7 offset:{c*1024}')
    a.e(f"""v_lshlrev_b32 v5, 10, v1
    v_lshl_add_u32 v5, v2, 3, v5
    s_lshl_b32 s76, s72, 17
    s_lshl_b32 s77, {wv}, 15
    s_add_u32 s76, s76, s77
    s_lshl_b32 s77, s73, 14
    s_add_u32 s76, s76, s77
    s_lshl_b32 s77, s68, 7
    s_add_u32 s76, s76, s77""")
    for k in range(3):
        a.e(f's_waitcnt lgkmcnt({8-4*k})')
        for h in range(8): a.e(f'v_pk_add_f32 {vr(V_ACC+2*h,2)}, {vr(V_ACC+2*h,2)}, {vr(V_RD+16*k+2*h,2)}')
    V_O=8
    for c in range(4):
        a.e(f'v_cvt_pk_bf16_f32 v{V_O+2*c}, v{V_ACC+4*c}, v{V_ACC+4*c+1}')
        a.e(f'v_cvt_pk_bf16_f32 v{V_O+2*c+1}, v{V_ACC+4*c+2}, v{V_ACC+4*c+3}')
        a.e(f'buffer_store_dwordx2 {vr(V_O+2*c,2)}, v5, {srd(S_OUT)}, s76 offen offset:{32*c} {str(cfg.x.get("outf","")).replace("_"," ")}')

P2=dict(V_U=8,V_W=40,V_GT=48,V_Q=56,T0=64,V_F64R=80,V_F64I=96,V_F32R=112,V_F32I=128,V_T1C=144,V_T1S=152,V_T3C=160,V_T3S=168,V_DR=176,V_DI=184,V_B=192)
V_FW2D=246
def f_stream(a,cfg,end):
    a.e('L_F:')
    a.e('s_mov_b32 s90, 1')
    if cfg.x.get('fprio'): a.e(f's_setprio {cfg.x["fprio"]}')
    a.e(f'''s_lshr_b32 s49, s2, 5
    s_and_b32 s50, s2, 31
    s_lshl_b32 s51, s6, 17
    s_lshl_b32 s56, {wv}, 13
    s_add_u32 s51, s51, s56
    s_mul_i32 s52, s7, 224
    s_mul_i32 s56, {wv}, 14336
    s_add_u32 s52, s52, s56
    s_lshl_b32 s53, {wv}, 10
    s_mul_i32 s54, {wv}, 960
    s_add_u32 s54, s54, 16384''')
    T=6; V_XD=4; V_WD=5
    a.e(f'''v_lshrrev_b32 v{T}, 3, v0
    v_lshlrev_b32 v{V_XD}, 10, v{T}
    v_lshrrev_b32 v{T}, 1, v{T}
    s_and_b32 s56, {wv}, 1
    s_lshl_b32 s56, s56, 2
    v_add_u32 v{T}, s56, v{T}
    v_and_b32 v{T+1}, 7, v0
    v_xor_b32 v{T}, v{T}, v{T+1}
    v_lshl_add_u32 v{V_XD}, v{T}, 4, v{V_XD}
    v_mul_u32_u24 v{T}, 4682, v0
    v_lshrrev_b32 v{T}, 16, v{T}
    v_mul_u32_u24 v{V_WD}, 3584, v{T}
    v_mul_u32_u24 v{T}, 14, v{T}
    v_sub_u32 v{T}, v0, v{T}
    v_lshl_add_u32 v{V_WD}, v{T}, 4, v{V_WD}
    v_mov_b32 v{V_LC}, {LC_BASE}''')
    a.e(f'''s_lshl_b32 s56, s49, 18
    s_lshl_b32 s57, s50, 10
    s_add_u32 s56, s56, s57
    s_lshl_b32 s57, {wv}, 16
    s_add_u32 s56, s56, s57
    s_add_u32 s58, s56, 32768
    s_mul_i32 s57, {wv}, {2*XA_PITCH}
    s_add_u32 s57, s57, {XA_BASE}''')
    a.e('s_waitcnt lgkmcnt(0)')
    stamp(a,cfg,26)
    a.e(f's_cmp_lg_u32 {wv}, 0'); a.e('s_cbranch_scc1 L_a_r0'); a.cond_begin()
    a.e(f's_mov_b32 m0, {GW_LDS}'); a.e('s_nop 0')
    a.e(f'buffer_load_dwordx4 v{V_L16}, {srd(S_GW)}, 0 offen lds')
    a.cond_end(); a.e('L_a_r0:')
    a.e(f's_cmp_lg_u32 {wv}, 1'); a.e('s_cbranch_scc1 L_a_r1'); a.cond_begin()
    a.e(f's_mul_i32 s64, s7, 224'); a.e(f's_mov_b32 m0, {B1_LDS}'); a.e('s_mov_b64 exec, 0x3fff')
    a.e(f'buffer_load_dwordx4 v{V_L16}, {srd(S_B1)}, s64 offen lds')
    a.e('s_mov_b64 exec, -1')
    a.cond_end(); a.e('L_a_r1:')
    tok_c={}
    def chunk_groups(c):
        gs=[]
        for u in range(4):
            gs.append(([f's_add_u32 m0, s53, {SB(c)+u*4096}', f's_add_u32 s55, s51, {u*32768+c*128}',
                        f'buffer_load_dwordx4 v{V_XD}, {srd(S_X)}, s55 offen lds'],None))
        for u in range(4):
            cb=(lambda c=c: tok_c.__setitem__(c,a.vmtok())) if u==3 else None
            gs.append(([f's_add_u32 m0, s54, {SB(c)+u*3840}', f's_add_u32 s55, s52, {u*57344+c*229376}',
                        's_mov_b32 exec_hi, 0x00ffffff',
                        f'buffer_load_dwordx4 v{V_WD}, {srd(S_W1)}, s55 offen lds',
                        's_mov_b32 exec_hi, -1'],cb))
        return gs
    def push_chunk(c):
        for g_ in chunk_groups(c): a.bg_push(*g_)
    def wait_role(tok,e3,e2):
        n=a.vm-tok; lab=f'L_wr{len(a.items)}'
        a.e(f's_cmp_eq_u32 {wv}, 3'); a.e(f's_cbranch_scc1 {lab}_3')
        a.e('s_cmp_eq_u32 s66, 0'); a.e(f's_cbranch_scc1 {lab}_2')
        a.e(f's_waitcnt vmcnt({n})'); a.e(f's_branch {lab}_e')
        a.e(f'{lab}_3:'); a.e(f's_waitcnt vmcnt({min(n+e3,62)})'); a.e(f's_branch {lab}_e')
        a.e(f'{lab}_2:'); a.e(f's_waitcnt vmcnt({min(n+e2,62)})')
        a.e(f'{lab}_e:')
    def chunk_now(c):
        if cfg.fine==3: stamp(a,cfg,48+2*c%16 if False else 40+c)
        push_chunk(c); a.bg_flush()
        if cfg.fine==3: stamp(a,cfg,50+c)
    if not cfg.x.get('xaearly'):
        a.e(f'''s_mov_b32 m0, s57
        s_add_u32 s57, s57, {XA_PITCH}
        buffer_load_dwordx4 v{V_L16}, {srd(S_X)}, s56 offen lds
        s_mov_b32 m0, s57
        s_nop 0
        buffer_load_dwordx4 v{V_L16}, {srd(S_X)}, s58 offen lds''')
    tok_xa=a.vmtok()
    st={'roles':None,'wt':None}
    V={}
    def do_roles(c):
        st['roles']=c
        a.e('''s_lshr_b32 s59, s50, 3
        s_lshr_b32 s60, s50, 2
        s_and_b32 s60, s60, 1
        s_and_b32 s61, s50, 3
        s_lshl_b32 s62, s59, 4
        s_lshl_b32 s63, s60, 10
        s_add_u32 s62, s62, s63
        s_lshl_b32 s63, s61, 8
        s_add_u32 s62, s62, s63
        s_lshl_b32 s63, s59, 11
        s_lshl_b32 s64, s60, 10
        s_add_u32 s63, s63, s64
        s_lshl_b32 s64, s61, 8
        s_add_u32 s63, s63, s64''')
        V_WR=8; V_WI=24; V_WO=7
        a.e(f's_cmp_lg_u32 {wv}, {9 if cfg.x.get("x_norole") else 3}'); a.e('s_cbranch_scc1 L_a_r3'); a.cond_begin()
        a.e(f'''v_lshrrev_b32 v{V_WO}, 2, v0
        v_mul_u32_u24 v{V_WO}, 514, v{V_WO}
        v_and_b32 v{T}, 3, v0
        v_lshl_add_u32 v{V_WO}, v{T}, 4, v{V_WO}
        s_mul_i32 s64, s62, 514
        s_lshl_b32 s65, s49, 6
        s_add_u32 s64, s64, s65''')
        for r in range(4):
            a.e(f'buffer_load_dwordx4 {vr(V_WR+4*r,4)}, v{V_WO}, {srd(S_WR)}, s64 offen')
            a.e(f'buffer_load_dwordx4 {vr(V_WI+4*r,4)}, v{V_WO}, {srd(S_WI)}, s64 offen')
            if r<3: a.e(f's_add_u32 s64, s64, {64*514}')
        a.cond_end(); a.e('L_a_r3:')
        V_SP=40; V_J=48; V_JR=49
        a.e(f'''s_lshl_b32 s65, s49, 2
        s_xor_b32 s66, {wv}, 2
        s_or_b32 s66, s66, s65''')
        a.e('s_cmp_lg_u32 s66, 0'); a.e('s_cbranch_scc1 L_a_r2'); a.cond_begin()
        a.e(f'''v_lshlrev_b32 v{V_J}, 6, v2
        v_add_u32 v{V_J}, v{V_J}, v1
        v_add_u32 v{V_J}, s62, v{V_J}
        v_sub_u32 v{V_JR}, 2048, v{V_J}
        v_and_b32 v{V_JR}, 2047, v{V_JR}
        v_mul_u32_u24 v{V_J}, 514, v{V_J}
        v_mul_u32_u24 v{V_JR}, 514, v{V_JR}''')
        for n,(S,vv,off) in enumerate([(S_WR,V_J,0),(S_WR,V_J,512),(S_WR,V_JR,0),(S_WR,V_JR,512),(S_WI,V_J,0),(S_WI,V_J,512),(S_WI,V_JR,0),(S_WI,V_JR,512)]):
            a.e(f'buffer_load_ushort v{V_SP+n}, v{vv}, {srd(S)}, 0 offen offset:{off}')
        a.cond_end(); a.e('L_a_r2:')
        tok_role=a.vmtok()
        V.update(V_WR=V_WR,V_WI=V_WI,V_SP=V_SP,tok_role=tok_role)
    def do_wt(c):
        st['wt']=c
        T0=92; V_B1S=68; V_WR=V['V_WR']; V_WI=V['V_WI']; V_SP=V['V_SP']; tok_role=V['tok_role']
        a.e(f's_cmp_lg_u32 {wv}, {9 if cfg.x.get("x_norole") else 3}'); a.e('s_cbranch_scc1 L_a_w3')
        a.wait_vm(tok_role); a.cond_begin()
        V_WP=188
        a.e('s_mov_b32 s78, 0x05040100'); a.e('s_mov_b32 s79, 0x07060302')
        for kk in range(8):
            for r in range(4):
                a.e(f'v_perm_b32 v{V_WP+4*kk+r}, v{V_WI+4*r+(kk>>1)}, v{V_WR+4*r+(kk>>1)}, s{78+(kk&1)}')
        a.e(f'''v_and_b32 v{T0+4}, 3, v0
        v_lshlrev_b32 v{T0+5}, 16, v{T0+4}
        v_lshrrev_b32 v{T0+6}, 2, v0
        v_lshl_add_u32 v{T0+5}, v{T0+6}, 4, v{T0+5}
        s_lshl_b32 s76, s49, 2
        v_add_u32 v{T0+4}, s76, v{T0+4}
        v_cmp_eq_u32 vcc, 0, v{T0+4}
        v_mov_b32 v{T0+6}, {OOB}
        v_cndmask_b32 v{T0+6}, v{T0+5}, v{T0+6}, vcc
        s_lshl_b32 s76, s49, 18
        s_add_u32 s76, s76, s63
        s_add_u32 s76, s76, {WS_WT}''')
        for kk in range(8):
            a.e(f'buffer_store_dwordx4 {vr(V_WP+4*kk,4)}, v{T0+6 if kk==0 else T0+5}, {srd(S_WS)}, s76 offen {cfg.f("stW")}')
            if kk<7: a.e('s_add_u32 s76, s76, 8192')
        a.cond_end(); a.e('L_a_w3:')
        a.e('s_cmp_lg_u32 s66, 0'); a.e('s_cbranch_scc1 L_a_w2')
        a.wait_vm(tok_role); a.cond_begin()
        for n in range(8): a.e(f'v_lshlrev_b32 v{V_SP+n}, 16, v{V_SP+n}')
        s=V_SP; t=V_B1S
        a.e(f'''v_add_f32 v{t}, v{s}, v{s+2}
        v_add_f32 v{t+1}, v{s+1}, v{s+3}
        v_sub_f32 v{t+2}, v{s+4}, v{s+6}
        v_sub_f32 v{t+3}, v{s+5}, v{s+7}
        v_add_f32 v{t+4}, v{t}, v{t+1}
        v_add_f32 v{t+5}, v{t+2}, v{t+3}
        v_sub_f32 v{t+6}, v{t}, v{t+1}
        v_sub_f32 v{t+7}, v{t+2}, v{t+3}
        v_mul_f32 v{t+4}, {fl(0.25)}, v{t+4}
        v_mul_f32 v{t+5}, {fl(0.25)}, v{t+5}
        v_mul_f32 v{t+6}, {fl(0.25)}, v{t+6}
        v_mul_f32 v{t+7}, {fl(0.25)}, v{t+7}
        v_cvt_pk_bf16_f32 v{t}, v{t+4}, v{t+5}
        v_cvt_pk_bf16_f32 v{t+1}, v{t+6}, v{t+7}
        v_lshlrev_b32 v{t+2}, 4, v1
        v_lshl_add_u32 v{t+2}, v2, 2, v{t+2}
        s_add_u32 s77, s63, {WS_QT}
        s_add_u32 s76, s63, {WS_WT}
        buffer_store_dword v{t}, v{t+2}, {srd(S_WS)}, s76 offen {cfg.f("stW")}
        buffer_store_dword v{t+1}, v{t+2}, {srd(S_WS)}, s77 offen {cfg.f("stW")}''')
        a.cond_end(); a.e('L_a_w2:')
    RL=cfg.x.get('rl_after',5); WT=cfg.x.get('wt_after',7)
    def chunk_plus(c):
        chunk_now(c)
        if RL==c: do_roles(c)
        if WT==c: do_wt(c)
    def wait_chunk(c):
        e3=e2=0
        if st['roles'] is not None and st['roles']>=c: e3+=8; e2+=8
        if st['wt'] is not None and st['wt']>=c: e3+=8; e2+=2
        if e3==0: a.wait_vm(tok_c[c])
        else: wait_role(tok_c[c],e3,e2)
    a.e(f'''s_lshl_b32 s65, s49, 2
    s_xor_b32 s66, {wv}, 2
    s_or_b32 s66, s66, s65''')
    chunk_plus(0)
    chunk_plus(1)
    if cfg.x.get('fprio'): a.e('s_setprio 0')
    stamp(a,cfg,0)
    a.wait_vm(tok_xa); a.e('s_barrier')
    stamp(a,cfg,1)
    chunk_plus(2)
    wait_chunk(0); a.e('s_barrier')
    chunk_plus(3)
    wait_chunk(1); a.e('s_barrier')
    chunk_plus(4)
    wait_chunk(2); a.e('s_barrier')
    chunk_plus(5)
    wait_chunk(3); a.e('s_barrier')
    chunk_plus(6)
    wait_chunk(4); a.e('s_barrier')
    chunk_plus(7)
    wait_chunk(5); a.e('s_barrier')
    m_g2_ids(a,cfg)
    w2_dma_addr(a,V_FW2D,244)
    wait_chunk(6); a.e('s_barrier')
    NS1=cfg.x.get('ns1',0)
    if NS1:
        a.e('s_mov_b32 s93, 32'); poll_w0(a,S_DBG,'s93',1,0,1)
    a.e('s_waitcnt vmcnt(0)'); a.e('s_barrier')
    if NS1:
        a.e(f's_and_b32 s92, s5, {NS1-1}'); a.e('s_lshl_b32 s92, s92, 7'); a.e(f's_add_u32 s92, s92, {WS_CNT+32*128}')
        ssignal(a,S_WS,'s92')
    else:
        a.e('s_and_b32 s92, s5, 3'); a.e('s_lshl_b32 s92, s92, 6')
        ssignal(a,S_DBG,'s92')
    a.e('s_barrier')
    stamp(a,cfg,4)
    def w2slots(lo,hi):
        for t in range(lo,hi):
            for v in range(4): a.bg_push(w2_group(t,v,V_FW2D))
        a.bg_flush()
    w2slots(0,cfg.x.get('w2pre',4))
    stamp(a,cfg,5)
    a.e(f's_cmp_lg_u32 {wv}, 0'); a.e('s_cbranch_scc1 L_f_s1'); a.cond_begin()
    if cfg.x.get('s1drain',1): a.e('s_waitcnt vmcnt(0)')
    if NS1:
        a.e(f's_mov_b32 s93, {WS_CNT+32*128}')
        spin_global(a,S_WS,'s93',NS1,128,256//NS1)
    else:
        a.e('s_mov_b32 s93, 0')
        spin_global(a,S_DBG,'s93',4,64,64)
    p2_t_loads(a,cfg)

    a.cond_end(); a.e('L_f_s1:')
    stamp(a,cfg,6)
    a.e('s_waitcnt vmcnt(0)'); a.e('s_barrier')
    a.e(f's_lshl_b32 s92, s6, 7'); a.e(f's_add_u32 s92, s92, {WS_CNT}')
    ssignal(a,S_WS,'s92')
    stamp(a,cfg,7)
    w2slots(cfg.x.get('w2pre',4),8)
    a.e('s_waitcnt vmcnt(0)'); a.e('s_barrier')
    a.e('s_lshl_b32 s56, s4, 5'); a.e('s_add_u32 s56, s56, s5')
    a.e('s_cmp_lg_u32 s56, 0'); a.e('s_cbranch_scc1 L_f_nospec'); a.cond_begin()
    a.e('s_barrier')
    a.cond_end(); a.e('L_f_nospec:')
    a.e(f's_lshl_b32 s93, s72, 7'); a.e(f's_add_u32 s93, s93, {WS_CNT}')
    poll_w0(a,S_WS,'s93',1,0,16)
    a.e('s_barrier')
    if cfg.x.get('ydefer'): a.e('s_barrier')
    a.e(f's_and_b32 s92, s2, {NS3-1}'); a.e('s_lshl_b32 s92, s92, 7'); a.e(f's_add_u32 s92, s92, {WS_CNT+16*128}')
    ssignal(a,S_WS,'s92')
    T0=80; TA=92
    a.e(f"""s_lshl_b32 s75, s68, 6
    v_add_u32 v{T0}, s75, v1
    v_cvt_f32_u32 v{T0}, v{T0}
    s_lshl_b32 s75, {wv}, 6
    v_lshlrev_b32 v{T0+1}, 2, v2
    v_add_u32 v{T0+1}, s75, v{T0+1}
    v_cvt_f32_u32 v{T0+1}, v{T0+1}""")
    for c in range(4):
        a.e(f'v_add_f32 v{T0+2+c}, {fl(16*c)}, v{T0}' if c else f'v_mov_b32 v{T0+2}, v{T0}')
        a.e(f'v_mul_f32 v{T0+2+c}, {fl(1/512)}, v{T0+2+c}')
        a.e(f'v_mul_f32 v{T0+6+c}, v{T0+1}, v{T0+2+c}')
    def pk(d): return lambda c,s: a.e(f'v_cvt_pk_bf16_f32 v{d}, v{c}, v{s}')
    angles(a,[(T0+2+c,T0+6+c,16*psi+u,(None,None,pk(V_GF+16*psi+4*c+u)),False) for (psi,c,u) in G_ITEMS],TA)
    a.e(f"""s_cmp_eq_u32 {wv}, 0
    s_cselect_b32 s76, 0xffff, 0
    s_mov_b32 s77, 0
    v_mov_b32 v{T0}, {hex(0xBF003F00)}
    v_and_b32 v{T0+1}, 1, v1
    v_lshlrev_b32 v{T0+1}, 31, v{T0+1}
    v_xor_b32 v{T0}, v{T0}, v{T0+1}""")
    for c in range(4): a.e(f'v_cndmask_b32 v{V_GF+4*c}, v{V_GF+4*c}, v{T0}, s[76:77]')
    a.e(f'v_add_u32 v7, s71, v{V_L16}')
    if cfg.x.get('fs3'):
        a.e('s_barrier')
        a.e(f's_mov_b32 s93, {WS_CNT+16*128}')
        poll_w0(a,S_WS,'s93',NS3,128,256//NS3)
    a.e('s_barrier')
    for psi in range(4):
        for c in range(4):
            a.e(f'ds_write_b128 v7, {vr(V_GF+16*psi+4*c,4)} offset:{GSLOT[psi]*4096+c*1024}')
    a.e('s_waitcnt lgkmcnt(0)'); a.e('s_barrier')
    stamps_flush(a,cfg)
    a.e(f's_branch {end}')

def p2_t_loads(a,cfg):
    T0=64
    a.e(f'''s_lshl_b32 s56, s4, 5
    s_add_u32 s56, s56, s5
    v_lshrrev_b32 v{T0}, 5, v0
    v_lshlrev_b32 v{T0}, 18, v{T0}
    v_bfe_u32 v{T0+1}, v0, 1, 4
    v_lshl_add_u32 v{T0}, v{T0+1}, 13, v{T0}
    v_and_b32 v{T0+1}, 1, v0
    v_lshl_add_u32 v{T0}, v{T0+1}, 4, v{T0}
    s_lshl_b32 s57, s56, 5
    s_add_u32 s57, s57, {WS_T}''')
    for ks in range(4):
        for mb in range(2):
            a.e(f's_mov_b32 m0, {TB_BASE+2048*ks+1024*mb}')
            a.e(f's_add_u32 s58, s57, {ks*524288+mb*131072}')
            a.e(f'buffer_load_dwordx4 v{T0}, {srd(S_WS)}, s58 offen {cfg.f("ldT")} lds')
    a.e(f's_lshl_b32 s57, s56, 13'); a.e(f's_add_u32 s57, s57, {WS_WT}')
    for j in range(8):
        a.e(f's_mov_b32 m0, {WB_BASE+1024*j}')
        a.e(f's_add_u32 s58, s57, {1024*j}')
        a.e(f'buffer_load_dwordx4 v{V_L16}, {srd(S_WS)}, s58 offen {cfg.f("ldW")} lds')

def p2_small_loads(a,cfg):
    V_W,V_GT,V_Q,T0=P2['V_W'],P2['V_GT'],P2['V_Q'],P2['T0']
    a.e(f'''s_lshl_b32 s56, s4, 5
    s_add_u32 s56, s56, s5
    s_lshl_b32 s60, s56, 13
    s_lshl_b32 s61, {wv}, 11
    s_add_u32 s60, s60, s61
    s_add_u32 s62, s60, {WS_WT}
    s_add_u32 s63, s61, {WS_G}
    s_add_u32 s64, s61, {WS_QT}''')
    for nb in range(2): a.e(f'buffer_load_dwordx4 {vr(V_GT+4*nb,4)}, v{V_L16}, {srd(S_WS)}, s63 offen offset:{1024*nb} {cfg.f("ldW")}')
    a.e(f'''s_cmp_eq_u32 s56, 0
    s_cselect_b32 s65, 0, {OOB}
    v_add_u32 v{T0+2}, s65, v{V_L16}''')
    for eh in range(2): a.e(f'buffer_load_dwordx4 {vr(V_Q+4*eh,4)}, v{T0+2}, {srd(S_WS)}, s64 offen offset:{1024*eh} {cfg.f("ldW")}')

def p2_table_parts(a,cfg):
    p=P2; T0=232; TA=200
    def pk(dr,di):
        def f(c,s):
            a.e(f'v_cvt_pk_bf16_f32 v{dr}, v{c}, v{s}')
            a.e(f'v_cvt_pk_bf16_f32 v{di}, -v{s}, v{c}')
        return f
    def part0():
        a.e(f'''s_lshl_b32 s83, {wv}, 4
        v_add_u32 v{T0}, s83, v1
        v_cvt_f32_u32 v{T0}, v{T0}
        v_lshlrev_b32 v{T0+2}, 2, v2
        v_cvt_f32_u32 v{T0+2}, v{T0+2}
        v_mul_f32 v{T0+1}, {fl(1/64)}, v{T0}
        v_mul_f32 v{T0+3}, v{T0+2}, v{T0+1}''')
        angles(a,[(T0+1,T0+3,16*ks+u,(None,None,pk(p['V_F64R']+4*ks+u,p['V_F64I']+4*ks+u)),False) for ks in range(3) for u in range(4)],TA)
    def part1():
        angles(a,[(T0+1,T0+3,16*ks+u,(None,None,pk(p['V_F64R']+4*ks+u,p['V_F64I']+4*ks+u)),False) for ks in range(3,4) for u in range(4)],TA)
        a.e(f'''v_mul_f32 v{T0+1}, {fl(1/2048)}, v{T0}
        v_mul_f32 v{T0+3}, v{T0+2}, v{T0+1}''')
        angles(a,[(T0+1,T0+3,16*mb+r,(p['V_T1C']+4*mb+r,p['V_T1S']+4*mb+r,None),True) for mb in range(2) for r in range(4)],TA)
    def part2():
        a.e(f'v_cvt_f32_u32 v{T0+7}, v1')
        for eh in range(2):
            a.e(f'''v_add_f32 v{T0+1}, {fl(16*eh)}, v{T0+7}
            v_mul_f32 v{T0+1}, {fl(1/32)}, v{T0+1}
            v_mul_f32 v{T0+3}, v{T0+2}, v{T0+1}''')
            angles(a,[(T0+1,T0+3,16*mb+u,(None,None,pk(p['V_F32R']+8*eh+4*mb+u,p['V_F32I']+8*eh+4*mb+u)),False) for mb in range(2) for u in range(4)],TA)
    def part3():
        a.e(f'''v_cvt_f32_u32 v{T0}, s83
        v_add_f32 v{T0+2}, v{T0}, v{T0+2}''')
        for nb in range(2):
            a.e(f'''v_add_f32 v{T0+1}, {fl(16*nb)}, v{T0+7}
            v_mul_f32 v{T0+1}, {fl(1/2048)}, v{T0+1}
            v_mul_f32 v{T0+3}, v{T0+2}, v{T0+1}''')
            angles(a,[(T0+1,T0+3,r,(p['V_T3C']+4*nb+r,p['V_T3S']+4*nb+r,None),True) for r in range(4)],TA)
    return [part0,part1,part2,part3]

def p2_compute(a,cfg,tok_w):
    p=P2
    V_U,V_W,V_GT,T0=p['V_U'],p['V_W'],p['V_GT'],p['T0']
    V_F64R,V_F64I,V_F32R,V_F32I=p['V_F64R'],p['V_F64I'],p['V_F32R'],p['V_F32I']
    V_T1C,V_T1S,V_T3C,V_T3S=p['V_T1C'],p['V_T1S'],p['V_T3C'],p['V_T3S']
    V_DR,V_DI,V_B=p['V_DR'],p['V_DI'],p['V_B']; TT=200
    a.e(f'''v_lshrrev_b32 v{T0+4}, 1, v2
    v_lshlrev_b32 v{T0+4}, 5, v{T0+4}
    v_lshl_add_u32 v{T0+4}, v1, 1, v{T0+4}
    v_and_b32 v{T0+5}, 1, v2
    v_add_u32 v{T0+4}, v{T0+4}, v{T0+5}
    v_lshlrev_b32 v{T0+4}, 4, v{T0+4}
    v_add_u32 v{T0+4}, {TB_BASE}, v{T0+4}''')
    for ks in range(4):
        for mb in range(2):
            a.e(f'ds_read_b128 {vr(V_U+16*mb+4*ks,4)}, v{T0+4} offset:{2048*ks+1024*mb}')
    V_WR=216; V_WI=224
    a.e(f's_lshl_b32 s65, {wv}, 11'); a.e(f's_add_u32 s65, s65, {WB_BASE}'); a.e(f'v_add_u32 v{T0+6}, s65, v{V_L16}')
    for eh in range(2): a.e(f'ds_read_b128 {vr(V_W+4*eh,4)}, v{T0+6} offset:{1024*eh}')
    for ks in range(4):
        a.e(f's_waitcnt lgkmcnt({8-2*ks})')
        for mb in range(2):
            A=vr(V_U+16*mb+4*ks,4)
            for (D,Fm) in((V_DR,V_F64R),(V_DI,V_F64I)):
                d=vr(D+4*mb,4)
                a.e(f'v_mfma_f32_16x16x32_bf16 {d}, {A}, {vr(Fm+4*ks,4)}, {d if ks else 0}')
    a.e('s_waitcnt lgkmcnt(0)')
    for e in range(8):
        a.e(f'v_lshlrev_b32 v{V_WR+e}, 16, v{V_W+e}')
        a.e(f'v_and_b32 v{V_WI+e}, 0xffff0000, v{V_W+e}')
    for mb in range(2): cmul_pack(a,V_DR+4*mb,V_DI+4*mb,V_T1C+4*mb,V_T1S+4*mb,V_B+4*mb,TT)
    for mb in range(2):
        for eh in range(2):
            for (D,Fm) in((V_DR,V_F32R),(V_DI,V_F32I)):
                d=vr(D+4*eh,4)
                a.e(f'v_mfma_f32_16x16x32_bf16 {d}, {vr(Fm+8*eh+4*mb,4)}, {vr(V_B+4*mb,4)}, {d if mb else 0}')
    a.e(f'''s_lshl_b32 s65, {wv}, 11
    s_add_u32 s65, s65, {XB_BASE}
    v_add_u32 v{T0+4}, s65, v{V_L16}
    v_add_u32 v{T0+5}, {XB_BASE}, v{V_L16}''')
    a.e('s_cmp_lg_u32 s56, 0')
    a.e('s_cbranch_scc0 L_p2_special')
    for eh in range(2): cmul_pack(a,V_DR+4*eh,V_DI+4*eh,V_WR+4*eh,V_WI+4*eh,V_B+4*eh,TT,negim=True)
    a.e('L_p2_join:')
    for ks in range(2):
        for nb in range(2):
            for (D,Fm) in((V_DR,V_F32R),(V_DI,V_F32I)):
                d=vr(D+4*nb,4)
                a.e(f'v_mfma_f32_16x16x32_bf16 {d}, {vr(V_B+4*ks,4)}, {vr(Fm+8*nb+4*ks,4)}, {d if ks else 0}')
    for nb in range(2):
        cmul_pack(a,V_DR+4*nb,V_DI+4*nb,V_T3C+4*nb,V_T3S+4*nb,V_B+4*nb,TT)
        a.e(f'ds_write_b128 v{T0+4}, {vr(V_B+4*nb,4)} offset:{1024*nb}')
    a.e('s_waitcnt lgkmcnt(0)')
    a.e('s_barrier')
    V_X=V_U
    for ks in range(4):
        for nb in range(2):
            a.e(f'ds_read_b128 {vr(V_X+8*ks+4*nb,4)}, v{T0+5} offset:{2048*ks+1024*nb}')
    for ks in range(4):
        a.e(f's_waitcnt lgkmcnt({6-2*ks})')
        for nb in range(2):
            for (D,Fm) in((V_DR,V_F64R),(V_DI,V_F64I)):
                d=vr(D+4*nb,4)
                a.e(f'v_mfma_f32_16x16x32_bf16 {d}, {vr(Fm+4*ks,4)}, {vr(V_X+8*ks+4*nb,4)}, {d if ks else 0}')
    a.wait_vm(tok_w)
    for e in range(8): a.e(f'v_mul_f32 v{V_GT+e}, {fl(2.0**-19)}, v{V_GT+e}')
    a.e(f's_add_u32 s62, s60, {WS_Y}')
    for nb in range(2):
        for h in range(2):
            a.e(f'v_pk_mul_f32 {vr(V_DR+4*nb+2*h,2)}, {vr(V_DR+4*nb+2*h,2)}, {vr(V_GT+4*nb+2*h,2)}')
            a.e(f'v_pk_mul_f32 {vr(V_DI+4*nb+2*h,2)}, {vr(V_DI+4*nb+2*h,2)}, {vr(V_GT+4*nb+2*h,2)}')
        for r in range(4): a.e(f'v_cvt_pk_bf16_f32 v{V_B+4*nb+r}, v{V_DR+4*nb+r}, v{V_DI+4*nb+r}')
        if not cfg.x.get('ydefer'): a.e(f'buffer_store_dwordx4 {vr(V_B+4*nb,4)}, v{V_L16}, {srd(S_WS)}, s62 offen offset:{1024*nb} {cfg.f("stY")}')

def p2_special(a,cfg):
    p=P2
    V_U,V_Q,T0,V_DR,V_DI,V_B=p['V_U'],p['V_Q'],p['T0'],p['V_DR'],p['V_DI'],p['V_B']
    V_WR=216; V_WI=224
    a.e('L_p2_special:')
    a.cond_begin()
    a.e('s_waitcnt vmcnt(0)')
    V_J=T0+8; V_ZA=V_U+16
    a.e(f'''s_lshl_b32 s65, {wv}, 4
    v_lshlrev_b32 v{V_J}, 8, v2
    v_add3_u32 v{V_J}, v{V_J}, v1, s65''')
    for eh in range(2):
        for r in range(4):
            n=1024*eh+64*r
            a.e(f'v_add_u32 v{T0}, {n}, v{V_J}')
            a.e(f'v_lshlrev_b32 v{T0}, 2, v{T0}')
            a.e(f'v_cvt_pk_bf16_f32 v{T0+2}, v{V_DR+4*eh+r}, v{V_DI+4*eh+r}')
            a.e(f'v_add_u32 v{T0}, {ZR_BASE}, v{T0}')
            a.e(f'ds_write_b32 v{T0}, v{T0+2}')
    a.e('s_waitcnt lgkmcnt(0)')
    a.e('s_barrier')
    for eh in range(2):
        for r in range(4):
            n=1024*eh+64*r
            a.e(f'v_sub_u32 v{T0}, {2048-n}, v{V_J}')
            a.e(f'v_and_b32 v{T0}, 2047, v{T0}')
            a.e(f'v_lshlrev_b32 v{T0}, 2, v{T0}')
            a.e(f'v_add_u32 v{T0}, {ZR_BASE}, v{T0}')
            a.e(f'ds_read_b32 v{V_ZA+4*eh+r}, v{T0}')
    a.e('s_waitcnt lgkmcnt(0)')
    for e in range(8):
        zr=V_DR+e; zi=V_DI+e; pr=V_WR+e; pi=V_WI+e; ar_=T0+6; ai=T0+7
        qr=T0; qi=T0+1; yr=T0+2; yi=T0+3
        a.e(f'''v_lshlrev_b32 v{qr}, 16, v{V_Q+e}
        v_and_b32 v{qi}, 0xffff0000, v{V_Q+e}
        v_lshlrev_b32 v{ar_}, 16, v{V_ZA+e}
        v_and_b32 v{ai}, 0xffff0000, v{V_ZA+e}
        v_mul_f32 v{yr}, v{zr}, v{pr}
        v_fma_f32 v{yr}, -v{zi}, v{pi}, v{yr}
        v_fma_f32 v{yr}, v{ar_}, v{qr}, v{yr}
        v_fma_f32 v{yr}, v{ai}, v{qi}, v{yr}
        v_mul_f32 v{yi}, v{zr}, v{pi}
        v_fma_f32 v{yi}, v{zi}, v{pr}, v{yi}
        v_fma_f32 v{yi}, v{ar_}, v{qi}, v{yi}
        v_fma_f32 v{yi}, -v{ai}, v{qr}, v{yi}
        v_cvt_pk_bf16_f32 v{V_B+e}, v{yr}, -v{yi}''')
    a.cond_end()
    a.e('s_branch L_p2_join')

HEADER='''; out = g * irfft2(rfft2(x) * W) + (1 - g) * (mish(x w1 + b1) w2),  g = sigmoid(x . gate_w)      (x: 2048 x 512, bf16)
;
;   waves 4-7 ("F", feeder waves): all LDS-DMA of the GEMM1 operand ring, W transpose, w2 ring prefetch, DFT-matrix fragments,
;       hand-off signals.
; Hand-offs between workgroups go through d_ws with write-through (sc1) stores / sc1 loads and counters:
'''
def build(stamps=False,off=(),**kw):
    cfg=Cfg(); cfg.stamps=stamps; cfg.off=set(off); cfg.x=kw; cfg.fine=kw.get('fine',0)
    label=NAME+'_kernel'
    a=Asm(); end='L_end'
    prologue(a,cfg,end)
    sv=(a.vm,a.lg)
    if kw.get('ffirst'):
        f_stream(a,cfg,end)
        nbF=sum(1 for i in a.items if i.op=='s_barrier'); n0=len(a.items)
        a.vm,a.lg=sv; a.bg_rate=0; assert not a.bg
        a.e('L_M:')
        m_stream(a,cfg,end)
        nbM=sum(1 for i in a.items[n0:] if i.op=='s_barrier')
    else:
        m_stream(a,cfg,end)
        nbM=sum(1 for i in a.items if i.op=='s_barrier'); n0=len(a.items)
        a.vm,a.lg=sv; a.bg_rate=0; assert not a.bg
        f_stream(a,cfg,end)
        nbF=sum(1 for i in a.items[n0:] if i.op=='s_barrier')
    a.e(f'{end}:'); a.e('s_endpgm')
    txt=a.text()
    errs=[]
    for role in (False,True):
        jump=lambda t: (role and t=='L_F') or ((not role) and t=='L_M')
        for nm,pol in (('fall',lambda i,n:i.target.endswith('_done') or jump(i.target)),
                       ('taken',lambda i,n:((not i.target.startswith('L_end')) and n==0 and (i.target not in('L_F','L_M') or jump(i.target))))):
            errs+=verify_waits(a.out,pol,('F' if role else 'M')+nm)
    for e in sorted(set(errs))[:30]: print('WAITERR',e,file=sys.stderr)
    print(dict(a.count()),'barriers M',nbM,'F',nbF,file=sys.stderr)
    out=HEADER+f'; @launch grid=(256,1,1) block=(512,1,1) lds={LDS_TOTAL}\n'
    out+='.amdgcn_target "amdgcn-amd-amdhsa--gfx950"\n.text\n'
    out+=f'.globl {label}\n.p2align 8\n.type {label},@function\n{label}:\n{txt}'
    out+=f'''.section .rodata,"a"
.p2align 6
.amdhsa_kernel {label}
  .amdhsa_next_free_vgpr 256
  .amdhsa_next_free_sgpr 102
  .amdhsa_accum_offset 256
  .amdhsa_group_segment_fixed_size 0
  .amdhsa_kernarg_size 88
  .amdhsa_user_sgpr_count 2
  .amdhsa_user_sgpr_kernarg_segment_ptr 1
  .amdhsa_system_sgpr_workgroup_id_x 1
.end_amdhsa_kernel
'''
    return out

if __name__=='__main__':
    mode=sys.argv[1] if len(sys.argv)>1 else 'persist'
    kw={}
    for x in sys.argv[3:]:
        k,v=x.split('='); kw[k]=int(v) if v.lstrip('-').isdigit() else v
    off=kw.pop('off','').split(',') if 'off' in kw else ()
    txt=build(stamps=(mode=='stamps'),off=off,**kw)
    open(sys.argv[2] if len(sys.argv)>2 else 'out.s','w').write(txt)
```
